```python
import torch

def _softmax(x, axis=-1):
    return torch.softmax(x, dim=axis)
def _gelu(x):
    return torch.nn.functional.gelu(x, approximate="tanh")
def _silu(x):
    return torch.nn.functional.silu(x)
def _sigmoid(x):
    return torch.sigmoid(x)
def _layernorm(x, axis=-1, eps=1e-5):
    m = x.mean(dim=axis, keepdim=True)
    v = x.var(dim=axis, keepdim=True, unbiased=False)
    return (x - m) / torch.sqrt(v + eps)
def _scatter_add(tgt, idx, src, axis=0):
    return tgt.clone().index_add_(axis, idx, src)
def _segment_sum(src, seg, n):
    out = torch.zeros((n,) + src.shape[1:], dtype=src.dtype)
    return out.index_add_(0, seg, src)
def _pad(x, pw):
    flat = tuple(v for pair in reversed(pw) for v in pair)
    return torch.nn.functional.pad(x, flat)

kernel_name = 'standalone__edge_featured_mpnn_mpnn__graph'

def setup_inputs():

    _w = (lambda a: (lambda t: t.to(torch.bfloat16) if t.is_floating_point() else t)(torch.as_tensor(a)))
    N, deg, D, De = 10000, 16, 256, max(0, 1)
    E = N * deg
    H = 2 * D
    return {
        "x": _w((lambda *s: torch.randn(*s, dtype=torch.bfloat16) * 0.05)(N, D)),
        "e_attr": _w((lambda *s: torch.randn(*s, dtype=torch.bfloat16) * 1.6)(E, De)),
        "src": _w((lambda lo, hi, *s: torch.randint(lo, hi, s))(0, N, E).to(torch.int64)),
        "dst": _w((lambda lo, hi, *s: torch.randint(lo, hi, s))(0, N, E).to(torch.int64)),
        "w1": _w((lambda *s: torch.randn(*s, dtype=torch.bfloat16) * 1.6)(2 * D + De, H) * (1.0 / (2 * D + De) ** 0.5)),
        "b1": _w((lambda *s: torch.randn(*s, dtype=torch.bfloat16) * 0.8)(H) * 0.01),
        "w2": _w((lambda *s: torch.randn(*s, dtype=torch.bfloat16) * 0.05)(H, D) * (1.0 / H ** 0.5)),
        "b2": _w((lambda *s: torch.randn(*s, dtype=torch.bfloat16) * 0.05)(D) * 0.01),
    }

def reference(x, e_attr, src, dst, w1, b1, w2, b2):
    N, D = x.shape
    h_src = x[src]
    h_dst = x[dst]
    m_in = torch.concatenate([h_src, h_dst, e_attr], axis=-1)
    h = _silu(m_in @ w1 + b1)
    msg = h @ w2 + b2
    return _segment_sum(msg, dst, N)
```

```python
import struct
import sys

N, E, D, H = 10000, 160000, 256, 512
NR = 10080
SS = NR * 128
P_OFF, Q_OFF, S_OFF = 0, 8 * SS, 16 * SS
RNG = 313
NCHUNK, CHUNK, CAP = 250, 640, 48
CELL = CAP * 8
RBLK = NCHUNK * CELL
REC_OFF = 24 * SS
DEG_OFF = REC_OFF + 32 * RBLK
W2F_OFF = (DEG_OFF + NR * 4 + 1023) // 1024 * 1024
WS_END = W2F_OFF + 262144
MAXDEG = 48
ELLS = (MAXDEG + 1) * 4


def fbits(x):
    return struct.unpack("<I", struct.pack("<f", x))[0]


NLOG2E = fbits(-1.4426950408889634)
NLN2 = fbits(-0.6931471805599453)

assert all((d * 13401) >> 22 == d // RNG for d in range(10016))
assert all((q * 2731) >> 16 == q // 24 for q in range(768))
assert all((n * 205) >> 11 == n // 10 for n in range(80))


class Asm:
    def __init__(self):
        self.lines = []
        self.vm = []
        self.lg = []

    def __call__(self, *ls):
        for l in ls:
            self.lines.append(l if l.endswith(":") else "    " + l)

    def vmem(self, line, tag=None):
        self(line)
        self.vm.append(tag)

    def lds(self, line, tag=None):
        self(line)
        self.lg.append(tag)

    @staticmethod
    def _need(q, tags):
        last = -1
        for i, t in enumerate(q):
            if t in tags:
                last = i
        return None if last < 0 else len(q) - 1 - last

    def wait(self, vm=None, lg=None):
        parts = []
        if vm is not None:
            n = 0 if vm == "all" else self._need(self.vm, vm if isinstance(vm, (list, tuple, set)) else [vm])
            if n is not None:
                n = min(n, 63)
                parts.append(f"vmcnt({n})")
                self.vm = self.vm[len(self.vm) - n:] if n else []
        if lg is not None:
            n = 0 if lg == "all" else self._need(self.lg, lg if isinstance(lg, (list, tuple, set)) else [lg])
            if n is not None:
                n = min(n, 15)
                parts.append(f"lgkmcnt({n})")
                self.lg = self.lg[len(self.lg) - n:] if n else []
        if parts:
            self("s_waitcnt " + " ".join(parts))

    def srd(self, s, base, off, size, stride=0):
        if off == 0:
            self(f"s_mov_b32 s{s}, s{base}", f"s_and_b32 s{s+1}, s{base+1}, 0xffff")
        else:
            self(f"s_add_u32 s{s}, s{base}, {off}", f"s_addc_u32 s{s+1}, s{base+1}, 0",
                 f"s_and_b32 s{s+1}, s{s+1}, 0xffff")
        if stride:
            self(f"s_or_b32 s{s+1}, s{s+1}, {stride << 16}")
        self(f"s_mov_b32 s{s+2}, {size}", f"s_mov_b32 s{s+3}, 0x20000")


def vr(a, n=1):
    return f"v{a}" if n == 1 else f"v[{a}:{a+n-1}]"


def sr(a, n=1):
    return f"s{a}" if n == 1 else f"s[{a}:{a+n-1}]"


def header(a, name):
    a.lines += [f".globl {name}", ".p2align 8", f".type {name},@function", f"{name}:"]


def descriptor(name, nv, ns):
    acc = (nv + 3) // 4 * 4
    return [".p2align 6", f".amdhsa_kernel {name}", f"  .amdhsa_next_free_vgpr {nv}",
            f"  .amdhsa_next_free_sgpr {ns}", f"  .amdhsa_accum_offset {acc}",
            "  .amdhsa_group_segment_fixed_size 0", "  .amdhsa_kernarg_size 88",
            "  .amdhsa_user_sgpr_count 2", "  .amdhsa_user_sgpr_kernarg_segment_ptr 1",
            "  .amdhsa_system_sgpr_workgroup_id_x 1", "  .amdhsa_float_denorm_mode_32 3",
            ".end_amdhsa_kernel"]


K1_REG = 36864
K1_IMG = 4 * K1_REG
K1_CNT = K1_IMG + 32 * CELL
K1_LDS = K1_CNT + 128


def k1():
    a = Asm()
    header(a, "k1_kernel")
    sX, sW, sO, sDst, sSrc, sE, sRec, sB = 24, 28, 32, 36, 40, 44, 48, 52
    sw, stile, su, st0, st1, sWB, sXo, sOo, sK, sMask, sRB = 56, 57, 58, 59, 60, 61, 62, 63, 64, 66, 67
    vW = 0
    vLane, vT0, vT1, vT2 = 1, 2, 3, 4
    vAad = 6
    vTr = 14
    vXd = 16
    vWd, vSt = 20, 21
    vBias = 22
    vA = 24
    vAcc = 40
    vW = 104
    nv = vW + 128
    vDst, vSrc, vEe, vD, vSl, vCa, vRd, vCn, vRo = 40, 44, 48, 52, 60, 64, 68, 80, 84

    a("s_cmp_ge_u32 s2, 256", "s_cbranch_scc1 K1_END")
    a("s_load_dwordx16 s[4:19], s[0:1], 0", "s_load_dwordx2 s[20:21], s[0:1], 80")
    a(f"v_lshrrev_b32 v{vT0}, 6, v0", f"v_and_b32 v{vLane}, 63, v0", f"v_readfirstlane_b32 s{sw}, v{vT0}")
    a(f"s_lshr_b32 s{st0}, s2, 3", f"s_and_b32 s{su}, s{st0}, 3", f"s_lshl_b32 s{su}, s{su}, 2",
      f"s_lshr_b32 s{st0}, s{st0}, 2", f"s_lshl_b32 s{st0}, s{st0}, 3", f"s_and_b32 s{stile}, s2, 7",
      f"s_add_u32 s{stile}, s{stile}, s{st0}", f"s_add_u32 s{su}, s{su}, s{sw}")
    a(f"s_mul_i32 s{sRB}, s{sw}, {K1_REG}", f"s_add_u32 s{sWB}, s{sRB}, 4096")
    a(f"s_mov_b32 s{sK}, {NLOG2E}", f"s_mov_b32 s{sK+1}, {NLOG2E}", f"s_mov_b32 s{sMask}, 0xffff0000")
    a(f"s_mul_i32 s{st0}, s2, {CHUNK // 4}", f"s_mul_i32 s{st1}, s{sw}, 40", f"s_add_u32 s{st0}, s{st0}, s{st1}",
      f"v_add_u32 v{vT0}, s{st0}, v{vLane}", f"v_lshlrev_b32 v{vT1}, 4, v{vT0}", f"v_lshlrev_b32 v{vT2}, 3, v{vT0}")
    a("s_waitcnt lgkmcnt(0)")
    a.srd(sDst, 10, 0, E * 4)
    a.srd(sSrc, 8, 0, E * 4)
    a.srd(sE, 6, 0, E * 2)
    a("s_mov_b32 exec_lo, -1", "s_mov_b32 exec_hi, 0xff")
    a.vmem(f"buffer_load_dwordx4 {vr(vDst,4)}, v{vT1}, {sr(sDst,4)}, 0 offen", "sort")
    a.vmem(f"buffer_load_dwordx4 {vr(vSrc,4)}, v{vT1}, {sr(sSrc,4)}, 0 offen", "sort")
    a.vmem(f"buffer_load_dwordx2 {vr(vEe,2)}, v{vT2}, {sr(sE,4)}, 0 offen", "sort")
    a("s_mov_b64 exec, -1")
    a.srd(sX, 4, 0, N * 512)
    a.srd(sW, 12, 0, 513 * 1024)
    a.srd(sO, 20, 0, 16 * SS)
    a.srd(sRec, 20, REC_OFF, 32 * RBLK)
    a(f"s_cmp_lt_u32 s2, {NCHUNK}", f"s_cselect_b32 s{sRec+2}, s{sRec+2}, 0")
    a.srd(sB, 14, 0, 1024)
    a(f"s_cmp_ge_u32 s{su}, 8", f"s_cselect_b32 s{sB+2}, s{sB+2}, 0")

    def lds_init():
        a(f"v_mov_b32 v{vRd}, 0", f"v_mov_b32 v{vRd+1}, 0", f"v_mov_b32 v{vRd+2}, 0", f"v_mov_b32 v{vRd+3}, 0",
          f"v_lshlrev_b32 v{vT0}, 4, v0", f"v_add_u32 v{vT0}, {K1_IMG}, v{vT0}")
        for i in range(3):
            a.lds(f"ds_write_b128 v{vT0}, {vr(vRd,4)} offset:{4096*i}")
        a(f"v_and_b32 v{vT1}, 31, v0", f"v_lshlrev_b32 v{vT1}, 2, v{vT1}", f"v_add_u32 v{vT1}, {K1_CNT}, v{vT1}")
        a.lds(f"ds_write_b32 v{vT1}, v{vRd}")
        a.wait(lg="all")
        a("s_barrier")

    def sort_scatter():
        a.wait(vm="sort")
        a("s_mov_b32 exec_lo, -1", "s_mov_b32 exec_hi, 0xff")
        a(f"s_mov_b32 s{st0}, 13401", f"s_mov_b32 s{st1}, {-RNG & 0xffffffff}", f"v_mov_b32 v{vT2}, 1")
        for i in range(4):
            a(f"v_mul_u32_u24 v{vCa+i}, s{st0}, v{vDst+i}", f"v_lshrrev_b32 v{vCa+i}, 22, v{vCa+i}",
              f"v_lshlrev_b32 v{vT0}, 2, v{vCa+i}", f"v_add_u32 v{vT0}, {K1_CNT}, v{vT0}")
            a.lds(f"ds_add_rtn_u32 v{vSl+i}, v{vT0}, v{vT2}", f"sl{i}")
        for i in range(4):
            a(f"v_mad_i32_i24 v{vD+2*i+1}, v{vCa+i}, s{st1}, v{vDst+i}",
              f"v_lshl_add_u32 v{vD+2*i+1}, v{vD+2*i+1}, 2, 4")
            if i & 1:
                a(f"v_and_or_b32 v{vD+2*i}, v{vEe+i//2}, s{sMask}, v{vSrc+i}")
            else:
                a(f"v_lshl_or_b32 v{vD+2*i}, v{vEe+i//2}, 16, v{vSrc+i}")
            a(f"v_mul_u32_u24 v{vCa+i}, {CELL}, v{vCa+i}", f"v_add_u32 v{vCa+i}, {K1_IMG}, v{vCa+i}")
        a(f"v_mov_b32 v{vT1}, 0x100000")
        for i in range(4):
            a.wait(lg=f"sl{i}")
            a(f"v_lshl_add_u32 v{vCa+i}, v{vSl+i}, 3, v{vCa+i}", f"v_cmp_gt_u32 vcc, {CAP}, v{vSl+i}", "s_nop 1",
              f"v_cndmask_b32 v{vCa+i}, v{vT1}, v{vCa+i}, vcc")
            a.lds(f"ds_write_b64 v{vCa+i}, {vr(vD+2*i,2)}")
        a("s_mov_b64 exec, -1")

    def sort_readout():
        a(f"s_mov_b32 s{st0}, {RBLK - CELL}", f"s_mul_i32 s{st1}, s2, {CELL}")
        a(f"v_lshlrev_b32 v{vT0}, 4, v0", f"v_add_u32 v{vT1}, {K1_IMG}, v{vT0}")
        for i in range(3):
            a.lds(f"ds_read_b128 {vr(vRd+4*i,4)}, v{vT1} offset:{4096*i}", f"rd{i}")
            a(f"v_add_u32 v{vT2}, {256*i}, v0", f"v_mul_u32_u24 v{vT2}, 2731, v{vT2}", f"v_lshrrev_b32 v{vT2}, 16, v{vT2}",
              f"v_mad_u32_u24 v{vRo+i}, v{vT2}, s{st0}, v{vT0}",
              f"v_lshlrev_b32 v{vT2}, 2, v{vT2}", f"v_add_u32 v{vT2}, {K1_CNT}, v{vT2}")
            a.lds(f"ds_read_b32 v{vCn+i}, v{vT2}", f"rd{i}")
        for i in range(3):
            a.wait(lg=f"rd{i}")
            a(f"v_cmp_ge_u32 vcc, {CAP}, v{vCn+i}", f"v_add_u32 v{vRo+i}, {4096*i}, v{vRo+i}", "s_nop 0",
              f"v_cndmask_b32 v{vRd+4*i+1}, -1, v{vRd+4*i+1}, vcc")
            a.vmem(f"buffer_store_dwordx4 {vr(vRd+4*i,4)}, v{vRo+i}, {sr(sRec,4)}, s{st1} offen", "rec")

    a(f"s_cmp_eq_u32 s{stile}, 63", "s_cbranch_scc1 K1_PREP")
    saved_vm = list(a.vm)

    a(f"v_lshrrev_b32 v{vT0}, 5, v{vLane}", f"s_lshl_b32 s{st0}, s{sw}, 3", f"v_add_u32 v{vT0}, s{st0}, v{vT0}",
      f"v_and_b32 v{vT1}, 31, v{vLane}")
    for m in range(4):
        a(f"v_add_u32 v{vT2}, {2*m}, v{vT0}", f"v_and_b32 v{vXd+m}, 15, v{vT2}", f"v_xor_b32 v{vXd+m}, v{vXd+m}, v{vT1}",
          f"v_lshlrev_b32 v{vXd+m}, 4, v{vXd+m}", f"v_lshl_add_u32 v{vXd+m}, v{vT2}, 9, v{vXd+m}")
    a(f"s_mul_i32 s{sXo}, s{stile}, {160*512}")

    def x_dma(j):
        a(f"s_add_u32 s{st1}, s{sXo}, {j*32*512}")
        for m in range(4):
            a(f"s_add_u32 m0, s{sRB}, {j*4096 + m*1024}", "s_nop 0")
            a.vmem(f"buffer_load_dwordx4 v{vXd+m}, {sr(sX,4)}, s{st1} offen lds", f"x{j}")
    x_dma(0)
    a(f"v_lshrrev_b32 v{vT0}, 3, v{vLane}", f"v_and_b32 v{vT1}, 7, v{vLane}", f"v_and_b32 v{vT2}, 16, v{vLane}",
      f"v_lshrrev_b32 v{vT2}, 2, v{vT2}", f"v_xor_b32 v{vT1}, v{vT1}, v{vT2}", f"v_lshlrev_b32 v{vT1}, 4, v{vT1}",
      f"v_lshl_add_u32 v{vWd}, v{vT0}, 10, v{vT1}")
    a(f"s_lshr_b32 s{st0}, s{su}, 3", f"s_lshl_b32 s{st0}, s{st0}, 18", f"s_and_b32 s{st1}, s{su}, 7",
      f"s_lshl_b32 s{st1}, s{st1}, 7", f"s_add_u32 s{st0}, s{st0}, s{st1}")
    a(f"v_and_b32 v{vT0}, 31, v{vLane}", f"v_lshlrev_b32 v{vT0}, 1, v{vT0}")
    a.vmem(f"buffer_load_ushort v{vBias}, v{vT0}, {sr(sB,4)}, s{st1} offen", "bias")
    a.vmem(f"buffer_load_ushort v{vBias+1}, v{vT0}, {sr(sB,4)}, s{st1} offen offset:64", "bias")
    for n in range(32):
        a(f"s_add_u32 m0, s{sWB}, {n*1024}")
        if n:
            a(f"s_add_u32 s{st0}, s{st0}, 8192")
        else:
            a("s_nop 0")
        a.vmem(f"buffer_load_dwordx4 v{vWd}, {sr(sW,4)}, s{st0} offen lds", f"w{n//2}")
    lds_init()
    a(f"v_and_b32 v{vT0}, 31, v{vLane}", f"v_lshrrev_b32 v{vT1}, 3, v{vT0}", f"v_mul_u32_u24 v{vAad}, {K1_REG}, v{vT1}",
      f"v_and_b32 v{vT1}, 7, v{vT0}", f"v_lshl_add_u32 v{vAad}, v{vT1}, 9, v{vAad}",
      f"v_lshrrev_b32 v{vT1}, 5, v{vLane}", f"v_and_b32 v{vT2}, 15, v{vLane}", f"v_xor_b32 v{vT2}, v{vT2}, v{vT1}",
      f"v_lshl_add_u32 v{vAad}, v{vT2}, 4, v{vAad}")
    for s in range(1, 8):
        a(f"v_xor_b32 v{vAad+s}, {32*s}, v{vAad}")
    a(f"v_lshlrev_b32 v{vSt}, 9, v{vT1}", f"v_lshl_add_u32 v{vSt}, v{vT0}, 2, v{vSt}")
    a(f"v_lshlrev_b32 v{vTr}, 10, v{vT1}", f"v_bfe_u32 v{vT0}, v{vLane}, 2, 2", f"v_lshl_add_u32 v{vTr}, v{vT0}, 7, v{vTr}",
      f"v_bfe_u32 v{vT0}, v{vLane}, 3, 1", f"v_lshl_add_u32 v{vTr}, v{vT0}, 6, v{vTr}",
      f"v_bfe_u32 v{vT0}, v{vLane}, 4, 1", f"v_lshl_add_u32 v{vTr}, v{vT0}, 5, v{vTr}",
      f"v_and_b32 v{vT0}, 3, v{vLane}", f"v_lshl_add_u32 v{vTr}, v{vT0}, 3, v{vTr}",
      f"v_add_u32 v{vTr}, s{sWB}, v{vTr}", f"v_xor_b32 v{vTr+1}, 64, v{vTr}")
    a(f"s_mul_i32 s{sOo}, s{su}, {SS}", f"s_mul_i32 s{st0}, s{stile}, {160*128}", f"s_add_u32 s{sOo}, s{sOo}, s{st0}")
    sort_scatter()
    a.wait(vm=["x0", "bias"], lg="all")
    a("s_barrier")
    a(f"v_lshlrev_b32 v{vBias}, 16, v{vBias}", f"v_lshlrev_b32 v{vBias+1}, 16, v{vBias+1}",
      f"v_mul_f32 v{vBias}, s{sK}, v{vBias}", f"v_mul_f32 v{vBias+1}, s{sK}, v{vBias+1}")
    sort_readout()

    def wfrag(s, b):
        return vW + (s * 2 + b) * 4

    def a_read(j, s):
        a.lds(f"ds_read_b128 {vr(vA + 4*((16*j+s) % 4), 4)}, v{vAad + (s & 7)} offset:{4096*j + 256*(s >> 3)}", f"a{j}_{s}")

    def w_read(s):
        a.wait(vm=f"w{s}")
        for b in range(2):
            for q in range(2):
                a.lds(f"ds_read_b64_tr_b16 {vr(wfrag(s, b) + 2*q, 2)}, v{vTr+b} offset:{s*2048 + q*512}", f"t{s}")

    def mfma(j, s, b):
        acc = vAcc + 32 * (j & 1) + 16 * b
        c = "0" if s == 0 else vr(acc, 16)
        a(f"v_mfma_f32_32x32x16_bf16 {vr(acc,16)}, {vr(vA + 4*((16*j+s) % 4), 4)}, {vr(wfrag(s, b), 4)}, {c}")

    def epilogue_ops(j):
        acc = vAcc + 32 * (j & 1)
        ops = [("s", f"s_add_u32 s{st1}, s{sOo}, {j*32*128}")]
        for r in range(0, 16, 2):
            ops.append(("v", f"v_pk_fma_f32 {vr(acc+r,2)}, {vr(acc+r,2)}, {sr(sK,2)}, {vr(vBias,2)} op_sel:[0,0,0] op_sel_hi:[1,1,0]"))
            ops.append(("v", f"v_pk_fma_f32 {vr(acc+16+r,2)}, {vr(acc+16+r,2)}, {sr(sK,2)}, {vr(vBias,2)} op_sel:[0,0,1] op_sel_hi:[1,1,1]"))
            for rr in (r, r + 1):
                ops.append(("v", f"v_cvt_pk_bf16_f32 v{acc+rr}, v{acc+rr}, v{acc+16+rr}"))
            for rr in (r, r + 1):
                ops.append(("m", f"buffer_store_dword v{acc+rr}, v{vSt}, {sr(sO,4)}, s{st1} offen offset:{(8*(rr>>2) + (rr&3))*128}"))
        return ops

    def emit_op(op):
        if op[0] == "m":
            a.vmem(op[1], "st")
        else:
            a(op[1])

    a("s_nop 1")
    PF = 2
    for s in range(PF):
        w_read(s)
        a_read(0, s)
    for s in range(16):
        if s + PF < 16:
            w_read(s + PF)
            a_read(0, s + PF)
        a.wait(lg=[f"t{s}", f"a0_{s}"])
        mfma(0, s, 0)
        mfma(0, s, 1)
        if s == 7:
            for j in range(1, 5):
                x_dma(j)
    PFA = 3
    a.wait(vm="x1")
    a("s_barrier")
    for s in range(PFA):
        a_read(1, s)
    for j in range(1, 5):
        ops = epilogue_ops(j - 1)
        for s in range(16):
            if s + PFA == 16 and j < 4:
                a.wait(vm=f"x{j+1}")
                a("s_barrier")
            a.wait(lg=f"a{j}_{s}")
            mfma(j, s, 0)
            if s + PFA < 16:
                a_read(j, s + PFA)
            elif j < 4:
                a_read(j + 1, s + PFA - 16)
            if s >= 3:
                for _ in range(2):
                    if ops:
                        emit_op(ops.pop(0))
            mfma(j, s, 1)
            if s >= 3:
                for _ in range(2):
                    if ops:
                        emit_op(ops.pop(0))
        assert not ops
    a("s_nop 15")
    for op in epilogue_ops(4):
        emit_op(op)
    a("s_endpgm")

    a("K1_PREP:")
    a.vm = saved_vm
    a.lg = []
    sW2, sF = sX, sW
    a.srd(sW2, 16, 0, 512 * 512)
    a.srd(sF, 20, W2F_OFF, 262144)
    vL = vW
    vOut = vW + 64
    a(f"v_and_b32 v{vT0}, 15, v{vLane}", f"v_lshrrev_b32 v{vT1}, 4, v{vLane}", f"v_lshlrev_b32 v{vT0}, 2, v{vT0}",
      f"v_lshl_add_u32 v{vWd}, v{vT1}, 11, v{vT0}", f"v_lshlrev_b32 v{vSt}, 4, v{vLane}")
    a(f"s_lshr_b32 s{st0}, s{su}, 1", f"s_lshl_b32 s{st0}, s{st0}, 6", f"s_and_b32 s{st1}, s{su}, 1",
      f"s_lshl_b32 s{st1}, s{st1}, 17", f"s_add_u32 s{sXo}, s{st0}, s{st1}", f"s_lshl_b32 s{sOo}, s{su}, 14")
    for half in range(2):
        for s in range(4 * half, 4 * half + 4):
            for i in range(8):
                row = (s >> 1) * 64 + 16 * (s & 1) + (i >> 1) + 32 * (i & 1)
                a(f"s_add_u32 s{st0}, s{sXo}, {row*512}")
                a.vmem(f"buffer_load_dword v{vL + 8*s + i}, v{vWd}, {sr(sW2,4)}, s{st0} offen", f"l{s}")
        if half == 0:
            lds_init()
            sort_scatter()
            a.wait(lg="all")
            a("s_barrier")
            sort_readout()
            a.wait(vm="l3")
    a(f"s_mov_b32 s{sK}, 0x05040100", f"s_mov_b32 s{sK+1}, 0x07060302")
    for s in range(8):
        a.wait(vm=f"l{s}")
        for b in range(2):
            o = vOut + 8 * s + 4 * b
            for m in range(4):
                a(f"v_perm_b32 v{o+m}, v{vL + 8*s + 2*m + 1}, v{vL + 8*s + 2*m}, s{sK+b}")
            a(f"s_add_u32 s{st0}, s{sOo}, {(2*s+b)*1024}")
            a.vmem(f"buffer_store_dwordx4 {vr(o,4)}, v{vSt}, {sr(sF,4)}, s{st0} offen")
    a("K1_END:", "s_endpgm")
    return a.lines, descriptor("k1_kernel", nv, 72)


K2_CNT = 64
K2_HIST = K2_CNT + 1280
K2_MISC = K2_HIST + 256
K2_ORD = K2_MISC + 64
K2_Q = 3072
K2_ELL = K2_Q + 320 * 128
K2_LDS = K2_ELL + 320 * ELLS + 64
NGRP = 40


def k2():
    a = Asm()
    header(a, "k2_kernel")
    sRec, sP, sQ, sS, sW1, sDeg, sPf = 24, 28, 32, 36, 40, 44, 48
    sw, sk, srng, scnt, st0, st1, sg, sdmax, sdmin, sK, sBig, sOne = 52, 53, 54, 55, 56, 57, 58, 59, 60, 62, 64, 66
    sM = 68
    vLane, vT0, vT1, vT2, vT3 = 1, 2, 3, 4, 5
    vI4, vAh, vAl = 6, 8, 10
    vE, vEs = 12, 14
    vIdx = 16
    vSh, vEll, vEe, vDeg, vOut, vOrdL, vHoff = 24, 25, 26, 27, 28, 29, 30
    vQ = 32
    vNum, vDen, vT = 48, 56, 64
    vP = 72
    vZ = 88
    nv = vZ + 32
    vRec = 88
    vSl = 48
    vC = 32
    vPf = 60

    a("s_cmp_ge_u32 s2, 256", "s_cbranch_scc1 K2_END")
    a("s_load_dwordx16 s[4:19], s[0:1], 0", "s_load_dwordx2 s[20:21], s[0:1], 80")
    a(f"v_lshrrev_b32 v{vT0}, 6, v0", f"v_and_b32 v{vLane}, 63, v0", f"v_readfirstlane_b32 s{sw}, v{vT0}")
    a(f"s_and_b32 s{sk}, s2, 7", f"s_lshr_b32 s{srng}, s2, 3")
    a(f"s_mul_i32 s{st0}, s{srng}, {RNG}", f"s_sub_u32 s{scnt}, {N}, s{st0}", f"s_min_u32 s{scnt}, s{scnt}, {RNG}")
    a(f"v_lshlrev_b32 v{vT0}, 4, v0")
    a(f"s_mul_i32 s{st1}, s{srng}, {RBLK}", f"s_add_u32 s{st1}, s{st1}, {REC_OFF}")
    a("s_waitcnt lgkmcnt(0)")
    a.srd(sRec, 20, f"s{st1}", RBLK)
    for i in range(6):
        a(f"s_mov_b32 s{st1}, {16384*i}")
        a.vmem(f"buffer_load_dwordx4 {vr(vRec+4*i,4)}, v{vT0}, {sr(sRec,4)}, s{st1} offen", f"r{i}")
    a.srd(sW1, 12, 512 * 1024, 1024)
    a(f"v_and_b32 v{vT1}, 1, v{vLane}", f"v_lshlrev_b32 v{vT1}, 6, v{vT1}",
      f"v_bfe_u32 v{vT2}, v{vLane}, 2, 1", f"v_lshl_add_u32 v{vT1}, v{vT2}, 5, v{vT1}",
      f"v_bfe_u32 v{vT2}, v{vLane}, 3, 1", f"v_lshl_add_u32 v{vT1}, v{vT2}, 2, v{vT1}",
      f"v_bfe_u32 v{vT2}, v{vLane}, 1, 1", f"v_lshl_add_u32 v{vT1}, v{vT2}, 1, v{vT1}",
      f"s_lshl_b32 s{st1}, s{sk}, 7")
    for i in range(4):
        a.vmem(f"buffer_load_ushort v{vC+i}, v{vT1}, {sr(sW1,4)}, s{st1} offen offset:{8*i}", "c")
    a(f"s_mul_i32 s{st1}, s{sk}, {SS}", f"s_lshl_b32 s{sg}, s{st0}, 7", f"s_add_u32 s{sg}, s{sg}, s{st1}",
      f"s_lshl_b32 s{sdmax}, s{scnt}, 7")
    a.srd(sP, 20, f"s{st1}", N, stride=128)
    a.srd(sPf, 20, f"s{sg}", f"s{sdmax}")
    a(f"s_add_u32 s{sg}, s{sg}, {Q_OFF}")
    a.srd(sQ, 20, f"s{sg}", f"s{sdmax}")
    a(f"s_add_u32 s{sg}, s{sg}, {S_OFF - Q_OFF}")
    a.srd(sS, 20, f"s{sg}", f"s{sdmax}")
    a(f"s_lshl_b32 s{sg}, s{st0}, 2", f"s_add_u32 s{sg}, s{sg}, {DEG_OFF}", f"s_lshl_b32 s{sdmax}, s{scnt}, 2",
      f"s_cmp_eq_u32 s{sk}, 0", f"s_cselect_b32 s{sdmax}, s{sdmax}, 0")
    a.srd(sDeg, 20, f"s{sg}", f"s{sdmax}")
    a(f"v_lshlrev_b32 v{vT1}, 4, v{vLane}", f"s_lshl_b32 s{st1}, s{sw}, 10")
    for i in range(2):
        a(f"s_add_u32 m0, s{st1}, {K2_Q}", "s_nop 0")
        a.vmem(f"buffer_load_dwordx4 v{vT1}, {sr(sQ,4)}, s{st1} offen lds", "q")
        a(f"s_add_u32 s{st1}, s{st1}, 16384")
    a(f"s_cmp_ge_u32 s{sw}, 8", "s_cbranch_scc1 K2_NOQ3")
    a(f"s_add_u32 m0, s{st1}, {K2_Q}", "s_nop 0")
    a(f"buffer_load_dwordx4 v{vT1}, {sr(sQ,4)}, s{st1} offen lds")
    a("K2_NOQ3:")
    a(f"v_mov_b32 v{vP}, 0xffff", f"v_mov_b32 v{vP+1}, 0xffff", f"v_mov_b32 v{vP+2}, 0xffff", f"v_mov_b32 v{vP+3}, 0xffff",
      f"v_mov_b32 v{vP+4}, 0", f"v_add_u32 v{vT1}, {K2_ELL}, v{vT0}")
    nell = (K2_LDS - K2_ELL) // 16
    for i in range(3):
        a.lds(f"ds_write_b128 v{vT1}, {vr(vP,4)} offset:{16384*i}")
    a(f"v_cmp_gt_u32 vcc, {nell - 3072}, v0", f"s_and_saveexec_b64 {sr(sM,2)}, vcc", "s_cbranch_execz K2_I1")
    a(f"ds_write_b128 v{vT1}, {vr(vP,4)} offset:{16384*3}")
    a("K2_I1:", "s_mov_b64 exec, -1")
    a(f"v_cmp_gt_u32 vcc, {(K2_ORD - K2_CNT)//4}, v0", f"v_lshlrev_b32 v{vT1}, 2, v0", f"v_add_u32 v{vT1}, {K2_CNT}, v{vT1}",
      f"s_and_saveexec_b64 {sr(sM,2)}, vcc", "s_cbranch_execz K2_I2")
    a(f"ds_write_b32 v{vT1}, v{vP+4}")
    a("K2_I2:", "s_mov_b64 exec, -1")
    a(f"v_and_b32 v{vT1}, 3, v{vLane}", f"v_lshlrev_b32 v{vSh}, 4, v{vT1}", f"v_lshrrev_b32 v{vT2}, 5, v{vLane}",
      f"v_lshl_add_u32 v{vIdx+1}, v{vT2}, 6, v{vSh}", f"v_mov_b32 v{vIdx+3}, v{vIdx+1}", f"v_mov_b32 v{vIdx+5}, v{vIdx+1}",
      f"v_mov_b32 v{vIdx+7}, v{vIdx+1}", f"v_lshl_add_u32 v{vHoff}, v{vT2}, 2, 2",
      f"v_and_b32 v{vOrdL}, 28, v{vLane}", f"v_add_u32 v{vOrdL}, {K2_ORD}, v{vOrdL}",
      f"v_mov_b32 v{vE}, 0x3f80", f"v_mov_b32 v{vE+1}, 0", f"v_lshlrev_b64 {vr(vI4,2)}, v{vSh}, {vr(vE,2)}")
    a(f"s_mov_b32 s{sK}, {NLOG2E}", f"s_mov_b32 s{sBig}, {fbits(2.0**120)}", f"s_mov_b32 s{sOne}, 1.0", f"s_mov_b32 s{sOne+1}, 1.0")
    a("s_waitcnt lgkmcnt(0)", "s_barrier")
    a.lg = []
    a(f"v_mov_b32 v{vT3}, 1", f"v_mov_b32 v{vT2}, 0")
    for i in range(6):
        a.wait(vm=f"r{i}")
        for u in range(2):
            n = 2 * i + u
            if n:
                a("s_mov_b64 exec, -1")
            a(f"v_cmp_lt_i32 {sr(sM+2*n,2)}, 0, v{vRec+2*n+1}")
            if u == 0:
                a(f"v_min3_i32 v{vT2}, v{vRec+2*n+1}, v{vRec+2*n+3}, v{vT2}")
            a(f"s_mov_b64 exec, {sr(sM+2*n,2)}")
            a.lds(f"ds_add_rtn_u32 v{vSl+n}, v{vRec+2*n+1}, v{vT3} offset:{K2_CNT-4}", f"s{n}")
    a("s_mov_b64 exec, -1")
    for i in range(3):
        a(f"s_mov_b32 s{st1}, {16384*i}")
        a.vmem(f"buffer_load_dwordx4 {vr(vPf,4)}, v{vT0}, {sr(sPf,4)}, s{st1} offen", "pf")
    a(f"v_cmp_gt_i32 vcc, 0, v{vT2}", f"v_mov_b32 v{vT1}, {K2_MISC}", f"s_and_saveexec_b64 {sr(sM+24,2)}, vcc", "s_cbranch_execz K2_NOOVF")
    a(f"ds_write_b32 v{vT1}, v{vT3} offset:4", "s_waitcnt lgkmcnt(0)")
    a("K2_NOOVF:", "s_mov_b64 exec, -1")
    a(f"s_mov_b32 s{st1}, {ELLS // 4}")
    for n in range(12):
        a.wait(lg=f"s{n}")
        a(f"s_mov_b64 exec, {sr(sM+2*n,2)}")
        a(f"v_min_u32 v{vSl+n}, {MAXDEG}, v{vSl+n}", f"v_lshlrev_b32 v{vSl+n}, 2, v{vSl+n}",
          f"v_mad_u32_u24 v{vSl+n}, v{vRec+2*n+1}, s{st1}, v{vSl+n}")
        a.lds(f"ds_write_b32 v{vSl+n}, v{vRec+2*n} offset:{K2_ELL - ELLS}")
    a("s_mov_b64 exec, -1")
    a.wait(vm="c")
    for i in range(4):
        a(f"v_lshlrev_b32 v{vC+i}, 16, v{vC+i}", f"v_mul_f32 v{vC+i}, s{sK}, v{vC+i}")
    a(f"v_cvt_pk_bf16_f32 v{vAh}, v{vC}, v{vC+1}", f"v_cvt_pk_bf16_f32 v{vAh+1}, v{vC+2}, v{vC+3}")
    for i in range(4):
        if i & 1:
            a(f"v_and_b32 v{vT1}, 0xffff0000, v{vAh+i//2}")
        else:
            a(f"v_lshlrev_b32 v{vT1}, 16, v{vAh+i//2}")
        a(f"v_sub_f32 v{vC+i}, v{vC+i}, v{vT1}")
    a(f"v_cvt_pk_bf16_f32 v{vAl}, v{vC}, v{vC+1}", f"v_cvt_pk_bf16_f32 v{vAl+1}, v{vC+2}, v{vC+3}")
    a(f"v_bfe_u32 v{vT1}, v{vLane}, 4, 1", f"v_lshrrev_b32 v{vT2}, 5, v{vLane}", f"v_cmp_eq_u32 vcc, v{vT1}, v{vT2}", "s_nop 1")
    for r in (vAh, vAh + 1, vAl, vAl + 1):
        a(f"v_cndmask_b32 v{r}, 0, v{r}, vcc")
    a("s_waitcnt lgkmcnt(0)", "s_barrier")
    a.lg = []
    a(f"s_cmp_ge_u32 s{sw}, 5", "s_cbranch_scc1 K2_DS1")
    a(f"v_lshlrev_b32 v{vT0}, 2, v0", f"ds_read_b32 v{vDeg}, v{vT0} offset:{K2_CNT}", "s_waitcnt lgkmcnt(0)")
    a(f"v_cvt_f32_u32 v{vT1}, v{vDeg}", f"v_cmp_lt_u32 vcc, {MAXDEG}, v{vDeg}", f"v_min_u32 v{vDeg}, {MAXDEG}, v{vDeg}")
    a(f"buffer_store_dword v{vT1}, v{vT0}, {sr(sDeg,4)}, 0 offen")
    a(f"v_sub_u32 v{vT2}, 63, v{vDeg}", f"v_lshlrev_b32 v{vT2}, 2, v{vT2}",
      f"ds_add_rtn_u32 v{vOut}, v{vT2}, v{vT3} offset:{K2_HIST}")
    a(f"v_mov_b32 v{vT1}, {K2_MISC}", f"s_and_saveexec_b64 {sr(sM,2)}, vcc", "s_cbranch_execz K2_NOOVF2")
    a(f"ds_write_b32 v{vT1}, v{vT3} offset:4")
    a("K2_NOOVF2:", "s_mov_b64 exec, -1", "s_waitcnt lgkmcnt(0)")
    a("K2_DS1:", "s_barrier")
    a(f"s_cmp_ge_u32 s{sw}, 5", "s_cbranch_scc1 K2_DS2")
    a(f"v_lshlrev_b32 v{vT0}, 2, v{vLane}", f"ds_read_b32 v{vT1}, v{vT0} offset:{K2_HIST}", "s_waitcnt lgkmcnt(0)",
      f"v_mov_b32 v{vEll}, v{vT1}", "s_nop 1")
    for ctrl in ("row_shr:1", "row_shr:2", "row_shr:4", "row_shr:8"):
        a(f"v_add_u32_dpp v{vEll}, v{vEll}, v{vEll} {ctrl} row_mask:0xf bank_mask:0xf bound_ctrl:1", "s_nop 1")
    a(f"v_add_u32_dpp v{vEll}, v{vEll}, v{vEll} row_bcast:15 row_mask:0xa bank_mask:0xf", "s_nop 1")
    a(f"v_add_u32_dpp v{vEll}, v{vEll}, v{vEll} row_bcast:31 row_mask:0xc bank_mask:0xf", "s_nop 1")
    a(f"v_sub_u32 v{vEll}, v{vEll}, v{vT1}", f"ds_bpermute_b32 v{vT1}, v{vT2}, v{vEll}",
      f"v_lshl_or_b32 v{vDeg}, v{vDeg}, 16, v0", "s_waitcnt lgkmcnt(0)",
      f"v_add_lshl_u32 v{vT1}, v{vT1}, v{vOut}, 2", f"ds_write_b32 v{vT1}, v{vDeg} offset:{K2_ORD}")
    a("K2_DS2:", "s_waitcnt vmcnt(0) lgkmcnt(0)", "s_barrier")
    a.vm = []
    a(f"v_mov_b32 v{vT0}, {K2_MISC}", f"ds_read_b32 v{vT1}, v{vT0} offset:4", "s_waitcnt lgkmcnt(0)",
      f"v_readfirstlane_b32 s{st0}, v{vT1}", f"s_mov_b32 s{sg}, s{sw}", f"s_cmp_lg_u32 s{st0}, 0", "s_cbranch_scc1 K2_SLOW")

    def Z(i):
        return vZ + 16 * ((i >> 1) & 1) + 8 * (i & 1)

    def src_read(i):
        a(f"ds_read_u16 v{vIdx + 2*(i % 4)}, v{vEll} offset:{4*i}")

    def e_read(p):
        a(f"ds_read_u16 v{vE}, v{vEe} offset:{8*p}")

    def gather(i):
        a(f"buffer_load_dwordx4 {vr(vP + 4*(i % 4), 4)}, {vr(vIdx + 2*(i % 4), 2)}, {sr(sP,4)}, 0 idxen offen")

    def m4(i, hf):
        z = Z(i) + 4 * hf
        return f"v_mfma_f32_4x4x4_16b_bf16 {vr(z,4)}, {vr(vI4,2)}, {vr(vP + 4*(i % 4) + 2*hf, 2)}, {vr(z,4)}"

    shift = f"v_lshlrev_b64 {vr(vEs,2)}, v{vSh}, {vr(vE,2)}"

    def mhi(p):
        return f"v_mfma_f32_32x32x8_bf16 {vr(Z(2*p),16)}, {vr(vAh,2)}, {vr(vEs,2)}, {vr(vQ,16)}"

    def mlo(p):
        return f"v_mfma_f32_32x32x8_bf16 {vr(Z(2*p),16)}, {vr(vAl,2)}, {vr(vEs,2)}, {vr(Z(2*p),16)}"

    a("K2_GROUP:")
    a(f"s_lshl_b32 s{st0}, s{sg}, 5", f"v_add_u32 v{vT0}, s{st0}, v{vOrdL}", f"ds_read_b32 v{vT1}, v{vT0}",
      f"s_mov_b32 s{st1}, {ELLS}", "s_waitcnt lgkmcnt(0)")
    a(f"v_and_b32 v{vT0}, 0xffff, v{vT1}", f"v_lshrrev_b32 v{vDeg}, 16, v{vT1}",
      f"v_mul_u32_u24 v{vEll}, s{st1}, v{vT0}", f"v_add_u32 v{vEll}, {K2_ELL}, v{vEll}")
    for i in range(4):
        src_read(i)
    a(f"v_lshl_add_u32 v{vOut}, v{vT0}, 7, v{vIdx+1}", f"v_add_u32 v{vEe}, v{vEll}, v{vHoff}")
    a(f"ds_read_b128 {vr(vT+4,4)}, v{vOut} offset:{K2_Q}")
    e_read(0)
    a(f"v_readlane_b32 s{sdmax}, v{vDeg}, 0", f"v_readlane_b32 s{sdmin}, v{vDeg}, 28")
    for i in range(4):
        a(f"s_waitcnt lgkmcnt({5-i})")
        gather(i)
    src_read(4)
    a("s_waitcnt lgkmcnt(1)")
    for q in range(4):
        a(f"v_mfma_f32_4x4x4_16b_bf16 {vr(vQ+4*q,4)}, {vr(vI4,2)}, {vr(vT+4+2*(q&1),2)}, 0")
    a(shift)
    e_read(1)
    a("s_nop 2")
    a(mhi(0), mlo(0))
    a("s_nop 9", "s_waitcnt vmcnt(3)")
    a(m4(0, 0), m4(0, 1))
    a("s_waitcnt lgkmcnt(1)")
    gather(4)
    src_read(5)
    a("s_waitcnt lgkmcnt(1)", "s_nop 0")

    for i in range(MAXDEG):
        z = Z(i)
        p = i >> 1
        a(f"s_cmp_le_u32 s{sdmin}, {i}", f"s_cbranch_scc1 K2_OOL{i}", f"K2_S{i}:")
        ex = [f"v_exp_f32 v{vT+r}, v{z+r}" for r in range(8)]
        num_src = Z(0) if i == 1 else vNum
        if i == 0:
            upd_w = []
            upd = [f"v_pk_add_f32 {vr(vDen+r,2)}, {vr(vT+r,2)}, {sr(sOne,2)}" for r in range(0, 8, 2)]
        else:
            upd_w = [f"v_pk_fma_f32 {vr(z+r,2)}, {vr(z+r,2)}, {vr(vDen+r,2)}, {vr(num_src+r,2)}" for r in range(0, 8, 2)]
            upd = [f"v_pk_fma_f32 {vr(vNum+r,2)}, {vr(num_src+r,2)}, {vr(vT+r,2)}, {vr(z+r,2)}" for r in range(0, 8, 2)]
            upd += [f"v_pk_fma_f32 {vr(vDen+r,2)}, {vr(vDen+r,2)}, {vr(vT+r,2)}, {vr(vDen+r,2)}" for r in range(0, 8, 2)]
        nxt = i + 1 < MAXDEG
        if (i & 1) == 0 and 2 * (p + 1) < MAXDEG:
            a(shift)
            more_e = 2 * (p + 2) < MAXDEG
            if more_e:
                e_read(p + 2)
            a(*ex[0:2])
            a(mhi(p + 1))
            a(*ex[2:6])
            a(mlo(p + 1))
            a(*ex[6:8])
            a(*upd_w)
        else:
            more_e = False
            a(*ex)
            a(*upd_w)
        if nxt:
            pending = min(MAXDEG - 1, i + 4) - (i + 1)
            a(f"s_waitcnt vmcnt({pending})")
            a(m4(i + 1, 0))
            a(upd[0])
            a(m4(i + 1, 1))
            if i + 5 < MAXDEG:
                a(f"s_waitcnt lgkmcnt({1 if more_e else 0})")
                gather(i + 5)
            if i + 6 < MAXDEG:
                src_read(i + 6)
            elif i + 5 >= MAXDEG:
                a("s_waitcnt lgkmcnt(0)")
            a(*upd[1:])
            if i == 0:
                a("s_nop 1")
        else:
            a(*upd)
    a("K2_FIN:")
    a("s_mov_b64 exec, -1")
    a(f"v_pk_add_f32 {vr(vT0,2)}, {vr(vDen,2)}, {vr(vDen+2,2)}")
    for r in range(4):
        a(f"v_rcp_f32 v{vT+r}, v{vDen+r}")
    a(f"v_pk_add_f32 {vr(vT0,2)}, {vr(vT0,2)}, {vr(vDen+4,2)}")
    for r in range(4, 8):
        a(f"v_rcp_f32 v{vT+r}, v{vDen+r}")
    a(f"v_pk_add_f32 {vr(vT0,2)}, {vr(vT0,2)}, {vr(vDen+6,2)}")
    for r in range(0, 8, 2):
        a(f"v_pk_fma_f32 {vr(vT0,2)}, {vr(vNum+r,2)}, 0, {vr(vT0,2)} op_sel_hi:[1,0,1]")
        a(f"v_pk_mul_f32 {vr(vNum+r,2)}, {vr(vNum+r,2)}, {vr(vT+r,2)}")
    a(f"v_add_f32 v{vT0}, v{vT0}, v{vT1}", f"v_cmp_ngt_f32 vcc, s{sBig}, v{vT0}")
    a("s_cbranch_vccnz K2_SAFE")
    a("K2_STORE:")
    for r in range(4):
        a(f"v_cvt_pk_bf16_f32 v{vT+r}, v{vNum+2*r}, v{vNum+2*r+1}")
    a("s_mov_b64 exec, 1", f"v_mov_b32 v{vT0}, {K2_MISC}", f"v_mov_b32 v{vT1}, 1", f"ds_add_rtn_u32 v{vT1}, v{vT0}, v{vT1}",
      "s_mov_b64 exec, -1")
    a(f"buffer_store_dwordx4 {vr(vT,4)}, v{vOut}, {sr(sS,4)}, 0 offen")
    a("s_waitcnt lgkmcnt(0)", f"v_readfirstlane_b32 s{sg}, v{vT1}", f"s_add_u32 s{sg}, s{sg}, 16",
      f"s_cmp_lt_u32 s{sg}, {NGRP}", "s_cbranch_scc1 K2_GROUP")
    a("s_endpgm")

    for i in range(MAXDEG):
        a(f"K2_OOL{i}:")
        if i == 0:
            for r in range(8):
                a(f"v_mov_b32 v{vNum+r}, 0", f"v_mov_b32 v{vDen+r}, 1.0")
        if i == 1:
            for r in range(8):
                a(f"v_mov_b32 v{vNum+r}, v{Z(0)+r}")
        a(f"s_cmp_le_u32 s{sdmax}, {i}", "s_cbranch_scc1 K2_FIN")
        a(f"v_cmpx_lt_u32 vcc, {i}, v{vDeg}", "s_nop 3", f"s_branch K2_S{i}")

    a("K2_SAFE:")
    a("s_waitcnt vmcnt(0) lgkmcnt(0)", f"s_mov_b32 s{st0}, 0")
    for r in range(8):
        a(f"v_mov_b32 v{vNum+r}, 0")
    a("K2_SAFE_L:")
    a(f"s_cmp_ge_u32 s{st0}, s{sdmax}", "s_cbranch_scc1 K2_SAFE_E")
    a(f"v_cmpx_lt_u32 vcc, s{st0}, v{vDeg}")
    src_read(0)
    e_read(0)
    a("s_waitcnt lgkmcnt(0)")
    gather(0)
    a(shift, f"v_add_u32 v{vEll}, 4, v{vEll}", f"v_add_u32 v{vEe}, 4, v{vEe}", "s_nop 1")
    a(mhi(0), mlo(0), "s_nop 9", "s_waitcnt vmcnt(0)", m4(0, 0), m4(0, 1), "s_nop 4")
    for r in range(8):
        a(f"v_exp_f32 v{vT+r}, v{vZ+r}")
    for r in range(0, 8, 2):
        a(f"v_pk_add_f32 {vr(vT+r,2)}, {vr(vT+r,2)}, {sr(sOne,2)}")
    for r in range(8):
        a(f"v_rcp_f32 v{vT+r}, v{vT+r}")
    a("s_nop 0")
    for r in range(0, 8, 2):
        a(f"v_pk_fma_f32 {vr(vNum+r,2)}, {vr(vZ+r,2)}, {vr(vT+r,2)}, {vr(vNum+r,2)}")
    a(f"s_add_u32 s{st0}, s{st0}, 1", "s_branch K2_SAFE_L")
    a("K2_SAFE_E:", "s_mov_b64 exec, -1", "s_branch K2_STORE")

    sDst, sSrc, sE = sRec, sPf, sW1
    snode, sbase, sdeg, sbit, ssrc, se, sm = sM, sM + 1, sM + 2, sM + 3, sM + 4, sM + 5, sM + 6
    vc, vq, vacc, vd, vs, ve, voff, vz = 32, 33, 34, 36, 40, 44, 48, 49
    a("K2_SLOW:")
    a(f"v_and_b32 v{vT0}, 1, v{vLane}", f"v_lshlrev_b32 v{vT0}, 6, v{vT0}", f"v_and_b32 v{vT1}, 62, v{vLane}",
      f"v_add_u32 v{vT0}, v{vT0}, v{vT1}", f"s_lshl_b32 s{st1}, s{sk}, 7")
    a(f"buffer_load_ushort v{vc}, v{vT0}, {sr(sW1,4)}, s{st1} offen", "s_waitcnt vmcnt(0)",
      f"v_lshlrev_b32 v{vc}, 16, v{vc}", f"v_mul_f32 v{vc}, s{sK}, v{vc}")
    a.srd(sDst, 10, 0, E * 4)
    a.srd(sSrc, 8, 0, E * 4)
    a.srd(sE, 6, 0, E * 2)
    a(f"v_lshlrev_b32 v{vIdx+1}, 1, v{vLane}", f"v_lshlrev_b32 v{vT2}, 4, v{vLane}", f"v_lshlrev_b32 v{vT3}, 3, v{vLane}")
    a("K2_SLOW_N:")
    a(f"s_cmp_ge_u32 s{sg}, s{scnt}", "s_cbranch_scc1 K2_END")
    a(f"s_mul_i32 s{snode}, s{srng}, {RNG}", f"s_add_u32 s{snode}, s{snode}, s{sg}", f"s_lshl_b32 s{st0}, s{sg}, 7",
      f"v_add_u32 v{voff}, s{st0}, v{vIdx+1}", f"ds_read_u16 v{vq}, v{voff} offset:{K2_Q}",
      f"v_mov_b32 v{vacc}, 0", f"s_mov_b32 s{sbase}, 0", f"s_mov_b32 s{sdeg}, 0", "s_waitcnt lgkmcnt(0)",
      f"v_lshlrev_b32 v{vq}, 16, v{vq}")
    a("K2_SLOW_C:")
    a(f"s_lshl_b32 s{st0}, s{sbase}, 2", f"s_lshl_b32 s{st1}, s{sbase}, 1")
    a(f"buffer_load_dwordx4 {vr(vd,4)}, v{vT2}, {sr(sDst,4)}, s{st0} offen",
      f"buffer_load_dwordx4 {vr(vs,4)}, v{vT2}, {sr(sSrc,4)}, s{st0} offen",
      f"buffer_load_dwordx2 {vr(ve+2,2)}, v{vT3}, {sr(sE,4)}, s{st1} offen", "s_waitcnt vmcnt(0)")
    a(f"v_lshlrev_b32 v{ve}, 16, v{ve+2}", f"v_and_b32 v{ve+1}, 0xffff0000, v{ve+2}",
      f"v_lshlrev_b32 v{ve+2}, 16, v{ve+3}", f"v_and_b32 v{ve+3}, 0xffff0000, v{ve+3}")
    for u in range(4):
        a(f"v_cmp_eq_u32 {sr(sm,2)}, s{snode}, v{vd+u}")
        a(f"K2_SLOW_M{u}:", f"s_cmp_eq_u64 {sr(sm,2)}, 0", f"s_cbranch_scc1 K2_SLOW_X{u}")
        a(f"s_ff1_i32_b64 s{sbit}, {sr(sm,2)}", f"s_bitset0_b64 {sr(sm,2)}, s{sbit}", f"s_add_u32 s{sdeg}, s{sdeg}, 1",
          f"v_readlane_b32 s{ssrc}, v{vs+u}, s{sbit}", f"v_readlane_b32 s{se}, v{ve+u}, s{sbit}", "s_nop 1",
          f"v_mov_b32 v{vIdx}, s{ssrc}", f"buffer_load_ushort v{vz}, {vr(vIdx,2)}, {sr(sP,4)}, 0 idxen offen",
          f"v_fma_f32 v{vT0}, s{se}, v{vc}, v{vq}", "s_waitcnt vmcnt(0)",
          f"v_lshlrev_b32 v{vz}, 16, v{vz}", f"v_add_f32 v{vz}, v{vz}, v{vT0}", f"v_exp_f32 v{vT0}, v{vz}", "s_nop 0",
          f"v_add_f32 v{vT0}, 1.0, v{vT0}", f"v_rcp_f32 v{vT0}, v{vT0}", "s_nop 0",
          f"v_fma_f32 v{vacc}, v{vz}, v{vT0}, v{vacc}", f"s_branch K2_SLOW_M{u}")
        a(f"K2_SLOW_X{u}:")
    a(f"s_add_u32 s{sbase}, s{sbase}, 256", f"s_cmp_lt_u32 s{sbase}, {E}", "s_cbranch_scc1 K2_SLOW_C")
    a(f"v_cvt_pk_bf16_f32 v{vacc}, v{vacc}, v{vacc}", f"v_cvt_f32_u32 v{vT0}, s{sdeg}", f"s_lshl_b32 s{st0}, s{sg}, 2",
      f"v_mov_b32 v{vT1}, s{st0}")
    a(f"buffer_store_short v{vacc}, v{voff}, {sr(sS,4)}, 0 offen", f"buffer_store_dword v{vT0}, v{vT1}, {sr(sDeg,4)}, 0 offen")
    a(f"s_add_u32 s{sg}, s{sg}, 16", "s_waitcnt vmcnt(0)", "s_branch K2_SLOW_N")
    a("K2_END:", "s_endpgm")
    return a.lines, descriptor("k2_kernel", nv, 96)


K3_LDS = 81920


def k3():
    a = Asm()
    header(a, "k3_kernel")
    sS, sF, sDeg, sB, sO = 24, 28, 32, 36, 40
    sw, stile, scg, st0, st1, sK, sn, sSo = 44, 45, 46, 47, 48, 50, 52, 53
    vLane, vT0, vT1, vT2 = 1, 2, 3, 4
    vDm, vBo, vSt, vB2 = 5, 6, 7, 8
    vAad = 10
    vDg = 12
    vA = 32
    vAcc = 72
    vB = 112
    nv = vB + 128
    a("s_cmp_ge_u32 s2, 256", "s_cbranch_scc1 K3_END")
    a(f"s_lshr_b32 s{st0}, s2, 4", f"s_lshl_b32 s{st0}, s{st0}, 3", f"s_and_b32 s{stile}, s2, 7",
      f"s_add_u32 s{stile}, s{stile}, s{st0}", f"s_cmp_ge_u32 s{stile}, 125", "s_cbranch_scc1 K3_END")
    a("s_load_dwordx4 s[4:7], s[0:1], 56", "s_load_dwordx2 s[20:21], s[0:1], 80")
    a(f"v_lshrrev_b32 v{vT0}, 6, v0", f"v_and_b32 v{vLane}, 63, v0", f"v_readfirstlane_b32 s{sw}, v{vT0}")
    a(f"s_bfe_u32 s{scg}, s2, 0x10003", f"s_lshl_b32 s{scg}, s{scg}, 2", f"s_add_u32 s{scg}, s{scg}, s{sw}")
    a(f"s_and_b32 s{st0}, s{sw}, 1", f"s_lshl_b32 s{st0}, s{st0}, 2", f"v_lshrrev_b32 v{vT0}, 4, v{vLane}",
      f"v_add_u32 v{vT1}, s{st0}, v{vT0}", f"v_and_b32 v{vT2}, 7, v{vLane}", f"v_xor_b32 v{vT1}, v{vT1}, v{vT2}",
      f"v_lshlrev_b32 v{vT1}, 4, v{vT1}", f"v_lshrrev_b32 v{vT2}, 3, v{vLane}", f"v_lshl_add_u32 v{vDm}, v{vT2}, 7, v{vT1}")
    a(f"v_lshlrev_b32 v{vBo}, 4, v{vLane}")
    a(f"v_and_b32 v{vT1}, 15, v{vLane}", f"v_lshlrev_b32 v{vT2}, 2, v{vT1}", f"v_lshl_add_u32 v{vSt}, v{vT0}, 11, v{vT2}")
    a(f"v_lshrrev_b32 v{vAad}, 1, v{vT1}", f"v_xor_b32 v{vAad}, v{vAad}, v{vT0}", f"v_lshlrev_b32 v{vAad}, 4, v{vAad}",
      f"v_lshl_add_u32 v{vAad}, v{vT1}, 7, v{vAad}", f"v_xor_b32 v{vAad+1}, 64, v{vAad}", f"v_lshlrev_b32 v{vT0}, 4, v{vT0}")
    a(f"s_mul_i32 s{sSo}, s{stile}, 10240")
    a("s_waitcnt lgkmcnt(0)")
    a.srd(sDeg, 20, DEG_OFF, N * 4)
    a.srd(sB, 4, 0, 512)
    a(f"s_mul_i32 s{st0}, s{stile}, 320", f"s_lshl_b32 s{st1}, s{scg}, 6")
    for rt in range(5):
        a.vmem(f"buffer_load_dwordx4 {vr(vDg+4*rt,4)}, v{vT0}, {sr(sDeg,4)}, s{st0} offen offset:{64*rt}", "deg")
    a.vmem(f"buffer_load_dword v{vB2}, v{vT2}, {sr(sB,4)}, s{st1} offen", "deg")
    a.srd(sS, 20, S_OFF, 8 * SS)
    a.srd(sF, 20, W2F_OFF, 262144)
    a.srd(sO, 6, 0, N * 512)
    a(f"s_mov_b32 s{sn}, s{sw}", f"s_lshl_b32 s{sK}, s{scg}, 15")
    for j in range(4):
        for m in range(5):
            a(f"s_mul_i32 s{st0}, s{sn}, 205", f"s_lshr_b32 s{st0}, s{st0}, 11", f"s_mul_i32 s{st0}, s{st0}, {SS - 10240}",
              f"s_lshl_b32 s{st1}, s{sn}, 10", f"s_mov_b32 m0, s{st1}", f"s_add_u32 s{st0}, s{st0}, s{st1}",
              f"s_add_u32 s{st0}, s{st0}, s{sSo}", f"s_add_u32 s{sn}, s{sn}, 4")
            a.vmem(f"buffer_load_dwordx4 v{vDm}, {sr(sS,4)}, s{st0} offen lds", f"st{j}")
        for f in range(8):
            n = 8 * j + f
            if n % 4 == 0 and n:
                a(f"s_add_u32 s{sK}, s{sK}, 4096")
            a.vmem(f"buffer_load_dwordx4 {vr(vB+4*n,4)}, v{vBo}, {sr(sF,4)}, s{sK} offen offset:{1024*(n % 4)}", f"st{j}")
    a.wait(vm="deg")
    a(f"s_mov_b32 s{sK}, {NLOG2E}")
    a(f"v_and_b32 v{vB2+1}, 0xffff0000, v{vB2}", f"v_lshlrev_b32 v{vB2}, 16, v{vB2}",
      f"v_mul_f32 v{vB2}, s{sK}, v{vB2}", f"v_mul_f32 v{vB2+1}, s{sK}, v{vB2+1}")
    for rt in range(5):
        for b in range(2):
            for r in range(0, 4, 2):
                a(f"v_pk_mul_f32 {vr(vAcc+8*rt+4*b+r,2)}, {vr(vDg+4*rt+r,2)}, {vr(vB2,2)} op_sel:[0,{b}] op_sel_hi:[1,{b}]")
    a(f"s_mov_b32 s{sK}, {NLN2}", f"s_mov_b32 s{sK+1}, {NLN2}")
    a(f"s_mul_i32 s{st0}, s{stile}, {80*512}", f"s_lshl_b32 s{st1}, s{scg}, 6", f"s_add_u32 s{sSo}, s{st0}, s{st1}")

    def a_reads(s):
        for rt in range(5):
            off = (s >> 1) * 10240 + rt * 2048
            base = vAad + (s & 1)
            if off > 65535:
                base, off = vT0 + (s & 1), off - 40960
            a.lds(f"ds_read_b128 {vr(vA + 20*(s & 1) + 4*rt, 4)}, v{base} offset:{off}", f"a{s}_{rt}")
    a(f"v_add_u32 v{vT0}, 40960, v{vAad}", f"v_add_u32 v{vT1}, 40960, v{vAad+1}")
    for j in range(4):
        a.wait(vm=f"st{j}")
        a("s_barrier")
        a_reads(4 * j)
        for s in range(4 * j, 4 * j + 4):
            if s + 1 < 4 * j + 4:
                a_reads(s + 1)
            for rt in range(5):
                a.wait(lg=f"a{s}_{rt}")
                for b in range(2):
                    acc = vAcc + 8 * rt + 4 * b
                    a(f"v_mfma_f32_16x16x32_bf16 {vr(acc,4)}, {vr(vA + 20*(s & 1) + 4*rt, 4)}, {vr(vB + 4*(2*s+b), 4)}, {vr(acc,4)}")
    a("s_nop 1")
    for rt in range(5):
        acc = vAcc + 8 * rt
        if rt == 4:
            a("s_nop 0")
        for r in range(0, 8, 2):
            a(f"v_pk_mul_f32 {vr(acc+r,2)}, {vr(acc+r,2)}, {sr(sK,2)}")
        for r in range(4):
            a(f"v_cvt_pk_bf16_f32 v{acc+r}, v{acc+r}, v{acc+4+r}")
        a(f"s_add_u32 s{st0}, s{sSo}, {rt*16*512}")
        for r in range(4):
            a(f"buffer_store_dword v{acc+r}, v{vSt}, {sr(sO,4)}, s{st0} offen offset:{512*r}")
    a("K3_END:", "s_endpgm")
    return a.lines, descriptor("k3_kernel", nv, 64)


def main(path):
    head = [
        "; Edge-featured MPNN layer: out = segment_sum(silu([x[src], x[dst], e] @ w1 + b1) @ w2 + b2, dst)",
        "; k1: P = x@w1[0:256], Q = x@w1[256:512] + b1 (scaled by -log2e), edge partition by dst range, w2 re-layout",
        "; k2: per 64-channel slice, S[n] = sum over in-edges of z/(1+2^z), z = P[src] + Q[n] + e*c",
        "; k3: out = -ln2 * (S @ w2) + deg * b2",
        "; kernarg: x, e_attr, src, dst, w1, b1, w2, b2, out, debug, ws (8 bytes each)",
        f"; @launch kernel=k1_kernel grid=(256,1,1) block=(256,1,1) lds={K1_LDS}",
        f"; @launch kernel=k2_kernel grid=(256,1,1) block=(1024,1,1) lds={K2_LDS}",
        f"; @launch kernel=k3_kernel grid=(256,1,1) block=(256,1,1) lds={K3_LDS}",
        '.amdgcn_target "amdgcn-amd-amdhsa--gfx950"',
        ".text",
    ]
    body, desc = [], []
    for f in (k1, k2, k3):
        b, d = f()
        body += b
        desc += d
    out = head + body + ['.section .rodata,"a"'] + desc
    open(path, "w").write("\n".join(out) + "\n")


if __name__ == "__main__":
    main(sys.argv[1] if len(sys.argv) > 1 else "standalone__edge_featured_mpnn_mpnn__graph.s")
```

```python
import struct
import sys

N, E, D, H = 10000, 160000, 256, 512
NR = 10080
SS = NR * 128
P_OFF, Q_OFF, S_OFF = 0, 8 * SS, 16 * SS
RNG = 313
NCHUNK, CHUNK, CAP = 250, 640, 48
CELL = CAP * 8
RBLK = NCHUNK * CELL
REC_OFF = 24 * SS
DEG_OFF = REC_OFF + 32 * RBLK
W2F_OFF = (DEG_OFF + NR * 4 + 1023) // 1024 * 1024
WS_END = W2F_OFF + 262144
MAXDEG = 48
ELLS = (MAXDEG + 1) * 4


def fbits(x):
    return struct.unpack("<I", struct.pack("<f", x))[0]


NLOG2E = fbits(-1.4426950408889634)
NLN2 = fbits(-0.6931471805599453)

assert all((d * 13401) >> 22 == d // RNG for d in range(10016))
assert all((q * 2731) >> 16 == q // 24 for q in range(768))
assert all((n * 205) >> 11 == n // 10 for n in range(80))


STAMPS = False
OPT = dict(sc1=1, prio=1, empty=0)
STAMP_OFF = 48 << 20


class Asm:
    def stamp_setup(self, vreg, kidx):
        self.st_v, self.st_n, self.st_k = vreg, 0, kidx
        if STAMPS:
            self(f"v_mov_b32 v{vreg}, 0", "s_memrealtime s[100:101]", "s_waitcnt lgkmcnt(0)", f"v_writelane_b32 v{vreg}, s100, 29")
            self.stamp()

    def stamp(self, idx=None):
        if STAMPS:
            if idx is None:
                idx = self.st_n
                self.st_n += 1
            self("s_waitcnt lgkmcnt(0)", "s_memtime s[100:101]", "s_waitcnt lgkmcnt(0)", f"v_writelane_b32 v{self.st_v}, s100, {idx}")
            self.lg = []

    def stamp_dump(self, srd, wsreg, swave, nwaves, tmp=2):
        if not STAMPS:
            return
        self("s_waitcnt vmcnt(0)")
        self.stamp(27)
        self("s_memrealtime s[100:101]", "s_waitcnt lgkmcnt(0)", f"v_writelane_b32 v{self.st_v}, s100, 28")
        self("s_getreg_b32 s3, hwreg(HW_REG_HW_ID)", f"v_writelane_b32 v{self.st_v}, s3, 30")
        self("s_getreg_b32 s3, hwreg(HW_REG_XCC_ID)", f"v_writelane_b32 v{self.st_v}, s3, 31")
        self.srd(srd, wsreg, STAMP_OFF + (self.st_k << 20), 1 << 20)
        self(f"s_mul_i32 s3, s2, {nwaves}", f"s_add_u32 s3, s3, s{swave}", "s_lshl_b32 s3, s3, 7", "s_mov_b64 exec, -1",
             f"v_and_b32 v{tmp}, 63, v0", f"v_lshlrev_b32 v{tmp}, 2, v{tmp}", "s_mov_b32 exec_hi, 0",
             f"buffer_store_dword v{self.st_v}, v{tmp}, s[{srd}:{srd+3}], s3 offen")

    def __init__(self):
        self.lines = []
        self.vm = []
        self.lg = []

    def __call__(self, *ls):
        for l in ls:
            self.lines.append(l if l.endswith(":") else "    " + l)

    def vmem(self, line, tag=None):
        self(line)
        self.vm.append(tag)

    def lds(self, line, tag=None):
        self(line)
        self.lg.append(tag)

    @staticmethod
    def _need(q, tags):
        last = -1
        for i, t in enumerate(q):
            if t in tags:
                last = i
        return None if last < 0 else len(q) - 1 - last

    def wait(self, vm=None, lg=None):
        parts = []
        if vm is not None:
            n = 0 if vm == "all" else self._need(self.vm, vm if isinstance(vm, (list, tuple, set)) else [vm])
            if n is not None:
                n = min(n, 63)
                parts.append(f"vmcnt({n})")
                self.vm = self.vm[len(self.vm) - n:] if n else []
        if lg is not None:
            n = 0 if lg == "all" else self._need(self.lg, lg if isinstance(lg, (list, tuple, set)) else [lg])
            if n is not None:
                n = min(n, 15)
                parts.append(f"lgkmcnt({n})")
                self.lg = self.lg[len(self.lg) - n:] if n else []
        if parts:
            self("s_waitcnt " + " ".join(parts))

    def srd(self, s, base, off, size, stride=0):
        if off == 0:
            self(f"s_mov_b32 s{s}, s{base}", f"s_and_b32 s{s+1}, s{base+1}, 0xffff")
        else:
            self(f"s_add_u32 s{s}, s{base}, {off}", f"s_addc_u32 s{s+1}, s{base+1}, 0",
                 f"s_and_b32 s{s+1}, s{s+1}, 0xffff")
        if stride:
            self(f"s_or_b32 s{s+1}, s{s+1}, {stride << 16}")
        self(f"s_mov_b32 s{s+2}, {size}", f"s_mov_b32 s{s+3}, 0x20000")


def wt():
    return " sc1" if OPT["sc1"] else ""


def vr(a, n=1):
    return f"v{a}" if n == 1 else f"v[{a}:{a+n-1}]"


def sr(a, n=1):
    return f"s{a}" if n == 1 else f"s[{a}:{a+n-1}]"


def header(a, name):
    a.lines += [f".globl {name}", ".p2align 8", f".type {name},@function", f"{name}:"]


def descriptor(name, nv, ns):
    acc = (nv + 3) // 4 * 4
    return [".p2align 6", f".amdhsa_kernel {name}", f"  .amdhsa_next_free_vgpr {nv}",
            f"  .amdhsa_next_free_sgpr {ns}", f"  .amdhsa_accum_offset {acc}",
            "  .amdhsa_group_segment_fixed_size 0", "  .amdhsa_kernarg_size 88",
            "  .amdhsa_user_sgpr_count 2", "  .amdhsa_user_sgpr_kernarg_segment_ptr 1",
            "  .amdhsa_system_sgpr_workgroup_id_x 1", "  .amdhsa_float_denorm_mode_32 3",
            ".end_amdhsa_kernel"]


K1_REG = 36864
K1_IMG = 4 * K1_REG
K1_CNT = K1_IMG + 32 * CELL
K1_LDS = K1_CNT + 128


def k1():
    a = Asm()
    header(a, "k1_kernel")
    sX, sW, sO, sDst, sSrc, sE, sRec, sB = 24, 28, 32, 36, 40, 44, 48, 52
    sw, stile, su, st0, st1, sWB, sXo, sOo, sK, sMask, sRB = 56, 57, 58, 59, 60, 61, 62, 63, 64, 66, 67
    vW = 0
    vLane, vT0, vT1, vT2 = 1, 2, 3, 4
    vAad = 6
    vTr = 14
    vXd = 16
    vWd, vSt = 20, 21
    vBias = 22
    vA = 24
    vAcc = 40
    vW = 104
    nv = vW + 128
    vDst, vSrc, vEe, vD, vSl, vCa, vRd, vCn, vRo = 40, 44, 48, 52, 60, 64, 68, 80, 84

    a("s_cmp_ge_u32 s2, 256", "s_cbranch_scc1 K1_END")
    a.stamp_setup(5, 0)
    a("s_load_dwordx16 s[4:19], s[0:1], 0", "s_load_dwordx2 s[20:21], s[0:1], 80")
    a(f"v_lshrrev_b32 v{vT0}, 6, v0", f"v_and_b32 v{vLane}, 63, v0", f"v_readfirstlane_b32 s{sw}, v{vT0}")
    a(f"s_lshr_b32 s{st0}, s2, 3", f"s_and_b32 s{su}, s{st0}, 3", f"s_lshl_b32 s{su}, s{su}, 2",
      f"s_lshr_b32 s{st0}, s{st0}, 2", f"s_lshl_b32 s{st0}, s{st0}, 3", f"s_and_b32 s{stile}, s2, 7",
      f"s_add_u32 s{stile}, s{stile}, s{st0}", f"s_add_u32 s{su}, s{su}, s{sw}")
    a(f"s_mul_i32 s{sRB}, s{sw}, {K1_REG}", f"s_add_u32 s{sWB}, s{sRB}, 4096")
    a(f"s_mov_b32 s{sK}, {NLOG2E}", f"s_mov_b32 s{sK+1}, {NLOG2E}", f"s_mov_b32 s{sMask}, 0xffff0000")
    a(f"s_mul_i32 s{st0}, s2, {CHUNK // 4}", f"s_mul_i32 s{st1}, s{sw}, 40", f"s_add_u32 s{st0}, s{st0}, s{st1}",
      f"v_add_u32 v{vT0}, s{st0}, v{vLane}", f"v_lshlrev_b32 v{vT1}, 4, v{vT0}", f"v_lshlrev_b32 v{vT2}, 3, v{vT0}")
    a("s_waitcnt lgkmcnt(0)")
    a.srd(sDst, 10, 0, E * 4)
    a.srd(sSrc, 8, 0, E * 4)
    a.srd(sE, 6, 0, E * 2)
    a("s_mov_b32 exec_lo, -1", "s_mov_b32 exec_hi, 0xff")
    a.vmem(f"buffer_load_dwordx4 {vr(vDst,4)}, v{vT1}, {sr(sDst,4)}, 0 offen", "sort")
    a.vmem(f"buffer_load_dwordx4 {vr(vSrc,4)}, v{vT1}, {sr(sSrc,4)}, 0 offen", "sort")
    a.vmem(f"buffer_load_dwordx2 {vr(vEe,2)}, v{vT2}, {sr(sE,4)}, 0 offen", "sort")
    a("s_mov_b64 exec, -1")
    a.srd(sX, 4, 0, N * 512)
    a.srd(sW, 12, 0, 513 * 1024)
    a.srd(sO, 20, 0, 16 * SS)
    a.srd(sRec, 20, REC_OFF, 32 * RBLK)
    a(f"s_cmp_lt_u32 s2, {NCHUNK}", f"s_cselect_b32 s{sRec+2}, s{sRec+2}, 0")
    a.srd(sB, 14, 0, 1024)
    a(f"s_cmp_ge_u32 s{su}, 8", f"s_cselect_b32 s{sB+2}, s{sB+2}, 0")

    def lds_init():
        a(f"v_mov_b32 v{vRd}, 0", f"v_mov_b32 v{vRd+1}, 0", f"v_mov_b32 v{vRd+2}, 0", f"v_mov_b32 v{vRd+3}, 0",
          f"v_lshlrev_b32 v{vT0}, 4, v0", f"v_add_u32 v{vT0}, {K1_IMG}, v{vT0}")
        for i in range(3):
            a.lds(f"ds_write_b128 v{vT0}, {vr(vRd,4)} offset:{4096*i}")
        a(f"v_and_b32 v{vT1}, 31, v0", f"v_lshlrev_b32 v{vT1}, 2, v{vT1}", f"v_add_u32 v{vT1}, {K1_CNT}, v{vT1}")
        a.lds(f"ds_write_b32 v{vT1}, v{vRd}")
        a.wait(lg="all")
        a("s_barrier")

    def sort_scatter():
        a.wait(vm="sort")
        a("s_mov_b32 exec_lo, -1", "s_mov_b32 exec_hi, 0xff")
        a(f"s_mov_b32 s{st0}, 13401", f"s_mov_b32 s{st1}, {-RNG & 0xffffffff}", f"v_mov_b32 v{vT2}, 1")
        for i in range(4):
            a(f"v_mul_u32_u24 v{vCa+i}, s{st0}, v{vDst+i}", f"v_lshrrev_b32 v{vCa+i}, 22, v{vCa+i}",
              f"v_lshlrev_b32 v{vT0}, 2, v{vCa+i}", f"v_add_u32 v{vT0}, {K1_CNT}, v{vT0}")
            a.lds(f"ds_add_rtn_u32 v{vSl+i}, v{vT0}, v{vT2}", f"sl{i}")
        for i in range(4):
            a(f"v_mad_i32_i24 v{vD+2*i+1}, v{vCa+i}, s{st1}, v{vDst+i}",
              f"v_lshl_add_u32 v{vD+2*i+1}, v{vD+2*i+1}, 2, 4")
            if i & 1:
                a(f"v_and_or_b32 v{vD+2*i}, v{vEe+i//2}, s{sMask}, v{vSrc+i}")
            else:
                a(f"v_lshl_or_b32 v{vD+2*i}, v{vEe+i//2}, 16, v{vSrc+i}")
            a(f"v_mul_u32_u24 v{vCa+i}, {CELL}, v{vCa+i}", f"v_add_u32 v{vCa+i}, {K1_IMG}, v{vCa+i}")
        a(f"v_mov_b32 v{vT1}, 0x100000")
        for i in range(4):
            a.wait(lg=f"sl{i}")
            a(f"v_lshl_add_u32 v{vCa+i}, v{vSl+i}, 3, v{vCa+i}", f"v_cmp_gt_u32 vcc, {CAP}, v{vSl+i}", "s_nop 1",
              f"v_cndmask_b32 v{vCa+i}, v{vT1}, v{vCa+i}, vcc")
            a.lds(f"ds_write_b64 v{vCa+i}, {vr(vD+2*i,2)}")
        a("s_mov_b64 exec, -1")

    def sort_readout():
        a(f"s_mov_b32 s{st0}, {RBLK - CELL}", f"s_mul_i32 s{st1}, s2, {CELL}")
        a(f"v_lshlrev_b32 v{vT0}, 4, v0", f"v_add_u32 v{vT1}, {K1_IMG}, v{vT0}")
        for i in range(3):
            a.lds(f"ds_read_b128 {vr(vRd+4*i,4)}, v{vT1} offset:{4096*i}", f"rd{i}")
            a(f"v_add_u32 v{vT2}, {256*i}, v0", f"v_mul_u32_u24 v{vT2}, 2731, v{vT2}", f"v_lshrrev_b32 v{vT2}, 16, v{vT2}",
              f"v_mad_u32_u24 v{vRo+i}, v{vT2}, s{st0}, v{vT0}",
              f"v_lshlrev_b32 v{vT2}, 2, v{vT2}", f"v_add_u32 v{vT2}, {K1_CNT}, v{vT2}")
            a.lds(f"ds_read_b32 v{vCn+i}, v{vT2}", f"rd{i}")
        for i in range(3):
            a.wait(lg=f"rd{i}")
            a(f"v_cmp_ge_u32 vcc, {CAP}, v{vCn+i}", f"v_add_u32 v{vRo+i}, {4096*i}, v{vRo+i}", "s_nop 0",
              f"v_cndmask_b32 v{vRd+4*i+1}, -1, v{vRd+4*i+1}, vcc")
            a.vmem(f"buffer_store_dwordx4 {vr(vRd+4*i,4)}, v{vRo+i}, {sr(sRec,4)}, s{st1} offen{wt()}", "rec")

    a(f"s_cmp_eq_u32 s{stile}, 63", "s_cbranch_scc1 K1_PREP")
    saved_vm = list(a.vm)

    a(f"v_lshrrev_b32 v{vT0}, 5, v{vLane}", f"s_lshl_b32 s{st0}, s{sw}, 3", f"v_add_u32 v{vT0}, s{st0}, v{vT0}",
      f"v_and_b32 v{vT1}, 31, v{vLane}")
    for m in range(4):
        a(f"v_add_u32 v{vT2}, {2*m}, v{vT0}", f"v_and_b32 v{vXd+m}, 15, v{vT2}", f"v_xor_b32 v{vXd+m}, v{vXd+m}, v{vT1}",
          f"v_lshlrev_b32 v{vXd+m}, 4, v{vXd+m}", f"v_lshl_add_u32 v{vXd+m}, v{vT2}, 9, v{vXd+m}")
    a(f"s_mul_i32 s{sXo}, s{stile}, {160*512}")

    def x_dma(j):
        a(f"s_add_u32 s{st1}, s{sXo}, {j*32*512}")
        for m in range(4):
            a(f"s_add_u32 m0, s{sRB}, {j*4096 + m*1024}", "s_nop 0")
            a.vmem(f"buffer_load_dwordx4 v{vXd+m}, {sr(sX,4)}, s{st1} offen lds", f"x{j}")
    x_dma(0)
    a(f"v_lshrrev_b32 v{vT0}, 3, v{vLane}", f"v_and_b32 v{vT1}, 7, v{vLane}", f"v_and_b32 v{vT2}, 16, v{vLane}",
      f"v_lshrrev_b32 v{vT2}, 2, v{vT2}", f"v_xor_b32 v{vT1}, v{vT1}, v{vT2}", f"v_lshlrev_b32 v{vT1}, 4, v{vT1}",
      f"v_lshl_add_u32 v{vWd}, v{vT0}, 10, v{vT1}")
    a(f"s_lshr_b32 s{st0}, s{su}, 3", f"s_lshl_b32 s{st0}, s{st0}, 18", f"s_and_b32 s{st1}, s{su}, 7",
      f"s_lshl_b32 s{st1}, s{st1}, 7", f"s_add_u32 s{st0}, s{st0}, s{st1}")
    a(f"v_and_b32 v{vT0}, 31, v{vLane}", f"v_lshlrev_b32 v{vT0}, 1, v{vT0}")
    a.vmem(f"buffer_load_ushort v{vBias}, v{vT0}, {sr(sB,4)}, s{st1} offen", "bias")
    a.vmem(f"buffer_load_ushort v{vBias+1}, v{vT0}, {sr(sB,4)}, s{st1} offen offset:64", "bias")
    for n in range(32):
        a(f"s_add_u32 m0, s{sWB}, {n*1024}")
        if n:
            a(f"s_add_u32 s{st0}, s{st0}, 8192")
        else:
            a("s_nop 0")
        a.vmem(f"buffer_load_dwordx4 v{vWd}, {sr(sW,4)}, s{st0} offen lds", f"w{n//2}")
    a.stamp()
    lds_init()
    a(f"v_and_b32 v{vT0}, 31, v{vLane}", f"v_lshrrev_b32 v{vT1}, 3, v{vT0}", f"v_mul_u32_u24 v{vAad}, {K1_REG}, v{vT1}",
      f"v_and_b32 v{vT1}, 7, v{vT0}", f"v_lshl_add_u32 v{vAad}, v{vT1}, 9, v{vAad}",
      f"v_lshrrev_b32 v{vT1}, 5, v{vLane}", f"v_and_b32 v{vT2}, 15, v{vLane}", f"v_xor_b32 v{vT2}, v{vT2}, v{vT1}",
      f"v_lshl_add_u32 v{vAad}, v{vT2}, 4, v{vAad}")
    for s in range(1, 8):
        a(f"v_xor_b32 v{vAad+s}, {32*s}, v{vAad}")
    a(f"v_lshlrev_b32 v{vSt}, 9, v{vT1}", f"v_lshl_add_u32 v{vSt}, v{vT0}, 2, v{vSt}")
    a(f"v_lshlrev_b32 v{vTr}, 10, v{vT1}", f"v_bfe_u32 v{vT0}, v{vLane}, 2, 2", f"v_lshl_add_u32 v{vTr}, v{vT0}, 7, v{vTr}",
      f"v_bfe_u32 v{vT0}, v{vLane}, 3, 1", f"v_lshl_add_u32 v{vTr}, v{vT0}, 6, v{vTr}",
      f"v_bfe_u32 v{vT0}, v{vLane}, 4, 1", f"v_lshl_add_u32 v{vTr}, v{vT0}, 5, v{vTr}",
      f"v_and_b32 v{vT0}, 3, v{vLane}", f"v_lshl_add_u32 v{vTr}, v{vT0}, 3, v{vTr}",
      f"v_add_u32 v{vTr}, s{sWB}, v{vTr}", f"v_xor_b32 v{vTr+1}, 64, v{vTr}")
    a(f"s_mul_i32 s{sOo}, s{su}, {SS}", f"s_mul_i32 s{st0}, s{stile}, {160*128}", f"s_add_u32 s{sOo}, s{sOo}, s{st0}")
    a.wait(vm="sort")
    a.stamp()
    sort_scatter()
    a.wait(vm=["x0", "bias"], lg="all")
    a("s_barrier")
    a.stamp()
    a(f"v_lshlrev_b32 v{vBias}, 16, v{vBias}", f"v_lshlrev_b32 v{vBias+1}, 16, v{vBias+1}",
      f"v_mul_f32 v{vBias}, s{sK}, v{vBias}", f"v_mul_f32 v{vBias+1}, s{sK}, v{vBias+1}")
    sort_readout()

    def wfrag(s, b):
        return vW + (s * 2 + b) * 4

    def a_read(j, s):
        a.lds(f"ds_read_b128 {vr(vA + 4*((16*j+s) % 4), 4)}, v{vAad + (s & 7)} offset:{4096*j + 256*(s >> 3)}", f"a{j}_{s}")

    def w_read(s):
        a.wait(vm=f"w{s}")
        for b in range(2):
            for q in range(2):
                a.lds(f"ds_read_b64_tr_b16 {vr(wfrag(s, b) + 2*q, 2)}, v{vTr+b} offset:{s*2048 + q*512}", f"t{s}")

    def mfma(j, s, b):
        acc = vAcc + 32 * (j & 1) + 16 * b
        c = "0" if s == 0 else vr(acc, 16)
        a(f"v_mfma_f32_32x32x16_bf16 {vr(acc,16)}, {vr(vA + 4*((16*j+s) % 4), 4)}, {vr(wfrag(s, b), 4)}, {c}")

    def epilogue_ops(j):
        acc = vAcc + 32 * (j & 1)
        ops = [("s", f"s_add_u32 s{st1}, s{sOo}, {j*32*128}")]
        for r in range(0, 16, 2):
            ops.append(("v", f"v_pk_fma_f32 {vr(acc+r,2)}, {vr(acc+r,2)}, {sr(sK,2)}, {vr(vBias,2)} op_sel:[0,0,0] op_sel_hi:[1,1,0]"))
            ops.append(("v", f"v_pk_fma_f32 {vr(acc+16+r,2)}, {vr(acc+16+r,2)}, {sr(sK,2)}, {vr(vBias,2)} op_sel:[0,0,1] op_sel_hi:[1,1,1]"))
            for rr in (r, r + 1):
                ops.append(("v", f"v_cvt_pk_bf16_f32 v{acc+rr}, v{acc+rr}, v{acc+16+rr}"))
            for rr in (r, r + 1):
                ops.append(("m", f"buffer_store_dword v{acc+rr}, v{vSt}, {sr(sO,4)}, s{st1} offen offset:{(8*(rr>>2) + (rr&3))*128}{wt()}"))
        return ops

    def emit_op(op):
        if op[0] == "m":
            a.vmem(op[1], "st")
        else:
            a(op[1])

    a("s_nop 1")
    PF = 2
    for s in range(PF):
        w_read(s)
        a_read(0, s)
    for s in range(16):
        if s + PF < 16:
            w_read(s + PF)
            a_read(0, s + PF)
        a.wait(lg=[f"t{s}", f"a0_{s}"])
        mfma(0, s, 0)
        mfma(0, s, 1)
        if s == 7:
            for j in range(1, 5):
                x_dma(j)
    PFA = 3
    a.stamp()
    a.wait(vm="x1")
    a("s_barrier")
    a.stamp()
    for s in range(PFA):
        a_read(1, s)
    for j in range(1, 5):
        ops = epilogue_ops(j - 1)
        for s in range(16):
            if s + PFA == 16 and j < 4:
                a.wait(vm=f"x{j+1}")
                a("s_barrier")
            a.wait(lg=f"a{j}_{s}")
            mfma(j, s, 0)
            if s + PFA < 16:
                a_read(j, s + PFA)
            elif j < 4:
                a_read(j + 1, s + PFA - 16)
            if s >= 3:
                for _ in range(2):
                    if ops:
                        emit_op(ops.pop(0))
            mfma(j, s, 1)
            if s >= 3:
                for _ in range(2):
                    if ops:
                        emit_op(ops.pop(0))
        assert not ops
        a.stamp()
    a("s_nop 15")
    for op in epilogue_ops(4):
        emit_op(op)
    a.stamp_dump(sX, 20, sw, 4)
    a("s_endpgm")

    a("K1_PREP:")
    a.vm = saved_vm
    a.lg = []
    sW2, sF = sX, sW
    a.srd(sW2, 16, 0, 512 * 512)
    a.srd(sF, 20, W2F_OFF, 262144)
    vL = vW
    vOut = vW + 64
    a(f"v_and_b32 v{vT0}, 15, v{vLane}", f"v_lshrrev_b32 v{vT1}, 4, v{vLane}", f"v_lshlrev_b32 v{vT0}, 2, v{vT0}",
      f"v_lshl_add_u32 v{vWd}, v{vT1}, 11, v{vT0}", f"v_lshlrev_b32 v{vSt}, 4, v{vLane}")
    a(f"s_lshr_b32 s{st0}, s{su}, 1", f"s_lshl_b32 s{st0}, s{st0}, 6", f"s_and_b32 s{st1}, s{su}, 1",
      f"s_lshl_b32 s{st1}, s{st1}, 17", f"s_add_u32 s{sXo}, s{st0}, s{st1}", f"s_lshl_b32 s{sOo}, s{su}, 14")
    for half in range(2):
        for s in range(4 * half, 4 * half + 4):
            for i in range(8):
                row = (s >> 1) * 64 + 16 * (s & 1) + (i >> 1) + 32 * (i & 1)
                a(f"s_add_u32 s{st0}, s{sXo}, {row*512}")
                a.vmem(f"buffer_load_dword v{vL + 8*s + i}, v{vWd}, {sr(sW2,4)}, s{st0} offen", f"l{s}")
        if half == 0:
            lds_init()
            sort_scatter()
            a.wait(lg="all")
            a("s_barrier")
            sort_readout()
            a.wait(vm="l3")
    a(f"s_mov_b32 s{sK}, 0x05040100", f"s_mov_b32 s{sK+1}, 0x07060302")
    for s in range(8):
        a.wait(vm=f"l{s}")
        for b in range(2):
            o = vOut + 8 * s + 4 * b
            for m in range(4):
                a(f"v_perm_b32 v{o+m}, v{vL + 8*s + 2*m + 1}, v{vL + 8*s + 2*m}, s{sK+b}")
            a(f"s_add_u32 s{st0}, s{sOo}, {(2*s+b)*1024}")
            a.vmem(f"buffer_store_dwordx4 {vr(o,4)}, v{vSt}, {sr(sF,4)}, s{st0} offen{wt()}")
    a("K1_END:", "s_endpgm")
    return a.lines, descriptor("k1_kernel", nv, 102 if STAMPS else 72)


K2_CNT = 64
K2_HIST = K2_CNT + 1280
K2_MISC = K2_HIST + 256
K2_ORD = K2_MISC + 64
K2_Q = 3072
K2_ELL = K2_Q + 320 * 128
K2_LDS = K2_ELL + 320 * ELLS + 64
NGRP = 40


def k2():
    a = Asm()
    header(a, "k2_kernel")
    sRec, sP, sQ, sS, sW1, sDeg, sPf = 24, 28, 32, 36, 40, 44, 48
    sw, sk, srng, scnt, st0, st1, sg, sdmax, sdmin, sK, sBig, sOne = 52, 53, 54, 55, 56, 57, 58, 59, 60, 62, 64, 66
    sM = 68
    vLane, vT0, vT1, vT2, vT3 = 1, 2, 3, 4, 5
    vI4, vAh, vAl = 6, 8, 10
    vE, vEs = 12, 14
    vIdx = 16
    vSh, vEll, vEe, vDeg, vOut, vOrdL, vHoff = 24, 25, 26, 27, 28, 29, 30
    vQ = 32
    vNum, vDen, vT = 48, 56, 64
    vP = 72
    vZ = 88
    nv = vZ + 32
    vRec = 88
    vSl = 48
    vC = 32
    vPf = 60

    a("s_cmp_ge_u32 s2, 256", "s_cbranch_scc1 K2_END")
    a.stamp_setup(31, 1)
    a("s_load_dwordx16 s[4:19], s[0:1], 0", "s_load_dwordx2 s[20:21], s[0:1], 80")
    a(f"v_lshrrev_b32 v{vT0}, 6, v0", f"v_and_b32 v{vLane}, 63, v0", f"v_readfirstlane_b32 s{sw}, v{vT0}")
    a(f"s_and_b32 s{sk}, s2, 7", f"s_lshr_b32 s{srng}, s2, 3")
    a(f"s_mul_i32 s{st0}, s{srng}, {RNG}", f"s_sub_u32 s{scnt}, {N}, s{st0}", f"s_min_u32 s{scnt}, s{scnt}, {RNG}")
    a(f"v_lshlrev_b32 v{vT0}, 4, v0")
    a(f"s_mul_i32 s{st1}, s{srng}, {RBLK}", f"s_add_u32 s{st1}, s{st1}, {REC_OFF}")
    a("s_waitcnt lgkmcnt(0)")
    a.srd(sRec, 20, f"s{st1}", RBLK)
    for i in range(6):
        a(f"s_mov_b32 s{st1}, {16384*i}")
        a.vmem(f"buffer_load_dwordx4 {vr(vRec+4*i,4)}, v{vT0}, {sr(sRec,4)}, s{st1} offen", f"r{i}")
    a.srd(sW1, 12, 512 * 1024, 1024)
    a(f"v_and_b32 v{vT1}, 1, v{vLane}", f"v_lshlrev_b32 v{vT1}, 6, v{vT1}",
      f"v_bfe_u32 v{vT2}, v{vLane}, 2, 1", f"v_lshl_add_u32 v{vT1}, v{vT2}, 5, v{vT1}",
      f"v_bfe_u32 v{vT2}, v{vLane}, 3, 1", f"v_lshl_add_u32 v{vT1}, v{vT2}, 2, v{vT1}",
      f"v_bfe_u32 v{vT2}, v{vLane}, 1, 1", f"v_lshl_add_u32 v{vT1}, v{vT2}, 1, v{vT1}",
      f"s_lshl_b32 s{st1}, s{sk}, 7")
    for i in range(4):
        a.vmem(f"buffer_load_ushort v{vC+i}, v{vT1}, {sr(sW1,4)}, s{st1} offen offset:{8*i}", "c")
    a(f"s_mul_i32 s{st1}, s{sk}, {SS}", f"s_lshl_b32 s{sg}, s{st0}, 7", f"s_add_u32 s{sg}, s{sg}, s{st1}",
      f"s_lshl_b32 s{sdmax}, s{scnt}, 7")
    a.srd(sP, 20, f"s{st1}", N, stride=128)
    a.srd(sPf, 20, f"s{sg}", f"s{sdmax}")
    a(f"s_add_u32 s{sg}, s{sg}, {Q_OFF}")
    a.srd(sQ, 20, f"s{sg}", f"s{sdmax}")
    a(f"s_add_u32 s{sg}, s{sg}, {S_OFF - Q_OFF}")
    a.srd(sS, 20, f"s{sg}", f"s{sdmax}")
    a(f"s_lshl_b32 s{sg}, s{st0}, 2", f"s_add_u32 s{sg}, s{sg}, {DEG_OFF}", f"s_lshl_b32 s{sdmax}, s{scnt}, 2",
      f"s_cmp_eq_u32 s{sk}, 0", f"s_cselect_b32 s{sdmax}, s{sdmax}, 0")
    a.srd(sDeg, 20, f"s{sg}", f"s{sdmax}")
    a(f"v_lshlrev_b32 v{vT1}, 4, v{vLane}", f"s_lshl_b32 s{st1}, s{sw}, 10")
    for i in range(2):
        a(f"s_add_u32 m0, s{st1}, {K2_Q}", "s_nop 0")
        a.vmem(f"buffer_load_dwordx4 v{vT1}, {sr(sQ,4)}, s{st1} offen lds", "q")
        a(f"s_add_u32 s{st1}, s{st1}, 16384")
    a(f"s_cmp_ge_u32 s{sw}, 8", "s_cbranch_scc1 K2_NOQ3")
    a(f"s_add_u32 m0, s{st1}, {K2_Q}", "s_nop 0")
    a(f"buffer_load_dwordx4 v{vT1}, {sr(sQ,4)}, s{st1} offen lds")
    a("K2_NOQ3:")
    a(f"v_mov_b32 v{vP}, 0xffff", f"v_mov_b32 v{vP+1}, 0xffff", f"v_mov_b32 v{vP+2}, 0xffff", f"v_mov_b32 v{vP+3}, 0xffff",
      f"v_mov_b32 v{vP+4}, 0", f"v_add_u32 v{vT1}, {K2_ELL}, v{vT0}")
    nell = (K2_LDS - K2_ELL) // 16
    for i in range(3):
        a.lds(f"ds_write_b128 v{vT1}, {vr(vP,4)} offset:{16384*i}")
    a(f"v_cmp_gt_u32 vcc, {nell - 3072}, v0", f"s_and_saveexec_b64 {sr(sM,2)}, vcc", "s_cbranch_execz K2_I1")
    a(f"ds_write_b128 v{vT1}, {vr(vP,4)} offset:{16384*3}")
    a("K2_I1:", "s_mov_b64 exec, -1")
    a(f"v_cmp_gt_u32 vcc, {(K2_ORD - K2_CNT)//4}, v0", f"v_lshlrev_b32 v{vT1}, 2, v0", f"v_add_u32 v{vT1}, {K2_CNT}, v{vT1}",
      f"s_and_saveexec_b64 {sr(sM,2)}, vcc", "s_cbranch_execz K2_I2")
    a(f"ds_write_b32 v{vT1}, v{vP+4}")
    a("K2_I2:", "s_mov_b64 exec, -1")
    a(f"v_and_b32 v{vT1}, 3, v{vLane}", f"v_lshlrev_b32 v{vSh}, 4, v{vT1}", f"v_lshrrev_b32 v{vT2}, 5, v{vLane}",
      f"v_lshl_add_u32 v{vIdx+1}, v{vT2}, 6, v{vSh}", f"v_mov_b32 v{vIdx+3}, v{vIdx+1}", f"v_mov_b32 v{vIdx+5}, v{vIdx+1}",
      f"v_mov_b32 v{vIdx+7}, v{vIdx+1}", f"v_lshl_add_u32 v{vHoff}, v{vT2}, 2, 2",
      f"v_and_b32 v{vOrdL}, 28, v{vLane}", f"v_add_u32 v{vOrdL}, {K2_ORD}, v{vOrdL}",
      f"v_mov_b32 v{vE}, 0x3f80", f"v_mov_b32 v{vE+1}, 0", f"v_lshlrev_b64 {vr(vI4,2)}, v{vSh}, {vr(vE,2)}")
    a(f"s_mov_b32 s{sK}, {NLOG2E}", f"s_mov_b32 s{sBig}, {fbits(2.0**120)}", f"s_mov_b32 s{sOne}, 1.0", f"s_mov_b32 s{sOne+1}, 1.0")
    a("s_waitcnt lgkmcnt(0)", "s_barrier")
    a.lg = []
    a.stamp()
    if STAMPS:
        a.wait(vm="r5")
        a.stamp()
    a(f"v_mov_b32 v{vT3}, 1", f"v_mov_b32 v{vT2}, 0")
    for i in range(6):
        a.wait(vm=f"r{i}")
        for u in range(2):
            n = 2 * i + u
            if n:
                a("s_mov_b64 exec, -1")
            a(f"v_cmp_lt_i32 {sr(sM+2*n,2)}, 0, v{vRec+2*n+1}")
            if u == 0:
                a(f"v_min3_i32 v{vT2}, v{vRec+2*n+1}, v{vRec+2*n+3}, v{vT2}")
            a(f"s_mov_b64 exec, {sr(sM+2*n,2)}")
            a.lds(f"ds_add_rtn_u32 v{vSl+n}, v{vRec+2*n+1}, v{vT3} offset:{K2_CNT-4}", f"s{n}")
    a("s_mov_b64 exec, -1")
    for i in range(3):
        a(f"s_mov_b32 s{st1}, {16384*i}")
        a.vmem(f"buffer_load_dwordx4 {vr(vPf,4)}, v{vT0}, {sr(sPf,4)}, s{st1} offen", "pf")
    a(f"v_cmp_gt_i32 vcc, 0, v{vT2}", f"v_mov_b32 v{vT1}, {K2_MISC}", f"s_and_saveexec_b64 {sr(sM+24,2)}, vcc", "s_cbranch_execz K2_NOOVF")
    a(f"ds_write_b32 v{vT1}, v{vT3} offset:4", "s_waitcnt lgkmcnt(0)")
    a("K2_NOOVF:", "s_mov_b64 exec, -1")
    a(f"s_mov_b32 s{st1}, {ELLS // 4}")
    for n in range(12):
        a.wait(lg=f"s{n}")
        a(f"s_mov_b64 exec, {sr(sM+2*n,2)}")
        a(f"v_min_u32 v{vSl+n}, {MAXDEG}, v{vSl+n}", f"v_lshlrev_b32 v{vSl+n}, 2, v{vSl+n}",
          f"v_mad_u32_u24 v{vSl+n}, v{vRec+2*n+1}, s{st1}, v{vSl+n}")
        a.lds(f"ds_write_b32 v{vSl+n}, v{vRec+2*n} offset:{K2_ELL - ELLS}")
    a("s_mov_b64 exec, -1")
    a.wait(vm="c")
    for i in range(4):
        a(f"v_lshlrev_b32 v{vC+i}, 16, v{vC+i}", f"v_mul_f32 v{vC+i}, s{sK}, v{vC+i}")
    a(f"v_cvt_pk_bf16_f32 v{vAh}, v{vC}, v{vC+1}", f"v_cvt_pk_bf16_f32 v{vAh+1}, v{vC+2}, v{vC+3}")
    for i in range(4):
        if i & 1:
            a(f"v_and_b32 v{vT1}, 0xffff0000, v{vAh+i//2}")
        else:
            a(f"v_lshlrev_b32 v{vT1}, 16, v{vAh+i//2}")
        a(f"v_sub_f32 v{vC+i}, v{vC+i}, v{vT1}")
    a(f"v_cvt_pk_bf16_f32 v{vAl}, v{vC}, v{vC+1}", f"v_cvt_pk_bf16_f32 v{vAl+1}, v{vC+2}, v{vC+3}")
    a(f"v_bfe_u32 v{vT1}, v{vLane}, 4, 1", f"v_lshrrev_b32 v{vT2}, 5, v{vLane}", f"v_cmp_eq_u32 vcc, v{vT1}, v{vT2}", "s_nop 1")
    for r in (vAh, vAh + 1, vAl, vAl + 1):
        a(f"v_cndmask_b32 v{r}, 0, v{r}, vcc")
    a.stamp()
    a("s_waitcnt lgkmcnt(0)", "s_barrier")
    a.lg = []
    a.stamp()
    a(f"s_cmp_ge_u32 s{sw}, 5", "s_cbranch_scc1 K2_DS1")
    a(f"v_lshlrev_b32 v{vT0}, 2, v0", f"ds_read_b32 v{vDeg}, v{vT0} offset:{K2_CNT}", "s_waitcnt lgkmcnt(0)")
    a(f"v_cvt_f32_u32 v{vT1}, v{vDeg}", f"v_cmp_lt_u32 vcc, {MAXDEG}, v{vDeg}", f"v_min_u32 v{vDeg}, {MAXDEG}, v{vDeg}")
    a(f"buffer_store_dword v{vT1}, v{vT0}, {sr(sDeg,4)}, 0 offen")
    a(f"v_sub_u32 v{vT2}, 63, v{vDeg}", f"v_lshlrev_b32 v{vT2}, 2, v{vT2}",
      f"ds_add_rtn_u32 v{vOut}, v{vT2}, v{vT3} offset:{K2_HIST}")
    a(f"v_mov_b32 v{vT1}, {K2_MISC}", f"s_and_saveexec_b64 {sr(sM,2)}, vcc", "s_cbranch_execz K2_NOOVF2")
    a(f"ds_write_b32 v{vT1}, v{vT3} offset:4")
    a("K2_NOOVF2:", "s_mov_b64 exec, -1", "s_waitcnt lgkmcnt(0)")
    a("K2_DS1:", "s_barrier")
    a(f"s_cmp_ge_u32 s{sw}, 5", "s_cbranch_scc1 K2_DS2")
    a(f"v_lshlrev_b32 v{vT0}, 2, v{vLane}", f"ds_read_b32 v{vT1}, v{vT0} offset:{K2_HIST}", "s_waitcnt lgkmcnt(0)",
      f"v_mov_b32 v{vEll}, v{vT1}", "s_nop 1")
    for ctrl in ("row_shr:1", "row_shr:2", "row_shr:4", "row_shr:8"):
        a(f"v_add_u32_dpp v{vEll}, v{vEll}, v{vEll} {ctrl} row_mask:0xf bank_mask:0xf bound_ctrl:1", "s_nop 1")
    a(f"v_add_u32_dpp v{vEll}, v{vEll}, v{vEll} row_bcast:15 row_mask:0xa bank_mask:0xf", "s_nop 1")
    a(f"v_add_u32_dpp v{vEll}, v{vEll}, v{vEll} row_bcast:31 row_mask:0xc bank_mask:0xf", "s_nop 1")
    a(f"v_sub_u32 v{vEll}, v{vEll}, v{vT1}", f"ds_bpermute_b32 v{vT1}, v{vT2}, v{vEll}",
      f"v_lshl_or_b32 v{vDeg}, v{vDeg}, 16, v0", "s_waitcnt lgkmcnt(0)",
      f"v_add_lshl_u32 v{vT1}, v{vT1}, v{vOut}, 2", f"ds_write_b32 v{vT1}, v{vDeg} offset:{K2_ORD}")
    a("K2_DS2:", "s_waitcnt vmcnt(0) lgkmcnt(0)", "s_barrier")
    a.vm = []
    a.stamp()
    if STAMPS:
        a("s_mov_b32 s99, 8")
    a(f"v_mov_b32 v{vT0}, {K2_MISC}", f"ds_read_b32 v{vT1}, v{vT0} offset:4", "s_waitcnt lgkmcnt(0)",
      f"v_readfirstlane_b32 s{st0}, v{vT1}", f"s_mov_b32 s{sg}, s{sw}", f"s_cmp_lg_u32 s{st0}, 0", "s_cbranch_scc1 K2_SLOW")

    def Z(i):
        return vZ + 16 * ((i >> 1) & 1) + 8 * (i & 1)

    def src_read(i):
        a(f"ds_read_u16 v{vIdx + 2*(i % 4)}, v{vEll} offset:{4*i}")

    def e_read(p):
        a(f"ds_read_u16 v{vE}, v{vEe} offset:{8*p}")

    def gather(i):
        a(f"buffer_load_dwordx4 {vr(vP + 4*(i % 4), 4)}, {vr(vIdx + 2*(i % 4), 2)}, {sr(sP,4)}, 0 idxen offen")

    def m4(i, hf):
        z = Z(i) + 4 * hf
        return f"v_mfma_f32_4x4x4_16b_bf16 {vr(z,4)}, {vr(vI4,2)}, {vr(vP + 4*(i % 4) + 2*hf, 2)}, {vr(z,4)}"

    shift = f"v_lshlrev_b64 {vr(vEs,2)}, v{vSh}, {vr(vE,2)}"

    def mhi(p):
        return f"v_mfma_f32_32x32x8_bf16 {vr(Z(2*p),16)}, {vr(vAh,2)}, {vr(vEs,2)}, {vr(vQ,16)}"

    def mlo(p):
        return f"v_mfma_f32_32x32x8_bf16 {vr(Z(2*p),16)}, {vr(vAl,2)}, {vr(vEs,2)}, {vr(Z(2*p),16)}"

    if OPT["prio"]:
        a("s_setprio 3", "s_branch K2_GROUP0")
    a("K2_GROUP:")
    if OPT["prio"]:
        a(f"s_cmp_lt_u32 s{sg}, 24", "s_cbranch_scc0 K2_PR1", "s_setprio 2", "s_branch K2_GROUP0",
          "K2_PR1:", f"s_cmp_lt_u32 s{sg}, 32", "s_cbranch_scc0 K2_PR0", "s_setprio 1", "s_branch K2_GROUP0",
          "K2_PR0:", "s_setprio 0")
    a("K2_GROUP0:")
    a(f"s_lshl_b32 s{st0}, s{sg}, 5", f"v_add_u32 v{vT0}, s{st0}, v{vOrdL}", f"ds_read_b32 v{vT1}, v{vT0}",
      f"s_mov_b32 s{st1}, {ELLS}", "s_waitcnt lgkmcnt(0)")
    a(f"v_and_b32 v{vT0}, 0xffff, v{vT1}", f"v_lshrrev_b32 v{vDeg}, 16, v{vT1}",
      f"v_mul_u32_u24 v{vEll}, s{st1}, v{vT0}", f"v_add_u32 v{vEll}, {K2_ELL}, v{vEll}")
    for i in range(4):
        src_read(i)
    a(f"v_lshl_add_u32 v{vOut}, v{vT0}, 7, v{vIdx+1}", f"v_add_u32 v{vEe}, v{vEll}, v{vHoff}")
    a(f"ds_read_b128 {vr(vT+4,4)}, v{vOut} offset:{K2_Q}")
    e_read(0)
    a(f"v_readlane_b32 s{sdmax}, v{vDeg}, 0", f"v_readlane_b32 s{sdmin}, v{vDeg}, 28")
    for i in range(4):
        a(f"s_waitcnt lgkmcnt({5-i})")
        gather(i)
    src_read(4)
    a("s_waitcnt lgkmcnt(1)")
    for q in range(4):
        a(f"v_mfma_f32_4x4x4_16b_bf16 {vr(vQ+4*q,4)}, {vr(vI4,2)}, {vr(vT+4+2*(q&1),2)}, 0")
    a(shift)
    e_read(1)
    a("s_nop 2")
    a(mhi(0), mlo(0))
    a("s_nop 9", "s_waitcnt vmcnt(3)")
    a(m4(0, 0), m4(0, 1))
    a("s_waitcnt lgkmcnt(1)")
    gather(4)
    src_read(5)
    a("s_waitcnt lgkmcnt(1)", "s_nop 0")
    if STAMPS:
        a("s_mov_b32 m0, s99", "s_add_u32 s99, s99, 1")
        a.stamp("m0")

    for i in range(MAXDEG):
        z = Z(i)
        p = i >> 1
        a(f"s_cmp_le_u32 s{sdmin}, {i}", f"s_cbranch_scc1 K2_OOL{i}", f"K2_S{i}:")
        ex = [f"v_exp_f32 v{vT+r}, v{z+r}" for r in range(8)]
        num_src = Z(0) if i == 1 else vNum
        if i == 0:
            upd_w = []
            upd = [f"v_pk_add_f32 {vr(vDen+r,2)}, {vr(vT+r,2)}, {sr(sOne,2)}" for r in range(0, 8, 2)]
        else:
            upd_w = [f"v_pk_fma_f32 {vr(z+r,2)}, {vr(z+r,2)}, {vr(vDen+r,2)}, {vr(num_src+r,2)}" for r in range(0, 8, 2)]
            upd = [f"v_pk_fma_f32 {vr(vNum+r,2)}, {vr(num_src+r,2)}, {vr(vT+r,2)}, {vr(z+r,2)}" for r in range(0, 8, 2)]
            upd += [f"v_pk_fma_f32 {vr(vDen+r,2)}, {vr(vDen+r,2)}, {vr(vT+r,2)}, {vr(vDen+r,2)}" for r in range(0, 8, 2)]
        nxt = i + 1 < MAXDEG
        if (i & 1) == 0 and 2 * (p + 1) < MAXDEG:
            a(shift)
            more_e = 2 * (p + 2) < MAXDEG
            if more_e:
                e_read(p + 2)
            a(*ex[0:2])
            a(mhi(p + 1))
            a(*ex[2:6])
            a(mlo(p + 1))
            a(*ex[6:8])
            a(*upd_w)
        else:
            more_e = False
            a(*ex)
            a(*upd_w)
        if nxt:
            pending = min(MAXDEG - 1, i + 4) - (i + 1)
            a(f"s_waitcnt vmcnt({pending})")
            a(m4(i + 1, 0))
            a(upd[0])
            a(m4(i + 1, 1))
            if i + 5 < MAXDEG:
                a(f"s_waitcnt lgkmcnt({1 if more_e else 0})")
                gather(i + 5)
            if i + 6 < MAXDEG:
                src_read(i + 6)
            elif i + 5 >= MAXDEG:
                a("s_waitcnt lgkmcnt(0)")
            a(*upd[1:])
            if i == 0:
                a("s_nop 1")
        else:
            a(*upd)
    a("K2_FIN:")
    a("s_mov_b64 exec, -1")
    a(f"v_pk_add_f32 {vr(vT0,2)}, {vr(vDen,2)}, {vr(vDen+2,2)}")
    for r in range(4):
        a(f"v_rcp_f32 v{vT+r}, v{vDen+r}")
    a(f"v_pk_add_f32 {vr(vT0,2)}, {vr(vT0,2)}, {vr(vDen+4,2)}")
    for r in range(4, 8):
        a(f"v_rcp_f32 v{vT+r}, v{vDen+r}")
    a(f"v_pk_add_f32 {vr(vT0,2)}, {vr(vT0,2)}, {vr(vDen+6,2)}")
    for r in range(0, 8, 2):
        a(f"v_pk_fma_f32 {vr(vT0,2)}, {vr(vNum+r,2)}, 0, {vr(vT0,2)} op_sel_hi:[1,0,1]")
        a(f"v_pk_mul_f32 {vr(vNum+r,2)}, {vr(vNum+r,2)}, {vr(vT+r,2)}")
    a(f"v_add_f32 v{vT0}, v{vT0}, v{vT1}", f"v_cmp_ngt_f32 vcc, s{sBig}, v{vT0}")
    a("s_cbranch_vccnz K2_SAFE")
    a("K2_STORE:")
    for r in range(4):
        a(f"v_cvt_pk_bf16_f32 v{vT+r}, v{vNum+2*r}, v{vNum+2*r+1}")
    a("s_mov_b64 exec, 1", f"v_mov_b32 v{vT0}, {K2_MISC}", f"v_mov_b32 v{vT1}, 1", f"ds_add_rtn_u32 v{vT1}, v{vT0}, v{vT1}",
      "s_mov_b64 exec, -1")
    a(f"buffer_store_dwordx4 {vr(vT,4)}, v{vOut}, {sr(sS,4)}, 0 offen{wt()}")
    if STAMPS:
        a("s_mov_b32 m0, s99", "s_add_u32 s99, s99, 1")
        a.stamp("m0")
        a("s_mov_b32 m0, s99", "s_add_u32 s99, s99, 1", f"v_writelane_b32 v31, s{sdmax}, m0")
    a("s_waitcnt lgkmcnt(0)", f"v_readfirstlane_b32 s{sg}, v{vT1}", f"s_add_u32 s{sg}, s{sg}, 16",
      f"s_cmp_lt_u32 s{sg}, {NGRP}", "s_cbranch_scc1 K2_GROUP")
    a.stamp_dump(sRec, 20, sw, 16)
    a("s_endpgm")

    for i in range(MAXDEG):
        a(f"K2_OOL{i}:")
        if i == 0:
            for r in range(8):
                a(f"v_mov_b32 v{vNum+r}, 0", f"v_mov_b32 v{vDen+r}, 1.0")
        if i == 1:
            for r in range(8):
                a(f"v_mov_b32 v{vNum+r}, v{Z(0)+r}")
        a(f"s_cmp_le_u32 s{sdmax}, {i}", "s_cbranch_scc1 K2_FIN")
        a(f"v_cmpx_lt_u32 vcc, {i}, v{vDeg}", "s_nop 3", f"s_branch K2_S{i}")

    a("K2_SAFE:")
    a("s_waitcnt vmcnt(0) lgkmcnt(0)", f"s_mov_b32 s{st0}, 0")
    for r in range(8):
        a(f"v_mov_b32 v{vNum+r}, 0")
    a("K2_SAFE_L:")
    a(f"s_cmp_ge_u32 s{st0}, s{sdmax}", "s_cbranch_scc1 K2_SAFE_E")
    a(f"v_cmpx_lt_u32 vcc, s{st0}, v{vDeg}")
    src_read(0)
    e_read(0)
    a("s_waitcnt lgkmcnt(0)")
    gather(0)
    a(shift, f"v_add_u32 v{vEll}, 4, v{vEll}", f"v_add_u32 v{vEe}, 4, v{vEe}", "s_nop 1")
    a(mhi(0), mlo(0), "s_nop 9", "s_waitcnt vmcnt(0)", m4(0, 0), m4(0, 1), "s_nop 4")
    for r in range(8):
        a(f"v_exp_f32 v{vT+r}, v{vZ+r}")
    for r in range(0, 8, 2):
        a(f"v_pk_add_f32 {vr(vT+r,2)}, {vr(vT+r,2)}, {sr(sOne,2)}")
    for r in range(8):
        a(f"v_rcp_f32 v{vT+r}, v{vT+r}")
    a("s_nop 0")
    for r in range(0, 8, 2):
        a(f"v_pk_fma_f32 {vr(vNum+r,2)}, {vr(vZ+r,2)}, {vr(vT+r,2)}, {vr(vNum+r,2)}")
    a(f"s_add_u32 s{st0}, s{st0}, 1", "s_branch K2_SAFE_L")
    a("K2_SAFE_E:", "s_mov_b64 exec, -1", "s_branch K2_STORE")

    sDst, sSrc, sE = sRec, sPf, sW1
    snode, sbase, sdeg, sbit, ssrc, se, sm = sM, sM + 1, sM + 2, sM + 3, sM + 4, sM + 5, sM + 6
    vc, vq, vacc, vd, vs, ve, voff, vz = 32, 33, 34, 36, 40, 44, 48, 49
    a("K2_SLOW:")
    a(f"v_and_b32 v{vT0}, 1, v{vLane}", f"v_lshlrev_b32 v{vT0}, 6, v{vT0}", f"v_and_b32 v{vT1}, 62, v{vLane}",
      f"v_add_u32 v{vT0}, v{vT0}, v{vT1}", f"s_lshl_b32 s{st1}, s{sk}, 7")
    a(f"buffer_load_ushort v{vc}, v{vT0}, {sr(sW1,4)}, s{st1} offen", "s_waitcnt vmcnt(0)",
      f"v_lshlrev_b32 v{vc}, 16, v{vc}", f"v_mul_f32 v{vc}, s{sK}, v{vc}")
    a.srd(sDst, 10, 0, E * 4)
    a.srd(sSrc, 8, 0, E * 4)
    a.srd(sE, 6, 0, E * 2)
    a(f"v_lshlrev_b32 v{vIdx+1}, 1, v{vLane}", f"v_lshlrev_b32 v{vT2}, 4, v{vLane}", f"v_lshlrev_b32 v{vT3}, 3, v{vLane}")
    a("K2_SLOW_N:")
    a(f"s_cmp_ge_u32 s{sg}, s{scnt}", "s_cbranch_scc1 K2_END")
    a(f"s_mul_i32 s{snode}, s{srng}, {RNG}", f"s_add_u32 s{snode}, s{snode}, s{sg}", f"s_lshl_b32 s{st0}, s{sg}, 7",
      f"v_add_u32 v{voff}, s{st0}, v{vIdx+1}", f"ds_read_u16 v{vq}, v{voff} offset:{K2_Q}",
      f"v_mov_b32 v{vacc}, 0", f"s_mov_b32 s{sbase}, 0", f"s_mov_b32 s{sdeg}, 0", "s_waitcnt lgkmcnt(0)",
      f"v_lshlrev_b32 v{vq}, 16, v{vq}")
    a("K2_SLOW_C:")
    a(f"s_lshl_b32 s{st0}, s{sbase}, 2", f"s_lshl_b32 s{st1}, s{sbase}, 1")
    a(f"buffer_load_dwordx4 {vr(vd,4)}, v{vT2}, {sr(sDst,4)}, s{st0} offen",
      f"buffer_load_dwordx4 {vr(vs,4)}, v{vT2}, {sr(sSrc,4)}, s{st0} offen",
      f"buffer_load_dwordx2 {vr(ve+2,2)}, v{vT3}, {sr(sE,4)}, s{st1} offen", "s_waitcnt vmcnt(0)")
    a(f"v_lshlrev_b32 v{ve}, 16, v{ve+2}", f"v_and_b32 v{ve+1}, 0xffff0000, v{ve+2}",
      f"v_lshlrev_b32 v{ve+2}, 16, v{ve+3}", f"v_and_b32 v{ve+3}, 0xffff0000, v{ve+3}")
    for u in range(4):
        a(f"v_cmp_eq_u32 {sr(sm,2)}, s{snode}, v{vd+u}")
        a(f"K2_SLOW_M{u}:", f"s_cmp_eq_u64 {sr(sm,2)}, 0", f"s_cbranch_scc1 K2_SLOW_X{u}")
        a(f"s_ff1_i32_b64 s{sbit}, {sr(sm,2)}", f"s_bitset0_b64 {sr(sm,2)}, s{sbit}", f"s_add_u32 s{sdeg}, s{sdeg}, 1",
          f"v_readlane_b32 s{ssrc}, v{vs+u}, s{sbit}", f"v_readlane_b32 s{se}, v{ve+u}, s{sbit}", "s_nop 1",
          f"v_mov_b32 v{vIdx}, s{ssrc}", f"buffer_load_ushort v{vz}, {vr(vIdx,2)}, {sr(sP,4)}, 0 idxen offen",
          f"v_fma_f32 v{vT0}, s{se}, v{vc}, v{vq}", "s_waitcnt vmcnt(0)",
          f"v_lshlrev_b32 v{vz}, 16, v{vz}", f"v_add_f32 v{vz}, v{vz}, v{vT0}", f"v_exp_f32 v{vT0}, v{vz}", "s_nop 0",
          f"v_add_f32 v{vT0}, 1.0, v{vT0}", f"v_rcp_f32 v{vT0}, v{vT0}", "s_nop 0",
          f"v_fma_f32 v{vacc}, v{vz}, v{vT0}, v{vacc}", f"s_branch K2_SLOW_M{u}")
        a(f"K2_SLOW_X{u}:")
    a(f"s_add_u32 s{sbase}, s{sbase}, 256", f"s_cmp_lt_u32 s{sbase}, {E}", "s_cbranch_scc1 K2_SLOW_C")
    a(f"v_cvt_pk_bf16_f32 v{vacc}, v{vacc}, v{vacc}", f"v_cvt_f32_u32 v{vT0}, s{sdeg}", f"s_lshl_b32 s{st0}, s{sg}, 2",
      f"v_mov_b32 v{vT1}, s{st0}")
    a(f"buffer_store_short v{vacc}, v{voff}, {sr(sS,4)}, 0 offen", f"buffer_store_dword v{vT0}, v{vT1}, {sr(sDeg,4)}, 0 offen")
    a(f"s_add_u32 s{sg}, s{sg}, 16", "s_waitcnt vmcnt(0)", "s_branch K2_SLOW_N")
    a("K2_END:", "s_endpgm")
    return a.lines, descriptor("k2_kernel", nv, 102 if STAMPS else 96)


K3_LDS = 81920


def k3():
    a = Asm()
    header(a, "k3_kernel")
    sS, sF, sDeg, sB, sO = 24, 28, 32, 36, 40
    sw, stile, scg, st0, st1, sK, sn, sSo = 44, 45, 46, 47, 48, 50, 52, 53
    vLane, vT0, vT1, vT2 = 1, 2, 3, 4
    vDm, vBo, vSt, vB2 = 5, 6, 7, 8
    vAad = 10
    vDg = 12
    vA = 32
    vAcc = 72
    vB = 112
    nv = vB + 128
    a("s_cmp_ge_u32 s2, 256", "s_cbranch_scc1 K3_END")
    a(f"s_lshr_b32 s{st0}, s2, 4", f"s_lshl_b32 s{st0}, s{st0}, 3", f"s_and_b32 s{stile}, s2, 7",
      f"s_add_u32 s{stile}, s{stile}, s{st0}", f"s_cmp_ge_u32 s{stile}, 125", "s_cbranch_scc1 K3_END")
    a.stamp_setup(nv, 2)
    a("s_load_dwordx4 s[4:7], s[0:1], 56", "s_load_dwordx2 s[20:21], s[0:1], 80")
    a(f"v_lshrrev_b32 v{vT0}, 6, v0", f"v_and_b32 v{vLane}, 63, v0", f"v_readfirstlane_b32 s{sw}, v{vT0}")
    a(f"s_bfe_u32 s{scg}, s2, 0x10003", f"s_lshl_b32 s{scg}, s{scg}, 2", f"s_add_u32 s{scg}, s{scg}, s{sw}")
    a(f"s_and_b32 s{st0}, s{sw}, 1", f"s_lshl_b32 s{st0}, s{st0}, 2", f"v_lshrrev_b32 v{vT0}, 4, v{vLane}",
      f"v_add_u32 v{vT1}, s{st0}, v{vT0}", f"v_and_b32 v{vT2}, 7, v{vLane}", f"v_xor_b32 v{vT1}, v{vT1}, v{vT2}",
      f"v_lshlrev_b32 v{vT1}, 4, v{vT1}", f"v_lshrrev_b32 v{vT2}, 3, v{vLane}", f"v_lshl_add_u32 v{vDm}, v{vT2}, 7, v{vT1}")
    a(f"v_lshlrev_b32 v{vBo}, 4, v{vLane}")
    a(f"v_and_b32 v{vT1}, 15, v{vLane}", f"v_lshlrev_b32 v{vT2}, 2, v{vT1}", f"v_lshl_add_u32 v{vSt}, v{vT0}, 11, v{vT2}")
    a(f"v_lshrrev_b32 v{vAad}, 1, v{vT1}", f"v_xor_b32 v{vAad}, v{vAad}, v{vT0}", f"v_lshlrev_b32 v{vAad}, 4, v{vAad}",
      f"v_lshl_add_u32 v{vAad}, v{vT1}, 7, v{vAad}", f"v_xor_b32 v{vAad+1}, 64, v{vAad}", f"v_lshlrev_b32 v{vT0}, 4, v{vT0}")
    a(f"s_mul_i32 s{sSo}, s{stile}, 10240")
    a("s_waitcnt lgkmcnt(0)")
    a.srd(sDeg, 20, DEG_OFF, N * 4)
    a.srd(sB, 4, 0, 512)
    a(f"s_mul_i32 s{st0}, s{stile}, 320", f"s_lshl_b32 s{st1}, s{scg}, 6")
    for rt in range(5):
        a.vmem(f"buffer_load_dwordx4 {vr(vDg+4*rt,4)}, v{vT0}, {sr(sDeg,4)}, s{st0} offen offset:{64*rt}", "deg")
    a.vmem(f"buffer_load_dword v{vB2}, v{vT2}, {sr(sB,4)}, s{st1} offen", "deg")
    a.srd(sS, 20, S_OFF, 8 * SS)
    a.srd(sF, 20, W2F_OFF, 262144)
    a.srd(sO, 6, 0, N * 512)
    a(f"s_mov_b32 s{sn}, s{sw}", f"s_lshl_b32 s{sK}, s{scg}, 15")
    for j in range(4):
        for m in range(5):
            a(f"s_mul_i32 s{st0}, s{sn}, 205", f"s_lshr_b32 s{st0}, s{st0}, 11", f"s_mul_i32 s{st0}, s{st0}, {SS - 10240}",
              f"s_lshl_b32 s{st1}, s{sn}, 10", f"s_mov_b32 m0, s{st1}", f"s_add_u32 s{st0}, s{st0}, s{st1}",
              f"s_add_u32 s{st0}, s{st0}, s{sSo}", f"s_add_u32 s{sn}, s{sn}, 4")
            a.vmem(f"buffer_load_dwordx4 v{vDm}, {sr(sS,4)}, s{st0} offen lds", f"st{j}")
        for f in range(8):
            n = 8 * j + f
            if n % 4 == 0 and n:
                a(f"s_add_u32 s{sK}, s{sK}, 4096")
            a.vmem(f"buffer_load_dwordx4 {vr(vB+4*n,4)}, v{vBo}, {sr(sF,4)}, s{sK} offen offset:{1024*(n % 4)}", f"st{j}")
    a.stamp()
    a.wait(vm="deg")
    a.stamp()
    a(f"s_mov_b32 s{sK}, {NLOG2E}")
    a(f"v_and_b32 v{vB2+1}, 0xffff0000, v{vB2}", f"v_lshlrev_b32 v{vB2}, 16, v{vB2}",
      f"v_mul_f32 v{vB2}, s{sK}, v{vB2}", f"v_mul_f32 v{vB2+1}, s{sK}, v{vB2+1}")
    for rt in range(5):
        for b in range(2):
            for r in range(0, 4, 2):
                a(f"v_pk_mul_f32 {vr(vAcc+8*rt+4*b+r,2)}, {vr(vDg+4*rt+r,2)}, {vr(vB2,2)} op_sel:[0,{b}] op_sel_hi:[1,{b}]")
    a(f"s_mov_b32 s{sK}, {NLN2}", f"s_mov_b32 s{sK+1}, {NLN2}")
    a(f"s_mul_i32 s{st0}, s{stile}, {80*512}", f"s_lshl_b32 s{st1}, s{scg}, 6", f"s_add_u32 s{sSo}, s{st0}, s{st1}")

    def a_reads(s):
        for rt in range(5):
            off = (s >> 1) * 10240 + rt * 2048
            base = vAad + (s & 1)
            if off > 65535:
                base, off = vT0 + (s & 1), off - 40960
            a.lds(f"ds_read_b128 {vr(vA + 20*(s & 1) + 4*rt, 4)}, v{base} offset:{off}", f"a{s}_{rt}")
    a(f"v_add_u32 v{vT0}, 40960, v{vAad}", f"v_add_u32 v{vT1}, 40960, v{vAad+1}")
    for j in range(4):
        a.wait(vm=f"st{j}")
        a("s_barrier")
        a.stamp()
        a_reads(4 * j)
        for s in range(4 * j, 4 * j + 4):
            if s + 1 < 4 * j + 4:
                a_reads(s + 1)
            for rt in range(5):
                a.wait(lg=f"a{s}_{rt}")
                for b in range(2):
                    acc = vAcc + 8 * rt + 4 * b
                    a(f"v_mfma_f32_16x16x32_bf16 {vr(acc,4)}, {vr(vA + 20*(s & 1) + 4*rt, 4)}, {vr(vB + 4*(2*s+b), 4)}, {vr(acc,4)}")
    a.stamp()
    a("s_nop 1")
    for rt in range(5):
        acc = vAcc + 8 * rt
        if rt == 4:
            a("s_nop 0")
        for r in range(0, 8, 2):
            a(f"v_pk_mul_f32 {vr(acc+r,2)}, {vr(acc+r,2)}, {sr(sK,2)}")
        for r in range(4):
            a(f"v_cvt_pk_bf16_f32 v{acc+r}, v{acc+r}, v{acc+4+r}")
        a(f"s_add_u32 s{st0}, s{sSo}, {rt*16*512}")
        for r in range(4):
            a(f"buffer_store_dword v{acc+r}, v{vSt}, {sr(sO,4)}, s{st0} offen offset:{512*r}{wt()}")
    a.stamp_dump(sS, 20, sw, 4)
    a("K3_END:", "s_endpgm")
    return a.lines, descriptor("k3_kernel", nv + 1 if STAMPS else nv, 102 if STAMPS else 64)


def k4():
    a = Asm()
    header(a, "k4_kernel")
    a("s_endpgm")
    return a.lines, descriptor("k4_kernel", 8, 16)


def main(path):
    head = [
        "; Edge-featured MPNN layer: out = segment_sum(silu([x[src], x[dst], e] @ w1 + b1) @ w2 + b2, dst)",
        "; k1: P = x@w1[0:256], Q = x@w1[256:512] + b1 (scaled by -log2e), edge partition by dst range, w2 re-layout",
        "; k2: per 64-channel slice, S[n] = sum over in-edges of z/(1+2^z), z = P[src] + Q[n] + e*c",
        "; k3: out = -ln2 * (S @ w2) + deg * b2",
        "; kernarg: x, e_attr, src, dst, w1, b1, w2, b2, out, debug, ws (8 bytes each)",
        f"; @launch kernel=k1_kernel grid=(256,1,1) block=(256,1,1) lds={K1_LDS}",
        f"; @launch kernel=k2_kernel grid=(256,1,1) block=(1024,1,1) lds={K2_LDS}",
        f"; @launch kernel=k3_kernel grid=(256,1,1) block=(256,1,1) lds={K3_LDS}",
        '.amdgcn_target "amdgcn-amd-amdhsa--gfx950"',
        ".text",
    ]
    if OPT["empty"]:
        head.insert(8, "; @launch kernel=k4_kernel grid=(256,1,1) block=(64,1,1) lds=0")
    body, desc = [], []
    for f in (k1, k2, k3) + ((k4,) if OPT["empty"] else ()):
        b, d = f()
        body += b
        desc += d
    out = head + body + ['.section .rodata,"a"'] + desc
    open(path, "w").write("\n".join(out) + "\n")


if __name__ == "__main__":
    if "--stamps" in sys.argv:
        STAMPS = True
        sys.argv.remove("--stamps")
    for arg in [x for x in sys.argv[1:] if "=" in x]:
        key, val = arg.split("=")
        assert key in OPT, key
        OPT[key] = int(val)
        sys.argv.remove(arg)
    main(sys.argv[1] if len(sys.argv) > 1 else "standalone__edge_featured_mpnn_mpnn__graph.s")
```

```python
import struct
import sys

N, E, D, H = 10000, 160000, 256, 512
NR = 10080
SS = NR * 128
P_OFF, Q_OFF, S_OFF = 0, 8 * SS, 16 * SS
RNG = 313
NCHUNK, CHUNK, CAP = 250, 640, 48
CELL = CAP * 8
RBLK = NCHUNK * CELL
REC_OFF = 24 * SS
DEG_OFF = REC_OFF + 32 * RBLK
W2F_OFF = (DEG_OFF + NR * 4 + 1023) // 1024 * 1024
WS_END = W2F_OFF + 262144
MAXDEG = 48
ELLS = (MAXDEG + 1) * 4


def fbits(x):
    return struct.unpack("<I", struct.pack("<f", x))[0]


NLOG2E = fbits(-1.4426950408889634)
NLN2 = fbits(-0.6931471805599453)

assert all((d * 13401) >> 22 == d // RNG for d in range(10016))
assert all((q * 2731) >> 16 == q // 24 for q in range(768))
assert all((n * 205) >> 11 == n // 10 for n in range(80))


STAMPS = False
OPT = dict(sc1=1, prio=1, empty=0, ipf=1)
STAMP_OFF = 48 << 20


class Asm:
    def stamp_setup(self, vreg, kidx):
        self.st_v, self.st_n, self.st_k = vreg, 0, kidx
        if STAMPS:
            self(f"v_mov_b32 v{vreg}, 0", "s_memrealtime s[100:101]", "s_waitcnt lgkmcnt(0)", f"v_writelane_b32 v{vreg}, s100, 29")
            self.stamp()

    def stamp(self, idx=None):
        if STAMPS:
            if idx is None:
                idx = self.st_n
                self.st_n += 1
            self("s_waitcnt lgkmcnt(0)", "s_memtime s[100:101]", "s_waitcnt lgkmcnt(0)", f"v_writelane_b32 v{self.st_v}, s100, {idx}")
            self.lg = []

    def stamp_dump(self, srd, wsreg, swave, nwaves, tmp=2):
        if not STAMPS:
            return
        self("s_waitcnt vmcnt(0)")
        self.stamp(27)
        self("s_memrealtime s[100:101]", "s_waitcnt lgkmcnt(0)", f"v_writelane_b32 v{self.st_v}, s100, 28")
        self("s_getreg_b32 s3, hwreg(HW_REG_HW_ID)", f"v_writelane_b32 v{self.st_v}, s3, 30")
        self("s_getreg_b32 s3, hwreg(HW_REG_XCC_ID)", f"v_writelane_b32 v{self.st_v}, s3, 31")
        self.srd(srd, wsreg, STAMP_OFF + (self.st_k << 20), 1 << 20)
        self(f"s_mul_i32 s3, s2, {nwaves}", f"s_add_u32 s3, s3, s{swave}", "s_lshl_b32 s3, s3, 7", "s_mov_b64 exec, -1",
             f"v_and_b32 v{tmp}, 63, v0", f"v_lshlrev_b32 v{tmp}, 2, v{tmp}", "s_mov_b32 exec_hi, 0",
             f"buffer_store_dword v{self.st_v}, v{tmp}, s[{srd}:{srd+3}], s3 offen")

    def __init__(self):
        self.lines = []
        self.vm = []
        self.lg = []

    def __call__(self, *ls):
        for l in ls:
            self.lines.append(l if l.endswith(":") else "    " + l)

    def vmem(self, line, tag=None):
        self(line)
        self.vm.append(tag)

    def lds(self, line, tag=None):
        self(line)
        self.lg.append(tag)

    @staticmethod
    def _need(q, tags):
        last = -1
        for i, t in enumerate(q):
            if t in tags:
                last = i
        return None if last < 0 else len(q) - 1 - last

    def wait(self, vm=None, lg=None):
        parts = []
        if vm is not None:
            n = 0 if vm == "all" else self._need(self.vm, vm if isinstance(vm, (list, tuple, set)) else [vm])
            if n is not None:
                n = min(n, 63)
                parts.append(f"vmcnt({n})")
                self.vm = self.vm[len(self.vm) - n:] if n else []
        if lg is not None:
            n = 0 if lg == "all" else self._need(self.lg, lg if isinstance(lg, (list, tuple, set)) else [lg])
            if n is not None:
                n = min(n, 15)
                parts.append(f"lgkmcnt({n})")
                self.lg = self.lg[len(self.lg) - n:] if n else []
        if parts:
            self("s_waitcnt " + " ".join(parts))

    def srd(self, s, base, off, size, stride=0):
        if off == 0:
            self(f"s_mov_b32 s{s}, s{base}", f"s_and_b32 s{s+1}, s{base+1}, 0xffff")
        else:
            self(f"s_add_u32 s{s}, s{base}, {off}", f"s_addc_u32 s{s+1}, s{base+1}, 0",
                 f"s_and_b32 s{s+1}, s{s+1}, 0xffff")
        if stride:
            self(f"s_or_b32 s{s+1}, s{s+1}, {stride << 16}")
        self(f"s_mov_b32 s{s+2}, {size}", f"s_mov_b32 s{s+3}, 0x20000")


def wt():
    return " sc1" if OPT["sc1"] else ""


def code_prefetch(a, first, last, wshift, vtmp, vsink, tag):
    if not OPT["ipf"]:
        return
    a(f"s_getpc_b64 s[22:23]", f"{tag}_PC:", f"s_sub_u32 s22, s22, {tag}_PC-{first}", "s_subb_u32 s23, s23, 0",
      "s_lshr_b32 s3, s2, 3", f"s_lshl_b32 s3, s3, {wshift + 10}", f"v_lshlrev_b32 v{vtmp}, 4, v0", f"v_add_u32 v{vtmp}, s3, v{vtmp}",
      f"v_cmp_gt_u32 vcc, {last}-{first}-16, v{vtmp}", "s_and_saveexec_b64 s[4:5], vcc", f"s_cbranch_execz {tag}_PCX",
      f"global_load_dwordx4 {vr(vsink,4)}, v{vtmp}, s[22:23]", f"{tag}_PCX:", "s_mov_b64 exec, -1")


def vr(a, n=1):
    return f"v{a}" if n == 1 else f"v[{a}:{a+n-1}]"


def sr(a, n=1):
    return f"s{a}" if n == 1 else f"s[{a}:{a+n-1}]"


def header(a, name):
    a.lines += [f".globl {name}", ".p2align 8", f".type {name},@function", f"{name}:"]


def descriptor(name, nv, ns):
    acc = (nv + 3) // 4 * 4
    return [".p2align 6", f".amdhsa_kernel {name}", f"  .amdhsa_next_free_vgpr {nv}",
            f"  .amdhsa_next_free_sgpr {ns}", f"  .amdhsa_accum_offset {acc}",
            "  .amdhsa_group_segment_fixed_size 0", "  .amdhsa_kernarg_size 88",
            "  .amdhsa_user_sgpr_count 2", "  .amdhsa_user_sgpr_kernarg_segment_ptr 1",
            "  .amdhsa_system_sgpr_workgroup_id_x 1", "  .amdhsa_float_denorm_mode_32 3",
            ".end_amdhsa_kernel"]


K1_REG = 36864
K1_IMG = 4 * K1_REG
K1_CNT = K1_IMG + 32 * CELL
K1_LDS = K1_CNT + 128


def k1():
    a = Asm()
    header(a, "k1_kernel")
    sX, sW, sO, sDst, sSrc, sE, sRec, sB = 24, 28, 32, 36, 40, 44, 48, 52
    sw, stile, su, st0, st1, sWB, sXo, sOo, sK, sMask, sRB = 56, 57, 58, 59, 60, 61, 62, 63, 64, 66, 67
    vW = 0
    vLane, vT0, vT1, vT2 = 1, 2, 3, 4
    vAad = 6
    vTr = 14
    vXd = 16
    vWd, vSt = 20, 21
    vBias = 22
    vA = 24
    vAcc = 40
    vW = 104
    nv = vW + 128
    vDst, vSrc, vEe, vD, vSl, vCa, vRd, vCn, vRo = 40, 44, 48, 52, 60, 64, 68, 80, 84

    a("s_cmp_ge_u32 s2, 256", "s_cbranch_scc1 K1_END")
    a.stamp_setup(5, 0)
    code_prefetch(a, "k1_kernel", "K3_END" if OPT["ipf"] == 1 else "K1_END", 2, 2, vW, "K1")
    a("s_load_dwordx16 s[4:19], s[0:1], 0", "s_load_dwordx2 s[20:21], s[0:1], 80")
    a(f"v_lshrrev_b32 v{vT0}, 6, v0", f"v_and_b32 v{vLane}, 63, v0", f"v_readfirstlane_b32 s{sw}, v{vT0}")
    a(f"s_lshr_b32 s{st0}, s2, 3", f"s_and_b32 s{su}, s{st0}, 3", f"s_lshl_b32 s{su}, s{su}, 2",
      f"s_lshr_b32 s{st0}, s{st0}, 2", f"s_lshl_b32 s{st0}, s{st0}, 3", f"s_and_b32 s{stile}, s2, 7",
      f"s_add_u32 s{stile}, s{stile}, s{st0}", f"s_add_u32 s{su}, s{su}, s{sw}")
    a(f"s_mul_i32 s{sRB}, s{sw}, {K1_REG}", f"s_add_u32 s{sWB}, s{sRB}, 4096")
    a(f"s_mov_b32 s{sK}, {NLOG2E}", f"s_mov_b32 s{sK+1}, {NLOG2E}", f"s_mov_b32 s{sMask}, 0xffff0000")
    a(f"s_mul_i32 s{st0}, s2, {CHUNK // 4}", f"s_mul_i32 s{st1}, s{sw}, 40", f"s_add_u32 s{st0}, s{st0}, s{st1}",
      f"v_add_u32 v{vT0}, s{st0}, v{vLane}", f"v_lshlrev_b32 v{vT1}, 4, v{vT0}", f"v_lshlrev_b32 v{vT2}, 3, v{vT0}")
    a("s_waitcnt lgkmcnt(0)")
    a.srd(sDst, 10, 0, E * 4)
    a.srd(sSrc, 8, 0, E * 4)
    a.srd(sE, 6, 0, E * 2)
    a("s_mov_b32 exec_lo, -1", "s_mov_b32 exec_hi, 0xff")
    a.vmem(f"buffer_load_dwordx4 {vr(vDst,4)}, v{vT1}, {sr(sDst,4)}, 0 offen", "sort")
    a.vmem(f"buffer_load_dwordx4 {vr(vSrc,4)}, v{vT1}, {sr(sSrc,4)}, 0 offen", "sort")
    a.vmem(f"buffer_load_dwordx2 {vr(vEe,2)}, v{vT2}, {sr(sE,4)}, 0 offen", "sort")
    a("s_mov_b64 exec, -1")
    a.srd(sX, 4, 0, N * 512)
    a.srd(sW, 12, 0, 513 * 1024)
    a.srd(sO, 20, 0, 16 * SS)
    a.srd(sRec, 20, REC_OFF, 32 * RBLK)
    a(f"s_cmp_lt_u32 s2, {NCHUNK}", f"s_cselect_b32 s{sRec+2}, s{sRec+2}, 0")
    a.srd(sB, 14, 0, 1024)
    a(f"s_cmp_ge_u32 s{su}, 8", f"s_cselect_b32 s{sB+2}, s{sB+2}, 0")

    def lds_init():
        a(f"v_mov_b32 v{vRd}, 0", f"v_mov_b32 v{vRd+1}, 0", f"v_mov_b32 v{vRd+2}, 0", f"v_mov_b32 v{vRd+3}, 0",
          f"v_lshlrev_b32 v{vT0}, 4, v0", f"v_add_u32 v{vT0}, {K1_IMG}, v{vT0}")
        for i in range(3):
            a.lds(f"ds_write_b128 v{vT0}, {vr(vRd,4)} offset:{4096*i}")
        a(f"v_and_b32 v{vT1}, 31, v0", f"v_lshlrev_b32 v{vT1}, 2, v{vT1}", f"v_add_u32 v{vT1}, {K1_CNT}, v{vT1}")
        a.lds(f"ds_write_b32 v{vT1}, v{vRd}")
        a.wait(lg="all")
        a("s_barrier")

    def sort_scatter():
        a.wait(vm="sort")
        a("s_mov_b32 exec_lo, -1", "s_mov_b32 exec_hi, 0xff")
        a(f"s_mov_b32 s{st0}, 13401", f"s_mov_b32 s{st1}, {-RNG & 0xffffffff}", f"v_mov_b32 v{vT2}, 1")
        for i in range(4):
            a(f"v_mul_u32_u24 v{vCa+i}, s{st0}, v{vDst+i}", f"v_lshrrev_b32 v{vCa+i}, 22, v{vCa+i}",
              f"v_lshlrev_b32 v{vT0}, 2, v{vCa+i}", f"v_add_u32 v{vT0}, {K1_CNT}, v{vT0}")
            a.lds(f"ds_add_rtn_u32 v{vSl+i}, v{vT0}, v{vT2}", f"sl{i}")
        for i in range(4):
            a(f"v_mad_i32_i24 v{vD+2*i+1}, v{vCa+i}, s{st1}, v{vDst+i}",
              f"v_lshl_add_u32 v{vD+2*i+1}, v{vD+2*i+1}, 2, 4")
            if i & 1:
                a(f"v_and_or_b32 v{vD+2*i}, v{vEe+i//2}, s{sMask}, v{vSrc+i}")
            else:
                a(f"v_lshl_or_b32 v{vD+2*i}, v{vEe+i//2}, 16, v{vSrc+i}")
            a(f"v_mul_u32_u24 v{vCa+i}, {CELL}, v{vCa+i}", f"v_add_u32 v{vCa+i}, {K1_IMG}, v{vCa+i}")
        a(f"v_mov_b32 v{vT1}, 0x100000")
        for i in range(4):
            a.wait(lg=f"sl{i}")
            a(f"v_lshl_add_u32 v{vCa+i}, v{vSl+i}, 3, v{vCa+i}", f"v_cmp_gt_u32 vcc, {CAP}, v{vSl+i}", "s_nop 1",
              f"v_cndmask_b32 v{vCa+i}, v{vT1}, v{vCa+i}, vcc")
            a.lds(f"ds_write_b64 v{vCa+i}, {vr(vD+2*i,2)}")
        a("s_mov_b64 exec, -1")

    def sort_readout():
        a(f"s_mov_b32 s{st0}, {RBLK - CELL}", f"s_mul_i32 s{st1}, s2, {CELL}")
        a(f"v_lshlrev_b32 v{vT0}, 4, v0", f"v_add_u32 v{vT1}, {K1_IMG}, v{vT0}")
        for i in range(3):
            a.lds(f"ds_read_b128 {vr(vRd+4*i,4)}, v{vT1} offset:{4096*i}", f"rd{i}")
            a(f"v_add_u32 v{vT2}, {256*i}, v0", f"v_mul_u32_u24 v{vT2}, 2731, v{vT2}", f"v_lshrrev_b32 v{vT2}, 16, v{vT2}",
              f"v_mad_u32_u24 v{vRo+i}, v{vT2}, s{st0}, v{vT0}",
              f"v_lshlrev_b32 v{vT2}, 2, v{vT2}", f"v_add_u32 v{vT2}, {K1_CNT}, v{vT2}")
            a.lds(f"ds_read_b32 v{vCn+i}, v{vT2}", f"rd{i}")
        for i in range(3):
            a.wait(lg=f"rd{i}")
            a(f"v_cmp_ge_u32 vcc, {CAP}, v{vCn+i}", f"v_add_u32 v{vRo+i}, {4096*i}, v{vRo+i}", "s_nop 0",
              f"v_cndmask_b32 v{vRd+4*i+1}, -1, v{vRd+4*i+1}, vcc")
            a.vmem(f"buffer_store_dwordx4 {vr(vRd+4*i,4)}, v{vRo+i}, {sr(sRec,4)}, s{st1} offen{wt()}", "rec")

    a(f"s_cmp_eq_u32 s{stile}, 63", "s_cbranch_scc1 K1_PREP")
    saved_vm = list(a.vm)

    a(f"v_lshrrev_b32 v{vT0}, 5, v{vLane}", f"s_lshl_b32 s{st0}, s{sw}, 3", f"v_add_u32 v{vT0}, s{st0}, v{vT0}",
      f"v_and_b32 v{vT1}, 31, v{vLane}")
    for m in range(4):
        a(f"v_add_u32 v{vT2}, {2*m}, v{vT0}", f"v_and_b32 v{vXd+m}, 15, v{vT2}", f"v_xor_b32 v{vXd+m}, v{vXd+m}, v{vT1}",
          f"v_lshlrev_b32 v{vXd+m}, 4, v{vXd+m}", f"v_lshl_add_u32 v{vXd+m}, v{vT2}, 9, v{vXd+m}")
    a(f"s_mul_i32 s{sXo}, s{stile}, {160*512}")

    def x_dma(j):
        a(f"s_add_u32 s{st1}, s{sXo}, {j*32*512}")
        for m in range(4):
            a(f"s_add_u32 m0, s{sRB}, {j*4096 + m*1024}", "s_nop 0")
            a.vmem(f"buffer_load_dwordx4 v{vXd+m}, {sr(sX,4)}, s{st1} offen lds", f"x{j}")
    x_dma(0)
    a(f"v_lshrrev_b32 v{vT0}, 3, v{vLane}", f"v_and_b32 v{vT1}, 7, v{vLane}", f"v_and_b32 v{vT2}, 16, v{vLane}",
      f"v_lshrrev_b32 v{vT2}, 2, v{vT2}", f"v_xor_b32 v{vT1}, v{vT1}, v{vT2}", f"v_lshlrev_b32 v{vT1}, 4, v{vT1}",
      f"v_lshl_add_u32 v{vWd}, v{vT0}, 10, v{vT1}")
    a(f"s_lshr_b32 s{st0}, s{su}, 3", f"s_lshl_b32 s{st0}, s{st0}, 18", f"s_and_b32 s{st1}, s{su}, 7",
      f"s_lshl_b32 s{st1}, s{st1}, 7", f"s_add_u32 s{st0}, s{st0}, s{st1}")
    a(f"v_and_b32 v{vT0}, 31, v{vLane}", f"v_lshlrev_b32 v{vT0}, 1, v{vT0}")
    a.vmem(f"buffer_load_ushort v{vBias}, v{vT0}, {sr(sB,4)}, s{st1} offen", "bias")
    a.vmem(f"buffer_load_ushort v{vBias+1}, v{vT0}, {sr(sB,4)}, s{st1} offen offset:64", "bias")
    for n in range(32):
        a(f"s_add_u32 m0, s{sWB}, {n*1024}")
        if n:
            a(f"s_add_u32 s{st0}, s{st0}, 8192")
        else:
            a("s_nop 0")
        a.vmem(f"buffer_load_dwordx4 v{vWd}, {sr(sW,4)}, s{st0} offen lds", f"w{n//2}")
    a.stamp()
    lds_init()
    a(f"v_and_b32 v{vT0}, 31, v{vLane}", f"v_lshrrev_b32 v{vT1}, 3, v{vT0}", f"v_mul_u32_u24 v{vAad}, {K1_REG}, v{vT1}",
      f"v_and_b32 v{vT1}, 7, v{vT0}", f"v_lshl_add_u32 v{vAad}, v{vT1}, 9, v{vAad}",
      f"v_lshrrev_b32 v{vT1}, 5, v{vLane}", f"v_and_b32 v{vT2}, 15, v{vLane}", f"v_xor_b32 v{vT2}, v{vT2}, v{vT1}",
      f"v_lshl_add_u32 v{vAad}, v{vT2}, 4, v{vAad}")
    for s in range(1, 8):
        a(f"v_xor_b32 v{vAad+s}, {32*s}, v{vAad}")
    a(f"v_lshlrev_b32 v{vSt}, 9, v{vT1}", f"v_lshl_add_u32 v{vSt}, v{vT0}, 2, v{vSt}")
    a(f"v_lshlrev_b32 v{vTr}, 10, v{vT1}", f"v_bfe_u32 v{vT0}, v{vLane}, 2, 2", f"v_lshl_add_u32 v{vTr}, v{vT0}, 7, v{vTr}",
      f"v_bfe_u32 v{vT0}, v{vLane}, 3, 1", f"v_lshl_add_u32 v{vTr}, v{vT0}, 6, v{vTr}",
      f"v_bfe_u32 v{vT0}, v{vLane}, 4, 1", f"v_lshl_add_u32 v{vTr}, v{vT0}, 5, v{vTr}",
      f"v_and_b32 v{vT0}, 3, v{vLane}", f"v_lshl_add_u32 v{vTr}, v{vT0}, 3, v{vTr}",
      f"v_add_u32 v{vTr}, s{sWB}, v{vTr}", f"v_xor_b32 v{vTr+1}, 64, v{vTr}")
    a(f"s_mul_i32 s{sOo}, s{su}, {SS}", f"s_mul_i32 s{st0}, s{stile}, {160*128}", f"s_add_u32 s{sOo}, s{sOo}, s{st0}")
    a.wait(vm="sort")
    a.stamp()
    sort_scatter()
    a.wait(vm=["x0", "bias"], lg="all")
    a("s_barrier")
    a.stamp()
    a(f"v_lshlrev_b32 v{vBias}, 16, v{vBias}", f"v_lshlrev_b32 v{vBias+1}, 16, v{vBias+1}",
      f"v_mul_f32 v{vBias}, s{sK}, v{vBias}", f"v_mul_f32 v{vBias+1}, s{sK}, v{vBias+1}")
    sort_readout()

    def wfrag(s, b):
        return vW + (s * 2 + b) * 4

    def a_read(j, s):
        a.lds(f"ds_read_b128 {vr(vA + 4*((16*j+s) % 4), 4)}, v{vAad + (s & 7)} offset:{4096*j + 256*(s >> 3)}", f"a{j}_{s}")

    def w_read(s):
        a.wait(vm=f"w{s}")
        for b in range(2):
            for q in range(2):
                a.lds(f"ds_read_b64_tr_b16 {vr(wfrag(s, b) + 2*q, 2)}, v{vTr+b} offset:{s*2048 + q*512}", f"t{s}")

    def mfma(j, s, b):
        acc = vAcc + 32 * (j & 1) + 16 * b
        c = "0" if s == 0 else vr(acc, 16)
        a(f"v_mfma_f32_32x32x16_bf16 {vr(acc,16)}, {vr(vA + 4*((16*j+s) % 4), 4)}, {vr(wfrag(s, b), 4)}, {c}")

    def epilogue_ops(j):
        acc = vAcc + 32 * (j & 1)
        ops = [("s", f"s_add_u32 s{st1}, s{sOo}, {j*32*128}")]
        for r in range(0, 16, 2):
            ops.append(("v", f"v_pk_fma_f32 {vr(acc+r,2)}, {vr(acc+r,2)}, {sr(sK,2)}, {vr(vBias,2)} op_sel:[0,0,0] op_sel_hi:[1,1,0]"))
            ops.append(("v", f"v_pk_fma_f32 {vr(acc+16+r,2)}, {vr(acc+16+r,2)}, {sr(sK,2)}, {vr(vBias,2)} op_sel:[0,0,1] op_sel_hi:[1,1,1]"))
            for rr in (r, r + 1):
                ops.append(("v", f"v_cvt_pk_bf16_f32 v{acc+rr}, v{acc+rr}, v{acc+16+rr}"))
            for rr in (r, r + 1):
                ops.append(("m", f"buffer_store_dword v{acc+rr}, v{vSt}, {sr(sO,4)}, s{st1} offen offset:{(8*(rr>>2) + (rr&3))*128}{wt()}"))
        return ops

    def emit_op(op):
        if op[0] == "m":
            a.vmem(op[1], "st")
        else:
            a(op[1])

    a("s_nop 1")
    PF = 2
    for s in range(PF):
        w_read(s)
        a_read(0, s)
    for s in range(16):
        if s + PF < 16:
            w_read(s + PF)
            a_read(0, s + PF)
        a.wait(lg=[f"t{s}", f"a0_{s}"])
        mfma(0, s, 0)
        mfma(0, s, 1)
        if s == 7:
            for j in range(1, 5):
                x_dma(j)
    PFA = 3
    a.stamp()
    a.wait(vm="x1")
    a("s_barrier")
    a.stamp()
    for s in range(PFA):
        a_read(1, s)
    for j in range(1, 5):
        ops = epilogue_ops(j - 1)
        for s in range(16):
            if s + PFA == 16 and j < 4:
                a.wait(vm=f"x{j+1}")
                a("s_barrier")
            a.wait(lg=f"a{j}_{s}")
            mfma(j, s, 0)
            if s + PFA < 16:
                a_read(j, s + PFA)
            elif j < 4:
                a_read(j + 1, s + PFA - 16)
            if s >= 3:
                for _ in range(2):
                    if ops:
                        emit_op(ops.pop(0))
            mfma(j, s, 1)
            if s >= 3:
                for _ in range(2):
                    if ops:
                        emit_op(ops.pop(0))
        assert not ops
        a.stamp()
    a("s_nop 15")
    for op in epilogue_ops(4):
        emit_op(op)
    a.stamp_dump(sX, 20, sw, 4)
    a("s_endpgm")

    a("K1_PREP:")
    a.vm = saved_vm
    a.lg = []
    sW2, sF = sX, sW
    a.srd(sW2, 16, 0, 512 * 512)
    a.srd(sF, 20, W2F_OFF, 262144)
    vL = vW
    vOut = vW + 64
    a(f"v_and_b32 v{vT0}, 15, v{vLane}", f"v_lshrrev_b32 v{vT1}, 4, v{vLane}", f"v_lshlrev_b32 v{vT0}, 2, v{vT0}",
      f"v_lshl_add_u32 v{vWd}, v{vT1}, 11, v{vT0}", f"v_lshlrev_b32 v{vSt}, 4, v{vLane}")
    a(f"s_lshr_b32 s{st0}, s{su}, 1", f"s_lshl_b32 s{st0}, s{st0}, 6", f"s_and_b32 s{st1}, s{su}, 1",
      f"s_lshl_b32 s{st1}, s{st1}, 17", f"s_add_u32 s{sXo}, s{st0}, s{st1}", f"s_lshl_b32 s{sOo}, s{su}, 14")
    for half in range(2):
        for s in range(4 * half, 4 * half + 4):
            for i in range(8):
                row = (s >> 1) * 64 + 16 * (s & 1) + (i >> 1) + 32 * (i & 1)
                a(f"s_add_u32 s{st0}, s{sXo}, {row*512}")
                a.vmem(f"buffer_load_dword v{vL + 8*s + i}, v{vWd}, {sr(sW2,4)}, s{st0} offen", f"l{s}")
        if half == 0:
            lds_init()
            sort_scatter()
            a.wait(lg="all")
            a("s_barrier")
            sort_readout()
            a.wait(vm="l3")
    a(f"s_mov_b32 s{sK}, 0x05040100", f"s_mov_b32 s{sK+1}, 0x07060302")
    for s in range(8):
        a.wait(vm=f"l{s}")
        for b in range(2):
            o = vOut + 8 * s + 4 * b
            for m in range(4):
                a(f"v_perm_b32 v{o+m}, v{vL + 8*s + 2*m + 1}, v{vL + 8*s + 2*m}, s{sK+b}")
            a(f"s_add_u32 s{st0}, s{sOo}, {(2*s+b)*1024}")
            a.vmem(f"buffer_store_dwordx4 {vr(o,4)}, v{vSt}, {sr(sF,4)}, s{st0} offen{wt()}")
    a("K1_END:", "s_endpgm")
    return a.lines, descriptor("k1_kernel", nv, 102 if STAMPS else 72)


K2_CNT = 64
K2_HIST = K2_CNT + 1280
K2_MISC = K2_HIST + 256
K2_ORD = K2_MISC + 64
K2_Q = 3072
K2_ELL = K2_Q + 320 * 128
K2_LDS = K2_ELL + 320 * ELLS + 64
NGRP = 40


def k2():
    a = Asm()
    header(a, "k2_kernel")
    sRec, sP, sQ, sS, sW1, sDeg, sPf = 24, 28, 32, 36, 40, 44, 48
    sw, sk, srng, scnt, st0, st1, sg, sdmax, sdmin, sK, sBig, sOne = 52, 53, 54, 55, 56, 57, 58, 59, 60, 62, 64, 66
    sM = 68
    vLane, vT0, vT1, vT2, vT3 = 1, 2, 3, 4, 5
    vI4, vAh, vAl = 6, 8, 10
    vE, vEs = 12, 14
    vIdx = 16
    vSh, vEll, vEe, vDeg, vOut, vOrdL, vHoff = 24, 25, 26, 27, 28, 29, 30
    vQ = 32
    vNum, vDen, vT = 48, 56, 64
    vP = 72
    vZ = 88
    nv = vZ + 32
    vRec = 88
    vSl = 48
    vC = 32
    vPf = 60

    a("s_cmp_ge_u32 s2, 256", "s_cbranch_scc1 K2_END")
    a.stamp_setup(31, 1)
    code_prefetch(a, "k2_kernel", "K2_END", 4, 2, vPf, "K2")
    a("s_load_dwordx16 s[4:19], s[0:1], 0", "s_load_dwordx2 s[20:21], s[0:1], 80")
    a(f"v_lshrrev_b32 v{vT0}, 6, v0", f"v_and_b32 v{vLane}, 63, v0", f"v_readfirstlane_b32 s{sw}, v{vT0}")
    a(f"s_and_b32 s{sk}, s2, 7", f"s_lshr_b32 s{srng}, s2, 3")
    a(f"s_mul_i32 s{st0}, s{srng}, {RNG}", f"s_sub_u32 s{scnt}, {N}, s{st0}", f"s_min_u32 s{scnt}, s{scnt}, {RNG}")
    a(f"v_lshlrev_b32 v{vT0}, 4, v0")
    a(f"s_mul_i32 s{st1}, s{srng}, {RBLK}", f"s_add_u32 s{st1}, s{st1}, {REC_OFF}")
    a("s_waitcnt lgkmcnt(0)")
    a.srd(sRec, 20, f"s{st1}", RBLK)
    for i in range(6):
        a(f"s_mov_b32 s{st1}, {16384*i}")
        a.vmem(f"buffer_load_dwordx4 {vr(vRec+4*i,4)}, v{vT0}, {sr(sRec,4)}, s{st1} offen", f"r{i}")
    a.srd(sW1, 12, 512 * 1024, 1024)
    a(f"v_and_b32 v{vT1}, 1, v{vLane}", f"v_lshlrev_b32 v{vT1}, 6, v{vT1}",
      f"v_bfe_u32 v{vT2}, v{vLane}, 2, 1", f"v_lshl_add_u32 v{vT1}, v{vT2}, 5, v{vT1}",
      f"v_bfe_u32 v{vT2}, v{vLane}, 3, 1", f"v_lshl_add_u32 v{vT1}, v{vT2}, 2, v{vT1}",
      f"v_bfe_u32 v{vT2}, v{vLane}, 1, 1", f"v_lshl_add_u32 v{vT1}, v{vT2}, 1, v{vT1}",
      f"s_lshl_b32 s{st1}, s{sk}, 7")
    for i in range(4):
        a.vmem(f"buffer_load_ushort v{vC+i}, v{vT1}, {sr(sW1,4)}, s{st1} offen offset:{8*i}", "c")
    a(f"s_mul_i32 s{st1}, s{sk}, {SS}", f"s_lshl_b32 s{sg}, s{st0}, 7", f"s_add_u32 s{sg}, s{sg}, s{st1}",
      f"s_lshl_b32 s{sdmax}, s{scnt}, 7")
    a.srd(sP, 20, f"s{st1}", N, stride=128)
    a.srd(sPf, 20, f"s{sg}", f"s{sdmax}")
    a(f"s_add_u32 s{sg}, s{sg}, {Q_OFF}")
    a.srd(sQ, 20, f"s{sg}", f"s{sdmax}")
    a(f"s_add_u32 s{sg}, s{sg}, {S_OFF - Q_OFF}")
    a.srd(sS, 20, f"s{sg}", f"s{sdmax}")
    a(f"s_lshl_b32 s{sg}, s{st0}, 2", f"s_add_u32 s{sg}, s{sg}, {DEG_OFF}", f"s_lshl_b32 s{sdmax}, s{scnt}, 2",
      f"s_cmp_eq_u32 s{sk}, 0", f"s_cselect_b32 s{sdmax}, s{sdmax}, 0")
    a.srd(sDeg, 20, f"s{sg}", f"s{sdmax}")
    a(f"v_lshlrev_b32 v{vT1}, 4, v{vLane}", f"s_lshl_b32 s{st1}, s{sw}, 10")
    for i in range(2):
        a(f"s_add_u32 m0, s{st1}, {K2_Q}", "s_nop 0")
        a.vmem(f"buffer_load_dwordx4 v{vT1}, {sr(sQ,4)}, s{st1} offen lds", "q")
        a(f"s_add_u32 s{st1}, s{st1}, 16384")
    a(f"s_cmp_ge_u32 s{sw}, 8", "s_cbranch_scc1 K2_NOQ3")
    a(f"s_add_u32 m0, s{st1}, {K2_Q}", "s_nop 0")
    a(f"buffer_load_dwordx4 v{vT1}, {sr(sQ,4)}, s{st1} offen lds")
    a("K2_NOQ3:")
    a(f"v_mov_b32 v{vP}, 0xffff", f"v_mov_b32 v{vP+1}, 0xffff", f"v_mov_b32 v{vP+2}, 0xffff", f"v_mov_b32 v{vP+3}, 0xffff",
      f"v_mov_b32 v{vP+4}, 0", f"v_add_u32 v{vT1}, {K2_ELL}, v{vT0}")
    nell = (K2_LDS - K2_ELL) // 16
    for i in range(3):
        a.lds(f"ds_write_b128 v{vT1}, {vr(vP,4)} offset:{16384*i}")
    a(f"v_cmp_gt_u32 vcc, {nell - 3072}, v0", f"s_and_saveexec_b64 {sr(sM,2)}, vcc", "s_cbranch_execz K2_I1")
    a(f"ds_write_b128 v{vT1}, {vr(vP,4)} offset:{16384*3}")
    a("K2_I1:", "s_mov_b64 exec, -1")
    a(f"v_cmp_gt_u32 vcc, {(K2_ORD - K2_CNT)//4}, v0", f"v_lshlrev_b32 v{vT1}, 2, v0", f"v_add_u32 v{vT1}, {K2_CNT}, v{vT1}",
      f"s_and_saveexec_b64 {sr(sM,2)}, vcc", "s_cbranch_execz K2_I2")
    a(f"ds_write_b32 v{vT1}, v{vP+4}")
    a("K2_I2:", "s_mov_b64 exec, -1")
    a(f"v_and_b32 v{vT1}, 3, v{vLane}", f"v_lshlrev_b32 v{vSh}, 4, v{vT1}", f"v_lshrrev_b32 v{vT2}, 5, v{vLane}",
      f"v_lshl_add_u32 v{vIdx+1}, v{vT2}, 6, v{vSh}", f"v_mov_b32 v{vIdx+3}, v{vIdx+1}", f"v_mov_b32 v{vIdx+5}, v{vIdx+1}",
      f"v_mov_b32 v{vIdx+7}, v{vIdx+1}", f"v_lshl_add_u32 v{vHoff}, v{vT2}, 2, 2",
      f"v_and_b32 v{vOrdL}, 28, v{vLane}", f"v_add_u32 v{vOrdL}, {K2_ORD}, v{vOrdL}",
      f"v_mov_b32 v{vE}, 0x3f80", f"v_mov_b32 v{vE+1}, 0", f"v_lshlrev_b64 {vr(vI4,2)}, v{vSh}, {vr(vE,2)}")
    a(f"s_mov_b32 s{sK}, {NLOG2E}", f"s_mov_b32 s{sBig}, {fbits(2.0**120)}", f"s_mov_b32 s{sOne}, 1.0", f"s_mov_b32 s{sOne+1}, 1.0")
    a("s_waitcnt lgkmcnt(0)", "s_barrier")
    a.lg = []
    a.stamp()
    if STAMPS:
        a.wait(vm="r5")
        a.stamp()
    a(f"v_mov_b32 v{vT3}, 1", f"v_mov_b32 v{vT2}, 0")
    for i in range(6):
        a.wait(vm=f"r{i}")
        for u in range(2):
            n = 2 * i + u
            if n:
                a("s_mov_b64 exec, -1")
            a(f"v_cmp_lt_i32 {sr(sM+2*n,2)}, 0, v{vRec+2*n+1}")
            if u == 0:
                a(f"v_min3_i32 v{vT2}, v{vRec+2*n+1}, v{vRec+2*n+3}, v{vT2}")
            a(f"s_mov_b64 exec, {sr(sM+2*n,2)}")
            a.lds(f"ds_add_rtn_u32 v{vSl+n}, v{vRec+2*n+1}, v{vT3} offset:{K2_CNT-4}", f"s{n}")
    a("s_mov_b64 exec, -1")
    for i in range(3):
        a(f"s_mov_b32 s{st1}, {16384*i}")
        a.vmem(f"buffer_load_dwordx4 {vr(vPf,4)}, v{vT0}, {sr(sPf,4)}, s{st1} offen", "pf")
    a(f"v_cmp_gt_i32 vcc, 0, v{vT2}", f"v_mov_b32 v{vT1}, {K2_MISC}", f"s_and_saveexec_b64 {sr(sM+24,2)}, vcc", "s_cbranch_execz K2_NOOVF")
    a(f"ds_write_b32 v{vT1}, v{vT3} offset:4", "s_waitcnt lgkmcnt(0)")
    a("K2_NOOVF:", "s_mov_b64 exec, -1")
    a(f"s_mov_b32 s{st1}, {ELLS // 4}")
    for n in range(12):
        a.wait(lg=f"s{n}")
        a(f"s_mov_b64 exec, {sr(sM+2*n,2)}")
        a(f"v_min_u32 v{vSl+n}, {MAXDEG}, v{vSl+n}", f"v_lshlrev_b32 v{vSl+n}, 2, v{vSl+n}",
          f"v_mad_u32_u24 v{vSl+n}, v{vRec+2*n+1}, s{st1}, v{vSl+n}")
        a.lds(f"ds_write_b32 v{vSl+n}, v{vRec+2*n} offset:{K2_ELL - ELLS}")
    a("s_mov_b64 exec, -1")
    a.wait(vm="c")
    for i in range(4):
        a(f"v_lshlrev_b32 v{vC+i}, 16, v{vC+i}", f"v_mul_f32 v{vC+i}, s{sK}, v{vC+i}")
    a(f"v_cvt_pk_bf16_f32 v{vAh}, v{vC}, v{vC+1}", f"v_cvt_pk_bf16_f32 v{vAh+1}, v{vC+2}, v{vC+3}")
    for i in range(4):
        if i & 1:
            a(f"v_and_b32 v{vT1}, 0xffff0000, v{vAh+i//2}")
        else:
            a(f"v_lshlrev_b32 v{vT1}, 16, v{vAh+i//2}")
        a(f"v_sub_f32 v{vC+i}, v{vC+i}, v{vT1}")
    a(f"v_cvt_pk_bf16_f32 v{vAl}, v{vC}, v{vC+1}", f"v_cvt_pk_bf16_f32 v{vAl+1}, v{vC+2}, v{vC+3}")
    a(f"v_bfe_u32 v{vT1}, v{vLane}, 4, 1", f"v_lshrrev_b32 v{vT2}, 5, v{vLane}", f"v_cmp_eq_u32 vcc, v{vT1}, v{vT2}", "s_nop 1")
    for r in (vAh, vAh + 1, vAl, vAl + 1):
        a(f"v_cndmask_b32 v{r}, 0, v{r}, vcc")
    a.stamp()
    a("s_waitcnt lgkmcnt(0)", "s_barrier")
    a.lg = []
    a.stamp()
    a(f"s_cmp_ge_u32 s{sw}, 5", "s_cbranch_scc1 K2_DS1")
    a(f"v_lshlrev_b32 v{vT0}, 2, v0", f"ds_read_b32 v{vDeg}, v{vT0} offset:{K2_CNT}", "s_waitcnt lgkmcnt(0)")
    a(f"v_cvt_f32_u32 v{vT1}, v{vDeg}", f"v_cmp_lt_u32 vcc, {MAXDEG}, v{vDeg}", f"v_min_u32 v{vDeg}, {MAXDEG}, v{vDeg}")
    a(f"buffer_store_dword v{vT1}, v{vT0}, {sr(sDeg,4)}, 0 offen")
    a(f"v_sub_u32 v{vT2}, 63, v{vDeg}", f"v_lshlrev_b32 v{vT2}, 2, v{vT2}",
      f"ds_add_rtn_u32 v{vOut}, v{vT2}, v{vT3} offset:{K2_HIST}")
    a(f"v_mov_b32 v{vT1}, {K2_MISC}", f"s_and_saveexec_b64 {sr(sM,2)}, vcc", "s_cbranch_execz K2_NOOVF2")
    a(f"ds_write_b32 v{vT1}, v{vT3} offset:4")
    a("K2_NOOVF2:", "s_mov_b64 exec, -1", "s_waitcnt lgkmcnt(0)")
    a("K2_DS1:", "s_barrier")
    a(f"s_cmp_ge_u32 s{sw}, 5", "s_cbranch_scc1 K2_DS2")
    a(f"v_lshlrev_b32 v{vT0}, 2, v{vLane}", f"ds_read_b32 v{vT1}, v{vT0} offset:{K2_HIST}", "s_waitcnt lgkmcnt(0)",
      f"v_mov_b32 v{vEll}, v{vT1}", "s_nop 1")
    for ctrl in ("row_shr:1", "row_shr:2", "row_shr:4", "row_shr:8"):
        a(f"v_add_u32_dpp v{vEll}, v{vEll}, v{vEll} {ctrl} row_mask:0xf bank_mask:0xf bound_ctrl:1", "s_nop 1")
    a(f"v_add_u32_dpp v{vEll}, v{vEll}, v{vEll} row_bcast:15 row_mask:0xa bank_mask:0xf", "s_nop 1")
    a(f"v_add_u32_dpp v{vEll}, v{vEll}, v{vEll} row_bcast:31 row_mask:0xc bank_mask:0xf", "s_nop 1")
    a(f"v_sub_u32 v{vEll}, v{vEll}, v{vT1}", f"ds_bpermute_b32 v{vT1}, v{vT2}, v{vEll}",
      f"v_lshl_or_b32 v{vDeg}, v{vDeg}, 16, v0", "s_waitcnt lgkmcnt(0)",
      f"v_add_lshl_u32 v{vT1}, v{vT1}, v{vOut}, 2", f"ds_write_b32 v{vT1}, v{vDeg} offset:{K2_ORD}")
    a("K2_DS2:", "s_waitcnt vmcnt(0) lgkmcnt(0)", "s_barrier")
    a.vm = []
    a.stamp()
    if STAMPS:
        a("s_mov_b32 s99, 8")
    a(f"v_mov_b32 v{vT0}, {K2_MISC}", f"ds_read_b32 v{vT1}, v{vT0} offset:4", "s_waitcnt lgkmcnt(0)",
      f"v_readfirstlane_b32 s{st0}, v{vT1}", f"s_mov_b32 s{sg}, s{sw}", f"s_cmp_lg_u32 s{st0}, 0", "s_cbranch_scc1 K2_SLOW")

    def Z(i):
        return vZ + 16 * ((i >> 1) & 1) + 8 * (i & 1)

    def src_read(i):
        a(f"ds_read_u16 v{vIdx + 2*(i % 4)}, v{vEll} offset:{4*i}")

    def e_read(p):
        a(f"ds_read_u16 v{vE}, v{vEe} offset:{8*p}")

    def gather(i):
        a(f"buffer_load_dwordx4 {vr(vP + 4*(i % 4), 4)}, {vr(vIdx + 2*(i % 4), 2)}, {sr(sP,4)}, 0 idxen offen")

    def m4(i, hf):
        z = Z(i) + 4 * hf
        return f"v_mfma_f32_4x4x4_16b_bf16 {vr(z,4)}, {vr(vI4,2)}, {vr(vP + 4*(i % 4) + 2*hf, 2)}, {vr(z,4)}"

    shift = f"v_lshlrev_b64 {vr(vEs,2)}, v{vSh}, {vr(vE,2)}"

    def mhi(p):
        return f"v_mfma_f32_32x32x8_bf16 {vr(Z(2*p),16)}, {vr(vAh,2)}, {vr(vEs,2)}, {vr(vQ,16)}"

    def mlo(p):
        return f"v_mfma_f32_32x32x8_bf16 {vr(Z(2*p),16)}, {vr(vAl,2)}, {vr(vEs,2)}, {vr(Z(2*p),16)}"

    if OPT["prio"]:
        a("s_setprio 3", "s_branch K2_GROUP0")
    a("K2_GROUP:")
    if OPT["prio"]:
        a(f"s_cmp_lt_u32 s{sg}, 24", "s_cbranch_scc0 K2_PR1", "s_setprio 2", "s_branch K2_GROUP0",
          "K2_PR1:", f"s_cmp_lt_u32 s{sg}, 32", "s_cbranch_scc0 K2_PR0", "s_setprio 1", "s_branch K2_GROUP0",
          "K2_PR0:", "s_setprio 0")
    a("K2_GROUP0:")
    a(f"s_lshl_b32 s{st0}, s{sg}, 5", f"v_add_u32 v{vT0}, s{st0}, v{vOrdL}", f"ds_read_b32 v{vT1}, v{vT0}",
      f"s_mov_b32 s{st1}, {ELLS}", "s_waitcnt lgkmcnt(0)")
    a(f"v_and_b32 v{vT0}, 0xffff, v{vT1}", f"v_lshrrev_b32 v{vDeg}, 16, v{vT1}",
      f"v_mul_u32_u24 v{vEll}, s{st1}, v{vT0}", f"v_add_u32 v{vEll}, {K2_ELL}, v{vEll}")
    for i in range(4):
        src_read(i)
    a(f"v_lshl_add_u32 v{vOut}, v{vT0}, 7, v{vIdx+1}", f"v_add_u32 v{vEe}, v{vEll}, v{vHoff}")
    a(f"ds_read_b128 {vr(vT+4,4)}, v{vOut} offset:{K2_Q}")
    e_read(0)
    a(f"v_readlane_b32 s{sdmax}, v{vDeg}, 0", f"v_readlane_b32 s{sdmin}, v{vDeg}, 28")
    for i in range(4):
        a(f"s_waitcnt lgkmcnt({5-i})")
        gather(i)
    src_read(4)
    a("s_waitcnt lgkmcnt(1)")
    for q in range(4):
        a(f"v_mfma_f32_4x4x4_16b_bf16 {vr(vQ+4*q,4)}, {vr(vI4,2)}, {vr(vT+4+2*(q&1),2)}, 0")
    a(shift)
    e_read(1)
    a("s_nop 2")
    a(mhi(0), mlo(0))
    a("s_nop 9", "s_waitcnt vmcnt(3)")
    a(m4(0, 0), m4(0, 1))
    a("s_waitcnt lgkmcnt(1)")
    gather(4)
    src_read(5)
    a("s_waitcnt lgkmcnt(1)", "s_nop 0")
    if STAMPS:
        a("s_mov_b32 m0, s99", "s_add_u32 s99, s99, 1")
        a.stamp("m0")

    for i in range(MAXDEG):
        z = Z(i)
        p = i >> 1
        a(f"s_cmp_le_u32 s{sdmin}, {i}", f"s_cbranch_scc1 K2_OOL{i}", f"K2_S{i}:")
        ex = [f"v_exp_f32 v{vT+r}, v{z+r}" for r in range(8)]
        num_src = Z(0) if i == 1 else vNum
        if i == 0:
            upd_w = []
            upd = [f"v_pk_add_f32 {vr(vDen+r,2)}, {vr(vT+r,2)}, {sr(sOne,2)}" for r in range(0, 8, 2)]
        else:
            upd_w = [f"v_pk_fma_f32 {vr(z+r,2)}, {vr(z+r,2)}, {vr(vDen+r,2)}, {vr(num_src+r,2)}" for r in range(0, 8, 2)]
            upd = [f"v_pk_fma_f32 {vr(vNum+r,2)}, {vr(num_src+r,2)}, {vr(vT+r,2)}, {vr(z+r,2)}" for r in range(0, 8, 2)]
            upd += [f"v_pk_fma_f32 {vr(vDen+r,2)}, {vr(vDen+r,2)}, {vr(vT+r,2)}, {vr(vDen+r,2)}" for r in range(0, 8, 2)]
        nxt = i + 1 < MAXDEG
        if (i & 1) == 0 and 2 * (p + 1) < MAXDEG:
            a(shift)
            more_e = 2 * (p + 2) < MAXDEG
            if more_e:
                e_read(p + 2)
            a(*ex[0:2])
            a(mhi(p + 1))
            a(*ex[2:6])
            a(mlo(p + 1))
            a(*ex[6:8])
            a(*upd_w)
        else:
            more_e = False
            a(*ex)
            a(*upd_w)
        if nxt:
            pending = min(MAXDEG - 1, i + 4) - (i + 1)
            a(f"s_waitcnt vmcnt({pending})")
            a(m4(i + 1, 0))
            a(upd[0])
            a(m4(i + 1, 1))
            if i + 5 < MAXDEG:
                a(f"s_waitcnt lgkmcnt({1 if more_e else 0})")
                gather(i + 5)
            if i + 6 < MAXDEG:
                src_read(i + 6)
            elif i + 5 >= MAXDEG:
                a("s_waitcnt lgkmcnt(0)")
            a(*upd[1:])
            if i == 0:
                a("s_nop 1")
        else:
            a(*upd)
    a("K2_FIN:")
    a("s_mov_b64 exec, -1")
    a(f"v_pk_add_f32 {vr(vT0,2)}, {vr(vDen,2)}, {vr(vDen+2,2)}")
    for r in range(4):
        a(f"v_rcp_f32 v{vT+r}, v{vDen+r}")
    a(f"v_pk_add_f32 {vr(vT0,2)}, {vr(vT0,2)}, {vr(vDen+4,2)}")
    for r in range(4, 8):
        a(f"v_rcp_f32 v{vT+r}, v{vDen+r}")
    a(f"v_pk_add_f32 {vr(vT0,2)}, {vr(vT0,2)}, {vr(vDen+6,2)}")
    for r in range(0, 8, 2):
        a(f"v_pk_fma_f32 {vr(vT0,2)}, {vr(vNum+r,2)}, 0, {vr(vT0,2)} op_sel_hi:[1,0,1]")
        a(f"v_pk_mul_f32 {vr(vNum+r,2)}, {vr(vNum+r,2)}, {vr(vT+r,2)}")
    a(f"v_add_f32 v{vT0}, v{vT0}, v{vT1}", f"v_cmp_ngt_f32 vcc, s{sBig}, v{vT0}")
    a("s_cbranch_vccnz K2_SAFE")
    a("K2_STORE:")
    for r in range(4):
        a(f"v_cvt_pk_bf16_f32 v{vT+r}, v{vNum+2*r}, v{vNum+2*r+1}")
    a("s_mov_b64 exec, 1", f"v_mov_b32 v{vT0}, {K2_MISC}", f"v_mov_b32 v{vT1}, 1", f"ds_add_rtn_u32 v{vT1}, v{vT0}, v{vT1}",
      "s_mov_b64 exec, -1")
    a(f"buffer_store_dwordx4 {vr(vT,4)}, v{vOut}, {sr(sS,4)}, 0 offen{wt()}")
    if STAMPS:
        a("s_mov_b32 m0, s99", "s_add_u32 s99, s99, 1")
        a.stamp("m0")
        a("s_mov_b32 m0, s99", "s_add_u32 s99, s99, 1", f"v_writelane_b32 v31, s{sdmax}, m0")
    a("s_waitcnt lgkmcnt(0)", f"v_readfirstlane_b32 s{sg}, v{vT1}", f"s_add_u32 s{sg}, s{sg}, 16",
      f"s_cmp_lt_u32 s{sg}, {NGRP}", "s_cbranch_scc1 K2_GROUP")
    a.stamp_dump(sRec, 20, sw, 16)
    a("s_endpgm")

    for i in range(MAXDEG):
        a(f"K2_OOL{i}:")
        if i == 0:
            for r in range(8):
                a(f"v_mov_b32 v{vNum+r}, 0", f"v_mov_b32 v{vDen+r}, 1.0")
        if i == 1:
            for r in range(8):
                a(f"v_mov_b32 v{vNum+r}, v{Z(0)+r}")
        a(f"s_cmp_le_u32 s{sdmax}, {i}", "s_cbranch_scc1 K2_FIN")
        a(f"v_cmpx_lt_u32 vcc, {i}, v{vDeg}", "s_nop 3", f"s_branch K2_S{i}")

    a("K2_SAFE:")
    a("s_waitcnt vmcnt(0) lgkmcnt(0)", f"s_mov_b32 s{st0}, 0")
    for r in range(8):
        a(f"v_mov_b32 v{vNum+r}, 0")
    a("K2_SAFE_L:")
    a(f"s_cmp_ge_u32 s{st0}, s{sdmax}", "s_cbranch_scc1 K2_SAFE_E")
    a(f"v_cmpx_lt_u32 vcc, s{st0}, v{vDeg}")
    src_read(0)
    e_read(0)
    a("s_waitcnt lgkmcnt(0)")
    gather(0)
    a(shift, f"v_add_u32 v{vEll}, 4, v{vEll}", f"v_add_u32 v{vEe}, 4, v{vEe}", "s_nop 1")
    a(mhi(0), mlo(0), "s_nop 9", "s_waitcnt vmcnt(0)", m4(0, 0), m4(0, 1), "s_nop 4")
    for r in range(8):
        a(f"v_exp_f32 v{vT+r}, v{vZ+r}")
    for r in range(0, 8, 2):
        a(f"v_pk_add_f32 {vr(vT+r,2)}, {vr(vT+r,2)}, {sr(sOne,2)}")
    for r in range(8):
        a(f"v_rcp_f32 v{vT+r}, v{vT+r}")
    a("s_nop 0")
    for r in range(0, 8, 2):
        a(f"v_pk_fma_f32 {vr(vNum+r,2)}, {vr(vZ+r,2)}, {vr(vT+r,2)}, {vr(vNum+r,2)}")
    a(f"s_add_u32 s{st0}, s{st0}, 1", "s_branch K2_SAFE_L")
    a("K2_SAFE_E:", "s_mov_b64 exec, -1", "s_branch K2_STORE")

    sDst, sSrc, sE = sRec, sPf, sW1
    snode, sbase, sdeg, sbit, ssrc, se, sm = sM, sM + 1, sM + 2, sM + 3, sM + 4, sM + 5, sM + 6
    vc, vq, vacc, vd, vs, ve, voff, vz = 32, 33, 34, 36, 40, 44, 48, 49
    a("K2_SLOW:")
    a(f"v_and_b32 v{vT0}, 1, v{vLane}", f"v_lshlrev_b32 v{vT0}, 6, v{vT0}", f"v_and_b32 v{vT1}, 62, v{vLane}",
      f"v_add_u32 v{vT0}, v{vT0}, v{vT1}", f"s_lshl_b32 s{st1}, s{sk}, 7")
    a(f"buffer_load_ushort v{vc}, v{vT0}, {sr(sW1,4)}, s{st1} offen", "s_waitcnt vmcnt(0)",
      f"v_lshlrev_b32 v{vc}, 16, v{vc}", f"v_mul_f32 v{vc}, s{sK}, v{vc}")
    a.srd(sDst, 10, 0, E * 4)
    a.srd(sSrc, 8, 0, E * 4)
    a.srd(sE, 6, 0, E * 2)
    a(f"v_lshlrev_b32 v{vIdx+1}, 1, v{vLane}", f"v_lshlrev_b32 v{vT2}, 4, v{vLane}", f"v_lshlrev_b32 v{vT3}, 3, v{vLane}")
    a("K2_SLOW_N:")
    a(f"s_cmp_ge_u32 s{sg}, s{scnt}", "s_cbranch_scc1 K2_END")
    a(f"s_mul_i32 s{snode}, s{srng}, {RNG}", f"s_add_u32 s{snode}, s{snode}, s{sg}", f"s_lshl_b32 s{st0}, s{sg}, 7",
      f"v_add_u32 v{voff}, s{st0}, v{vIdx+1}", f"ds_read_u16 v{vq}, v{voff} offset:{K2_Q}",
      f"v_mov_b32 v{vacc}, 0", f"s_mov_b32 s{sbase}, 0", f"s_mov_b32 s{sdeg}, 0", "s_waitcnt lgkmcnt(0)",
      f"v_lshlrev_b32 v{vq}, 16, v{vq}")
    a("K2_SLOW_C:")
    a(f"s_lshl_b32 s{st0}, s{sbase}, 2", f"s_lshl_b32 s{st1}, s{sbase}, 1")
    a(f"buffer_load_dwordx4 {vr(vd,4)}, v{vT2}, {sr(sDst,4)}, s{st0} offen",
      f"buffer_load_dwordx4 {vr(vs,4)}, v{vT2}, {sr(sSrc,4)}, s{st0} offen",
      f"buffer_load_dwordx2 {vr(ve+2,2)}, v{vT3}, {sr(sE,4)}, s{st1} offen", "s_waitcnt vmcnt(0)")
    a(f"v_lshlrev_b32 v{ve}, 16, v{ve+2}", f"v_and_b32 v{ve+1}, 0xffff0000, v{ve+2}",
      f"v_lshlrev_b32 v{ve+2}, 16, v{ve+3}", f"v_and_b32 v{ve+3}, 0xffff0000, v{ve+3}")
    for u in range(4):
        a(f"v_cmp_eq_u32 {sr(sm,2)}, s{snode}, v{vd+u}")
        a(f"K2_SLOW_M{u}:", f"s_cmp_eq_u64 {sr(sm,2)}, 0", f"s_cbranch_scc1 K2_SLOW_X{u}")
        a(f"s_ff1_i32_b64 s{sbit}, {sr(sm,2)}", f"s_bitset0_b64 {sr(sm,2)}, s{sbit}", f"s_add_u32 s{sdeg}, s{sdeg}, 1",
          f"v_readlane_b32 s{ssrc}, v{vs+u}, s{sbit}", f"v_readlane_b32 s{se}, v{ve+u}, s{sbit}", "s_nop 1",
          f"v_mov_b32 v{vIdx}, s{ssrc}", f"buffer_load_ushort v{vz}, {vr(vIdx,2)}, {sr(sP,4)}, 0 idxen offen",
          f"v_fma_f32 v{vT0}, s{se}, v{vc}, v{vq}", "s_waitcnt vmcnt(0)",
          f"v_lshlrev_b32 v{vz}, 16, v{vz}", f"v_add_f32 v{vz}, v{vz}, v{vT0}", f"v_exp_f32 v{vT0}, v{vz}", "s_nop 0",
          f"v_add_f32 v{vT0}, 1.0, v{vT0}", f"v_rcp_f32 v{vT0}, v{vT0}", "s_nop 0",
          f"v_fma_f32 v{vacc}, v{vz}, v{vT0}, v{vacc}", f"s_branch K2_SLOW_M{u}")
        a(f"K2_SLOW_X{u}:")
    a(f"s_add_u32 s{sbase}, s{sbase}, 256", f"s_cmp_lt_u32 s{sbase}, {E}", "s_cbranch_scc1 K2_SLOW_C")
    a(f"v_cvt_pk_bf16_f32 v{vacc}, v{vacc}, v{vacc}", f"v_cvt_f32_u32 v{vT0}, s{sdeg}", f"s_lshl_b32 s{st0}, s{sg}, 2",
      f"v_mov_b32 v{vT1}, s{st0}")
    a(f"buffer_store_short v{vacc}, v{voff}, {sr(sS,4)}, 0 offen", f"buffer_store_dword v{vT0}, v{vT1}, {sr(sDeg,4)}, 0 offen")
    a(f"s_add_u32 s{sg}, s{sg}, 16", "s_waitcnt vmcnt(0)", "s_branch K2_SLOW_N")
    a("K2_END:", "s_endpgm")
    return a.lines, descriptor("k2_kernel", nv, 102 if STAMPS else 96)


K3_LDS = 81920


def k3():
    a = Asm()
    header(a, "k3_kernel")
    sS, sF, sDeg, sB, sO = 24, 28, 32, 36, 40
    sw, stile, scg, st0, st1, sK, sn, sSo = 44, 45, 46, 47, 48, 50, 52, 53
    vLane, vT0, vT1, vT2 = 1, 2, 3, 4
    vDm, vBo, vSt, vB2 = 5, 6, 7, 8
    vAad = 10
    vDg = 12
    vA = 32
    vAcc = 72
    vB = 112
    nv = vB + 128
    a("s_cmp_ge_u32 s2, 256", "s_cbranch_scc1 K3_END")
    a(f"s_lshr_b32 s{st0}, s2, 4", f"s_lshl_b32 s{st0}, s{st0}, 3", f"s_and_b32 s{stile}, s2, 7",
      f"s_add_u32 s{stile}, s{stile}, s{st0}", f"s_cmp_ge_u32 s{stile}, 125", "s_cbranch_scc1 K3_END")
    a.stamp_setup(nv, 2)
    code_prefetch(a, "k3_kernel", "K3_END", 2, 2, vA, "K3")
    a("s_load_dwordx4 s[4:7], s[0:1], 56", "s_load_dwordx2 s[20:21], s[0:1], 80")
    a(f"v_lshrrev_b32 v{vT0}, 6, v0", f"v_and_b32 v{vLane}, 63, v0", f"v_readfirstlane_b32 s{sw}, v{vT0}")
    a(f"s_bfe_u32 s{scg}, s2, 0x10003", f"s_lshl_b32 s{scg}, s{scg}, 2", f"s_add_u32 s{scg}, s{scg}, s{sw}")
    a(f"s_and_b32 s{st0}, s{sw}, 1", f"s_lshl_b32 s{st0}, s{st0}, 2", f"v_lshrrev_b32 v{vT0}, 4, v{vLane}",
      f"v_add_u32 v{vT1}, s{st0}, v{vT0}", f"v_and_b32 v{vT2}, 7, v{vLane}", f"v_xor_b32 v{vT1}, v{vT1}, v{vT2}",
      f"v_lshlrev_b32 v{vT1}, 4, v{vT1}", f"v_lshrrev_b32 v{vT2}, 3, v{vLane}", f"v_lshl_add_u32 v{vDm}, v{vT2}, 7, v{vT1}")
    a(f"v_lshlrev_b32 v{vBo}, 4, v{vLane}")
    a(f"v_and_b32 v{vT1}, 15, v{vLane}", f"v_lshlrev_b32 v{vT2}, 2, v{vT1}", f"v_lshl_add_u32 v{vSt}, v{vT0}, 11, v{vT2}")
    a(f"v_lshrrev_b32 v{vAad}, 1, v{vT1}", f"v_xor_b32 v{vAad}, v{vAad}, v{vT0}", f"v_lshlrev_b32 v{vAad}, 4, v{vAad}",
      f"v_lshl_add_u32 v{vAad}, v{vT1}, 7, v{vAad}", f"v_xor_b32 v{vAad+1}, 64, v{vAad}", f"v_lshlrev_b32 v{vT0}, 4, v{vT0}")
    a(f"s_mul_i32 s{sSo}, s{stile}, 10240")
    a("s_waitcnt lgkmcnt(0)")
    a.srd(sDeg, 20, DEG_OFF, N * 4)
    a.srd(sB, 4, 0, 512)
    a(f"s_mul_i32 s{st0}, s{stile}, 320", f"s_lshl_b32 s{st1}, s{scg}, 6")
    for rt in range(5):
        a.vmem(f"buffer_load_dwordx4 {vr(vDg+4*rt,4)}, v{vT0}, {sr(sDeg,4)}, s{st0} offen offset:{64*rt}", "deg")
    a.vmem(f"buffer_load_dword v{vB2}, v{vT2}, {sr(sB,4)}, s{st1} offen", "deg")
    a.srd(sS, 20, S_OFF, 8 * SS)
    a.srd(sF, 20, W2F_OFF, 262144)
    a.srd(sO, 6, 0, N * 512)
    a(f"s_mov_b32 s{sn}, s{sw}", f"s_lshl_b32 s{sK}, s{scg}, 15")
    for j in range(4):
        for m in range(5):
            a(f"s_mul_i32 s{st0}, s{sn}, 205", f"s_lshr_b32 s{st0}, s{st0}, 11", f"s_mul_i32 s{st0}, s{st0}, {SS - 10240}",
              f"s_lshl_b32 s{st1}, s{sn}, 10", f"s_mov_b32 m0, s{st1}", f"s_add_u32 s{st0}, s{st0}, s{st1}",
              f"s_add_u32 s{st0}, s{st0}, s{sSo}", f"s_add_u32 s{sn}, s{sn}, 4")
            a.vmem(f"buffer_load_dwordx4 v{vDm}, {sr(sS,4)}, s{st0} offen lds", f"st{j}")
        for f in range(8):
            n = 8 * j + f
            if n % 4 == 0 and n:
                a(f"s_add_u32 s{sK}, s{sK}, 4096")
            a.vmem(f"buffer_load_dwordx4 {vr(vB+4*n,4)}, v{vBo}, {sr(sF,4)}, s{sK} offen offset:{1024*(n % 4)}", f"st{j}")
    a.stamp()
    a.wait(vm="deg")
    a.stamp()
    a(f"s_mov_b32 s{sK}, {NLOG2E}")
    a(f"v_and_b32 v{vB2+1}, 0xffff0000, v{vB2}", f"v_lshlrev_b32 v{vB2}, 16, v{vB2}",
      f"v_mul_f32 v{vB2}, s{sK}, v{vB2}", f"v_mul_f32 v{vB2+1}, s{sK}, v{vB2+1}")
    for rt in range(5):
        for b in range(2):
            for r in range(0, 4, 2):
                a(f"v_pk_mul_f32 {vr(vAcc+8*rt+4*b+r,2)}, {vr(vDg+4*rt+r,2)}, {vr(vB2,2)} op_sel:[0,{b}] op_sel_hi:[1,{b}]")
    a(f"s_mov_b32 s{sK}, {NLN2}", f"s_mov_b32 s{sK+1}, {NLN2}")
    a(f"s_mul_i32 s{st0}, s{stile}, {80*512}", f"s_lshl_b32 s{st1}, s{scg}, 6", f"s_add_u32 s{sSo}, s{st0}, s{st1}")

    def a_reads(s):
        for rt in range(5):
            off = (s >> 1) * 10240 + rt * 2048
            base = vAad + (s & 1)
            if off > 65535:
                base, off = vT0 + (s & 1), off - 40960
            a.lds(f"ds_read_b128 {vr(vA + 20*(s & 1) + 4*rt, 4)}, v{base} offset:{off}", f"a{s}_{rt}")
    a(f"v_add_u32 v{vT0}, 40960, v{vAad}", f"v_add_u32 v{vT1}, 40960, v{vAad+1}")
    for j in range(4):
        a.wait(vm=f"st{j}")
        a("s_barrier")
        a.stamp()
        a_reads(4 * j)
        for s in range(4 * j, 4 * j + 4):
            if s + 1 < 4 * j + 4:
                a_reads(s + 1)
            for rt in range(5):
                a.wait(lg=f"a{s}_{rt}")
                for b in range(2):
                    acc = vAcc + 8 * rt + 4 * b
                    a(f"v_mfma_f32_16x16x32_bf16 {vr(acc,4)}, {vr(vA + 20*(s & 1) + 4*rt, 4)}, {vr(vB + 4*(2*s+b), 4)}, {vr(acc,4)}")
    a.stamp()
    a("s_nop 1")
    for rt in range(5):
        acc = vAcc + 8 * rt
        if rt == 4:
            a("s_nop 0")
        for r in range(0, 8, 2):
            a(f"v_pk_mul_f32 {vr(acc+r,2)}, {vr(acc+r,2)}, {sr(sK,2)}")
        for r in range(4):
            a(f"v_cvt_pk_bf16_f32 v{acc+r}, v{acc+r}, v{acc+4+r}")
        a(f"s_add_u32 s{st0}, s{sSo}, {rt*16*512}")
        for r in range(4):
            a(f"buffer_store_dword v{acc+r}, v{vSt}, {sr(sO,4)}, s{st0} offen offset:{512*r}{wt()}")
    a.stamp_dump(sS, 20, sw, 4)
    a("K3_END:", "s_endpgm")
    return a.lines, descriptor("k3_kernel", nv + 1 if STAMPS else nv, 102 if STAMPS else 64)


def k4():
    a = Asm()
    header(a, "k4_kernel")
    a("s_endpgm")
    return a.lines, descriptor("k4_kernel", 8, 16)


def main(path):
    head = [
        "; Edge-featured MPNN layer: out = segment_sum(silu([x[src], x[dst], e] @ w1 + b1) @ w2 + b2, dst)",
        "; k1: P = x@w1[0:256], Q = x@w1[256:512] + b1 (scaled by -log2e), edge partition by dst range, w2 re-layout",
        "; k2: per 64-channel slice, S[n] = sum over in-edges of z/(1+2^z), z = P[src] + Q[n] + e*c",
        "; k3: out = -ln2 * (S @ w2) + deg * b2",
        "; kernarg: x, e_attr, src, dst, w1, b1, w2, b2, out, debug, ws (8 bytes each)",
        f"; @launch kernel=k1_kernel grid=(256,1,1) block=(256,1,1) lds={K1_LDS}",
        f"; @launch kernel=k2_kernel grid=(256,1,1) block=(1024,1,1) lds={K2_LDS}",
        f"; @launch kernel=k3_kernel grid=(256,1,1) block=(256,1,1) lds={K3_LDS}",
        '.amdgcn_target "amdgcn-amd-amdhsa--gfx950"',
        ".text",
    ]
    if OPT["empty"]:
        head.insert(8, "; @launch kernel=k4_kernel grid=(256,1,1) block=(64,1,1) lds=0")
    body, desc = [], []
    for f in (k1, k2, k3) + ((k4,) if OPT["empty"] else ()):
        b, d = f()
        body += b
        desc += d
    out = head + body + ['.section .rodata,"a"'] + desc
    open(path, "w").write("\n".join(out) + "\n")


if __name__ == "__main__":
    if "--stamps" in sys.argv:
        STAMPS = True
        sys.argv.remove("--stamps")
    for arg in [x for x in sys.argv[1:] if "=" in x]:
        key, val = arg.split("=")
        assert key in OPT, key
        OPT[key] = int(val)
        sys.argv.remove(arg)
    main(sys.argv[1] if len(sys.argv) > 1 else "standalone__edge_featured_mpnn_mpnn__graph.s")
```

```python
import struct
import sys

N, E, D, H = 10000, 160000, 256, 512
TILE1, NT1 = 192, 53
NR = TILE1 * NT1
SS = NR * 128
P_OFF, Q_OFF, S_OFF = 0, 8 * SS, 16 * SS
RNG = 313
NCHUNK, CHUNK, CAP = 32, 5000, 224
R4BLK, R2BLK = NCHUNK * CAP * 4, NCHUNK * CAP * 2
R4_OFF = 24 * SS
R2_OFF = R4_OFF + 32 * R4BLK
DEG_OFF = R2_OFF + 32 * R2BLK
W2F_OFF = (DEG_OFF + NR * 4 + 1023) // 1024 * 1024
WS_END = W2F_OFF + 262144
MAXDEG = 48
ELLS = (MAXDEG + 1) * 4


def fbits(x):
    return struct.unpack("<I", struct.pack("<f", x))[0]


NLOG2E = fbits(-1.4426950408889634)
NLN2 = fbits(-0.6931471805599453)

assert all((d * 13401) >> 22 == d // RNG for d in range(10016))
assert all((q * 2341) >> 17 == q // 56 for q in range(1792))
assert all((q * 2341) >> 16 == q // 28 for q in range(1024))
assert all((n * 205) >> 11 == n // 10 for n in range(80))


STAMPS = False
OPT = dict(sc1=1, sc3=1, prio=1, empty=0, ipf=1, rot=1, pf=1, light=0, fine=0, la=6, pf0=2, x0pos=0, xrot=1, x1early=0, xspread=1, helper=0, ntx=0, ntw=0, nte=0, nolo=1, usem4=1, pfq=0, pfw=1)
STAMP_OFF = 48 << 20


class Asm:
    def stamp_setup(self, vreg, kidx):
        self.st_v, self.st_n, self.st_k = vreg, 0, kidx
        if STAMPS:
            self(f"v_mov_b32 v{vreg}, 0", "s_memrealtime s[100:101]", "s_waitcnt lgkmcnt(0)", f"v_writelane_b32 v{vreg}, s100, 29")
            self.stamp()

    def stamp(self, idx=None):
        if STAMPS and not (OPT["light"] and idx != 27 and self.st_n > 0):
            if idx is None:
                idx = self.st_n
                self.st_n += 1
            self("s_waitcnt lgkmcnt(0)", "s_memtime s[100:101]", "s_waitcnt lgkmcnt(0)", f"v_writelane_b32 v{self.st_v}, s100, {idx}")
            self.lg = []

    def stamp_dump(self, srd, wsreg, swave, nwaves, tmp=2):
        if not STAMPS:
            return
        self("s_waitcnt vmcnt(0)")
        self.stamp(27)
        self("s_memrealtime s[100:101]", "s_waitcnt lgkmcnt(0)", f"v_writelane_b32 v{self.st_v}, s100, 28")
        self("s_getreg_b32 s3, hwreg(HW_REG_HW_ID)", f"v_writelane_b32 v{self.st_v}, s3, 30")
        self("s_getreg_b32 s3, hwreg(HW_REG_XCC_ID)", f"v_writelane_b32 v{self.st_v}, s3, 31")
        self.srd(srd, wsreg, STAMP_OFF + (self.st_k << 20), 1 << 20)
        self(f"s_mul_i32 s3, s2, {nwaves}", f"s_add_u32 s3, s3, s{swave}", "s_lshl_b32 s3, s3, 7", "s_mov_b64 exec, -1",
             f"v_and_b32 v{tmp}, 63, v0", f"v_lshlrev_b32 v{tmp}, 2, v{tmp}", "s_mov_b32 exec_hi, 0",
             f"buffer_store_dword v{self.st_v}, v{tmp}, s[{srd}:{srd+3}], s3 offen")

    def __init__(self):
        self.lines = []
        self.vm = []
        self.lg = []

    def __call__(self, *ls):
        for l in ls:
            self.lines.append(l if l.endswith(":") else "    " + l)

    def vmem(self, line, tag=None):
        self(line)
        self.vm.append(tag)

    def lds(self, line, tag=None):
        self(line)
        self.lg.append(tag)

    @staticmethod
    def _need(q, tags):
        last = -1
        for i, t in enumerate(q):
            if t in tags:
                last = i
        return None if last < 0 else len(q) - 1 - last

    def wait(self, vm=None, lg=None):
        parts = []
        if vm is not None:
            n = 0 if vm == "all" else self._need(self.vm, vm if isinstance(vm, (list, tuple, set)) else [vm])
            if n is not None:
                n = min(n, 63)
                parts.append(f"vmcnt({n})")
                self.vm = self.vm[len(self.vm) - n:] if n else []
        if lg is not None:
            n = 0 if lg == "all" else self._need(self.lg, lg if isinstance(lg, (list, tuple, set)) else [lg])
            if n is not None:
                n = min(n, 15)
                parts.append(f"lgkmcnt({n})")
                self.lg = self.lg[len(self.lg) - n:] if n else []
        if parts:
            self("s_waitcnt " + " ".join(parts))

    def srd(self, s, base, off, size, stride=0):
        if off == 0:
            self(f"s_mov_b32 s{s}, s{base}", f"s_and_b32 s{s+1}, s{base+1}, 0xffff")
        else:
            self(f"s_add_u32 s{s}, s{base}, {off}", f"s_addc_u32 s{s+1}, s{base+1}, 0",
                 f"s_and_b32 s{s+1}, s{s+1}, 0xffff")
        if stride:
            self(f"s_or_b32 s{s+1}, s{s+1}, {stride << 16}")
        self(f"s_mov_b32 s{s+2}, {size}", f"s_mov_b32 s{s+3}, 0x20000")


def wt():
    return " sc1" if OPT["sc1"] else ""


def code_prefetch(a, first, last, wshift, vtmp, vsink, tag):
    if not OPT["ipf"]:
        return
    a(f"s_getpc_b64 s[22:23]", f"{tag}_PC:", f"s_sub_u32 s22, s22, {tag}_PC-{first}", "s_subb_u32 s23, s23, 0",
      "s_lshr_b32 s3, s2, 3", f"s_lshl_b32 s3, s3, {wshift + 10}", f"v_lshlrev_b32 v{vtmp}, 4, v0", f"v_add_u32 v{vtmp}, s3, v{vtmp}",
      f"v_cmp_gt_u32 vcc, {last}-{first}-16, v{vtmp}", "s_and_saveexec_b64 s[4:5], vcc", f"s_cbranch_execz {tag}_PCX",
      f"global_load_dwordx4 {vr(vsink,4)}, v{vtmp}, s[22:23]", f"{tag}_PCX:", "s_mov_b64 exec, -1")


def vr(a, n=1):
    return f"v{a}" if n == 1 else f"v[{a}:{a+n-1}]"


def sr(a, n=1):
    return f"s{a}" if n == 1 else f"s[{a}:{a+n-1}]"


def header(a, name):
    a.lines += [f".globl {name}", ".p2align 8", f".type {name},@function", f"{name}:"]


def descriptor(name, nv, ns):
    acc = (nv + 3) // 4 * 4
    return [".p2align 6", f".amdhsa_kernel {name}", f"  .amdhsa_next_free_vgpr {nv}",
            f"  .amdhsa_next_free_sgpr {ns}", f"  .amdhsa_accum_offset {acc}",
            "  .amdhsa_group_segment_fixed_size 0", "  .amdhsa_kernarg_size 88",
            "  .amdhsa_user_sgpr_count 2", "  .amdhsa_user_sgpr_kernarg_segment_ptr 1",
            "  .amdhsa_system_sgpr_workgroup_id_x 1", "  .amdhsa_float_denorm_mode_32 3",
            ".end_amdhsa_kernel"]


K1_REG = 40960
K1_LDS = 4 * K1_REG
K1_CNT = 0
K1_I16 = 256
K1_I32 = K1_I16 + 32 * CAP * 2


def k1():
    a = Asm()
    header(a, "k1_kernel")
    sX, sW, sO, sB = 24, 28, 32, 36
    sw, stile, su, st0, st1, sWB, sXo, sOo, sK, sMask, sRB, sq, sWo, sWn, sWc = 56, 57, 58, 59, 60, 61, 62, 63, 64, 66, 67, 68, 69, 70, 71
    vLane, vT0, vT1, vT2 = 1, 2, 3, 4
    vAad = 6
    vTr = 14
    vXd = 16
    vWd, vSt = 20, 21
    vBias = 22
    vA = 24
    vAcc = 40
    vW = 104
    vWx = vW + 128
    nv = vWx + 3

    a("s_cmp_ge_u32 s2, 256", "s_cbranch_scc1 K1_END")
    a.stamp_setup(5, 0)
    code_prefetch(a, "k1_kernel", "K3_END" if OPT["ipf"] == 1 else "K1_END", 2, 2, vW + 124, "K1")
    a("s_load_dwordx16 s[4:19], s[0:1], 0", "s_load_dwordx2 s[20:21], s[0:1], 80")
    a(f"v_lshrrev_b32 v{vT0}, 6, v0", f"v_and_b32 v{vLane}, 63, v0", f"v_readfirstlane_b32 s{sw}, v{vT0}")
    if OPT["helper"]:
        a(f"s_cmp_eq_u32 s{sw}, 4", "s_cbranch_scc1 K1_HELP")
    a(f"s_lshr_b32 s{sq}, s2, 3", f"s_cmp_ge_u32 s{sq}, 28", "s_cbranch_scc1 K1_SORT")
    a(f"s_and_b32 s{su}, s{sq}, 3", f"s_lshl_b32 s{su}, s{su}, 2", f"s_lshr_b32 s{sq}, s{sq}, 2",
      f"s_lshl_b32 s{st0}, s{sq}, 3", f"s_and_b32 s{stile}, s2, 7", f"s_add_u32 s{stile}, s{stile}, s{st0}",
      f"s_add_u32 s{su}, s{su}, s{sw}", f"s_cmp_ge_u32 s{stile}, {NT1}", "s_cbranch_scc1 K1_PREP")

    a(f"s_mul_i32 s{sRB}, s{sw}, {K1_REG}", f"s_add_u32 s{sWB}, s{sRB}, 8192")
    a(f"s_mov_b32 s{sK}, {NLOG2E}", f"s_mov_b32 s{sK+1}, {NLOG2E}")
    a(f"s_lshl_b32 s{sq}, s{sq}, 2" if OPT["rot"] else f"s_mov_b32 s{sq}, 0")
    a(f"v_lshrrev_b32 v{vT0}, 5, v{vLane}", f"s_lshl_b32 s{st0}, s{sw}, 3", f"v_add_u32 v{vT0}, s{st0}, v{vT0}",
      f"v_and_b32 v{vT1}, 31, v{vLane}")
    for m in range(4):
        a(f"v_add_u32 v{vT2}, {2*m}, v{vT0}", f"v_and_b32 v{vXd+m}, 15, v{vT2}", f"v_xor_b32 v{vXd+m}, v{vXd+m}, v{vT1}",
          f"v_add_u32 v{vXd+m}, s{sq}, v{vXd+m}", f"v_and_b32 v{vXd+m}, 31, v{vXd+m}",
          f"v_lshlrev_b32 v{vXd+m}, 4, v{vXd+m}", f"v_lshl_add_u32 v{vXd+m}, v{vT0}, 9, v{vXd+m}")
    a(f"s_mul_i32 s{sXo}, s{stile}, {TILE1*512}")
    sJ = 40
    a(f"s_lshr_b32 s{sJ}, s{su}, 2" if OPT["xrot"] else f"s_mov_b32 s{sJ}, 0")
    for j in range(1, TILE1 // 32):
        a(f"s_add_u32 s{sJ+j}, s{sJ+j-1}, 1", f"s_cmp_eq_u32 s{sJ+j}, {TILE1 // 32}", f"s_cselect_b32 s{sJ+j}, 0, s{sJ+j}")
    a(f"v_lshrrev_b32 v{vT0}, 3, v{vLane}", f"v_and_b32 v{vT1}, 7, v{vLane}", f"v_and_b32 v{vT2}, 16, v{vLane}",
      f"v_lshrrev_b32 v{vT2}, 2, v{vT2}", f"v_xor_b32 v{vT1}, v{vT1}, v{vT2}", f"v_lshlrev_b32 v{vT1}, 4, v{vT1}",
      f"v_lshl_add_u32 v{vWd}, v{vT0}, 10, v{vT1}")
    for i in range(1, 4):
        a(f"v_add_u32 v{vWx+i-1}, {7168*i}, v{vWd}")
    a(f"s_lshr_b32 s{st0}, s{su}, 3", f"s_lshl_b32 s{st0}, s{st0}, 18", f"s_and_b32 s{sMask}, s{su}, 7",
      f"s_lshl_b32 s{sMask}, s{sMask}, 7", f"s_add_u32 s{sWo}, s{st0}, s{sMask}", f"s_lshl_b32 s{sWn}, s{sq}, 13")
    a(f"v_and_b32 v{vT0}, 31, v{vLane}", f"v_lshrrev_b32 v{vT1}, 3, v{vT0}", f"v_mul_u32_u24 v{vAad}, {K1_REG}, v{vT1}",
      f"v_and_b32 v{vT1}, 7, v{vT0}", f"v_lshl_add_u32 v{vAad}, v{vT1}, 9, v{vAad}",
      f"v_lshrrev_b32 v{vT1}, 5, v{vLane}", f"v_and_b32 v{vT2}, 15, v{vLane}", f"v_xor_b32 v{vT2}, v{vT2}, v{vT1}",
      f"v_lshl_add_u32 v{vAad}, v{vT2}, 4, v{vAad}")
    for s in range(1, 8):
        a(f"v_xor_b32 v{vAad+s}, {32*s}, v{vAad}")
    a(f"v_lshlrev_b32 v{vSt}, 9, v{vT1}", f"v_lshl_add_u32 v{vSt}, v{vT0}, 2, v{vSt}")
    a(f"v_lshlrev_b32 v{vTr}, 10, v{vT1}", f"v_bfe_u32 v{vT2}, v{vLane}, 2, 2", f"v_lshl_add_u32 v{vTr}, v{vT2}, 7, v{vTr}",
      f"v_bfe_u32 v{vT2}, v{vLane}, 3, 1", f"v_lshl_add_u32 v{vTr}, v{vT2}, 6, v{vTr}",
      f"v_bfe_u32 v{vT2}, v{vLane}, 4, 1", f"v_lshl_add_u32 v{vTr}, v{vT2}, 5, v{vTr}",
      f"v_and_b32 v{vT2}, 3, v{vLane}", f"v_lshl_add_u32 v{vTr}, v{vT2}, 3, v{vTr}",
      f"v_add_u32 v{vTr}, s{sWB}, v{vTr}", f"v_xor_b32 v{vTr+1}, 64, v{vTr}", f"v_lshlrev_b32 v{vT0}, 1, v{vT0}")
    a(f"s_mul_i32 s{sOo}, s{su}, {SS}", f"s_mul_i32 s{st0}, s{stile}, {TILE1*128}", f"s_add_u32 s{sOo}, s{sOo}, s{st0}")
    a("s_waitcnt lgkmcnt(0)")
    a.srd(sX, 4, 0, N * 512)
    a.srd(sW, 12, 0, 513 * 1024)

    def x_dma(j):
        a(f"s_add_u32 m0, s{sRB}, {j*4096}", f"s_lshl_b32 s{st0}, s{sJ+j}, 14", f"s_add_u32 s{st0}, s{st0}, s{sXo}")
        for m in range(4):
            a.vmem(f"buffer_load_dwordx4 v{vXd+m}, {sr(sX,4)}, s{st0} offen offset:{1024*m}{' nt' if OPT['ntx'] else ''} lds", f"x{j}")

    def w_dma(s):
        if s % 2 == 0:
            a(f"s_add_u32 m0, s{sWB}, {s*2048}", f"s_add_u32 s{sWc}, s{sWo}, s{sWn}")
        elif OPT["x0pos"] == s:
            a(f"s_add_u32 m0, s{sWB}, {(s-1)*2048}", "s_nop 0")
        for i in (2 * (s % 2), 2 * (s % 2) + 1):
            reg = vWd if i == 0 else vWx + i - 1
            a.vmem(f"buffer_load_dwordx4 v{reg}, {sr(sW,4)}, s{sWc} offen offset:{1024*i}{' nt' if OPT['ntw'] else ''} lds", f"w{s}")
        if s % 2 == 1:
            a(f"s_add_u32 s{sWn}, s{sWn}, 32768", f"s_and_b32 s{sWn}, s{sWn}, 0x3ffff")

    LA = OPT["la"]
    a.stamp()
    for s in range(LA):
        if s == OPT["x0pos"]:
            x_dma(0)
        w_dma(s)
    if OPT["x1early"]:
        x_dma(1)
    a.srd(sO, 20, 0, 16 * SS)
    a.srd(sB, 14, 0, 1024)
    a(f"s_cmp_ge_u32 s{su}, 8", f"s_cselect_b32 s{sB+2}, s{sB+2}, 0")
    a.stamp()

    def wfrag(s, b):
        return vW + (s * 2 + b) * 4

    def a_read(j, s):
        a.lds(f"ds_read_b128 {vr(vA + 4*((16*j+s) % 4), 4)}, v{vAad + (s & 7)} offset:{4096*j + 256*(s >> 3)}", f"a{j}_{s}")

    def w_read(s):
        a.wait(vm=f"w{s}")
        for b in range(2):
            for q in range(2):
                a.lds(f"ds_read_b64_tr_b16 {vr(wfrag(s, b) + 2*q, 2)}, v{vTr+b} offset:{s*2048 + q*512}", f"t{s}")

    def mfma(j, s, b):
        acc = vAcc + 32 * (j & 1) + 16 * b
        c = "0" if s == 0 else vr(acc, 16)
        a(f"v_mfma_f32_32x32x16_bf16 {vr(acc,16)}, {vr(vA + 4*((16*j+s) % 4), 4)}, {vr(wfrag(s, b), 4)}, {c}")

    def epilogue_ops(j):
        acc = vAcc + 32 * (j & 1)
        ops = [("s", f"s_lshl_b32 s{st1}, s{sJ+j}, 12"), ("s", f"s_add_u32 s{st1}, s{st1}, s{sOo}")]
        for r in range(0, 16, 2):
            for rr in (r, r + 1):
                ops.append(("v", f"v_fma_f32 v{acc+rr}, v{acc+rr}, s{sK}, v{vBias}"))
                ops.append(("v", f"v_fma_f32 v{acc+16+rr}, v{acc+16+rr}, s{sK}, v{vBias+1}"))
            for rr in (r, r + 1):
                ops.append(("v", f"v_cvt_pk_bf16_f32 v{acc+rr}, v{acc+rr}, v{acc+16+rr}"))
            for rr in (r, r + 1):
                ops.append(("m", f"buffer_store_dword v{acc+rr}, v{vSt}, {sr(sO,4)}, s{st1} offen offset:{(8*(rr>>2) + (rr&3))*128}{wt()}"))
        return ops

    def emit_op(op):
        if op[0] == "m":
            a.vmem(op[1], "st")
        else:
            a(op[1])

    NJ = TILE1 // 32
    a.wait(vm="x0")
    a("s_barrier")
    a.stamp()
    PF0 = OPT["pf0"]
    for s in range(PF0):
        w_read(s)
        a_read(0, s)
    for s in range(16):
        if s + PF0 < 16:
            w_read(s + PF0)
            a_read(0, s + PF0)
        a.wait(lg=[f"t{s}", f"a0_{s}"])
        mfma(0, s, 0)
        if s + LA < 16:
            w_dma(s + LA)
        elif s + LA == 16:
            if not OPT["x1early"]:
                x_dma(1)
            a.vmem(f"buffer_load_ushort v{vBias}, v{vT0}, {sr(sB,4)}, s{sMask} offen", "x1")
            a.vmem(f"buffer_load_ushort v{vBias+1}, v{vT0}, {sr(sB,4)}, s{sMask} offen offset:64", "x1")
        elif s + LA - 15 < (3 if OPT["xspread"] else NJ):
            x_dma(s + LA - 15)
        mfma(0, s, 1)
        if OPT["fine"] and s % 2 == 1 and s < 15:
            a.stamp()
    PFA = 3
    a.stamp()
    a.wait(vm="x1")
    a("s_barrier")
    for s in range(PFA):
        a_read(1, s)
    a(f"v_lshlrev_b32 v{vBias}, 16, v{vBias}", f"v_lshlrev_b32 v{vBias+1}, 16, v{vBias+1}",
      f"v_mul_f32 v{vBias}, s{sK}, v{vBias}", f"v_mul_f32 v{vBias+1}, s{sK}, v{vBias+1}")
    a.stamp()
    for j in range(1, NJ):
        ops = epilogue_ops(j - 1)
        for s in range(16):
            if s + PFA == 16 and j < NJ - 1:
                a.wait(vm=f"x{j+1}")
                a("s_barrier")
            a.wait(lg=f"a{j}_{s}")
            mfma(j, s, 0)
            if OPT["xspread"] and s == 1 and j + 2 < NJ:
                x_dma(j + 2)
            if s + PFA < 16:
                a_read(j, s + PFA)
            elif j < NJ - 1:
                a_read(j + 1, s + PFA - 16)
            if s >= 3:
                for _ in range(3 if s == 3 else 2):
                    if ops:
                        emit_op(ops.pop(0))
            mfma(j, s, 1)
            if s >= 3:
                for _ in range(3):
                    if ops:
                        emit_op(ops.pop(0))
        assert not ops
        a.stamp()
    a("s_nop 15")
    for op in epilogue_ops(NJ - 1):
        emit_op(op)
    a.stamp_dump(sX, 20, sw, 5 if OPT["helper"] else 4)
    a("s_endpgm")

    if OPT["helper"]:
        a("K1_HELP:")
        a(f"s_lshr_b32 s{sq}, s2, 3", f"s_cmp_ge_u32 s{sq}, 28", "s_cbranch_scc1 K1_END")
        a(f"s_and_b32 s{su}, s{sq}, 3", f"s_lshr_b32 s{sq}, s{sq}, 2", f"s_lshl_b32 s{st0}, s{sq}, 3",
          f"s_and_b32 s{stile}, s2, 7", f"s_add_u32 s{stile}, s{stile}, s{st0}",
          f"s_mul_i32 s{sXo}, s{stile}, {TILE1*512}", f"s_lshl_b32 s{su}, s{su}, 12", f"s_add_u32 s{sXo}, s{sXo}, s{su}")
        a(f"v_and_b32 v{vT0}, 31, v{vLane}", f"v_lshrrev_b32 v{vT1}, 5, v{vLane}", f"v_lshlrev_b32 v{vT0}, 7, v{vT0}",
          f"v_lshl_add_u32 v{vT0}, v{vT1}, 14, v{vT0}", "s_waitcnt lgkmcnt(0)")
        a.srd(sX, 4, 0, N * 512)
        a(f"s_cmp_ge_u32 s{stile}, {NT1}", "s_cbranch_scc1 K1_END")
        a(f"buffer_load_dword v{vT2}, v{vT0}, {sr(sX,4)}, s{sXo} offen")
        if OPT["helper"] == 1:
            a("s_barrier")
        for i in range(1, TILE1 // 64):
            a(f"s_add_u32 s{sXo}, s{sXo}, 32768", f"buffer_load_dword v{vT2}, v{vT0}, {sr(sX,4)}, s{sXo} offen")
        if OPT["helper"] == 2:
            a("s_barrier")
        a("s_barrier", "s_endpgm")

    a("K1_PREP:")
    a.vm, a.lg = [], []
    a(f"s_cmp_ge_u32 s{stile}, {NT1 + 2}", "s_cbranch_scc1 K1_END")
    sW2, sF = sX, sW
    vL = vW
    vOut = vW + 32
    a(f"s_sub_u32 s{st0}, s{stile}, {NT1}", f"s_lshl_b32 s{st0}, s{st0}, 4", f"s_add_u32 s{su}, s{su}, s{st0}")
    a(f"v_and_b32 v{vT0}, 15, v{vLane}", f"v_lshrrev_b32 v{vT1}, 4, v{vLane}", f"v_lshlrev_b32 v{vT0}, 2, v{vT0}",
      f"v_lshl_add_u32 v{vWd}, v{vT1}, 11, v{vT0}", f"v_lshlrev_b32 v{vSt}, 4, v{vLane}")
    a(f"s_lshr_b32 s{st0}, s{su}, 2", f"s_lshl_b32 s{st0}, s{st0}, 6", f"s_and_b32 s{st1}, s{su}, 3",
      f"s_lshl_b32 s{st1}, s{st1}, 16", f"s_add_u32 s{sXo}, s{st0}, s{st1}", f"s_lshl_b32 s{sOo}, s{su}, 13")
    a("s_waitcnt lgkmcnt(0)")
    a.srd(sW2, 16, 0, 512 * 512)
    a.srd(sF, 20, W2F_OFF, 262144)
    for s in range(4):
        for i in range(8):
            row = (s >> 1) * 64 + 16 * (s & 1) + (i >> 1) + 32 * (i & 1)
            a(f"s_add_u32 s{st0}, s{sXo}, {row*512}")
            a.vmem(f"buffer_load_dword v{vL + 8*s + i}, v{vWd}, {sr(sW2,4)}, s{st0} offen", f"l{s}")
    a(f"s_mov_b32 s{sK}, 0x05040100", f"s_mov_b32 s{sK+1}, 0x07060302")
    for s in range(4):
        a.wait(vm=f"l{s}")
        for b in range(2):
            o = vOut + 8 * s + 4 * b
            for m in range(4):
                a(f"v_perm_b32 v{o+m}, v{vL + 8*s + 2*m + 1}, v{vL + 8*s + 2*m}, s{sK+b}")
            a(f"s_add_u32 s{st0}, s{sOo}, {(2*s+b)*1024}")
            a.vmem(f"buffer_store_dwordx4 {vr(o,4)}, v{vSt}, {sr(sF,4)}, s{st0} offen{wt()}")
    a("s_endpgm")

    a("K1_SORT:")
    a.vm, a.lg = [], []
    sDst, sSrc, sE, sR4, sR2 = 24, 28, 32, 36, 40
    sc = su
    vDst, vSrc, vEe, vSl, vRg, vRd, vCn, vRo = 8, 28, 48, 60, 80, 100, 144, 156
    a(f"s_sub_u32 s{sc}, s2, 224")
    a(f"v_lshlrev_b32 v{vT1}, 4, v0", f"v_lshlrev_b32 v{vT2}, 3, v0")
    a(f"s_mul_i32 s{st0}, s{sc}, {CHUNK*4}", f"s_mul_i32 s{st1}, s{sc}, {CHUNK*2}")
    a("s_waitcnt lgkmcnt(0)")
    a.srd(sDst, 10, f"s{st0}", CHUNK * 4)
    a.srd(sSrc, 8, f"s{st0}", CHUNK * 4)
    a.srd(sE, 6, f"s{st1}", CHUNK * 2)
    for i in range(5):
        a(f"s_mov_b32 s{st0}, {4096*i}")
        a.vmem(f"buffer_load_dwordx4 {vr(vDst+4*i,4)}, v{vT1}, {sr(sDst,4)}, s{st0} offen{' nt' if OPT['nte'] else ''}", f"d{i}")
    for i in range(5):
        a(f"s_mov_b32 s{st0}, {4096*i}", f"s_mov_b32 s{st1}, {2048*i}")
        a.vmem(f"buffer_load_dwordx4 {vr(vSrc+4*i,4)}, v{vT1}, {sr(sSrc,4)}, s{st0} offen{' nt' if OPT['nte'] else ''}", f"s{i}")
        a.vmem(f"buffer_load_dwordx2 {vr(vEe+2*i,2)}, v{vT2}, {sr(sE,4)}, s{st1} offen{' nt' if OPT['nte'] else ''}", f"s{i}")
    a.srd(sR4, 20, R4_OFF, 32 * R4BLK)
    a.srd(sR2, 20, R2_OFF, 32 * R2BLK)
    for r in range(4):
        a(f"v_mov_b32 v{vRd+r}, 0")
    for i in range(4):
        a.lds(f"ds_write_b128 v{vT1}, {vr(vRd,4)} offset:{4096*i}")
    a(f"s_mov_b32 s{st0}, 13401", f"s_mov_b32 s{st1}, {-RNG & 0xffffffff}", f"s_mov_b32 s{sMask}, 0xffff0000",
      f"v_mov_b32 v{vT2}, 1", f"v_mov_b32 v{vT0}, 0x100000", f"v_cmp_gt_u32 {sr(sK,2)}, {CHUNK//4 - 1024 - 192}, v{vLane}",
      f"s_cmp_eq_u32 s{sw}, 3", f"s_cselect_b64 {sr(sK,2)}, {sr(sK,2)}, -1")
    a.wait(lg="all")
    a("s_barrier")

    def scatter(n):
        a.wait(lg=f"sl{n}")
        a(f"v_cmp_gt_u32 vcc, {CAP}, v{vSl+n}", f"v_add_u32 v{vSl+n}, v{vSl+n}, v{vRg+n}", "s_nop 0",
          f"v_cndmask_b32 v{vSl+n}, v{vT0}, v{vSl+n}, vcc",
          f"v_lshlrev_b32 v{vRg+n}, 1, v{vSl+n}", f"v_lshlrev_b32 v{vSl+n}, 2, v{vSl+n}")
        a.lds(f"ds_write_b16 v{vRg+n}, v{vDst+n} offset:{K1_I16}")
        a.lds(f"ds_write_b32 v{vSl+n}, v{vSrc+n} offset:{K1_I32}")
    for i in range(5):
        a.wait(vm=f"d{i}")
        if i == 4:
            a(f"s_mov_b64 exec, {sr(sK,2)}")
        for n in range(4 * i, 4 * i + 4):
            a(f"v_mul_u32_u24 v{vRg+n}, s{st0}, v{vDst+n}", f"v_lshrrev_b32 v{vRg+n}, 22, v{vRg+n}",
              f"v_lshlrev_b32 v{vSl+n}, 2, v{vRg+n}")
            a.lds(f"ds_add_rtn_u32 v{vSl+n}, v{vSl+n}, v{vT2} offset:{K1_CNT}", f"sl{n}")
            a(f"v_mad_i32_i24 v{vDst+n}, v{vRg+n}, s{st1}, v{vDst+n}", f"v_lshl_add_u32 v{vDst+n}, v{vDst+n}, 2, 4",
              f"v_mul_u32_u24 v{vRg+n}, {CAP}, v{vRg+n}")
        if i == 4:
            a("s_mov_b64 exec, -1")
        if i >= 1:
            a.wait(vm=f"s{i-1}")
            for n in range(4 * (i - 1), 4 * i):
                if n & 1:
                    a(f"v_and_or_b32 v{vSrc+n}, v{vEe+n//2}, s{sMask}, v{vSrc+n}")
                else:
                    a(f"v_lshl_or_b32 v{vSrc+n}, v{vEe+n//2}, 16, v{vSrc+n}")
                scatter(n)
    a.wait(vm="s4")
    a(f"s_mov_b64 exec, {sr(sK,2)}")
    for n in range(16, 20):
        if n & 1:
            a(f"v_and_or_b32 v{vSrc+n}, v{vEe+n//2}, s{sMask}, v{vSrc+n}")
        else:
            a(f"v_lshl_or_b32 v{vSrc+n}, v{vEe+n//2}, 16, v{vSrc+n}")
        scatter(n)
    a("s_mov_b64 exec, -1")
    a.wait(lg="all")
    a("s_barrier")
    a(f"s_mul_i32 s{st0}, s{sc}, {CAP*4}", f"s_mul_i32 s{st1}, s{sc}, {CAP*2}",
      f"s_mov_b32 s{sXo}, {R4BLK - CAP*4}", f"s_mov_b32 s{sOo}, {R2BLK - CAP*2}")
    for i in range(4):
        a.lds(f"ds_read_b128 {vr(vRd+28+4*i,4)}, v{vT1} offset:{K1_I16 + 4096*i}", f"h{i}")
        a(f"v_add_u32 v{vT2}, {256*i}, v0", f"v_mul_u32_u24 v{vT2}, 2341, v{vT2}", f"v_lshrrev_b32 v{vT2}, 16, v{vT2}",
          f"v_mad_u32_u24 v{vRo+7+i}, v{vT2}, s{sOo}, v{vT1}", f"v_add_u32 v{vRo+7+i}, {4096*i}, v{vRo+7+i}",
          f"v_lshlrev_b32 v{vT2}, 2, v{vT2}")
        a.lds(f"ds_read_b32 v{vCn+i}, v{vT2} offset:{K1_CNT}", f"h{i}")
    for i in range(7):
        a.lds(f"ds_read_b128 {vr(vRd+4*i,4)}, v{vT1} offset:{K1_I32 + 4096*i}", f"g{i}")
        a(f"v_add_u32 v{vT2}, {256*i}, v0", f"v_mul_u32_u24 v{vT2}, 2341, v{vT2}", f"v_lshrrev_b32 v{vT2}, 17, v{vT2}",
          f"v_mad_u32_u24 v{vRo+i}, v{vT2}, s{sXo}, v{vT1}", f"v_add_u32 v{vRo+i}, {4096*i}, v{vRo+i}")
        if i < 4:
            a.wait(lg=f"h{i}")
            a(f"v_cmp_ge_u32 vcc, {CAP}, v{vCn+i}", "s_nop 1", f"v_cndmask_b32 v{vRd+28+4*i}, -1, v{vRd+28+4*i}, vcc")
            a.vmem(f"buffer_store_dwordx4 {vr(vRd+28+4*i,4)}, v{vRo+7+i}, {sr(sR2,4)}, s{st1} offen{wt()}")
    for i in range(7):
        a.wait(lg=f"g{i}")
        a.vmem(f"buffer_store_dwordx4 {vr(vRd+4*i,4)}, v{vRo+i}, {sr(sR4,4)}, s{st0} offen{wt()}")
    a.stamp_dump(sX, 20, sw, 5 if OPT["helper"] else 4)
    a("K1_END:", "s_endpgm")
    return a.lines, descriptor("k1_kernel", nv, 102 if STAMPS else 72)


K2_CNT = 64
K2_HIST = K2_CNT + 1280
K2_MISC = K2_HIST + 256
K2_ORD = K2_MISC + 64
K2_ELL = 3072
K2_LDS = K2_ELL + 320 * ELLS + 64
NGRP = 40


def k2():
    a = Asm()
    header(a, "k2_kernel")
    sR4, sP, sQ, sS, sW1, sDeg, sPf, sR2 = 24, 28, 32, 36, 40, 44, 48, 92
    sw, sk, srng, scnt, st0, st1, sg, sdmax, sdmin, sK, sBig, sOne = 52, 53, 54, 55, 56, 57, 58, 59, 60, 62, 64, 66
    sM = 68
    vLane, vT0, vT1, vT2, vT3 = 1, 2, 3, 4, 5
    vI4, vAh, vAl = 6, 8, 10
    vE, vEs = 12, 14
    vIdx = 16
    vSh, vEll, vEe, vDeg, vOut, vOrdL, vHoff = 24, 25, 26, 27, 28, 29, 30
    vQ = 32
    vNum, vDen, vT = 48, 56, 64
    vP = 72
    vZ = 88
    vAs, vAi = 120, 124
    vOld, vNxt = 125, 126
    nv = 127
    vR4, vR2, vDl = 88, 96, 100
    vSl = 48
    vC = 32
    vPf = 112

    a("s_cmp_ge_u32 s2, 256", "s_cbranch_scc1 K2_END")
    a.stamp_setup(31, 1)
    code_prefetch(a, "k2_kernel", "K2_END", 4, 2, vPf, "K2")
    a("s_load_dwordx16 s[4:19], s[0:1], 0", "s_load_dwordx2 s[20:21], s[0:1], 80")
    a(f"v_lshrrev_b32 v{vT0}, 6, v0", f"v_and_b32 v{vLane}, 63, v0", f"v_readfirstlane_b32 s{sw}, v{vT0}")
    a(f"s_and_b32 s{sk}, s2, 7", f"s_lshr_b32 s{srng}, s2, 3")
    a(f"s_mul_i32 s{st0}, s{srng}, {RNG}", f"s_sub_u32 s{scnt}, {N}, s{st0}", f"s_min_u32 s{scnt}, s{scnt}, {RNG}")
    a(f"v_lshlrev_b32 v{vT0}, 4, v0", f"v_lshlrev_b32 v{vT3}, 3, v0")
    a(f"s_mul_i32 s{st1}, s{srng}, {R4BLK}", f"s_add_u32 s{st1}, s{st1}, {R4_OFF}",
      f"s_mul_i32 s{sg}, s{srng}, {R2BLK}", f"s_add_u32 s{sg}, s{sg}, {R2_OFF}")
    a(f"v_mov_b32 v{vP}, 0xffff", f"v_mov_b32 v{vP+1}, 0xffff", f"v_mov_b32 v{vP+2}, 0xffff", f"v_mov_b32 v{vP+3}, 0xffff",
      f"v_mov_b32 v{vP+4}, 0", f"v_lshlrev_b32 v{vT1}, 2, v0")
    a(f"v_cmp_gt_u32 vcc, {K2_ORD//4}, v0", f"s_and_saveexec_b64 {sr(sM,2)}, vcc", "s_cbranch_execz K2_I2")
    a(f"ds_write_b32 v{vT1}, v{vP+4}")
    a("K2_I2:", "s_mov_b64 exec, -1")
    a("s_waitcnt lgkmcnt(0)")
    a.srd(sR2, 20, f"s{sg}", R2BLK)
    a.srd(sR4, 20, f"s{st1}", R4BLK)
    a(f"s_mov_b32 s{st1}, 8192", f"s_mov_b32 s{sg}, 16384")
    a.vmem(f"buffer_load_dwordx2 {vr(vR2,2)}, v{vT3}, {sr(sR2,4)}, 0 offen", "h0")
    a.vmem(f"buffer_load_dwordx2 {vr(vR2+2,2)}, v{vT3}, {sr(sR2,4)}, s{st1} offen", "h1")
    a.vmem(f"buffer_load_dwordx4 {vr(vR4,4)}, v{vT0}, {sr(sR4,4)}, 0 offen", "g0")
    a.vmem(f"buffer_load_dwordx4 {vr(vR4+4,4)}, v{vT0}, {sr(sR4,4)}, s{sg} offen", "g1")
    a.stamp()
    nell = (K2_LDS - K2_ELL) // 16
    for i in range(3):
        a(f"ds_write_b128 v{vT0}, {vr(vP,4)} offset:{K2_ELL + 16384*i}")
    a(f"v_cmp_gt_u32 vcc, {nell - 3072}, v0", f"s_and_saveexec_b64 {sr(sM,2)}, vcc", "s_cbranch_execz K2_I1")
    a(f"ds_write_b128 v{vT0}, {vr(vP,4)} offset:{K2_ELL + 16384*3}")
    a("K2_I1:", "s_mov_b64 exec, -1")
    a.srd(sW1, 12, 512 * 1024, 1024)
    a(f"v_and_b32 v{vT1}, 1, v{vLane}", f"v_lshlrev_b32 v{vT1}, 6, v{vT1}",
      f"v_bfe_u32 v{vT2}, v{vLane}, 2, 1", f"v_lshl_add_u32 v{vT1}, v{vT2}, 5, v{vT1}",
      f"v_bfe_u32 v{vT2}, v{vLane}, 3, 1", f"v_lshl_add_u32 v{vT1}, v{vT2}, 2, v{vT1}",
      f"v_bfe_u32 v{vT2}, v{vLane}, 1, 1", f"v_lshl_add_u32 v{vT1}, v{vT2}, 1, v{vT1}",
      f"s_lshl_b32 s{st1}, s{sk}, 7")
    for i in range(4):
        a.vmem(f"buffer_load_ushort v{vC+i}, v{vT1}, {sr(sW1,4)}, s{st1} offen offset:{8*i}", "c")
    a(f"s_mul_i32 s{st1}, s{sk}, {SS}", f"s_lshl_b32 s{sg}, s{st0}, 7", f"s_add_u32 s{sg}, s{sg}, s{st1}",
      f"s_lshl_b32 s{sdmax}, s{scnt}, 7")
    a.srd(sP, 20, f"s{st1}", N, stride=128)
    a.srd(sPf, 20, f"s{sg}", f"s{sdmax}")
    a(f"s_add_u32 s{sg}, s{sg}, {Q_OFF}")
    a.srd(sQ, 20, f"s{sg}", f"s{sdmax}")
    a(f"s_add_u32 s{sg}, s{sg}, {S_OFF - Q_OFF}")
    a.srd(sS, 20, f"s{sg}", f"s{sdmax}")
    a(f"s_lshl_b32 s{sg}, s{st0}, 2", f"s_add_u32 s{sg}, s{sg}, {DEG_OFF}", f"s_lshl_b32 s{sdmax}, s{scnt}, 2",
      f"s_cmp_eq_u32 s{sk}, 0", f"s_cselect_b32 s{sdmax}, s{sdmax}, 0")
    a.srd(sDeg, 20, f"s{sg}", f"s{sdmax}")
    a(f"v_and_b32 v{vT1}, 3, v{vLane}", f"v_lshlrev_b32 v{vSh}, 4, v{vT1}", f"v_lshrrev_b32 v{vT2}, 5, v{vLane}",
      f"v_lshl_add_u32 v{vIdx+1}, v{vT2}, 6, v{vSh}", f"v_mov_b32 v{vIdx+3}, v{vIdx+1}", f"v_mov_b32 v{vIdx+5}, v{vIdx+1}",
      f"v_mov_b32 v{vIdx+7}, v{vIdx+1}", f"v_lshl_add_u32 v{vHoff}, v{vT2}, 2, 2",
      f"v_and_b32 v{vOrdL}, 28, v{vLane}", f"v_add_u32 v{vOrdL}, {K2_ORD}, v{vOrdL}",
      f"v_mov_b32 v{vE}, 0x3f80", f"v_mov_b32 v{vE+1}, 0", f"v_lshlrev_b64 {vr(vI4,2)}, v{vSh}, {vr(vE,2)}")
    a(f"v_cmp_eq_u32 vcc, 3, v{vT1}", f"v_mov_b32 v{vT3}, 0x3f800000", f"v_or_b32 v{vAi}, 12, v{vT1}",
      f"v_cndmask_b32 v{vT3}, v{vE}, v{vT3}, vcc", f"v_cndmask_b32 v{vAi}, v{vAi}, 12, vcc",
      f"v_mul_u32_u24 v{vAi}, 0x1111, v{vAi}",
      f"v_bfe_u32 v{vT1}, v{vLane}, 4, 1", f"v_cmp_eq_u32 {sr(sM+16,2)}, v{vT1}, v{vT2}",
      f"v_bfe_u32 v{vT1}, v{vLane}, 2, 1", f"v_bfe_u32 v{vT2}, v{vLane}, 3, 1", f"v_lshl_add_u32 v{vT1}, v{vT1}, 1, v{vT2}",
      f"v_cndmask_b32 v{vT3}, 0, v{vT3}, {sr(sM+16,2)}")
    for g4 in range(4):
        a(f"v_cmp_eq_u32 vcc, {g4}, v{vT1}", "s_nop 1", f"v_cndmask_b32 v{vAs+g4}, 0, v{vT3}, vcc")
    a(f"s_mov_b32 s{sK}, {NLOG2E}", f"s_mov_b32 s{sBig}, {fbits(2.0**120)}", f"s_mov_b32 s{sOne}, 1.0", f"s_mov_b32 s{sOne+1}, 1.0")
    a(f"v_mov_b32 v{vT3}, 1", f"v_mov_b32 v{vT2}, 0")
    a("s_waitcnt lgkmcnt(0)", "s_barrier")
    a.lg = []
    a.stamp()
    a(f"s_cmp_lt_u32 s{sw}, 10", f"s_cselect_b32 s{sPf}, s{sPf}, s{sQ}", f"s_cselect_b32 s{sPf+1}, s{sPf+1}, s{sQ+1}",
      f"s_cselect_b32 s{st1}, 5, 10", f"s_cselect_b32 s{sg}, {OPT['pf']}, {OPT['pfq']}",
      f"s_sub_u32 s{st1}, s{sw}, s{st1}", f"s_lshl_b32 s{st1}, s{st1}, 13", f"s_mul_i32 s{sPf+2}, s{sPf+2}, s{sg}",
      f"s_cmp_lt_u32 s{sw}, 5", f"s_cselect_b32 s{sPf+2}, 0, s{sPf+2}", f"s_cselect_b32 s{st1}, 0, s{st1}",
      f"s_cmp_eq_u32 s{sw}, 15", "s_cbranch_scc0 K2_PF3")
    a.srd(sPf, 20, W2F_OFF, 262144 if OPT["pfw"] else 0)
    a(f"s_lshl_b32 s{st1}, s{srng}, 13")
    a("K2_PF3:", f"v_lshlrev_b32 v{vT1}, 7, v{vLane}")
    a.vmem(f"buffer_load_dword v{vPf}, v{vT1}, {sr(sPf,4)}, s{st1} offen", "pf")
    for i in range(2):
        a.wait(vm=f"h{i}")
        if i:
            a("s_mov_b64 exec, -1")
        for u in range(4):
            n = 4 * i + u
            if u & 1:
                a(f"v_ashrrev_i32 v{vDl+n}, 16, v{vR2+n//2}")
            else:
                a(f"v_bfe_i32 v{vDl+n}, v{vR2+n//2}, 0, 16")
            a(f"v_cmp_lt_i32 {sr(sM+2*n,2)}, 0, v{vDl+n}")
        a(f"v_min_i32 v{vT2}, v{vDl+4*i}, v{vT2}")
        for u in range(4):
            n = 4 * i + u
            a(f"s_mov_b64 exec, {sr(sM+2*n,2)}")
            a.lds(f"ds_add_rtn_u32 v{vSl+n}, v{vDl+n}, v{vT3} offset:{K2_CNT-4}", f"s{n}")
    a("s_mov_b64 exec, -1")
    a.stamp()
    a(f"v_cmp_gt_i32 vcc, 0, v{vT2}", f"v_mov_b32 v{vT1}, {K2_MISC}", f"s_and_saveexec_b64 {sr(sM+18,2)}, vcc", "s_cbranch_execz K2_NOOVF")
    a(f"ds_write_b32 v{vT1}, v{vT3} offset:4", "s_waitcnt lgkmcnt(0)")
    a("K2_NOOVF:", "s_mov_b64 exec, -1")
    a(f"s_mov_b32 s{st1}, {ELLS // 4}")
    for n in range(8):
        a.wait(lg=f"s{n}", vm=f"g{n//4}")
        a(f"s_mov_b64 exec, {sr(sM+2*n,2)}")
        a(f"v_min_u32 v{vSl+n}, {MAXDEG}, v{vSl+n}", f"v_lshlrev_b32 v{vSl+n}, 2, v{vSl+n}",
          f"v_mad_u32_u24 v{vSl+n}, v{vDl+n}, s{st1}, v{vSl+n}")
        a.lds(f"ds_write_b32 v{vSl+n}, v{vR4+n} offset:{K2_ELL - ELLS}")
    a("s_mov_b64 exec, -1")
    a.wait(vm="c")
    for i in range(4):
        a(f"v_lshlrev_b32 v{vC+i}, 16, v{vC+i}", f"v_mul_f32 v{vC+i}, s{sK}, v{vC+i}")
    a(f"v_cvt_pk_bf16_f32 v{vAh}, v{vC}, v{vC+1}", f"v_cvt_pk_bf16_f32 v{vAh+1}, v{vC+2}, v{vC+3}")
    for i in range(4):
        if i & 1:
            a(f"v_and_b32 v{vT1}, 0xffff0000, v{vAh+i//2}")
        else:
            a(f"v_lshlrev_b32 v{vT1}, 16, v{vAh+i//2}")
        a(f"v_sub_f32 v{vC+i}, v{vC+i}, v{vT1}")
    a(f"v_cvt_pk_bf16_f32 v{vAl}, v{vC}, v{vC+1}", f"v_cvt_pk_bf16_f32 v{vAl+1}, v{vC+2}, v{vC+3}")
    for r in (vAh, vAh + 1, vAl, vAl + 1):
        a(f"v_cndmask_b32 v{r}, 0, v{r}, {sr(sM+16,2)}")
    a.stamp()
    a("s_waitcnt lgkmcnt(0)", "s_barrier")
    a.lg = []
    a(f"s_cmp_ge_u32 s{sw}, 5", "s_cbranch_scc1 K2_DS1")
    a(f"v_lshlrev_b32 v{vT0}, 2, v0", f"ds_read_b32 v{vDeg}, v{vT0} offset:{K2_CNT}", "s_waitcnt lgkmcnt(0)")
    a(f"v_cvt_f32_u32 v{vT1}, v{vDeg}", f"v_cmp_lt_u32 vcc, {MAXDEG}, v{vDeg}", f"v_min_u32 v{vDeg}, {MAXDEG}, v{vDeg}")
    a(f"v_sub_u32 v{vT2}, 63, v{vDeg}", f"v_lshlrev_b32 v{vT2}, 2, v{vT2}",
      f"ds_add_rtn_u32 v{vOut}, v{vT2}, v{vT3} offset:{K2_HIST}")
    a(f"buffer_store_dword v{vT1}, v{vT0}, {sr(sDeg,4)}, 0 offen{wt()}")
    a(f"v_mov_b32 v{vEll}, {K2_MISC}", f"s_and_saveexec_b64 {sr(sM,2)}, vcc", "s_cbranch_execz K2_NOOVF2")
    a(f"ds_write_b32 v{vEll}, v{vT3} offset:4")
    a("K2_NOOVF2:", "s_mov_b64 exec, -1", "s_waitcnt lgkmcnt(0)")
    a("K2_DS1:", "s_barrier")
    a(f"s_cmp_ge_u32 s{sw}, 5", "s_cbranch_scc1 K2_DS2")
    a(f"v_lshlrev_b32 v{vT0}, 2, v{vLane}", f"ds_read_b32 v{vT1}, v{vT0} offset:{K2_HIST}", "s_waitcnt lgkmcnt(0)",
      f"v_mov_b32 v{vEll}, v{vT1}", "s_nop 1")
    for ctrl in ("row_shr:1", "row_shr:2", "row_shr:4", "row_shr:8"):
        a(f"v_add_u32_dpp v{vEll}, v{vEll}, v{vEll} {ctrl} row_mask:0xf bank_mask:0xf bound_ctrl:1", "s_nop 1")
    a(f"v_add_u32_dpp v{vEll}, v{vEll}, v{vEll} row_bcast:15 row_mask:0xa bank_mask:0xf", "s_nop 1")
    a(f"v_add_u32_dpp v{vEll}, v{vEll}, v{vEll} row_bcast:31 row_mask:0xc bank_mask:0xf", "s_nop 1")
    a(f"v_sub_u32 v{vEll}, v{vEll}, v{vT1}", f"ds_bpermute_b32 v{vT1}, v{vT2}, v{vEll}",
      f"v_lshl_or_b32 v{vDeg}, v{vDeg}, 16, v0", "s_waitcnt lgkmcnt(0)",
      f"v_add_lshl_u32 v{vT1}, v{vT1}, v{vOut}, 2", f"ds_write_b32 v{vT1}, v{vDeg} offset:{K2_ORD}")
    a("K2_DS2:", "s_waitcnt lgkmcnt(0)", "s_barrier")
    a.vm = []
    a.stamp()
    if STAMPS:
        a("s_mov_b32 s99, 8")
    a(f"v_mov_b32 v{vT0}, {K2_MISC}", f"ds_read_b32 v{vT1}, v{vT0} offset:4", f"v_mov_b32 v{vOld}, -1", "s_waitcnt lgkmcnt(0)",
      f"v_readfirstlane_b32 s{st0}, v{vT1}", f"s_mov_b32 s{sg}, s{sw}", f"s_cmp_lg_u32 s{st0}, 0", "s_cbranch_scc1 K2_SLOW")

    def Z(i):
        return vZ + 16 * ((i >> 1) & 1) + 8 * (i & 1)

    def src_read(i):
        a(f"ds_read_u16 v{vIdx + 2*(i % 4)}, v{vEll} offset:{4*i}")

    def e_read(p):
        a(f"ds_read_u16 v{vE}, v{vEe} offset:{8*p}")

    def gather(i):
        a(f"buffer_load_dwordx4 {vr(vP + 4*(i % 4), 4)}, {vr(vIdx + 2*(i % 4), 2)}, {sr(sP,4)}, 0 idxen offen")

    def m4(i, hf):
        z = Z(i) + 4 * hf
        return f"v_mfma_f32_4x4x4_16b_bf16 {vr(z,4)}, {vr(vI4,2)}, {vr(vP + 4*(i % 4) + 2*hf, 2)}, {vr(z,4)}"

    def smf(p):
        return f"v_smfmac_f32_32x32x32_bf16 {vr(Z(2*p),16)}, {vr(vAs,4)}, {vr(vP + 8*(p & 1), 8)}, v{vAi}"

    shift = f"v_lshlrev_b64 {vr(vEs,2)}, v{vSh}, {vr(vE,2)}"

    def mhi(p):
        return f"v_mfma_f32_32x32x8_bf16 {vr(Z(2*p),16)}, {vr(vAh,2)}, {vr(vEs,2)}, {vr(vQ,16)}"

    def mlo(p):
        return f"v_mfma_f32_32x32x8_bf16 {vr(Z(2*p),16)}, {vr(vAl,2)}, {vr(vEs,2)}, {vr(Z(2*p),16)}"

    def finish():
        for r in range(8):
            a(f"v_rcp_f32 v{vT+r}, v{vDen+r}")
        for r in range(0, 8, 2):
            a(f"v_pk_mul_f32 {vr(vNum+r,2)}, {vr(vNum+r,2)}, {vr(vT+r,2)}")
        for r in range(4):
            a(f"v_cvt_pk_bf16_f32 v{vT+r}, v{vNum+2*r}, v{vNum+2*r+1}")
        a(f"buffer_store_dwordx4 {vr(vT,4)}, v{vOld}, {sr(sS,4)}, 0 offen{wt()}")

    if OPT["prio"]:
        a("s_setprio 3")
    a("K2_GROUP:")
    a(f"s_lshl_b32 s{st0}, s{sg}, 5", f"v_add_u32 v{vT0}, s{st0}, v{vOrdL}", f"ds_read_b32 v{vT1}, v{vT0}",
      f"s_mov_b32 s{st1}, {ELLS}", "s_waitcnt lgkmcnt(0)")
    a(f"v_and_b32 v{vT0}, 0xffff, v{vT1}", f"v_lshrrev_b32 v{vDeg}, 16, v{vT1}",
      f"v_mul_u32_u24 v{vEll}, s{st1}, v{vT0}", f"v_add_u32 v{vEll}, {K2_ELL}, v{vEll}")
    for i in range(4):
        src_read(i)
    a(f"v_lshl_add_u32 v{vOut}, v{vT0}, 7, v{vIdx+1}", f"v_add_u32 v{vEe}, v{vEll}, v{vHoff}")
    a(f"buffer_load_dwordx4 {vr(vZ+16,4)}, v{vOut}, {sr(sQ,4)}, 0 offen")
    e_read(0)
    a(f"v_readlane_b32 s{sdmax}, v{vDeg}, 0", f"v_readlane_b32 s{sdmin}, v{vDeg}, 28")
    for i in range(4):
        a(f"s_waitcnt lgkmcnt({4-i})")
        gather(i)
    src_read(4)
    src_read(5)
    a("s_waitcnt lgkmcnt(2)")
    a(shift)
    e_read(1)
    a("s_mov_b64 exec, 1", f"v_mov_b32 v{vT0}, {K2_MISC}", f"v_mov_b32 v{vNxt}, 1", f"ds_add_rtn_u32 v{vNxt}, v{vT0}, v{vNxt}",
      "s_mov_b64 exec, -1")
    finish()
    a("s_waitcnt vmcnt(5)")
    for q in range(4):
        a(f"v_mfma_f32_4x4x4_16b_bf16 {vr(vQ+4*q,4)}, {vr(vI4,2)}, {vr(vZ+16+2*(q&1),2)}, 0")
    a("s_nop 3")
    a(mhi(0), *([] if OPT["nolo"] else [mlo(0)]))
    a("s_nop 9", "s_waitcnt vmcnt(3)")
    if OPT["usem4"]:
        a(m4(0, 0), m4(0, 1), m4(1, 0), m4(1, 1))
    else:
        a(smf(0))
    a("s_waitcnt lgkmcnt(0)")
    gather(4)
    gather(5)
    a(shift)
    src_read(6)
    src_read(7)
    e_read(2)
    if OPT["prio"]:
        a(f"s_cmp_lt_u32 s{sg}, 16", "s_cbranch_scc1 K2_PRX", "s_setprio 2", f"s_cmp_lt_u32 s{sg}, 24", "s_cbranch_scc1 K2_PRX",
          "s_setprio 1", f"s_cmp_lt_u32 s{sg}, 32", "s_cbranch_scc1 K2_PRX", "s_setprio 0", "K2_PRX:")
    a("s_nop 1" if OPT["prio"] else "s_nop 3")
    if STAMPS and not OPT["light"]:
        a("s_mov_b32 m0, s99", "s_add_u32 s99, s99, 1")
        a.stamp("m0")

    NP = MAXDEG // 2
    for i in range(MAXDEG):
        z = Z(i)
        p = i >> 1
        a(f"s_cmp_le_u32 s{sdmin}, {i}", f"s_cbranch_scc1 K2_OOL{i}", f"K2_S{i}:")
        ex = [f"v_exp_f32 v{vT+r}, v{z+r}" for r in range(8)]
        num_src = Z(0) if i == 1 else vNum
        if i == 0:
            upd = ["s_nop 0"] + [f"v_pk_add_f32 {vr(vDen+r,2)}, {vr(vT+r,2)}, {sr(sOne,2)}" for r in range(0, 8, 2)]
        else:
            upd = [f"v_pk_fma_f32 {vr(z+r,2)}, {vr(z+r,2)}, {vr(vDen+r,2)}, {vr(num_src+r,2)}" for r in range(0, 8, 2)]
            upd += [f"v_pk_fma_f32 {vr(vNum+r,2)}, {vr(num_src+r,2)}, {vr(vT+r,2)}, {vr(z+r,2)}" for r in range(0, 8, 2)]
            upd += [f"v_pk_fma_f32 {vr(vDen+r,2)}, {vr(vDen+r,2)}, {vr(vT+r,2)}, {vr(vDen+r,2)}" for r in range(0, 8, 2)]
        if (i & 1) == 0:
            if p + 1 < NP:
                a(mhi(p + 1), *ex[0:4], *([] if OPT["nolo"] else [mlo(p + 1)]), *ex[4:8])
            else:
                a(*ex)
            a(*upd)
        else:
            if p + 1 < NP:
                a(f"s_waitcnt vmcnt({3 if p == 0 else 2 if p + 2 < NP else 0})")
                if OPT["usem4"]:
                    a(m4(2*p+2, 0), ex[0], m4(2*p+2, 1), ex[1], m4(2*p+3, 0), ex[2], m4(2*p+3, 1), ex[3])
                else:
                    a(smf(p + 1), *ex[0:4])
            else:
                a(*ex[0:4])
            if p + 2 < NP:
                a("s_waitcnt lgkmcnt(0)")
            if p + 3 < NP:
                gather(2 * p + 6)
                gather(2 * p + 7)
            a(*ex[4:8])
            if p + 2 < NP:
                a(shift)
            if p + 4 < NP:
                src_read(2 * p + 8)
                src_read(2 * p + 9)
            if p + 3 < NP:
                e_read(p + 3)
            a(*upd)
    a("K2_FIN:")
    a("s_mov_b64 exec, -1")
    if OPT["prio"]:
        a("s_setprio 3")
    a(f"v_pk_add_f32 {vr(vT0,2)}, {vr(vDen,2)}, {vr(vDen+2,2)}", f"v_pk_add_f32 {vr(vT2,2)}, {vr(vDen+4,2)}, {vr(vDen+6,2)}")
    for r in range(0, 8, 4):
        a(f"v_pk_fma_f32 {vr(vT0,2)}, {vr(vNum+r,2)}, 0, {vr(vT0,2)} op_sel_hi:[1,0,1]")
        a(f"v_pk_fma_f32 {vr(vT2,2)}, {vr(vNum+r+2,2)}, 0, {vr(vT2,2)} op_sel_hi:[1,0,1]")
    a(f"v_pk_add_f32 {vr(vT0,2)}, {vr(vT0,2)}, {vr(vT2,2)}", f"v_mov_b32 v{vOld}, v{vOut}",
      f"v_add_f32 v{vT0}, v{vT0}, v{vT1}", f"v_readfirstlane_b32 s{sg}, v{vNxt}", f"v_cmp_ngt_f32 vcc, s{sBig}, v{vT0}")
    a("s_cbranch_vccnz K2_SAFE")
    a("K2_NEXT:")
    if STAMPS and not OPT["light"]:
        a("s_mov_b32 m0, s99", "s_add_u32 s99, s99, 1")
        a.stamp("m0")
        a("s_mov_b32 m0, s99", "s_add_u32 s99, s99, 1", f"v_writelane_b32 v31, s{sdmax}, m0")
    a(f"s_add_u32 s{sg}, s{sg}, 16", f"s_cmp_lt_u32 s{sg}, {NGRP}", "s_cbranch_scc1 K2_GROUP")
    finish()
    a.stamp_dump(sR4, 20, sw, 16)
    a("s_endpgm")

    for i in range(MAXDEG):
        a(f"K2_OOL{i}:")
        if i == 0:
            for r in range(8):
                a(f"v_mov_b32 v{vNum+r}, 0", f"v_mov_b32 v{vDen+r}, 1.0")
        if i == 1:
            for r in range(8):
                a(f"v_mov_b32 v{vNum+r}, v{Z(0)+r}")
        a(f"s_cmp_le_u32 s{sdmax}, {i}", "s_cbranch_scc1 K2_FIN")
        a(f"v_cmpx_lt_u32 vcc, {i}, v{vDeg}", "s_nop 3", f"s_branch K2_S{i}")

    a("K2_SAFE:")
    a("s_waitcnt vmcnt(0) lgkmcnt(0)", f"s_mov_b32 s{st0}, 0")
    for r in range(8):
        a(f"v_mov_b32 v{vNum+r}, 0")
    a("K2_SAFE_L:")
    a(f"s_cmp_ge_u32 s{st0}, s{sdmax}", "s_cbranch_scc1 K2_SAFE_E")
    a(f"v_cmpx_lt_u32 vcc, s{st0}, v{vDeg}")
    src_read(0)
    e_read(0)
    a("s_waitcnt lgkmcnt(0)")
    gather(0)
    a(shift, f"v_add_u32 v{vEll}, 4, v{vEll}", f"v_add_u32 v{vEe}, 4, v{vEe}", "s_nop 1")
    a(mhi(0), mlo(0), "s_nop 9", "s_waitcnt vmcnt(0)", m4(0, 0), m4(0, 1), "s_nop 4")
    for r in range(8):
        a(f"v_exp_f32 v{vT+r}, v{vZ+r}")
    for r in range(0, 8, 2):
        a(f"v_pk_add_f32 {vr(vT+r,2)}, {vr(vT+r,2)}, {sr(sOne,2)}")
    for r in range(8):
        a(f"v_rcp_f32 v{vT+r}, v{vT+r}")
    a("s_nop 0")
    for r in range(0, 8, 2):
        a(f"v_pk_fma_f32 {vr(vNum+r,2)}, {vr(vZ+r,2)}, {vr(vT+r,2)}, {vr(vNum+r,2)}")
    a(f"s_add_u32 s{st0}, s{st0}, 1", "s_branch K2_SAFE_L")
    a("K2_SAFE_E:", "s_mov_b64 exec, -1")
    for r in range(8):
        a(f"v_mov_b32 v{vDen+r}, 1.0")
    a("s_branch K2_NEXT")

    sDst, sSrc, sE = sR4, sPf, sW1
    snode, sbase, sdeg, sbit, ssrc, se, sm = sM, sM + 1, sM + 2, sM + 3, sM + 4, sM + 5, sM + 6
    vc, vq, vacc, vd, vs, ve, voff, vz = 32, 33, 34, 36, 40, 44, 48, 49
    a("K2_SLOW:")
    a(f"v_and_b32 v{vT0}, 1, v{vLane}", f"v_lshlrev_b32 v{vT0}, 6, v{vT0}", f"v_and_b32 v{vT1}, 62, v{vLane}",
      f"v_add_u32 v{vT0}, v{vT0}, v{vT1}", f"s_lshl_b32 s{st1}, s{sk}, 7")
    a(f"buffer_load_ushort v{vc}, v{vT0}, {sr(sW1,4)}, s{st1} offen", "s_waitcnt vmcnt(0)",
      f"v_lshlrev_b32 v{vc}, 16, v{vc}", f"v_mul_f32 v{vc}, s{sK}, v{vc}")
    a.srd(sDst, 10, 0, E * 4)
    a.srd(sSrc, 8, 0, E * 4)
    a.srd(sE, 6, 0, E * 2)
    a(f"v_lshlrev_b32 v{vIdx+1}, 1, v{vLane}", f"v_lshlrev_b32 v{vT2}, 4, v{vLane}", f"v_lshlrev_b32 v{vT3}, 3, v{vLane}")
    a("K2_SLOW_N:")
    a(f"s_cmp_ge_u32 s{sg}, s{scnt}", "s_cbranch_scc1 K2_END")
    a(f"s_mul_i32 s{snode}, s{srng}, {RNG}", f"s_add_u32 s{snode}, s{snode}, s{sg}", f"s_lshl_b32 s{st0}, s{sg}, 7",
      f"v_add_u32 v{voff}, s{st0}, v{vIdx+1}", f"buffer_load_ushort v{vq}, v{voff}, {sr(sQ,4)}, 0 offen",
      f"v_mov_b32 v{vacc}, 0", f"s_mov_b32 s{sbase}, 0", f"s_mov_b32 s{sdeg}, 0", "s_waitcnt vmcnt(0)",
      f"v_lshlrev_b32 v{vq}, 16, v{vq}")
    a("K2_SLOW_C:")
    a(f"s_lshl_b32 s{st0}, s{sbase}, 2", f"s_lshl_b32 s{st1}, s{sbase}, 1")
    a(f"buffer_load_dwordx4 {vr(vd,4)}, v{vT2}, {sr(sDst,4)}, s{st0} offen",
      f"buffer_load_dwordx4 {vr(vs,4)}, v{vT2}, {sr(sSrc,4)}, s{st0} offen",
      f"buffer_load_dwordx2 {vr(ve+2,2)}, v{vT3}, {sr(sE,4)}, s{st1} offen", "s_waitcnt vmcnt(0)")
    a(f"v_lshlrev_b32 v{ve}, 16, v{ve+2}", f"v_and_b32 v{ve+1}, 0xffff0000, v{ve+2}",
      f"v_lshlrev_b32 v{ve+2}, 16, v{ve+3}", f"v_and_b32 v{ve+3}, 0xffff0000, v{ve+3}")
    for u in range(4):
        a(f"v_cmp_eq_u32 {sr(sm,2)}, s{snode}, v{vd+u}")
        a(f"K2_SLOW_M{u}:", f"s_cmp_eq_u64 {sr(sm,2)}, 0", f"s_cbranch_scc1 K2_SLOW_X{u}")
        a(f"s_ff1_i32_b64 s{sbit}, {sr(sm,2)}", f"s_bitset0_b64 {sr(sm,2)}, s{sbit}", f"s_add_u32 s{sdeg}, s{sdeg}, 1",
          f"v_readlane_b32 s{ssrc}, v{vs+u}, s{sbit}", f"v_readlane_b32 s{se}, v{ve+u}, s{sbit}", "s_nop 1",
          f"v_mov_b32 v{vIdx}, s{ssrc}", f"buffer_load_ushort v{vz}, {vr(vIdx,2)}, {sr(sP,4)}, 0 idxen offen",
          f"v_fma_f32 v{vT0}, s{se}, v{vc}, v{vq}", "s_waitcnt vmcnt(0)",
          f"v_lshlrev_b32 v{vz}, 16, v{vz}", f"v_add_f32 v{vz}, v{vz}, v{vT0}", f"v_exp_f32 v{vT0}, v{vz}", "s_nop 0",
          f"v_add_f32 v{vT0}, 1.0, v{vT0}", f"v_rcp_f32 v{vT0}, v{vT0}", "s_nop 0",
          f"v_fma_f32 v{vacc}, v{vz}, v{vT0}, v{vacc}", f"s_branch K2_SLOW_M{u}")
        a(f"K2_SLOW_X{u}:")
    a(f"s_add_u32 s{sbase}, s{sbase}, 256", f"s_cmp_lt_u32 s{sbase}, {E}", "s_cbranch_scc1 K2_SLOW_C")
    a(f"v_cvt_pk_bf16_f32 v{vacc}, v{vacc}, v{vacc}", f"v_cvt_f32_u32 v{vT0}, s{sdeg}", f"s_lshl_b32 s{st0}, s{sg}, 2",
      f"v_mov_b32 v{vT1}, s{st0}")
    a(f"buffer_store_short v{vacc}, v{voff}, {sr(sS,4)}, 0 offen", f"buffer_store_dword v{vT0}, v{vT1}, {sr(sDeg,4)}, 0 offen")
    a(f"s_add_u32 s{sg}, s{sg}, 16", "s_waitcnt vmcnt(0)", "s_branch K2_SLOW_N")
    a("K2_END:", "s_endpgm")
    return a.lines, descriptor("k2_kernel", nv, 102 if STAMPS else 96)


K3_LDS = 81920


def k3():
    a = Asm()
    header(a, "k3_kernel")
    sS, sF, sDeg, sB, sO = 24, 28, 32, 36, 40
    sw, stile, scg, st0, st1, sK, sn, sSo = 44, 45, 46, 47, 48, 50, 52, 53
    vLane, vT0, vT1, vT2 = 1, 2, 3, 4
    vDm, vBo, vSt, vB2 = 5, 6, 7, 8
    vAad = 10
    vDg = 12
    vA = 32
    vAcc = 72
    vB = 112
    nv = vB + 128
    a("s_cmp_ge_u32 s2, 256", "s_cbranch_scc1 K3_END")
    a(f"s_lshr_b32 s{st0}, s2, 4", f"s_lshl_b32 s{st0}, s{st0}, 3", f"s_and_b32 s{stile}, s2, 7",
      f"s_add_u32 s{stile}, s{stile}, s{st0}", f"s_cmp_ge_u32 s{stile}, 125", "s_cbranch_scc1 K3_END")
    a.stamp_setup(nv, 2)
    code_prefetch(a, "k3_kernel", "K3_END", 2, 2, vA, "K3")
    a("s_load_dwordx4 s[4:7], s[0:1], 56", "s_load_dwordx2 s[20:21], s[0:1], 80")
    a(f"v_lshrrev_b32 v{vT0}, 6, v0", f"v_and_b32 v{vLane}, 63, v0", f"v_readfirstlane_b32 s{sw}, v{vT0}")
    a(f"s_bfe_u32 s{scg}, s2, 0x10003", f"s_lshl_b32 s{scg}, s{scg}, 2", f"s_add_u32 s{scg}, s{scg}, s{sw}")
    a(f"s_and_b32 s{st0}, s{sw}, 1", f"s_lshl_b32 s{st0}, s{st0}, 2", f"v_lshrrev_b32 v{vT0}, 4, v{vLane}",
      f"v_add_u32 v{vT1}, s{st0}, v{vT0}", f"v_and_b32 v{vT2}, 7, v{vLane}", f"v_xor_b32 v{vT1}, v{vT1}, v{vT2}",
      f"v_lshlrev_b32 v{vT1}, 4, v{vT1}", f"v_lshrrev_b32 v{vT2}, 3, v{vLane}", f"v_lshl_add_u32 v{vDm}, v{vT2}, 7, v{vT1}")
    a(f"v_lshlrev_b32 v{vBo}, 4, v{vLane}")
    a(f"v_and_b32 v{vT1}, 15, v{vLane}", f"v_lshlrev_b32 v{vT2}, 2, v{vT1}", f"v_lshl_add_u32 v{vSt}, v{vT0}, 11, v{vT2}")
    a(f"v_lshrrev_b32 v{vAad}, 1, v{vT1}", f"v_xor_b32 v{vAad}, v{vAad}, v{vT0}", f"v_lshlrev_b32 v{vAad}, 4, v{vAad}",
      f"v_lshl_add_u32 v{vAad}, v{vT1}, 7, v{vAad}", f"v_xor_b32 v{vAad+1}, 64, v{vAad}", f"v_lshlrev_b32 v{vT0}, 4, v{vT0}")
    a(f"s_mul_i32 s{sSo}, s{stile}, 10240")
    a("s_waitcnt lgkmcnt(0)")
    a.srd(sDeg, 20, DEG_OFF, N * 4)
    a.srd(sB, 4, 0, 512)
    a(f"s_mul_i32 s{st0}, s{stile}, 320", f"s_lshl_b32 s{st1}, s{scg}, 6")
    for rt in range(5):
        a.vmem(f"buffer_load_dwordx4 {vr(vDg+4*rt,4)}, v{vT0}, {sr(sDeg,4)}, s{st0} offen offset:{64*rt}", "deg")
    a.vmem(f"buffer_load_dword v{vB2}, v{vT2}, {sr(sB,4)}, s{st1} offen", "deg")
    a.srd(sS, 20, S_OFF, 8 * SS)
    a.srd(sF, 20, W2F_OFF, 262144)
    a.srd(sO, 6, 0, N * 512)
    srot, sFo = 54, 55
    a(f"s_bfe_u32 s{srot}, s2, 0x20004" if OPT["rot"] else f"s_mov_b32 s{srot}, 0", f"s_lshl_b32 s{sFo}, s{scg}, 15")

    def load_ops(j):
        ops = [[f"s_add_u32 s{sn}, s{srot}, {j}", f"s_and_b32 s{sn}, s{sn}, 3", f"s_lshl_b32 s{sK}, s{sn}, 13",
                f"s_add_u32 s{sK}, s{sK}, s{sFo}", f"s_mul_i32 s{sn}, s{sn}, {2*SS}", f"s_add_u32 s{sn}, s{sn}, s{sSo}"]]
        for m in range(5):
            ops.append([f"s_add_u32 s{st1}, s{sw}, {4*m}", f"s_cmp_ge_u32 s{st1}, 10", f"s_cselect_b32 s{st0}, {SS - 10240}, 0",
                        f"s_lshl_b32 s{st1}, s{st1}, 10", f"s_add_u32 m0, s{st1}, {j*20480}", f"s_add_u32 s{st0}, s{st0}, s{st1}",
                        f"s_add_u32 s{st0}, s{st0}, s{sn}",
                        ("vm", f"buffer_load_dwordx4 v{vDm}, {sr(sS,4)}, s{st0} offen lds")])
        for f in range(8):
            n = 8 * j + f
            op = [f"s_add_u32 s{sK}, s{sK}, 4096"] if f == 4 else []
            ops.append(op + [("vm", f"buffer_load_dwordx4 {vr(vB+4*n,4)}, v{vBo}, {sr(sF,4)}, s{sK} offen offset:{1024*(f % 4)}")])
        return ops

    def emit(op, j):
        for x in op:
            if isinstance(x, tuple):
                a.vmem(x[1], f"st{j}")
            else:
                a(x)
    for op in load_ops(0):
        emit(op, 0)
    a.stamp()
    for op in load_ops(1):
        emit(op, 1)
    a.stamp()
    a.wait(vm="deg")
    a(f"s_mov_b32 s{st0}, {NLOG2E}")
    a(f"v_and_b32 v{vB2+1}, 0xffff0000, v{vB2}", f"v_lshlrev_b32 v{vB2}, 16, v{vB2}",
      f"v_mul_f32 v{vB2}, s{st0}, v{vB2}", f"v_mul_f32 v{vB2+1}, s{st0}, v{vB2+1}")
    for rt in range(5):
        for b in range(2):
            for r in range(0, 4, 2):
                a(f"v_pk_mul_f32 {vr(vAcc+8*rt+4*b+r,2)}, {vr(vDg+4*rt+r,2)}, {vr(vB2,2)} op_sel:[0,{b}] op_sel_hi:[1,{b}]")

    def a_reads(s):
        for rt in range(5):
            off = (s >> 1) * 10240 + rt * 2048
            base = vAad + (s & 1)
            if off > 65535:
                base, off = vT0 + (s & 1), off - 40960
            a.lds(f"ds_read_b128 {vr(vA + 20*(s & 1) + 4*rt, 4)}, v{base} offset:{off}", f"a{s}_{rt}")
    a(f"v_add_u32 v{vT0}, 40960, v{vAad}", f"v_add_u32 v{vT1}, 40960, v{vAad+1}")
    for j in range(4):
        a.wait(vm=f"st{j}")
        a("s_barrier")
        a.stamp()
        a_reads(4 * j)
        pend = load_ops(j + 2) if j + 2 < 4 else []
        for s in range(4 * j, 4 * j + 4):
            if s + 1 < 4 * j + 4:
                a_reads(s + 1)
            for rt in range(5):
                a.wait(lg=f"a{s}_{rt}")
                for b in range(2):
                    acc = vAcc + 8 * rt + 4 * b
                    a(f"v_mfma_f32_16x16x32_bf16 {vr(acc,4)}, {vr(vA + 20*(s & 1) + 4*rt, 4)}, {vr(vB + 4*(2*s+b), 4)}, {vr(acc,4)}")
                if pend:
                    emit(pend.pop(0), j + 2)
        assert not pend
    a(f"s_mov_b32 s{sK}, {NLN2}", f"s_mov_b32 s{sK+1}, {NLN2}")
    a(f"s_mul_i32 s{st0}, s{stile}, {80*512}", f"s_lshl_b32 s{st1}, s{scg}, 6", f"s_add_u32 s{sSo}, s{st0}, s{st1}")
    a.stamp()
    a("s_nop 1")
    for rt in range(5):
        acc = vAcc + 8 * rt
        if rt == 4:
            a("s_nop 0")
        for r in range(0, 8, 2):
            a(f"v_pk_mul_f32 {vr(acc+r,2)}, {vr(acc+r,2)}, {sr(sK,2)}")
        for r in range(4):
            a(f"v_cvt_pk_bf16_f32 v{acc+r}, v{acc+r}, v{acc+4+r}")
        a(f"s_add_u32 s{st0}, s{sSo}, {rt*16*512}")
        for r in range(4):
            a(f"buffer_store_dword v{acc+r}, v{vSt}, {sr(sO,4)}, s{st0} offen offset:{512*r}{' sc1' if OPT['sc3'] else ''}")
    a.stamp_dump(sS, 20, sw, 4)
    a("K3_END:", "s_endpgm")
    return a.lines, descriptor("k3_kernel", nv + 1 if STAMPS else nv, 102 if STAMPS else 64)


def k4():
    a = Asm()
    header(a, "k4_kernel")
    a("s_endpgm")
    return a.lines, descriptor("k4_kernel", 8, 16)


def main(path):
    head = [
        "; Edge-featured MPNN layer: out = segment_sum(silu([x[src], x[dst], e] @ w1 + b1) @ w2 + b2, dst)",
        "; k1: P = x@w1[0:256], Q = x@w1[256:512] + b1 (scaled by -log2e), edge partition by dst range, w2 re-layout",
        "; k2: per 64-channel slice, S[n] = sum over in-edges of z/(1+2^z), z = P[src] + Q[n] + e*c",
        "; k3: out = -ln2 * (S @ w2) + deg * b2",
        "; kernarg: x, e_attr, src, dst, w1, b1, w2, b2, out, debug, ws (8 bytes each)",
        f"; @launch kernel=k1_kernel grid=(256,1,1) block=({320 if OPT['helper'] else 256},1,1) lds={K1_LDS}",
        f"; @launch kernel=k2_kernel grid=(256,1,1) block=(1024,1,1) lds={K2_LDS}",
        f"; @launch kernel=k3_kernel grid=(256,1,1) block=(256,1,1) lds={K3_LDS}",
        '.amdgcn_target "amdgcn-amd-amdhsa--gfx950"',
        ".text",
    ]
    if OPT["empty"]:
        head.insert(8, "; @launch kernel=k4_kernel grid=(256,1,1) block=(64,1,1) lds=0")
    body, desc = [], []
    for f in (k1, k2, k3) + ((k4,) if OPT["empty"] else ()):
        b, d = f()
        body += b
        desc += d
    out = head + body + ['.section .rodata,"a"'] + desc
    open(path, "w").write("\n".join(out) + "\n")


if __name__ == "__main__":
    if "--stamps" in sys.argv:
        STAMPS = True
        sys.argv.remove("--stamps")
    for arg in [x for x in sys.argv[1:] if "=" in x]:
        key, val = arg.split("=")
        assert key in OPT, key
        OPT[key] = int(val)
        sys.argv.remove(arg)
    main(sys.argv[1] if len(sys.argv) > 1 else "standalone__edge_featured_mpnn_mpnn__graph.s")
```

```python
import struct
import sys

N, E, D, H = 10000, 160000, 256, 512
TILE1, NT1 = 192, 53
NR = TILE1 * NT1
SS = NR * 128
P_OFF, Q_OFF, S_OFF = 0, 8 * SS, 16 * SS
RNG = 313
NCHUNK, CHUNK, CAP = 32, 5000, 224
R4BLK, R2BLK = NCHUNK * CAP * 4, NCHUNK * CAP * 2
R4_OFF = 24 * SS
R2_OFF = R4_OFF + 32 * R4BLK
DEG_OFF = R2_OFF + 32 * R2BLK
W2F_OFF = (DEG_OFF + NR * 4 + 1023) // 1024 * 1024
WS_END = W2F_OFF + 262144
MAXDEG = 48
ELLS = (MAXDEG + 1) * 4


def fbits(x):
    return struct.unpack("<I", struct.pack("<f", x))[0]


NLOG2E = fbits(-1.4426950408889634)
NLN2 = fbits(-0.6931471805599453)

assert all((d * 13401) >> 22 == d // RNG for d in range(10016))
assert all((q * 2341) >> 17 == q // 56 for q in range(1792))
assert all((q * 2341) >> 16 == q // 28 for q in range(1024))
assert all((n * 205) >> 11 == n // 10 for n in range(80))


STAMPS = False
OPT = dict(sc1=1, sc3=1, prio=1, empty=0, ipf=1, rot=1, pf=1, light=0, fine=0, la=6, pf0=2, x0pos=0, xrot=1, x1early=0, xspread=1, helper=0, ntx=0, ntw=0, nte=0, nolo=1, usem4=1, dup=0, rep=0, pfq=0, pfw=1)
STAMP_OFF = 48 << 20


class Asm:
    def stamp_setup(self, vreg, kidx):
        self.st_v, self.st_n, self.st_k = vreg, 0, kidx
        if STAMPS:
            self(f"v_mov_b32 v{vreg}, 0", "s_memrealtime s[100:101]", "s_waitcnt lgkmcnt(0)", f"v_writelane_b32 v{vreg}, s100, 29")
            self.stamp()

    def stamp(self, idx=None):
        if STAMPS and not (OPT["light"] and idx != 27 and self.st_n > 0):
            if idx is None:
                idx = self.st_n
                self.st_n += 1
            self("s_waitcnt lgkmcnt(0)", "s_memtime s[100:101]", "s_waitcnt lgkmcnt(0)", f"v_writelane_b32 v{self.st_v}, s100, {idx}")
            self.lg = []

    def stamp_dump(self, srd, wsreg, swave, nwaves, tmp=2):
        if not STAMPS:
            return
        self("s_waitcnt vmcnt(0)")
        self.stamp(27)
        self("s_memrealtime s[100:101]", "s_waitcnt lgkmcnt(0)", f"v_writelane_b32 v{self.st_v}, s100, 28")
        self("s_getreg_b32 s3, hwreg(HW_REG_HW_ID)", f"v_writelane_b32 v{self.st_v}, s3, 30")
        self("s_getreg_b32 s3, hwreg(HW_REG_XCC_ID)", f"v_writelane_b32 v{self.st_v}, s3, 31")
        self.srd(srd, wsreg, STAMP_OFF + (self.st_k << 20), 1 << 20)
        self(f"s_mul_i32 s3, s2, {nwaves}", f"s_add_u32 s3, s3, s{swave}", "s_lshl_b32 s3, s3, 7", "s_mov_b64 exec, -1",
             f"v_and_b32 v{tmp}, 63, v0", f"v_lshlrev_b32 v{tmp}, 2, v{tmp}", "s_mov_b32 exec_hi, 0",
             f"buffer_store_dword v{self.st_v}, v{tmp}, s[{srd}:{srd+3}], s3 offen")

    def __init__(self):
        self.lines = []
        self.vm = []
        self.lg = []

    def __call__(self, *ls):
        for l in ls:
            self.lines.append(l if l.endswith(":") else "    " + l)

    def vmem(self, line, tag=None):
        self(line)
        self.vm.append(tag)

    def lds(self, line, tag=None):
        self(line)
        self.lg.append(tag)

    @staticmethod
    def _need(q, tags):
        last = -1
        for i, t in enumerate(q):
            if t in tags:
                last = i
        return None if last < 0 else len(q) - 1 - last

    def wait(self, vm=None, lg=None):
        parts = []
        if vm is not None:
            n = 0 if vm == "all" else self._need(self.vm, vm if isinstance(vm, (list, tuple, set)) else [vm])
            if n is not None:
                n = min(n, 63)
                parts.append(f"vmcnt({n})")
                self.vm = self.vm[len(self.vm) - n:] if n else []
        if lg is not None:
            n = 0 if lg == "all" else self._need(self.lg, lg if isinstance(lg, (list, tuple, set)) else [lg])
            if n is not None:
                n = min(n, 15)
                parts.append(f"lgkmcnt({n})")
                self.lg = self.lg[len(self.lg) - n:] if n else []
        if parts:
            self("s_waitcnt " + " ".join(parts))

    def srd(self, s, base, off, size, stride=0):
        if off == 0:
            self(f"s_mov_b32 s{s}, s{base}", f"s_and_b32 s{s+1}, s{base+1}, 0xffff")
        else:
            self(f"s_add_u32 s{s}, s{base}, {off}", f"s_addc_u32 s{s+1}, s{base+1}, 0",
                 f"s_and_b32 s{s+1}, s{s+1}, 0xffff")
        if stride:
            self(f"s_or_b32 s{s+1}, s{s+1}, {stride << 16}")
        self(f"s_mov_b32 s{s+2}, {size}", f"s_mov_b32 s{s+3}, 0x20000")


def wt():
    return " sc1" if OPT["sc1"] else ""


def code_prefetch(a, first, last, wshift, vtmp, vsink, tag):
    if not OPT["ipf"]:
        return
    a(f"s_getpc_b64 s[22:23]", f"{tag}_PC:", f"s_sub_u32 s22, s22, {tag}_PC-{first}", "s_subb_u32 s23, s23, 0",
      "s_lshr_b32 s3, s2, 3", f"s_lshl_b32 s3, s3, {wshift + 10}", f"v_lshlrev_b32 v{vtmp}, 4, v0", f"v_add_u32 v{vtmp}, s3, v{vtmp}",
      f"v_cmp_gt_u32 vcc, {last}-{first}-16, v{vtmp}", "s_and_saveexec_b64 s[4:5], vcc", f"s_cbranch_execz {tag}_PCX",
      f"global_load_dwordx4 {vr(vsink,4)}, v{vtmp}, s[22:23]", f"{tag}_PCX:", "s_mov_b64 exec, -1")


def vr(a, n=1):
    return f"v{a}" if n == 1 else f"v[{a}:{a+n-1}]"


def sr(a, n=1):
    return f"s{a}" if n == 1 else f"s[{a}:{a+n-1}]"


def header(a, name):
    a.lines += [f".globl {name}", ".p2align 8", f".type {name},@function", f"{name}:"]


def descriptor(name, nv, ns):
    acc = (nv + 3) // 4 * 4
    return [".p2align 6", f".amdhsa_kernel {name}", f"  .amdhsa_next_free_vgpr {nv}",
            f"  .amdhsa_next_free_sgpr {ns}", f"  .amdhsa_accum_offset {acc}",
            "  .amdhsa_group_segment_fixed_size 0", "  .amdhsa_kernarg_size 88",
            "  .amdhsa_user_sgpr_count 2", "  .amdhsa_user_sgpr_kernarg_segment_ptr 1",
            "  .amdhsa_system_sgpr_workgroup_id_x 1", "  .amdhsa_float_denorm_mode_32 3",
            ".end_amdhsa_kernel"]


K1_REG = 40960
K1_LDS = 4 * K1_REG
K1_CNT = 0
K1_I16 = 256
K1_I32 = K1_I16 + 32 * CAP * 2


def k1():
    a = Asm()
    header(a, "k1_kernel")
    sX, sW, sO, sB = 24, 28, 32, 36
    sw, stile, su, st0, st1, sWB, sXo, sOo, sK, sMask, sRB, sq, sWo, sWn, sWc = 56, 57, 58, 59, 60, 61, 62, 63, 64, 66, 67, 68, 69, 70, 71
    vLane, vT0, vT1, vT2 = 1, 2, 3, 4
    vAad = 6
    vTr = 14
    vXd = 16
    vWd, vSt = 20, 21
    vBias = 22
    vA = 24
    vAcc = 40
    vW = 104
    vWx = vW + 128
    nv = vWx + 3

    a("s_cmp_ge_u32 s2, 256", "s_cbranch_scc1 K1_END")
    a.stamp_setup(5, 0)
    code_prefetch(a, "k1_kernel", "K3_END" if OPT["ipf"] == 1 else "K1_END", 2, 2, vW + 124, "K1")
    a("s_load_dwordx16 s[4:19], s[0:1], 0", "s_load_dwordx2 s[20:21], s[0:1], 80")
    a(f"v_lshrrev_b32 v{vT0}, 6, v0", f"v_and_b32 v{vLane}, 63, v0", f"v_readfirstlane_b32 s{sw}, v{vT0}")
    if OPT["helper"]:
        a(f"s_cmp_eq_u32 s{sw}, 4", "s_cbranch_scc1 K1_HELP")
    a(f"s_lshr_b32 s{sq}, s2, 3", f"s_cmp_ge_u32 s{sq}, 28", "s_cbranch_scc1 K1_SORT")
    a(f"s_and_b32 s{su}, s{sq}, 3", f"s_lshl_b32 s{su}, s{su}, 2", f"s_lshr_b32 s{sq}, s{sq}, 2",
      f"s_lshl_b32 s{st0}, s{sq}, 3", f"s_and_b32 s{stile}, s2, 7", f"s_add_u32 s{stile}, s{stile}, s{st0}",
      f"s_add_u32 s{su}, s{su}, s{sw}", f"s_cmp_ge_u32 s{stile}, {NT1}", "s_cbranch_scc1 K1_PREP")

    a(f"s_mul_i32 s{sRB}, s{sw}, {K1_REG}", f"s_add_u32 s{sWB}, s{sRB}, 8192")
    a(f"s_mov_b32 s{sK}, {NLOG2E}", f"s_mov_b32 s{sK+1}, {NLOG2E}")
    a(f"s_lshl_b32 s{sq}, s{sq}, 2" if OPT["rot"] else f"s_mov_b32 s{sq}, 0")
    a(f"v_lshrrev_b32 v{vT0}, 5, v{vLane}", f"s_lshl_b32 s{st0}, s{sw}, 3", f"v_add_u32 v{vT0}, s{st0}, v{vT0}",
      f"v_and_b32 v{vT1}, 31, v{vLane}")
    for m in range(4):
        a(f"v_add_u32 v{vT2}, {2*m}, v{vT0}", f"v_and_b32 v{vXd+m}, 15, v{vT2}", f"v_xor_b32 v{vXd+m}, v{vXd+m}, v{vT1}",
          f"v_add_u32 v{vXd+m}, s{sq}, v{vXd+m}", f"v_and_b32 v{vXd+m}, 31, v{vXd+m}",
          f"v_lshlrev_b32 v{vXd+m}, 4, v{vXd+m}", f"v_lshl_add_u32 v{vXd+m}, v{vT0}, 9, v{vXd+m}")
    a(f"s_mul_i32 s{sXo}, s{stile}, {TILE1*512}")
    sJ = 40
    a(f"s_lshr_b32 s{sJ}, s{su}, 2" if OPT["xrot"] else f"s_mov_b32 s{sJ}, 0")
    for j in range(1, TILE1 // 32):
        a(f"s_add_u32 s{sJ+j}, s{sJ+j-1}, 1", f"s_cmp_eq_u32 s{sJ+j}, {TILE1 // 32}", f"s_cselect_b32 s{sJ+j}, 0, s{sJ+j}")
    a(f"v_lshrrev_b32 v{vT0}, 3, v{vLane}", f"v_and_b32 v{vT1}, 7, v{vLane}", f"v_and_b32 v{vT2}, 16, v{vLane}",
      f"v_lshrrev_b32 v{vT2}, 2, v{vT2}", f"v_xor_b32 v{vT1}, v{vT1}, v{vT2}", f"v_lshlrev_b32 v{vT1}, 4, v{vT1}",
      f"v_lshl_add_u32 v{vWd}, v{vT0}, 10, v{vT1}")
    for i in range(1, 4):
        a(f"v_add_u32 v{vWx+i-1}, {7168*i}, v{vWd}")
    a(f"s_lshr_b32 s{st0}, s{su}, 3", f"s_lshl_b32 s{st0}, s{st0}, 18", f"s_and_b32 s{sMask}, s{su}, 7",
      f"s_lshl_b32 s{sMask}, s{sMask}, 7", f"s_add_u32 s{sWo}, s{st0}, s{sMask}", f"s_lshl_b32 s{sWn}, s{sq}, 13")
    a(f"v_and_b32 v{vT0}, 31, v{vLane}", f"v_lshrrev_b32 v{vT1}, 3, v{vT0}", f"v_mul_u32_u24 v{vAad}, {K1_REG}, v{vT1}",
      f"v_and_b32 v{vT1}, 7, v{vT0}", f"v_lshl_add_u32 v{vAad}, v{vT1}, 9, v{vAad}",
      f"v_lshrrev_b32 v{vT1}, 5, v{vLane}", f"v_and_b32 v{vT2}, 15, v{vLane}", f"v_xor_b32 v{vT2}, v{vT2}, v{vT1}",
      f"v_lshl_add_u32 v{vAad}, v{vT2}, 4, v{vAad}")
    for s in range(1, 8):
        a(f"v_xor_b32 v{vAad+s}, {32*s}, v{vAad}")
    a(f"v_lshlrev_b32 v{vSt}, 9, v{vT1}", f"v_lshl_add_u32 v{vSt}, v{vT0}, 2, v{vSt}")
    a(f"v_lshlrev_b32 v{vTr}, 10, v{vT1}", f"v_bfe_u32 v{vT2}, v{vLane}, 2, 2", f"v_lshl_add_u32 v{vTr}, v{vT2}, 7, v{vTr}",
      f"v_bfe_u32 v{vT2}, v{vLane}, 3, 1", f"v_lshl_add_u32 v{vTr}, v{vT2}, 6, v{vTr}",
      f"v_bfe_u32 v{vT2}, v{vLane}, 4, 1", f"v_lshl_add_u32 v{vTr}, v{vT2}, 5, v{vTr}",
      f"v_and_b32 v{vT2}, 3, v{vLane}", f"v_lshl_add_u32 v{vTr}, v{vT2}, 3, v{vTr}",
      f"v_add_u32 v{vTr}, s{sWB}, v{vTr}", f"v_xor_b32 v{vTr+1}, 64, v{vTr}", f"v_lshlrev_b32 v{vT0}, 1, v{vT0}")
    a(f"s_mul_i32 s{sOo}, s{su}, {SS}", f"s_mul_i32 s{st0}, s{stile}, {TILE1*128}", f"s_add_u32 s{sOo}, s{sOo}, s{st0}")
    a("s_waitcnt lgkmcnt(0)")
    a.srd(sX, 4, 0, N * 512)
    a.srd(sW, 12, 0, 513 * 1024)

    def x_dma(j):
        a(f"s_add_u32 m0, s{sRB}, {j*4096}", f"s_lshl_b32 s{st0}, s{sJ+j}, 14", f"s_add_u32 s{st0}, s{st0}, s{sXo}")
        for m in range(4):
            a.vmem(f"buffer_load_dwordx4 v{vXd+m}, {sr(sX,4)}, s{st0} offen offset:{1024*m}{' nt' if OPT['ntx'] else ''} lds", f"x{j}")

    def w_dma(s):
        if s % 2 == 0:
            a(f"s_add_u32 m0, s{sWB}, {s*2048}", f"s_add_u32 s{sWc}, s{sWo}, s{sWn}")
        elif OPT["x0pos"] == s:
            a(f"s_add_u32 m0, s{sWB}, {(s-1)*2048}", "s_nop 0")
        for i in (2 * (s % 2), 2 * (s % 2) + 1):
            reg = vWd if i == 0 else vWx + i - 1
            a.vmem(f"buffer_load_dwordx4 v{reg}, {sr(sW,4)}, s{sWc} offen offset:{1024*i}{' nt' if OPT['ntw'] else ''} lds", f"w{s}")
        if s % 2 == 1:
            a(f"s_add_u32 s{sWn}, s{sWn}, 32768", f"s_and_b32 s{sWn}, s{sWn}, 0x3ffff")

    LA = OPT["la"]
    a.stamp()
    for s in range(LA):
        if s == OPT["x0pos"]:
            x_dma(0)
        w_dma(s)
    if OPT["x1early"]:
        x_dma(1)
    a.srd(sO, 20, 0, 16 * SS)
    if OPT["dup"]:
        a.srd(48, 20, 64 << 20, 16 * SS)
    a.srd(sB, 14, 0, 1024)
    a(f"s_cmp_ge_u32 s{su}, 8", f"s_cselect_b32 s{sB+2}, s{sB+2}, 0")
    a.stamp()

    def wfrag(s, b):
        return vW + (s * 2 + b) * 4

    def a_read(j, s):
        a.lds(f"ds_read_b128 {vr(vA + 4*((16*j+s) % 4), 4)}, v{vAad + (s & 7)} offset:{4096*j + 256*(s >> 3)}", f"a{j}_{s}")

    def w_read(s):
        a.wait(vm=f"w{s}")
        for b in range(2):
            for q in range(2):
                a.lds(f"ds_read_b64_tr_b16 {vr(wfrag(s, b) + 2*q, 2)}, v{vTr+b} offset:{s*2048 + q*512}", f"t{s}")

    def mfma(j, s, b):
        acc = vAcc + 32 * (j & 1) + 16 * b
        c = "0" if s == 0 else vr(acc, 16)
        a(f"v_mfma_f32_32x32x16_bf16 {vr(acc,16)}, {vr(vA + 4*((16*j+s) % 4), 4)}, {vr(wfrag(s, b), 4)}, {c}")

    def epilogue_ops(j):
        acc = vAcc + 32 * (j & 1)
        ops = [("s", f"s_lshl_b32 s{st1}, s{sJ+j}, 12"), ("s", f"s_add_u32 s{st1}, s{st1}, s{sOo}")]
        for r in range(0, 16, 2):
            for rr in (r, r + 1):
                ops.append(("v", f"v_fma_f32 v{acc+rr}, v{acc+rr}, s{sK}, v{vBias}"))
                ops.append(("v", f"v_fma_f32 v{acc+16+rr}, v{acc+16+rr}, s{sK}, v{vBias+1}"))
            for rr in (r, r + 1):
                ops.append(("v", f"v_cvt_pk_bf16_f32 v{acc+rr}, v{acc+rr}, v{acc+16+rr}"))
            for rr in (r, r + 1):
                ops.append(("m", f"buffer_store_dword v{acc+rr}, v{vSt}, {sr(sO,4)}, s{st1} offen offset:{(8*(rr>>2) + (rr&3))*128}{wt()}"))
        return ops

    def emit_op(op):
        if op[0] == "m":
            a.vmem(op[1], "st")
            if OPT["dup"]:
                a.vmem(op[1].replace(sr(sO, 4), sr(48, 4)), "st")
        else:
            a(op[1])

    NJ = TILE1 // 32
    a.wait(vm="x0")
    a("s_barrier")
    a.stamp()
    PF0 = OPT["pf0"]
    for s in range(PF0):
        w_read(s)
        a_read(0, s)
    for s in range(16):
        if s + PF0 < 16:
            w_read(s + PF0)
            a_read(0, s + PF0)
        a.wait(lg=[f"t{s}", f"a0_{s}"])
        mfma(0, s, 0)
        if s + LA < 16:
            w_dma(s + LA)
        elif s + LA == 16:
            if not OPT["x1early"]:
                x_dma(1)
            a.vmem(f"buffer_load_ushort v{vBias}, v{vT0}, {sr(sB,4)}, s{sMask} offen", "x1")
            a.vmem(f"buffer_load_ushort v{vBias+1}, v{vT0}, {sr(sB,4)}, s{sMask} offen offset:64", "x1")
        elif s + LA - 15 < (3 if OPT["xspread"] else NJ):
            x_dma(s + LA - 15)
        mfma(0, s, 1)
        if OPT["fine"] and s % 2 == 1 and s < 15:
            a.stamp()
    PFA = 3
    a.stamp()
    a.wait(vm="x1")
    a("s_barrier")
    for s in range(PFA):
        a_read(1, s)
    a(f"v_lshlrev_b32 v{vBias}, 16, v{vBias}", f"v_lshlrev_b32 v{vBias+1}, 16, v{vBias+1}",
      f"v_mul_f32 v{vBias}, s{sK}, v{vBias}", f"v_mul_f32 v{vBias+1}, s{sK}, v{vBias+1}")
    a.stamp()
    for j in range(1, NJ):
        ops = epilogue_ops(j - 1)
        for s in range(16):
            if s + PFA == 16 and j < NJ - 1:
                a.wait(vm=f"x{j+1}")
                a("s_barrier")
            a.wait(lg=f"a{j}_{s}")
            mfma(j, s, 0)
            if OPT["xspread"] and s == 1 and j + 2 < NJ:
                x_dma(j + 2)
            if s + PFA < 16:
                a_read(j, s + PFA)
            elif j < NJ - 1:
                a_read(j + 1, s + PFA - 16)
            if s >= 3:
                for _ in range(3 if s == 3 else 2):
                    if ops:
                        emit_op(ops.pop(0))
            mfma(j, s, 1)
            if s >= 3:
                for _ in range(3):
                    if ops:
                        emit_op(ops.pop(0))
        assert not ops
        a.stamp()
    a("s_nop 15")
    for op in epilogue_ops(NJ - 1):
        emit_op(op)
    a.stamp_dump(sX, 20, sw, 5 if OPT["helper"] else 4)
    a("s_endpgm")

    if OPT["helper"]:
        a("K1_HELP:")
        a(f"s_lshr_b32 s{sq}, s2, 3", f"s_cmp_ge_u32 s{sq}, 28", "s_cbranch_scc1 K1_END")
        a(f"s_and_b32 s{su}, s{sq}, 3", f"s_lshr_b32 s{sq}, s{sq}, 2", f"s_lshl_b32 s{st0}, s{sq}, 3",
          f"s_and_b32 s{stile}, s2, 7", f"s_add_u32 s{stile}, s{stile}, s{st0}",
          f"s_mul_i32 s{sXo}, s{stile}, {TILE1*512}", f"s_lshl_b32 s{su}, s{su}, 12", f"s_add_u32 s{sXo}, s{sXo}, s{su}")
        a(f"v_and_b32 v{vT0}, 31, v{vLane}", f"v_lshrrev_b32 v{vT1}, 5, v{vLane}", f"v_lshlrev_b32 v{vT0}, 7, v{vT0}",
          f"v_lshl_add_u32 v{vT0}, v{vT1}, 14, v{vT0}", "s_waitcnt lgkmcnt(0)")
        a.srd(sX, 4, 0, N * 512)
        a(f"s_cmp_ge_u32 s{stile}, {NT1}", "s_cbranch_scc1 K1_END")
        a(f"buffer_load_dword v{vT2}, v{vT0}, {sr(sX,4)}, s{sXo} offen")
        if OPT["helper"] == 1:
            a("s_barrier")
        for i in range(1, TILE1 // 64):
            a(f"s_add_u32 s{sXo}, s{sXo}, 32768", f"buffer_load_dword v{vT2}, v{vT0}, {sr(sX,4)}, s{sXo} offen")
        if OPT["helper"] == 2:
            a("s_barrier")
        a("s_barrier", "s_endpgm")

    a("K1_PREP:")
    a.vm, a.lg = [], []
    a(f"s_cmp_ge_u32 s{stile}, {NT1 + 2}", "s_cbranch_scc1 K1_END")
    sW2, sF = sX, sW
    vL = vW
    vOut = vW + 32
    a(f"s_sub_u32 s{st0}, s{stile}, {NT1}", f"s_lshl_b32 s{st0}, s{st0}, 4", f"s_add_u32 s{su}, s{su}, s{st0}")
    a(f"v_and_b32 v{vT0}, 15, v{vLane}", f"v_lshrrev_b32 v{vT1}, 4, v{vLane}", f"v_lshlrev_b32 v{vT0}, 2, v{vT0}",
      f"v_lshl_add_u32 v{vWd}, v{vT1}, 11, v{vT0}", f"v_lshlrev_b32 v{vSt}, 4, v{vLane}")
    a(f"s_lshr_b32 s{st0}, s{su}, 2", f"s_lshl_b32 s{st0}, s{st0}, 6", f"s_and_b32 s{st1}, s{su}, 3",
      f"s_lshl_b32 s{st1}, s{st1}, 16", f"s_add_u32 s{sXo}, s{st0}, s{st1}", f"s_lshl_b32 s{sOo}, s{su}, 13")
    a("s_waitcnt lgkmcnt(0)")
    a.srd(sW2, 16, 0, 512 * 512)
    a.srd(sF, 20, W2F_OFF, 262144)
    for s in range(4):
        for i in range(8):
            row = (s >> 1) * 64 + 16 * (s & 1) + (i >> 1) + 32 * (i & 1)
            a(f"s_add_u32 s{st0}, s{sXo}, {row*512}")
            a.vmem(f"buffer_load_dword v{vL + 8*s + i}, v{vWd}, {sr(sW2,4)}, s{st0} offen", f"l{s}")
    a(f"s_mov_b32 s{sK}, 0x05040100", f"s_mov_b32 s{sK+1}, 0x07060302")
    for s in range(4):
        a.wait(vm=f"l{s}")
        for b in range(2):
            o = vOut + 8 * s + 4 * b
            for m in range(4):
                a(f"v_perm_b32 v{o+m}, v{vL + 8*s + 2*m + 1}, v{vL + 8*s + 2*m}, s{sK+b}")
            a(f"s_add_u32 s{st0}, s{sOo}, {(2*s+b)*1024}")
            a.vmem(f"buffer_store_dwordx4 {vr(o,4)}, v{vSt}, {sr(sF,4)}, s{st0} offen{wt()}")
    a("s_endpgm")

    a("K1_SORT:")
    a.vm, a.lg = [], []
    sDst, sSrc, sE, sR4, sR2 = 24, 28, 32, 36, 40
    sc = su
    vDst, vSrc, vEe, vSl, vRg, vRd, vCn, vRo = 8, 28, 48, 60, 80, 100, 144, 156
    a(f"s_sub_u32 s{sc}, s2, 224")
    a(f"v_lshlrev_b32 v{vT1}, 4, v0", f"v_lshlrev_b32 v{vT2}, 3, v0")
    a(f"s_mul_i32 s{st0}, s{sc}, {CHUNK*4}", f"s_mul_i32 s{st1}, s{sc}, {CHUNK*2}")
    a("s_waitcnt lgkmcnt(0)")
    a.srd(sDst, 10, f"s{st0}", CHUNK * 4)
    a.srd(sSrc, 8, f"s{st0}", CHUNK * 4)
    a.srd(sE, 6, f"s{st1}", CHUNK * 2)
    for i in range(5):
        a(f"s_mov_b32 s{st0}, {4096*i}")
        a.vmem(f"buffer_load_dwordx4 {vr(vDst+4*i,4)}, v{vT1}, {sr(sDst,4)}, s{st0} offen{' nt' if OPT['nte'] else ''}", f"d{i}")
    for i in range(5):
        a(f"s_mov_b32 s{st0}, {4096*i}", f"s_mov_b32 s{st1}, {2048*i}")
        a.vmem(f"buffer_load_dwordx4 {vr(vSrc+4*i,4)}, v{vT1}, {sr(sSrc,4)}, s{st0} offen{' nt' if OPT['nte'] else ''}", f"s{i}")
        a.vmem(f"buffer_load_dwordx2 {vr(vEe+2*i,2)}, v{vT2}, {sr(sE,4)}, s{st1} offen{' nt' if OPT['nte'] else ''}", f"s{i}")
    a.srd(sR4, 20, R4_OFF, 32 * R4BLK)
    a.srd(sR2, 20, R2_OFF, 32 * R2BLK)
    for r in range(4):
        a(f"v_mov_b32 v{vRd+r}, 0")
    for i in range(4):
        a.lds(f"ds_write_b128 v{vT1}, {vr(vRd,4)} offset:{4096*i}")
    a(f"s_mov_b32 s{st0}, 13401", f"s_mov_b32 s{st1}, {-RNG & 0xffffffff}", f"s_mov_b32 s{sMask}, 0xffff0000",
      f"v_mov_b32 v{vT2}, 1", f"v_mov_b32 v{vT0}, 0x100000", f"v_cmp_gt_u32 {sr(sK,2)}, {CHUNK//4 - 1024 - 192}, v{vLane}",
      f"s_cmp_eq_u32 s{sw}, 3", f"s_cselect_b64 {sr(sK,2)}, {sr(sK,2)}, -1")
    a.wait(lg="all")
    a("s_barrier")

    def scatter(n):
        a.wait(lg=f"sl{n}")
        a(f"v_cmp_gt_u32 vcc, {CAP}, v{vSl+n}", f"v_add_u32 v{vSl+n}, v{vSl+n}, v{vRg+n}", "s_nop 0",
          f"v_cndmask_b32 v{vSl+n}, v{vT0}, v{vSl+n}, vcc",
          f"v_lshlrev_b32 v{vRg+n}, 1, v{vSl+n}", f"v_lshlrev_b32 v{vSl+n}, 2, v{vSl+n}")
        a.lds(f"ds_write_b16 v{vRg+n}, v{vDst+n} offset:{K1_I16}")
        a.lds(f"ds_write_b32 v{vSl+n}, v{vSrc+n} offset:{K1_I32}")
    for i in range(5):
        a.wait(vm=f"d{i}")
        if i == 4:
            a(f"s_mov_b64 exec, {sr(sK,2)}")
        for n in range(4 * i, 4 * i + 4):
            a(f"v_mul_u32_u24 v{vRg+n}, s{st0}, v{vDst+n}", f"v_lshrrev_b32 v{vRg+n}, 22, v{vRg+n}",
              f"v_lshlrev_b32 v{vSl+n}, 2, v{vRg+n}")
            a.lds(f"ds_add_rtn_u32 v{vSl+n}, v{vSl+n}, v{vT2} offset:{K1_CNT}", f"sl{n}")
            a(f"v_mad_i32_i24 v{vDst+n}, v{vRg+n}, s{st1}, v{vDst+n}", f"v_lshl_add_u32 v{vDst+n}, v{vDst+n}, 2, 4",
              f"v_mul_u32_u24 v{vRg+n}, {CAP}, v{vRg+n}")
        if i == 4:
            a("s_mov_b64 exec, -1")
        if i >= 1:
            a.wait(vm=f"s{i-1}")
            for n in range(4 * (i - 1), 4 * i):
                if n & 1:
                    a(f"v_and_or_b32 v{vSrc+n}, v{vEe+n//2}, s{sMask}, v{vSrc+n}")
                else:
                    a(f"v_lshl_or_b32 v{vSrc+n}, v{vEe+n//2}, 16, v{vSrc+n}")
                scatter(n)
    a.wait(vm="s4")
    a(f"s_mov_b64 exec, {sr(sK,2)}")
    for n in range(16, 20):
        if n & 1:
            a(f"v_and_or_b32 v{vSrc+n}, v{vEe+n//2}, s{sMask}, v{vSrc+n}")
        else:
            a(f"v_lshl_or_b32 v{vSrc+n}, v{vEe+n//2}, 16, v{vSrc+n}")
        scatter(n)
    a("s_mov_b64 exec, -1")
    a.wait(lg="all")
    a("s_barrier")
    a(f"s_mul_i32 s{st0}, s{sc}, {CAP*4}", f"s_mul_i32 s{st1}, s{sc}, {CAP*2}",
      f"s_mov_b32 s{sXo}, {R4BLK - CAP*4}", f"s_mov_b32 s{sOo}, {R2BLK - CAP*2}")
    for i in range(4):
        a.lds(f"ds_read_b128 {vr(vRd+28+4*i,4)}, v{vT1} offset:{K1_I16 + 4096*i}", f"h{i}")
        a(f"v_add_u32 v{vT2}, {256*i}, v0", f"v_mul_u32_u24 v{vT2}, 2341, v{vT2}", f"v_lshrrev_b32 v{vT2}, 16, v{vT2}",
          f"v_mad_u32_u24 v{vRo+7+i}, v{vT2}, s{sOo}, v{vT1}", f"v_add_u32 v{vRo+7+i}, {4096*i}, v{vRo+7+i}",
          f"v_lshlrev_b32 v{vT2}, 2, v{vT2}")
        a.lds(f"ds_read_b32 v{vCn+i}, v{vT2} offset:{K1_CNT}", f"h{i}")
    for i in range(7):
        a.lds(f"ds_read_b128 {vr(vRd+4*i,4)}, v{vT1} offset:{K1_I32 + 4096*i}", f"g{i}")
        a(f"v_add_u32 v{vT2}, {256*i}, v0", f"v_mul_u32_u24 v{vT2}, 2341, v{vT2}", f"v_lshrrev_b32 v{vT2}, 17, v{vT2}",
          f"v_mad_u32_u24 v{vRo+i}, v{vT2}, s{sXo}, v{vT1}", f"v_add_u32 v{vRo+i}, {4096*i}, v{vRo+i}")
        if i < 4:
            a.wait(lg=f"h{i}")
            a(f"v_cmp_ge_u32 vcc, {CAP}, v{vCn+i}", "s_nop 1", f"v_cndmask_b32 v{vRd+28+4*i}, -1, v{vRd+28+4*i}, vcc")
            a.vmem(f"buffer_store_dwordx4 {vr(vRd+28+4*i,4)}, v{vRo+7+i}, {sr(sR2,4)}, s{st1} offen{wt()}")
    for i in range(7):
        a.wait(lg=f"g{i}")
        a.vmem(f"buffer_store_dwordx4 {vr(vRd+4*i,4)}, v{vRo+i}, {sr(sR4,4)}, s{st0} offen{wt()}")
    a.stamp_dump(sX, 20, sw, 5 if OPT["helper"] else 4)
    a("K1_END:", "s_endpgm")
    return a.lines, descriptor("k1_kernel", nv, 102 if STAMPS else 72)


K2_CNT = 64
K2_HIST = K2_CNT + 1280
K2_MISC = K2_HIST + 256
K2_ORD = K2_MISC + 64
K2_ELL = 3072
K2_LDS = K2_ELL + 320 * ELLS + 64
NGRP = 40


def k2():
    a = Asm()
    header(a, "k2_kernel")
    sR4, sP, sQ, sS, sW1, sDeg, sPf, sR2 = 24, 28, 32, 36, 40, 44, 48, 92
    sw, sk, srng, scnt, st0, st1, sg, sdmax, sdmin, sK, sBig, sOne = 52, 53, 54, 55, 56, 57, 58, 59, 60, 62, 64, 66
    sM = 68
    vLane, vT0, vT1, vT2, vT3 = 1, 2, 3, 4, 5
    vI4, vAh, vAl = 6, 8, 10
    vE, vEs = 12, 14
    vIdx = 16
    vSh, vEll, vEe, vDeg, vOut, vOrdL, vHoff = 24, 25, 26, 27, 28, 29, 30
    vQ = 32
    vNum, vDen, vT = 48, 56, 64
    vP = 72
    vZ = 88
    vAs, vAi = 120, 124
    vOld, vNxt = 125, 126
    nv = 127
    vR4, vR2, vDl = 88, 96, 100
    vSl = 48
    vC = 32
    vPf = 112

    a("s_cmp_ge_u32 s2, 256", "s_cbranch_scc1 K2_END")
    a.stamp_setup(31, 1)
    code_prefetch(a, "k2_kernel", "K2_END", 4, 2, vPf, "K2")
    a("s_load_dwordx16 s[4:19], s[0:1], 0", "s_load_dwordx2 s[20:21], s[0:1], 80")
    a(f"v_lshrrev_b32 v{vT0}, 6, v0", f"v_and_b32 v{vLane}, 63, v0", f"v_readfirstlane_b32 s{sw}, v{vT0}")
    a(f"s_and_b32 s{sk}, s2, 7", f"s_lshr_b32 s{srng}, s2, 3")
    a(f"s_mul_i32 s{st0}, s{srng}, {RNG}", f"s_sub_u32 s{scnt}, {N}, s{st0}", f"s_min_u32 s{scnt}, s{scnt}, {RNG}")
    a(f"v_lshlrev_b32 v{vT0}, 4, v0", f"v_lshlrev_b32 v{vT3}, 3, v0")
    a(f"s_mul_i32 s{st1}, s{srng}, {R4BLK}", f"s_add_u32 s{st1}, s{st1}, {R4_OFF}",
      f"s_mul_i32 s{sg}, s{srng}, {R2BLK}", f"s_add_u32 s{sg}, s{sg}, {R2_OFF}")
    a(f"v_mov_b32 v{vP}, 0xffff", f"v_mov_b32 v{vP+1}, 0xffff", f"v_mov_b32 v{vP+2}, 0xffff", f"v_mov_b32 v{vP+3}, 0xffff",
      f"v_mov_b32 v{vP+4}, 0", f"v_lshlrev_b32 v{vT1}, 2, v0")
    a(f"v_cmp_gt_u32 vcc, {K2_ORD//4}, v0", f"s_and_saveexec_b64 {sr(sM,2)}, vcc", "s_cbranch_execz K2_I2")
    a(f"ds_write_b32 v{vT1}, v{vP+4}")
    a("K2_I2:", "s_mov_b64 exec, -1")
    a("s_waitcnt lgkmcnt(0)")
    a.srd(sR2, 20, f"s{sg}", R2BLK)
    a.srd(sR4, 20, f"s{st1}", R4BLK)
    a(f"s_mov_b32 s{st1}, 8192", f"s_mov_b32 s{sg}, 16384")
    a.vmem(f"buffer_load_dwordx2 {vr(vR2,2)}, v{vT3}, {sr(sR2,4)}, 0 offen", "h0")
    a.vmem(f"buffer_load_dwordx2 {vr(vR2+2,2)}, v{vT3}, {sr(sR2,4)}, s{st1} offen", "h1")
    a.vmem(f"buffer_load_dwordx4 {vr(vR4,4)}, v{vT0}, {sr(sR4,4)}, 0 offen", "g0")
    a.vmem(f"buffer_load_dwordx4 {vr(vR4+4,4)}, v{vT0}, {sr(sR4,4)}, s{sg} offen", "g1")
    a.stamp()
    nell = (K2_LDS - K2_ELL) // 16
    for i in range(3):
        a(f"ds_write_b128 v{vT0}, {vr(vP,4)} offset:{K2_ELL + 16384*i}")
    a(f"v_cmp_gt_u32 vcc, {nell - 3072}, v0", f"s_and_saveexec_b64 {sr(sM,2)}, vcc", "s_cbranch_execz K2_I1")
    a(f"ds_write_b128 v{vT0}, {vr(vP,4)} offset:{K2_ELL + 16384*3}")
    a("K2_I1:", "s_mov_b64 exec, -1")
    a.srd(sW1, 12, 512 * 1024, 1024)
    a(f"v_and_b32 v{vT1}, 1, v{vLane}", f"v_lshlrev_b32 v{vT1}, 6, v{vT1}",
      f"v_bfe_u32 v{vT2}, v{vLane}, 2, 1", f"v_lshl_add_u32 v{vT1}, v{vT2}, 5, v{vT1}",
      f"v_bfe_u32 v{vT2}, v{vLane}, 3, 1", f"v_lshl_add_u32 v{vT1}, v{vT2}, 2, v{vT1}",
      f"v_bfe_u32 v{vT2}, v{vLane}, 1, 1", f"v_lshl_add_u32 v{vT1}, v{vT2}, 1, v{vT1}",
      f"s_lshl_b32 s{st1}, s{sk}, 7")
    for i in range(4):
        a.vmem(f"buffer_load_ushort v{vC+i}, v{vT1}, {sr(sW1,4)}, s{st1} offen offset:{8*i}", "c")
    a(f"s_mul_i32 s{st1}, s{sk}, {SS}", f"s_lshl_b32 s{sg}, s{st0}, 7", f"s_add_u32 s{sg}, s{sg}, s{st1}",
      f"s_lshl_b32 s{sdmax}, s{scnt}, 7")
    a.srd(sP, 20, f"s{st1}", N, stride=128)
    a.srd(sPf, 20, f"s{sg}", f"s{sdmax}")
    a(f"s_add_u32 s{sg}, s{sg}, {Q_OFF}")
    a.srd(sQ, 20, f"s{sg}", f"s{sdmax}")
    a(f"s_add_u32 s{sg}, s{sg}, {S_OFF - Q_OFF}")
    a.srd(sS, 20, f"s{sg}", f"s{sdmax}")
    a(f"s_lshl_b32 s{sg}, s{st0}, 2", f"s_add_u32 s{sg}, s{sg}, {DEG_OFF}", f"s_lshl_b32 s{sdmax}, s{scnt}, 2",
      f"s_cmp_eq_u32 s{sk}, 0", f"s_cselect_b32 s{sdmax}, s{sdmax}, 0")
    a.srd(sDeg, 20, f"s{sg}", f"s{sdmax}")
    a(f"v_and_b32 v{vT1}, 3, v{vLane}", f"v_lshlrev_b32 v{vSh}, 4, v{vT1}", f"v_lshrrev_b32 v{vT2}, 5, v{vLane}",
      f"v_lshl_add_u32 v{vIdx+1}, v{vT2}, 6, v{vSh}", f"v_mov_b32 v{vIdx+3}, v{vIdx+1}", f"v_mov_b32 v{vIdx+5}, v{vIdx+1}",
      f"v_mov_b32 v{vIdx+7}, v{vIdx+1}", f"v_lshl_add_u32 v{vHoff}, v{vT2}, 2, 2",
      f"v_and_b32 v{vOrdL}, 28, v{vLane}", f"v_add_u32 v{vOrdL}, {K2_ORD}, v{vOrdL}",
      f"v_mov_b32 v{vE}, 0x3f80", f"v_mov_b32 v{vE+1}, 0", f"v_lshlrev_b64 {vr(vI4,2)}, v{vSh}, {vr(vE,2)}")
    a(f"v_cmp_eq_u32 vcc, 3, v{vT1}", f"v_mov_b32 v{vT3}, 0x3f800000", f"v_or_b32 v{vAi}, 12, v{vT1}",
      f"v_cndmask_b32 v{vT3}, v{vE}, v{vT3}, vcc", f"v_cndmask_b32 v{vAi}, v{vAi}, 12, vcc",
      f"v_mul_u32_u24 v{vAi}, 0x1111, v{vAi}",
      f"v_bfe_u32 v{vT1}, v{vLane}, 4, 1", f"v_cmp_eq_u32 {sr(sM+16,2)}, v{vT1}, v{vT2}",
      f"v_bfe_u32 v{vT1}, v{vLane}, 2, 1", f"v_bfe_u32 v{vT2}, v{vLane}, 3, 1", f"v_lshl_add_u32 v{vT1}, v{vT1}, 1, v{vT2}",
      f"v_cndmask_b32 v{vT3}, 0, v{vT3}, {sr(sM+16,2)}")
    for g4 in range(4):
        a(f"v_cmp_eq_u32 vcc, {g4}, v{vT1}", "s_nop 1", f"v_cndmask_b32 v{vAs+g4}, 0, v{vT3}, vcc")
    a(f"s_mov_b32 s{sK}, {NLOG2E}", f"s_mov_b32 s{sBig}, {fbits(2.0**120)}", f"s_mov_b32 s{sOne}, 1.0", f"s_mov_b32 s{sOne+1}, 1.0")
    a(f"v_mov_b32 v{vT3}, 1", f"v_mov_b32 v{vT2}, 0")
    a("s_waitcnt lgkmcnt(0)", "s_barrier")
    a.lg = []
    a.stamp()
    a(f"s_cmp_lt_u32 s{sw}, 10", f"s_cselect_b32 s{sPf}, s{sPf}, s{sQ}", f"s_cselect_b32 s{sPf+1}, s{sPf+1}, s{sQ+1}",
      f"s_cselect_b32 s{st1}, 5, 10", f"s_cselect_b32 s{sg}, {OPT['pf']}, {OPT['pfq']}",
      f"s_sub_u32 s{st1}, s{sw}, s{st1}", f"s_lshl_b32 s{st1}, s{st1}, 13", f"s_mul_i32 s{sPf+2}, s{sPf+2}, s{sg}",
      f"s_cmp_lt_u32 s{sw}, 5", f"s_cselect_b32 s{sPf+2}, 0, s{sPf+2}", f"s_cselect_b32 s{st1}, 0, s{st1}",
      f"s_cmp_eq_u32 s{sw}, 15", "s_cbranch_scc0 K2_PF3")
    a.srd(sPf, 20, W2F_OFF, 262144 if OPT["pfw"] else 0)
    a(f"s_lshl_b32 s{st1}, s{srng}, 13")
    a("K2_PF3:", f"v_lshlrev_b32 v{vT1}, 7, v{vLane}")
    a.vmem(f"buffer_load_dword v{vPf}, v{vT1}, {sr(sPf,4)}, s{st1} offen", "pf")
    for i in range(2):
        a.wait(vm=f"h{i}")
        if i:
            a("s_mov_b64 exec, -1")
        for u in range(4):
            n = 4 * i + u
            if u & 1:
                a(f"v_ashrrev_i32 v{vDl+n}, 16, v{vR2+n//2}")
            else:
                a(f"v_bfe_i32 v{vDl+n}, v{vR2+n//2}, 0, 16")
            a(f"v_cmp_lt_i32 {sr(sM+2*n,2)}, 0, v{vDl+n}")
        a(f"v_min_i32 v{vT2}, v{vDl+4*i}, v{vT2}")
        for u in range(4):
            n = 4 * i + u
            a(f"s_mov_b64 exec, {sr(sM+2*n,2)}")
            a.lds(f"ds_add_rtn_u32 v{vSl+n}, v{vDl+n}, v{vT3} offset:{K2_CNT-4}", f"s{n}")
    a("s_mov_b64 exec, -1")
    a.stamp()
    a(f"v_cmp_gt_i32 vcc, 0, v{vT2}", f"v_mov_b32 v{vT1}, {K2_MISC}", f"s_and_saveexec_b64 {sr(sM+18,2)}, vcc", "s_cbranch_execz K2_NOOVF")
    a(f"ds_write_b32 v{vT1}, v{vT3} offset:4", "s_waitcnt lgkmcnt(0)")
    a("K2_NOOVF:", "s_mov_b64 exec, -1")
    a(f"s_mov_b32 s{st1}, {ELLS // 4}")
    for n in range(8):
        a.wait(lg=f"s{n}", vm=f"g{n//4}")
        a(f"s_mov_b64 exec, {sr(sM+2*n,2)}")
        a(f"v_min_u32 v{vSl+n}, {MAXDEG}, v{vSl+n}", f"v_lshlrev_b32 v{vSl+n}, 2, v{vSl+n}",
          f"v_mad_u32_u24 v{vSl+n}, v{vDl+n}, s{st1}, v{vSl+n}")
        a.lds(f"ds_write_b32 v{vSl+n}, v{vR4+n} offset:{K2_ELL - ELLS}")
    a("s_mov_b64 exec, -1")
    a.wait(vm="c")
    for i in range(4):
        a(f"v_lshlrev_b32 v{vC+i}, 16, v{vC+i}", f"v_mul_f32 v{vC+i}, s{sK}, v{vC+i}")
    a(f"v_cvt_pk_bf16_f32 v{vAh}, v{vC}, v{vC+1}", f"v_cvt_pk_bf16_f32 v{vAh+1}, v{vC+2}, v{vC+3}")
    for i in range(4):
        if i & 1:
            a(f"v_and_b32 v{vT1}, 0xffff0000, v{vAh+i//2}")
        else:
            a(f"v_lshlrev_b32 v{vT1}, 16, v{vAh+i//2}")
        a(f"v_sub_f32 v{vC+i}, v{vC+i}, v{vT1}")
    a(f"v_cvt_pk_bf16_f32 v{vAl}, v{vC}, v{vC+1}", f"v_cvt_pk_bf16_f32 v{vAl+1}, v{vC+2}, v{vC+3}")
    for r in (vAh, vAh + 1, vAl, vAl + 1):
        a(f"v_cndmask_b32 v{r}, 0, v{r}, {sr(sM+16,2)}")
    a.stamp()
    a("s_waitcnt lgkmcnt(0)", "s_barrier")
    a.lg = []
    a(f"s_cmp_ge_u32 s{sw}, 5", "s_cbranch_scc1 K2_DS1")
    a(f"v_lshlrev_b32 v{vT0}, 2, v0", f"ds_read_b32 v{vDeg}, v{vT0} offset:{K2_CNT}", "s_waitcnt lgkmcnt(0)")
    a(f"v_cvt_f32_u32 v{vT1}, v{vDeg}", f"v_cmp_lt_u32 vcc, {MAXDEG}, v{vDeg}", f"v_min_u32 v{vDeg}, {MAXDEG}, v{vDeg}")
    a(f"v_sub_u32 v{vT2}, 63, v{vDeg}", f"v_lshlrev_b32 v{vT2}, 2, v{vT2}",
      f"ds_add_rtn_u32 v{vOut}, v{vT2}, v{vT3} offset:{K2_HIST}")
    a(f"buffer_store_dword v{vT1}, v{vT0}, {sr(sDeg,4)}, 0 offen{wt()}")
    a(f"v_mov_b32 v{vEll}, {K2_MISC}", f"s_and_saveexec_b64 {sr(sM,2)}, vcc", "s_cbranch_execz K2_NOOVF2")
    a(f"ds_write_b32 v{vEll}, v{vT3} offset:4")
    a("K2_NOOVF2:", "s_mov_b64 exec, -1", "s_waitcnt lgkmcnt(0)")
    a("K2_DS1:", "s_barrier")
    a(f"s_cmp_ge_u32 s{sw}, 5", "s_cbranch_scc1 K2_DS2")
    a(f"v_lshlrev_b32 v{vT0}, 2, v{vLane}", f"ds_read_b32 v{vT1}, v{vT0} offset:{K2_HIST}", "s_waitcnt lgkmcnt(0)",
      f"v_mov_b32 v{vEll}, v{vT1}", "s_nop 1")
    for ctrl in ("row_shr:1", "row_shr:2", "row_shr:4", "row_shr:8"):
        a(f"v_add_u32_dpp v{vEll}, v{vEll}, v{vEll} {ctrl} row_mask:0xf bank_mask:0xf bound_ctrl:1", "s_nop 1")
    a(f"v_add_u32_dpp v{vEll}, v{vEll}, v{vEll} row_bcast:15 row_mask:0xa bank_mask:0xf", "s_nop 1")
    a(f"v_add_u32_dpp v{vEll}, v{vEll}, v{vEll} row_bcast:31 row_mask:0xc bank_mask:0xf", "s_nop 1")
    a(f"v_sub_u32 v{vEll}, v{vEll}, v{vT1}", f"ds_bpermute_b32 v{vT1}, v{vT2}, v{vEll}",
      f"v_lshl_or_b32 v{vDeg}, v{vDeg}, 16, v0", "s_waitcnt lgkmcnt(0)",
      f"v_add_lshl_u32 v{vT1}, v{vT1}, v{vOut}, 2", f"ds_write_b32 v{vT1}, v{vDeg} offset:{K2_ORD}")
    a("K2_DS2:", "s_waitcnt lgkmcnt(0)", "s_barrier")
    a.vm = []
    a.stamp()
    if STAMPS:
        a("s_mov_b32 s99, 8")
    a(f"v_mov_b32 v{vT0}, {K2_MISC}", f"ds_read_b32 v{vT1}, v{vT0} offset:4", f"v_mov_b32 v{vOld}, -1", "s_waitcnt lgkmcnt(0)",
      f"v_readfirstlane_b32 s{st0}, v{vT1}", f"s_mov_b32 s{sg}, s{sw}", f"s_cmp_lg_u32 s{st0}, 0", "s_cbranch_scc1 K2_SLOW")

    def Z(i):
        return vZ + 16 * ((i >> 1) & 1) + 8 * (i & 1)

    def src_read(i):
        a(f"ds_read_u16 v{vIdx + 2*(i % 4)}, v{vEll} offset:{4*i}")

    def e_read(p):
        a(f"ds_read_u16 v{vE}, v{vEe} offset:{8*p}")

    def gather(i):
        a(f"buffer_load_dwordx4 {vr(vP + 4*(i % 4), 4)}, {vr(vIdx + 2*(i % 4), 2)}, {sr(sP,4)}, 0 idxen offen")

    def m4(i, hf):
        z = Z(i) + 4 * hf
        return f"v_mfma_f32_4x4x4_16b_bf16 {vr(z,4)}, {vr(vI4,2)}, {vr(vP + 4*(i % 4) + 2*hf, 2)}, {vr(z,4)}"

    def smf(p):
        return f"v_smfmac_f32_32x32x32_bf16 {vr(Z(2*p),16)}, {vr(vAs,4)}, {vr(vP + 8*(p & 1), 8)}, v{vAi}"

    shift = f"v_lshlrev_b64 {vr(vEs,2)}, v{vSh}, {vr(vE,2)}"

    def mhi(p):
        return f"v_mfma_f32_32x32x8_bf16 {vr(Z(2*p),16)}, {vr(vAh,2)}, {vr(vEs,2)}, {vr(vQ,16)}"

    def mlo(p):
        return f"v_mfma_f32_32x32x8_bf16 {vr(Z(2*p),16)}, {vr(vAl,2)}, {vr(vEs,2)}, {vr(Z(2*p),16)}"

    def finish():
        for r in range(8):
            a(f"v_rcp_f32 v{vT+r}, v{vDen+r}")
        for r in range(0, 8, 2):
            a(f"v_pk_mul_f32 {vr(vNum+r,2)}, {vr(vNum+r,2)}, {vr(vT+r,2)}")
        for r in range(4):
            a(f"v_cvt_pk_bf16_f32 v{vT+r}, v{vNum+2*r}, v{vNum+2*r+1}")
        a(f"buffer_store_dwordx4 {vr(vT,4)}, v{vOld}, {sr(sS,4)}, 0 offen{wt()}")

    if OPT["prio"]:
        a("s_setprio 3")
    a("K2_GROUP:")
    a(f"s_lshl_b32 s{st0}, s{sg}, 5", f"v_add_u32 v{vT0}, s{st0}, v{vOrdL}", f"ds_read_b32 v{vT1}, v{vT0}",
      f"s_mov_b32 s{st1}, {ELLS}", "s_waitcnt lgkmcnt(0)")
    a(f"v_and_b32 v{vT0}, 0xffff, v{vT1}", f"v_lshrrev_b32 v{vDeg}, 16, v{vT1}",
      f"v_mul_u32_u24 v{vEll}, s{st1}, v{vT0}", f"v_add_u32 v{vEll}, {K2_ELL}, v{vEll}")
    for i in range(4):
        src_read(i)
    a(f"v_lshl_add_u32 v{vOut}, v{vT0}, 7, v{vIdx+1}", f"v_add_u32 v{vEe}, v{vEll}, v{vHoff}")
    a(f"buffer_load_dwordx4 {vr(vZ+16,4)}, v{vOut}, {sr(sQ,4)}, 0 offen")
    e_read(0)
    a(f"v_readlane_b32 s{sdmax}, v{vDeg}, 0", f"v_readlane_b32 s{sdmin}, v{vDeg}, 28")
    for i in range(4):
        a(f"s_waitcnt lgkmcnt({4-i})")
        gather(i)
    src_read(4)
    src_read(5)
    a("s_waitcnt lgkmcnt(2)")
    a(shift)
    e_read(1)
    a("s_mov_b64 exec, 1", f"v_mov_b32 v{vT0}, {K2_MISC}", f"v_mov_b32 v{vNxt}, 1", f"ds_add_rtn_u32 v{vNxt}, v{vT0}, v{vNxt}",
      "s_mov_b64 exec, -1")
    finish()
    a("s_waitcnt vmcnt(5)")
    for q in range(4):
        a(f"v_mfma_f32_4x4x4_16b_bf16 {vr(vQ+4*q,4)}, {vr(vI4,2)}, {vr(vZ+16+2*(q&1),2)}, 0")
    a("s_nop 3")
    a(mhi(0), *([] if OPT["nolo"] else [mlo(0)]))
    a("s_nop 9", "s_waitcnt vmcnt(3)")
    if OPT["usem4"]:
        a(m4(0, 0), m4(0, 1), m4(1, 0), m4(1, 1))
    else:
        a(smf(0))
    a("s_waitcnt lgkmcnt(0)")
    gather(4)
    gather(5)
    a(shift)
    src_read(6)
    src_read(7)
    e_read(2)
    if OPT["prio"]:
        a(f"s_cmp_lt_u32 s{sg}, 16", "s_cbranch_scc1 K2_PRX", "s_setprio 2", f"s_cmp_lt_u32 s{sg}, 24", "s_cbranch_scc1 K2_PRX",
          "s_setprio 1", f"s_cmp_lt_u32 s{sg}, 32", "s_cbranch_scc1 K2_PRX", "s_setprio 0", "K2_PRX:")
    a("s_nop 1" if OPT["prio"] else "s_nop 3")
    if STAMPS and not OPT["light"]:
        a("s_mov_b32 m0, s99", "s_add_u32 s99, s99, 1")
        a.stamp("m0")

    NP = MAXDEG // 2
    for i in range(MAXDEG):
        z = Z(i)
        p = i >> 1
        a(f"s_cmp_le_u32 s{sdmin}, {i}", f"s_cbranch_scc1 K2_OOL{i}", f"K2_S{i}:")
        ex = [f"v_exp_f32 v{vT+r}, v{z+r}" for r in range(8)]
        num_src = Z(0) if i == 1 else vNum
        if i == 0:
            upd = ["s_nop 0"] + [f"v_pk_add_f32 {vr(vDen+r,2)}, {vr(vT+r,2)}, {sr(sOne,2)}" for r in range(0, 8, 2)]
        else:
            upd = [f"v_pk_fma_f32 {vr(z+r,2)}, {vr(z+r,2)}, {vr(vDen+r,2)}, {vr(num_src+r,2)}" for r in range(0, 8, 2)]
            upd += [f"v_pk_fma_f32 {vr(vNum+r,2)}, {vr(num_src+r,2)}, {vr(vT+r,2)}, {vr(z+r,2)}" for r in range(0, 8, 2)]
            upd += [f"v_pk_fma_f32 {vr(vDen+r,2)}, {vr(vDen+r,2)}, {vr(vT+r,2)}, {vr(vDen+r,2)}" for r in range(0, 8, 2)]
        if (i & 1) == 0:
            if p + 1 < NP:
                a(mhi(p + 1), *ex[0:4], *([] if OPT["nolo"] else [mlo(p + 1)]), *ex[4:8])
            else:
                a(*ex)
            a(*upd)
        else:
            if p + 1 < NP:
                a(f"s_waitcnt vmcnt({3 if p == 0 else 2 if p + 2 < NP else 0})")
                if OPT["usem4"]:
                    a(m4(2*p+2, 0), ex[0], m4(2*p+2, 1), ex[1], m4(2*p+3, 0), ex[2], m4(2*p+3, 1), ex[3])
                else:
                    a(smf(p + 1), *ex[0:4])
            else:
                a(*ex[0:4])
            if p + 2 < NP:
                a("s_waitcnt lgkmcnt(0)")
            if p + 3 < NP:
                gather(2 * p + 6)
                gather(2 * p + 7)
            a(*ex[4:8])
            if p + 2 < NP:
                a(shift)
            if p + 4 < NP:
                src_read(2 * p + 8)
                src_read(2 * p + 9)
            if p + 3 < NP:
                e_read(p + 3)
            a(*upd)
    a("K2_FIN:")
    a("s_mov_b64 exec, -1")
    if OPT["prio"]:
        a("s_setprio 3")
    a(f"v_pk_add_f32 {vr(vT0,2)}, {vr(vDen,2)}, {vr(vDen+2,2)}", f"v_pk_add_f32 {vr(vT2,2)}, {vr(vDen+4,2)}, {vr(vDen+6,2)}")
    for r in range(0, 8, 4):
        a(f"v_pk_fma_f32 {vr(vT0,2)}, {vr(vNum+r,2)}, 0, {vr(vT0,2)} op_sel_hi:[1,0,1]")
        a(f"v_pk_fma_f32 {vr(vT2,2)}, {vr(vNum+r+2,2)}, 0, {vr(vT2,2)} op_sel_hi:[1,0,1]")
    a(f"v_pk_add_f32 {vr(vT0,2)}, {vr(vT0,2)}, {vr(vT2,2)}", f"v_mov_b32 v{vOld}, v{vOut}",
      f"v_add_f32 v{vT0}, v{vT0}, v{vT1}", f"v_readfirstlane_b32 s{sg}, v{vNxt}", f"v_cmp_ngt_f32 vcc, s{sBig}, v{vT0}")
    a("s_cbranch_vccnz K2_SAFE")
    a("K2_NEXT:")
    if STAMPS and not OPT["light"]:
        a("s_mov_b32 m0, s99", "s_add_u32 s99, s99, 1")
        a.stamp("m0")
        a("s_mov_b32 m0, s99", "s_add_u32 s99, s99, 1", f"v_writelane_b32 v31, s{sdmax}, m0")
    a(f"s_add_u32 s{sg}, s{sg}, 16", f"s_cmp_lt_u32 s{sg}, {NGRP}", "s_cbranch_scc1 K2_GROUP")
    finish()
    a.stamp_dump(sR4, 20, sw, 16)
    a("s_endpgm")

    for i in range(MAXDEG):
        a(f"K2_OOL{i}:")
        if i == 0:
            for r in range(8):
                a(f"v_mov_b32 v{vNum+r}, 0", f"v_mov_b32 v{vDen+r}, 1.0")
        if i == 1:
            for r in range(8):
                a(f"v_mov_b32 v{vNum+r}, v{Z(0)+r}")
        a(f"s_cmp_le_u32 s{sdmax}, {i}", "s_cbranch_scc1 K2_FIN")
        a(f"v_cmpx_lt_u32 vcc, {i}, v{vDeg}", "s_nop 3", f"s_branch K2_S{i}")

    a("K2_SAFE:")
    a("s_waitcnt vmcnt(0) lgkmcnt(0)", f"s_mov_b32 s{st0}, 0")
    for r in range(8):
        a(f"v_mov_b32 v{vNum+r}, 0")
    a("K2_SAFE_L:")
    a(f"s_cmp_ge_u32 s{st0}, s{sdmax}", "s_cbranch_scc1 K2_SAFE_E")
    a(f"v_cmpx_lt_u32 vcc, s{st0}, v{vDeg}")
    src_read(0)
    e_read(0)
    a("s_waitcnt lgkmcnt(0)")
    gather(0)
    a(shift, f"v_add_u32 v{vEll}, 4, v{vEll}", f"v_add_u32 v{vEe}, 4, v{vEe}", "s_nop 1")
    a(mhi(0), mlo(0), "s_nop 9", "s_waitcnt vmcnt(0)", m4(0, 0), m4(0, 1), "s_nop 4")
    for r in range(8):
        a(f"v_exp_f32 v{vT+r}, v{vZ+r}")
    for r in range(0, 8, 2):
        a(f"v_pk_add_f32 {vr(vT+r,2)}, {vr(vT+r,2)}, {sr(sOne,2)}")
    for r in range(8):
        a(f"v_rcp_f32 v{vT+r}, v{vT+r}")
    a("s_nop 0")
    for r in range(0, 8, 2):
        a(f"v_pk_fma_f32 {vr(vNum+r,2)}, {vr(vZ+r,2)}, {vr(vT+r,2)}, {vr(vNum+r,2)}")
    a(f"s_add_u32 s{st0}, s{st0}, 1", "s_branch K2_SAFE_L")
    a("K2_SAFE_E:", "s_mov_b64 exec, -1")
    for r in range(8):
        a(f"v_mov_b32 v{vDen+r}, 1.0")
    a("s_branch K2_NEXT")

    sDst, sSrc, sE = sR4, sPf, sW1
    snode, sbase, sdeg, sbit, ssrc, se, sm = sM, sM + 1, sM + 2, sM + 3, sM + 4, sM + 5, sM + 6
    vc, vq, vacc, vd, vs, ve, voff, vz = 32, 33, 34, 36, 40, 44, 48, 49
    a("K2_SLOW:")
    a(f"v_and_b32 v{vT0}, 1, v{vLane}", f"v_lshlrev_b32 v{vT0}, 6, v{vT0}", f"v_and_b32 v{vT1}, 62, v{vLane}",
      f"v_add_u32 v{vT0}, v{vT0}, v{vT1}", f"s_lshl_b32 s{st1}, s{sk}, 7")
    a(f"buffer_load_ushort v{vc}, v{vT0}, {sr(sW1,4)}, s{st1} offen", "s_waitcnt vmcnt(0)",
      f"v_lshlrev_b32 v{vc}, 16, v{vc}", f"v_mul_f32 v{vc}, s{sK}, v{vc}")
    a.srd(sDst, 10, 0, E * 4)
    a.srd(sSrc, 8, 0, E * 4)
    a.srd(sE, 6, 0, E * 2)
    a(f"v_lshlrev_b32 v{vIdx+1}, 1, v{vLane}", f"v_lshlrev_b32 v{vT2}, 4, v{vLane}", f"v_lshlrev_b32 v{vT3}, 3, v{vLane}")
    a("K2_SLOW_N:")
    a(f"s_cmp_ge_u32 s{sg}, s{scnt}", "s_cbranch_scc1 K2_END")
    a(f"s_mul_i32 s{snode}, s{srng}, {RNG}", f"s_add_u32 s{snode}, s{snode}, s{sg}", f"s_lshl_b32 s{st0}, s{sg}, 7",
      f"v_add_u32 v{voff}, s{st0}, v{vIdx+1}", f"buffer_load_ushort v{vq}, v{voff}, {sr(sQ,4)}, 0 offen",
      f"v_mov_b32 v{vacc}, 0", f"s_mov_b32 s{sbase}, 0", f"s_mov_b32 s{sdeg}, 0", "s_waitcnt vmcnt(0)",
      f"v_lshlrev_b32 v{vq}, 16, v{vq}")
    a("K2_SLOW_C:")
    a(f"s_lshl_b32 s{st0}, s{sbase}, 2", f"s_lshl_b32 s{st1}, s{sbase}, 1")
    a(f"buffer_load_dwordx4 {vr(vd,4)}, v{vT2}, {sr(sDst,4)}, s{st0} offen",
      f"buffer_load_dwordx4 {vr(vs,4)}, v{vT2}, {sr(sSrc,4)}, s{st0} offen",
      f"buffer_load_dwordx2 {vr(ve+2,2)}, v{vT3}, {sr(sE,4)}, s{st1} offen", "s_waitcnt vmcnt(0)")
    a(f"v_lshlrev_b32 v{ve}, 16, v{ve+2}", f"v_and_b32 v{ve+1}, 0xffff0000, v{ve+2}",
      f"v_lshlrev_b32 v{ve+2}, 16, v{ve+3}", f"v_and_b32 v{ve+3}, 0xffff0000, v{ve+3}")
    for u in range(4):
        a(f"v_cmp_eq_u32 {sr(sm,2)}, s{snode}, v{vd+u}")
        a(f"K2_SLOW_M{u}:", f"s_cmp_eq_u64 {sr(sm,2)}, 0", f"s_cbranch_scc1 K2_SLOW_X{u}")
        a(f"s_ff1_i32_b64 s{sbit}, {sr(sm,2)}", f"s_bitset0_b64 {sr(sm,2)}, s{sbit}", f"s_add_u32 s{sdeg}, s{sdeg}, 1",
          f"v_readlane_b32 s{ssrc}, v{vs+u}, s{sbit}", f"v_readlane_b32 s{se}, v{ve+u}, s{sbit}", "s_nop 1",
          f"v_mov_b32 v{vIdx}, s{ssrc}", f"buffer_load_ushort v{vz}, {vr(vIdx,2)}, {sr(sP,4)}, 0 idxen offen",
          f"v_fma_f32 v{vT0}, s{se}, v{vc}, v{vq}", "s_waitcnt vmcnt(0)",
          f"v_lshlrev_b32 v{vz}, 16, v{vz}", f"v_add_f32 v{vz}, v{vz}, v{vT0}", f"v_exp_f32 v{vT0}, v{vz}", "s_nop 0",
          f"v_add_f32 v{vT0}, 1.0, v{vT0}", f"v_rcp_f32 v{vT0}, v{vT0}", "s_nop 0",
          f"v_fma_f32 v{vacc}, v{vz}, v{vT0}, v{vacc}", f"s_branch K2_SLOW_M{u}")
        a(f"K2_SLOW_X{u}:")
    a(f"s_add_u32 s{sbase}, s{sbase}, 256", f"s_cmp_lt_u32 s{sbase}, {E}", "s_cbranch_scc1 K2_SLOW_C")
    a(f"v_cvt_pk_bf16_f32 v{vacc}, v{vacc}, v{vacc}", f"v_cvt_f32_u32 v{vT0}, s{sdeg}", f"s_lshl_b32 s{st0}, s{sg}, 2",
      f"v_mov_b32 v{vT1}, s{st0}")
    a(f"buffer_store_short v{vacc}, v{voff}, {sr(sS,4)}, 0 offen", f"buffer_store_dword v{vT0}, v{vT1}, {sr(sDeg,4)}, 0 offen")
    a(f"s_add_u32 s{sg}, s{sg}, 16", "s_waitcnt vmcnt(0)", "s_branch K2_SLOW_N")
    a("K2_END:", "s_endpgm")
    return a.lines, descriptor("k2_kernel", nv, 102 if STAMPS else 96)


K3_LDS = 81920


def k3():
    a = Asm()
    header(a, "k3_kernel")
    sS, sF, sDeg, sB, sO = 24, 28, 32, 36, 40
    sw, stile, scg, st0, st1, sK, sn, sSo = 44, 45, 46, 47, 48, 50, 52, 53
    vLane, vT0, vT1, vT2 = 1, 2, 3, 4
    vDm, vBo, vSt, vB2 = 5, 6, 7, 8
    vAad = 10
    vDg = 12
    vA = 32
    vAcc = 72
    vB = 112
    nv = vB + 128
    a("s_cmp_ge_u32 s2, 256", "s_cbranch_scc1 K3_END")
    a(f"s_lshr_b32 s{st0}, s2, 4", f"s_lshl_b32 s{st0}, s{st0}, 3", f"s_and_b32 s{stile}, s2, 7",
      f"s_add_u32 s{stile}, s{stile}, s{st0}", f"s_cmp_ge_u32 s{stile}, 125", "s_cbranch_scc1 K3_END")
    a.stamp_setup(nv, 2)
    code_prefetch(a, "k3_kernel", "K3_END", 2, 2, vA, "K3")
    a("s_load_dwordx4 s[4:7], s[0:1], 56", "s_load_dwordx2 s[20:21], s[0:1], 80")
    a(f"v_lshrrev_b32 v{vT0}, 6, v0", f"v_and_b32 v{vLane}, 63, v0", f"v_readfirstlane_b32 s{sw}, v{vT0}")
    a(f"s_bfe_u32 s{scg}, s2, 0x10003", f"s_lshl_b32 s{scg}, s{scg}, 2", f"s_add_u32 s{scg}, s{scg}, s{sw}")
    a(f"s_and_b32 s{st0}, s{sw}, 1", f"s_lshl_b32 s{st0}, s{st0}, 2", f"v_lshrrev_b32 v{vT0}, 4, v{vLane}",
      f"v_add_u32 v{vT1}, s{st0}, v{vT0}", f"v_and_b32 v{vT2}, 7, v{vLane}", f"v_xor_b32 v{vT1}, v{vT1}, v{vT2}",
      f"v_lshlrev_b32 v{vT1}, 4, v{vT1}", f"v_lshrrev_b32 v{vT2}, 3, v{vLane}", f"v_lshl_add_u32 v{vDm}, v{vT2}, 7, v{vT1}")
    a(f"v_lshlrev_b32 v{vBo}, 4, v{vLane}")
    a(f"v_and_b32 v{vT1}, 15, v{vLane}", f"v_lshlrev_b32 v{vT2}, 2, v{vT1}", f"v_lshl_add_u32 v{vSt}, v{vT0}, 11, v{vT2}")
    a(f"v_lshrrev_b32 v{vAad}, 1, v{vT1}", f"v_xor_b32 v{vAad}, v{vAad}, v{vT0}", f"v_lshlrev_b32 v{vAad}, 4, v{vAad}",
      f"v_lshl_add_u32 v{vAad}, v{vT1}, 7, v{vAad}", f"v_xor_b32 v{vAad+1}, 64, v{vAad}", f"v_lshlrev_b32 v{vT0}, 4, v{vT0}")
    a(f"s_mul_i32 s{sSo}, s{stile}, 10240")
    a("s_waitcnt lgkmcnt(0)")
    a.srd(sDeg, 20, DEG_OFF, N * 4)
    a.srd(sB, 4, 0, 512)
    a(f"s_mul_i32 s{st0}, s{stile}, 320", f"s_lshl_b32 s{st1}, s{scg}, 6")
    for rt in range(5):
        a.vmem(f"buffer_load_dwordx4 {vr(vDg+4*rt,4)}, v{vT0}, {sr(sDeg,4)}, s{st0} offen offset:{64*rt}", "deg")
    a.vmem(f"buffer_load_dword v{vB2}, v{vT2}, {sr(sB,4)}, s{st1} offen", "deg")
    a.srd(sS, 20, S_OFF, 8 * SS)
    a.srd(sF, 20, W2F_OFF, 262144)
    a.srd(sO, 6, 0, N * 512)
    srot, sFo = 54, 55
    a(f"s_bfe_u32 s{srot}, s2, 0x20004" if OPT["rot"] else f"s_mov_b32 s{srot}, 0", f"s_lshl_b32 s{sFo}, s{scg}, 15")

    def load_ops(j):
        ops = [[f"s_add_u32 s{sn}, s{srot}, {j}", f"s_and_b32 s{sn}, s{sn}, 3", f"s_lshl_b32 s{sK}, s{sn}, 13",
                f"s_add_u32 s{sK}, s{sK}, s{sFo}", f"s_mul_i32 s{sn}, s{sn}, {2*SS}", f"s_add_u32 s{sn}, s{sn}, s{sSo}"]]
        for m in range(5):
            ops.append([f"s_add_u32 s{st1}, s{sw}, {4*m}", f"s_cmp_ge_u32 s{st1}, 10", f"s_cselect_b32 s{st0}, {SS - 10240}, 0",
                        f"s_lshl_b32 s{st1}, s{st1}, 10", f"s_add_u32 m0, s{st1}, {j*20480}", f"s_add_u32 s{st0}, s{st0}, s{st1}",
                        f"s_add_u32 s{st0}, s{st0}, s{sn}",
                        ("vm", f"buffer_load_dwordx4 v{vDm}, {sr(sS,4)}, s{st0} offen lds")])
        for f in range(8):
            n = 8 * j + f
            op = [f"s_add_u32 s{sK}, s{sK}, 4096"] if f == 4 else []
            ops.append(op + [("vm", f"buffer_load_dwordx4 {vr(vB+4*n,4)}, v{vBo}, {sr(sF,4)}, s{sK} offen offset:{1024*(f % 4)}")])
        return ops

    def emit(op, j):
        for x in op:
            if isinstance(x, tuple):
                a.vmem(x[1], f"st{j}")
            else:
                a(x)
    for op in load_ops(0):
        emit(op, 0)
    a.stamp()
    for op in load_ops(1):
        emit(op, 1)
    a.stamp()
    a.wait(vm="deg")
    a(f"s_mov_b32 s{st0}, {NLOG2E}")
    a(f"v_and_b32 v{vB2+1}, 0xffff0000, v{vB2}", f"v_lshlrev_b32 v{vB2}, 16, v{vB2}",
      f"v_mul_f32 v{vB2}, s{st0}, v{vB2}", f"v_mul_f32 v{vB2+1}, s{st0}, v{vB2+1}")
    for rt in range(5):
        for b in range(2):
            for r in range(0, 4, 2):
                a(f"v_pk_mul_f32 {vr(vAcc+8*rt+4*b+r,2)}, {vr(vDg+4*rt+r,2)}, {vr(vB2,2)} op_sel:[0,{b}] op_sel_hi:[1,{b}]")

    def a_reads(s):
        for rt in range(5):
            off = (s >> 1) * 10240 + rt * 2048
            base = vAad + (s & 1)
            if off > 65535:
                base, off = vT0 + (s & 1), off - 40960
            a.lds(f"ds_read_b128 {vr(vA + 20*(s & 1) + 4*rt, 4)}, v{base} offset:{off}", f"a{s}_{rt}")
    a(f"v_add_u32 v{vT0}, 40960, v{vAad}", f"v_add_u32 v{vT1}, 40960, v{vAad+1}")
    for j in range(4):
        a.wait(vm=f"st{j}")
        a("s_barrier")
        a.stamp()
        a_reads(4 * j)
        pend = load_ops(j + 2) if j + 2 < 4 else []
        for s in range(4 * j, 4 * j + 4):
            if s + 1 < 4 * j + 4:
                a_reads(s + 1)
            for rt in range(5):
                a.wait(lg=f"a{s}_{rt}")
                for b in range(2):
                    acc = vAcc + 8 * rt + 4 * b
                    a(f"v_mfma_f32_16x16x32_bf16 {vr(acc,4)}, {vr(vA + 20*(s & 1) + 4*rt, 4)}, {vr(vB + 4*(2*s+b), 4)}, {vr(acc,4)}")
                if pend:
                    emit(pend.pop(0), j + 2)
        assert not pend
    a(f"s_mov_b32 s{sK}, {NLN2}", f"s_mov_b32 s{sK+1}, {NLN2}")
    a(f"s_mul_i32 s{st0}, s{stile}, {80*512}", f"s_lshl_b32 s{st1}, s{scg}, 6", f"s_add_u32 s{sSo}, s{st0}, s{st1}")
    a.stamp()
    a("s_nop 1")
    for rt in range(5):
        acc = vAcc + 8 * rt
        if rt == 4:
            a("s_nop 0")
        for r in range(0, 8, 2):
            a(f"v_pk_mul_f32 {vr(acc+r,2)}, {vr(acc+r,2)}, {sr(sK,2)}")
        for r in range(4):
            a(f"v_cvt_pk_bf16_f32 v{acc+r}, v{acc+r}, v{acc+4+r}")
        a(f"s_add_u32 s{st0}, s{sSo}, {rt*16*512}")
        for r in range(4):
            a(f"buffer_store_dword v{acc+r}, v{vSt}, {sr(sO,4)}, s{st0} offen offset:{512*r}{' sc1' if OPT['sc3'] else ''}")
    a.stamp_dump(sS, 20, sw, 4)
    a("K3_END:", "s_endpgm")
    return a.lines, descriptor("k3_kernel", nv + 1 if STAMPS else nv, 102 if STAMPS else 64)


def k4():
    a = Asm()
    header(a, "k4_kernel")
    a("s_endpgm")
    return a.lines, descriptor("k4_kernel", 8, 16)


def main(path):
    head = [
        "; Edge-featured MPNN layer: out = segment_sum(silu([x[src], x[dst], e] @ w1 + b1) @ w2 + b2, dst)",
        "; k1: P = x@w1[0:256], Q = x@w1[256:512] + b1 (scaled by -log2e), edge partition by dst range, w2 re-layout",
        "; k2: per 64-channel slice, S[n] = sum over in-edges of z/(1+2^z), z = P[src] + Q[n] + e*c",
        "; k3: out = -ln2 * (S @ w2) + deg * b2",
        "; kernarg: x, e_attr, src, dst, w1, b1, w2, b2, out, debug, ws (8 bytes each)",
        f"; @launch kernel=k1_kernel grid=(256,1,1) block=({320 if OPT['helper'] else 256},1,1) lds={K1_LDS}",
        f"; @launch kernel=k2_kernel grid=(256,1,1) block=(1024,1,1) lds={K2_LDS}",
        f"; @launch kernel=k3_kernel grid=(256,1,1) block=(256,1,1) lds={K3_LDS}",
        '.amdgcn_target "amdgcn-amd-amdhsa--gfx950"',
        ".text",
    ]
    for i in range(3):
        if OPT["rep"] >> i & 1:
            j = [n for n, l in enumerate(head) if f"kernel=k{i+1}_kernel" in l][0]
            head.insert(j, head[j])
    if OPT["empty"]:
        head.insert(8, "; @launch kernel=k4_kernel grid=(256,1,1) block=(64,1,1) lds=0")
    body, desc = [], []
    for f in (k1, k2, k3) + ((k4,) if OPT["empty"] else ()):
        b, d = f()
        body += b
        desc += d
    out = head + body + ['.section .rodata,"a"'] + desc
    open(path, "w").write("\n".join(out) + "\n")


if __name__ == "__main__":
    if "--stamps" in sys.argv:
        STAMPS = True
        sys.argv.remove("--stamps")
    for arg in [x for x in sys.argv[1:] if "=" in x]:
        key, val = arg.split("=")
        assert key in OPT, key
        OPT[key] = int(val)
        sys.argv.remove(arg)
    main(sys.argv[1] if len(sys.argv) > 1 else "standalone__edge_featured_mpnn_mpnn__graph.s")
```

```python
import struct
import sys

N, E, D, H = 10000, 160000, 256, 512
TILE1, NT1 = 192, 53
NR = TILE1 * NT1
SS = NR * 128
P_OFF, Q_OFF, S_OFF = 0, 8 * SS, 16 * SS
RNG = 313
NCHUNK, CHUNK, CAP = 32, 5000, 224
R4BLK, R2BLK = NCHUNK * CAP * 4, NCHUNK * CAP * 2
R4_OFF = 24 * SS
R2_OFF = R4_OFF + 32 * R4BLK
NSLOT = 768
B_ORD = NSLOT * 32
B_GB = B_ORD + 1280
B_FLAG = B_GB + 160
B_CTR = B_FLAG + 4
B_GO = B_CTR + 4
BLOB = 26 * 1024
BLOB_OFF = R2_OFF + 32 * R2BLK
DEG_OFF = BLOB_OFF + 32 * BLOB
W2F_OFF = (DEG_OFF + NR * 4 + 1023) // 1024 * 1024
CF_OFF = W2F_OFF + 262144
WS_END = CF_OFF + 4096
MAXDEG = 48
NGRP = 40


def fbits(x):
    return struct.unpack("<I", struct.pack("<f", x))[0]


NLOG2E = fbits(-1.4426950408889634)
NLN2 = fbits(-0.6931471805599453)

assert all((d * 13401) >> 22 == d // RNG for d in range(10016))
assert all((q * 2341) >> 17 == q // 56 for q in range(2048))
assert all((q * 2341) >> 16 == q // 28 for q in range(1024))
assert all((n * 205) >> 11 == n // 10 for n in range(80))


STAMPS = False
OPT = dict(sc1=1, sc3=1, prio=1, empty=0, ipf=1, rot=1, pf=0, light=0, fine=0, la=6, pf0=2, x0pos=0, xrot=0, x1early=0, xspread=1, helper=0, ntx=1, ntw=0, nte=1, blobsc=1, xtouch=7, nto=0, ntw2=0, nolo=1, usem4=1, dup=0, rep=0, clip=1, pfearly=1, pfbar=0, k3opt=1, stag=1, pollf=0, pfq=0, pfw=1)
STAMP_OFF = 48 << 20


class Asm:
    def stamp_setup(self, vreg, kidx):
        self.st_v, self.st_n, self.st_k = vreg, 0, kidx
        if STAMPS:
            self(f"v_mov_b32 v{vreg}, 0", "s_memrealtime s[100:101]", "s_waitcnt lgkmcnt(0)", f"v_writelane_b32 v{vreg}, s100, 29")
            self.stamp()

    def stamp(self, idx=None):
        if STAMPS and not (OPT["light"] and idx != 27 and self.st_n > 0):
            if idx is None:
                idx = self.st_n
                self.st_n += 1
            self("s_waitcnt lgkmcnt(0)", "s_memtime s[100:101]", "s_waitcnt lgkmcnt(0)", f"v_writelane_b32 v{self.st_v}, s100, {idx}")
            self.lg = []

    def stamp_dump(self, srd, wsreg, swave, nwaves, tmp=2):
        if not STAMPS:
            return
        self("s_waitcnt vmcnt(0)")
        self.stamp(27)
        self("s_memrealtime s[100:101]", "s_waitcnt lgkmcnt(0)", f"v_writelane_b32 v{self.st_v}, s100, 28")
        self("s_getreg_b32 s3, hwreg(HW_REG_HW_ID)", f"v_writelane_b32 v{self.st_v}, s3, 30")
        self("s_getreg_b32 s3, hwreg(HW_REG_XCC_ID)", f"v_writelane_b32 v{self.st_v}, s3, 31")
        self.srd(srd, wsreg, STAMP_OFF + (self.st_k << 20), 1 << 20)
        self(f"s_mul_i32 s3, s2, {nwaves}", f"s_add_u32 s3, s3, s{swave}", "s_lshl_b32 s3, s3, 7", "s_mov_b64 exec, -1",
             f"v_and_b32 v{tmp}, 63, v0", f"v_lshlrev_b32 v{tmp}, 2, v{tmp}", "s_mov_b32 exec_hi, 0",
             f"buffer_store_dword v{self.st_v}, v{tmp}, s[{srd}:{srd+3}], s3 offen")

    def __init__(self):
        self.lines = []
        self.vm = []
        self.lg = []

    def __call__(self, *ls):
        for l in ls:
            self.lines.append(l if l.endswith(":") else "    " + l)

    def vmem(self, line, tag=None):
        self(line)
        self.vm.append(tag)

    def lds(self, line, tag=None):
        self(line)
        self.lg.append(tag)

    @staticmethod
    def _need(q, tags):
        last = -1
        for i, t in enumerate(q):
            if t in tags:
                last = i
        return None if last < 0 else len(q) - 1 - last

    def wait(self, vm=None, lg=None):
        parts = []
        if vm is not None:
            n = 0 if vm == "all" else self._need(self.vm, vm if isinstance(vm, (list, tuple, set)) else [vm])
            if n is not None:
                n = min(n, 63)
                parts.append(f"vmcnt({n})")
                self.vm = self.vm[len(self.vm) - n:] if n else []
        if lg is not None:
            n = 0 if lg == "all" else self._need(self.lg, lg if isinstance(lg, (list, tuple, set)) else [lg])
            if n is not None:
                n = min(n, 15)
                parts.append(f"lgkmcnt({n})")
                self.lg = self.lg[len(self.lg) - n:] if n else []
        if parts:
            self("s_waitcnt " + " ".join(parts))

    def srd(self, s, base, off, size, stride=0):
        if off == 0:
            self(f"s_mov_b32 s{s}, s{base}", f"s_and_b32 s{s+1}, s{base+1}, 0xffff")
        else:
            self(f"s_add_u32 s{s}, s{base}, {off}", f"s_addc_u32 s{s+1}, s{base+1}, 0",
                 f"s_and_b32 s{s+1}, s{s+1}, 0xffff")
        if stride:
            self(f"s_or_b32 s{s+1}, s{s+1}, {stride << 16}")
        self(f"s_mov_b32 s{s+2}, {size}", f"s_mov_b32 s{s+3}, 0x20000")


POLLF = ["sc1", "sc0 sc1", "sc1 nt", "sc0 sc1 nt"]


def wt():
    return " sc1" if OPT["sc1"] else ""


def code_prefetch(a, first, last, wshift, vtmp, vsink, tag):
    if not OPT["ipf"]:
        return
    a(f"s_getpc_b64 s[22:23]", f"{tag}_PC:", f"s_sub_u32 s22, s22, {tag}_PC-{first}", "s_subb_u32 s23, s23, 0",
      "s_lshr_b32 s3, s2, 3", f"s_lshl_b32 s3, s3, {wshift + 10}", f"v_lshlrev_b32 v{vtmp}, 4, v0", f"v_add_u32 v{vtmp}, s3, v{vtmp}",
      f"v_cmp_gt_u32 vcc, {last}-{first}-16, v{vtmp}", "s_and_saveexec_b64 s[4:5], vcc", f"s_cbranch_execz {tag}_PCX",
      f"global_load_dwordx4 {vr(vsink,4)}, v{vtmp}, s[22:23]", f"{tag}_PCX:", "s_mov_b64 exec, -1")


def vr(a, n=1):
    return f"v{a}" if n == 1 else f"v[{a}:{a+n-1}]"


def sr(a, n=1):
    return f"s{a}" if n == 1 else f"s[{a}:{a+n-1}]"


def header(a, name):
    a.lines += [f".globl {name}", ".p2align 8", f".type {name},@function", f"{name}:"]


def descriptor(name, nv, ns):
    acc = (nv + 3) // 4 * 4
    return [".p2align 6", f".amdhsa_kernel {name}", f"  .amdhsa_next_free_vgpr {nv}",
            f"  .amdhsa_next_free_sgpr {ns}", f"  .amdhsa_accum_offset {acc}",
            "  .amdhsa_group_segment_fixed_size 0", "  .amdhsa_kernarg_size 88",
            "  .amdhsa_user_sgpr_count 2", "  .amdhsa_user_sgpr_kernarg_segment_ptr 1",
            "  .amdhsa_system_sgpr_workgroup_id_x 1", "  .amdhsa_float_denorm_mode_32 3",
            ".end_amdhsa_kernel"]


K1_REG = 40960
K1_LDS = 4 * K1_REG
K1_CNT = 0
K1_I16 = 256
K1_I32 = K1_I16 + 32 * CAP * 2
K1_C2 = 44 * 1024
K1_H2 = K1_C2 + 4 + 1280
K1_NB = K1_H2 + 260
K1_BL = 47 * 1024
assert K1_I32 + 32 * CAP * 4 <= K1_C2 and K1_NB + 1280 <= K1_BL


def k1():
    a = Asm()
    header(a, "k1_kernel")
    sX, sW, sO, sB = 24, 28, 32, 36
    sw, stile, su, st0, st1, sWB, sXo, sOo, sK, sMask, sRB, sq, sWo, sWn, sWc = 56, 57, 58, 59, 60, 61, 62, 63, 64, 66, 67, 68, 69, 70, 71
    vLane, vT0, vT1, vT2 = 1, 2, 3, 4
    vAad = 6
    vTr = 14
    vXd = 16
    vWd, vSt = 20, 21
    vBias = 22
    vA = 24
    vAcc = 40
    vW = 104
    vWx = vW + 128
    nv = vWx + 3

    a("s_cmp_ge_u32 s2, 256", "s_cbranch_scc1 K1_END")
    a.stamp_setup(5, 0)
    code_prefetch(a, "k1_kernel", "K3_END" if OPT["ipf"] == 1 else "K1_END", 3, 2, vW + 124, "K1")
    a("s_load_dwordx16 s[4:19], s[0:1], 0", "s_load_dwordx2 s[20:21], s[0:1], 80", "s_load_dwordx2 s[52:53], s[0:1], 72")
    a(f"v_lshrrev_b32 v{vT0}, 6, v0", f"v_and_b32 v{vLane}, 63, v0", f"v_readfirstlane_b32 s{sw}, v{vT0}")
    a(f"s_lshr_b32 s{sq}, s2, 3", f"s_cmp_lt_u32 s{sq}, 4", "s_cbranch_scc1 K1_SORT")
    a(f"s_cmp_ge_u32 s{sw}, 4", "s_cbranch_scc1 K1_END", f"s_sub_u32 s{sq}, s{sq}, 4")
    a(f"s_and_b32 s{su}, s{sq}, 3", f"s_lshl_b32 s{su}, s{su}, 2", f"s_lshr_b32 s{sq}, s{sq}, 2",
      f"s_lshl_b32 s{st0}, s{sq}, 3", f"s_and_b32 s{stile}, s2, 7", f"s_add_u32 s{stile}, s{stile}, s{st0}",
      f"s_add_u32 s{su}, s{su}, s{sw}", f"s_cmp_ge_u32 s{stile}, {NT1}", "s_cbranch_scc1 K1_PREP")

    a(f"s_mul_i32 s{sRB}, s{sw}, {K1_REG}", f"s_add_u32 s{sWB}, s{sRB}, 8192")
    a(f"s_mov_b32 s{sK}, {NLOG2E}", f"s_mov_b32 s{sK+1}, {NLOG2E}")
    a(f"s_lshl_b32 s{sq}, s{sq}, 2" if OPT["rot"] else f"s_mov_b32 s{sq}, 0")
    a(f"v_lshrrev_b32 v{vT0}, 5, v{vLane}", f"s_lshl_b32 s{st0}, s{sw}, 3", f"v_add_u32 v{vT0}, s{st0}, v{vT0}",
      f"v_and_b32 v{vT1}, 31, v{vLane}")
    for m in range(4):
        a(f"v_add_u32 v{vT2}, {2*m}, v{vT0}", f"v_and_b32 v{vXd+m}, 15, v{vT2}", f"v_xor_b32 v{vXd+m}, v{vXd+m}, v{vT1}",
          f"v_add_u32 v{vXd+m}, s{sq}, v{vXd+m}", f"v_and_b32 v{vXd+m}, 31, v{vXd+m}",
          f"v_lshlrev_b32 v{vXd+m}, 4, v{vXd+m}", f"v_lshl_add_u32 v{vXd+m}, v{vT0}, 9, v{vXd+m}")
    a(f"s_mul_i32 s{sXo}, s{stile}, {TILE1*512}")
    sJ = 40
    a(f"s_lshr_b32 s{sJ}, s{su}, 2" if OPT["xrot"] else f"s_mov_b32 s{sJ}, 0")
    for j in range(1, TILE1 // 32):
        a(f"s_add_u32 s{sJ+j}, s{sJ+j-1}, 1", f"s_cmp_eq_u32 s{sJ+j}, {TILE1 // 32}", f"s_cselect_b32 s{sJ+j}, 0, s{sJ+j}")
    a(f"v_lshrrev_b32 v{vT0}, 3, v{vLane}", f"v_and_b32 v{vT1}, 7, v{vLane}", f"v_and_b32 v{vT2}, 16, v{vLane}",
      f"v_lshrrev_b32 v{vT2}, 2, v{vT2}", f"v_xor_b32 v{vT1}, v{vT1}, v{vT2}", f"v_lshlrev_b32 v{vT1}, 4, v{vT1}",
      f"v_lshl_add_u32 v{vWd}, v{vT0}, 10, v{vT1}")
    for i in range(1, 4):
        a(f"v_add_u32 v{vWx+i-1}, {7168*i}, v{vWd}")
    a(f"s_lshr_b32 s{st0}, s{su}, 3", f"s_lshl_b32 s{st0}, s{st0}, 18", f"s_and_b32 s{sMask}, s{su}, 7",
      f"s_lshl_b32 s{sMask}, s{sMask}, 7", f"s_add_u32 s{sWo}, s{st0}, s{sMask}", f"s_lshl_b32 s{sWn}, s{sq}, 13")
    a(f"v_and_b32 v{vT0}, 31, v{vLane}", f"v_lshrrev_b32 v{vT1}, 3, v{vT0}", f"v_mul_u32_u24 v{vAad}, {K1_REG}, v{vT1}",
      f"v_and_b32 v{vT1}, 7, v{vT0}", f"v_lshl_add_u32 v{vAad}, v{vT1}, 9, v{vAad}",
      f"v_lshrrev_b32 v{vT1}, 5, v{vLane}", f"v_and_b32 v{vT2}, 15, v{vLane}", f"v_xor_b32 v{vT2}, v{vT2}, v{vT1}",
      f"v_lshl_add_u32 v{vAad}, v{vT2}, 4, v{vAad}")
    for s in range(1, 8):
        a(f"v_xor_b32 v{vAad+s}, {32*s}, v{vAad}")
    a(f"v_lshlrev_b32 v{vSt}, 9, v{vT1}", f"v_lshl_add_u32 v{vSt}, v{vT0}, 2, v{vSt}")
    a(f"v_lshlrev_b32 v{vTr}, 10, v{vT1}", f"v_bfe_u32 v{vT2}, v{vLane}, 2, 2", f"v_lshl_add_u32 v{vTr}, v{vT2}, 7, v{vTr}",
      f"v_bfe_u32 v{vT2}, v{vLane}, 3, 1", f"v_lshl_add_u32 v{vTr}, v{vT2}, 6, v{vTr}",
      f"v_bfe_u32 v{vT2}, v{vLane}, 4, 1", f"v_lshl_add_u32 v{vTr}, v{vT2}, 5, v{vTr}",
      f"v_and_b32 v{vT2}, 3, v{vLane}", f"v_lshl_add_u32 v{vTr}, v{vT2}, 3, v{vTr}",
      f"v_add_u32 v{vTr}, s{sWB}, v{vTr}", f"v_xor_b32 v{vTr+1}, 64, v{vTr}", f"v_lshlrev_b32 v{vT0}, 1, v{vT0}")
    a(f"s_mul_i32 s{sOo}, s{su}, {SS}", f"s_mul_i32 s{st0}, s{stile}, {TILE1*128}", f"s_add_u32 s{sOo}, s{sOo}, s{st0}")
    a("s_waitcnt lgkmcnt(0)")
    a.srd(sX, 4, 0, N * 512)
    a.srd(sW, 12, 0, 513 * 1024)

    def x_dma(j):
        a(f"s_add_u32 m0, s{sRB}, {j*4096}", f"s_lshl_b32 s{st0}, s{sJ+j}, 14", f"s_add_u32 s{st0}, s{st0}, s{sXo}")
        for m in range(4):
            a.vmem(f"buffer_load_dwordx4 v{vXd+m}, {sr(sX,4)}, s{st0} offen offset:{1024*m}{' nt' if OPT['ntx'] else ''} lds", f"x{j}")

    def w_dma(s):
        if s % 2 == 0:
            a(f"s_add_u32 m0, s{sWB}, {s*2048}", f"s_add_u32 s{sWc}, s{sWo}, s{sWn}")
        elif OPT["x0pos"] == s:
            a(f"s_add_u32 m0, s{sWB}, {(s-1)*2048}", "s_nop 0")
        for i in (2 * (s % 2), 2 * (s % 2) + 1):
            reg = vWd if i == 0 else vWx + i - 1
            a.vmem(f"buffer_load_dwordx4 v{reg}, {sr(sW,4)}, s{sWc} offen offset:{1024*i}{' nt' if OPT['ntw'] else ''} lds", f"w{s}")
        if s % 2 == 1:
            a(f"s_add_u32 s{sWn}, s{sWn}, 32768", f"s_and_b32 s{sWn}, s{sWn}, 0x3ffff")

    def x_touch():
        a(f"s_lshr_b32 s{st0}, s{su}, 2", f"s_mul_i32 s{st0}, s{st0}, {TILE1*128}", f"s_mul_i32 s{st1}, s{sw}, {TILE1*32}",
          f"s_add_u32 s{st0}, s{st0}, s{st1}", f"s_add_u32 s{st0}, s{st0}, s{sXo}", f"v_lshlrev_b32 v{vT1}, 7, v{vLane}",
          f"s_mov_b32 exec_hi, {(1 << (TILE1 // 4 - 32)) - 1}")
        a.vmem(f"buffer_load_dword v{vT2}, v{vT1}, {sr(sX,4)}, s{st0} offen{' nt' if OPT['ntx'] else ''}", "touch")
        a("s_mov_b32 exec_hi, -1")

    LA = OPT["la"]
    a.stamp()
    if OPT["xtouch"] == 1:
        x_touch()
    for s in range(LA):
        if s == OPT["x0pos"]:
            x_dma(0)
        w_dma(s)
        if OPT["xtouch"] == 2 + s:
            x_touch()
    if OPT["x1early"]:
        x_dma(1)
    a.srd(sO, 20, 0, 16 * SS)
    if OPT["dup"]:
        a.srd(48, 20, 64 << 20, 16 * SS)
    a.srd(sB, 14, 0, 1024)
    a(f"s_cmp_ge_u32 s{su}, 8", f"s_cselect_b32 s{sB+2}, s{sB+2}, 0")
    a.stamp()

    def wfrag(s, b):
        return vW + (s * 2 + b) * 4

    def a_read(j, s):
        a.lds(f"ds_read_b128 {vr(vA + 4*((16*j+s) % 4), 4)}, v{vAad + (s & 7)} offset:{4096*j + 256*(s >> 3)}", f"a{j}_{s}")

    def w_read(s):
        a.wait(vm=f"w{s}")
        for b in range(2):
            for q in range(2):
                a.lds(f"ds_read_b64_tr_b16 {vr(wfrag(s, b) + 2*q, 2)}, v{vTr+b} offset:{s*2048 + q*512}", f"t{s}")

    def mfma(j, s, b):
        acc = vAcc + 32 * (j & 1) + 16 * b
        c = "0" if s == 0 else vr(acc, 16)
        a(f"v_mfma_f32_32x32x16_bf16 {vr(acc,16)}, {vr(vA + 4*((16*j+s) % 4), 4)}, {vr(wfrag(s, b), 4)}, {c}")

    def epilogue_ops(j):
        acc = vAcc + 32 * (j & 1)
        ops = [("s", f"s_lshl_b32 s{st1}, s{sJ+j}, 12"), ("s", f"s_add_u32 s{st1}, s{st1}, s{sOo}")]
        for r in range(0, 16, 2):
            for rr in (r, r + 1):
                ops.append(("v", f"v_fma_f32 v{acc+rr}, v{acc+rr}, s{sK}, v{vBias}"))
                ops.append(("v", f"v_fma_f32 v{acc+16+rr}, v{acc+16+rr}, s{sK}, v{vBias+1}"))
            for rr in (r, r + 1):
                ops.append(("v", f"v_cvt_pk_bf16_f32 v{acc+rr}, v{acc+rr}, v{acc+16+rr}"))
            for rr in (r, r + 1):
                ops.append(("m", f"buffer_store_dword v{acc+rr}, v{vSt}, {sr(sO,4)}, s{st1} offen offset:{(8*(rr>>2) + (rr&3))*128}{wt()}"))
        return ops

    def emit_op(op):
        if op[0] == "m":
            a.vmem(op[1], "st")
            if OPT["dup"]:
                a.vmem(op[1].replace(sr(sO, 4), sr(48, 4)), "st")
        else:
            a(op[1])

    NJ = TILE1 // 32
    a.wait(vm="x0")
    a("s_barrier")
    a.stamp()
    PF0 = OPT["pf0"]
    for s in range(PF0):
        w_read(s)
        a_read(0, s)
    for s in range(16):
        if s + PF0 < 16:
            w_read(s + PF0)
            a_read(0, s + PF0)
        a.wait(lg=[f"t{s}", f"a0_{s}"])
        mfma(0, s, 0)
        if s + LA < 16:
            w_dma(s + LA)
        elif s + LA == 16:
            if not OPT["x1early"]:
                x_dma(1)
            a.vmem(f"buffer_load_ushort v{vBias}, v{vT0}, {sr(sB,4)}, s{sMask} offen", "x1")
            a.vmem(f"buffer_load_ushort v{vBias+1}, v{vT0}, {sr(sB,4)}, s{sMask} offen offset:64", "x1")
        elif s + LA - 15 < (3 if OPT["xspread"] else NJ):
            x_dma(s + LA - 15)
        mfma(0, s, 1)
        if OPT["fine"] and s % 2 == 1 and s < 15:
            a.stamp()
    PFA = 3
    a.stamp()
    a.wait(vm="x1")
    a("s_barrier")
    for s in range(PFA):
        a_read(1, s)
    a(f"v_lshlrev_b32 v{vBias}, 16, v{vBias}", f"v_lshlrev_b32 v{vBias+1}, 16, v{vBias+1}",
      f"v_mul_f32 v{vBias}, s{sK}, v{vBias}", f"v_mul_f32 v{vBias+1}, s{sK}, v{vBias+1}")
    a.stamp()
    for j in range(1, NJ):
        ops = epilogue_ops(j - 1)
        for s in range(16):
            if s + PFA == 16 and j < NJ - 1:
                a.wait(vm=f"x{j+1}")
                a("s_barrier")
            a.wait(lg=f"a{j}_{s}")
            mfma(j, s, 0)
            if OPT["xspread"] and s == 1 and j + 2 < NJ:
                x_dma(j + 2)
            if s + PFA < 16:
                a_read(j, s + PFA)
            elif j < NJ - 1:
                a_read(j + 1, s + PFA - 16)
            if s >= 3:
                for _ in range(3 if s == 3 else 2):
                    if ops:
                        emit_op(ops.pop(0))
            mfma(j, s, 1)
            if s >= 3:
                for _ in range(3):
                    if ops:
                        emit_op(ops.pop(0))
        assert not ops
        a.stamp()
    a("s_nop 15")
    for op in epilogue_ops(NJ - 1):
        emit_op(op)
    a.stamp_dump(sX, 20, sw, 8)
    a("s_endpgm")

    a("K1_PREP:")
    a.vm, a.lg = [], []
    a(f"s_cmp_ge_u32 s{stile}, {NT1 + 2}", "s_cbranch_scc1 K1_CPREP")
    sW2, sF = sX, sW
    vL = vW
    vOut = vW + 32
    a(f"s_sub_u32 s{st0}, s{stile}, {NT1}", f"s_lshl_b32 s{st0}, s{st0}, 4", f"s_add_u32 s{su}, s{su}, s{st0}")
    a(f"v_and_b32 v{vT0}, 15, v{vLane}", f"v_lshrrev_b32 v{vT1}, 4, v{vLane}", f"v_lshlrev_b32 v{vT0}, 2, v{vT0}",
      f"v_lshl_add_u32 v{vWd}, v{vT1}, 11, v{vT0}", f"v_lshlrev_b32 v{vSt}, 4, v{vLane}")
    a(f"s_lshr_b32 s{st0}, s{su}, 2", f"s_lshl_b32 s{st0}, s{st0}, 6", f"s_and_b32 s{st1}, s{su}, 3",
      f"s_lshl_b32 s{st1}, s{st1}, 16", f"s_add_u32 s{sXo}, s{st0}, s{st1}", f"s_lshl_b32 s{sOo}, s{su}, 13")
    a("s_waitcnt lgkmcnt(0)")
    a.srd(sW2, 16, 0, 512 * 512)
    a.srd(sF, 20, W2F_OFF, 262144)
    for s in range(4):
        for i in range(8):
            row = (s >> 1) * 64 + 16 * (s & 1) + (i >> 1) + 32 * (i & 1)
            a(f"s_add_u32 s{st0}, s{sXo}, {row*512}")
            a.vmem(f"buffer_load_dword v{vL + 8*s + i}, v{vWd}, {sr(sW2,4)}, s{st0} offen{' nt' if OPT['ntw2'] else ''}", f"l{s}")
    a(f"s_mov_b32 s{sK}, 0x05040100", f"s_mov_b32 s{sK+1}, 0x07060302")
    for s in range(4):
        a.wait(vm=f"l{s}")
        for b in range(2):
            o = vOut + 8 * s + 4 * b
            for m in range(4):
                a(f"v_perm_b32 v{o+m}, v{vL + 8*s + 2*m + 1}, v{vL + 8*s + 2*m}, s{sK+b}")
            a(f"s_add_u32 s{st0}, s{sOo}, {(2*s+b)*1024}")
            a.vmem(f"buffer_store_dwordx4 {vr(o,4)}, v{vSt}, {sr(sF,4)}, s{st0} offen{wt()}")
    a("s_endpgm")

    a("K1_CPREP:")
    a(f"s_cmp_ge_u32 s{su}, 8", "s_cbranch_scc1 K1_END")
    a(f"v_and_b32 v{vT1}, 1, v{vLane}", f"v_lshlrev_b32 v{vT1}, 6, v{vT1}",
      f"v_bfe_u32 v{vT2}, v{vLane}, 2, 1", f"v_lshl_add_u32 v{vT1}, v{vT2}, 5, v{vT1}",
      f"v_bfe_u32 v{vT2}, v{vLane}, 3, 1", f"v_lshl_add_u32 v{vT1}, v{vT2}, 2, v{vT1}",
      f"v_bfe_u32 v{vT2}, v{vLane}, 1, 1", f"v_lshl_add_u32 v{vT1}, v{vT2}, 1, v{vT1}",
      f"v_bfe_u32 v{vT0}, v{vLane}, 4, 1", f"v_lshrrev_b32 v{vT2}, 5, v{vLane}", f"v_cmp_eq_u32 vcc, v{vT0}, v{vT2}",
      f"v_lshlrev_b32 v{vT0}, 3, v{vLane}", f"s_lshl_b32 s{st0}, s{su}, 7", f"s_lshl_b32 s{st1}, s{su}, 9",
      f"s_mov_b32 s{sK}, {NLOG2E}", "s_waitcnt lgkmcnt(0)")
    a.srd(sX, 12, 512 * 1024, 1024)
    a.srd(sW, 20, CF_OFF, 4096)
    for i in range(4):
        a(f"buffer_load_ushort v{8+i}, v{vT1}, {sr(sX,4)}, s{st0} offen offset:{8*i}")
    a("s_waitcnt vmcnt(0)")
    for i in range(4):
        a(f"v_lshlrev_b32 v{8+i}, 16, v{8+i}", f"v_mul_f32 v{8+i}, s{sK}, v{8+i}")
    a("v_cvt_pk_bf16_f32 v12, v8, v9", "v_cvt_pk_bf16_f32 v13, v10, v11", "v_cndmask_b32 v12, 0, v12, vcc", "v_cndmask_b32 v13, 0, v13, vcc",
      f"buffer_store_dwordx2 v[12:13], v{vT0}, {sr(sW,4)}, s{st1} offen{wt()}", "s_endpgm")

    a("K1_SORT:")
    a.vm, a.lg = [], []
    nt = " nt" if OPT["nte"] else ""
    sDst, sSrc, sE, sR4, sR2, sDb, sBl, sDg = 24, 28, 32, 36, 40, 44, 24, 28
    sc = su
    vDst, vSrc, vEe, vSl, vRg, vRd, vCn, vRo = 8, 20, 32, 40, 56, 72, 96, 100
    vOne, vBig, vO16, vO8 = 6, 7, 108, 109
    a(f"s_mov_b32 s{sc}, s2")
    a(f"v_lshlrev_b32 v{vO16}, 4, v0", f"v_lshlrev_b32 v{vO8}, 3, v0")
    a(f"s_mul_i32 s{st0}, s{sc}, {CHUNK*4}", f"s_mul_i32 s{st1}, s{sc}, {CHUNK*2}")
    for r in range(4):
        a(f"v_mov_b32 v{vRd+r}, 0", f"v_mov_b32 v{vRd+4+r}, 0xffff")
    for i in range(2):
        a(f"ds_write_b128 v{vO16}, {vr(vRd,4)} offset:{8192*i}")
    a(f"ds_write_b64 v{vO8}, {vr(vRd,2)} offset:{K1_C2}")
    a("s_waitcnt lgkmcnt(0)")
    a.srd(sDst, 10, f"s{st0}", CHUNK * 4)
    for i in range(3):
        a(f"s_mov_b32 s{sXo}, {8192*i}")
        a.vmem(f"buffer_load_dwordx4 {vr(vDst+4*i,4)}, v{vO16}, {sr(sDst,4)}, s{sXo} offen{nt}", f"d{i}")
    a("s_barrier")
    a.srd(sSrc, 8, f"s{st0}", CHUNK * 4)
    a.srd(sE, 6, f"s{st1}", CHUNK * 2)
    for i in range(3):
        a(f"s_mov_b32 s{st0}, {8192*i}", f"s_mov_b32 s{st1}, {4096*i}")
        a.vmem(f"buffer_load_dwordx4 {vr(vSrc+4*i,4)}, v{vO16}, {sr(sSrc,4)}, s{st0} offen{nt}", f"s{i}")
        a.vmem(f"buffer_load_dwordx2 {vr(vEe+2*i,2)}, v{vO8}, {sr(sE,4)}, s{st1} offen{nt}", f"s{i}")
    a.stamp(7)
    a.srd(sR4, 20, R4_OFF, 32 * R4BLK)
    a.srd(sR2, 20, R2_OFF, 32 * R2BLK)
    a.srd(sDb, 52, 0, 256)
    a(f"s_mov_b32 s{st0}, 13401", f"s_mov_b32 s{st1}, {-RNG & 0xffffffff}", f"s_mov_b32 s{sMask}, 0xffff0000",
      f"v_mov_b32 v{vOne}, 1", f"v_cmp_gt_u32 vcc, {CHUNK//4 - 1024}, v0", f"s_mov_b64 {sr(sK,2)}, vcc",
      f"s_mov_b32 s{sXo}, {CAP}")

    a.stamp(8)
    for i in range(3):
        a.wait(vm=f"d{i}")
        if i == 0:
            a.stamp(9)
        if i == 2:
            a(f"s_mov_b64 exec, {sr(sK,2)}")
        for n in range(4 * i, 4 * i + 4):
            a(f"v_mul_u32_u24 v{vRg+n}, s{st0}, v{vDst+n}", f"v_lshrrev_b32 v{vRg+n}, 22, v{vRg+n}",
              f"v_lshlrev_b32 v{vSl+n}, 2, v{vRg+n}")
            a.lds(f"ds_add_rtn_u32 v{vSl+n}, v{vSl+n}, v{vOne} offset:{K1_CNT}", f"sl{n}")
            a(f"v_mad_i32_i24 v{vDst+n}, v{vRg+n}, s{st1}, v{vDst+n}", f"v_lshl_add_u32 v{vDst+n}, v{vDst+n}, 2, 4")
        if i == 2:
            a("s_mov_b64 exec, -1")
    a.stamp(10)
    for n in range(12):
        if n == 8:
            a(f"s_mov_b64 exec, {sr(sK,2)}")
        a.wait(lg=f"sl{n}")
        a(f"v_min_u32 v{vSl+n}, {CAP - 1}, v{vSl+n}", f"v_mad_u32_u24 v{vSl+n}, v{vRg+n}, s{sXo}, v{vSl+n}",
          f"v_lshlrev_b32 v{vRg+n}, 1, v{vSl+n}")
        a.lds(f"ds_write_b16 v{vRg+n}, v{vDst+n} offset:{K1_I16}")
    a("s_mov_b64 exec, -1")
    a(f"s_mul_i32 s{st0}, s{sc}, {CAP*4}", f"s_mul_i32 s{st1}, s{sc}, {CAP*2}",
      f"s_mov_b32 s{sXo}, {R4BLK - CAP*4}", f"s_mov_b32 s{sOo}, {R2BLK - CAP*2}")
    for i in range(2):
        a(f"v_add_u32 v{vT2}, {512*i}, v0", f"v_mul_u32_u24 v{vT2}, 2341, v{vT2}", f"v_lshrrev_b32 v{vT2}, 16, v{vT2}",
          f"v_mad_u32_u24 v{vRo+4+i}, v{vT2}, s{sOo}, v{vO16}", f"v_add_u32 v{vRo+4+i}, {8192*i}, v{vRo+4+i}",
          f"v_lshlrev_b32 v{vCn+i}, 2, v{vT2}")
    a.wait(lg="all")
    a("s_barrier")
    a.stamp(1)
    for i in range(2):
        a.lds(f"ds_read_b128 {vr(vRd+16+4*i,4)}, v{vO16} offset:{K1_I16 + 8192*i}", f"h{i}")
        a.lds(f"ds_read_b32 v{vCn+i}, v{vCn+i} offset:{K1_CNT}", f"h{i}")
    for i in range(2):
        a.wait(lg=f"h{i}")
        a(f"v_cmp_ge_u32 vcc, {CAP}, v{vCn+i}", "s_nop 1", f"v_cndmask_b32 v{vRd+16+4*i}, -1, v{vRd+16+4*i}, vcc")
        a.vmem(f"buffer_store_dwordx4 {vr(vRd+16+4*i,4)}, v{vRo+4+i}, {sr(sR2,4)}, s{st1} offen sc1", "r2")
    for i in range(3):
        a.wait(vm=f"s{i}")
        if i == 2:
            a(f"s_mov_b64 exec, {sr(sK,2)}")
        for n in range(4 * i, 4 * i + 4):
            if n & 1:
                a(f"v_and_or_b32 v{vSrc+n}, v{vEe+n//2}, s{sMask}, v{vSrc+n}")
            else:
                a(f"v_lshl_or_b32 v{vSrc+n}, v{vEe+n//2}, 16, v{vSrc+n}")
            a(f"v_lshlrev_b32 v{vSl+n}, 2, v{vSl+n}")
            a.lds(f"ds_write_b32 v{vSl+n}, v{vSrc+n} offset:{K1_I32}")
    a("s_mov_b64 exec, -1")
    for i in range(4):
        a(f"v_add_u32 v{vT2}, {512*i}, v0", f"v_mul_u32_u24 v{vT2}, 2341, v{vT2}", f"v_lshrrev_b32 v{vT2}, 17, v{vT2}",
          f"v_mad_u32_u24 v{vRo+i}, v{vT2}, s{sXo}, v{vO16}", f"v_add_u32 v{vRo+i}, {8192*i}, v{vRo+i}")
    a(f"s_lshl_b32 s{sWo}, s{sc}, 2", f"v_mov_b32 v{vBig}, s{sWo}")
    a.wait(vm="all", lg="all")
    a("s_barrier")
    a.stamp(11)
    a(f"s_cmp_lg_u32 s{sw}, 0", "s_cbranch_scc1 K1_F1", "s_mov_b64 exec, 1",
      f"buffer_store_dword v{vOne}, v{vBig}, {sr(sDb,4)}, 0 offen sc1", "s_mov_b64 exec, -1", "K1_F1:")
    for i in range(4):
        a.lds(f"ds_read_b128 {vr(vRd+4*i,4)}, v{vO16} offset:{K1_I32 + 8192*i}", f"g{i}")
    for i in range(4):
        a.wait(lg=f"g{i}")
        a.vmem(f"buffer_store_dwordx4 {vr(vRd+4*i,4)}, v{vRo+i}, {sr(sR4,4)}, s{st0} offen sc1")
    a(f"s_mul_i32 s{st0}, s{sc}, {R4BLK}", f"s_add_u32 s{st0}, s{st0}, {R4_OFF}", f"s_mul_i32 s{st1}, s{sc}, {R2BLK}",
      f"s_add_u32 s{st1}, s{st1}, {R2_OFF}", f"s_mul_i32 s{sXo}, s{sc}, {BLOB}", f"s_add_u32 s{sXo}, s{sXo}, {BLOB_OFF}",
      f"s_mul_i32 s{sOo}, s{sc}, {RNG}", f"s_sub_u32 s{sWn}, {N}, s{sOo}", f"s_min_u32 s{sWn}, s{sWn}, {RNG}",
      f"s_lshl_b32 s{sWn}, s{sWn}, 2", f"s_lshl_b32 s{sOo}, s{sOo}, 2", f"s_add_u32 s{sOo}, s{sOo}, {DEG_OFF}")
    a.srd(sBl, 20, f"s{sXo}", BLOB)
    a.srd(sDg, 20, f"s{sOo}", f"s{sWn}")
    for r in range(4):
        a(f"v_mov_b32 v{vDst+r}, 0xffff")
    a(f"v_add_u32 v{vT0}, {K1_BL}, v{vO16}", f"v_mov_b32 v{vDst+4}, 0", f"v_mov_b32 v{vDst+5}, {K1_BL + BLOB}")
    for i in range(3):
        a(f"ds_write_b128 v{vT0}, {vr(vDst,4)} offset:{8192*i}")
    a(f"v_lshlrev_b32 v{vT1}, 2, v0", f"v_add_u32 v{vT1}, {K1_BL + B_ORD}, v{vT1}", f"ds_write_b32 v{vT1}, v{vDst+4}",
      f"v_mov_b32 v{vT1}, {K1_NB - 4}", f"ds_write_b32 v{vT1}, v{vDst+5}")
    for n in range(16):
        a(f"v_mov_b32 v{48+n}, 0")
    a("s_waitcnt vmcnt(0) lgkmcnt(0)")
    a.vm, a.lg = [], []
    a.srd(sR4, 20, f"s{st0}", R4BLK)
    a.srd(sR2, 20, f"s{st1}", R2BLK)
    a("s_barrier")
    a.stamp(2)

    vFa, vFd = 110, 111
    a(f"v_lshlrev_b32 v{vFa}, 2, v{vLane}")

    def poll_issue(tag, word, wave):
        a(f"s_cmp_lg_u32 s{sw}, {wave}", f"s_cbranch_scc1 K1_{tag}I", "s_mov_b32 exec_hi, 0",
          f"buffer_load_dword v{vFd}, v{vFa}, {sr(sDb,4)}, 0 offen offset:{word} {POLLF[OPT['pollf']]}", "s_mov_b32 exec_hi, -1", f"K1_{tag}I:")

    def poll(tag, word, wave):
        a(f"s_cmp_lg_u32 s{sw}, {wave}", f"s_cbranch_scc1 K1_{tag}X", "s_mov_b32 exec_hi, 0", f"s_mov_b32 s{sWc}, 0")
        a(f"K1_{tag}L:")
        a("s_waitcnt vmcnt(0)", f"v_cmp_eq_u32 vcc, 0, v{vFd}", f"s_cbranch_vccz K1_{tag}D",
          f"buffer_load_dword v{vFd}, v{vFa}, {sr(sDb,4)}, 0 offen offset:{word} {POLLF[OPT['pollf']]}", f"s_add_u32 s{sWc}, s{sWc}, 1",
          f"s_cmp_lt_u32 s{sWc}, 0x40000", f"s_cbranch_scc1 K1_{tag}L")
        a("s_waitcnt vmcnt(0)", f"v_mov_b32 v{vFd}, {K1_BL + B_FLAG}",
          f"ds_write_b32 v{vFd}, v{vOne}", "s_waitcnt lgkmcnt(0)")
        a(f"K1_{tag}D:", "s_mov_b64 exec, -1", f"K1_{tag}X:")
    a(f"s_cmp_lg_u32 s{sw}, 1", "s_cbranch_scc1 K1_F2", "s_mov_b64 exec, 1",
      f"buffer_store_dword v{vOne}, v{vBig}, {sr(sDb,4)}, 0 offen offset:128 sc1", "s_mov_b64 exec, -1", "K1_F2:")
    poll_issue("PA", 0, 0)
    poll("PA", 0, 0)
    a("s_barrier")
    a.stamp(3)
    vR2, vR4, vDl, vS2 = 8, 16, 32, 48
    vDeg, vP, vBin, vPos, vDf = 64, 65, 66, 67, 70
    for i in range(4):
        a(f"s_mov_b32 s{st0}, {4096*i}")
        a.vmem(f"buffer_load_dwordx2 {vr(vR2+2*i,2)}, v{vO8}, {sr(sR2,4)}, s{st0} offen sc1", f"h{i}")
    a(f"v_mov_b32 v{vT2}, 0")
    for i in range(4):
        a.wait(vm=f"h{i}")
        if i == 0:
            a.stamp(12)
            poll_issue("PB", 128, 7)
        for n in range(4 * i, 4 * i + 4):
            if n & 1:
                a(f"v_ashrrev_i32 v{vDl+n}, 16, v{vR2+n//2}")
            else:
                a(f"v_bfe_i32 v{vDl+n}, v{vR2+n//2}, 0, 16")
        a(f"v_min_i32 v{vT2}, v{vDl+4*i}, v{vT2}")
        for n in range(4 * i, 4 * i + 4):
            a(f"v_cmpx_lt_i32 vcc, 0, v{vDl+n}")
            a.lds(f"ds_add_rtn_u32 v{vS2+n}, v{vDl+n}, v{vOne} offset:{K1_C2}")
            a("s_mov_b64 exec, -1")
    a(f"v_mov_b32 v{vT0}, {K1_BL + B_FLAG}", f"v_cmpx_gt_i32 vcc, 0, v{vT2}")
    a.lds(f"ds_write_b32 v{vT0}, v{vOne}")
    a("s_mov_b64 exec, -1")
    a.wait(lg="all")
    poll("PB", 128, 7)
    a("s_barrier")
    a.stamp(4)
    for i in range(4):
        a(f"s_mov_b32 s{st0}, {8192*i}")
        a.vmem(f"buffer_load_dwordx4 {vr(vR4+4*i,4)}, v{vO16}, {sr(sR4,4)}, s{st0} offen sc1", f"g{i}")
    a(f"s_cmp_ge_u32 s{sw}, 5", "s_cbranch_scc1 K1_D1")
    a(f"v_lshlrev_b32 v{vT1}, 2, v0", f"ds_read_b32 v{vDeg}, v{vT1} offset:{K1_C2 + 4}", "s_waitcnt lgkmcnt(0)")
    a(f"v_cvt_f32_u32 v{vDf}, v{vDeg}", f"v_cmp_lt_u32 {sr(sK,2)}, {MAXDEG}, v{vDeg}", f"v_min_u32 v{vDeg}, {MAXDEG}, v{vDeg}",
      f"v_sub_u32 v{vBin}, 63, v{vDeg}", f"v_lshlrev_b32 v{vBin}, 2, v{vBin}",
      f"ds_add_rtn_u32 v{vP}, v{vBin}, v{vOne} offset:{K1_H2}",
      f"s_mov_b64 exec, {sr(sK,2)}", f"ds_write_b32 v{vT0}, v{vOne}", "s_mov_b64 exec, -1", "s_waitcnt lgkmcnt(0)")
    a("K1_D1:", "s_barrier")

    def scan(reg):
        a("s_nop 1")
        for ctrl in ("row_shr:1", "row_shr:2", "row_shr:4", "row_shr:8"):
            a(f"v_add_u32_dpp v{reg}, v{reg}, v{reg} {ctrl} row_mask:0xf bank_mask:0xf bound_ctrl:1", "s_nop 1")
        a(f"v_add_u32_dpp v{reg}, v{reg}, v{reg} row_bcast:15 row_mask:0xa bank_mask:0xf", "s_nop 1")
        a(f"v_add_u32_dpp v{reg}, v{reg}, v{reg} row_bcast:31 row_mask:0xc bank_mask:0xf", "s_nop 1")
    vA0, vA1 = 68, 69
    a(f"s_cmp_ge_u32 s{sw}, 5", "s_cbranch_scc1 K1_D2")
    a(f"v_lshlrev_b32 v{vA0}, 2, v{vLane}", f"ds_read_b32 v{vA1}, v{vA0} offset:{K1_H2}", "s_waitcnt lgkmcnt(0)",
      f"v_mov_b32 v{vA0}, v{vA1}")
    scan(vA0)
    a(f"v_sub_u32 v{vA0}, v{vA0}, v{vA1}", f"ds_bpermute_b32 v{vPos}, v{vBin}, v{vA0}",
      f"v_lshl_or_b32 v{vDeg}, v{vDeg}, 16, v0", "s_waitcnt lgkmcnt(0)",
      f"v_add_u32 v{vPos}, v{vPos}, v{vP}", f"v_lshlrev_b32 v{vA0}, 2, v{vPos}", f"v_add_u32 v{vA0}, {K1_BL + B_ORD}, v{vA0}",
      f"ds_write_b32 v{vA0}, v{vDeg}", "s_waitcnt lgkmcnt(0)")
    a("K1_D2:", "s_barrier")
    a(f"s_cmp_ge_u32 s{sw}, 5", "s_cbranch_scc1 K1_D3")
    a(f"v_lshlrev_b32 v{vA0}, 5, v{vLane}", f"v_add_u32 v{vA0}, {K1_BL + B_ORD}, v{vA0}", f"ds_read_b32 v{vA1}, v{vA0}",
      f"v_cmp_gt_u32 vcc, {NGRP}, v{vLane}", "s_waitcnt lgkmcnt(0)", f"v_lshrrev_b32 v{vA1}, 16, v{vA1}",
      f"v_cndmask_b32 v{vA1}, 0, v{vA1}, vcc", f"v_mov_b32 v{vA0}, v{vA1}")
    scan(vA0)
    a(f"v_readlane_b32 s{st0}, v{vA0}, 63", f"v_sub_u32 v{vA0}, v{vA0}, v{vA1}", f"v_lshlrev_b32 v{vA0}, 5, v{vA0}",
      f"v_lshrrev_b32 v{vA1}, 3, v{vPos}", f"v_lshlrev_b32 v{vA1}, 2, v{vA1}", f"ds_bpermute_b32 v{vA1}, v{vA1}, v{vA0}",
      f"v_and_b32 v{vPos}, 7, v{vPos}", f"v_lshlrev_b32 v{vP}, 2, v{vLane}", f"v_add_u32 v{vP}, {K1_BL + B_GB}, v{vP}",
      "s_mov_b64 exec, vcc", f"ds_write_b32 v{vP}, v{vA0}", "s_mov_b64 exec, -1",
      f"s_cmp_le_u32 s{st0}, {NSLOT - 8}", "s_cbranch_scc1 K1_FITS", f"ds_write_b32 v{vT0}, v{vOne}", "K1_FITS:",
      "s_waitcnt lgkmcnt(0)", f"v_lshl_add_u32 v{vA1}, v{vPos}, 2, v{vA1}", f"v_add_u32 v{vA1}, {K1_BL}, v{vA1}",
      f"ds_write_b32 v{vT1}, v{vA1} offset:{K1_NB}", "s_waitcnt lgkmcnt(0)")
    a("K1_D3:", "s_barrier")
    a.stamp(5)
    a.lg = []
    a(f"ds_read_b32 v{vT2}, v{vT0}")
    for n in range(8):
        a.lds(f"ds_read_b32 v{vR2+n}, v{vDl+n} offset:{K1_NB - 4}", f"nb{n}")
    a("s_waitcnt lgkmcnt(8)", f"v_readfirstlane_b32 s{st0}, v{vT2}", f"s_cmp_lg_u32 s{st0}, 0", "s_cbranch_scc1 K1_NOSC")
    for n in range(16):
        a.wait(lg=f"nb{n}", vm=f"g{n//4}")
        a(f"v_lshl_add_u32 v{vS2+n}, v{vS2+n}, 5, v{vR2 + (n & 7)}")
        if n < 8:
            a.lds(f"ds_read_b32 v{vR2+n}, v{vDl+n+8} offset:{K1_NB - 4}", f"nb{n+8}")
        a.lds(f"ds_write_b32 v{vS2+n}, v{vR4+n}")
    a("s_branch K1_SCD", "K1_NOSC:", "s_waitcnt vmcnt(0)", "K1_SCD:", "s_waitcnt lgkmcnt(0)")
    a.vm, a.lg = [], []
    a("s_barrier")
    a.stamp(6)
    a(f"v_add_u32 v{vT0}, {K1_BL}, v{vO16}")
    for i in range(4):
        a.lds(f"ds_read_b128 {vr(vR4+4*i,4)}, v{vT0} offset:{8192*i}", f"o{i}")
    for i in range(4):
        a.wait(lg=f"o{i}")
        a(f"s_mov_b32 s{st0}, {8192*i}")
        a.vmem(f"buffer_store_dwordx4 {vr(vR4+4*i,4)}, v{vO16}, {sr(sBl,4)}, s{st0} offen{' sc1' if OPT['blobsc'] else ''}")
    a(f"s_cmp_ge_u32 s{sw}, 5", "s_cbranch_scc1 K1_NODEG", f"buffer_store_dword v{vDf}, v{vT1}, {sr(sDg,4)}, 0 offen{' sc1' if OPT['blobsc'] else ''}", "K1_NODEG:")
    a.stamp_dump(sX, 20, sw, 8)
    a("K1_END:", "s_endpgm")
    return a.lines, descriptor("k1_kernel", nv, 102 if STAMPS else 72)


K2_LDS = BLOB


def k2():
    a = Asm()
    header(a, "k2_kernel")
    sBl, sP, sQ, sS, sW1, sDeg, sPf = 24, 28, 32, 36, 40, 44, 48
    sw, sk, srng, scnt, st0, st1, sg, sdmax, sdmin, sK, sBig, sOne = 52, 53, 54, 55, 56, 57, 58, 59, 60, 62, 64, 66
    sM = 68
    vLane, vT0, vT1, vT2, vT3 = 1, 2, 3, 4, 5
    vI4, vAh, vAl = 6, 8, 10
    vE, vEs = 12, 14
    vIdx = 16
    vSh, vEll, vEe, vDeg, vOut, vOrdL, vHoff = 24, 25, 26, 27, 28, 29, 30
    vQ = 32
    vNum, vDen, vT = 48, 56, 64
    vP = 72
    vZ = 88
    vOld, vNxt, vGo = 120, 121, 122
    nv = 123
    vC = 32
    vPf = 112

    a("s_cmp_ge_u32 s2, 256", "s_cbranch_scc1 K2_END")
    a.stamp_setup(31, 1)
    a("s_load_dwordx16 s[4:19], s[0:1], 0", "s_load_dwordx2 s[20:21], s[0:1], 80")
    a(f"v_lshrrev_b32 v{vT0}, 6, v0", f"v_and_b32 v{vLane}, 63, v0", f"v_readfirstlane_b32 s{sw}, v{vT0}")
    a(f"s_and_b32 s{sk}, s2, 7", f"s_lshr_b32 s{srng}, s2, 3")
    a(f"s_mul_i32 s{st0}, s{srng}, {RNG}", f"s_sub_u32 s{scnt}, {N}, s{st0}", f"s_min_u32 s{scnt}, s{scnt}, {RNG}")
    a(f"s_mul_i32 s{st1}, s{srng}, {BLOB}", f"s_add_u32 s{st1}, s{st1}, {BLOB_OFF}")
    a(f"v_lshlrev_b32 v{vT0}, 4, v{vLane}")
    a(f"v_and_b32 v{vT1}, 3, v{vLane}", f"v_lshlrev_b32 v{vSh}, 4, v{vT1}", f"v_lshrrev_b32 v{vT2}, 5, v{vLane}",
      f"v_lshl_add_u32 v{vIdx+1}, v{vT2}, 6, v{vSh}", f"v_mov_b32 v{vIdx+3}, v{vIdx+1}", f"v_mov_b32 v{vIdx+5}, v{vIdx+1}",
      f"v_mov_b32 v{vIdx+7}, v{vIdx+1}", f"v_lshl_add_u32 v{vHoff}, v{vT2}, 5, 2",
      f"v_and_b32 v{vOrdL}, 28, v{vLane}",
      f"v_mov_b32 v{vE}, 0x3f80", f"v_mov_b32 v{vE+1}, 0", f"v_lshlrev_b64 {vr(vI4,2)}, v{vSh}, {vr(vE,2)}",
      f"v_mov_b32 v{vOld}, -1", f"v_lshlrev_b32 v{vT1}, 3, v{vLane}", f"v_lshlrev_b32 v{vT3}, 7, v{vLane}")
    a(f"s_mov_b32 s{sK}, {NLOG2E}", f"s_mov_b32 s{sBig}, {fbits(2.0**120)}", f"s_mov_b32 s{sOne}, 1.0", f"s_mov_b32 s{sOne+1}, 1.0")
    a(f"s_lshl_b32 s{sg}, s{sw}, 10", f"s_add_u32 s{sdmax}, s{sg}, 16384", f"s_mov_b32 m0, s{sg}")
    a("s_waitcnt lgkmcnt(0)")
    a.srd(sBl, 20, f"s{st1}", BLOB)
    a.vmem(f"buffer_load_dwordx4 v{vT0}, {sr(sBl,4)}, s{sg} offen lds", "b")
    a(f"s_cmp_ge_u32 s{sw}, {BLOB // 1024 - 16}", "s_cbranch_scc1 K2_B1", f"s_mov_b32 m0, s{sdmax}", "s_nop 0")
    a(f"buffer_load_dwordx4 v{vT0}, {sr(sBl,4)}, s{sdmax} offen lds", "K2_B1:")
    a.srd(sW1, 20, CF_OFF, 4096)
    a(f"s_lshl_b32 s{st1}, s{sk}, 9")
    a.vmem(f"buffer_load_dwordx2 {vr(vAh,2)}, v{vT1}, {sr(sW1,4)}, s{st1} offen", "c")
    a.stamp()
    a(f"s_mul_i32 s{st1}, s{sk}, {SS}", f"s_lshl_b32 s{sg}, s{st0}, 7", f"s_add_u32 s{sg}, s{sg}, s{st1}",
      f"s_lshl_b32 s{sdmax}, s{scnt}, 7")
    a.srd(sP, 20, f"s{st1}", N, stride=128)
    a.srd(sPf, 20, f"s{sg}", f"s{sdmax}")
    a(f"s_add_u32 s{sg}, s{sg}, {Q_OFF}")
    a.srd(sQ, 20, f"s{sg}", f"s{sdmax}")
    a(f"s_add_u32 s{sg}, s{sg}, {S_OFF - Q_OFF}")
    a.srd(sS, 20, f"s{sg}", f"s{sdmax}")
    a(f"s_lshl_b32 s{sg}, s{st0}, 2", f"s_add_u32 s{sg}, s{sg}, {DEG_OFF}", f"s_lshl_b32 s{sdmax}, s{scnt}, 2",
      f"s_cmp_eq_u32 s{sk}, 0", f"s_cselect_b32 s{sdmax}, s{sdmax}, 0")
    a.srd(sDeg, 20, f"s{sg}", f"s{sdmax}")
    a(f"s_sub_u32 s{st1}, s{sw}, 10", f"s_lshl_b32 s{st1}, s{st1}, 13", f"s_cmp_lt_u32 s{sw}, 10",
      f"s_cselect_b32 s{sPf+2}, 0, s{sPf+2}" if OPT["pf"] else f"s_mov_b32 s{sPf+2}, 0", f"s_cselect_b32 s{st1}, 0, s{st1}",
      f"s_cmp_eq_u32 s{sw}, 15", "s_cbranch_scc0 K2_PF3")
    a.srd(sPf, 20, W2F_OFF, 262144 if OPT["pfw"] else 0)
    a(f"s_lshl_b32 s{st1}, s{srng}, 13")
    a("K2_PF3:")
    if OPT["pfearly"]:
        if OPT["pfbar"]:
            a("s_barrier")
        a.vmem(f"buffer_load_dword v{vPf}, v{vT3}, {sr(sPf,4)}, s{st1} offen", "pf")
    a.wait(vm="c")
    a("s_barrier")
    a.stamp(5)
    if not OPT["pfearly"]:
        a.vmem(f"buffer_load_dword v{vPf}, v{vT3}, {sr(sPf,4)}, s{st1} offen", "pf")
    a.vm = []
    if STAMPS:
        a("s_mov_b32 s99, 8")
    a(f"v_mov_b32 v{vT0}, {B_FLAG}", f"ds_read_b32 v{vT1}, v{vT0}", "s_waitcnt lgkmcnt(0)",
      f"v_readfirstlane_b32 s{st0}, v{vT1}", f"s_mov_b32 s{sg}, s{sw}", f"s_cmp_lg_u32 s{st0}, 0", "s_cbranch_scc1 K2_SLOW")

    def Z(i):
        return vZ + 16 * ((i >> 1) & 1) + 8 * (i & 1)

    def src_read(i):
        a(f"ds_read_u16 v{vIdx + 2*(i % 4)}, v{vEll} offset:{32*i}")

    def e_read(p):
        a(f"ds_read_u16 v{vE}, v{vEe} offset:{64*p}")

    def gather(i):
        a(f"buffer_load_dwordx4 {vr(vP + 4*(i % 4), 4)}, {vr(vIdx + 2*(i % 4), 2)}, {sr(sP,4)}, 0 idxen offen")

    def m4(i, hf):
        z = Z(i) + 4 * hf
        return f"v_mfma_f32_4x4x4_16b_bf16 {vr(z,4)}, {vr(vI4,2)}, {vr(vP + 4*(i % 4) + 2*hf, 2)}, {vr(z,4)}"

    shift = f"v_lshlrev_b64 {vr(vEs,2)}, v{vSh}, {vr(vE,2)}"

    def mhi(p):
        return f"v_mfma_f32_32x32x8_bf16 {vr(Z(2*p),16)}, {vr(vAh,2)}, {vr(vEs,2)}, {vr(vQ,16)}"

    def mlo(p):
        return f"v_mfma_f32_32x32x8_bf16 {vr(Z(2*p),16)}, {vr(vAl,2)}, {vr(vEs,2)}, {vr(Z(2*p),16)}"

    def finish():
        for r in range(8):
            a(f"v_rcp_f32 v{vT+r}, v{vDen+r}")
        for r in range(0, 8, 2):
            a(f"v_pk_mul_f32 {vr(vNum+r,2)}, {vr(vNum+r,2)}, {vr(vT+r,2)}")
        for r in range(4):
            a(f"v_cvt_pk_bf16_f32 v{vT+r}, v{vNum+2*r}, v{vNum+2*r+1}")
        a(f"buffer_store_dwordx4 {vr(vT,4)}, v{vOld}, {sr(sS,4)}, 0 offen{wt()}")

    if OPT["stag"]:
        a(f"s_lshl_b32 s{st0}, s{sw}, 2", f"s_add_u32 s{st0}, s{st0}, {B_GO}", f"v_mov_b32 v{vGo}, s{st0}",
          f"s_cmp_lt_u32 s{sw}, 4", "s_cbranch_scc1 K2_GO", f"v_subrev_u32 v{vT0}, 16, v{vGo}")
        a("K2_WAITGO:", f"ds_read_b32 v{vT1}, v{vT0}", "s_waitcnt lgkmcnt(0)", f"v_readfirstlane_b32 s{st0}, v{vT1}",
          f"s_cmp_eq_u32 s{st0}, 0", "s_cbranch_scc1 K2_WAITGO", "K2_GO:")
    if OPT["prio"]:
        a("s_setprio 3")
    a("K2_GROUP:")
    a(f"s_lshl_b32 s{st0}, s{sg}, 5", f"s_lshl_b32 s{st1}, s{sg}, 2", f"v_add_u32 v{vT0}, s{st0}, v{vOrdL}", f"v_mov_b32 v{vT2}, s{st1}",
      f"ds_read_b32 v{vEll}, v{vT2} offset:{B_GB}", f"ds_read_b32 v{vT1}, v{vT0} offset:{B_ORD}",
      f"s_mov_b32 s{sP+2}, {N}", "s_waitcnt lgkmcnt(0)")
    a(f"v_add_u32 v{vEll}, v{vEll}, v{vOrdL}", f"v_and_b32 v{vT0}, 0xffff, v{vT1}", f"v_lshrrev_b32 v{vDeg}, 16, v{vT1}")
    for i in range(4):
        src_read(i)
    a(f"v_lshl_add_u32 v{vOut}, v{vT0}, 7, v{vIdx+1}", f"v_add_u32 v{vEe}, v{vEll}, v{vHoff}")
    a(f"buffer_load_dwordx4 {vr(vZ+16,4)}, v{vOut}, {sr(sQ,4)}, 0 offen")
    e_read(0)
    a(f"v_readlane_b32 s{sdmax}, v{vDeg}, 0", f"v_readlane_b32 s{sdmin}, v{vDeg}, 28")
    for i in range(4):
        a(f"s_waitcnt lgkmcnt({4-i})")
        gather(i)
    src_read(4)
    src_read(5)
    a("s_waitcnt lgkmcnt(2)")
    a(shift)
    e_read(1)
    a("s_mov_b64 exec, 1", f"v_mov_b32 v{vT0}, {B_CTR}", f"v_mov_b32 v{vNxt}, 1", f"ds_add_rtn_u32 v{vNxt}, v{vT0}, v{vNxt}",
      "s_mov_b64 exec, -1")
    finish()
    a("s_waitcnt vmcnt(5)")
    if OPT["stag"] == 2:
        a(f"ds_write_b32 v{vGo}, v{vGo}")
    for q in range(4):
        a(f"v_mfma_f32_4x4x4_16b_bf16 {vr(vQ+4*q,4)}, {vr(vI4,2)}, {vr(vZ+16+2*(q&1),2)}, 0")
    a("s_nop 3")
    a(mhi(0), *([] if OPT["nolo"] else [mlo(0)]))
    a("s_nop 9", "s_waitcnt vmcnt(3)")
    if OPT["stag"] == 1:
        a(f"ds_write_b32 v{vGo}, v{vGo}")
    a(m4(0, 0), m4(0, 1), m4(1, 0), m4(1, 1))
    a("s_waitcnt lgkmcnt(0)")
    gather(4)
    gather(5)
    a(shift)
    src_read(6)
    src_read(7)
    e_read(2)
    if OPT["prio"]:
        a(f"s_cmp_lt_u32 s{sg}, 16", "s_cbranch_scc1 K2_PRX", "s_setprio 2", f"s_cmp_lt_u32 s{sg}, 24", "s_cbranch_scc1 K2_PRX",
          "s_setprio 1", f"s_cmp_lt_u32 s{sg}, 32", "s_cbranch_scc1 K2_PRX", "s_setprio 0", "K2_PRX:")
    a("s_nop 1" if OPT["prio"] else "s_nop 3")
    if STAMPS and not OPT["light"]:
        a("s_mov_b32 m0, s99", "s_add_u32 s99, s99, 1")
        a.stamp("m0")

    NP = MAXDEG // 2
    for i in range(MAXDEG):
        z = Z(i)
        p = i >> 1
        a(f"s_cmp_le_u32 s{sdmin}, {i}", f"s_cbranch_scc1 K2_OOL{i}", f"K2_S{i}:")
        ex = [f"v_exp_f32 v{vT+r}, v{z+r}" for r in range(8)]
        num_src = Z(0) if i == 1 else vNum
        if i == 0:
            upd = ["s_nop 0"] + [f"v_pk_add_f32 {vr(vDen+r,2)}, {vr(vT+r,2)}, {sr(sOne,2)}" for r in range(0, 8, 2)]
        else:
            upd = [f"v_pk_fma_f32 {vr(z+r,2)}, {vr(z+r,2)}, {vr(vDen+r,2)}, {vr(num_src+r,2)}" for r in range(0, 8, 2)]
            upd += [f"v_pk_fma_f32 {vr(vNum+r,2)}, {vr(num_src+r,2)}, {vr(vT+r,2)}, {vr(z+r,2)}" for r in range(0, 8, 2)]
            upd += [f"v_pk_fma_f32 {vr(vDen+r,2)}, {vr(vDen+r,2)}, {vr(vT+r,2)}, {vr(vDen+r,2)}" for r in range(0, 8, 2)]
        if (i & 1) == 0:
            if p + 1 < NP:
                a(mhi(p + 1), *ex[0:4], *([] if OPT["nolo"] else [mlo(p + 1)]), *ex[4:8])
            else:
                a(*ex)
            a(*upd)
        else:
            if p + 1 < NP:
                a(f"s_waitcnt vmcnt({3 if p == 0 else 2 if p + 2 < NP else 0})")
                a(m4(2*p+2, 0), ex[0], m4(2*p+2, 1), ex[1], m4(2*p+3, 0), ex[2], m4(2*p+3, 1), ex[3])
            else:
                a(*ex[0:4])
            if p + 2 < NP:
                a("s_waitcnt lgkmcnt(0)")
            if p + 3 < NP:
                if OPT["clip"]:
                    a(f"s_cmp_gt_u32 s{sdmax}, {2*p+6}", f"s_cselect_b32 s{sP+2}, {N}, 0")
                gather(2 * p + 6)
                gather(2 * p + 7)
            a(*ex[4:8])
            if p + 2 < NP:
                a(shift)
            if p + 4 < NP:
                src_read(2 * p + 8)
                src_read(2 * p + 9)
            if p + 3 < NP:
                e_read(p + 3)
            a(*upd)
    a("K2_FIN:")
    a("s_mov_b64 exec, -1")
    if OPT["prio"]:
        a("s_setprio 3")
    a(f"v_pk_add_f32 {vr(vT0,2)}, {vr(vDen,2)}, {vr(vDen+2,2)}", f"v_pk_add_f32 {vr(vT2,2)}, {vr(vDen+4,2)}, {vr(vDen+6,2)}")
    for r in range(0, 8, 4):
        a(f"v_pk_fma_f32 {vr(vT0,2)}, {vr(vNum+r,2)}, 0, {vr(vT0,2)} op_sel_hi:[1,0,1]")
        a(f"v_pk_fma_f32 {vr(vT2,2)}, {vr(vNum+r+2,2)}, 0, {vr(vT2,2)} op_sel_hi:[1,0,1]")
    a(f"v_pk_add_f32 {vr(vT0,2)}, {vr(vT0,2)}, {vr(vT2,2)}", f"v_mov_b32 v{vOld}, v{vOut}",
      f"v_add_f32 v{vT0}, v{vT0}, v{vT1}", f"v_readfirstlane_b32 s{sg}, v{vNxt}", f"v_cmp_ngt_f32 vcc, s{sBig}, v{vT0}")
    a("s_cbranch_vccnz K2_SAFE")
    a("K2_NEXT:")
    if STAMPS and not OPT["light"]:
        a("s_mov_b32 m0, s99", "s_add_u32 s99, s99, 1")
        a.stamp("m0")
        a("s_mov_b32 m0, s99", "s_add_u32 s99, s99, 1", f"v_writelane_b32 v31, s{sdmax}, m0")
    a(f"s_add_u32 s{sg}, s{sg}, 16", f"s_cmp_lt_u32 s{sg}, {NGRP}", "s_cbranch_scc1 K2_GROUP")
    finish()
    a.stamp_dump(sBl, 20, sw, 16)
    a("s_endpgm")

    for i in range(MAXDEG):
        a(f"K2_OOL{i}:")
        if i == 0:
            for r in range(8):
                a(f"v_mov_b32 v{vNum+r}, 0", f"v_mov_b32 v{vDen+r}, 1.0")
        if i == 1:
            for r in range(8):
                a(f"v_mov_b32 v{vNum+r}, v{Z(0)+r}")
        a(f"s_cmp_le_u32 s{sdmax}, {i}", "s_cbranch_scc1 K2_FIN")
        a(f"v_cmpx_lt_u32 vcc, {i}, v{vDeg}", "s_nop 3", f"s_branch K2_S{i}")

    a("K2_SAFE:")
    a("s_waitcnt vmcnt(0) lgkmcnt(0)", f"s_mov_b32 s{st0}, 0", f"s_mov_b32 s{sP+2}, {N}")
    for r in range(8):
        a(f"v_mov_b32 v{vNum+r}, 0")
    a("K2_SAFE_L:")
    a(f"s_cmp_ge_u32 s{st0}, s{sdmax}", "s_cbranch_scc1 K2_SAFE_E")
    a(f"v_cmpx_lt_u32 vcc, s{st0}, v{vDeg}")
    src_read(0)
    e_read(0)
    a("s_waitcnt lgkmcnt(0)")
    gather(0)
    a(shift, f"v_add_u32 v{vEll}, 32, v{vEll}", f"v_add_u32 v{vEe}, 32, v{vEe}", "s_nop 1")
    a(mhi(0), *([] if OPT["nolo"] else [mlo(0)]), "s_nop 9", "s_waitcnt vmcnt(0)", m4(0, 0), m4(0, 1), "s_nop 4")
    for r in range(8):
        a(f"v_exp_f32 v{vT+r}, v{vZ+r}")
    for r in range(0, 8, 2):
        a(f"v_pk_add_f32 {vr(vT+r,2)}, {vr(vT+r,2)}, {sr(sOne,2)}")
    for r in range(8):
        a(f"v_rcp_f32 v{vT+r}, v{vT+r}")
    a("s_nop 0")
    for r in range(0, 8, 2):
        a(f"v_pk_fma_f32 {vr(vNum+r,2)}, {vr(vZ+r,2)}, {vr(vT+r,2)}, {vr(vNum+r,2)}")
    a(f"s_add_u32 s{st0}, s{st0}, 1", "s_branch K2_SAFE_L")
    a("K2_SAFE_E:", "s_mov_b64 exec, -1")
    for r in range(8):
        a(f"v_mov_b32 v{vDen+r}, 1.0")
    a("s_branch K2_NEXT")

    sDst, sSrc, sE = sBl, sPf, sW1
    snode, sbase, sdeg, sbit, ssrc, se, sm = sM, sM + 1, sM + 2, sM + 3, sM + 4, sM + 5, sM + 6
    vc, vq, vacc, vd, vs, ve, voff, vz = 32, 33, 34, 36, 40, 44, 48, 49
    a("K2_SLOW:")
    a.srd(sW1, 12, 512 * 1024, 1024)
    a(f"v_and_b32 v{vT0}, 1, v{vLane}", f"v_lshlrev_b32 v{vT0}, 6, v{vT0}", f"v_and_b32 v{vT1}, 62, v{vLane}",
      f"v_add_u32 v{vT0}, v{vT0}, v{vT1}", f"s_lshl_b32 s{st1}, s{sk}, 7")
    a(f"buffer_load_ushort v{vc}, v{vT0}, {sr(sW1,4)}, s{st1} offen", "s_waitcnt vmcnt(0)",
      f"v_lshlrev_b32 v{vc}, 16, v{vc}", f"v_mul_f32 v{vc}, s{sK}, v{vc}")
    a.srd(sDst, 10, 0, E * 4)
    a.srd(sSrc, 8, 0, E * 4)
    a.srd(sE, 6, 0, E * 2)
    a(f"v_lshlrev_b32 v{vIdx+1}, 1, v{vLane}", f"v_lshlrev_b32 v{vT2}, 4, v{vLane}", f"v_lshlrev_b32 v{vT3}, 3, v{vLane}")
    a("K2_SLOW_N:")
    a(f"s_cmp_ge_u32 s{sg}, s{scnt}", "s_cbranch_scc1 K2_END")
    a(f"s_mul_i32 s{snode}, s{srng}, {RNG}", f"s_add_u32 s{snode}, s{snode}, s{sg}", f"s_lshl_b32 s{st0}, s{sg}, 7",
      f"v_add_u32 v{voff}, s{st0}, v{vIdx+1}", f"buffer_load_ushort v{vq}, v{voff}, {sr(sQ,4)}, 0 offen",
      f"v_mov_b32 v{vacc}, 0", f"s_mov_b32 s{sbase}, 0", f"s_mov_b32 s{sdeg}, 0", "s_waitcnt vmcnt(0)",
      f"v_lshlrev_b32 v{vq}, 16, v{vq}")
    a("K2_SLOW_C:")
    a(f"s_lshl_b32 s{st0}, s{sbase}, 2", f"s_lshl_b32 s{st1}, s{sbase}, 1")
    a(f"buffer_load_dwordx4 {vr(vd,4)}, v{vT2}, {sr(sDst,4)}, s{st0} offen",
      f"buffer_load_dwordx4 {vr(vs,4)}, v{vT2}, {sr(sSrc,4)}, s{st0} offen",
      f"buffer_load_dwordx2 {vr(ve+2,2)}, v{vT3}, {sr(sE,4)}, s{st1} offen", "s_waitcnt vmcnt(0)")
    a(f"v_lshlrev_b32 v{ve}, 16, v{ve+2}", f"v_and_b32 v{ve+1}, 0xffff0000, v{ve+2}",
      f"v_lshlrev_b32 v{ve+2}, 16, v{ve+3}", f"v_and_b32 v{ve+3}, 0xffff0000, v{ve+3}")
    for u in range(4):
        a(f"v_cmp_eq_u32 {sr(sm,2)}, s{snode}, v{vd+u}")
        a(f"K2_SLOW_M{u}:", f"s_cmp_eq_u64 {sr(sm,2)}, 0", f"s_cbranch_scc1 K2_SLOW_X{u}")
        a(f"s_ff1_i32_b64 s{sbit}, {sr(sm,2)}", f"s_bitset0_b64 {sr(sm,2)}, s{sbit}", f"s_add_u32 s{sdeg}, s{sdeg}, 1",
          f"v_readlane_b32 s{ssrc}, v{vs+u}, s{sbit}", f"v_readlane_b32 s{se}, v{ve+u}, s{sbit}", "s_nop 1",
          f"v_mov_b32 v{vIdx}, s{ssrc}", f"buffer_load_ushort v{vz}, {vr(vIdx,2)}, {sr(sP,4)}, 0 idxen offen",
          f"v_fma_f32 v{vT0}, s{se}, v{vc}, v{vq}", "s_waitcnt vmcnt(0)",
          f"v_lshlrev_b32 v{vz}, 16, v{vz}", f"v_add_f32 v{vz}, v{vz}, v{vT0}", f"v_exp_f32 v{vT0}, v{vz}", "s_nop 0",
          f"v_add_f32 v{vT0}, 1.0, v{vT0}", f"v_rcp_f32 v{vT0}, v{vT0}", "s_nop 0",
          f"v_fma_f32 v{vacc}, v{vz}, v{vT0}, v{vacc}", f"s_branch K2_SLOW_M{u}")
        a(f"K2_SLOW_X{u}:")
    a(f"s_add_u32 s{sbase}, s{sbase}, 256", f"s_cmp_lt_u32 s{sbase}, {E}", "s_cbranch_scc1 K2_SLOW_C")
    a(f"v_cvt_pk_bf16_f32 v{vacc}, v{vacc}, v{vacc}", f"v_cvt_f32_u32 v{vT0}, s{sdeg}", f"s_lshl_b32 s{st0}, s{sg}, 2",
      f"v_mov_b32 v{vT1}, s{st0}")
    a(f"buffer_store_short v{vacc}, v{voff}, {sr(sS,4)}, 0 offen", f"buffer_store_dword v{vT0}, v{vT1}, {sr(sDeg,4)}, 0 offen")
    a(f"s_add_u32 s{sg}, s{sg}, 16", "s_waitcnt vmcnt(0)", "s_branch K2_SLOW_N")
    a("K2_END:", "s_endpgm")
    return a.lines, descriptor("k2_kernel", nv, 102 if STAMPS else 96)


K3_LDS = 81920


def k3():
    a = Asm()
    header(a, "k3_kernel")
    sS, sF, sDeg, sB, sO = 24, 28, 32, 36, 40
    sw, stile, scg, st0, st1, sK, sn, sSo = 44, 45, 46, 47, 48, 50, 52, 53
    vLane, vT0, vT1, vT2 = 1, 2, 3, 4
    vDm, vBo, vSt, vB2 = 5, 6, 7, 8
    vAad = 10
    vDg = 12
    vA = 32
    vAcc = 72
    vB = 112
    nv = vB + 128
    a("s_cmp_ge_u32 s2, 256", "s_cbranch_scc1 K3_END")
    a(f"s_lshr_b32 s{st0}, s2, 4", f"s_lshl_b32 s{st0}, s{st0}, 3", f"s_and_b32 s{stile}, s2, 7",
      f"s_add_u32 s{stile}, s{stile}, s{st0}", f"s_cmp_ge_u32 s{stile}, 125", "s_cbranch_scc1 K3_END")
    a.stamp_setup(nv, 2)
    code_prefetch(a, "k3_kernel", "K3_END", 2, 2, vA, "K3")
    a("s_load_dwordx4 s[4:7], s[0:1], 56", "s_load_dwordx2 s[20:21], s[0:1], 80")
    a(f"v_lshrrev_b32 v{vT0}, 6, v0", f"v_and_b32 v{vLane}, 63, v0", f"v_readfirstlane_b32 s{sw}, v{vT0}")
    a(f"s_bfe_u32 s{scg}, s2, 0x10003", f"s_lshl_b32 s{scg}, s{scg}, 2", f"s_add_u32 s{scg}, s{scg}, s{sw}")
    a(f"s_and_b32 s{st0}, s{sw}, 1", f"s_lshl_b32 s{st0}, s{st0}, 2", f"v_lshrrev_b32 v{vT0}, 4, v{vLane}",
      f"v_add_u32 v{vT1}, s{st0}, v{vT0}", f"v_and_b32 v{vT2}, 7, v{vLane}", f"v_xor_b32 v{vT1}, v{vT1}, v{vT2}",
      f"v_lshlrev_b32 v{vT1}, 4, v{vT1}", f"v_lshrrev_b32 v{vT2}, 3, v{vLane}", f"v_lshl_add_u32 v{vDm}, v{vT2}, 7, v{vT1}")
    a(f"v_lshlrev_b32 v{vBo}, 4, v{vLane}")
    a(f"v_and_b32 v{vT1}, 15, v{vLane}", f"v_lshlrev_b32 v{vT2}, 2, v{vT1}", f"v_lshl_add_u32 v{vSt}, v{vT0}, 11, v{vT2}")
    a(f"v_lshrrev_b32 v{vAad}, 1, v{vT1}", f"v_xor_b32 v{vAad}, v{vAad}, v{vT0}", f"v_lshlrev_b32 v{vAad}, 4, v{vAad}",
      f"v_lshl_add_u32 v{vAad}, v{vT1}, 7, v{vAad}", f"v_xor_b32 v{vAad+1}, 64, v{vAad}", f"v_lshlrev_b32 v{vT0}, 4, v{vT0}")
    a(f"s_mul_i32 s{sSo}, s{stile}, 10240")
    a("s_waitcnt lgkmcnt(0)")
    a.srd(sDeg, 20, DEG_OFF, N * 4)
    a.srd(sB, 4, 0, 512)
    a(f"s_mul_i32 s{st0}, s{stile}, 320", f"s_lshl_b32 s{st1}, s{scg}, 6")
    sDo, sBo = 56, 57
    a(f"s_mov_b32 s{sDo}, s{st0}", f"s_mov_b32 s{sBo}, s{st1}", f"v_mov_b32 v{vDg+19}, v{vT0}", f"v_mov_b32 v{vB2}, v{vT2}")

    def bias_loads():
        for rt in range(5):
            a.vmem(f"buffer_load_dwordx4 {vr(vDg+4*rt,4)}, v{vDg+19}, {sr(sDeg,4)}, s{sDo} offen offset:{64*rt}", "deg")
        a.vmem(f"buffer_load_dword v{vB2}, v{vB2}, {sr(sB,4)}, s{sBo} offen", "deg")
    a.srd(sS, 20, S_OFF, 8 * SS)
    a.srd(sF, 20, W2F_OFF, 262144)
    a.srd(sO, 6, 0, N * 512)
    srot, sFo = 54, 55
    a(f"s_bfe_u32 s{srot}, s2, 0x20004" if OPT["rot"] else f"s_mov_b32 s{srot}, 0", f"s_lshl_b32 s{sFo}, s{scg}, 15")

    def load_ops(j):
        ops = [[f"s_add_u32 s{sn}, s{srot}, {j}", f"s_and_b32 s{sn}, s{sn}, 3", f"s_lshl_b32 s{sK}, s{sn}, 13",
                f"s_add_u32 s{sK}, s{sK}, s{sFo}", f"s_mul_i32 s{sn}, s{sn}, {2*SS}", f"s_add_u32 s{sn}, s{sn}, s{sSo}"]]
        for m in range(5):
            ops.append([f"s_add_u32 s{st1}, s{sw}, {4*m}", f"s_cmp_ge_u32 s{st1}, 10", f"s_cselect_b32 s{st0}, {SS - 10240}, 0",
                        f"s_lshl_b32 s{st1}, s{st1}, 10", f"s_add_u32 m0, s{st1}, {j*20480}", f"s_add_u32 s{st0}, s{st0}, s{st1}",
                        f"s_add_u32 s{st0}, s{st0}, s{sn}",
                        ("vm", f"buffer_load_dwordx4 v{vDm}, {sr(sS,4)}, s{st0} offen lds")])
        for f in range(8):
            n = 8 * j + f
            op = [f"s_add_u32 s{sK}, s{sK}, 4096"] if f == 4 else []
            ops.append(op + [("vm", f"buffer_load_dwordx4 {vr(vB+4*n,4)}, v{vBo}, {sr(sF,4)}, s{sK} offen offset:{1024*(f % 4)}")])
        return ops

    def emit(op, j):
        for x in op:
            if isinstance(x, tuple):
                a.vmem(x[1], f"st{j}")
            else:
                a(x)
    for op in load_ops(0):
        emit(op, 0)
    a.stamp()
    for op in load_ops(1):
        emit(op, 1)
    a.stamp()
    def a_reads(s):
        for rt in range(5):
            off = (s >> 1) * 10240 + rt * 2048
            base = vAad + (s & 1)
            if off > 65535:
                base, off = vT0 + (s & 1), off - 40960
            a.lds(f"ds_read_b128 {vr(vA + 20*(s & 1) + 4*rt, 4)}, v{base} offset:{off}", f"a{s}_{rt}")
    a(f"v_add_u32 v{vT0}, 40960, v{vAad}", f"v_add_u32 v{vT1}, 40960, v{vAad+1}")
    def mfma(s, rt, b, areg):
        acc = vAcc + 8 * rt + 4 * b
        c = "0" if s == 0 else vr(acc, 4)
        a(f"v_mfma_f32_16x16x32_bf16 {vr(acc,4)}, {vr(areg, 4)}, {vr(vB + 4*(2*s+b), 4)}, {c}")

    for j in range(3):
        a.wait(vm=f"st{j}")
        a("s_barrier")
        a.stamp()
        a_reads(4 * j)
        pend = load_ops(j + 2) if j + 2 < 4 else []
        for s in range(4 * j, 4 * j + 4):
            if s + 1 < 4 * j + 4:
                a_reads(s + 1)
            for rt in range(5):
                a.wait(lg=f"a{s}_{rt}")
                for b in range(2):
                    mfma(s, rt, b, vA + 20 * (s & 1) + 4 * rt)
                if pend:
                    emit(pend.pop(0), j + 2)
        assert not pend
        if j == 1:
            bias_loads()
    a(f"s_mov_b32 s{sK}, {NLN2}")
    a(f"s_mul_i32 s{st0}, s{stile}, {80*512}", f"s_lshl_b32 s{st1}, s{scg}, 6", f"s_add_u32 s{sSo}, s{st0}, s{st1}")
    a.wait(vm=["st3", "deg"])
    a("s_barrier")
    a.stamp()

    def rt_reads(rt):
        for s in range(12, 16):
            off = (s >> 1) * 10240 + rt * 2048
            base = vAad + (s & 1)
            if off > 65535:
                base, off = vT0 + (s & 1), off - 40960
            a.lds(f"ds_read_b128 {vr(vA + 16*(rt & 1) + 4*(s-12), 4)}, v{base} offset:{off}", f"z{rt}_{s}")

    def out_ops(rt):
        acc = vAcc + 8 * rt
        ops = [f"s_add_u32 s{st0}, s{sSo}, {rt*16*512}"]
        for r in range(4):
            ops += [f"v_mul_f32 v{vT2}, v{vDg+4*rt+r}, v{vB2}", f"v_fma_f32 v{acc+r}, v{acc+r}, s{sK}, v{vT2}",
                    f"v_mul_f32 v{vT2}, v{vDg+4*rt+r}, v{vB2+1}", f"v_fma_f32 v{acc+4+r}, v{acc+4+r}, s{sK}, v{vT2}",
                    f"v_cvt_pk_bf16_f32 v{acc+r}, v{acc+r}, v{acc+4+r}",
                    f"buffer_store_dword v{acc+r}, v{vSt}, {sr(sO,4)}, s{st0} offen offset:{512*r}{' sc1' if OPT['sc3'] else ''}{' nt' if OPT['nto'] else ''}"]
        return ops
    rt_reads(0)
    a(f"v_and_b32 v{vB2+1}, 0xffff0000, v{vB2}", f"v_lshlrev_b32 v{vB2}, 16, v{vB2}")
    pend = []
    for rt in range(5):
        if rt + 1 < 5:
            rt_reads(rt + 1)
        for s in range(12, 16):
            a.wait(lg=f"z{rt}_{s}")
            for b in range(2):
                mfma(s, rt, b, vA + 16 * (rt & 1) + 4 * (s - 12))
                if s >= 13 or b == 1:
                    for _ in range(4):
                        if pend:
                            a(pend.pop(0))
        assert not pend
        pend = out_ops(rt)
        if rt < 4:
            pend = ["s_nop 0"] + pend
    a.stamp()
    a("s_nop 7")
    a(*pend)
    a.stamp_dump(sS, 20, sw, 4)
    a("K3_END:", "s_endpgm")
    return a.lines, descriptor("k3_kernel", nv + 1 if STAMPS else nv, 102 if STAMPS else 64)


def k4():
    a = Asm()
    header(a, "k4_kernel")
    a("s_endpgm")
    return a.lines, descriptor("k4_kernel", 8, 16)


def main(path):
    head = [
        "; Edge-featured MPNN layer: out = segment_sum(silu([x[src], x[dst], e] @ w1 + b1) @ w2 + b2, dst)",
        "; k1: P = x@w1[0:256], Q = x@w1[256:512] + b1 (scaled by -log2e), edge partition by dst range, w2 re-layout",
        "; k2: per 64-channel slice, S[n] = sum over in-edges of z/(1+2^z), z = P[src] + Q[n] + e*c",
        "; k3: out = -ln2 * (S @ w2) + deg * b2",
        "; kernarg: x, e_attr, src, dst, w1, b1, w2, b2, out, debug, ws (8 bytes each)",
        f"; @launch kernel=k1_kernel grid=(256,1,1) block=(512,1,1) lds={K1_LDS}",
        f"; @launch kernel=k2_kernel grid=(256,1,1) block=(1024,1,1) lds={K2_LDS}",
        f"; @launch kernel=k3_kernel grid=(256,1,1) block=(256,1,1) lds={K3_LDS}",
        '.amdgcn_target "amdgcn-amd-amdhsa--gfx950"',
        ".text",
    ]
    for i in range(3):
        if OPT["rep"] >> i & 1:
            j = [n for n, l in enumerate(head) if f"kernel=k{i+1}_kernel" in l][0]
            head.insert(j, head[j])
    if OPT["empty"]:
        head.insert(8, "; @launch kernel=k4_kernel grid=(256,1,1) block=(64,1,1) lds=0")
    body, desc = [], []
    for f in (k1, k2, k3) + ((k4,) if OPT["empty"] else ()):
        b, d = f()
        body += b
        desc += d
    out = head + body + ['.section .rodata,"a"'] + desc
    open(path, "w").write("\n".join(out) + "\n")


if __name__ == "__main__":
    if "--stamps" in sys.argv:
        STAMPS = True
        sys.argv.remove("--stamps")
    for arg in [x for x in sys.argv[1:] if "=" in x]:
        key, val = arg.split("=")
        assert key in OPT, key
        OPT[key] = int(val)
        sys.argv.remove(arg)
    main(sys.argv[1] if len(sys.argv) > 1 else "standalone__edge_featured_mpnn_mpnn__graph.s")
```

```python
import struct
import sys

N, E, D, H = 10000, 160000, 256, 512
TILE1, NT1 = 192, 53
NR = TILE1 * NT1
SS = NR * 128
P_OFF, Q_OFF, S_OFF = 0, 8 * SS, 16 * SS
RNG = 313
NCHUNK, CHUNK, CAP = 32, 5000, 224
R4BLK, R2BLK = NCHUNK * CAP * 4, NCHUNK * CAP * 2
R4_OFF = 24 * SS
R2_OFF = R4_OFF + 32 * R4BLK
NSLOT = 768
B_ORD = NSLOT * 32
B_GB = B_ORD + 1280
B_FLAG = B_GB + 160
B_CTR = B_FLAG + 4
B_GO = B_CTR + 4
BLOB = 26 * 1024
BLOB_OFF = R2_OFF + 32 * R2BLK
DEG_OFF = BLOB_OFF + 32 * BLOB
W2F_OFF = (DEG_OFF + NR * 4 + 1023) // 1024 * 1024
CF_OFF = W2F_OFF + 262144
WS_END = CF_OFF + 4096
MAXDEG = 48
NGRP = 40


def fbits(x):
    return struct.unpack("<I", struct.pack("<f", x))[0]


NLOG2E = fbits(-1.4426950408889634)
NLN2 = fbits(-0.6931471805599453)

assert all((d * 13401) >> 22 == d // RNG for d in range(10016))
assert all((q * 2341) >> 17 == q // 56 for q in range(2048))
assert all((q * 2341) >> 16 == q // 28 for q in range(1024))
assert all((n * 205) >> 11 == n // 10 for n in range(80))


STAMPS = False
OPT = dict(sc1=1, sc3=1, prio=1, empty=0, ipf=1, rot=1, pf=0, light=0, fine=0, la=6, pf0=2, x0pos=0, xrot=0, x1early=0, xspread=1, helper=0, ntx=1, ntw=0, nte=1, blobsc=1, xtouch=7, nto=0, ntw2=0, nolo=1, usem4=1, dup=0, rep=0, clip=1, pfearly=1, pfbar=0, k3opt=1, stag=1, pollf=0, probe=0, pfq=0, pfw=1)
STAMP_OFF = 48 << 20


class Asm:
    def stamp_setup(self, vreg, kidx):
        self.st_v, self.st_n, self.st_k = vreg, 0, kidx
        if STAMPS:
            self(f"v_mov_b32 v{vreg}, 0", "s_memrealtime s[100:101]", "s_waitcnt lgkmcnt(0)", f"v_writelane_b32 v{vreg}, s100, 29")
            self.stamp()

    def stamp(self, idx=None):
        if STAMPS and not (OPT["light"] and idx != 27 and self.st_n > 0):
            if idx is None:
                idx = self.st_n
                self.st_n += 1
            self("s_waitcnt lgkmcnt(0)", "s_memtime s[100:101]", "s_waitcnt lgkmcnt(0)", f"v_writelane_b32 v{self.st_v}, s100, {idx}")
            self.lg = []

    def stamp_dump(self, srd, wsreg, swave, nwaves, tmp=2):
        if not STAMPS:
            return
        self("s_waitcnt vmcnt(0)")
        self.stamp(27)
        self("s_memrealtime s[100:101]", "s_waitcnt lgkmcnt(0)", f"v_writelane_b32 v{self.st_v}, s100, 28")
        self("s_getreg_b32 s3, hwreg(HW_REG_HW_ID)", f"v_writelane_b32 v{self.st_v}, s3, 30")
        self("s_getreg_b32 s3, hwreg(HW_REG_XCC_ID)", f"v_writelane_b32 v{self.st_v}, s3, 31")
        self.srd(srd, wsreg, STAMP_OFF + (self.st_k << 20), 1 << 20)
        self(f"s_mul_i32 s3, s2, {nwaves}", f"s_add_u32 s3, s3, s{swave}", "s_lshl_b32 s3, s3, 7", "s_mov_b64 exec, -1",
             f"v_and_b32 v{tmp}, 63, v0", f"v_lshlrev_b32 v{tmp}, 2, v{tmp}", "s_mov_b32 exec_hi, 0",
             f"buffer_store_dword v{self.st_v}, v{tmp}, s[{srd}:{srd+3}], s3 offen")

    def __init__(self):
        self.lines = []
        self.vm = []
        self.lg = []

    def __call__(self, *ls):
        for l in ls:
            self.lines.append(l if l.endswith(":") else "    " + l)

    def vmem(self, line, tag=None):
        self(line)
        self.vm.append(tag)

    def lds(self, line, tag=None):
        self(line)
        self.lg.append(tag)

    @staticmethod
    def _need(q, tags):
        last = -1
        for i, t in enumerate(q):
            if t in tags:
                last = i
        return None if last < 0 else len(q) - 1 - last

    def wait(self, vm=None, lg=None):
        parts = []
        if vm is not None:
            n = 0 if vm == "all" else self._need(self.vm, vm if isinstance(vm, (list, tuple, set)) else [vm])
            if n is not None:
                n = min(n, 63)
                parts.append(f"vmcnt({n})")
                self.vm = self.vm[len(self.vm) - n:] if n else []
        if lg is not None:
            n = 0 if lg == "all" else self._need(self.lg, lg if isinstance(lg, (list, tuple, set)) else [lg])
            if n is not None:
                n = min(n, 15)
                parts.append(f"lgkmcnt({n})")
                self.lg = self.lg[len(self.lg) - n:] if n else []
        if parts:
            self("s_waitcnt " + " ".join(parts))

    def srd(self, s, base, off, size, stride=0):
        if off == 0:
            self(f"s_mov_b32 s{s}, s{base}", f"s_and_b32 s{s+1}, s{base+1}, 0xffff")
        else:
            self(f"s_add_u32 s{s}, s{base}, {off}", f"s_addc_u32 s{s+1}, s{base+1}, 0",
                 f"s_and_b32 s{s+1}, s{s+1}, 0xffff")
        if stride:
            self(f"s_or_b32 s{s+1}, s{s+1}, {stride << 16}")
        self(f"s_mov_b32 s{s+2}, {size}", f"s_mov_b32 s{s+3}, 0x20000")


POLLF = ["sc1", "sc0 sc1", "sc1 nt", "sc0 sc1 nt"]


def wt():
    return " sc1" if OPT["sc1"] else ""


def code_prefetch(a, first, last, wshift, vtmp, vsink, tag):
    if not OPT["ipf"]:
        return
    a(f"s_getpc_b64 s[22:23]", f"{tag}_PC:", f"s_sub_u32 s22, s22, {tag}_PC-{first}", "s_subb_u32 s23, s23, 0",
      "s_lshr_b32 s3, s2, 3", f"s_lshl_b32 s3, s3, {wshift + 10}", f"v_lshlrev_b32 v{vtmp}, 4, v0", f"v_add_u32 v{vtmp}, s3, v{vtmp}",
      f"v_cmp_gt_u32 vcc, {last}-{first}-16, v{vtmp}", "s_and_saveexec_b64 s[4:5], vcc", f"s_cbranch_execz {tag}_PCX",
      f"global_load_dwordx4 {vr(vsink,4)}, v{vtmp}, s[22:23]", f"{tag}_PCX:", "s_mov_b64 exec, -1")


def vr(a, n=1):
    return f"v{a}" if n == 1 else f"v[{a}:{a+n-1}]"


def sr(a, n=1):
    return f"s{a}" if n == 1 else f"s[{a}:{a+n-1}]"


def header(a, name):
    a.lines += [f".globl {name}", ".p2align 8", f".type {name},@function", f"{name}:"]


def descriptor(name, nv, ns):
    acc = (nv + 3) // 4 * 4
    return [".p2align 6", f".amdhsa_kernel {name}", f"  .amdhsa_next_free_vgpr {nv}",
            f"  .amdhsa_next_free_sgpr {ns}", f"  .amdhsa_accum_offset {acc}",
            "  .amdhsa_group_segment_fixed_size 0", "  .amdhsa_kernarg_size 88",
            "  .amdhsa_user_sgpr_count 2", "  .amdhsa_user_sgpr_kernarg_segment_ptr 1",
            "  .amdhsa_system_sgpr_workgroup_id_x 1", "  .amdhsa_float_denorm_mode_32 3",
            ".end_amdhsa_kernel"]


K1_REG = 40960
K1_LDS = 4 * K1_REG
K1_CNT = 0
K1_I16 = 256
K1_I32 = K1_I16 + 32 * CAP * 2
K1_C2 = 44 * 1024
K1_H2 = K1_C2 + 4 + 1280
K1_NB = K1_H2 + 260
K1_BL = 47 * 1024
assert K1_I32 + 32 * CAP * 4 <= K1_C2 and K1_NB + 1280 <= K1_BL


def k1():
    a = Asm()
    header(a, "k1_kernel")
    sX, sW, sO, sB = 24, 28, 32, 36
    sw, stile, su, st0, st1, sWB, sXo, sOo, sK, sMask, sRB, sq, sWo, sWn, sWc = 56, 57, 58, 59, 60, 61, 62, 63, 64, 66, 67, 68, 69, 70, 71
    vLane, vT0, vT1, vT2 = 1, 2, 3, 4
    vAad = 6
    vTr = 14
    vXd = 16
    vWd, vSt = 20, 21
    vBias = 22
    vA = 24
    vAcc = 40
    vW = 104
    vWx = vW + 128
    nv = vWx + 3

    a("s_cmp_ge_u32 s2, 256", "s_cbranch_scc1 K1_END")
    a.stamp_setup(5, 0)
    code_prefetch(a, "k1_kernel", "K3_END" if OPT["ipf"] == 1 else "K1_END", 3, 2, vW + 124, "K1")
    a("s_load_dwordx16 s[4:19], s[0:1], 0", "s_load_dwordx2 s[20:21], s[0:1], 80", "s_load_dwordx2 s[52:53], s[0:1], 72")
    a(f"v_lshrrev_b32 v{vT0}, 6, v0", f"v_and_b32 v{vLane}, 63, v0", f"v_readfirstlane_b32 s{sw}, v{vT0}")
    a(f"s_lshr_b32 s{sq}, s2, 3", f"s_cmp_lt_u32 s{sq}, 4", "s_cbranch_scc1 K1_SORT")
    a(f"s_cmp_ge_u32 s{sw}, 4", "s_cbranch_scc1 K1_END", f"s_sub_u32 s{sq}, s{sq}, 4")
    a(f"s_and_b32 s{su}, s{sq}, 3", f"s_lshl_b32 s{su}, s{su}, 2", f"s_lshr_b32 s{sq}, s{sq}, 2",
      f"s_lshl_b32 s{st0}, s{sq}, 3", f"s_and_b32 s{stile}, s2, 7", f"s_add_u32 s{stile}, s{stile}, s{st0}",
      f"s_add_u32 s{su}, s{su}, s{sw}", f"s_cmp_ge_u32 s{stile}, {NT1}", "s_cbranch_scc1 K1_PREP")

    a(f"s_mul_i32 s{sRB}, s{sw}, {K1_REG}", f"s_add_u32 s{sWB}, s{sRB}, 8192")
    a(f"s_mov_b32 s{sK}, {NLOG2E}", f"s_mov_b32 s{sK+1}, {NLOG2E}")
    a(f"s_lshl_b32 s{sq}, s{sq}, 2" if OPT["rot"] else f"s_mov_b32 s{sq}, 0")
    a(f"v_lshrrev_b32 v{vT0}, 5, v{vLane}", f"s_lshl_b32 s{st0}, s{sw}, 3", f"v_add_u32 v{vT0}, s{st0}, v{vT0}",
      f"v_and_b32 v{vT1}, 31, v{vLane}")
    for m in range(4):
        a(f"v_add_u32 v{vT2}, {2*m}, v{vT0}", f"v_and_b32 v{vXd+m}, 15, v{vT2}", f"v_xor_b32 v{vXd+m}, v{vXd+m}, v{vT1}",
          f"v_add_u32 v{vXd+m}, s{sq}, v{vXd+m}", f"v_and_b32 v{vXd+m}, 31, v{vXd+m}",
          f"v_lshlrev_b32 v{vXd+m}, 4, v{vXd+m}", f"v_lshl_add_u32 v{vXd+m}, v{vT0}, 9, v{vXd+m}")
    a(f"s_mul_i32 s{sXo}, s{stile}, {TILE1*512}")
    sJ = 40
    a(f"s_lshr_b32 s{sJ}, s{su}, 2" if OPT["xrot"] else f"s_mov_b32 s{sJ}, 0")
    for j in range(1, TILE1 // 32):
        a(f"s_add_u32 s{sJ+j}, s{sJ+j-1}, 1", f"s_cmp_eq_u32 s{sJ+j}, {TILE1 // 32}", f"s_cselect_b32 s{sJ+j}, 0, s{sJ+j}")
    a(f"v_lshrrev_b32 v{vT0}, 3, v{vLane}", f"v_and_b32 v{vT1}, 7, v{vLane}", f"v_and_b32 v{vT2}, 16, v{vLane}",
      f"v_lshrrev_b32 v{vT2}, 2, v{vT2}", f"v_xor_b32 v{vT1}, v{vT1}, v{vT2}", f"v_lshlrev_b32 v{vT1}, 4, v{vT1}",
      f"v_lshl_add_u32 v{vWd}, v{vT0}, 10, v{vT1}")
    for i in range(1, 4):
        a(f"v_add_u32 v{vWx+i-1}, {7168*i}, v{vWd}")
    a(f"s_lshr_b32 s{st0}, s{su}, 3", f"s_lshl_b32 s{st0}, s{st0}, 18", f"s_and_b32 s{sMask}, s{su}, 7",
      f"s_lshl_b32 s{sMask}, s{sMask}, 7", f"s_add_u32 s{sWo}, s{st0}, s{sMask}", f"s_lshl_b32 s{sWn}, s{sq}, 13")
    a(f"v_and_b32 v{vT0}, 31, v{vLane}", f"v_lshrrev_b32 v{vT1}, 3, v{vT0}", f"v_mul_u32_u24 v{vAad}, {K1_REG}, v{vT1}",
      f"v_and_b32 v{vT1}, 7, v{vT0}", f"v_lshl_add_u32 v{vAad}, v{vT1}, 9, v{vAad}",
      f"v_lshrrev_b32 v{vT1}, 5, v{vLane}", f"v_and_b32 v{vT2}, 15, v{vLane}", f"v_xor_b32 v{vT2}, v{vT2}, v{vT1}",
      f"v_lshl_add_u32 v{vAad}, v{vT2}, 4, v{vAad}")
    for s in range(1, 8):
        a(f"v_xor_b32 v{vAad+s}, {32*s}, v{vAad}")
    a(f"v_lshlrev_b32 v{vSt}, 9, v{vT1}", f"v_lshl_add_u32 v{vSt}, v{vT0}, 2, v{vSt}")
    a(f"v_lshlrev_b32 v{vTr}, 10, v{vT1}", f"v_bfe_u32 v{vT2}, v{vLane}, 2, 2", f"v_lshl_add_u32 v{vTr}, v{vT2}, 7, v{vTr}",
      f"v_bfe_u32 v{vT2}, v{vLane}, 3, 1", f"v_lshl_add_u32 v{vTr}, v{vT2}, 6, v{vTr}",
      f"v_bfe_u32 v{vT2}, v{vLane}, 4, 1", f"v_lshl_add_u32 v{vTr}, v{vT2}, 5, v{vTr}",
      f"v_and_b32 v{vT2}, 3, v{vLane}", f"v_lshl_add_u32 v{vTr}, v{vT2}, 3, v{vTr}",
      f"v_add_u32 v{vTr}, s{sWB}, v{vTr}", f"v_xor_b32 v{vTr+1}, 64, v{vTr}", f"v_lshlrev_b32 v{vT0}, 1, v{vT0}")
    a(f"s_mul_i32 s{sOo}, s{su}, {SS}", f"s_mul_i32 s{st0}, s{stile}, {TILE1*128}", f"s_add_u32 s{sOo}, s{sOo}, s{st0}")
    a("s_waitcnt lgkmcnt(0)")
    a.srd(sX, 4, 0, N * 512)
    a.srd(sW, 12, 0, 513 * 1024)

    def x_dma(j):
        a(f"s_add_u32 m0, s{sRB}, {j*4096}", f"s_lshl_b32 s{st0}, s{sJ+j}, 14", f"s_add_u32 s{st0}, s{st0}, s{sXo}")
        for m in range(4):
            a.vmem(f"buffer_load_dwordx4 v{vXd+m}, {sr(sX,4)}, s{st0} offen offset:{1024*m}{' nt' if OPT['ntx'] else ''} lds", f"x{j}")

    def w_dma(s):
        if s % 2 == 0:
            a(f"s_add_u32 m0, s{sWB}, {s*2048}", f"s_add_u32 s{sWc}, s{sWo}, s{sWn}")
        elif OPT["x0pos"] == s:
            a(f"s_add_u32 m0, s{sWB}, {(s-1)*2048}", "s_nop 0")
        for i in (2 * (s % 2), 2 * (s % 2) + 1):
            reg = vWd if i == 0 else vWx + i - 1
            a.vmem(f"buffer_load_dwordx4 v{reg}, {sr(sW,4)}, s{sWc} offen offset:{1024*i}{' nt' if OPT['ntw'] else ''} lds", f"w{s}")
        if s % 2 == 1:
            a(f"s_add_u32 s{sWn}, s{sWn}, 32768", f"s_and_b32 s{sWn}, s{sWn}, 0x3ffff")

    def x_touch():
        a(f"s_lshr_b32 s{st0}, s{su}, 2", f"s_mul_i32 s{st0}, s{st0}, {TILE1*128}", f"s_mul_i32 s{st1}, s{sw}, {TILE1*32}",
          f"s_add_u32 s{st0}, s{st0}, s{st1}", f"s_add_u32 s{st0}, s{st0}, s{sXo}", f"v_lshlrev_b32 v{vT1}, 7, v{vLane}",
          f"s_mov_b32 exec_hi, {(1 << (TILE1 // 4 - 32)) - 1}")
        a.vmem(f"buffer_load_dword v{vT2}, v{vT1}, {sr(sX,4)}, s{st0} offen{' nt' if OPT['ntx'] else ''}", "touch")
        a("s_mov_b32 exec_hi, -1")

    LA = OPT["la"]
    a.stamp()
    if OPT["xtouch"] == 1:
        x_touch()
    for s in range(LA):
        if s == OPT["x0pos"]:
            x_dma(0)
        w_dma(s)
        if OPT["xtouch"] == 2 + s:
            x_touch()
    if OPT["x1early"]:
        x_dma(1)
    a.srd(sO, 20, 0, 16 * SS)
    if OPT["dup"]:
        a.srd(48, 20, 64 << 20, 16 * SS)
    a.srd(sB, 14, 0, 1024)
    a(f"s_cmp_ge_u32 s{su}, 8", f"s_cselect_b32 s{sB+2}, s{sB+2}, 0")
    a.stamp()

    def wfrag(s, b):
        return vW + (s * 2 + b) * 4

    def a_read(j, s):
        a.lds(f"ds_read_b128 {vr(vA + 4*((16*j+s) % 4), 4)}, v{vAad + (s & 7)} offset:{4096*j + 256*(s >> 3)}", f"a{j}_{s}")

    def w_read(s):
        a.wait(vm=f"w{s}")
        for b in range(2):
            for q in range(2):
                a.lds(f"ds_read_b64_tr_b16 {vr(wfrag(s, b) + 2*q, 2)}, v{vTr+b} offset:{s*2048 + q*512}", f"t{s}")

    def mfma(j, s, b):
        acc = vAcc + 32 * (j & 1) + 16 * b
        c = "0" if s == 0 else vr(acc, 16)
        a(f"v_mfma_f32_32x32x16_bf16 {vr(acc,16)}, {vr(vA + 4*((16*j+s) % 4), 4)}, {vr(wfrag(s, b), 4)}, {c}")

    def epilogue_ops(j):
        acc = vAcc + 32 * (j & 1)
        ops = [("s", f"s_lshl_b32 s{st1}, s{sJ+j}, 12"), ("s", f"s_add_u32 s{st1}, s{st1}, s{sOo}")]
        for r in range(0, 16, 2):
            for rr in (r, r + 1):
                ops.append(("v", f"v_fma_f32 v{acc+rr}, v{acc+rr}, s{sK}, v{vBias}"))
                ops.append(("v", f"v_fma_f32 v{acc+16+rr}, v{acc+16+rr}, s{sK}, v{vBias+1}"))
            for rr in (r, r + 1):
                ops.append(("v", f"v_cvt_pk_bf16_f32 v{acc+rr}, v{acc+rr}, v{acc+16+rr}"))
            for rr in (r, r + 1):
                ops.append(("m", f"buffer_store_dword v{acc+rr}, v{vSt}, {sr(sO,4)}, s{st1} offen offset:{(8*(rr>>2) + (rr&3))*128}{wt()}"))
        return ops

    def emit_op(op):
        if op[0] == "m":
            a.vmem(op[1], "st")
            if OPT["dup"]:
                a.vmem(op[1].replace(sr(sO, 4), sr(48, 4)), "st")
        else:
            a(op[1])

    NJ = TILE1 // 32
    a.wait(vm="x0")
    a("s_barrier")
    a.stamp()
    PF0 = OPT["pf0"]
    for s in range(PF0):
        w_read(s)
        a_read(0, s)
    for s in range(16):
        if s + PF0 < 16:
            w_read(s + PF0)
            a_read(0, s + PF0)
        a.wait(lg=[f"t{s}", f"a0_{s}"])
        mfma(0, s, 0)
        if s + LA < 16:
            w_dma(s + LA)
        elif s + LA == 16:
            if not OPT["x1early"]:
                x_dma(1)
            a.vmem(f"buffer_load_ushort v{vBias}, v{vT0}, {sr(sB,4)}, s{sMask} offen", "x1")
            a.vmem(f"buffer_load_ushort v{vBias+1}, v{vT0}, {sr(sB,4)}, s{sMask} offen offset:64", "x1")
        elif s + LA - 15 < (3 if OPT["xspread"] else NJ):
            x_dma(s + LA - 15)
        mfma(0, s, 1)
        if OPT["fine"] and s % 2 == 1 and s < 15:
            a.stamp()
    PFA = 3
    a.stamp()
    a.wait(vm="x1")
    a("s_barrier")
    for s in range(PFA):
        a_read(1, s)
    a(f"v_lshlrev_b32 v{vBias}, 16, v{vBias}", f"v_lshlrev_b32 v{vBias+1}, 16, v{vBias+1}",
      f"v_mul_f32 v{vBias}, s{sK}, v{vBias}", f"v_mul_f32 v{vBias+1}, s{sK}, v{vBias+1}")
    a.stamp()
    for j in range(1, NJ):
        ops = epilogue_ops(j - 1)
        for s in range(16):
            if s + PFA == 16 and j < NJ - 1:
                a.wait(vm=f"x{j+1}")
                a("s_barrier")
            a.wait(lg=f"a{j}_{s}")
            mfma(j, s, 0)
            if OPT["xspread"] and s == 1 and j + 2 < NJ:
                x_dma(j + 2)
            if s + PFA < 16:
                a_read(j, s + PFA)
            elif j < NJ - 1:
                a_read(j + 1, s + PFA - 16)
            if s >= 3:
                for _ in range(3 if s == 3 else 2):
                    if ops:
                        emit_op(ops.pop(0))
            mfma(j, s, 1)
            if s >= 3:
                for _ in range(3):
                    if ops:
                        emit_op(ops.pop(0))
        assert not ops
        a.stamp()
    a("s_nop 15")
    for op in epilogue_ops(NJ - 1):
        emit_op(op)
    a.stamp_dump(sX, 20, sw, 8)
    a("s_endpgm")

    a("K1_PREP:")
    a.vm, a.lg = [], []
    a(f"s_cmp_ge_u32 s{stile}, {NT1 + 2}", "s_cbranch_scc1 K1_CPREP")
    sW2, sF = sX, sW
    vL = vW
    vOut = vW + 32
    a(f"s_sub_u32 s{st0}, s{stile}, {NT1}", f"s_lshl_b32 s{st0}, s{st0}, 4", f"s_add_u32 s{su}, s{su}, s{st0}")
    a(f"v_and_b32 v{vT0}, 15, v{vLane}", f"v_lshrrev_b32 v{vT1}, 4, v{vLane}", f"v_lshlrev_b32 v{vT0}, 2, v{vT0}",
      f"v_lshl_add_u32 v{vWd}, v{vT1}, 11, v{vT0}", f"v_lshlrev_b32 v{vSt}, 4, v{vLane}")
    a(f"s_lshr_b32 s{st0}, s{su}, 2", f"s_lshl_b32 s{st0}, s{st0}, 6", f"s_and_b32 s{st1}, s{su}, 3",
      f"s_lshl_b32 s{st1}, s{st1}, 16", f"s_add_u32 s{sXo}, s{st0}, s{st1}", f"s_lshl_b32 s{sOo}, s{su}, 13")
    a("s_waitcnt lgkmcnt(0)")
    a.srd(sW2, 16, 0, 512 * 512)
    a.srd(sF, 20, W2F_OFF, 262144)
    for s in range(4):
        for i in range(8):
            row = (s >> 1) * 64 + 16 * (s & 1) + (i >> 1) + 32 * (i & 1)
            a(f"s_add_u32 s{st0}, s{sXo}, {row*512}")
            a.vmem(f"buffer_load_dword v{vL + 8*s + i}, v{vWd}, {sr(sW2,4)}, s{st0} offen{' nt' if OPT['ntw2'] else ''}", f"l{s}")
    a(f"s_mov_b32 s{sK}, 0x05040100", f"s_mov_b32 s{sK+1}, 0x07060302")
    for s in range(4):
        a.wait(vm=f"l{s}")
        for b in range(2):
            o = vOut + 8 * s + 4 * b
            for m in range(4):
                a(f"v_perm_b32 v{o+m}, v{vL + 8*s + 2*m + 1}, v{vL + 8*s + 2*m}, s{sK+b}")
            a(f"s_add_u32 s{st0}, s{sOo}, {(2*s+b)*1024}")
            a.vmem(f"buffer_store_dwordx4 {vr(o,4)}, v{vSt}, {sr(sF,4)}, s{st0} offen{wt()}")
    a("s_endpgm")

    a("K1_CPREP:")
    a(f"s_cmp_ge_u32 s{su}, 8", "s_cbranch_scc1 K1_END")
    a(f"v_and_b32 v{vT1}, 1, v{vLane}", f"v_lshlrev_b32 v{vT1}, 6, v{vT1}",
      f"v_bfe_u32 v{vT2}, v{vLane}, 2, 1", f"v_lshl_add_u32 v{vT1}, v{vT2}, 5, v{vT1}",
      f"v_bfe_u32 v{vT2}, v{vLane}, 3, 1", f"v_lshl_add_u32 v{vT1}, v{vT2}, 2, v{vT1}",
      f"v_bfe_u32 v{vT2}, v{vLane}, 1, 1", f"v_lshl_add_u32 v{vT1}, v{vT2}, 1, v{vT1}",
      f"v_bfe_u32 v{vT0}, v{vLane}, 4, 1", f"v_lshrrev_b32 v{vT2}, 5, v{vLane}", f"v_cmp_eq_u32 vcc, v{vT0}, v{vT2}",
      f"v_lshlrev_b32 v{vT0}, 3, v{vLane}", f"s_lshl_b32 s{st0}, s{su}, 7", f"s_lshl_b32 s{st1}, s{su}, 9",
      f"s_mov_b32 s{sK}, {NLOG2E}", "s_waitcnt lgkmcnt(0)")
    a.srd(sX, 12, 512 * 1024, 1024)
    a.srd(sW, 20, CF_OFF, 4096)
    for i in range(4):
        a(f"buffer_load_ushort v{8+i}, v{vT1}, {sr(sX,4)}, s{st0} offen offset:{8*i}")
    a("s_waitcnt vmcnt(0)")
    for i in range(4):
        a(f"v_lshlrev_b32 v{8+i}, 16, v{8+i}", f"v_mul_f32 v{8+i}, s{sK}, v{8+i}")
    a("v_cvt_pk_bf16_f32 v12, v8, v9", "v_cvt_pk_bf16_f32 v13, v10, v11", "v_cndmask_b32 v12, 0, v12, vcc", "v_cndmask_b32 v13, 0, v13, vcc",
      f"buffer_store_dwordx2 v[12:13], v{vT0}, {sr(sW,4)}, s{st1} offen{wt()}", "s_endpgm")

    a("K1_SORT:")
    a.vm, a.lg = [], []
    nt = " nt" if OPT["nte"] else ""
    sDst, sSrc, sE, sR4, sR2, sDb, sBl, sDg = 24, 28, 32, 36, 40, 44, 24, 28
    sc = su
    vDst, vSrc, vEe, vSl, vRg, vRd, vCn, vRo = 8, 20, 32, 40, 56, 72, 96, 100
    vOne, vBig, vO16, vO8 = 6, 7, 108, 109
    a(f"s_mov_b32 s{sc}, s2")
    a(f"v_lshlrev_b32 v{vO16}, 4, v0", f"v_lshlrev_b32 v{vO8}, 3, v0")
    a(f"s_mul_i32 s{st0}, s{sc}, {CHUNK*4}", f"s_mul_i32 s{st1}, s{sc}, {CHUNK*2}")
    for r in range(4):
        a(f"v_mov_b32 v{vRd+r}, 0", f"v_mov_b32 v{vRd+4+r}, 0xffff")
    for i in range(2):
        a(f"ds_write_b128 v{vO16}, {vr(vRd,4)} offset:{8192*i}")
    a(f"ds_write_b64 v{vO8}, {vr(vRd,2)} offset:{K1_C2}")
    a("s_waitcnt lgkmcnt(0)")
    a.srd(sDst, 10, f"s{st0}", CHUNK * 4)
    for i in range(3):
        a(f"s_mov_b32 s{sXo}, {8192*i}")
        a.vmem(f"buffer_load_dwordx4 {vr(vDst+4*i,4)}, v{vO16}, {sr(sDst,4)}, s{sXo} offen{nt}", f"d{i}")
    a("s_barrier")
    a.srd(sSrc, 8, f"s{st0}", CHUNK * 4)
    a.srd(sE, 6, f"s{st1}", CHUNK * 2)
    for i in range(3):
        a(f"s_mov_b32 s{st0}, {8192*i}", f"s_mov_b32 s{st1}, {4096*i}")
        a.vmem(f"buffer_load_dwordx4 {vr(vSrc+4*i,4)}, v{vO16}, {sr(sSrc,4)}, s{st0} offen{nt}", f"s{i}")
        a.vmem(f"buffer_load_dwordx2 {vr(vEe+2*i,2)}, v{vO8}, {sr(sE,4)}, s{st1} offen{nt}", f"s{i}")
    a.stamp(7)
    a.srd(sR4, 20, R4_OFF, 32 * R4BLK)
    a.srd(sR2, 20, R2_OFF, 32 * R2BLK)
    a.srd(sDb, 52, 0, 256)
    a(f"s_mov_b32 s{st0}, 13401", f"s_mov_b32 s{st1}, {-RNG & 0xffffffff}", f"s_mov_b32 s{sMask}, 0xffff0000",
      f"v_mov_b32 v{vOne}, 1", f"v_cmp_gt_u32 vcc, {CHUNK//4 - 1024}, v0", f"s_mov_b64 {sr(sK,2)}, vcc",
      f"s_mov_b32 s{sXo}, {CAP}")

    a.stamp(8)
    for i in range(3):
        a.wait(vm=f"d{i}")
        if i == 0:
            a.stamp(9)
        if i == 2:
            a(f"s_mov_b64 exec, {sr(sK,2)}")
        for n in range(4 * i, 4 * i + 4):
            a(f"v_mul_u32_u24 v{vRg+n}, s{st0}, v{vDst+n}", f"v_lshrrev_b32 v{vRg+n}, 22, v{vRg+n}",
              f"v_lshlrev_b32 v{vSl+n}, 2, v{vRg+n}")
            a.lds(f"ds_add_rtn_u32 v{vSl+n}, v{vSl+n}, v{vOne} offset:{K1_CNT}", f"sl{n}")
            a(f"v_mad_i32_i24 v{vDst+n}, v{vRg+n}, s{st1}, v{vDst+n}", f"v_lshl_add_u32 v{vDst+n}, v{vDst+n}, 2, 4")
        if i == 2:
            a("s_mov_b64 exec, -1")
    a.stamp(10)
    for n in range(12):
        if n == 8:
            a(f"s_mov_b64 exec, {sr(sK,2)}")
        a.wait(lg=f"sl{n}")
        a(f"v_min_u32 v{vSl+n}, {CAP - 1}, v{vSl+n}", f"v_mad_u32_u24 v{vSl+n}, v{vRg+n}, s{sXo}, v{vSl+n}",
          f"v_lshlrev_b32 v{vRg+n}, 1, v{vSl+n}")
        a.lds(f"ds_write_b16 v{vRg+n}, v{vDst+n} offset:{K1_I16}")
    a("s_mov_b64 exec, -1")
    a(f"s_mul_i32 s{st0}, s{sc}, {CAP*4}", f"s_mul_i32 s{st1}, s{sc}, {CAP*2}",
      f"s_mov_b32 s{sXo}, {R4BLK - CAP*4}", f"s_mov_b32 s{sOo}, {R2BLK - CAP*2}")
    for i in range(2):
        a(f"v_add_u32 v{vT2}, {512*i}, v0", f"v_mul_u32_u24 v{vT2}, 2341, v{vT2}", f"v_lshrrev_b32 v{vT2}, 16, v{vT2}",
          f"v_mad_u32_u24 v{vRo+4+i}, v{vT2}, s{sOo}, v{vO16}", f"v_add_u32 v{vRo+4+i}, {8192*i}, v{vRo+4+i}",
          f"v_lshlrev_b32 v{vCn+i}, 2, v{vT2}")
    a.wait(lg="all")
    a("s_barrier")
    a.stamp(1)
    for i in range(2):
        a.lds(f"ds_read_b128 {vr(vRd+16+4*i,4)}, v{vO16} offset:{K1_I16 + 8192*i}", f"h{i}")
        a.lds(f"ds_read_b32 v{vCn+i}, v{vCn+i} offset:{K1_CNT}", f"h{i}")
    for i in range(2):
        a.wait(lg=f"h{i}")
        a(f"v_cmp_ge_u32 vcc, {CAP}, v{vCn+i}", "s_nop 1", f"v_cndmask_b32 v{vRd+16+4*i}, -1, v{vRd+16+4*i}, vcc")
        a.vmem(f"buffer_store_dwordx4 {vr(vRd+16+4*i,4)}, v{vRo+4+i}, {sr(sR2,4)}, s{st1} offen sc1", "r2")
    for i in range(3):
        a.wait(vm=f"s{i}")
        if i == 2:
            a(f"s_mov_b64 exec, {sr(sK,2)}")
        for n in range(4 * i, 4 * i + 4):
            if n & 1:
                a(f"v_and_or_b32 v{vSrc+n}, v{vEe+n//2}, s{sMask}, v{vSrc+n}")
            else:
                a(f"v_lshl_or_b32 v{vSrc+n}, v{vEe+n//2}, 16, v{vSrc+n}")
            a(f"v_lshlrev_b32 v{vSl+n}, 2, v{vSl+n}")
            a.lds(f"ds_write_b32 v{vSl+n}, v{vSrc+n} offset:{K1_I32}")
    a("s_mov_b64 exec, -1")
    for i in range(4):
        a(f"v_add_u32 v{vT2}, {512*i}, v0", f"v_mul_u32_u24 v{vT2}, 2341, v{vT2}", f"v_lshrrev_b32 v{vT2}, 17, v{vT2}",
          f"v_mad_u32_u24 v{vRo+i}, v{vT2}, s{sXo}, v{vO16}", f"v_add_u32 v{vRo+i}, {8192*i}, v{vRo+i}")
    a(f"s_lshl_b32 s{sWo}, s{sc}, 2", f"v_mov_b32 v{vBig}, s{sWo}")
    a.wait(vm="all", lg="all")
    a("s_barrier")
    a.stamp(11)
    a(f"s_cmp_lg_u32 s{sw}, 0", "s_cbranch_scc1 K1_F1", "s_mov_b64 exec, 1",
      f"buffer_store_dword v{vOne}, v{vBig}, {sr(sDb,4)}, 0 offen sc1", "s_mov_b64 exec, -1", "K1_F1:")
    for i in range(4):
        a.lds(f"ds_read_b128 {vr(vRd+4*i,4)}, v{vO16} offset:{K1_I32 + 8192*i}", f"g{i}")
    for i in range(4):
        a.wait(lg=f"g{i}")
        a.vmem(f"buffer_store_dwordx4 {vr(vRd+4*i,4)}, v{vRo+i}, {sr(sR4,4)}, s{st0} offen sc1")
    a(f"s_mul_i32 s{st0}, s{sc}, {R4BLK}", f"s_add_u32 s{st0}, s{st0}, {R4_OFF}", f"s_mul_i32 s{st1}, s{sc}, {R2BLK}",
      f"s_add_u32 s{st1}, s{st1}, {R2_OFF}", f"s_mul_i32 s{sXo}, s{sc}, {BLOB}", f"s_add_u32 s{sXo}, s{sXo}, {BLOB_OFF}",
      f"s_mul_i32 s{sOo}, s{sc}, {RNG}", f"s_sub_u32 s{sWn}, {N}, s{sOo}", f"s_min_u32 s{sWn}, s{sWn}, {RNG}",
      f"s_lshl_b32 s{sWn}, s{sWn}, 2", f"s_lshl_b32 s{sOo}, s{sOo}, 2", f"s_add_u32 s{sOo}, s{sOo}, {DEG_OFF}")
    a.srd(sBl, 20, f"s{sXo}", BLOB)
    a.srd(sDg, 20, f"s{sOo}", f"s{sWn}")
    for r in range(4):
        a(f"v_mov_b32 v{vDst+r}, 0xffff")
    a(f"v_add_u32 v{vT0}, {K1_BL}, v{vO16}", f"v_mov_b32 v{vDst+4}, 0", f"v_mov_b32 v{vDst+5}, {K1_BL + BLOB}")
    for i in range(3):
        a(f"ds_write_b128 v{vT0}, {vr(vDst,4)} offset:{8192*i}")
    a(f"v_lshlrev_b32 v{vT1}, 2, v0", f"v_add_u32 v{vT1}, {K1_BL + B_ORD}, v{vT1}", f"ds_write_b32 v{vT1}, v{vDst+4}",
      f"v_mov_b32 v{vT1}, {K1_NB - 4}", f"ds_write_b32 v{vT1}, v{vDst+5}")
    for n in range(16):
        a(f"v_mov_b32 v{48+n}, 0")
    a("s_waitcnt vmcnt(0) lgkmcnt(0)")
    a.vm, a.lg = [], []
    a.srd(sR4, 20, f"s{st0}", R4BLK)
    a.srd(sR2, 20, f"s{st1}", R2BLK)
    a("s_barrier")
    a.stamp(2)

    vFa, vFd = 110, 111
    a(f"v_lshlrev_b32 v{vFa}, 2, v{vLane}")

    def poll_issue(tag, word, wave):
        a(f"s_cmp_lg_u32 s{sw}, {wave}", f"s_cbranch_scc1 K1_{tag}I", "s_mov_b32 exec_hi, 0",
          f"buffer_load_dword v{vFd}, v{vFa}, {sr(sDb,4)}, 0 offen offset:{word} {POLLF[OPT['pollf']]}", "s_mov_b32 exec_hi, -1", f"K1_{tag}I:")

    def poll(tag, word, wave):
        a(f"s_cmp_lg_u32 s{sw}, {wave}", f"s_cbranch_scc1 K1_{tag}X", "s_mov_b32 exec_hi, 0", f"s_mov_b32 s{sWc}, 0")
        a(f"K1_{tag}L:")
        a("s_waitcnt vmcnt(0)", f"v_cmp_eq_u32 vcc, 0, v{vFd}", f"s_cbranch_vccz K1_{tag}D",
          f"buffer_load_dword v{vFd}, v{vFa}, {sr(sDb,4)}, 0 offen offset:{word} {POLLF[OPT['pollf']]}", f"s_add_u32 s{sWc}, s{sWc}, 1",
          f"s_cmp_lt_u32 s{sWc}, 0x40000", f"s_cbranch_scc1 K1_{tag}L")
        a("s_waitcnt vmcnt(0)", f"v_mov_b32 v{vFd}, {K1_BL + B_FLAG}",
          f"ds_write_b32 v{vFd}, v{vOne}", "s_waitcnt lgkmcnt(0)")
        a(f"K1_{tag}D:", "s_mov_b64 exec, -1", f"K1_{tag}X:")
    a(f"s_cmp_lg_u32 s{sw}, 1", "s_cbranch_scc1 K1_F2", "s_mov_b64 exec, 1",
      f"buffer_store_dword v{vOne}, v{vBig}, {sr(sDb,4)}, 0 offen offset:128 sc1", "s_mov_b64 exec, -1", "K1_F2:")
    poll_issue("PA", 0, 0)
    poll("PA", 0, 0)
    a("s_barrier")
    a.stamp(3)
    vR2, vR4, vDl, vS2 = 8, 16, 32, 48
    vDeg, vP, vBin, vPos, vDf = 64, 65, 66, 67, 70
    for i in range(4):
        a(f"s_mov_b32 s{st0}, {4096*i}")
        a.vmem(f"buffer_load_dwordx2 {vr(vR2+2*i,2)}, v{vO8}, {sr(sR2,4)}, s{st0} offen sc1", f"h{i}")
    a(f"v_mov_b32 v{vT2}, 0")
    for i in range(4):
        a.wait(vm=f"h{i}")
        if i == 0:
            a.stamp(12)
            poll_issue("PB", 128, 7)
        for n in range(4 * i, 4 * i + 4):
            if n & 1:
                a(f"v_ashrrev_i32 v{vDl+n}, 16, v{vR2+n//2}")
            else:
                a(f"v_bfe_i32 v{vDl+n}, v{vR2+n//2}, 0, 16")
        a(f"v_min_i32 v{vT2}, v{vDl+4*i}, v{vT2}")
        for n in range(4 * i, 4 * i + 4):
            a(f"v_cmpx_lt_i32 vcc, 0, v{vDl+n}")
            a.lds(f"ds_add_rtn_u32 v{vS2+n}, v{vDl+n}, v{vOne} offset:{K1_C2}")
            a("s_mov_b64 exec, -1")
    a(f"v_mov_b32 v{vT0}, {K1_BL + B_FLAG}", f"v_cmpx_gt_i32 vcc, 0, v{vT2}")
    a.lds(f"ds_write_b32 v{vT0}, v{vOne}")
    a("s_mov_b64 exec, -1")
    a.wait(lg="all")
    poll("PB", 128, 7)
    a("s_barrier")
    a.stamp(4)
    for i in range(4):
        a(f"s_mov_b32 s{st0}, {8192*i}")
        a.vmem(f"buffer_load_dwordx4 {vr(vR4+4*i,4)}, v{vO16}, {sr(sR4,4)}, s{st0} offen sc1", f"g{i}")
    a(f"s_cmp_ge_u32 s{sw}, 5", "s_cbranch_scc1 K1_D1")
    a(f"v_lshlrev_b32 v{vT1}, 2, v0", f"ds_read_b32 v{vDeg}, v{vT1} offset:{K1_C2 + 4}", "s_waitcnt lgkmcnt(0)")
    a(f"v_cvt_f32_u32 v{vDf}, v{vDeg}", f"v_cmp_lt_u32 {sr(sK,2)}, {MAXDEG}, v{vDeg}", f"v_min_u32 v{vDeg}, {MAXDEG}, v{vDeg}",
      f"v_sub_u32 v{vBin}, 63, v{vDeg}", f"v_lshlrev_b32 v{vBin}, 2, v{vBin}",
      f"ds_add_rtn_u32 v{vP}, v{vBin}, v{vOne} offset:{K1_H2}",
      f"s_mov_b64 exec, {sr(sK,2)}", f"ds_write_b32 v{vT0}, v{vOne}", "s_mov_b64 exec, -1", "s_waitcnt lgkmcnt(0)")
    a("K1_D1:", "s_barrier")

    def scan(reg):
        a("s_nop 1")
        for ctrl in ("row_shr:1", "row_shr:2", "row_shr:4", "row_shr:8"):
            a(f"v_add_u32_dpp v{reg}, v{reg}, v{reg} {ctrl} row_mask:0xf bank_mask:0xf bound_ctrl:1", "s_nop 1")
        a(f"v_add_u32_dpp v{reg}, v{reg}, v{reg} row_bcast:15 row_mask:0xa bank_mask:0xf", "s_nop 1")
        a(f"v_add_u32_dpp v{reg}, v{reg}, v{reg} row_bcast:31 row_mask:0xc bank_mask:0xf", "s_nop 1")
    vA0, vA1 = 68, 69
    a(f"s_cmp_ge_u32 s{sw}, 5", "s_cbranch_scc1 K1_D2")
    a(f"v_lshlrev_b32 v{vA0}, 2, v{vLane}", f"ds_read_b32 v{vA1}, v{vA0} offset:{K1_H2}", "s_waitcnt lgkmcnt(0)",
      f"v_mov_b32 v{vA0}, v{vA1}")
    scan(vA0)
    a(f"v_sub_u32 v{vA0}, v{vA0}, v{vA1}", f"ds_bpermute_b32 v{vPos}, v{vBin}, v{vA0}",
      f"v_lshl_or_b32 v{vDeg}, v{vDeg}, 16, v0", "s_waitcnt lgkmcnt(0)",
      f"v_add_u32 v{vPos}, v{vPos}, v{vP}", f"v_lshlrev_b32 v{vA0}, 2, v{vPos}", f"v_add_u32 v{vA0}, {K1_BL + B_ORD}, v{vA0}",
      f"ds_write_b32 v{vA0}, v{vDeg}", "s_waitcnt lgkmcnt(0)")
    a("K1_D2:", "s_barrier")
    a(f"s_cmp_ge_u32 s{sw}, 5", "s_cbranch_scc1 K1_D3")
    a(f"v_lshlrev_b32 v{vA0}, 5, v{vLane}", f"v_add_u32 v{vA0}, {K1_BL + B_ORD}, v{vA0}", f"ds_read_b32 v{vA1}, v{vA0}",
      f"v_cmp_gt_u32 vcc, {NGRP}, v{vLane}", "s_waitcnt lgkmcnt(0)", f"v_lshrrev_b32 v{vA1}, 16, v{vA1}",
      f"v_cndmask_b32 v{vA1}, 0, v{vA1}, vcc", f"v_mov_b32 v{vA0}, v{vA1}")
    scan(vA0)
    a(f"v_readlane_b32 s{st0}, v{vA0}, 63", f"v_sub_u32 v{vA0}, v{vA0}, v{vA1}", f"v_lshlrev_b32 v{vA0}, 5, v{vA0}",
      f"v_lshrrev_b32 v{vA1}, 3, v{vPos}", f"v_lshlrev_b32 v{vA1}, 2, v{vA1}", f"ds_bpermute_b32 v{vA1}, v{vA1}, v{vA0}",
      f"v_and_b32 v{vPos}, 7, v{vPos}", f"v_lshlrev_b32 v{vP}, 2, v{vLane}", f"v_add_u32 v{vP}, {K1_BL + B_GB}, v{vP}",
      "s_mov_b64 exec, vcc", f"ds_write_b32 v{vP}, v{vA0}", "s_mov_b64 exec, -1",
      f"s_cmp_le_u32 s{st0}, {NSLOT - 8}", "s_cbranch_scc1 K1_FITS", f"ds_write_b32 v{vT0}, v{vOne}", "K1_FITS:",
      "s_waitcnt lgkmcnt(0)", f"v_lshl_add_u32 v{vA1}, v{vPos}, 2, v{vA1}", f"v_add_u32 v{vA1}, {K1_BL}, v{vA1}",
      f"ds_write_b32 v{vT1}, v{vA1} offset:{K1_NB}", "s_waitcnt lgkmcnt(0)")
    a("K1_D3:", "s_barrier")
    a.stamp(5)
    a.lg = []
    a(f"ds_read_b32 v{vT2}, v{vT0}")
    for n in range(8):
        a.lds(f"ds_read_b32 v{vR2+n}, v{vDl+n} offset:{K1_NB - 4}", f"nb{n}")
    a("s_waitcnt lgkmcnt(8)", f"v_readfirstlane_b32 s{st0}, v{vT2}", f"s_cmp_lg_u32 s{st0}, 0", "s_cbranch_scc1 K1_NOSC")
    for n in range(16):
        a.wait(lg=f"nb{n}", vm=f"g{n//4}")
        a(f"v_lshl_add_u32 v{vS2+n}, v{vS2+n}, 5, v{vR2 + (n & 7)}")
        if n < 8:
            a.lds(f"ds_read_b32 v{vR2+n}, v{vDl+n+8} offset:{K1_NB - 4}", f"nb{n+8}")
        a.lds(f"ds_write_b32 v{vS2+n}, v{vR4+n}")
    a("s_branch K1_SCD", "K1_NOSC:", "s_waitcnt vmcnt(0)", "K1_SCD:", "s_waitcnt lgkmcnt(0)")
    a.vm, a.lg = [], []
    a("s_barrier")
    a.stamp(6)
    a(f"v_add_u32 v{vT0}, {K1_BL}, v{vO16}")
    for i in range(4):
        a.lds(f"ds_read_b128 {vr(vR4+4*i,4)}, v{vT0} offset:{8192*i}", f"o{i}")
    for i in range(4):
        a.wait(lg=f"o{i}")
        a(f"s_mov_b32 s{st0}, {8192*i}")
        a.vmem(f"buffer_store_dwordx4 {vr(vR4+4*i,4)}, v{vO16}, {sr(sBl,4)}, s{st0} offen{' sc1' if OPT['blobsc'] else ''}")
    a(f"s_cmp_ge_u32 s{sw}, 5", "s_cbranch_scc1 K1_NODEG", f"buffer_store_dword v{vDf}, v{vT1}, {sr(sDg,4)}, 0 offen{' sc1' if OPT['blobsc'] else ''}", "K1_NODEG:")
    a.stamp_dump(sX, 20, sw, 8)
    a("K1_END:", "s_endpgm")
    return a.lines, descriptor("k1_kernel", nv, 102 if STAMPS else 72)


K2_LDS = BLOB


def k2():
    a = Asm()
    header(a, "k2_kernel")
    sBl, sP, sQ, sS, sW1, sDeg, sPf = 24, 28, 32, 36, 40, 44, 48
    sw, sk, srng, scnt, st0, st1, sg, sdmax, sdmin, sK, sBig, sOne = 52, 53, 54, 55, 56, 57, 58, 59, 60, 62, 64, 66
    sM = 68
    vLane, vT0, vT1, vT2, vT3 = 1, 2, 3, 4, 5
    vI4, vAh, vAl = 6, 8, 10
    vE, vEs = 12, 14
    vIdx = 16
    vSh, vEll, vEe, vDeg, vOut, vOrdL, vHoff = 24, 25, 26, 27, 28, 29, 30
    vQ = 32
    vNum, vDen, vT = 48, 56, 64
    vP = 72
    vZ = 88
    vOld, vNxt, vGo = 120, 121, 122
    nv = 123
    vC = 32
    vPf = 112

    a("s_cmp_ge_u32 s2, 256", "s_cbranch_scc1 K2_END")
    a.stamp_setup(31, 1)
    a("s_load_dwordx16 s[4:19], s[0:1], 0", "s_load_dwordx2 s[20:21], s[0:1], 80")
    a(f"v_lshrrev_b32 v{vT0}, 6, v0", f"v_and_b32 v{vLane}, 63, v0", f"v_readfirstlane_b32 s{sw}, v{vT0}")
    a(f"s_and_b32 s{sk}, s2, 7", f"s_lshr_b32 s{srng}, s2, 3")
    a(f"s_mul_i32 s{st0}, s{srng}, {RNG}", f"s_sub_u32 s{scnt}, {N}, s{st0}", f"s_min_u32 s{scnt}, s{scnt}, {RNG}")
    a(f"s_mul_i32 s{st1}, s{srng}, {BLOB}", f"s_add_u32 s{st1}, s{st1}, {BLOB_OFF}")
    a(f"v_lshlrev_b32 v{vT0}, 4, v{vLane}")
    a(f"v_and_b32 v{vT1}, 3, v{vLane}", f"v_lshlrev_b32 v{vSh}, 4, v{vT1}", f"v_lshrrev_b32 v{vT2}, 5, v{vLane}",
      f"v_lshl_add_u32 v{vIdx+1}, v{vT2}, 6, v{vSh}", f"v_mov_b32 v{vIdx+3}, v{vIdx+1}", f"v_mov_b32 v{vIdx+5}, v{vIdx+1}",
      f"v_mov_b32 v{vIdx+7}, v{vIdx+1}", f"v_lshl_add_u32 v{vHoff}, v{vT2}, 5, 2",
      f"v_and_b32 v{vOrdL}, 28, v{vLane}",
      f"v_mov_b32 v{vE}, 0x3f80", f"v_mov_b32 v{vE+1}, 0", f"v_lshlrev_b64 {vr(vI4,2)}, v{vSh}, {vr(vE,2)}",
      f"v_mov_b32 v{vOld}, -1", f"v_lshlrev_b32 v{vT1}, 3, v{vLane}", f"v_lshlrev_b32 v{vT3}, 7, v{vLane}")
    a(f"s_mov_b32 s{sK}, {NLOG2E}", f"s_mov_b32 s{sBig}, {fbits(2.0**120)}", f"s_mov_b32 s{sOne}, 1.0", f"s_mov_b32 s{sOne+1}, 1.0")
    a(f"s_lshl_b32 s{sg}, s{sw}, 10", f"s_add_u32 s{sdmax}, s{sg}, 16384", f"s_mov_b32 m0, s{sg}")
    a("s_waitcnt lgkmcnt(0)")
    a.srd(sBl, 20, f"s{st1}", BLOB)
    a.vmem(f"buffer_load_dwordx4 v{vT0}, {sr(sBl,4)}, s{sg} offen lds", "b")
    a(f"s_cmp_ge_u32 s{sw}, {BLOB // 1024 - 16}", "s_cbranch_scc1 K2_B1", f"s_mov_b32 m0, s{sdmax}", "s_nop 0")
    a(f"buffer_load_dwordx4 v{vT0}, {sr(sBl,4)}, s{sdmax} offen lds", "K2_B1:")
    a.srd(sW1, 20, CF_OFF, 4096)
    a(f"s_lshl_b32 s{st1}, s{sk}, 9")
    a.vmem(f"buffer_load_dwordx2 {vr(vAh,2)}, v{vT1}, {sr(sW1,4)}, s{st1} offen", "c")
    a.stamp()
    a(f"s_mul_i32 s{st1}, s{sk}, {SS}", f"s_lshl_b32 s{sg}, s{st0}, 7", f"s_add_u32 s{sg}, s{sg}, s{st1}",
      f"s_lshl_b32 s{sdmax}, s{scnt}, 7")
    a.srd(sP, 20, f"s{st1}", N, stride=128)
    a.srd(sPf, 20, f"s{sg}", f"s{sdmax}")
    a(f"s_add_u32 s{sg}, s{sg}, {Q_OFF}")
    a.srd(sQ, 20, f"s{sg}", f"s{sdmax}")
    a(f"s_add_u32 s{sg}, s{sg}, {S_OFF - Q_OFF}")
    a.srd(sS, 20, f"s{sg}", f"s{sdmax}")
    a(f"s_lshl_b32 s{sg}, s{st0}, 2", f"s_add_u32 s{sg}, s{sg}, {DEG_OFF}", f"s_lshl_b32 s{sdmax}, s{scnt}, 2",
      f"s_cmp_eq_u32 s{sk}, 0", f"s_cselect_b32 s{sdmax}, s{sdmax}, 0")
    a.srd(sDeg, 20, f"s{sg}", f"s{sdmax}")
    a(f"s_sub_u32 s{st1}, s{sw}, 10", f"s_lshl_b32 s{st1}, s{st1}, 13", f"s_cmp_lt_u32 s{sw}, 10",
      f"s_cselect_b32 s{sPf+2}, 0, s{sPf+2}" if OPT["pf"] else f"s_mov_b32 s{sPf+2}, 0", f"s_cselect_b32 s{st1}, 0, s{st1}",
      f"s_cmp_eq_u32 s{sw}, 15", "s_cbranch_scc0 K2_PF3")
    a.srd(sPf, 20, W2F_OFF, 262144 if OPT["pfw"] else 0)
    a(f"s_lshl_b32 s{st1}, s{srng}, 13")
    a("K2_PF3:")
    if OPT["pfearly"]:
        if OPT["pfbar"]:
            a("s_barrier")
        a.vmem(f"buffer_load_dword v{vPf}, v{vT3}, {sr(sPf,4)}, s{st1} offen", "pf")
    a.wait(vm="c")
    a("s_barrier")
    a.stamp(5)
    if not OPT["pfearly"]:
        a.vmem(f"buffer_load_dword v{vPf}, v{vT3}, {sr(sPf,4)}, s{st1} offen", "pf")
    a.vm = []
    if STAMPS:
        a("s_mov_b32 s99, 8")
    a(f"v_mov_b32 v{vT0}, {B_FLAG}", f"ds_read_b32 v{vT1}, v{vT0}", "s_waitcnt lgkmcnt(0)",
      f"v_readfirstlane_b32 s{st0}, v{vT1}", f"s_mov_b32 s{sg}, s{sw}", f"s_cmp_lg_u32 s{st0}, 0", "s_cbranch_scc1 K2_SLOW")

    def Z(i):
        return vZ + 16 * ((i >> 1) & 1) + 8 * (i & 1)

    def src_read(i):
        a(f"ds_read_u16 v{vIdx + 2*(i % 4)}, v{vEll} offset:{32*i}")

    def e_read(p):
        a(f"ds_read_u16 v{vE}, v{vEe} offset:{64*p}")

    def gather(i):
        a(f"buffer_load_dwordx4 {vr(vP + 4*(i % 4), 4)}, {vr(vIdx + 2*(i % 4), 2)}, {sr(sP,4)}, 0 idxen offen")

    def m4(i, hf):
        z = Z(i) + 4 * hf
        return f"v_mfma_f32_4x4x4_16b_bf16 {vr(z,4)}, {vr(vI4,2)}, {vr(vP + 4*(i % 4) + 2*hf, 2)}, {vr(z,4)}"

    shift = f"v_lshlrev_b64 {vr(vEs,2)}, v{vSh}, {vr(vE,2)}"

    def mhi(p):
        return f"v_mfma_f32_32x32x8_bf16 {vr(Z(2*p),16)}, {vr(vAh,2)}, {vr(vEs,2)}, {vr(vQ,16)}"

    def mlo(p):
        return f"v_mfma_f32_32x32x8_bf16 {vr(Z(2*p),16)}, {vr(vAl,2)}, {vr(vEs,2)}, {vr(Z(2*p),16)}"

    def finish():
        for r in range(8):
            a(f"v_rcp_f32 v{vT+r}, v{vDen+r}")
        for r in range(0, 8, 2):
            a(f"v_pk_mul_f32 {vr(vNum+r,2)}, {vr(vNum+r,2)}, {vr(vT+r,2)}")
        for r in range(4):
            a(f"v_cvt_pk_bf16_f32 v{vT+r}, v{vNum+2*r}, v{vNum+2*r+1}")
        a(f"buffer_store_dwordx4 {vr(vT,4)}, v{vOld}, {sr(sS,4)}, 0 offen{wt()}")

    if OPT["stag"]:
        a(f"s_lshl_b32 s{st0}, s{sw}, 2", f"s_add_u32 s{st0}, s{st0}, {B_GO}", f"v_mov_b32 v{vGo}, s{st0}",
          f"s_cmp_lt_u32 s{sw}, 4", "s_cbranch_scc1 K2_GO", f"v_subrev_u32 v{vT0}, 16, v{vGo}")
        a("K2_WAITGO:", f"ds_read_b32 v{vT1}, v{vT0}", "s_waitcnt lgkmcnt(0)", f"v_readfirstlane_b32 s{st0}, v{vT1}",
          f"s_cmp_eq_u32 s{st0}, 0", "s_cbranch_scc1 K2_WAITGO", "K2_GO:")
    if OPT["prio"]:
        a("s_setprio 3")
    a("K2_GROUP:")
    a(f"s_lshl_b32 s{st0}, s{sg}, 5", f"s_lshl_b32 s{st1}, s{sg}, 2", f"v_add_u32 v{vT0}, s{st0}, v{vOrdL}", f"v_mov_b32 v{vT2}, s{st1}",
      f"ds_read_b32 v{vEll}, v{vT2} offset:{B_GB}", f"ds_read_b32 v{vT1}, v{vT0} offset:{B_ORD}",
      f"s_mov_b32 s{sP+2}, {N}", "s_waitcnt lgkmcnt(0)")
    a(f"v_add_u32 v{vEll}, v{vEll}, v{vOrdL}", f"v_and_b32 v{vT0}, 0xffff, v{vT1}", f"v_lshrrev_b32 v{vDeg}, 16, v{vT1}")
    for i in range(4):
        src_read(i)
    a(f"v_lshl_add_u32 v{vOut}, v{vT0}, 7, v{vIdx+1}", f"v_add_u32 v{vEe}, v{vEll}, v{vHoff}")
    a(f"buffer_load_dwordx4 {vr(vZ+16,4)}, v{vOut}, {sr(sQ,4)}, 0 offen")
    e_read(0)
    a(f"v_readlane_b32 s{sdmax}, v{vDeg}, 0", f"v_readlane_b32 s{sdmin}, v{vDeg}, 28")
    for i in range(4):
        a(f"s_waitcnt lgkmcnt({4-i})")
        gather(i)
    src_read(4)
    src_read(5)
    a("s_waitcnt lgkmcnt(2)")
    a(shift)
    e_read(1)
    a("s_mov_b64 exec, 1", f"v_mov_b32 v{vT0}, {B_CTR}", f"v_mov_b32 v{vNxt}, 1", f"ds_add_rtn_u32 v{vNxt}, v{vT0}, v{vNxt}",
      "s_mov_b64 exec, -1")
    finish()
    a("s_waitcnt vmcnt(5)")
    if OPT["stag"] == 2:
        a(f"ds_write_b32 v{vGo}, v{vGo}")
    for q in range(4):
        a(f"v_mfma_f32_4x4x4_16b_bf16 {vr(vQ+4*q,4)}, {vr(vI4,2)}, {vr(vZ+16+2*(q&1),2)}, 0")
    a("s_nop 3")
    a(mhi(0), *([] if OPT["nolo"] else [mlo(0)]))
    a("s_nop 9", "s_waitcnt vmcnt(3)")
    if OPT["stag"] == 1:
        a(f"ds_write_b32 v{vGo}, v{vGo}")
    a(m4(0, 0), m4(0, 1), m4(1, 0), m4(1, 1))
    a("s_waitcnt lgkmcnt(0)")
    gather(4)
    gather(5)
    a(shift)
    src_read(6)
    src_read(7)
    e_read(2)
    if OPT["prio"]:
        a(f"s_cmp_lt_u32 s{sg}, 16", "s_cbranch_scc1 K2_PRX", "s_setprio 2", f"s_cmp_lt_u32 s{sg}, 24", "s_cbranch_scc1 K2_PRX",
          "s_setprio 1", f"s_cmp_lt_u32 s{sg}, 32", "s_cbranch_scc1 K2_PRX", "s_setprio 0", "K2_PRX:")
    a("s_nop 1" if OPT["prio"] else "s_nop 3")
    if STAMPS and not OPT["light"]:
        a("s_mov_b32 m0, s99", "s_add_u32 s99, s99, 1")
        a.stamp("m0")

    NP = MAXDEG // 2
    for i in range(MAXDEG):
        z = Z(i)
        p = i >> 1
        a(f"s_cmp_le_u32 s{sdmin}, {i}", f"s_cbranch_scc1 K2_OOL{i}", f"K2_S{i}:")
        ex = [f"v_exp_f32 v{vT+r}, v{z+r}" for r in range(8)]
        num_src = Z(0) if i == 1 else vNum
        if i == 0:
            upd = ["s_nop 0"] + [f"v_pk_add_f32 {vr(vDen+r,2)}, {vr(vT+r,2)}, {sr(sOne,2)}" for r in range(0, 8, 2)]
        else:
            upd = [f"v_pk_fma_f32 {vr(z+r,2)}, {vr(z+r,2)}, {vr(vDen+r,2)}, {vr(num_src+r,2)}" for r in range(0, 8, 2)]
            upd += [f"v_pk_fma_f32 {vr(vNum+r,2)}, {vr(num_src+r,2)}, {vr(vT+r,2)}, {vr(z+r,2)}" for r in range(0, 8, 2)]
            upd += [f"v_pk_fma_f32 {vr(vDen+r,2)}, {vr(vDen+r,2)}, {vr(vT+r,2)}, {vr(vDen+r,2)}" for r in range(0, 8, 2)]
        if (i & 1) == 0:
            if p + 1 < NP:
                a(mhi(p + 1), *ex[0:4], *([] if OPT["nolo"] else [mlo(p + 1)]), *ex[4:8])
            else:
                a(*ex)
            a(*upd)
        else:
            if p + 1 < NP:
                a(f"s_waitcnt vmcnt({3 if p == 0 else 2 if p + 2 < NP else 0})")
                a(m4(2*p+2, 0), ex[0], m4(2*p+2, 1), ex[1], m4(2*p+3, 0), ex[2], m4(2*p+3, 1), ex[3])
            else:
                a(*ex[0:4])
            if p + 2 < NP:
                a("s_waitcnt lgkmcnt(0)")
            if p + 3 < NP:
                if OPT["clip"]:
                    a(f"s_cmp_gt_u32 s{sdmax}, {2*p+6}", f"s_cselect_b32 s{sP+2}, {N}, 0")
                gather(2 * p + 6)
                gather(2 * p + 7)
            a(*ex[4:8])
            if p + 2 < NP:
                a(shift)
            if p + 4 < NP:
                src_read(2 * p + 8)
                src_read(2 * p + 9)
            if p + 3 < NP:
                e_read(p + 3)
            a(*upd)
    a("K2_FIN:")
    a("s_mov_b64 exec, -1")
    if OPT["prio"]:
        a("s_setprio 3")
    a(f"v_pk_add_f32 {vr(vT0,2)}, {vr(vDen,2)}, {vr(vDen+2,2)}", f"v_pk_add_f32 {vr(vT2,2)}, {vr(vDen+4,2)}, {vr(vDen+6,2)}")
    for r in range(0, 8, 4):
        a(f"v_pk_fma_f32 {vr(vT0,2)}, {vr(vNum+r,2)}, 0, {vr(vT0,2)} op_sel_hi:[1,0,1]")
        a(f"v_pk_fma_f32 {vr(vT2,2)}, {vr(vNum+r+2,2)}, 0, {vr(vT2,2)} op_sel_hi:[1,0,1]")
    a(f"v_pk_add_f32 {vr(vT0,2)}, {vr(vT0,2)}, {vr(vT2,2)}", f"v_mov_b32 v{vOld}, v{vOut}",
      f"v_add_f32 v{vT0}, v{vT0}, v{vT1}", f"v_readfirstlane_b32 s{sg}, v{vNxt}", f"v_cmp_ngt_f32 vcc, s{sBig}, v{vT0}")
    a("s_cbranch_vccnz K2_SAFE")
    a("K2_NEXT:")
    if STAMPS and not OPT["light"]:
        a("s_mov_b32 m0, s99", "s_add_u32 s99, s99, 1")
        a.stamp("m0")
        a("s_mov_b32 m0, s99", "s_add_u32 s99, s99, 1", f"v_writelane_b32 v31, s{sdmax}, m0")
    a(f"s_add_u32 s{sg}, s{sg}, 16", f"s_cmp_lt_u32 s{sg}, {NGRP}", "s_cbranch_scc1 K2_GROUP")
    finish()
    a.stamp_dump(sBl, 20, sw, 16)
    a("s_endpgm")

    for i in range(MAXDEG):
        a(f"K2_OOL{i}:")
        if i == 0:
            for r in range(8):
                a(f"v_mov_b32 v{vNum+r}, 0", f"v_mov_b32 v{vDen+r}, 1.0")
        if i == 1:
            for r in range(8):
                a(f"v_mov_b32 v{vNum+r}, v{Z(0)+r}")
        a(f"s_cmp_le_u32 s{sdmax}, {i}", "s_cbranch_scc1 K2_FIN")
        a(f"v_cmpx_lt_u32 vcc, {i}, v{vDeg}", "s_nop 3", f"s_branch K2_S{i}")

    a("K2_SAFE:")
    a("s_waitcnt vmcnt(0) lgkmcnt(0)", f"s_mov_b32 s{st0}, 0", f"s_mov_b32 s{sP+2}, {N}")
    for r in range(8):
        a(f"v_mov_b32 v{vNum+r}, 0")
    a("K2_SAFE_L:")
    a(f"s_cmp_ge_u32 s{st0}, s{sdmax}", "s_cbranch_scc1 K2_SAFE_E")
    a(f"v_cmpx_lt_u32 vcc, s{st0}, v{vDeg}")
    src_read(0)
    e_read(0)
    a("s_waitcnt lgkmcnt(0)")
    gather(0)
    a(shift, f"v_add_u32 v{vEll}, 32, v{vEll}", f"v_add_u32 v{vEe}, 32, v{vEe}", "s_nop 1")
    a(mhi(0), *([] if OPT["nolo"] else [mlo(0)]), "s_nop 9", "s_waitcnt vmcnt(0)", m4(0, 0), m4(0, 1), "s_nop 4")
    for r in range(8):
        a(f"v_exp_f32 v{vT+r}, v{vZ+r}")
    for r in range(0, 8, 2):
        a(f"v_pk_add_f32 {vr(vT+r,2)}, {vr(vT+r,2)}, {sr(sOne,2)}")
    for r in range(8):
        a(f"v_rcp_f32 v{vT+r}, v{vT+r}")
    a("s_nop 0")
    for r in range(0, 8, 2):
        a(f"v_pk_fma_f32 {vr(vNum+r,2)}, {vr(vZ+r,2)}, {vr(vT+r,2)}, {vr(vNum+r,2)}")
    a(f"s_add_u32 s{st0}, s{st0}, 1", "s_branch K2_SAFE_L")
    a("K2_SAFE_E:", "s_mov_b64 exec, -1")
    for r in range(8):
        a(f"v_mov_b32 v{vDen+r}, 1.0")
    a("s_branch K2_NEXT")

    sDst, sSrc, sE = sBl, sPf, sW1
    snode, sbase, sdeg, sbit, ssrc, se, sm = sM, sM + 1, sM + 2, sM + 3, sM + 4, sM + 5, sM + 6
    vc, vq, vacc, vd, vs, ve, voff, vz = 32, 33, 34, 36, 40, 44, 48, 49
    a("K2_SLOW:")
    a.srd(sW1, 12, 512 * 1024, 1024)
    a(f"v_and_b32 v{vT0}, 1, v{vLane}", f"v_lshlrev_b32 v{vT0}, 6, v{vT0}", f"v_and_b32 v{vT1}, 62, v{vLane}",
      f"v_add_u32 v{vT0}, v{vT0}, v{vT1}", f"s_lshl_b32 s{st1}, s{sk}, 7")
    a(f"buffer_load_ushort v{vc}, v{vT0}, {sr(sW1,4)}, s{st1} offen", "s_waitcnt vmcnt(0)",
      f"v_lshlrev_b32 v{vc}, 16, v{vc}", f"v_mul_f32 v{vc}, s{sK}, v{vc}")
    a.srd(sDst, 10, 0, E * 4)
    a.srd(sSrc, 8, 0, E * 4)
    a.srd(sE, 6, 0, E * 2)
    a(f"v_lshlrev_b32 v{vIdx+1}, 1, v{vLane}", f"v_lshlrev_b32 v{vT2}, 4, v{vLane}", f"v_lshlrev_b32 v{vT3}, 3, v{vLane}")
    a("K2_SLOW_N:")
    a(f"s_cmp_ge_u32 s{sg}, s{scnt}", "s_cbranch_scc1 K2_END")
    a(f"s_mul_i32 s{snode}, s{srng}, {RNG}", f"s_add_u32 s{snode}, s{snode}, s{sg}", f"s_lshl_b32 s{st0}, s{sg}, 7",
      f"v_add_u32 v{voff}, s{st0}, v{vIdx+1}", f"buffer_load_ushort v{vq}, v{voff}, {sr(sQ,4)}, 0 offen",
      f"v_mov_b32 v{vacc}, 0", f"s_mov_b32 s{sbase}, 0", f"s_mov_b32 s{sdeg}, 0", "s_waitcnt vmcnt(0)",
      f"v_lshlrev_b32 v{vq}, 16, v{vq}")
    a("K2_SLOW_C:")
    a(f"s_lshl_b32 s{st0}, s{sbase}, 2", f"s_lshl_b32 s{st1}, s{sbase}, 1")
    a(f"buffer_load_dwordx4 {vr(vd,4)}, v{vT2}, {sr(sDst,4)}, s{st0} offen",
      f"buffer_load_dwordx4 {vr(vs,4)}, v{vT2}, {sr(sSrc,4)}, s{st0} offen",
      f"buffer_load_dwordx2 {vr(ve+2,2)}, v{vT3}, {sr(sE,4)}, s{st1} offen", "s_waitcnt vmcnt(0)")
    a(f"v_lshlrev_b32 v{ve}, 16, v{ve+2}", f"v_and_b32 v{ve+1}, 0xffff0000, v{ve+2}",
      f"v_lshlrev_b32 v{ve+2}, 16, v{ve+3}", f"v_and_b32 v{ve+3}, 0xffff0000, v{ve+3}")
    for u in range(4):
        a(f"v_cmp_eq_u32 {sr(sm,2)}, s{snode}, v{vd+u}")
        a(f"K2_SLOW_M{u}:", f"s_cmp_eq_u64 {sr(sm,2)}, 0", f"s_cbranch_scc1 K2_SLOW_X{u}")
        a(f"s_ff1_i32_b64 s{sbit}, {sr(sm,2)}", f"s_bitset0_b64 {sr(sm,2)}, s{sbit}", f"s_add_u32 s{sdeg}, s{sdeg}, 1",
          f"v_readlane_b32 s{ssrc}, v{vs+u}, s{sbit}", f"v_readlane_b32 s{se}, v{ve+u}, s{sbit}", "s_nop 1",
          f"v_mov_b32 v{vIdx}, s{ssrc}", f"buffer_load_ushort v{vz}, {vr(vIdx,2)}, {sr(sP,4)}, 0 idxen offen",
          f"v_fma_f32 v{vT0}, s{se}, v{vc}, v{vq}", "s_waitcnt vmcnt(0)",
          f"v_lshlrev_b32 v{vz}, 16, v{vz}", f"v_add_f32 v{vz}, v{vz}, v{vT0}", f"v_exp_f32 v{vT0}, v{vz}", "s_nop 0",
          f"v_add_f32 v{vT0}, 1.0, v{vT0}", f"v_rcp_f32 v{vT0}, v{vT0}", "s_nop 0",
          f"v_fma_f32 v{vacc}, v{vz}, v{vT0}, v{vacc}", f"s_branch K2_SLOW_M{u}")
        a(f"K2_SLOW_X{u}:")
    a(f"s_add_u32 s{sbase}, s{sbase}, 256", f"s_cmp_lt_u32 s{sbase}, {E}", "s_cbranch_scc1 K2_SLOW_C")
    a(f"v_cvt_pk_bf16_f32 v{vacc}, v{vacc}, v{vacc}", f"v_cvt_f32_u32 v{vT0}, s{sdeg}", f"s_lshl_b32 s{st0}, s{sg}, 2",
      f"v_mov_b32 v{vT1}, s{st0}")
    a(f"buffer_store_short v{vacc}, v{voff}, {sr(sS,4)}, 0 offen", f"buffer_store_dword v{vT0}, v{vT1}, {sr(sDeg,4)}, 0 offen")
    a(f"s_add_u32 s{sg}, s{sg}, 16", "s_waitcnt vmcnt(0)", "s_branch K2_SLOW_N")
    a("K2_END:", "s_endpgm")
    return a.lines, descriptor("k2_kernel", nv, 102 if STAMPS else 96)


K3_LDS = 81920


def k3():
    a = Asm()
    header(a, "k3_kernel")
    sS, sF, sDeg, sB, sO = 24, 28, 32, 36, 40
    sw, stile, scg, st0, st1, sK, sn, sSo = 44, 45, 46, 47, 48, 50, 52, 53
    vLane, vT0, vT1, vT2 = 1, 2, 3, 4
    vDm, vBo, vSt, vB2 = 5, 6, 7, 8
    vAad = 10
    vDg = 12
    vA = 32
    vAcc = 72
    vB = 112
    nv = vB + 128
    a("s_cmp_ge_u32 s2, 256", "s_cbranch_scc1 K3_END")
    a(f"s_lshr_b32 s{st0}, s2, 4", f"s_lshl_b32 s{st0}, s{st0}, 3", f"s_and_b32 s{stile}, s2, 7",
      f"s_add_u32 s{stile}, s{stile}, s{st0}", f"s_cmp_ge_u32 s{stile}, 125", "s_cbranch_scc1 K3_END")
    a.stamp_setup(nv, 2)
    code_prefetch(a, "k3_kernel", "K3_END", 2, 2, vA, "K3")
    a("s_load_dwordx4 s[4:7], s[0:1], 56", "s_load_dwordx2 s[20:21], s[0:1], 80")
    a(f"v_lshrrev_b32 v{vT0}, 6, v0", f"v_and_b32 v{vLane}, 63, v0", f"v_readfirstlane_b32 s{sw}, v{vT0}")
    a(f"s_bfe_u32 s{scg}, s2, 0x10003", f"s_lshl_b32 s{scg}, s{scg}, 2", f"s_add_u32 s{scg}, s{scg}, s{sw}")
    a(f"s_and_b32 s{st0}, s{sw}, 1", f"s_lshl_b32 s{st0}, s{st0}, 2", f"v_lshrrev_b32 v{vT0}, 4, v{vLane}",
      f"v_add_u32 v{vT1}, s{st0}, v{vT0}", f"v_and_b32 v{vT2}, 7, v{vLane}", f"v_xor_b32 v{vT1}, v{vT1}, v{vT2}",
      f"v_lshlrev_b32 v{vT1}, 4, v{vT1}", f"v_lshrrev_b32 v{vT2}, 3, v{vLane}", f"v_lshl_add_u32 v{vDm}, v{vT2}, 7, v{vT1}")
    a(f"v_lshlrev_b32 v{vBo}, 4, v{vLane}")
    a(f"v_and_b32 v{vT1}, 15, v{vLane}", f"v_lshlrev_b32 v{vT2}, 2, v{vT1}", f"v_lshl_add_u32 v{vSt}, v{vT0}, 11, v{vT2}")
    a(f"v_lshrrev_b32 v{vAad}, 1, v{vT1}", f"v_xor_b32 v{vAad}, v{vAad}, v{vT0}", f"v_lshlrev_b32 v{vAad}, 4, v{vAad}",
      f"v_lshl_add_u32 v{vAad}, v{vT1}, 7, v{vAad}", f"v_xor_b32 v{vAad+1}, 64, v{vAad}", f"v_lshlrev_b32 v{vT0}, 4, v{vT0}")
    a(f"s_mul_i32 s{sSo}, s{stile}, 10240")
    a("s_waitcnt lgkmcnt(0)")
    a.srd(sDeg, 20, DEG_OFF, N * 4)
    a.srd(sB, 4, 0, 512)
    a(f"s_mul_i32 s{st0}, s{stile}, 320", f"s_lshl_b32 s{st1}, s{scg}, 6")
    sDo, sBo = 56, 57
    a(f"s_mov_b32 s{sDo}, s{st0}", f"s_mov_b32 s{sBo}, s{st1}", f"v_mov_b32 v{vDg+19}, v{vT0}", f"v_mov_b32 v{vB2}, v{vT2}")

    def bias_loads():
        for rt in range(5):
            a.vmem(f"buffer_load_dwordx4 {vr(vDg+4*rt,4)}, v{vDg+19}, {sr(sDeg,4)}, s{sDo} offen offset:{64*rt}", "deg")
        a.vmem(f"buffer_load_dword v{vB2}, v{vB2}, {sr(sB,4)}, s{sBo} offen", "deg")
    a.srd(sS, 20, S_OFF, 8 * SS)
    a.srd(sF, 20, W2F_OFF, 262144)
    a.srd(sO, 6, 0, N * 512)
    srot, sFo = 54, 55
    a(f"s_bfe_u32 s{srot}, s2, 0x20004" if OPT["rot"] else f"s_mov_b32 s{srot}, 0", f"s_lshl_b32 s{sFo}, s{scg}, 15")

    def load_ops(j):
        ops = [[f"s_add_u32 s{sn}, s{srot}, {j}", f"s_and_b32 s{sn}, s{sn}, 3", f"s_lshl_b32 s{sK}, s{sn}, 13",
                f"s_add_u32 s{sK}, s{sK}, s{sFo}", f"s_mul_i32 s{sn}, s{sn}, {2*SS}", f"s_add_u32 s{sn}, s{sn}, s{sSo}"]]
        for m in range(5):
            ops.append([f"s_add_u32 s{st1}, s{sw}, {4*m}", f"s_cmp_ge_u32 s{st1}, 10", f"s_cselect_b32 s{st0}, {SS - 10240}, 0",
                        f"s_lshl_b32 s{st1}, s{st1}, 10", f"s_add_u32 m0, s{st1}, {j*20480}", f"s_add_u32 s{st0}, s{st0}, s{st1}",
                        f"s_add_u32 s{st0}, s{st0}, s{sn}",
                        ("vm", f"buffer_load_dwordx4 v{vDm}, {sr(sS,4)}, s{st0} offen lds")])
        for f in range(8):
            n = 8 * j + f
            op = [f"s_add_u32 s{sK}, s{sK}, 4096"] if f == 4 else []
            ops.append(op + [("vm", f"buffer_load_dwordx4 {vr(vB+4*n,4)}, v{vBo}, {sr(sF,4)}, s{sK} offen offset:{1024*(f % 4)}")])
        return ops

    def emit(op, j):
        for x in op:
            if isinstance(x, tuple):
                a.vmem(x[1], f"st{j}")
            else:
                a(x)
    for op in load_ops(0):
        emit(op, 0)
    a.stamp()
    for op in load_ops(1):
        emit(op, 1)
    a.stamp()
    def a_reads(s):
        for rt in range(5):
            off = (s >> 1) * 10240 + rt * 2048
            base = vAad + (s & 1)
            if off > 65535:
                base, off = vT0 + (s & 1), off - 40960
            a.lds(f"ds_read_b128 {vr(vA + 20*(s & 1) + 4*rt, 4)}, v{base} offset:{off}", f"a{s}_{rt}")
    a(f"v_add_u32 v{vT0}, 40960, v{vAad}", f"v_add_u32 v{vT1}, 40960, v{vAad+1}")
    def mfma(s, rt, b, areg):
        acc = vAcc + 8 * rt + 4 * b
        c = "0" if s == 0 else vr(acc, 4)
        a(f"v_mfma_f32_16x16x32_bf16 {vr(acc,4)}, {vr(areg, 4)}, {vr(vB + 4*(2*s+b), 4)}, {c}")

    for j in range(3):
        a.wait(vm=f"st{j}")
        a("s_barrier")
        a.stamp()
        a_reads(4 * j)
        pend = load_ops(j + 2) if j + 2 < 4 else []
        for s in range(4 * j, 4 * j + 4):
            if s + 1 < 4 * j + 4:
                a_reads(s + 1)
            for rt in range(5):
                a.wait(lg=f"a{s}_{rt}")
                for b in range(2):
                    mfma(s, rt, b, vA + 20 * (s & 1) + 4 * rt)
                if pend:
                    emit(pend.pop(0), j + 2)
        assert not pend
        if j == 1:
            bias_loads()
    a(f"s_mov_b32 s{sK}, {NLN2}")
    a(f"s_mul_i32 s{st0}, s{stile}, {80*512}", f"s_lshl_b32 s{st1}, s{scg}, 6", f"s_add_u32 s{sSo}, s{st0}, s{st1}")
    a.wait(vm=["st3", "deg"])
    a("s_barrier")
    a.stamp()

    def rt_reads(rt):
        for s in range(12, 16):
            off = (s >> 1) * 10240 + rt * 2048
            base = vAad + (s & 1)
            if off > 65535:
                base, off = vT0 + (s & 1), off - 40960
            a.lds(f"ds_read_b128 {vr(vA + 16*(rt & 1) + 4*(s-12), 4)}, v{base} offset:{off}", f"z{rt}_{s}")

    def out_ops(rt):
        acc = vAcc + 8 * rt
        ops = [f"s_add_u32 s{st0}, s{sSo}, {rt*16*512}"]
        for r in range(4):
            ops += [f"v_mul_f32 v{vT2}, v{vDg+4*rt+r}, v{vB2}", f"v_fma_f32 v{acc+r}, v{acc+r}, s{sK}, v{vT2}",
                    f"v_mul_f32 v{vT2}, v{vDg+4*rt+r}, v{vB2+1}", f"v_fma_f32 v{acc+4+r}, v{acc+4+r}, s{sK}, v{vT2}",
                    f"v_cvt_pk_bf16_f32 v{acc+r}, v{acc+r}, v{acc+4+r}",
                    f"buffer_store_dword v{acc+r}, v{vSt}, {sr(sO,4)}, s{st0} offen offset:{512*r}{' sc1' if OPT['sc3'] else ''}{' nt' if OPT['nto'] else ''}"]
        return ops
    rt_reads(0)
    a(f"v_and_b32 v{vB2+1}, 0xffff0000, v{vB2}", f"v_lshlrev_b32 v{vB2}, 16, v{vB2}")
    pend = []
    for rt in range(5):
        if rt + 1 < 5:
            rt_reads(rt + 1)
        for s in range(12, 16):
            a.wait(lg=f"z{rt}_{s}")
            for b in range(2):
                mfma(s, rt, b, vA + 16 * (rt & 1) + 4 * (s - 12))
                if s >= 13 or b == 1:
                    for _ in range(4):
                        if pend:
                            a(pend.pop(0))
        assert not pend
        pend = out_ops(rt)
        if rt < 4:
            pend = ["s_nop 0"] + pend
    a.stamp()
    a("s_nop 7")
    a(*pend)
    a.stamp_dump(sS, 20, sw, 4)
    a("K3_END:", "s_endpgm")
    return a.lines, descriptor("k3_kernel", nv + 1 if STAMPS else nv, 102 if STAMPS else 64)


def k4():
    a = Asm()
    header(a, "k4_kernel")
    if OPT["probe"]:
        assert STAMPS
        a("s_cmp_lg_u32 s2, 0", "s_cbranch_scc1 K4_END", "s_load_dwordx2 s[20:21], s[0:1], 80",
          "v_mov_b32 v1, 0", "v_mov_b32 v2, -1", "v_mov_b32 v3, 0")
        for k in range(3):
            a(f"ds_write_b64 v1, v[2:3] offset:{8*k}")
        a("s_waitcnt lgkmcnt(0)", "s_barrier")
        a.srd(24, 20, STAMP_OFF, 4 << 20)
        for k, (n, stride) in enumerate(((200, 8 * 128), (4096, 128), (960, 128))):
            for i in range((n + 1023) // 1024):
                a(f"v_add_u32 v4, {1024*i}, v0", f"v_cmp_gt_u32 vcc, {n}, v4", f"v_mul_u32_u24 v4, {stride}, v4",
                  f"s_mov_b32 s3, {k << 20}", "s_and_saveexec_b64 s[10:11], vcc", f"s_cbranch_execz K4_S{k}_{i}",
                  "buffer_load_dwordx2 v[6:7], v4, s[24:27], s3 offen offset:112", "s_waitcnt vmcnt(0)",
                  f"ds_min_u32 v1, v7 offset:{8*k}", f"ds_max_u32 v1, v6 offset:{8*k+4}", f"K4_S{k}_{i}:", "s_mov_b64 exec, -1")
        a("s_waitcnt lgkmcnt(0)", "s_barrier", "ds_read_b128 v[8:11], v1", "ds_read_b64 v[12:13], v1 offset:16", "s_waitcnt lgkmcnt(0)")
        hi, lo = {1: (9, 8), 2: (11, 10), 3: (13, 12), 4: (13, 8), 5: (10, 9), 6: (12, 11), 7: (8, 8)}[OPT["probe"]]
        a(f"v_sub_u32 v14, v{hi}, v{lo}", "v_min_u32 v14, 10000, v14", "v_mul_u32_u24 v14, 10, v14", "s_nop 0", "v_readfirstlane_b32 s12, v14",
          "s_memrealtime s[14:15]", "s_waitcnt lgkmcnt(0)", "K4_L:", "s_memrealtime s[16:17]", "s_waitcnt lgkmcnt(0)",
          "s_sub_u32 s16, s16, s14", "s_cmp_lt_u32 s16, s12", "s_cbranch_scc1 K4_L")
    a("K4_END:", "s_endpgm")
    return a.lines, descriptor("k4_kernel", 16, 32)


def main(path):
    head = [
        "; Edge-featured MPNN layer: out = segment_sum(silu([x[src], x[dst], e] @ w1 + b1) @ w2 + b2, dst)",
        "; k1: P = x@w1[0:256], Q = x@w1[256:512] + b1 (scaled by -log2e), edge partition by dst range, w2 re-layout",
        "; k2: per 64-channel slice, S[n] = sum over in-edges of z/(1+2^z), z = P[src] + Q[n] + e*c",
        "; k3: out = -ln2 * (S @ w2) + deg * b2",
        "; kernarg: x, e_attr, src, dst, w1, b1, w2, b2, out, debug, ws (8 bytes each)",
        f"; @launch kernel=k1_kernel grid=(256,1,1) block=(512,1,1) lds={K1_LDS}",
        f"; @launch kernel=k2_kernel grid=(256,1,1) block=(1024,1,1) lds={K2_LDS}",
        f"; @launch kernel=k3_kernel grid=(256,1,1) block=(256,1,1) lds={K3_LDS}",
        '.amdgcn_target "amdgcn-amd-amdhsa--gfx950"',
        ".text",
    ]
    for i in range(3):
        if OPT["rep"] >> i & 1:
            j = [n for n, l in enumerate(head) if f"kernel=k{i+1}_kernel" in l][0]
            head.insert(j, head[j])
    if OPT["empty"] or OPT["probe"]:
        head.insert(8, "; @launch kernel=k4_kernel grid=(1,1,1) block=(1024,1,1) lds=64")
    body, desc = [], []
    for f in (k1, k2, k3) + ((k4,) if OPT["empty"] or OPT["probe"] else ()):
        b, d = f()
        body += b
        desc += d
    out = head + body + ['.section .rodata,"a"'] + desc
    open(path, "w").write("\n".join(out) + "\n")


if __name__ == "__main__":
    if "--stamps" in sys.argv:
        STAMPS = True
        sys.argv.remove("--stamps")
    for arg in [x for x in sys.argv[1:] if "=" in x]:
        key, val = arg.split("=")
        assert key in OPT, key
        OPT[key] = int(val)
        sys.argv.remove(arg)
    main(sys.argv[1] if len(sys.argv) > 1 else "standalone__edge_featured_mpnn_mpnn__graph.s")
```

```python
import struct
import sys

N, E, D, H = 10000, 160000, 256, 512
TILE1, NT1 = 192, 53
NR = TILE1 * NT1
SS = NR * 128
P_OFF, Q_OFF, S_OFF = 0, 8 * SS, 16 * SS
RNG = 313
NCHUNK, CHUNK, CAP = 32, 5000, 224
R4BLK, R2BLK = NCHUNK * CAP * 4, NCHUNK * CAP * 2
R4_OFF = 24 * SS
R2_OFF = R4_OFF + 32 * R4BLK
NSLOT = 768
B_ORD = NSLOT * 32
B_GB = B_ORD + 1280
B_FLAG = B_GB + 160
B_CTR = B_FLAG + 4
B_GO = B_CTR + 4
BLOB = 26 * 1024
BLOB_OFF = R2_OFF + 32 * R2BLK
DEG_OFF = BLOB_OFF + 32 * BLOB
W2F_OFF = (DEG_OFF + NR * 4 + 1023) // 1024 * 1024
CF_OFF = W2F_OFF + 262144
WS_END = CF_OFF + 4096
MAXDEG = 48
NGRP = 40


def fbits(x):
    return struct.unpack("<I", struct.pack("<f", x))[0]


NLOG2E = fbits(-1.4426950408889634)
NLN2 = fbits(-0.6931471805599453)

assert all((d * 13401) >> 22 == d // RNG for d in range(10016))
assert all((q * 2341) >> 17 == q // 56 for q in range(2048))
assert all((q * 2341) >> 16 == q // 28 for q in range(1024))
assert all((n * 205) >> 11 == n // 10 for n in range(80))


STAMPS = False
OPT = dict(sc1=1, sc3=1, prio=1, empty=0, ipf=1, rot=1, pf=0, light=0, fine=0, la=6, pf0=2, x0pos=0, xrot=0, x1early=0, xspread=1, helper=0, ntx=0, ntw=0, nte=0, blobsc=1, xtouch=7, nto=0, ntw2=0, nolo=1, usem4=1, dup=0, rep=0, clip=1, pfearly=1, pfbar=0, k3opt=1, stag=1, pollf=0, probe=0, pk=0, pidx=0, pw0=0, pwn=0, pstride=1, pfq=0, pfw=1)
STAMP_OFF = 48 << 20


class Asm:
    def stamp_setup(self, vreg, kidx):
        self.st_v, self.st_n, self.st_k = vreg, 0, kidx
        if STAMPS:
            self(f"v_mov_b32 v{vreg}, 0", "s_memrealtime s[100:101]", "s_waitcnt lgkmcnt(0)", f"v_writelane_b32 v{vreg}, s100, 29")
            self.stamp()

    def stamp(self, idx=None):
        if STAMPS and not (OPT["light"] and idx != 27 and self.st_n > 0):
            if idx is None:
                idx = self.st_n
                self.st_n += 1
            self("s_waitcnt lgkmcnt(0)", "s_memtime s[100:101]", "s_waitcnt lgkmcnt(0)", f"v_writelane_b32 v{self.st_v}, s100, {idx}")
            self.lg = []

    def stamp_dump(self, srd, wsreg, swave, nwaves, tmp=2):
        if not STAMPS:
            return
        self("s_waitcnt vmcnt(0)")
        self.stamp(27)
        self("s_memrealtime s[100:101]", "s_waitcnt lgkmcnt(0)", f"v_writelane_b32 v{self.st_v}, s100, 28")
        self("s_getreg_b32 s3, hwreg(HW_REG_HW_ID)", f"v_writelane_b32 v{self.st_v}, s3, 30")
        self("s_getreg_b32 s3, hwreg(HW_REG_XCC_ID)", f"v_writelane_b32 v{self.st_v}, s3, 31")
        self.srd(srd, wsreg, STAMP_OFF + (self.st_k << 20), 1 << 20)
        self(f"s_mul_i32 s3, s2, {nwaves}", f"s_add_u32 s3, s3, s{swave}", "s_lshl_b32 s3, s3, 7", "s_mov_b64 exec, -1",
             f"v_and_b32 v{tmp}, 63, v0", f"v_lshlrev_b32 v{tmp}, 2, v{tmp}", "s_mov_b32 exec_hi, 0",
             f"buffer_store_dword v{self.st_v}, v{tmp}, s[{srd}:{srd+3}], s3 offen")

    def __init__(self):
        self.lines = []
        self.vm = []
        self.lg = []

    def __call__(self, *ls):
        for l in ls:
            self.lines.append(l if l.endswith(":") else "    " + l)

    def vmem(self, line, tag=None):
        self(line)
        self.vm.append(tag)

    def lds(self, line, tag=None):
        self(line)
        self.lg.append(tag)

    @staticmethod
    def _need(q, tags):
        last = -1
        for i, t in enumerate(q):
            if t in tags:
                last = i
        return None if last < 0 else len(q) - 1 - last

    def wait(self, vm=None, lg=None):
        parts = []
        if vm is not None:
            n = 0 if vm == "all" else self._need(self.vm, vm if isinstance(vm, (list, tuple, set)) else [vm])
            if n is not None:
                n = min(n, 63)
                parts.append(f"vmcnt({n})")
                self.vm = self.vm[len(self.vm) - n:] if n else []
        if lg is not None:
            n = 0 if lg == "all" else self._need(self.lg, lg if isinstance(lg, (list, tuple, set)) else [lg])
            if n is not None:
                n = min(n, 15)
                parts.append(f"lgkmcnt({n})")
                self.lg = self.lg[len(self.lg) - n:] if n else []
        if parts:
            self("s_waitcnt " + " ".join(parts))

    def srd(self, s, base, off, size, stride=0):
        if off == 0:
            self(f"s_mov_b32 s{s}, s{base}", f"s_and_b32 s{s+1}, s{base+1}, 0xffff")
        else:
            self(f"s_add_u32 s{s}, s{base}, {off}", f"s_addc_u32 s{s+1}, s{base+1}, 0",
                 f"s_and_b32 s{s+1}, s{s+1}, 0xffff")
        if stride:
            self(f"s_or_b32 s{s+1}, s{s+1}, {stride << 16}")
        self(f"s_mov_b32 s{s+2}, {size}", f"s_mov_b32 s{s+3}, 0x20000")


POLLF = ["sc1", "sc0 sc1", "sc1 nt", "sc0 sc1 nt"]


def wt():
    return " sc1" if OPT["sc1"] else ""


def code_prefetch(a, first, last, wshift, vtmp, vsink, tag):
    if not OPT["ipf"]:
        return
    a(f"s_getpc_b64 s[22:23]", f"{tag}_PC:", f"s_sub_u32 s22, s22, {tag}_PC-{first}", "s_subb_u32 s23, s23, 0",
      "s_lshr_b32 s3, s2, 3", f"s_lshl_b32 s3, s3, {wshift + 10}", f"v_lshlrev_b32 v{vtmp}, 4, v0", f"v_add_u32 v{vtmp}, s3, v{vtmp}",
      f"v_cmp_gt_u32 vcc, {last}-{first}-16, v{vtmp}", "s_and_saveexec_b64 s[4:5], vcc", f"s_cbranch_execz {tag}_PCX",
      f"global_load_dwordx4 {vr(vsink,4)}, v{vtmp}, s[22:23]", f"{tag}_PCX:", "s_mov_b64 exec, -1")


def vr(a, n=1):
    return f"v{a}" if n == 1 else f"v[{a}:{a+n-1}]"


def sr(a, n=1):
    return f"s{a}" if n == 1 else f"s[{a}:{a+n-1}]"


def header(a, name):
    a.lines += [f".globl {name}", ".p2align 8", f".type {name},@function", f"{name}:"]


def descriptor(name, nv, ns):
    acc = (nv + 3) // 4 * 4
    return [".p2align 6", f".amdhsa_kernel {name}", f"  .amdhsa_next_free_vgpr {nv}",
            f"  .amdhsa_next_free_sgpr {ns}", f"  .amdhsa_accum_offset {acc}",
            "  .amdhsa_group_segment_fixed_size 0", "  .amdhsa_kernarg_size 88",
            "  .amdhsa_user_sgpr_count 2", "  .amdhsa_user_sgpr_kernarg_segment_ptr 1",
            "  .amdhsa_system_sgpr_workgroup_id_x 1", "  .amdhsa_float_denorm_mode_32 3",
            ".end_amdhsa_kernel"]


K1_REG = 40960
K1_LDS = 4 * K1_REG
K1_CNT = 0
K1_I16 = 256
K1_I32 = K1_I16 + 32 * CAP * 2
K1_C2 = 44 * 1024
K1_H2 = K1_C2 + 4 + 1280
K1_NB = K1_H2 + 260
K1_BL = 47 * 1024
assert K1_I32 + 32 * CAP * 4 <= K1_C2 and K1_NB + 1280 <= K1_BL


def k1():
    a = Asm()
    header(a, "k1_kernel")
    sX, sW, sO, sB = 24, 28, 32, 36
    sw, stile, su, st0, st1, sWB, sXo, sOo, sK, sMask, sRB, sq, sWo, sWn, sWc = 56, 57, 58, 59, 60, 61, 62, 63, 64, 66, 67, 68, 69, 70, 71
    vLane, vT0, vT1, vT2 = 1, 2, 3, 4
    vAad = 6
    vTr = 14
    vXd = 16
    vWd, vSt = 20, 21
    vBias = 22
    vA = 24
    vAcc = 40
    vW = 104
    vWx = vW + 128
    nv = vWx + 3

    a("s_cmp_ge_u32 s2, 256", "s_cbranch_scc1 K1_END")
    a.stamp_setup(5, 0)
    code_prefetch(a, "k1_kernel", "K3_END" if OPT["ipf"] == 1 else "K1_END", 3, 2, vW + 124, "K1")
    a("s_load_dwordx16 s[4:19], s[0:1], 0", "s_load_dwordx2 s[20:21], s[0:1], 80", "s_load_dwordx2 s[52:53], s[0:1], 72")
    a(f"v_lshrrev_b32 v{vT0}, 6, v0", f"v_and_b32 v{vLane}, 63, v0", f"v_readfirstlane_b32 s{sw}, v{vT0}")
    a(f"s_lshr_b32 s{sq}, s2, 3", f"s_cmp_lt_u32 s{sq}, 4", "s_cbranch_scc1 K1_SORT")
    a(f"s_cmp_ge_u32 s{sw}, 4", "s_cbranch_scc1 K1_END", f"s_sub_u32 s{sq}, s{sq}, 4")
    a(f"s_and_b32 s{su}, s{sq}, 3", f"s_lshl_b32 s{su}, s{su}, 2", f"s_lshr_b32 s{sq}, s{sq}, 2",
      f"s_lshl_b32 s{st0}, s{sq}, 3", f"s_and_b32 s{stile}, s2, 7", f"s_add_u32 s{stile}, s{stile}, s{st0}",
      f"s_add_u32 s{su}, s{su}, s{sw}", f"s_cmp_ge_u32 s{stile}, {NT1}", "s_cbranch_scc1 K1_PREP")

    a(f"s_mul_i32 s{sRB}, s{sw}, {K1_REG}", f"s_add_u32 s{sWB}, s{sRB}, 8192")
    a(f"s_mov_b32 s{sK}, {NLOG2E}", f"s_mov_b32 s{sK+1}, {NLOG2E}")
    a(f"s_lshl_b32 s{sq}, s{sq}, 2" if OPT["rot"] else f"s_mov_b32 s{sq}, 0")
    a(f"v_lshrrev_b32 v{vT0}, 5, v{vLane}", f"s_lshl_b32 s{st0}, s{sw}, 3", f"v_add_u32 v{vT0}, s{st0}, v{vT0}",
      f"v_and_b32 v{vT1}, 31, v{vLane}")
    for m in range(4):
        a(f"v_add_u32 v{vT2}, {2*m}, v{vT0}", f"v_and_b32 v{vXd+m}, 15, v{vT2}", f"v_xor_b32 v{vXd+m}, v{vXd+m}, v{vT1}",
          f"v_add_u32 v{vXd+m}, s{sq}, v{vXd+m}", f"v_and_b32 v{vXd+m}, 31, v{vXd+m}",
          f"v_lshlrev_b32 v{vXd+m}, 4, v{vXd+m}", f"v_lshl_add_u32 v{vXd+m}, v{vT0}, 9, v{vXd+m}")
    a(f"s_mul_i32 s{sXo}, s{stile}, {TILE1*512}")
    sJ = 40
    a(f"s_lshr_b32 s{sJ}, s{su}, 2" if OPT["xrot"] else f"s_mov_b32 s{sJ}, 0")
    for j in range(1, TILE1 // 32):
        a(f"s_add_u32 s{sJ+j}, s{sJ+j-1}, 1", f"s_cmp_eq_u32 s{sJ+j}, {TILE1 // 32}", f"s_cselect_b32 s{sJ+j}, 0, s{sJ+j}")
    a(f"v_lshrrev_b32 v{vT0}, 3, v{vLane}", f"v_and_b32 v{vT1}, 7, v{vLane}", f"v_and_b32 v{vT2}, 16, v{vLane}",
      f"v_lshrrev_b32 v{vT2}, 2, v{vT2}", f"v_xor_b32 v{vT1}, v{vT1}, v{vT2}", f"v_lshlrev_b32 v{vT1}, 4, v{vT1}",
      f"v_lshl_add_u32 v{vWd}, v{vT0}, 10, v{vT1}")
    for i in range(1, 4):
        a(f"v_add_u32 v{vWx+i-1}, {7168*i}, v{vWd}")
    a(f"s_lshr_b32 s{st0}, s{su}, 3", f"s_lshl_b32 s{st0}, s{st0}, 18", f"s_and_b32 s{sMask}, s{su}, 7",
      f"s_lshl_b32 s{sMask}, s{sMask}, 7", f"s_add_u32 s{sWo}, s{st0}, s{sMask}", f"s_lshl_b32 s{sWn}, s{sq}, 13")
    a(f"v_and_b32 v{vT0}, 31, v{vLane}", f"v_lshrrev_b32 v{vT1}, 3, v{vT0}", f"v_mul_u32_u24 v{vAad}, {K1_REG}, v{vT1}",
      f"v_and_b32 v{vT1}, 7, v{vT0}", f"v_lshl_add_u32 v{vAad}, v{vT1}, 9, v{vAad}",
      f"v_lshrrev_b32 v{vT1}, 5, v{vLane}", f"v_and_b32 v{vT2}, 15, v{vLane}", f"v_xor_b32 v{vT2}, v{vT2}, v{vT1}",
      f"v_lshl_add_u32 v{vAad}, v{vT2}, 4, v{vAad}")
    for s in range(1, 8):
        a(f"v_xor_b32 v{vAad+s}, {32*s}, v{vAad}")
    a(f"v_lshlrev_b32 v{vSt}, 9, v{vT1}", f"v_lshl_add_u32 v{vSt}, v{vT0}, 2, v{vSt}")
    a(f"v_lshlrev_b32 v{vTr}, 10, v{vT1}", f"v_bfe_u32 v{vT2}, v{vLane}, 2, 2", f"v_lshl_add_u32 v{vTr}, v{vT2}, 7, v{vTr}",
      f"v_bfe_u32 v{vT2}, v{vLane}, 3, 1", f"v_lshl_add_u32 v{vTr}, v{vT2}, 6, v{vTr}",
      f"v_bfe_u32 v{vT2}, v{vLane}, 4, 1", f"v_lshl_add_u32 v{vTr}, v{vT2}, 5, v{vTr}",
      f"v_and_b32 v{vT2}, 3, v{vLane}", f"v_lshl_add_u32 v{vTr}, v{vT2}, 3, v{vTr}",
      f"v_add_u32 v{vTr}, s{sWB}, v{vTr}", f"v_xor_b32 v{vTr+1}, 64, v{vTr}", f"v_lshlrev_b32 v{vT0}, 1, v{vT0}")
    a(f"s_mul_i32 s{sOo}, s{su}, {SS}", f"s_mul_i32 s{st0}, s{stile}, {TILE1*128}", f"s_add_u32 s{sOo}, s{sOo}, s{st0}")
    a("s_waitcnt lgkmcnt(0)")
    a.srd(sX, 4, 0, N * 512)
    a.srd(sW, 12, 0, 513 * 1024)

    def x_dma(j):
        a(f"s_add_u32 m0, s{sRB}, {j*4096}", f"s_lshl_b32 s{st0}, s{sJ+j}, 14", f"s_add_u32 s{st0}, s{st0}, s{sXo}")
        for m in range(4):
            a.vmem(f"buffer_load_dwordx4 v{vXd+m}, {sr(sX,4)}, s{st0} offen offset:{1024*m}{' nt' if OPT['ntx'] else ''} lds", f"x{j}")

    def w_dma(s):
        if s % 2 == 0:
            a(f"s_add_u32 m0, s{sWB}, {s*2048}", f"s_add_u32 s{sWc}, s{sWo}, s{sWn}")
        elif OPT["x0pos"] == s:
            a(f"s_add_u32 m0, s{sWB}, {(s-1)*2048}", "s_nop 0")
        for i in (2 * (s % 2), 2 * (s % 2) + 1):
            reg = vWd if i == 0 else vWx + i - 1
            a.vmem(f"buffer_load_dwordx4 v{reg}, {sr(sW,4)}, s{sWc} offen offset:{1024*i}{' nt' if OPT['ntw'] else ''} lds", f"w{s}")
        if s % 2 == 1:
            a(f"s_add_u32 s{sWn}, s{sWn}, 32768", f"s_and_b32 s{sWn}, s{sWn}, 0x3ffff")

    def x_touch():
        a(f"s_lshr_b32 s{st0}, s{su}, 2", f"s_mul_i32 s{st0}, s{st0}, {TILE1*128}", f"s_mul_i32 s{st1}, s{sw}, {TILE1*32}",
          f"s_add_u32 s{st0}, s{st0}, s{st1}", f"s_add_u32 s{st0}, s{st0}, s{sXo}", f"v_lshlrev_b32 v{vT1}, 7, v{vLane}",
          f"s_mov_b32 exec_hi, {(1 << (TILE1 // 4 - 32)) - 1}")
        a.vmem(f"buffer_load_dword v{vT2}, v{vT1}, {sr(sX,4)}, s{st0} offen{' nt' if OPT['ntx'] else ''}", "touch")
        a("s_mov_b32 exec_hi, -1")

    LA = OPT["la"]
    a.stamp()
    if OPT["xtouch"] == 1:
        x_touch()
    for s in range(LA):
        if s == OPT["x0pos"]:
            x_dma(0)
        w_dma(s)
        if OPT["xtouch"] == 2 + s:
            x_touch()
    if OPT["x1early"]:
        x_dma(1)
    a.srd(sO, 20, 0, 16 * SS)
    if OPT["dup"]:
        a.srd(48, 20, 64 << 20, 16 * SS)
    a.srd(sB, 14, 0, 1024)
    a(f"s_cmp_ge_u32 s{su}, 8", f"s_cselect_b32 s{sB+2}, s{sB+2}, 0")
    a.stamp()

    def wfrag(s, b):
        return vW + (s * 2 + b) * 4

    def a_read(j, s):
        a.lds(f"ds_read_b128 {vr(vA + 4*((16*j+s) % 4), 4)}, v{vAad + (s & 7)} offset:{4096*j + 256*(s >> 3)}", f"a{j}_{s}")

    def w_read(s):
        a.wait(vm=f"w{s}")
        for b in range(2):
            for q in range(2):
                a.lds(f"ds_read_b64_tr_b16 {vr(wfrag(s, b) + 2*q, 2)}, v{vTr+b} offset:{s*2048 + q*512}", f"t{s}")

    def mfma(j, s, b):
        acc = vAcc + 32 * (j & 1) + 16 * b
        c = "0" if s == 0 else vr(acc, 16)
        a(f"v_mfma_f32_32x32x16_bf16 {vr(acc,16)}, {vr(vA + 4*((16*j+s) % 4), 4)}, {vr(wfrag(s, b), 4)}, {c}")

    def epilogue_ops(j):
        acc = vAcc + 32 * (j & 1)
        ops = [("s", f"s_lshl_b32 s{st1}, s{sJ+j}, 12"), ("s", f"s_add_u32 s{st1}, s{st1}, s{sOo}")]
        for r in range(0, 16, 2):
            for rr in (r, r + 1):
                ops.append(("v", f"v_fma_f32 v{acc+rr}, v{acc+rr}, s{sK}, v{vBias}"))
                ops.append(("v", f"v_fma_f32 v{acc+16+rr}, v{acc+16+rr}, s{sK}, v{vBias+1}"))
            for rr in (r, r + 1):
                ops.append(("v", f"v_cvt_pk_bf16_f32 v{acc+rr}, v{acc+rr}, v{acc+16+rr}"))
            for rr in (r, r + 1):
                ops.append(("m", f"buffer_store_dword v{acc+rr}, v{vSt}, {sr(sO,4)}, s{st1} offen offset:{(8*(rr>>2) + (rr&3))*128}{wt()}"))
        return ops

    def emit_op(op):
        if op[0] == "m":
            a.vmem(op[1], "st")
            if OPT["dup"]:
                a.vmem(op[1].replace(sr(sO, 4), sr(48, 4)), "st")
        else:
            a(op[1])

    NJ = TILE1 // 32
    a.wait(vm="x0")
    a("s_barrier")
    a.stamp()
    PF0 = OPT["pf0"]
    for s in range(PF0):
        w_read(s)
        a_read(0, s)
    for s in range(16):
        if s + PF0 < 16:
            w_read(s + PF0)
            a_read(0, s + PF0)
        a.wait(lg=[f"t{s}", f"a0_{s}"])
        mfma(0, s, 0)
        if s + LA < 16:
            w_dma(s + LA)
        elif s + LA == 16:
            if not OPT["x1early"]:
                x_dma(1)
            a.vmem(f"buffer_load_ushort v{vBias}, v{vT0}, {sr(sB,4)}, s{sMask} offen", "x1")
            a.vmem(f"buffer_load_ushort v{vBias+1}, v{vT0}, {sr(sB,4)}, s{sMask} offen offset:64", "x1")
        elif s + LA - 15 < (3 if OPT["xspread"] else NJ):
            x_dma(s + LA - 15)
        mfma(0, s, 1)
        if OPT["fine"] and s % 2 == 1 and s < 15:
            a.stamp()
    PFA = 3
    a.stamp()
    a.wait(vm="x1")
    a("s_barrier")
    for s in range(PFA):
        a_read(1, s)
    a(f"v_lshlrev_b32 v{vBias}, 16, v{vBias}", f"v_lshlrev_b32 v{vBias+1}, 16, v{vBias+1}",
      f"v_mul_f32 v{vBias}, s{sK}, v{vBias}", f"v_mul_f32 v{vBias+1}, s{sK}, v{vBias+1}")
    a.stamp()
    for j in range(1, NJ):
        ops = epilogue_ops(j - 1)
        for s in range(16):
            if s + PFA == 16 and j < NJ - 1:
                a.wait(vm=f"x{j+1}")
                a("s_barrier")
            a.wait(lg=f"a{j}_{s}")
            mfma(j, s, 0)
            if OPT["xspread"] and s == 1 and j + 2 < NJ:
                x_dma(j + 2)
            if s + PFA < 16:
                a_read(j, s + PFA)
            elif j < NJ - 1:
                a_read(j + 1, s + PFA - 16)
            if s >= 3:
                for _ in range(3 if s == 3 else 2):
                    if ops:
                        emit_op(ops.pop(0))
            mfma(j, s, 1)
            if s >= 3:
                for _ in range(3):
                    if ops:
                        emit_op(ops.pop(0))
        assert not ops
        a.stamp()
    a("s_nop 15")
    for op in epilogue_ops(NJ - 1):
        emit_op(op)
    a.stamp_dump(sX, 20, sw, 8)
    a("s_endpgm")

    a("K1_PREP:")
    a.vm, a.lg = [], []
    a(f"s_cmp_ge_u32 s{stile}, {NT1 + 2}", "s_cbranch_scc1 K1_CPREP")
    sW2, sF = sX, sW
    vL = vW
    vOut = vW + 32
    a(f"s_sub_u32 s{st0}, s{stile}, {NT1}", f"s_lshl_b32 s{st0}, s{st0}, 4", f"s_add_u32 s{su}, s{su}, s{st0}")
    a(f"v_and_b32 v{vT0}, 15, v{vLane}", f"v_lshrrev_b32 v{vT1}, 4, v{vLane}", f"v_lshlrev_b32 v{vT0}, 2, v{vT0}",
      f"v_lshl_add_u32 v{vWd}, v{vT1}, 11, v{vT0}", f"v_lshlrev_b32 v{vSt}, 4, v{vLane}")
    a(f"s_lshr_b32 s{st0}, s{su}, 2", f"s_lshl_b32 s{st0}, s{st0}, 6", f"s_and_b32 s{st1}, s{su}, 3",
      f"s_lshl_b32 s{st1}, s{st1}, 16", f"s_add_u32 s{sXo}, s{st0}, s{st1}", f"s_lshl_b32 s{sOo}, s{su}, 13")
    a("s_waitcnt lgkmcnt(0)")
    a.srd(sW2, 16, 0, 512 * 512)
    a.srd(sF, 20, W2F_OFF, 262144)
    for s in range(4):
        for i in range(8):
            row = (s >> 1) * 64 + 16 * (s & 1) + (i >> 1) + 32 * (i & 1)
            a(f"s_add_u32 s{st0}, s{sXo}, {row*512}")
            a.vmem(f"buffer_load_dword v{vL + 8*s + i}, v{vWd}, {sr(sW2,4)}, s{st0} offen{' nt' if OPT['ntw2'] else ''}", f"l{s}")
    a(f"s_mov_b32 s{sK}, 0x05040100", f"s_mov_b32 s{sK+1}, 0x07060302")
    for s in range(4):
        a.wait(vm=f"l{s}")
        for b in range(2):
            o = vOut + 8 * s + 4 * b
            for m in range(4):
                a(f"v_perm_b32 v{o+m}, v{vL + 8*s + 2*m + 1}, v{vL + 8*s + 2*m}, s{sK+b}")
            a(f"s_add_u32 s{st0}, s{sOo}, {(2*s+b)*1024}")
            a.vmem(f"buffer_store_dwordx4 {vr(o,4)}, v{vSt}, {sr(sF,4)}, s{st0} offen{wt()}")
    a("s_endpgm")

    a("K1_CPREP:")
    a(f"s_cmp_ge_u32 s{su}, 8", "s_cbranch_scc1 K1_END")
    a(f"v_and_b32 v{vT1}, 1, v{vLane}", f"v_lshlrev_b32 v{vT1}, 6, v{vT1}",
      f"v_bfe_u32 v{vT2}, v{vLane}, 2, 1", f"v_lshl_add_u32 v{vT1}, v{vT2}, 5, v{vT1}",
      f"v_bfe_u32 v{vT2}, v{vLane}, 3, 1", f"v_lshl_add_u32 v{vT1}, v{vT2}, 2, v{vT1}",
      f"v_bfe_u32 v{vT2}, v{vLane}, 1, 1", f"v_lshl_add_u32 v{vT1}, v{vT2}, 1, v{vT1}",
      f"v_bfe_u32 v{vT0}, v{vLane}, 4, 1", f"v_lshrrev_b32 v{vT2}, 5, v{vLane}", f"v_cmp_eq_u32 vcc, v{vT0}, v{vT2}",
      f"v_lshlrev_b32 v{vT0}, 3, v{vLane}", f"s_lshl_b32 s{st0}, s{su}, 7", f"s_lshl_b32 s{st1}, s{su}, 9",
      f"s_mov_b32 s{sK}, {NLOG2E}", "s_waitcnt lgkmcnt(0)")
    a.srd(sX, 12, 512 * 1024, 1024)
    a.srd(sW, 20, CF_OFF, 4096)
    for i in range(4):
        a(f"buffer_load_ushort v{8+i}, v{vT1}, {sr(sX,4)}, s{st0} offen offset:{8*i}")
    a("s_waitcnt vmcnt(0)")
    for i in range(4):
        a(f"v_lshlrev_b32 v{8+i}, 16, v{8+i}", f"v_mul_f32 v{8+i}, s{sK}, v{8+i}")
    a("v_cvt_pk_bf16_f32 v12, v8, v9", "v_cvt_pk_bf16_f32 v13, v10, v11", "v_cndmask_b32 v12, 0, v12, vcc", "v_cndmask_b32 v13, 0, v13, vcc",
      f"buffer_store_dwordx2 v[12:13], v{vT0}, {sr(sW,4)}, s{st1} offen{wt()}", "s_endpgm")

    a("K1_SORT:")
    a.vm, a.lg = [], []
    nt = " nt" if OPT["nte"] else ""
    sDst, sSrc, sE, sR4, sR2, sDb, sBl, sDg = 24, 28, 32, 36, 40, 44, 24, 28
    sc = su
    vDst, vSrc, vEe, vSl, vRg, vRd, vCn, vRo = 8, 20, 32, 40, 56, 72, 96, 100
    vOne, vBig, vO16, vO8 = 6, 7, 108, 109
    a(f"s_mov_b32 s{sc}, s2")
    a(f"v_lshlrev_b32 v{vO16}, 4, v0", f"v_lshlrev_b32 v{vO8}, 3, v0")
    a(f"s_mul_i32 s{st0}, s{sc}, {CHUNK*4}", f"s_mul_i32 s{st1}, s{sc}, {CHUNK*2}")
    for r in range(4):
        a(f"v_mov_b32 v{vRd+r}, 0", f"v_mov_b32 v{vRd+4+r}, 0xffff")
    for i in range(2):
        a(f"ds_write_b128 v{vO16}, {vr(vRd,4)} offset:{8192*i}")
    a(f"ds_write_b64 v{vO8}, {vr(vRd,2)} offset:{K1_C2}")
    a("s_waitcnt lgkmcnt(0)")
    a.srd(sDst, 10, f"s{st0}", CHUNK * 4)
    for i in range(3):
        a(f"s_mov_b32 s{sXo}, {8192*i}")
        a.vmem(f"buffer_load_dwordx4 {vr(vDst+4*i,4)}, v{vO16}, {sr(sDst,4)}, s{sXo} offen{nt}", f"d{i}")
    a("s_barrier")
    a.srd(sSrc, 8, f"s{st0}", CHUNK * 4)
    a.srd(sE, 6, f"s{st1}", CHUNK * 2)
    for i in range(3):
        a(f"s_mov_b32 s{st0}, {8192*i}", f"s_mov_b32 s{st1}, {4096*i}")
        a.vmem(f"buffer_load_dwordx4 {vr(vSrc+4*i,4)}, v{vO16}, {sr(sSrc,4)}, s{st0} offen{nt}", f"s{i}")
        a.vmem(f"buffer_load_dwordx2 {vr(vEe+2*i,2)}, v{vO8}, {sr(sE,4)}, s{st1} offen{nt}", f"s{i}")
    a.stamp(7)
    a.srd(sR4, 20, R4_OFF, 32 * R4BLK)
    a.srd(sR2, 20, R2_OFF, 32 * R2BLK)
    a.srd(sDb, 52, 0, 256)
    a(f"s_mov_b32 s{st0}, 13401", f"s_mov_b32 s{st1}, {-RNG & 0xffffffff}", f"s_mov_b32 s{sMask}, 0xffff0000",
      f"v_mov_b32 v{vOne}, 1", f"v_cmp_gt_u32 vcc, {CHUNK//4 - 1024}, v0", f"s_mov_b64 {sr(sK,2)}, vcc",
      f"s_mov_b32 s{sXo}, {CAP}")

    a.stamp(8)
    for i in range(3):
        a.wait(vm=f"d{i}")
        if i == 0:
            a.stamp(9)
        if i == 2:
            a(f"s_mov_b64 exec, {sr(sK,2)}")
        for n in range(4 * i, 4 * i + 4):
            a(f"v_mul_u32_u24 v{vRg+n}, s{st0}, v{vDst+n}", f"v_lshrrev_b32 v{vRg+n}, 22, v{vRg+n}",
              f"v_lshlrev_b32 v{vSl+n}, 2, v{vRg+n}")
            a.lds(f"ds_add_rtn_u32 v{vSl+n}, v{vSl+n}, v{vOne} offset:{K1_CNT}", f"sl{n}")
            a(f"v_mad_i32_i24 v{vDst+n}, v{vRg+n}, s{st1}, v{vDst+n}", f"v_lshl_add_u32 v{vDst+n}, v{vDst+n}, 2, 4")
        if i == 2:
            a("s_mov_b64 exec, -1")
    a.stamp(10)
    for n in range(12):
        if n == 8:
            a(f"s_mov_b64 exec, {sr(sK,2)}")
        a.wait(lg=f"sl{n}")
        a(f"v_min_u32 v{vSl+n}, {CAP - 1}, v{vSl+n}", f"v_mad_u32_u24 v{vSl+n}, v{vRg+n}, s{sXo}, v{vSl+n}",
          f"v_lshlrev_b32 v{vRg+n}, 1, v{vSl+n}")
        a.lds(f"ds_write_b16 v{vRg+n}, v{vDst+n} offset:{K1_I16}")
    a("s_mov_b64 exec, -1")
    a(f"s_mul_i32 s{st0}, s{sc}, {CAP*4}", f"s_mul_i32 s{st1}, s{sc}, {CAP*2}",
      f"s_mov_b32 s{sXo}, {R4BLK - CAP*4}", f"s_mov_b32 s{sOo}, {R2BLK - CAP*2}")
    for i in range(2):
        a(f"v_add_u32 v{vT2}, {512*i}, v0", f"v_mul_u32_u24 v{vT2}, 2341, v{vT2}", f"v_lshrrev_b32 v{vT2}, 16, v{vT2}",
          f"v_mad_u32_u24 v{vRo+4+i}, v{vT2}, s{sOo}, v{vO16}", f"v_add_u32 v{vRo+4+i}, {8192*i}, v{vRo+4+i}",
          f"v_lshlrev_b32 v{vCn+i}, 2, v{vT2}")
    a.wait(lg="all")
    a("s_barrier")
    a.stamp(1)
    for i in range(2):
        a.lds(f"ds_read_b128 {vr(vRd+16+4*i,4)}, v{vO16} offset:{K1_I16 + 8192*i}", f"h{i}")
        a.lds(f"ds_read_b32 v{vCn+i}, v{vCn+i} offset:{K1_CNT}", f"h{i}")
    for i in range(2):
        a.wait(lg=f"h{i}")
        a(f"v_cmp_ge_u32 vcc, {CAP}, v{vCn+i}", "s_nop 1", f"v_cndmask_b32 v{vRd+16+4*i}, -1, v{vRd+16+4*i}, vcc")
        a.vmem(f"buffer_store_dwordx4 {vr(vRd+16+4*i,4)}, v{vRo+4+i}, {sr(sR2,4)}, s{st1} offen sc1", "r2")
    for i in range(3):
        a.wait(vm=f"s{i}")
        if i == 2:
            a(f"s_mov_b64 exec, {sr(sK,2)}")
        for n in range(4 * i, 4 * i + 4):
            if n & 1:
                a(f"v_and_or_b32 v{vSrc+n}, v{vEe+n//2}, s{sMask}, v{vSrc+n}")
            else:
                a(f"v_lshl_or_b32 v{vSrc+n}, v{vEe+n//2}, 16, v{vSrc+n}")
            a(f"v_lshlrev_b32 v{vSl+n}, 2, v{vSl+n}")
            a.lds(f"ds_write_b32 v{vSl+n}, v{vSrc+n} offset:{K1_I32}")
    a("s_mov_b64 exec, -1")
    for i in range(4):
        a(f"v_add_u32 v{vT2}, {512*i}, v0", f"v_mul_u32_u24 v{vT2}, 2341, v{vT2}", f"v_lshrrev_b32 v{vT2}, 17, v{vT2}",
          f"v_mad_u32_u24 v{vRo+i}, v{vT2}, s{sXo}, v{vO16}", f"v_add_u32 v{vRo+i}, {8192*i}, v{vRo+i}")
    a(f"s_lshl_b32 s{sWo}, s{sc}, 2", f"v_mov_b32 v{vBig}, s{sWo}")
    a.wait(vm="all", lg="all")
    a("s_barrier")
    a.stamp(11)
    a(f"s_cmp_lg_u32 s{sw}, 0", "s_cbranch_scc1 K1_F1", "s_mov_b64 exec, 1",
      f"buffer_store_dword v{vOne}, v{vBig}, {sr(sDb,4)}, 0 offen sc1", "s_mov_b64 exec, -1", "K1_F1:")
    for i in range(4):
        a.lds(f"ds_read_b128 {vr(vRd+4*i,4)}, v{vO16} offset:{K1_I32 + 8192*i}", f"g{i}")
    for i in range(4):
        a.wait(lg=f"g{i}")
        a.vmem(f"buffer_store_dwordx4 {vr(vRd+4*i,4)}, v{vRo+i}, {sr(sR4,4)}, s{st0} offen sc1")
    a(f"s_mul_i32 s{st0}, s{sc}, {R4BLK}", f"s_add_u32 s{st0}, s{st0}, {R4_OFF}", f"s_mul_i32 s{st1}, s{sc}, {R2BLK}",
      f"s_add_u32 s{st1}, s{st1}, {R2_OFF}", f"s_mul_i32 s{sXo}, s{sc}, {BLOB}", f"s_add_u32 s{sXo}, s{sXo}, {BLOB_OFF}",
      f"s_mul_i32 s{sOo}, s{sc}, {RNG}", f"s_sub_u32 s{sWn}, {N}, s{sOo}", f"s_min_u32 s{sWn}, s{sWn}, {RNG}",
      f"s_lshl_b32 s{sWn}, s{sWn}, 2", f"s_lshl_b32 s{sOo}, s{sOo}, 2", f"s_add_u32 s{sOo}, s{sOo}, {DEG_OFF}")
    a.srd(sBl, 20, f"s{sXo}", BLOB)
    a.srd(sDg, 20, f"s{sOo}", f"s{sWn}")
    for r in range(4):
        a(f"v_mov_b32 v{vDst+r}, 0xffff")
    a(f"v_add_u32 v{vT0}, {K1_BL}, v{vO16}", f"v_mov_b32 v{vDst+4}, 0", f"v_mov_b32 v{vDst+5}, {K1_BL + BLOB}")
    for i in range(3):
        a(f"ds_write_b128 v{vT0}, {vr(vDst,4)} offset:{8192*i}")
    a(f"v_lshlrev_b32 v{vT1}, 2, v0", f"v_add_u32 v{vT1}, {K1_BL + B_ORD}, v{vT1}", f"ds_write_b32 v{vT1}, v{vDst+4}",
      f"v_mov_b32 v{vT1}, {K1_NB - 4}", f"ds_write_b32 v{vT1}, v{vDst+5}")
    for n in range(16):
        a(f"v_mov_b32 v{48+n}, 0")
    a("s_waitcnt vmcnt(0) lgkmcnt(0)")
    a.vm, a.lg = [], []
    a.srd(sR4, 20, f"s{st0}", R4BLK)
    a.srd(sR2, 20, f"s{st1}", R2BLK)
    a("s_barrier")
    a.stamp(2)

    vFa, vFd = 110, 111
    a(f"v_lshlrev_b32 v{vFa}, 2, v{vLane}")

    def poll_issue(tag, word, wave):
        a(f"s_cmp_lg_u32 s{sw}, {wave}", f"s_cbranch_scc1 K1_{tag}I", "s_mov_b32 exec_hi, 0",
          f"buffer_load_dword v{vFd}, v{vFa}, {sr(sDb,4)}, 0 offen offset:{word} {POLLF[OPT['pollf']]}", "s_mov_b32 exec_hi, -1", f"K1_{tag}I:")

    def poll(tag, word, wave):
        a(f"s_cmp_lg_u32 s{sw}, {wave}", f"s_cbranch_scc1 K1_{tag}X", "s_mov_b32 exec_hi, 0", f"s_mov_b32 s{sWc}, 0")
        a(f"K1_{tag}L:")
        a("s_waitcnt vmcnt(0)", f"v_cmp_eq_u32 vcc, 0, v{vFd}", f"s_cbranch_vccz K1_{tag}D",
          f"buffer_load_dword v{vFd}, v{vFa}, {sr(sDb,4)}, 0 offen offset:{word} {POLLF[OPT['pollf']]}", f"s_add_u32 s{sWc}, s{sWc}, 1",
          f"s_cmp_lt_u32 s{sWc}, 0x40000", f"s_cbranch_scc1 K1_{tag}L")
        a("s_waitcnt vmcnt(0)", f"v_mov_b32 v{vFd}, {K1_BL + B_FLAG}",
          f"ds_write_b32 v{vFd}, v{vOne}", "s_waitcnt lgkmcnt(0)")
        a(f"K1_{tag}D:", "s_mov_b64 exec, -1", f"K1_{tag}X:")
    a(f"s_cmp_lg_u32 s{sw}, 1", "s_cbranch_scc1 K1_F2", "s_mov_b64 exec, 1",
      f"buffer_store_dword v{vOne}, v{vBig}, {sr(sDb,4)}, 0 offen offset:128 sc1", "s_mov_b64 exec, -1", "K1_F2:")
    poll_issue("PA", 0, 0)
    poll("PA", 0, 0)
    a("s_barrier")
    a.stamp(3)
    vR2, vR4, vDl, vS2 = 8, 16, 32, 48
    vDeg, vP, vBin, vPos, vDf = 64, 65, 66, 67, 70
    for i in range(4):
        a(f"s_mov_b32 s{st0}, {4096*i}")
        a.vmem(f"buffer_load_dwordx2 {vr(vR2+2*i,2)}, v{vO8}, {sr(sR2,4)}, s{st0} offen sc1", f"h{i}")
    a(f"v_mov_b32 v{vT2}, 0")
    for i in range(4):
        a.wait(vm=f"h{i}")
        if i == 0:
            a.stamp(12)
            poll_issue("PB", 128, 7)
        for n in range(4 * i, 4 * i + 4):
            if n & 1:
                a(f"v_ashrrev_i32 v{vDl+n}, 16, v{vR2+n//2}")
            else:
                a(f"v_bfe_i32 v{vDl+n}, v{vR2+n//2}, 0, 16")
        a(f"v_min_i32 v{vT2}, v{vDl+4*i}, v{vT2}")
        for n in range(4 * i, 4 * i + 4):
            a(f"v_cmpx_lt_i32 vcc, 0, v{vDl+n}")
            a.lds(f"ds_add_rtn_u32 v{vS2+n}, v{vDl+n}, v{vOne} offset:{K1_C2}")
            a("s_mov_b64 exec, -1")
    a(f"v_mov_b32 v{vT0}, {K1_BL + B_FLAG}", f"v_cmpx_gt_i32 vcc, 0, v{vT2}")
    a.lds(f"ds_write_b32 v{vT0}, v{vOne}")
    a("s_mov_b64 exec, -1")
    a.wait(lg="all")
    poll("PB", 128, 7)
    a("s_barrier")
    a.stamp(4)
    for i in range(4):
        a(f"s_mov_b32 s{st0}, {8192*i}")
        a.vmem(f"buffer_load_dwordx4 {vr(vR4+4*i,4)}, v{vO16}, {sr(sR4,4)}, s{st0} offen sc1", f"g{i}")
    a(f"s_cmp_ge_u32 s{sw}, 5", "s_cbranch_scc1 K1_D1")
    a(f"v_lshlrev_b32 v{vT1}, 2, v0", f"ds_read_b32 v{vDeg}, v{vT1} offset:{K1_C2 + 4}", "s_waitcnt lgkmcnt(0)")
    a(f"v_cvt_f32_u32 v{vDf}, v{vDeg}", f"v_cmp_lt_u32 {sr(sK,2)}, {MAXDEG}, v{vDeg}", f"v_min_u32 v{vDeg}, {MAXDEG}, v{vDeg}",
      f"v_sub_u32 v{vBin}, 63, v{vDeg}", f"v_lshlrev_b32 v{vBin}, 2, v{vBin}",
      f"ds_add_rtn_u32 v{vP}, v{vBin}, v{vOne} offset:{K1_H2}",
      f"s_mov_b64 exec, {sr(sK,2)}", f"ds_write_b32 v{vT0}, v{vOne}", "s_mov_b64 exec, -1", "s_waitcnt lgkmcnt(0)")
    a("K1_D1:", "s_barrier")

    def scan(reg):
        a("s_nop 1")
        for ctrl in ("row_shr:1", "row_shr:2", "row_shr:4", "row_shr:8"):
            a(f"v_add_u32_dpp v{reg}, v{reg}, v{reg} {ctrl} row_mask:0xf bank_mask:0xf bound_ctrl:1", "s_nop 1")
        a(f"v_add_u32_dpp v{reg}, v{reg}, v{reg} row_bcast:15 row_mask:0xa bank_mask:0xf", "s_nop 1")
        a(f"v_add_u32_dpp v{reg}, v{reg}, v{reg} row_bcast:31 row_mask:0xc bank_mask:0xf", "s_nop 1")
    vA0, vA1 = 68, 69
    a(f"s_cmp_ge_u32 s{sw}, 5", "s_cbranch_scc1 K1_D2")
    a(f"v_lshlrev_b32 v{vA0}, 2, v{vLane}", f"ds_read_b32 v{vA1}, v{vA0} offset:{K1_H2}", "s_waitcnt lgkmcnt(0)",
      f"v_mov_b32 v{vA0}, v{vA1}")
    scan(vA0)
    a(f"v_sub_u32 v{vA0}, v{vA0}, v{vA1}", f"ds_bpermute_b32 v{vPos}, v{vBin}, v{vA0}",
      f"v_lshl_or_b32 v{vDeg}, v{vDeg}, 16, v0", "s_waitcnt lgkmcnt(0)",
      f"v_add_u32 v{vPos}, v{vPos}, v{vP}", f"v_lshlrev_b32 v{vA0}, 2, v{vPos}", f"v_add_u32 v{vA0}, {K1_BL + B_ORD}, v{vA0}",
      f"ds_write_b32 v{vA0}, v{vDeg}", "s_waitcnt lgkmcnt(0)")
    a("K1_D2:", "s_barrier")
    a(f"s_cmp_ge_u32 s{sw}, 5", "s_cbranch_scc1 K1_D3")
    a(f"v_lshlrev_b32 v{vA0}, 5, v{vLane}", f"v_add_u32 v{vA0}, {K1_BL + B_ORD}, v{vA0}", f"ds_read_b32 v{vA1}, v{vA0}",
      f"v_cmp_gt_u32 vcc, {NGRP}, v{vLane}", "s_waitcnt lgkmcnt(0)", f"v_lshrrev_b32 v{vA1}, 16, v{vA1}",
      f"v_cndmask_b32 v{vA1}, 0, v{vA1}, vcc", f"v_mov_b32 v{vA0}, v{vA1}")
    scan(vA0)
    a(f"v_readlane_b32 s{st0}, v{vA0}, 63", f"v_sub_u32 v{vA0}, v{vA0}, v{vA1}", f"v_lshlrev_b32 v{vA0}, 5, v{vA0}",
      f"v_lshrrev_b32 v{vA1}, 3, v{vPos}", f"v_lshlrev_b32 v{vA1}, 2, v{vA1}", f"ds_bpermute_b32 v{vA1}, v{vA1}, v{vA0}",
      f"v_and_b32 v{vPos}, 7, v{vPos}", f"v_lshlrev_b32 v{vP}, 2, v{vLane}", f"v_add_u32 v{vP}, {K1_BL + B_GB}, v{vP}",
      "s_mov_b64 exec, vcc", f"ds_write_b32 v{vP}, v{vA0}", "s_mov_b64 exec, -1",
      f"s_cmp_le_u32 s{st0}, {NSLOT - 8}", "s_cbranch_scc1 K1_FITS", f"ds_write_b32 v{vT0}, v{vOne}", "K1_FITS:",
      "s_waitcnt lgkmcnt(0)", f"v_lshl_add_u32 v{vA1}, v{vPos}, 2, v{vA1}", f"v_add_u32 v{vA1}, {K1_BL}, v{vA1}",
      f"ds_write_b32 v{vT1}, v{vA1} offset:{K1_NB}", "s_waitcnt lgkmcnt(0)")
    a("K1_D3:", "s_barrier")
    a.stamp(5)
    a.lg = []
    a(f"ds_read_b32 v{vT2}, v{vT0}")
    for n in range(8):
        a.lds(f"ds_read_b32 v{vR2+n}, v{vDl+n} offset:{K1_NB - 4}", f"nb{n}")
    a("s_waitcnt lgkmcnt(8)", f"v_readfirstlane_b32 s{st0}, v{vT2}", f"s_cmp_lg_u32 s{st0}, 0", "s_cbranch_scc1 K1_NOSC")
    for n in range(16):
        a.wait(lg=f"nb{n}", vm=f"g{n//4}")
        a(f"v_lshl_add_u32 v{vS2+n}, v{vS2+n}, 5, v{vR2 + (n & 7)}")
        if n < 8:
            a.lds(f"ds_read_b32 v{vR2+n}, v{vDl+n+8} offset:{K1_NB - 4}", f"nb{n+8}")
        a.lds(f"ds_write_b32 v{vS2+n}, v{vR4+n}")
    a("s_branch K1_SCD", "K1_NOSC:", "s_waitcnt vmcnt(0)", "K1_SCD:", "s_waitcnt lgkmcnt(0)")
    a.vm, a.lg = [], []
    a("s_barrier")
    a.stamp(6)
    a(f"v_add_u32 v{vT0}, {K1_BL}, v{vO16}")
    for i in range(4):
        a.lds(f"ds_read_b128 {vr(vR4+4*i,4)}, v{vT0} offset:{8192*i}", f"o{i}")
    for i in range(4):
        a.wait(lg=f"o{i}")
        a(f"s_mov_b32 s{st0}, {8192*i}")
        a.vmem(f"buffer_store_dwordx4 {vr(vR4+4*i,4)}, v{vO16}, {sr(sBl,4)}, s{st0} offen{' sc1' if OPT['blobsc'] else ''}")
    a(f"s_cmp_ge_u32 s{sw}, 5", "s_cbranch_scc1 K1_NODEG", f"buffer_store_dword v{vDf}, v{vT1}, {sr(sDg,4)}, 0 offen{' sc1' if OPT['blobsc'] else ''}", "K1_NODEG:")
    a.stamp_dump(sX, 20, sw, 8)
    a("K1_END:", "s_endpgm")
    return a.lines, descriptor("k1_kernel", nv, 102 if STAMPS else 72)


K2_LDS = BLOB


def k2():
    a = Asm()
    header(a, "k2_kernel")
    sBl, sP, sQ, sS, sW1, sDeg, sPf = 24, 28, 32, 36, 40, 44, 48
    sw, sk, srng, scnt, st0, st1, sg, sdmax, sdmin, sK, sBig, sOne = 52, 53, 54, 55, 56, 57, 58, 59, 60, 62, 64, 66
    sM = 68
    vLane, vT0, vT1, vT2, vT3 = 1, 2, 3, 4, 5
    vI4, vAh, vAl = 6, 8, 10
    vE, vEs = 12, 14
    vIdx = 16
    vSh, vEll, vEe, vDeg, vOut, vOrdL, vHoff = 24, 25, 26, 27, 28, 29, 30
    vQ = 32
    vNum, vDen, vT = 48, 56, 64
    vP = 72
    vZ = 88
    vOld, vNxt, vGo = 120, 121, 122
    nv = 123
    vC = 32
    vPf = 112

    a("s_cmp_ge_u32 s2, 256", "s_cbranch_scc1 K2_END")
    a.stamp_setup(31, 1)
    a("s_load_dwordx16 s[4:19], s[0:1], 0", "s_load_dwordx2 s[20:21], s[0:1], 80")
    a(f"v_lshrrev_b32 v{vT0}, 6, v0", f"v_and_b32 v{vLane}, 63, v0", f"v_readfirstlane_b32 s{sw}, v{vT0}")
    a(f"s_and_b32 s{sk}, s2, 7", f"s_lshr_b32 s{srng}, s2, 3")
    a(f"s_mul_i32 s{st0}, s{srng}, {RNG}", f"s_sub_u32 s{scnt}, {N}, s{st0}", f"s_min_u32 s{scnt}, s{scnt}, {RNG}")
    a(f"s_mul_i32 s{st1}, s{srng}, {BLOB}", f"s_add_u32 s{st1}, s{st1}, {BLOB_OFF}")
    a(f"v_lshlrev_b32 v{vT0}, 4, v{vLane}")
    a(f"v_and_b32 v{vT1}, 3, v{vLane}", f"v_lshlrev_b32 v{vSh}, 4, v{vT1}", f"v_lshrrev_b32 v{vT2}, 5, v{vLane}",
      f"v_lshl_add_u32 v{vIdx+1}, v{vT2}, 6, v{vSh}", f"v_mov_b32 v{vIdx+3}, v{vIdx+1}", f"v_mov_b32 v{vIdx+5}, v{vIdx+1}",
      f"v_mov_b32 v{vIdx+7}, v{vIdx+1}", f"v_lshl_add_u32 v{vHoff}, v{vT2}, 5, 2",
      f"v_and_b32 v{vOrdL}, 28, v{vLane}",
      f"v_mov_b32 v{vE}, 0x3f80", f"v_mov_b32 v{vE+1}, 0", f"v_lshlrev_b64 {vr(vI4,2)}, v{vSh}, {vr(vE,2)}",
      f"v_mov_b32 v{vOld}, -1", f"v_lshlrev_b32 v{vT1}, 3, v{vLane}", f"v_lshlrev_b32 v{vT3}, 7, v{vLane}")
    a(f"s_mov_b32 s{sK}, {NLOG2E}", f"s_mov_b32 s{sBig}, {fbits(2.0**120)}", f"s_mov_b32 s{sOne}, 1.0", f"s_mov_b32 s{sOne+1}, 1.0")
    a(f"s_lshl_b32 s{sg}, s{sw}, 10", f"s_add_u32 s{sdmax}, s{sg}, 16384", f"s_mov_b32 m0, s{sg}")
    a("s_waitcnt lgkmcnt(0)")
    a.srd(sBl, 20, f"s{st1}", BLOB)
    a.vmem(f"buffer_load_dwordx4 v{vT0}, {sr(sBl,4)}, s{sg} offen lds", "b")
    a(f"s_cmp_ge_u32 s{sw}, {BLOB // 1024 - 16}", "s_cbranch_scc1 K2_B1", f"s_mov_b32 m0, s{sdmax}", "s_nop 0")
    a(f"buffer_load_dwordx4 v{vT0}, {sr(sBl,4)}, s{sdmax} offen lds", "K2_B1:")
    a.srd(sW1, 20, CF_OFF, 4096)
    a(f"s_lshl_b32 s{st1}, s{sk}, 9")
    a.vmem(f"buffer_load_dwordx2 {vr(vAh,2)}, v{vT1}, {sr(sW1,4)}, s{st1} offen", "c")
    a.stamp()
    a(f"s_mul_i32 s{st1}, s{sk}, {SS}", f"s_lshl_b32 s{sg}, s{st0}, 7", f"s_add_u32 s{sg}, s{sg}, s{st1}",
      f"s_lshl_b32 s{sdmax}, s{scnt}, 7")
    a.srd(sP, 20, f"s{st1}", N, stride=128)
    a.srd(sPf, 20, f"s{sg}", f"s{sdmax}")
    a(f"s_add_u32 s{sg}, s{sg}, {Q_OFF}")
    a.srd(sQ, 20, f"s{sg}", f"s{sdmax}")
    a(f"s_add_u32 s{sg}, s{sg}, {S_OFF - Q_OFF}")
    a.srd(sS, 20, f"s{sg}", f"s{sdmax}")
    a(f"s_lshl_b32 s{sg}, s{st0}, 2", f"s_add_u32 s{sg}, s{sg}, {DEG_OFF}", f"s_lshl_b32 s{sdmax}, s{scnt}, 2",
      f"s_cmp_eq_u32 s{sk}, 0", f"s_cselect_b32 s{sdmax}, s{sdmax}, 0")
    a.srd(sDeg, 20, f"s{sg}", f"s{sdmax}")
    a(f"s_sub_u32 s{st1}, s{sw}, 10", f"s_lshl_b32 s{st1}, s{st1}, 13", f"s_cmp_lt_u32 s{sw}, 10",
      f"s_cselect_b32 s{sPf+2}, 0, s{sPf+2}" if OPT["pf"] else f"s_mov_b32 s{sPf+2}, 0", f"s_cselect_b32 s{st1}, 0, s{st1}",
      f"s_cmp_eq_u32 s{sw}, 15", "s_cbranch_scc0 K2_PF3")
    a.srd(sPf, 20, W2F_OFF, 262144 if OPT["pfw"] else 0)
    a(f"s_lshl_b32 s{st1}, s{srng}, 13")
    a("K2_PF3:")
    if OPT["pfearly"]:
        if OPT["pfbar"]:
            a("s_barrier")
        a.vmem(f"buffer_load_dword v{vPf}, v{vT3}, {sr(sPf,4)}, s{st1} offen", "pf")
    a.wait(vm="c")
    a("s_barrier")
    a.stamp(5)
    if not OPT["pfearly"]:
        a.vmem(f"buffer_load_dword v{vPf}, v{vT3}, {sr(sPf,4)}, s{st1} offen", "pf")
    a.vm = []
    if STAMPS:
        a("s_mov_b32 s99, 8")
    a(f"v_mov_b32 v{vT0}, {B_FLAG}", f"ds_read_b32 v{vT1}, v{vT0}", "s_waitcnt lgkmcnt(0)",
      f"v_readfirstlane_b32 s{st0}, v{vT1}", f"s_mov_b32 s{sg}, s{sw}", f"s_cmp_lg_u32 s{st0}, 0", "s_cbranch_scc1 K2_SLOW")

    def Z(i):
        return vZ + 16 * ((i >> 1) & 1) + 8 * (i & 1)

    def src_read(i):
        a(f"ds_read_u16 v{vIdx + 2*(i % 4)}, v{vEll} offset:{32*i}")

    def e_read(p):
        a(f"ds_read_u16 v{vE}, v{vEe} offset:{64*p}")

    def gather(i):
        a(f"buffer_load_dwordx4 {vr(vP + 4*(i % 4), 4)}, {vr(vIdx + 2*(i % 4), 2)}, {sr(sP,4)}, 0 idxen offen")

    def m4(i, hf):
        z = Z(i) + 4 * hf
        return f"v_mfma_f32_4x4x4_16b_bf16 {vr(z,4)}, {vr(vI4,2)}, {vr(vP + 4*(i % 4) + 2*hf, 2)}, {vr(z,4)}"

    shift = f"v_lshlrev_b64 {vr(vEs,2)}, v{vSh}, {vr(vE,2)}"

    def mhi(p):
        return f"v_mfma_f32_32x32x8_bf16 {vr(Z(2*p),16)}, {vr(vAh,2)}, {vr(vEs,2)}, {vr(vQ,16)}"

    def mlo(p):
        return f"v_mfma_f32_32x32x8_bf16 {vr(Z(2*p),16)}, {vr(vAl,2)}, {vr(vEs,2)}, {vr(Z(2*p),16)}"

    def finish():
        for r in range(8):
            a(f"v_rcp_f32 v{vT+r}, v{vDen+r}")
        for r in range(0, 8, 2):
            a(f"v_pk_mul_f32 {vr(vNum+r,2)}, {vr(vNum+r,2)}, {vr(vT+r,2)}")
        for r in range(4):
            a(f"v_cvt_pk_bf16_f32 v{vT+r}, v{vNum+2*r}, v{vNum+2*r+1}")
        a(f"buffer_store_dwordx4 {vr(vT,4)}, v{vOld}, {sr(sS,4)}, 0 offen{wt()}")

    if OPT["stag"]:
        a(f"s_lshl_b32 s{st0}, s{sw}, 2", f"s_add_u32 s{st0}, s{st0}, {B_GO}", f"v_mov_b32 v{vGo}, s{st0}",
          f"s_cmp_lt_u32 s{sw}, 4", "s_cbranch_scc1 K2_GO", f"v_subrev_u32 v{vT0}, 16, v{vGo}")
        a("K2_WAITGO:", f"ds_read_b32 v{vT1}, v{vT0}", "s_waitcnt lgkmcnt(0)", f"v_readfirstlane_b32 s{st0}, v{vT1}",
          f"s_cmp_eq_u32 s{st0}, 0", "s_cbranch_scc1 K2_WAITGO", "K2_GO:")
    if OPT["prio"]:
        a("s_setprio 3")
    a("K2_GROUP:")
    a(f"s_lshl_b32 s{st0}, s{sg}, 5", f"s_lshl_b32 s{st1}, s{sg}, 2", f"v_add_u32 v{vT0}, s{st0}, v{vOrdL}", f"v_mov_b32 v{vT2}, s{st1}",
      f"ds_read_b32 v{vEll}, v{vT2} offset:{B_GB}", f"ds_read_b32 v{vT1}, v{vT0} offset:{B_ORD}",
      f"s_mov_b32 s{sP+2}, {N}", "s_waitcnt lgkmcnt(0)")
    a(f"v_add_u32 v{vEll}, v{vEll}, v{vOrdL}", f"v_and_b32 v{vT0}, 0xffff, v{vT1}", f"v_lshrrev_b32 v{vDeg}, 16, v{vT1}")
    for i in range(4):
        src_read(i)
    a(f"v_lshl_add_u32 v{vOut}, v{vT0}, 7, v{vIdx+1}", f"v_add_u32 v{vEe}, v{vEll}, v{vHoff}")
    a(f"buffer_load_dwordx4 {vr(vZ+16,4)}, v{vOut}, {sr(sQ,4)}, 0 offen")
    e_read(0)
    a(f"v_readlane_b32 s{sdmax}, v{vDeg}, 0", f"v_readlane_b32 s{sdmin}, v{vDeg}, 28")
    for i in range(4):
        a(f"s_waitcnt lgkmcnt({4-i})")
        gather(i)
    src_read(4)
    src_read(5)
    a("s_waitcnt lgkmcnt(2)")
    a(shift)
    e_read(1)
    a("s_mov_b64 exec, 1", f"v_mov_b32 v{vT0}, {B_CTR}", f"v_mov_b32 v{vNxt}, 1", f"ds_add_rtn_u32 v{vNxt}, v{vT0}, v{vNxt}",
      "s_mov_b64 exec, -1")
    finish()
    a("s_waitcnt vmcnt(5)")
    if OPT["stag"] == 2:
        a(f"ds_write_b32 v{vGo}, v{vGo}")
    for q in range(4):
        a(f"v_mfma_f32_4x4x4_16b_bf16 {vr(vQ+4*q,4)}, {vr(vI4,2)}, {vr(vZ+16+2*(q&1),2)}, 0")
    a("s_nop 3")
    a(mhi(0), *([] if OPT["nolo"] else [mlo(0)]))
    a("s_nop 9", "s_waitcnt vmcnt(3)")
    if OPT["stag"] == 1:
        a(f"ds_write_b32 v{vGo}, v{vGo}")
    a(m4(0, 0), m4(0, 1), m4(1, 0), m4(1, 1))
    a("s_waitcnt lgkmcnt(0)")
    gather(4)
    gather(5)
    a(shift)
    src_read(6)
    src_read(7)
    e_read(2)
    if OPT["prio"]:
        a(f"s_cmp_lt_u32 s{sg}, 16", "s_cbranch_scc1 K2_PRX", "s_setprio 2", f"s_cmp_lt_u32 s{sg}, 24", "s_cbranch_scc1 K2_PRX",
          "s_setprio 1", f"s_cmp_lt_u32 s{sg}, 32", "s_cbranch_scc1 K2_PRX", "s_setprio 0", "K2_PRX:")
    a("s_nop 1" if OPT["prio"] else "s_nop 3")
    if STAMPS and not OPT["light"]:
        a("s_mov_b32 m0, s99", "s_add_u32 s99, s99, 1")
        a.stamp("m0")

    NP = MAXDEG // 2
    for i in range(MAXDEG):
        z = Z(i)
        p = i >> 1
        a(f"s_cmp_le_u32 s{sdmin}, {i}", f"s_cbranch_scc1 K2_OOL{i}", f"K2_S{i}:")
        ex = [f"v_exp_f32 v{vT+r}, v{z+r}" for r in range(8)]
        num_src = Z(0) if i == 1 else vNum
        if i == 0:
            upd = ["s_nop 0"] + [f"v_pk_add_f32 {vr(vDen+r,2)}, {vr(vT+r,2)}, {sr(sOne,2)}" for r in range(0, 8, 2)]
        else:
            upd = [f"v_pk_fma_f32 {vr(z+r,2)}, {vr(z+r,2)}, {vr(vDen+r,2)}, {vr(num_src+r,2)}" for r in range(0, 8, 2)]
            upd += [f"v_pk_fma_f32 {vr(vNum+r,2)}, {vr(num_src+r,2)}, {vr(vT+r,2)}, {vr(z+r,2)}" for r in range(0, 8, 2)]
            upd += [f"v_pk_fma_f32 {vr(vDen+r,2)}, {vr(vDen+r,2)}, {vr(vT+r,2)}, {vr(vDen+r,2)}" for r in range(0, 8, 2)]
        if (i & 1) == 0:
            if p + 1 < NP:
                a(mhi(p + 1), *ex[0:4], *([] if OPT["nolo"] else [mlo(p + 1)]), *ex[4:8])
            else:
                a(*ex)
            a(*upd)
        else:
            if p + 1 < NP:
                a(f"s_waitcnt vmcnt({3 if p == 0 else 2 if p + 2 < NP else 0})")
                a(m4(2*p+2, 0), ex[0], m4(2*p+2, 1), ex[1], m4(2*p+3, 0), ex[2], m4(2*p+3, 1), ex[3])
            else:
                a(*ex[0:4])
            if p + 2 < NP:
                a("s_waitcnt lgkmcnt(0)")
            if p + 3 < NP:
                if OPT["clip"]:
                    a(f"s_cmp_gt_u32 s{sdmax}, {2*p+6}", f"s_cselect_b32 s{sP+2}, {N}, 0")
                gather(2 * p + 6)
                gather(2 * p + 7)
            a(*ex[4:8])
            if p + 2 < NP:
                a(shift)
            if p + 4 < NP:
                src_read(2 * p + 8)
                src_read(2 * p + 9)
            if p + 3 < NP:
                e_read(p + 3)
            a(*upd)
    a("K2_FIN:")
    a("s_mov_b64 exec, -1")
    if OPT["prio"]:
        a("s_setprio 3")
    a(f"v_pk_add_f32 {vr(vT0,2)}, {vr(vDen,2)}, {vr(vDen+2,2)}", f"v_pk_add_f32 {vr(vT2,2)}, {vr(vDen+4,2)}, {vr(vDen+6,2)}")
    for r in range(0, 8, 4):
        a(f"v_pk_fma_f32 {vr(vT0,2)}, {vr(vNum+r,2)}, 0, {vr(vT0,2)} op_sel_hi:[1,0,1]")
        a(f"v_pk_fma_f32 {vr(vT2,2)}, {vr(vNum+r+2,2)}, 0, {vr(vT2,2)} op_sel_hi:[1,0,1]")
    a(f"v_pk_add_f32 {vr(vT0,2)}, {vr(vT0,2)}, {vr(vT2,2)}", f"v_mov_b32 v{vOld}, v{vOut}",
      f"v_add_f32 v{vT0}, v{vT0}, v{vT1}", f"v_readfirstlane_b32 s{sg}, v{vNxt}", f"v_cmp_ngt_f32 vcc, s{sBig}, v{vT0}")
    a("s_cbranch_vccnz K2_SAFE")
    a("K2_NEXT:")
    if STAMPS and not OPT["light"]:
        a("s_mov_b32 m0, s99", "s_add_u32 s99, s99, 1")
        a.stamp("m0")
        a("s_mov_b32 m0, s99", "s_add_u32 s99, s99, 1", f"v_writelane_b32 v31, s{sdmax}, m0")
    a(f"s_add_u32 s{sg}, s{sg}, 16", f"s_cmp_lt_u32 s{sg}, {NGRP}", "s_cbranch_scc1 K2_GROUP")
    finish()
    a.stamp_dump(sBl, 20, sw, 16)
    a("s_endpgm")

    for i in range(MAXDEG):
        a(f"K2_OOL{i}:")
        if i == 0:
            for r in range(8):
                a(f"v_mov_b32 v{vNum+r}, 0", f"v_mov_b32 v{vDen+r}, 1.0")
        if i == 1:
            for r in range(8):
                a(f"v_mov_b32 v{vNum+r}, v{Z(0)+r}")
        a(f"s_cmp_le_u32 s{sdmax}, {i}", "s_cbranch_scc1 K2_FIN")
        a(f"v_cmpx_lt_u32 vcc, {i}, v{vDeg}", "s_nop 3", f"s_branch K2_S{i}")

    a("K2_SAFE:")
    a("s_waitcnt vmcnt(0) lgkmcnt(0)", f"s_mov_b32 s{st0}, 0", f"s_mov_b32 s{sP+2}, {N}")
    for r in range(8):
        a(f"v_mov_b32 v{vNum+r}, 0")
    a("K2_SAFE_L:")
    a(f"s_cmp_ge_u32 s{st0}, s{sdmax}", "s_cbranch_scc1 K2_SAFE_E")
    a(f"v_cmpx_lt_u32 vcc, s{st0}, v{vDeg}")
    src_read(0)
    e_read(0)
    a("s_waitcnt lgkmcnt(0)")
    gather(0)
    a(shift, f"v_add_u32 v{vEll}, 32, v{vEll}", f"v_add_u32 v{vEe}, 32, v{vEe}", "s_nop 1")
    a(mhi(0), *([] if OPT["nolo"] else [mlo(0)]), "s_nop 9", "s_waitcnt vmcnt(0)", m4(0, 0), m4(0, 1), "s_nop 4")
    for r in range(8):
        a(f"v_exp_f32 v{vT+r}, v{vZ+r}")
    for r in range(0, 8, 2):
        a(f"v_pk_add_f32 {vr(vT+r,2)}, {vr(vT+r,2)}, {sr(sOne,2)}")
    for r in range(8):
        a(f"v_rcp_f32 v{vT+r}, v{vT+r}")
    a("s_nop 0")
    for r in range(0, 8, 2):
        a(f"v_pk_fma_f32 {vr(vNum+r,2)}, {vr(vZ+r,2)}, {vr(vT+r,2)}, {vr(vNum+r,2)}")
    a(f"s_add_u32 s{st0}, s{st0}, 1", "s_branch K2_SAFE_L")
    a("K2_SAFE_E:", "s_mov_b64 exec, -1")
    for r in range(8):
        a(f"v_mov_b32 v{vDen+r}, 1.0")
    a("s_branch K2_NEXT")

    sDst, sSrc, sE = sBl, sPf, sW1
    snode, sbase, sdeg, sbit, ssrc, se, sm = sM, sM + 1, sM + 2, sM + 3, sM + 4, sM + 5, sM + 6
    vc, vq, vacc, vd, vs, ve, voff, vz = 32, 33, 34, 36, 40, 44, 48, 49
    a("K2_SLOW:")
    a.srd(sW1, 12, 512 * 1024, 1024)
    a(f"v_and_b32 v{vT0}, 1, v{vLane}", f"v_lshlrev_b32 v{vT0}, 6, v{vT0}", f"v_and_b32 v{vT1}, 62, v{vLane}",
      f"v_add_u32 v{vT0}, v{vT0}, v{vT1}", f"s_lshl_b32 s{st1}, s{sk}, 7")
    a(f"buffer_load_ushort v{vc}, v{vT0}, {sr(sW1,4)}, s{st1} offen", "s_waitcnt vmcnt(0)",
      f"v_lshlrev_b32 v{vc}, 16, v{vc}", f"v_mul_f32 v{vc}, s{sK}, v{vc}")
    a.srd(sDst, 10, 0, E * 4)
    a.srd(sSrc, 8, 0, E * 4)
    a.srd(sE, 6, 0, E * 2)
    a(f"v_lshlrev_b32 v{vIdx+1}, 1, v{vLane}", f"v_lshlrev_b32 v{vT2}, 4, v{vLane}", f"v_lshlrev_b32 v{vT3}, 3, v{vLane}")
    a("K2_SLOW_N:")
    a(f"s_cmp_ge_u32 s{sg}, s{scnt}", "s_cbranch_scc1 K2_END")
    a(f"s_mul_i32 s{snode}, s{srng}, {RNG}", f"s_add_u32 s{snode}, s{snode}, s{sg}", f"s_lshl_b32 s{st0}, s{sg}, 7",
      f"v_add_u32 v{voff}, s{st0}, v{vIdx+1}", f"buffer_load_ushort v{vq}, v{voff}, {sr(sQ,4)}, 0 offen",
      f"v_mov_b32 v{vacc}, 0", f"s_mov_b32 s{sbase}, 0", f"s_mov_b32 s{sdeg}, 0", "s_waitcnt vmcnt(0)",
      f"v_lshlrev_b32 v{vq}, 16, v{vq}")
    a("K2_SLOW_C:")
    a(f"s_lshl_b32 s{st0}, s{sbase}, 2", f"s_lshl_b32 s{st1}, s{sbase}, 1")
    a(f"buffer_load_dwordx4 {vr(vd,4)}, v{vT2}, {sr(sDst,4)}, s{st0} offen",
      f"buffer_load_dwordx4 {vr(vs,4)}, v{vT2}, {sr(sSrc,4)}, s{st0} offen",
      f"buffer_load_dwordx2 {vr(ve+2,2)}, v{vT3}, {sr(sE,4)}, s{st1} offen", "s_waitcnt vmcnt(0)")
    a(f"v_lshlrev_b32 v{ve}, 16, v{ve+2}", f"v_and_b32 v{ve+1}, 0xffff0000, v{ve+2}",
      f"v_lshlrev_b32 v{ve+2}, 16, v{ve+3}", f"v_and_b32 v{ve+3}, 0xffff0000, v{ve+3}")
    for u in range(4):
        a(f"v_cmp_eq_u32 {sr(sm,2)}, s{snode}, v{vd+u}")
        a(f"K2_SLOW_M{u}:", f"s_cmp_eq_u64 {sr(sm,2)}, 0", f"s_cbranch_scc1 K2_SLOW_X{u}")
        a(f"s_ff1_i32_b64 s{sbit}, {sr(sm,2)}", f"s_bitset0_b64 {sr(sm,2)}, s{sbit}", f"s_add_u32 s{sdeg}, s{sdeg}, 1",
          f"v_readlane_b32 s{ssrc}, v{vs+u}, s{sbit}", f"v_readlane_b32 s{se}, v{ve+u}, s{sbit}", "s_nop 1",
          f"v_mov_b32 v{vIdx}, s{ssrc}", f"buffer_load_ushort v{vz}, {vr(vIdx,2)}, {sr(sP,4)}, 0 idxen offen",
          f"v_fma_f32 v{vT0}, s{se}, v{vc}, v{vq}", "s_waitcnt vmcnt(0)",
          f"v_lshlrev_b32 v{vz}, 16, v{vz}", f"v_add_f32 v{vz}, v{vz}, v{vT0}", f"v_exp_f32 v{vT0}, v{vz}", "s_nop 0",
          f"v_add_f32 v{vT0}, 1.0, v{vT0}", f"v_rcp_f32 v{vT0}, v{vT0}", "s_nop 0",
          f"v_fma_f32 v{vacc}, v{vz}, v{vT0}, v{vacc}", f"s_branch K2_SLOW_M{u}")
        a(f"K2_SLOW_X{u}:")
    a(f"s_add_u32 s{sbase}, s{sbase}, 256", f"s_cmp_lt_u32 s{sbase}, {E}", "s_cbranch_scc1 K2_SLOW_C")
    a(f"v_cvt_pk_bf16_f32 v{vacc}, v{vacc}, v{vacc}", f"v_cvt_f32_u32 v{vT0}, s{sdeg}", f"s_lshl_b32 s{st0}, s{sg}, 2",
      f"v_mov_b32 v{vT1}, s{st0}")
    a(f"buffer_store_short v{vacc}, v{voff}, {sr(sS,4)}, 0 offen", f"buffer_store_dword v{vT0}, v{vT1}, {sr(sDeg,4)}, 0 offen")
    a(f"s_add_u32 s{sg}, s{sg}, 16", "s_waitcnt vmcnt(0)", "s_branch K2_SLOW_N")
    a("K2_END:", "s_endpgm")
    return a.lines, descriptor("k2_kernel", nv, 102 if STAMPS else 96)


K3_LDS = 81920


def k3():
    a = Asm()
    header(a, "k3_kernel")
    sS, sF, sDeg, sB, sO = 24, 28, 32, 36, 40
    sw, stile, scg, st0, st1, sK, sn, sSo = 44, 45, 46, 47, 48, 50, 52, 53
    vLane, vT0, vT1, vT2 = 1, 2, 3, 4
    vDm, vBo, vSt, vB2 = 5, 6, 7, 8
    vAad = 10
    vDg = 12
    vA = 32
    vAcc = 72
    vB = 112
    nv = vB + 128
    a("s_cmp_ge_u32 s2, 256", "s_cbranch_scc1 K3_END")
    a(f"s_lshr_b32 s{st0}, s2, 4", f"s_lshl_b32 s{st0}, s{st0}, 3", f"s_and_b32 s{stile}, s2, 7",
      f"s_add_u32 s{stile}, s{stile}, s{st0}", f"s_cmp_ge_u32 s{stile}, 125", "s_cbranch_scc1 K3_END")
    a.stamp_setup(nv, 2)
    code_prefetch(a, "k3_kernel", "K3_END", 2, 2, vA, "K3")
    a("s_load_dwordx4 s[4:7], s[0:1], 56", "s_load_dwordx2 s[20:21], s[0:1], 80")
    a(f"v_lshrrev_b32 v{vT0}, 6, v0", f"v_and_b32 v{vLane}, 63, v0", f"v_readfirstlane_b32 s{sw}, v{vT0}")
    a(f"s_bfe_u32 s{scg}, s2, 0x10003", f"s_lshl_b32 s{scg}, s{scg}, 2", f"s_add_u32 s{scg}, s{scg}, s{sw}")
    a(f"s_and_b32 s{st0}, s{sw}, 1", f"s_lshl_b32 s{st0}, s{st0}, 2", f"v_lshrrev_b32 v{vT0}, 4, v{vLane}",
      f"v_add_u32 v{vT1}, s{st0}, v{vT0}", f"v_and_b32 v{vT2}, 7, v{vLane}", f"v_xor_b32 v{vT1}, v{vT1}, v{vT2}",
      f"v_lshlrev_b32 v{vT1}, 4, v{vT1}", f"v_lshrrev_b32 v{vT2}, 3, v{vLane}", f"v_lshl_add_u32 v{vDm}, v{vT2}, 7, v{vT1}")
    a(f"v_lshlrev_b32 v{vBo}, 4, v{vLane}")
    a(f"v_and_b32 v{vT1}, 15, v{vLane}", f"v_lshlrev_b32 v{vT2}, 2, v{vT1}", f"v_lshl_add_u32 v{vSt}, v{vT0}, 11, v{vT2}")
    a(f"v_lshrrev_b32 v{vAad}, 1, v{vT1}", f"v_xor_b32 v{vAad}, v{vAad}, v{vT0}", f"v_lshlrev_b32 v{vAad}, 4, v{vAad}",
      f"v_lshl_add_u32 v{vAad}, v{vT1}, 7, v{vAad}", f"v_xor_b32 v{vAad+1}, 64, v{vAad}", f"v_lshlrev_b32 v{vT0}, 4, v{vT0}")
    a(f"s_mul_i32 s{sSo}, s{stile}, 10240")
    a("s_waitcnt lgkmcnt(0)")
    a.srd(sDeg, 20, DEG_OFF, N * 4)
    a.srd(sB, 4, 0, 512)
    a(f"s_mul_i32 s{st0}, s{stile}, 320", f"s_lshl_b32 s{st1}, s{scg}, 6")
    sDo, sBo = 56, 57
    a(f"s_mov_b32 s{sDo}, s{st0}", f"s_mov_b32 s{sBo}, s{st1}", f"v_mov_b32 v{vDg+19}, v{vT0}", f"v_mov_b32 v{vB2}, v{vT2}")

    def bias_loads():
        for rt in range(5):
            a.vmem(f"buffer_load_dwordx4 {vr(vDg+4*rt,4)}, v{vDg+19}, {sr(sDeg,4)}, s{sDo} offen offset:{64*rt}", "deg")
        a.vmem(f"buffer_load_dword v{vB2}, v{vB2}, {sr(sB,4)}, s{sBo} offen", "deg")
    a.srd(sS, 20, S_OFF, 8 * SS)
    a.srd(sF, 20, W2F_OFF, 262144)
    a.srd(sO, 6, 0, N * 512)
    srot, sFo = 54, 55
    a(f"s_bfe_u32 s{srot}, s2, 0x20004" if OPT["rot"] else f"s_mov_b32 s{srot}, 0", f"s_lshl_b32 s{sFo}, s{scg}, 15")

    def load_ops(j):
        ops = [[f"s_add_u32 s{sn}, s{srot}, {j}", f"s_and_b32 s{sn}, s{sn}, 3", f"s_lshl_b32 s{sK}, s{sn}, 13",
                f"s_add_u32 s{sK}, s{sK}, s{sFo}", f"s_mul_i32 s{sn}, s{sn}, {2*SS}", f"s_add_u32 s{sn}, s{sn}, s{sSo}"]]
        for m in range(5):
            ops.append([f"s_add_u32 s{st1}, s{sw}, {4*m}", f"s_cmp_ge_u32 s{st1}, 10", f"s_cselect_b32 s{st0}, {SS - 10240}, 0",
                        f"s_lshl_b32 s{st1}, s{st1}, 10", f"s_add_u32 m0, s{st1}, {j*20480}", f"s_add_u32 s{st0}, s{st0}, s{st1}",
                        f"s_add_u32 s{st0}, s{st0}, s{sn}",
                        ("vm", f"buffer_load_dwordx4 v{vDm}, {sr(sS,4)}, s{st0} offen lds")])
        for f in range(8):
            n = 8 * j + f
            op = [f"s_add_u32 s{sK}, s{sK}, 4096"] if f == 4 else []
            ops.append(op + [("vm", f"buffer_load_dwordx4 {vr(vB+4*n,4)}, v{vBo}, {sr(sF,4)}, s{sK} offen offset:{1024*(f % 4)}")])
        return ops

    def emit(op, j):
        for x in op:
            if isinstance(x, tuple):
                a.vmem(x[1], f"st{j}")
            else:
                a(x)
    for op in load_ops(0):
        emit(op, 0)
    a.stamp()
    for op in load_ops(1):
        emit(op, 1)
    a.stamp()
    def a_reads(s):
        for rt in range(5):
            off = (s >> 1) * 10240 + rt * 2048
            base = vAad + (s & 1)
            if off > 65535:
                base, off = vT0 + (s & 1), off - 40960
            a.lds(f"ds_read_b128 {vr(vA + 20*(s & 1) + 4*rt, 4)}, v{base} offset:{off}", f"a{s}_{rt}")
    a(f"v_add_u32 v{vT0}, 40960, v{vAad}", f"v_add_u32 v{vT1}, 40960, v{vAad+1}")
    def mfma(s, rt, b, areg):
        acc = vAcc + 8 * rt + 4 * b
        c = "0" if s == 0 else vr(acc, 4)
        a(f"v_mfma_f32_16x16x32_bf16 {vr(acc,4)}, {vr(areg, 4)}, {vr(vB + 4*(2*s+b), 4)}, {c}")

    for j in range(3):
        a.wait(vm=f"st{j}")
        a("s_barrier")
        a.stamp()
        a_reads(4 * j)
        pend = load_ops(j + 2) if j + 2 < 4 else []
        for s in range(4 * j, 4 * j + 4):
            if s + 1 < 4 * j + 4:
                a_reads(s + 1)
            for rt in range(5):
                a.wait(lg=f"a{s}_{rt}")
                for b in range(2):
                    mfma(s, rt, b, vA + 20 * (s & 1) + 4 * rt)
                if pend:
                    emit(pend.pop(0), j + 2)
        assert not pend
        if j == 1:
            bias_loads()
    a(f"s_mov_b32 s{sK}, {NLN2}")
    a(f"s_mul_i32 s{st0}, s{stile}, {80*512}", f"s_lshl_b32 s{st1}, s{scg}, 6", f"s_add_u32 s{sSo}, s{st0}, s{st1}")
    a.wait(vm=["st3", "deg"])
    a("s_barrier")
    a.stamp()

    def rt_reads(rt):
        for s in range(12, 16):
            off = (s >> 1) * 10240 + rt * 2048
            base = vAad + (s & 1)
            if off > 65535:
                base, off = vT0 + (s & 1), off - 40960
            a.lds(f"ds_read_b128 {vr(vA + 16*(rt & 1) + 4*(s-12), 4)}, v{base} offset:{off}", f"z{rt}_{s}")

    def out_ops(rt):
        acc = vAcc + 8 * rt
        ops = [f"s_add_u32 s{st0}, s{sSo}, {rt*16*512}"]
        for r in range(4):
            ops += [f"v_mul_f32 v{vT2}, v{vDg+4*rt+r}, v{vB2}", f"v_fma_f32 v{acc+r}, v{acc+r}, s{sK}, v{vT2}",
                    f"v_mul_f32 v{vT2}, v{vDg+4*rt+r}, v{vB2+1}", f"v_fma_f32 v{acc+4+r}, v{acc+4+r}, s{sK}, v{vT2}",
                    f"v_cvt_pk_bf16_f32 v{acc+r}, v{acc+r}, v{acc+4+r}",
                    f"buffer_store_dword v{acc+r}, v{vSt}, {sr(sO,4)}, s{st0} offen offset:{512*r}{' sc1' if OPT['sc3'] else ''}{' nt' if OPT['nto'] else ''}"]
        return ops
    rt_reads(0)
    a(f"v_and_b32 v{vB2+1}, 0xffff0000, v{vB2}", f"v_lshlrev_b32 v{vB2}, 16, v{vB2}")
    pend = []
    for rt in range(5):
        if rt + 1 < 5:
            rt_reads(rt + 1)
        for s in range(12, 16):
            a.wait(lg=f"z{rt}_{s}")
            for b in range(2):
                mfma(s, rt, b, vA + 16 * (rt & 1) + 4 * (s - 12))
                if s >= 13 or b == 1:
                    for _ in range(4):
                        if pend:
                            a(pend.pop(0))
        assert not pend
        pend = out_ops(rt)
        if rt < 4:
            pend = ["s_nop 0"] + pend
    a.stamp()
    a("s_nop 7")
    a(*pend)
    a.stamp_dump(sS, 20, sw, 4)
    a("K3_END:", "s_endpgm")
    return a.lines, descriptor("k3_kernel", nv + 1 if STAMPS else nv, 102 if STAMPS else 64)


def k4():
    a = Asm()
    header(a, "k4_kernel")
    if OPT["probe"]:
        assert STAMPS
        a("s_cmp_lg_u32 s2, 0", "s_cbranch_scc1 K4_END", "s_load_dwordx2 s[20:21], s[0:1], 80",
          "v_mov_b32 v1, 0", "v_mov_b32 v2, -1", "v_mov_b32 v3, 0")
        for k in range(3):
            a(f"ds_write_b64 v1, v[2:3] offset:{8*k}")
        a("s_waitcnt lgkmcnt(0)", "s_barrier")
        a.srd(24, 20, STAMP_OFF, 4 << 20)
        for k, (n, stride) in enumerate(((200, 8 * 128), (4096, 128), (960, 128))):
            for i in range((n + 1023) // 1024):
                a(f"v_add_u32 v4, {1024*i}, v0", f"v_cmp_gt_u32 vcc, {n}, v4", f"v_mul_u32_u24 v4, {stride}, v4",
                  f"s_mov_b32 s3, {k << 20}", "s_and_saveexec_b64 s[10:11], vcc", f"s_cbranch_execz K4_S{k}_{i}",
                  "buffer_load_dwordx2 v[6:7], v4, s[24:27], s3 offen offset:112", "s_waitcnt vmcnt(0)",
                  f"ds_min_u32 v1, v7 offset:{8*k}", f"ds_max_u32 v1, v6 offset:{8*k+4}", f"K4_S{k}_{i}:", "s_mov_b64 exec, -1")
        a("s_waitcnt lgkmcnt(0)", "s_barrier", "ds_read_b128 v[8:11], v1", "ds_read_b64 v[12:13], v1 offset:16", "s_waitcnt lgkmcnt(0)")
        if OPT["probe"] == 9:
            a("v_mov_b32 v2, 0", "ds_write_b32 v1, v2 offset:32", "s_waitcnt lgkmcnt(0)", "s_barrier")
            a(f"v_cmp_gt_u32 vcc, {OPT['pwn']}, v0", f"v_mul_u32_u24 v4, {OPT['pstride'] * 128}, v0",
              f"s_mov_b32 s3, {(OPT['pk'] << 20) + OPT['pw0'] * 128}", "s_and_saveexec_b64 s[10:11], vcc", "s_cbranch_execz K4_C",
              "buffer_load_dword v6, v4, s[24:27], s3 offen", f"buffer_load_dword v7, v4, s[24:27], s3 offen offset:{4*OPT['pidx']}",
              "s_waitcnt vmcnt(0)", "v_sub_u32 v6, v7, v6", "ds_max_u32 v1, v6 offset:32", "K4_C:", "s_mov_b64 exec, -1",
              "s_waitcnt lgkmcnt(0)", "s_barrier", "ds_read_b32 v9, v1 offset:32", "s_waitcnt lgkmcnt(0)",
              "v_mul_u32_u24 v9, 3277, v9", "v_lshrrev_b32 v9, 16, v9", "v_mov_b32 v8, 0")
        hi, lo = {9: (9, 8), 1: (9, 8), 2: (11, 10), 3: (13, 12), 4: (13, 8), 5: (10, 9), 6: (12, 11), 7: (8, 8)}[OPT["probe"]]
        a(f"v_sub_u32 v14, v{hi}, v{lo}", "v_min_u32 v14, 10000, v14", "v_mul_u32_u24 v14, 10, v14", "s_nop 0", "v_readfirstlane_b32 s12, v14",
          "s_memrealtime s[14:15]", "s_waitcnt lgkmcnt(0)", "K4_L:", "s_memrealtime s[16:17]", "s_waitcnt lgkmcnt(0)",
          "s_sub_u32 s16, s16, s14", "s_cmp_lt_u32 s16, s12", "s_cbranch_scc1 K4_L")
    a("K4_END:", "s_endpgm")
    return a.lines, descriptor("k4_kernel", 16, 32)


def main(path):
    head = [
        "; Edge-featured MPNN layer: out = segment_sum(silu([x[src], x[dst], e] @ w1 + b1) @ w2 + b2, dst)",
        "; k1: P = x@w1[0:256], Q = x@w1[256:512] + b1 (scaled by -log2e), edge partition by dst range, w2 re-layout",
        "; k2: per 64-channel slice, S[n] = sum over in-edges of z/(1+2^z), z = P[src] + Q[n] + e*c",
        "; k3: out = -ln2 * (S @ w2) + deg * b2",
        "; kernarg: x, e_attr, src, dst, w1, b1, w2, b2, out, debug, ws (8 bytes each)",
        f"; @launch kernel=k1_kernel grid=(256,1,1) block=(512,1,1) lds={K1_LDS}",
        f"; @launch kernel=k2_kernel grid=(256,1,1) block=(1024,1,1) lds={K2_LDS}",
        f"; @launch kernel=k3_kernel grid=(256,1,1) block=(256,1,1) lds={K3_LDS}",
        '.amdgcn_target "amdgcn-amd-amdhsa--gfx950"',
        ".text",
    ]
    for i in range(3):
        if OPT["rep"] >> i & 1:
            j = [n for n, l in enumerate(head) if f"kernel=k{i+1}_kernel" in l][0]
            head.insert(j, head[j])
    if OPT["empty"] or OPT["probe"]:
        head.insert(8, "; @launch kernel=k4_kernel grid=(1,1,1) block=(1024,1,1) lds=64")
    body, desc = [], []
    for f in (k1, k2, k3) + ((k4,) if OPT["empty"] or OPT["probe"] else ()):
        b, d = f()
        body += b
        desc += d
    out = head + body + ['.section .rodata,"a"'] + desc
    open(path, "w").write("\n".join(out) + "\n")


if __name__ == "__main__":
    if "--stamps" in sys.argv:
        STAMPS = True
        sys.argv.remove("--stamps")
    for arg in [x for x in sys.argv[1:] if "=" in x]:
        key, val = arg.split("=")
        assert key in OPT, key
        OPT[key] = int(val)
        sys.argv.remove(arg)
    main(sys.argv[1] if len(sys.argv) > 1 else "standalone__edge_featured_mpnn_mpnn__graph.s")
```

```python
import struct
import sys

N, E, D, H = 10000, 160000, 256, 512
TILE1, NT1 = 192, 53
NR = TILE1 * NT1
SS = NR * 128
P_OFF, Q_OFF, S_OFF = 0, 8 * SS, 16 * SS
RNG = 313
NCHUNK, CHUNK, CAP = 32, 5000, 224
R4BLK, R2BLK = NCHUNK * CAP * 4, NCHUNK * CAP * 2
R4_OFF = 16 * SS + 32 * 40 * 8192
R2_OFF = R4_OFF + 32 * R4BLK
NSLOT = 768
B_META = NSLOT * 32
B_FLAG = B_META + 2560
B_CTR = B_FLAG + 4
B_GO = B_CTR + 4
B_CNTA = B_GO + 64
BLOB = 27 * 1024
BLOB_OFF = R2_OFF + 32 * R2BLK
FL_OFF = BLOB_OFF + 32 * BLOB
W2F_OFF = FL_OFF + 32 * 4096
CF_OFF = W2F_OFF + 262144
WS_END = CF_OFF + 4096
SRB = 40 * 8192
MAXDEG = 48
NGRP = 40


def fbits(x):
    return struct.unpack("<I", struct.pack("<f", x))[0]


NLOG2E = fbits(-1.4426950408889634)
NLN2 = fbits(-0.6931471805599453)

assert all((d * 13401) >> 22 == d // RNG for d in range(10016))
assert all((q * 2341) >> 17 == q // 56 for q in range(2048))
assert all((q * 2341) >> 16 == q // 28 for q in range(1024))
assert all((n * 205) >> 11 == n // 10 for n in range(80))


STAMPS = False
OPT = dict(sc1=1, sc3=1, prio=32, empty=0, ipf=1, rot=1, pf=0, light=0, fine=0, la=6, pf0=2, x0pos=0, xrot=0, x1early=0, xspread=1, helper=0, ntx=0, ntw=0, nte=0, blobsc=1, xtouch=7, nto=0, ntw2=0, nolo=1, usem4=1, dup=0, rep=0, clip=1, pfearly=1, pfbar=0, k3opt=1, stag=1, pollf=0, bb=4, early=8, tw2=0, hprio=0, rot3=0, k3w=1, probe=0, pk=0, pidx=0, pw0=0, pwn=0, pstride=1, pfq=0, pfw=1)
STAMP_OFF = 48 << 20


class Asm:
    def stamp_setup(self, vreg, kidx):
        self.st_v, self.st_n, self.st_k = vreg, 0, kidx
        if STAMPS:
            self(f"v_mov_b32 v{vreg}, 0", "s_memrealtime s[100:101]", "s_waitcnt lgkmcnt(0)", f"v_writelane_b32 v{vreg}, s100, 29")
            self.stamp()

    def stamp(self, idx=None):
        if STAMPS and not (OPT["light"] and idx != 27 and self.st_n > 0):
            if idx is None:
                idx = self.st_n
                self.st_n += 1
            self("s_waitcnt lgkmcnt(0)", "s_memtime s[100:101]", "s_waitcnt lgkmcnt(0)", f"v_writelane_b32 v{self.st_v}, s100, {idx}")
            self.lg = []

    def stamp_dump(self, srd, wsreg, swave, nwaves, tmp=2):
        if not STAMPS:
            return
        self("s_waitcnt vmcnt(0)")
        self.stamp(27)
        self("s_memrealtime s[100:101]", "s_waitcnt lgkmcnt(0)", f"v_writelane_b32 v{self.st_v}, s100, 28")
        self("s_getreg_b32 s3, hwreg(HW_REG_HW_ID)", f"v_writelane_b32 v{self.st_v}, s3, 30")
        self("s_getreg_b32 s3, hwreg(HW_REG_XCC_ID)", f"v_writelane_b32 v{self.st_v}, s3, 31")
        self.srd(srd, wsreg, STAMP_OFF + (self.st_k << 20), 1 << 20)
        self(f"s_mul_i32 s3, s2, {nwaves}", f"s_add_u32 s3, s3, s{swave}", "s_lshl_b32 s3, s3, 7", "s_mov_b64 exec, -1",
             f"v_and_b32 v{tmp}, 63, v0", f"v_lshlrev_b32 v{tmp}, 2, v{tmp}", "s_mov_b32 exec_hi, 0",
             f"buffer_store_dword v{self.st_v}, v{tmp}, s[{srd}:{srd+3}], s3 offen")

    def __init__(self):
        self.lines = []
        self.vm = []
        self.lg = []

    def __call__(self, *ls):
        for l in ls:
            self.lines.append(l if l.endswith(":") else "    " + l)

    def vmem(self, line, tag=None):
        self(line)
        self.vm.append(tag)

    def lds(self, line, tag=None):
        self(line)
        self.lg.append(tag)

    @staticmethod
    def _need(q, tags):
        last = -1
        for i, t in enumerate(q):
            if t in tags:
                last = i
        return None if last < 0 else len(q) - 1 - last

    def wait(self, vm=None, lg=None):
        parts = []
        if vm is not None:
            n = 0 if vm == "all" else self._need(self.vm, vm if isinstance(vm, (list, tuple, set)) else [vm])
            if n is not None:
                n = min(n, 63)
                parts.append(f"vmcnt({n})")
                self.vm = self.vm[len(self.vm) - n:] if n else []
        if lg is not None:
            n = 0 if lg == "all" else self._need(self.lg, lg if isinstance(lg, (list, tuple, set)) else [lg])
            if n is not None:
                n = min(n, 15)
                parts.append(f"lgkmcnt({n})")
                self.lg = self.lg[len(self.lg) - n:] if n else []
        if parts:
            self("s_waitcnt " + " ".join(parts))

    def srd(self, s, base, off, size, stride=0):
        if off == 0:
            self(f"s_mov_b32 s{s}, s{base}", f"s_and_b32 s{s+1}, s{base+1}, 0xffff")
        else:
            self(f"s_add_u32 s{s}, s{base}, {off}", f"s_addc_u32 s{s+1}, s{base+1}, 0",
                 f"s_and_b32 s{s+1}, s{s+1}, 0xffff")
        if stride:
            self(f"s_or_b32 s{s+1}, s{s+1}, {stride << 16}")
        self(f"s_mov_b32 s{s+2}, {size}", f"s_mov_b32 s{s+3}, 0x20000")


POLLF = ["sc1", "sc0 sc1", "sc1 nt", "sc0 sc1 nt"]


def wt():
    return " sc1" if OPT["sc1"] else ""


def code_prefetch(a, first, last, wshift, vtmp, vsink, tag):
    if not OPT["ipf"]:
        return
    a(f"s_getpc_b64 s[22:23]", f"{tag}_PC:", f"s_sub_u32 s22, s22, {tag}_PC-{first}", "s_subb_u32 s23, s23, 0",
      "s_lshr_b32 s3, s2, 3", f"s_lshl_b32 s3, s3, {wshift + 10}", f"v_lshlrev_b32 v{vtmp}, 4, v0", f"v_add_u32 v{vtmp}, s3, v{vtmp}",
      f"v_cmp_gt_u32 vcc, {last}-{first}-16, v{vtmp}", "s_and_saveexec_b64 s[4:5], vcc", f"s_cbranch_execz {tag}_PCX",
      f"global_load_dwordx4 {vr(vsink,4)}, v{vtmp}, s[22:23]", f"{tag}_PCX:", "s_mov_b64 exec, -1")


def vr(a, n=1):
    return f"v{a}" if n == 1 else f"v[{a}:{a+n-1}]"


def sr(a, n=1):
    return f"s{a}" if n == 1 else f"s[{a}:{a+n-1}]"


def header(a, name):
    a.lines += [f".globl {name}", ".p2align 8", f".type {name},@function", f"{name}:"]


def descriptor(name, nv, ns):
    acc = (nv + 3) // 4 * 4
    return [".p2align 6", f".amdhsa_kernel {name}", f"  .amdhsa_next_free_vgpr {nv}",
            f"  .amdhsa_next_free_sgpr {ns}", f"  .amdhsa_accum_offset {acc}",
            "  .amdhsa_group_segment_fixed_size 0", "  .amdhsa_kernarg_size 88",
            "  .amdhsa_user_sgpr_count 2", "  .amdhsa_user_sgpr_kernarg_segment_ptr 1",
            "  .amdhsa_system_sgpr_workgroup_id_x 1", "  .amdhsa_float_denorm_mode_32 3",
            ".end_amdhsa_kernel"]


K1_REG = 40960
K1_LDS = 4 * K1_REG
K1_CNT = 0
K1_I16 = 256
K1_I32 = K1_I16 + 32 * CAP * 2
K1_C2 = 44 * 1024
K1_H2 = K1_C2 + 4 + 1280
K1_NB = K1_H2 + 260
K1_BL = 47 * 1024
assert K1_I32 + 32 * CAP * 4 <= K1_C2 and K1_NB + 1280 <= K1_BL


def k1():
    a = Asm()
    header(a, "k1_kernel")
    sX, sW, sO, sB = 24, 28, 32, 36
    sw, stile, su, st0, st1, sWB, sXo, sOo, sK, sMask, sRB, sq, sWo, sWn, sWc = 56, 57, 58, 59, 60, 61, 62, 63, 64, 66, 67, 68, 69, 70, 71
    vLane, vT0, vT1, vT2 = 1, 2, 3, 4
    vAad = 6
    vTr = 14
    vXd = 16
    vWd, vSt = 20, 21
    vBias = 22
    vA = 24
    vAcc = 40
    vW = 104
    vWx = vW + 128
    nv = vWx + 3

    a("s_cmp_ge_u32 s2, 256", "s_cbranch_scc1 K1_END")
    a.stamp_setup(5, 0)
    code_prefetch(a, "k1_kernel", "K2_END", 3, 2, vW + 124, "K1")
    a("s_load_dwordx16 s[4:19], s[0:1], 0", "s_load_dwordx2 s[20:21], s[0:1], 80", "s_load_dwordx2 s[52:53], s[0:1], 72")
    a(f"v_lshrrev_b32 v{vT0}, 6, v0", f"v_and_b32 v{vLane}, 63, v0", f"v_readfirstlane_b32 s{sw}, v{vT0}")
    a(f"s_lshr_b32 s{sq}, s2, 3", f"s_cmp_lt_u32 s{sq}, 4", "s_cbranch_scc1 K1_SORT")
    a(f"s_cmp_ge_u32 s{sw}, 4", "s_cbranch_scc1 K1_END", f"s_sub_u32 s{sq}, s{sq}, 4")
    a(f"s_and_b32 s{su}, s{sq}, 3", f"s_lshl_b32 s{su}, s{su}, 2", f"s_lshr_b32 s{sq}, s{sq}, 2",
      f"s_lshl_b32 s{st0}, s{sq}, 3", f"s_and_b32 s{stile}, s2, 7", f"s_add_u32 s{stile}, s{stile}, s{st0}",
      f"s_add_u32 s{su}, s{su}, s{sw}", f"s_cmp_ge_u32 s{stile}, {NT1}", "s_cbranch_scc1 K1_PREP")

    a(f"s_mul_i32 s{sRB}, s{sw}, {K1_REG}", f"s_add_u32 s{sWB}, s{sRB}, 8192")
    a(f"s_mov_b32 s{sK}, {NLOG2E}", f"s_mov_b32 s{sK+1}, {NLOG2E}")
    a(f"s_lshl_b32 s{sq}, s{sq}, 2" if OPT["rot"] else f"s_mov_b32 s{sq}, 0")
    a(f"v_lshrrev_b32 v{vT0}, 5, v{vLane}", f"s_lshl_b32 s{st0}, s{sw}, 3", f"v_add_u32 v{vT0}, s{st0}, v{vT0}",
      f"v_and_b32 v{vT1}, 31, v{vLane}")
    for m in range(4):
        a(f"v_add_u32 v{vT2}, {2*m}, v{vT0}", f"v_and_b32 v{vXd+m}, 15, v{vT2}", f"v_xor_b32 v{vXd+m}, v{vXd+m}, v{vT1}",
          f"v_add_u32 v{vXd+m}, s{sq}, v{vXd+m}", f"v_and_b32 v{vXd+m}, 31, v{vXd+m}",
          f"v_lshlrev_b32 v{vXd+m}, 4, v{vXd+m}", f"v_lshl_add_u32 v{vXd+m}, v{vT0}, 9, v{vXd+m}")
    a(f"s_mul_i32 s{sXo}, s{stile}, {TILE1*512}")
    sJ = 40
    a(f"s_lshr_b32 s{sJ}, s{su}, 2" if OPT["xrot"] else f"s_mov_b32 s{sJ}, 0")
    for j in range(1, TILE1 // 32):
        a(f"s_add_u32 s{sJ+j}, s{sJ+j-1}, 1", f"s_cmp_eq_u32 s{sJ+j}, {TILE1 // 32}", f"s_cselect_b32 s{sJ+j}, 0, s{sJ+j}")
    a(f"v_lshrrev_b32 v{vT0}, 3, v{vLane}", f"v_and_b32 v{vT1}, 7, v{vLane}", f"v_and_b32 v{vT2}, 16, v{vLane}",
      f"v_lshrrev_b32 v{vT2}, 2, v{vT2}", f"v_xor_b32 v{vT1}, v{vT1}, v{vT2}", f"v_lshlrev_b32 v{vT1}, 4, v{vT1}",
      f"v_lshl_add_u32 v{vWd}, v{vT0}, 10, v{vT1}")
    for i in range(1, 4):
        a(f"v_add_u32 v{vWx+i-1}, {7168*i}, v{vWd}")
    a(f"s_lshr_b32 s{st0}, s{su}, 3", f"s_lshl_b32 s{st0}, s{st0}, 18", f"s_and_b32 s{sMask}, s{su}, 7",
      f"s_lshl_b32 s{sMask}, s{sMask}, 7", f"s_add_u32 s{sWo}, s{st0}, s{sMask}", f"s_lshl_b32 s{sWn}, s{sq}, 13")
    a(f"v_and_b32 v{vT0}, 31, v{vLane}", f"v_lshrrev_b32 v{vT1}, 3, v{vT0}", f"v_mul_u32_u24 v{vAad}, {K1_REG}, v{vT1}",
      f"v_and_b32 v{vT1}, 7, v{vT0}", f"v_lshl_add_u32 v{vAad}, v{vT1}, 9, v{vAad}",
      f"v_lshrrev_b32 v{vT1}, 5, v{vLane}", f"v_and_b32 v{vT2}, 15, v{vLane}", f"v_xor_b32 v{vT2}, v{vT2}, v{vT1}",
      f"v_lshl_add_u32 v{vAad}, v{vT2}, 4, v{vAad}")
    for s in range(1, 8):
        a(f"v_xor_b32 v{vAad+s}, {32*s}, v{vAad}")
    a(f"v_lshlrev_b32 v{vSt}, 9, v{vT1}", f"v_lshl_add_u32 v{vSt}, v{vT0}, 2, v{vSt}")
    a(f"v_lshlrev_b32 v{vTr}, 10, v{vT1}", f"v_bfe_u32 v{vT2}, v{vLane}, 2, 2", f"v_lshl_add_u32 v{vTr}, v{vT2}, 7, v{vTr}",
      f"v_bfe_u32 v{vT2}, v{vLane}, 3, 1", f"v_lshl_add_u32 v{vTr}, v{vT2}, 6, v{vTr}",
      f"v_bfe_u32 v{vT2}, v{vLane}, 4, 1", f"v_lshl_add_u32 v{vTr}, v{vT2}, 5, v{vTr}",
      f"v_and_b32 v{vT2}, 3, v{vLane}", f"v_lshl_add_u32 v{vTr}, v{vT2}, 3, v{vTr}",
      f"v_add_u32 v{vTr}, s{sWB}, v{vTr}", f"v_xor_b32 v{vTr+1}, 64, v{vTr}", f"v_lshlrev_b32 v{vT0}, 1, v{vT0}")
    a(f"s_mul_i32 s{sOo}, s{su}, {SS}", f"s_mul_i32 s{st0}, s{stile}, {TILE1*128}", f"s_add_u32 s{sOo}, s{sOo}, s{st0}")
    a("s_waitcnt lgkmcnt(0)")
    a.srd(sX, 4, 0, N * 512)
    a.srd(sW, 12, 0, 513 * 1024)

    def x_dma(j):
        a(f"s_add_u32 m0, s{sRB}, {j*4096}", f"s_lshl_b32 s{st0}, s{sJ+j}, 14", f"s_add_u32 s{st0}, s{st0}, s{sXo}")
        for m in range(4):
            a.vmem(f"buffer_load_dwordx4 v{vXd+m}, {sr(sX,4)}, s{st0} offen offset:{1024*m}{' nt' if OPT['ntx'] else ''} lds", f"x{j}")

    def w_dma(s):
        if s % 2 == 0:
            a(f"s_add_u32 m0, s{sWB}, {s*2048}", f"s_add_u32 s{sWc}, s{sWo}, s{sWn}")
        elif OPT["x0pos"] == s:
            a(f"s_add_u32 m0, s{sWB}, {(s-1)*2048}", "s_nop 0")
        for i in (2 * (s % 2), 2 * (s % 2) + 1):
            reg = vWd if i == 0 else vWx + i - 1
            a.vmem(f"buffer_load_dwordx4 v{reg}, {sr(sW,4)}, s{sWc} offen offset:{1024*i}{' nt' if OPT['ntw'] else ''} lds", f"w{s}")
        if s % 2 == 1:
            a(f"s_add_u32 s{sWn}, s{sWn}, 32768", f"s_and_b32 s{sWn}, s{sWn}, 0x3ffff")

    def x_touch():
        a(f"s_lshr_b32 s{st0}, s{su}, 2", f"s_mul_i32 s{st0}, s{st0}, {TILE1*128}", f"s_mul_i32 s{st1}, s{sw}, {TILE1*32}",
          f"s_add_u32 s{st0}, s{st0}, s{st1}", f"s_add_u32 s{st0}, s{st0}, s{sXo}", f"v_lshlrev_b32 v{vT1}, 7, v{vLane}",
          f"s_mov_b32 exec_hi, {(1 << (TILE1 // 4 - 32)) - 1}")
        a.vmem(f"buffer_load_dword v{vT2}, v{vT1}, {sr(sX,4)}, s{st0} offen{' nt' if OPT['ntx'] else ''}", "touch")
        a("s_mov_b32 exec_hi, -1")

    LA = OPT["la"]
    a.stamp()
    if OPT["xtouch"] == 1:
        x_touch()
    for s in range(LA):
        if s == OPT["x0pos"]:
            x_dma(0)
        w_dma(s)
        if OPT["xtouch"] == 2 + s:
            x_touch()
    if OPT["x1early"]:
        x_dma(1)
    a.srd(sO, 20, 0, 16 * SS)
    if OPT["dup"]:
        a.srd(48, 20, 64 << 20, 16 * SS)
    a.srd(sB, 14, 0, 1024)
    a(f"s_cmp_ge_u32 s{su}, 8", f"s_cselect_b32 s{sB+2}, s{sB+2}, 0")
    a.stamp()

    def wfrag(s, b):
        return vW + (s * 2 + b) * 4

    def a_read(j, s):
        a.lds(f"ds_read_b128 {vr(vA + 4*((16*j+s) % 4), 4)}, v{vAad + (s & 7)} offset:{4096*j + 256*(s >> 3)}", f"a{j}_{s}")

    def w_read(s):
        a.wait(vm=f"w{s}")
        for b in range(2):
            for q in range(2):
                a.lds(f"ds_read_b64_tr_b16 {vr(wfrag(s, b) + 2*q, 2)}, v{vTr+b} offset:{s*2048 + q*512}", f"t{s}")

    def mfma(j, s, b):
        acc = vAcc + 32 * (j & 1) + 16 * b
        c = "0" if s == 0 else vr(acc, 16)
        a(f"v_mfma_f32_32x32x16_bf16 {vr(acc,16)}, {vr(vA + 4*((16*j+s) % 4), 4)}, {vr(wfrag(s, b), 4)}, {c}")

    def epilogue_ops(j):
        acc = vAcc + 32 * (j & 1)
        ops = [("s", f"s_lshl_b32 s{st1}, s{sJ+j}, 12"), ("s", f"s_add_u32 s{st1}, s{st1}, s{sOo}")]
        for r in range(0, 16, 2):
            for rr in (r, r + 1):
                ops.append(("v", f"v_fma_f32 v{acc+rr}, v{acc+rr}, s{sK}, v{vBias}"))
                ops.append(("v", f"v_fma_f32 v{acc+16+rr}, v{acc+16+rr}, s{sK}, v{vBias+1}"))
            for rr in (r, r + 1):
                ops.append(("v", f"v_cvt_pk_bf16_f32 v{acc+rr}, v{acc+rr}, v{acc+16+rr}"))
            for rr in (r, r + 1):
                ops.append(("m", f"buffer_store_dword v{acc+rr}, v{vSt}, {sr(sO,4)}, s{st1} offen offset:{(8*(rr>>2) + (rr&3))*128}{wt()}"))
        return ops

    def emit_op(op):
        if op[0] == "m":
            a.vmem(op[1], "st")
            if OPT["dup"]:
                a.vmem(op[1].replace(sr(sO, 4), sr(48, 4)), "st")
        else:
            a(op[1])

    NJ = TILE1 // 32
    a.wait(vm="x0")
    a("s_barrier")
    a.stamp()
    PF0 = OPT["pf0"]
    for s in range(PF0):
        w_read(s)
        a_read(0, s)
    for s in range(16):
        if s + PF0 < 16:
            w_read(s + PF0)
            a_read(0, s + PF0)
        a.wait(lg=[f"t{s}", f"a0_{s}"])
        mfma(0, s, 0)
        if s + LA < 16:
            w_dma(s + LA)
        elif s + LA == 16:
            if not OPT["x1early"]:
                x_dma(1)
            a.vmem(f"buffer_load_ushort v{vBias}, v{vT0}, {sr(sB,4)}, s{sMask} offen", "x1")
            a.vmem(f"buffer_load_ushort v{vBias+1}, v{vT0}, {sr(sB,4)}, s{sMask} offen offset:64", "x1")
        elif s + LA - 15 < (3 if OPT["xspread"] else NJ):
            x_dma(s + LA - 15)
        mfma(0, s, 1)
        if OPT["fine"] and s % 2 == 1 and s < 15:
            a.stamp()
    PFA = 3
    a.stamp()
    a.wait(vm="x1")
    a("s_barrier")
    for s in range(PFA):
        a_read(1, s)
    a(f"v_lshlrev_b32 v{vBias}, 16, v{vBias}", f"v_lshlrev_b32 v{vBias+1}, 16, v{vBias+1}",
      f"v_mul_f32 v{vBias}, s{sK}, v{vBias}", f"v_mul_f32 v{vBias+1}, s{sK}, v{vBias+1}")
    a.stamp()
    for j in range(1, NJ):
        ops = epilogue_ops(j - 1)
        for s in range(16):
            if s + PFA == 16 and j < NJ - 1:
                a.wait(vm=f"x{j+1}")
                a("s_barrier")
            a.wait(lg=f"a{j}_{s}")
            mfma(j, s, 0)
            if OPT["xspread"] and s == 1 and j + 2 < NJ:
                x_dma(j + 2)
            if s + PFA < 16:
                a_read(j, s + PFA)
            elif j < NJ - 1:
                a_read(j + 1, s + PFA - 16)
            if s >= 3:
                for _ in range(3 if s == 3 else 2):
                    if ops:
                        emit_op(ops.pop(0))
            mfma(j, s, 1)
            if s >= 3:
                for _ in range(3):
                    if ops:
                        emit_op(ops.pop(0))
        assert not ops
        a.stamp()
    a("s_nop 15")
    for op in epilogue_ops(NJ - 1):
        emit_op(op)
    a.stamp_dump(sX, 20, sw, 8)
    a("s_endpgm")

    a("K1_PREP:")
    a.vm, a.lg = [], []
    a(f"s_cmp_ge_u32 s{stile}, {NT1 + 2}", "s_cbranch_scc1 K1_CPREP")
    sW2, sF = sX, sW
    vL = vW
    vOut = vW + 32
    a(f"s_sub_u32 s{st0}, s{stile}, {NT1}", f"s_lshl_b32 s{st0}, s{st0}, 4", f"s_add_u32 s{su}, s{su}, s{st0}")
    a(f"v_and_b32 v{vT0}, 15, v{vLane}", f"v_lshrrev_b32 v{vT1}, 4, v{vLane}", f"v_lshlrev_b32 v{vT0}, 2, v{vT0}",
      f"v_lshl_add_u32 v{vWd}, v{vT1}, 11, v{vT0}", f"v_lshlrev_b32 v{vSt}, 4, v{vLane}")
    a(f"s_lshr_b32 s{st0}, s{su}, 2", f"s_lshl_b32 s{st0}, s{st0}, 6", f"s_and_b32 s{st1}, s{su}, 3",
      f"s_lshl_b32 s{st1}, s{st1}, 16", f"s_add_u32 s{sXo}, s{st0}, s{st1}", f"s_lshl_b32 s{sOo}, s{su}, 13")
    a("s_waitcnt lgkmcnt(0)")
    a.srd(sW2, 16, 0, 512 * 512)
    a.srd(sF, 20, W2F_OFF, 262144)
    for s in range(4):
        for i in range(8):
            row = (s >> 1) * 64 + 16 * (s & 1) + (i >> 1) + 32 * (i & 1)
            a(f"s_add_u32 s{st0}, s{sXo}, {row*512}")
            a.vmem(f"buffer_load_dword v{vL + 8*s + i}, v{vWd}, {sr(sW2,4)}, s{st0} offen{' nt' if OPT['ntw2'] else ''}", f"l{s}")
    a(f"s_mov_b32 s{sK}, 0x05040100", f"s_mov_b32 s{sK+1}, 0x07060302")
    for s in range(4):
        a.wait(vm=f"l{s}")
        for b in range(2):
            o = vOut + 8 * s + 4 * b
            for m in range(4):
                a(f"v_perm_b32 v{o+m}, v{vL + 8*s + 2*m + 1}, v{vL + 8*s + 2*m}, s{sK+b}")
            a(f"s_add_u32 s{st0}, s{sOo}, {(2*s+b)*1024}")
            a.vmem(f"buffer_store_dwordx4 {vr(o,4)}, v{vSt}, {sr(sF,4)}, s{st0} offen{wt()}")
    a("s_endpgm")

    a("K1_CPREP:")
    a(f"s_cmp_ge_u32 s{su}, 8", "s_cbranch_scc1 K1_END")
    a(f"v_and_b32 v{vT1}, 1, v{vLane}", f"v_lshlrev_b32 v{vT1}, 6, v{vT1}",
      f"v_bfe_u32 v{vT2}, v{vLane}, 2, 1", f"v_lshl_add_u32 v{vT1}, v{vT2}, 5, v{vT1}",
      f"v_bfe_u32 v{vT2}, v{vLane}, 3, 1", f"v_lshl_add_u32 v{vT1}, v{vT2}, 2, v{vT1}",
      f"v_bfe_u32 v{vT2}, v{vLane}, 1, 1", f"v_lshl_add_u32 v{vT1}, v{vT2}, 1, v{vT1}",
      f"v_bfe_u32 v{vT0}, v{vLane}, 4, 1", f"v_lshrrev_b32 v{vT2}, 5, v{vLane}", f"v_cmp_eq_u32 vcc, v{vT0}, v{vT2}",
      f"v_lshlrev_b32 v{vT0}, 3, v{vLane}", f"s_lshl_b32 s{st0}, s{su}, 7", f"s_lshl_b32 s{st1}, s{su}, 9",
      f"s_mov_b32 s{sK}, {NLOG2E}", "s_waitcnt lgkmcnt(0)")
    a.srd(sX, 12, 512 * 1024, 1024)
    a.srd(sW, 20, CF_OFF, 4096)
    for i in range(4):
        a(f"buffer_load_ushort v{8+i}, v{vT1}, {sr(sX,4)}, s{st0} offen offset:{8*i}")
    a("s_waitcnt vmcnt(0)")
    for i in range(4):
        a(f"v_lshlrev_b32 v{8+i}, 16, v{8+i}", f"v_mul_f32 v{8+i}, s{sK}, v{8+i}")
    a("v_cvt_pk_bf16_f32 v12, v8, v9", "v_cvt_pk_bf16_f32 v13, v10, v11", "v_cndmask_b32 v12, 0, v12, vcc", "v_cndmask_b32 v13, 0, v13, vcc",
      f"buffer_store_dwordx2 v[12:13], v{vT0}, {sr(sW,4)}, s{st1} offen{wt()}", "s_endpgm")

    a("K1_SORT:")
    a.vm, a.lg = [], []
    nt = " nt" if OPT["nte"] else ""
    sDst, sSrc, sE, sR4, sR2, sDb, sBl, sDg = 24, 28, 32, 36, 40, 44, 24, 28
    sc = su
    vDst, vSrc, vEe, vSl, vRg, vRd, vCn, vRo = 8, 20, 32, 40, 56, 72, 96, 100
    vOne, vBig, vO16, vO8 = 6, 7, 108, 109
    a(f"s_mov_b32 s{sc}, s2")
    a(f"v_lshlrev_b32 v{vO16}, 4, v0", f"v_lshlrev_b32 v{vO8}, 3, v0")
    a(f"s_mul_i32 s{st0}, s{sc}, {CHUNK*4}", f"s_mul_i32 s{st1}, s{sc}, {CHUNK*2}")
    for r in range(4):
        a(f"v_mov_b32 v{vRd+r}, 0", f"v_mov_b32 v{vRd+4+r}, 0xffff")
    for i in range(2):
        a(f"ds_write_b128 v{vO16}, {vr(vRd,4)} offset:{8192*i}")
    a(f"ds_write_b64 v{vO8}, {vr(vRd,2)} offset:{K1_C2}")
    a("s_waitcnt lgkmcnt(0)")
    a.srd(sDst, 10, f"s{st0}", CHUNK * 4)
    for i in range(3):
        a(f"s_mov_b32 s{sXo}, {8192*i}")
        a.vmem(f"buffer_load_dwordx4 {vr(vDst+4*i,4)}, v{vO16}, {sr(sDst,4)}, s{sXo} offen{nt}", f"d{i}")
    a("s_barrier")
    a.srd(sSrc, 8, f"s{st0}", CHUNK * 4)
    a.srd(sE, 6, f"s{st1}", CHUNK * 2)
    for i in range(3):
        a(f"s_mov_b32 s{st0}, {8192*i}", f"s_mov_b32 s{st1}, {4096*i}")
        a.vmem(f"buffer_load_dwordx4 {vr(vSrc+4*i,4)}, v{vO16}, {sr(sSrc,4)}, s{st0} offen{nt}", f"s{i}")
        a.vmem(f"buffer_load_dwordx2 {vr(vEe+2*i,2)}, v{vO8}, {sr(sE,4)}, s{st1} offen{nt}", f"s{i}")
    a.stamp(7)
    a.srd(sR4, 20, R4_OFF, 32 * R4BLK)
    a.srd(sR2, 20, R2_OFF, 32 * R2BLK)
    a.srd(sDb, 52, 0, 256)
    a(f"s_mov_b32 s{st0}, 13401", f"s_mov_b32 s{st1}, {-RNG & 0xffffffff}", f"s_mov_b32 s{sMask}, 0xffff0000",
      f"v_mov_b32 v{vOne}, 1", f"v_cmp_gt_u32 vcc, {CHUNK//4 - 1024}, v0", f"s_mov_b64 {sr(sK,2)}, vcc",
      f"s_mov_b32 s{sXo}, {CAP}")

    a.stamp(8)
    for i in range(3):
        a.wait(vm=f"d{i}")
        if i == 0:
            a.stamp(9)
        if i == 2:
            a(f"s_mov_b64 exec, {sr(sK,2)}")
        for n in range(4 * i, 4 * i + 4):
            a(f"v_mul_u32_u24 v{vRg+n}, s{st0}, v{vDst+n}", f"v_lshrrev_b32 v{vRg+n}, 22, v{vRg+n}",
              f"v_lshlrev_b32 v{vSl+n}, 2, v{vRg+n}")
            a.lds(f"ds_add_rtn_u32 v{vSl+n}, v{vSl+n}, v{vOne} offset:{K1_CNT}", f"sl{n}")
            a(f"v_mad_i32_i24 v{vDst+n}, v{vRg+n}, s{st1}, v{vDst+n}", f"v_lshl_add_u32 v{vDst+n}, v{vDst+n}, 2, 4")
        if i == 2:
            a("s_mov_b64 exec, -1")
    a.stamp(10)
    for n in range(12):
        if n == 8:
            a(f"s_mov_b64 exec, {sr(sK,2)}")
        a.wait(lg=f"sl{n}")
        a(f"v_min_u32 v{vSl+n}, {CAP - 1}, v{vSl+n}", f"v_mad_u32_u24 v{vSl+n}, v{vRg+n}, s{sXo}, v{vSl+n}",
          f"v_lshlrev_b32 v{vRg+n}, 1, v{vSl+n}")
        a.lds(f"ds_write_b16 v{vRg+n}, v{vDst+n} offset:{K1_I16}")
    a("s_mov_b64 exec, -1")
    a(f"s_mul_i32 s{st0}, s{sc}, {CAP*4}", f"s_mul_i32 s{st1}, s{sc}, {CAP*2}",
      f"s_mov_b32 s{sXo}, {R4BLK - CAP*4}", f"s_mov_b32 s{sOo}, {R2BLK - CAP*2}")
    for i in range(2):
        a(f"v_add_u32 v{vT2}, {512*i}, v0", f"v_mul_u32_u24 v{vT2}, 2341, v{vT2}", f"v_lshrrev_b32 v{vT2}, 16, v{vT2}",
          f"v_mad_u32_u24 v{vRo+4+i}, v{vT2}, s{sOo}, v{vO16}", f"v_add_u32 v{vRo+4+i}, {8192*i}, v{vRo+4+i}",
          f"v_lshlrev_b32 v{vCn+i}, 2, v{vT2}")
    a.wait(lg="all")
    a("s_barrier")
    a.stamp(1)
    for i in range(2):
        a.lds(f"ds_read_b128 {vr(vRd+16+4*i,4)}, v{vO16} offset:{K1_I16 + 8192*i}", f"h{i}")
        a.lds(f"ds_read_b32 v{vCn+i}, v{vCn+i} offset:{K1_CNT}", f"h{i}")
    for i in range(2):
        a.wait(lg=f"h{i}")
        a(f"v_cmp_ge_u32 vcc, {CAP}, v{vCn+i}", "s_nop 1", f"v_cndmask_b32 v{vRd+16+4*i}, -1, v{vRd+16+4*i}, vcc")
        a.vmem(f"buffer_store_dwordx4 {vr(vRd+16+4*i,4)}, v{vRo+4+i}, {sr(sR2,4)}, s{st1} offen sc1", "r2")
    for i in range(3):
        a.wait(vm=f"s{i}")
        if i == 2:
            a(f"s_mov_b64 exec, {sr(sK,2)}")
        for n in range(4 * i, 4 * i + 4):
            if n & 1:
                a(f"v_and_or_b32 v{vSrc+n}, v{vEe+n//2}, s{sMask}, v{vSrc+n}")
            else:
                a(f"v_lshl_or_b32 v{vSrc+n}, v{vEe+n//2}, 16, v{vSrc+n}")
            a(f"v_lshlrev_b32 v{vSl+n}, 2, v{vSl+n}")
            a.lds(f"ds_write_b32 v{vSl+n}, v{vSrc+n} offset:{K1_I32}")
    a("s_mov_b64 exec, -1")
    for i in range(4):
        a(f"v_add_u32 v{vT2}, {512*i}, v0", f"v_mul_u32_u24 v{vT2}, 2341, v{vT2}", f"v_lshrrev_b32 v{vT2}, 17, v{vT2}",
          f"v_mad_u32_u24 v{vRo+i}, v{vT2}, s{sXo}, v{vO16}", f"v_add_u32 v{vRo+i}, {8192*i}, v{vRo+i}")
    a(f"s_lshl_b32 s{sWo}, s{sc}, 2", f"v_mov_b32 v{vBig}, s{sWo}")
    a.wait(vm="all", lg="all")
    a("s_barrier")
    a.stamp(11)
    a(f"s_cmp_lg_u32 s{sw}, 0", "s_cbranch_scc1 K1_F1", "s_mov_b64 exec, 1",
      f"buffer_store_dword v{vOne}, v{vBig}, {sr(sDb,4)}, 0 offen sc1", "s_mov_b64 exec, -1", "K1_F1:")
    for i in range(4):
        a.lds(f"ds_read_b128 {vr(vRd+4*i,4)}, v{vO16} offset:{K1_I32 + 8192*i}", f"g{i}")
    for i in range(4):
        a.wait(lg=f"g{i}")
        a.vmem(f"buffer_store_dwordx4 {vr(vRd+4*i,4)}, v{vRo+i}, {sr(sR4,4)}, s{st0} offen sc1")
    a(f"s_mul_i32 s{st0}, s{sc}, {R4BLK}", f"s_add_u32 s{st0}, s{st0}, {R4_OFF}", f"s_mul_i32 s{st1}, s{sc}, {R2BLK}",
      f"s_add_u32 s{st1}, s{st1}, {R2_OFF}", f"s_mul_i32 s{sXo}, s{sc}, {BLOB}", f"s_add_u32 s{sXo}, s{sXo}, {BLOB_OFF}",
      f"s_lshl_b32 s{sOo}, s{sc}, 12", f"s_add_u32 s{sOo}, s{sOo}, {FL_OFF}")
    a.srd(sBl, 20, f"s{sXo}", BLOB)
    a.srd(sDg, 20, f"s{sOo}", 3072)
    for r in range(4):
        a(f"v_mov_b32 v{vDst+r}, 0xffff")
    a(f"v_add_u32 v{vT0}, {K1_BL}, v{vO16}", f"v_mov_b32 v{vDst+4}, 0", f"v_mov_b32 v{vDst+5}, 0", f"v_mov_b32 v{vDst+6}, {K1_BL + BLOB}")
    for i in range(3):
        a(f"ds_write_b128 v{vT0}, {vr(vDst,4)} offset:{8192*i}")
    a(f"v_add_u32 v{vT1}, {K1_BL + B_META}, v{vO8}", f"ds_write_b64 v{vT1}, {vr(vDst+4,2)}",
      f"v_mov_b32 v{vT1}, {K1_NB - 4}", f"ds_write_b32 v{vT1}, v{vDst+6}")
    a(f"buffer_store_dwordx2 {vr(vDst+4,2)}, v{vO8}, {sr(sDg,4)}, 0 offen sc1")
    for n in range(16):
        a(f"v_mov_b32 v{48+n}, 0")
    a("s_waitcnt vmcnt(0) lgkmcnt(0)")
    a.vm, a.lg = [], []
    a.srd(sR4, 20, f"s{st0}", R4BLK)
    a.srd(sR2, 20, f"s{st1}", R2BLK)
    a("s_barrier")
    a.stamp(2)

    vFa, vFd = 110, 111
    a(f"v_lshlrev_b32 v{vFa}, 2, v{vLane}")

    def poll_issue(tag, word, wave):
        a(f"s_cmp_lg_u32 s{sw}, {wave}", f"s_cbranch_scc1 K1_{tag}I", "s_mov_b32 exec_hi, 0",
          f"buffer_load_dword v{vFd}, v{vFa}, {sr(sDb,4)}, 0 offen offset:{word} {POLLF[OPT['pollf']]}", "s_mov_b32 exec_hi, -1", f"K1_{tag}I:")

    def poll(tag, word, wave):
        a(f"s_cmp_lg_u32 s{sw}, {wave}", f"s_cbranch_scc1 K1_{tag}X", "s_mov_b32 exec_hi, 0", f"s_mov_b32 s{sWc}, 0")
        a(f"K1_{tag}L:")
        a("s_waitcnt vmcnt(0)", f"v_cmp_eq_u32 vcc, 0, v{vFd}", f"s_cbranch_vccz K1_{tag}D",
          f"buffer_load_dword v{vFd}, v{vFa}, {sr(sDb,4)}, 0 offen offset:{word} {POLLF[OPT['pollf']]}", f"s_add_u32 s{sWc}, s{sWc}, 1",
          f"s_cmp_lt_u32 s{sWc}, 0x40000", f"s_cbranch_scc1 K1_{tag}L")
        a("s_waitcnt vmcnt(0)", f"v_mov_b32 v{vFd}, {K1_BL + B_FLAG}",
          f"ds_write_b32 v{vFd}, v{vOne}", "s_waitcnt lgkmcnt(0)")
        a(f"K1_{tag}D:", "s_mov_b64 exec, -1", f"K1_{tag}X:")
    a(f"s_cmp_lg_u32 s{sw}, 1", "s_cbranch_scc1 K1_F2", "s_mov_b64 exec, 1",
      f"buffer_store_dword v{vOne}, v{vBig}, {sr(sDb,4)}, 0 offen offset:128 sc1", "s_mov_b64 exec, -1", "K1_F2:")
    poll_issue("PA", 0, 0)
    poll("PA", 0, 0)
    a("s_barrier")
    a.stamp(3)
    vR2, vR4, vDl, vS2 = 8, 16, 32, 48
    vNd, vDeg, vP, vBin, vPos, vMa = 64, 65, 66, 67, 70, 71
    for i in range(4):
        a(f"s_mov_b32 s{st0}, {4096*i}")
        a.vmem(f"buffer_load_dwordx2 {vr(vR2+2*i,2)}, v{vO8}, {sr(sR2,4)}, s{st0} offen sc1", f"h{i}")
    a(f"v_mov_b32 v{vT2}, 0")
    for i in range(4):
        a.wait(vm=f"h{i}")
        if i == 0:
            a.stamp(12)
            poll_issue("PB", 128, 7)
        for n in range(4 * i, 4 * i + 4):
            if n & 1:
                a(f"v_ashrrev_i32 v{vDl+n}, 16, v{vR2+n//2}")
            else:
                a(f"v_bfe_i32 v{vDl+n}, v{vR2+n//2}, 0, 16")
        a(f"v_min_i32 v{vT2}, v{vDl+4*i}, v{vT2}")
        for n in range(4 * i, 4 * i + 4):
            a(f"v_cmpx_lt_i32 vcc, 0, v{vDl+n}")
            a.lds(f"ds_add_rtn_u32 v{vS2+n}, v{vDl+n}, v{vOne} offset:{K1_C2}")
            a("s_mov_b64 exec, -1")
    a(f"v_mov_b32 v{vT0}, {K1_BL + B_FLAG}", f"v_cmpx_gt_i32 vcc, 0, v{vT2}")
    a.lds(f"ds_write_b32 v{vT0}, v{vOne}")
    a("s_mov_b64 exec, -1")
    a.wait(lg="all")
    poll("PB", 128, 7)
    a("s_barrier")
    a.stamp(4)
    for i in range(4):
        a(f"s_mov_b32 s{st0}, {8192*i}")
        a.vmem(f"buffer_load_dwordx4 {vr(vR4+4*i,4)}, v{vO16}, {sr(sR4,4)}, s{st0} offen sc1", f"g{i}")
    a(f"s_cmp_ge_u32 s{sw}, 5", "s_cbranch_scc1 K1_D1")
    a(f"v_lshlrev_b32 v{vT1}, 2, v0", f"ds_read_b32 v{vDeg}, v{vT1} offset:{K1_C2 + 4}", "s_waitcnt lgkmcnt(0)")
    a(f"v_cmp_lt_u32 {sr(sK,2)}, {MAXDEG}, v{vDeg}", f"v_min_u32 v{vDeg}, {MAXDEG}, v{vDeg}",
      f"v_sub_u32 v{vBin}, 63, v{vDeg}", f"v_lshlrev_b32 v{vBin}, 2, v{vBin}",
      f"ds_add_rtn_u32 v{vP}, v{vBin}, v{vOne} offset:{K1_H2}",
      f"s_mov_b64 exec, {sr(sK,2)}", f"ds_write_b32 v{vT0}, v{vOne}", "s_mov_b64 exec, -1", "s_waitcnt lgkmcnt(0)")
    a("K1_D1:", "s_barrier")

    def scan(reg):
        a("s_nop 1")
        for ctrl in ("row_shr:1", "row_shr:2", "row_shr:4", "row_shr:8"):
            a(f"v_add_u32_dpp v{reg}, v{reg}, v{reg} {ctrl} row_mask:0xf bank_mask:0xf bound_ctrl:1", "s_nop 1")
        a(f"v_add_u32_dpp v{reg}, v{reg}, v{reg} row_bcast:15 row_mask:0xa bank_mask:0xf", "s_nop 1")
        a(f"v_add_u32_dpp v{reg}, v{reg}, v{reg} row_bcast:31 row_mask:0xc bank_mask:0xf", "s_nop 1")
    vA0, vA1 = 68, 69
    a(f"s_cmp_ge_u32 s{sw}, 5", "s_cbranch_scc1 K1_D2")
    a(f"v_lshlrev_b32 v{vA0}, 2, v{vLane}", f"ds_read_b32 v{vA1}, v{vA0} offset:{K1_H2}", "s_waitcnt lgkmcnt(0)",
      f"v_mov_b32 v{vA0}, v{vA1}")
    scan(vA0)
    a(f"v_sub_u32 v{vA0}, v{vA0}, v{vA1}", f"ds_bpermute_b32 v{vPos}, v{vBin}, v{vA0}",
      f"v_lshlrev_b32 v{vNd}, 16, v0", "s_waitcnt lgkmcnt(0)",
      f"v_add_u32 v{vPos}, v{vPos}, v{vP}", f"v_lshlrev_b32 v{vMa}, 3, v{vPos}", f"v_add_u32 v{vMa}, {K1_BL + B_META}, v{vMa}",
      f"ds_write_b64 v{vMa}, {vr(vNd,2)}", "s_waitcnt lgkmcnt(0)")
    a("K1_D2:", "s_barrier")
    a(f"s_cmp_ge_u32 s{sw}, 5", "s_cbranch_scc1 K1_D3")
    a(f"v_lshlrev_b32 v{vA0}, 6, v{vLane}", f"v_add_u32 v{vA0}, {K1_BL + B_META}, v{vA0}", f"ds_read_b32 v{vA1}, v{vA0} offset:4",
      f"v_cmp_gt_u32 vcc, {NGRP}, v{vLane}", "s_waitcnt lgkmcnt(0)", "s_nop 0",
      f"v_cndmask_b32 v{vA1}, 0, v{vA1}, vcc", f"v_mov_b32 v{vA0}, v{vA1}")
    scan(vA0)
    a(f"v_readlane_b32 s{st0}, v{vA0}, 63", f"v_sub_u32 v{vA0}, v{vA0}, v{vA1}", f"v_lshlrev_b32 v{vA0}, 5, v{vA0}",
      f"v_lshrrev_b32 v{vA1}, 3, v{vPos}", f"v_lshlrev_b32 v{vA1}, 2, v{vA1}", f"ds_bpermute_b32 v{vA1}, v{vA1}, v{vA0}",
      f"v_and_b32 v{vPos}, 7, v{vPos}",
      f"s_cmp_le_u32 s{st0}, {NSLOT - 8}", "s_cbranch_scc1 K1_FITS", f"ds_write_b32 v{vT0}, v{vOne}", "K1_FITS:",
      "s_waitcnt lgkmcnt(0)", f"v_lshl_add_u32 v{vA1}, v{vPos}, 2, v{vA1}", f"v_add_u32 v{vA0}, {K1_BL}, v{vA1}",
      f"ds_write_b32 v{vT1}, v{vA0} offset:{K1_NB}", f"ds_write_b16 v{vMa}, v{vA1}", "s_waitcnt lgkmcnt(0)")
    a("K1_D3:", "s_barrier")
    a.stamp(5)
    a.lg = []
    a(f"ds_read_b32 v{vT2}, v{vT0}")
    for n in range(8):
        a.lds(f"ds_read_b32 v{vR2+n}, v{vDl+n} offset:{K1_NB - 4}", f"nb{n}")
    a("s_waitcnt lgkmcnt(8)", f"v_readfirstlane_b32 s{st0}, v{vT2}", f"s_cmp_lg_u32 s{st0}, 0", "s_cbranch_scc1 K1_NOSC")
    for n in range(16):
        a.wait(lg=f"nb{n}", vm=f"g{n//4}")
        a(f"v_lshl_add_u32 v{vS2+n}, v{vS2+n}, 5, v{vR2 + (n & 7)}")
        if n < 8:
            a.lds(f"ds_read_b32 v{vR2+n}, v{vDl+n+8} offset:{K1_NB - 4}", f"nb{n+8}")
        a.lds(f"ds_write_b32 v{vS2+n}, v{vR4+n}")
    a("s_branch K1_SCD", "K1_NOSC:", "s_waitcnt vmcnt(0)", "K1_SCD:", "s_waitcnt lgkmcnt(0)")
    a.vm, a.lg = [], []
    a("s_barrier")
    a.stamp(6)
    a(f"v_add_u32 v{vT0}, {K1_BL}, v{vO16}")
    for i in range(4):
        a.lds(f"ds_read_b128 {vr(vR4+4*i,4)}, v{vT0} offset:{8192*i}", f"o{i}")
    for i in range(4):
        a.wait(lg=f"o{i}")
        a(f"s_mov_b32 s{st0}, {8192*i}")
        a.vmem(f"buffer_store_dwordx4 {vr(vR4+4*i,4)}, v{vO16}, {sr(sBl,4)}, s{st0} offen{' sc1' if OPT['blobsc'] else ''}")
    a.stamp_dump(sX, 20, sw, 8)
    a("K1_END:", "s_endpgm")
    return a.lines, descriptor("k1_kernel", nv, 102 if STAMPS else 72)


K2_BB = 28 * 1024
K2_AB = K2_BB + 98304
K2_LDS = K2_BB + 131072


def k2():
    a = Asm()
    header(a, "k2_kernel")
    sBl, sP, sQ, sS, sW1, sF, sPf, sO = 24, 28, 32, 36, 40, 44, 48, 76
    sw, sk, srng, scnt, st0, st1, sg, sdmax, sdmin, sSo, sK, sBig, sOne = 52, 53, 54, 55, 56, 57, 58, 59, 60, 61, 62, 64, 66
    sM = 68
    sFl, spend, sEx = 80, 84, 86
    vLane, vT0, vT1, vT2, vT3 = 1, 2, 3, 4, 5
    vI4, vAh, vQi = 6, 8, 10
    vE, vEs = 12, 14
    vIdx = 16
    vSh, vEll, vEe, vDeg, vSt, vMetL, vHoff = 24, 25, 26, 27, 28, 29, 30
    vQ = 32
    vNum, vDen, vT = 48, 56, 64
    vP = 72
    vZ = 88
    vNxt, vGo, vCtr, vInc, vL16 = 120, 121, 126, 123, 124
    nv = 127

    a("s_cmp_ge_u32 s2, 256", "s_cbranch_scc1 K2_END")
    a.stamp_setup(31, 1)
    a("s_load_dwordx16 s[4:19], s[0:1], 0", "s_load_dwordx2 s[20:21], s[0:1], 80", "s_load_dwordx2 s[22:23], s[0:1], 64")
    a(f"v_lshrrev_b32 v{vT0}, 6, v0", f"v_and_b32 v{vLane}, 63, v0", f"v_readfirstlane_b32 s{sw}, v{vT0}")
    a(f"s_and_b32 s{sk}, s2, 7", f"s_lshr_b32 s{srng}, s2, 3")
    a(f"s_mul_i32 s{st0}, s{srng}, {RNG}", f"s_sub_u32 s{scnt}, {N}, s{st0}", f"s_min_u32 s{scnt}, s{scnt}, {RNG}")
    a(f"s_mul_i32 s{st1}, s{srng}, {BLOB}", f"s_add_u32 s{st1}, s{st1}, {BLOB_OFF}")
    a(f"v_lshlrev_b32 v{vL16}, 4, v{vLane}")
    a(f"v_and_b32 v{vT1}, 3, v{vLane}", f"v_lshlrev_b32 v{vSh}, 4, v{vT1}", f"v_lshrrev_b32 v{vT2}, 5, v{vLane}",
      f"v_lshl_add_u32 v{vIdx+1}, v{vT2}, 6, v{vSh}", f"v_mov_b32 v{vIdx+3}, v{vIdx+1}", f"v_mov_b32 v{vIdx+5}, v{vIdx+1}",
      f"v_mov_b32 v{vIdx+7}, v{vIdx+1}", f"v_mov_b32 v{vQi+1}, v{vIdx+1}", f"v_lshl_add_u32 v{vHoff}, v{vT2}, 5, 2",
      f"v_and_b32 v{vMetL}, 28, v{vLane}", f"v_lshlrev_b32 v{vMetL}, 1, v{vMetL}",
      f"v_and_b32 v{vT3}, 16, v{vLane}", f"v_lshlrev_b32 v{vT3}, 1, v{vT3}", f"v_xor_b32 v{vSt}, v{vT3}, v{vL16}",
      f"v_mov_b32 v{vE}, 0x3f80", f"v_mov_b32 v{vE+1}, 0", f"v_lshlrev_b64 {vr(vI4,2)}, v{vSh}, {vr(vE,2)}",
      f"v_mov_b32 v{vCtr}, {B_CTR}", f"v_mov_b32 v{vInc}, 64", f"v_lshlrev_b32 v{vT1}, 3, v{vLane}")
    a(f"s_mov_b32 s{sK}, {NLOG2E}", f"s_mov_b32 s{sBig}, {fbits(2.0**120)}", f"s_mov_b32 s{sOne}, 1.0", f"s_mov_b32 s{sOne+1}, 1.0")
    a(f"s_lshl_b32 s{sg}, s{sw}, 10", f"s_add_u32 s{sdmax}, s{sg}, 16384", f"s_mov_b32 m0, s{sg}")
    a("s_waitcnt lgkmcnt(0)")
    a.srd(sBl, 20, f"s{st1}", BLOB)
    a.vmem(f"buffer_load_dwordx4 v{vL16}, {sr(sBl,4)}, s{sg} offen lds", "b")
    a(f"s_cmp_ge_u32 s{sw}, {BLOB // 1024 - 16}", "s_cbranch_scc1 K2_B1", f"s_mov_b32 m0, s{sdmax}", "s_nop 0")
    a(f"buffer_load_dwordx4 v{vL16}, {sr(sBl,4)}, s{sdmax} offen lds", "K2_B1:")
    a.srd(sW1, 20, CF_OFF, 4096)
    a(f"s_lshl_b32 s{st1}, s{sk}, 9")
    a.vmem(f"buffer_load_dwordx2 {vr(vAh,2)}, v{vT1}, {sr(sW1,4)}, s{st1} offen", "c")
    a.stamp()
    a(f"s_mul_i32 s{st1}, s{sk}, {SS}", f"s_lshl_b32 s{sg}, s{st0}, 7", f"s_add_u32 s{sg}, s{sg}, s{st1}")
    a.srd(sP, 20, f"s{st1}", N, stride=128)
    a(f"s_add_u32 s{sg}, s{sg}, {Q_OFF}")
    a.srd(sQ, 20, f"s{sg}", f"s{scnt}", stride=128)
    a(f"s_mul_i32 s{sg}, s{srng}, {SRB}", f"s_add_u32 s{sg}, s{sg}, {S_OFF}")
    a.srd(sS, 20, f"s{sg}", SRB)
    a.srd(sF, 20, W2F_OFF, 262144)
    a(f"s_lshl_b32 s{sg}, s{st0}, 9", f"s_lshl_b32 s{st1}, s{scnt}, 9")
    a.srd(sO, 22, f"s{sg}", f"s{st1}")
    a(f"s_lshl_b32 s{sg}, s{srng}, 12", f"s_add_u32 s{sg}, s{sg}, {FL_OFF}")
    a.srd(sFl, 20, f"s{sg}", 3072)
    a(f"s_mov_b32 s{sSo}, {SRB}", f"s_mov_b32 s{spend}, 0")
    a.wait(vm="c")
    a("s_barrier")
    a.stamp(5)
    a.vm = []
    if STAMPS:
        a("s_mov_b32 s99, 8")
    a(f"v_mov_b32 v{vT0}, {B_FLAG}", f"ds_read_b32 v{vT1}, v{vT0}", "s_waitcnt lgkmcnt(0)",
      f"v_readfirstlane_b32 s{st0}, v{vT1}", f"s_lshl_b32 s{sg}, s{sw}, 6", f"s_cmp_lg_u32 s{st0}, 0", "s_cbranch_scc1 K2_SLOW")

    def w2_preload(unit):
        a(f"s_lshr_b32 s{st0}, s{unit}, 1", f"s_lshl_b32 s{st0}, s{st0}, 15", f"s_and_b32 s{st1}, s{unit}, 1",
          f"s_mul_i32 s{st1}, s{st1}, 6144", f"s_add_u32 s{st0}, s{st0}, s{st1}", f"s_mul_i32 s{st1}, s{unit}, 6144")
        for i in range(2):
            a(f"s_add_u32 m0, s{st1}, {K2_BB + 4096*i}")
            a(f"s_add_u32 s{st0}, s{st0}, 4096" if i else "s_nop 0")
            for q in range(2 if i else 4):
                a(f"buffer_load_dwordx4 v{vL16}, {sr(sF,4)}, s{st0} offen offset:{1024*q} lds")

    def Z(i):
        return vZ + 16 * ((i >> 1) & 1) + 8 * (i & 1)

    def src_read(i):
        a(f"ds_read_u16 v{vIdx + 2*(i % 4)}, v{vEll} offset:{32*i}")

    def e_read(p):
        a(f"ds_read_u16 v{vE}, v{vEe} offset:{64*p}")

    def gather(i):
        a(f"buffer_load_dwordx4 {vr(vP + 4*(i % 4), 4)}, {vr(vIdx + 2*(i % 4), 2)}, {sr(sP,4)}, 0 idxen offen")

    def m4(i, hf):
        z = Z(i) + 4 * hf
        return f"v_mfma_f32_4x4x4_16b_bf16 {vr(z,4)}, {vr(vI4,2)}, {vr(vP + 4*(i % 4) + 2*hf, 2)}, {vr(z,4)}"

    shift = f"v_lshlrev_b64 {vr(vEs,2)}, v{vSh}, {vr(vE,2)}"

    def mhi(p):
        return f"v_mfma_f32_32x32x8_bf16 {vr(Z(2*p),16)}, {vr(vAh,2)}, {vr(vEs,2)}, {vr(vQ,16)}"

    def count(tag):
        a(f"s_mov_b64 {sr(sEx,2)}, exec", "s_mov_b64 exec, 1", f"s_lshl_b32 s{st0}, s{spend}, 2", f"v_add_u32 v{vT0}, s{st0}, v{vCtr}",
          f"ds_add_rtn_u32 v{vT0}, v{vT0}, v{vInc} offset:{B_CNTA - 4 - B_CTR}", f"s_lshl_b32 s{st0}, s{spend}, 3",
          f"s_add_u32 s{st0}, s{st0}, s{sk}", f"s_sub_u32 s{st0}, s{st0}, 8", f"s_lshl_b32 s{st0}, s{st0}, 7", f"v_mov_b32 v{vT1}, s{st0}",
          f"s_mov_b32 s{spend}, 0",
          "s_waitcnt lgkmcnt(0)", f"v_readfirstlane_b32 s{st0}, v{vT0}", f"s_cmp_lg_u32 s{st0}, {15*64}", f"s_cbranch_scc1 K2_CE{tag}",
          f"buffer_store_dword v{vInc}, v{vT1}, {sr(sFl,4)}, 0 offen sc1", f"K2_CE{tag}:", f"s_mov_b64 exec, {sr(sEx,2)}")

    def finish():
        for r in range(8):
            a(f"v_rcp_f32 v{vT+r}, v{vDen+r}")
        for r in range(0, 8, 2):
            a(f"v_pk_mul_f32 {vr(vNum+r,2)}, {vr(vNum+r,2)}, {vr(vT+r,2)}")
        for r in range(4):
            a(f"v_cvt_pk_bf16_f32 v{vT+r}, v{vNum+2*r}, v{vNum+2*r+1}")
        a(f"buffer_store_dwordx4 {vr(vT,4)}, v{vSt}, {sr(sS,4)}, s{sSo} offen sc1")

    if OPT["tw2"]:
        a(f"s_cmp_lg_u32 s{sw}, 15", "s_cbranch_scc1 K2_NOPF", f"v_lshlrev_b32 v{vT2}, 7, v{vLane}", f"s_lshl_b32 s{st0}, s{srng}, 13",
          f"buffer_load_dword v{vT3}, v{vT2}, {sr(sF,4)}, s{st0} offen", "K2_NOPF:")
    if OPT["stag"]:
        a(f"s_lshl_b32 s{st0}, s{sw}, 2", f"s_add_u32 s{st0}, s{st0}, {B_GO}", f"v_mov_b32 v{vGo}, s{st0}",
          f"s_cmp_lt_u32 s{sw}, 4", "s_cbranch_scc1 K2_GO", f"v_subrev_u32 v{vT0}, 16, v{vGo}")
        a("K2_WAITGO:", f"ds_read_b32 v{vT1}, v{vT0}", "s_waitcnt lgkmcnt(0)", f"v_readfirstlane_b32 s{st0}, v{vT1}",
          f"s_cmp_eq_u32 s{st0}, 0", "s_cbranch_scc1 K2_WAITGO", "K2_GO:")
    if OPT["prio"]:
        a("s_setprio 3")
    a("K2_GROUP:")
    a(f"v_add_u32 v{vT0}, s{sg}, v{vMetL}", f"s_mov_b32 s{sP+2}, {N}",
      f"ds_read_u16 v{vEll}, v{vT0} offset:{B_META}", f"ds_read_u16 v{vQi}, v{vT0} offset:{B_META + 2}",
      f"ds_read_b32 v{vDeg}, v{vT0} offset:{B_META + 4}")
    a(f"s_lshr_b32 s{sdmax}, s{sg}, 6", f"s_sub_u32 s{sdmax}, s{sdmax}, 16", f"s_cmp_lt_u32 s{sdmax}, 16", "s_cbranch_scc1 K2_PRE", "K2_PRED:")
    a("s_waitcnt lgkmcnt(2)")
    for i in range(4):
        src_read(i)
    a(f"v_add_u32 v{vEe}, v{vEll}, v{vHoff}", "s_waitcnt lgkmcnt(4)")
    a(f"buffer_load_dwordx4 {vr(vZ+16,4)}, {vr(vQi,2)}, {sr(sQ,4)}, 0 idxen offen")
    e_read(0)
    a(f"v_readlane_b32 s{sdmax}, v{vDeg}, 0", f"v_readlane_b32 s{sdmin}, v{vDeg}, 28")
    for i in range(4):
        a(f"s_waitcnt lgkmcnt({4-i})")
        gather(i)
    src_read(4)
    src_read(5)
    a("s_waitcnt lgkmcnt(2)")
    a(shift)
    e_read(1)
    a("s_mov_b64 exec, 1", f"ds_add_rtn_u32 v{vNxt}, v{vCtr}, v{vInc}", "s_mov_b64 exec, -1")
    finish()
    a("s_waitcnt vmcnt(5)")
    if OPT["stag"] == 2:
        a(f"ds_write_b32 v{vGo}, v{vGo}")
    for q in range(4):
        a(f"v_mfma_f32_4x4x4_16b_bf16 {vr(vQ+4*q,4)}, {vr(vI4,2)}, {vr(vZ+16+2*(q&1),2)}, 0")
    a("s_nop 3")
    a(mhi(0))
    a(f"s_lshl_b32 s{sSo}, s{sg}, 7", f"s_lshl_b32 s{st0}, s{sk}, 10", f"s_add_u32 s{sSo}, s{sSo}, s{st0}", "s_nop 6", "s_waitcnt vmcnt(3)")
    if OPT["stag"] == 1:
        a(f"ds_write_b32 v{vGo}, v{vGo}")
    a(m4(0, 0), m4(0, 1), m4(1, 0), m4(1, 1))
    a("s_waitcnt lgkmcnt(0)")
    gather(4)
    gather(5)
    a(shift)
    src_read(6)
    src_read(7)
    e_read(2)
    if OPT["prio"]:
        if OPT["prio"] == 1:
            a(f"s_cmp_lt_u32 s{sg}, {16*64}", "s_cbranch_scc1 K2_PRX", "s_setprio 2", f"s_cmp_lt_u32 s{sg}, {24*64}", "s_cbranch_scc1 K2_PRX",
              "s_setprio 1", f"s_cmp_lt_u32 s{sg}, {32*64}", "s_cbranch_scc1 K2_PRX", "s_setprio 0", "K2_PRX:")
        else:
            a(f"s_cmp_lt_u32 s{sg}, {16*64}", "s_cbranch_scc1 K2_PRX", "s_setprio 2", f"s_cmp_lt_u32 s{sg}, {OPT['prio']*64}",
              "s_cbranch_scc1 K2_PRX", "s_setprio 1", "K2_PRX:")
    a("s_nop 1" if OPT["prio"] else "s_nop 3")
    if STAMPS and not OPT["light"]:
        a("s_mov_b32 m0, s99", "s_add_u32 s99, s99, 1")
        a.stamp("m0")

    NP = MAXDEG // 2
    for i in range(MAXDEG):
        z = Z(i)
        p = i >> 1
        a(f"s_cmp_le_u32 s{sdmin}, {i}", f"s_cbranch_scc1 K2_OOL{i}", f"K2_S{i}:")
        ex = [f"v_exp_f32 v{vT+r}, v{z+r}" for r in range(8)]
        num_src = Z(0) if i == 1 else vNum
        if i == 0:
            upd = ["s_nop 0"] + [f"v_pk_add_f32 {vr(vDen+r,2)}, {vr(vT+r,2)}, {sr(sOne,2)}" for r in range(0, 8, 2)]
        else:
            upd = [f"v_pk_fma_f32 {vr(z+r,2)}, {vr(z+r,2)}, {vr(vDen+r,2)}, {vr(num_src+r,2)}" for r in range(0, 8, 2)]
            upd += [f"v_pk_fma_f32 {vr(vNum+r,2)}, {vr(num_src+r,2)}, {vr(vT+r,2)}, {vr(z+r,2)}" for r in range(0, 8, 2)]
            upd += [f"v_pk_fma_f32 {vr(vDen+r,2)}, {vr(vDen+r,2)}, {vr(vT+r,2)}, {vr(vDen+r,2)}" for r in range(0, 8, 2)]
        if (i & 1) == 0:
            if p + 1 < NP:
                a(mhi(p + 1), *ex)
            else:
                a(*ex)
            a(*upd)
        else:
            if p + 1 < NP:
                a(f"s_waitcnt vmcnt({3 if p == 0 else 2 if p + 2 < NP else 0})")
                if p == 1:
                    a(f"s_cmp_lg_u32 s{spend}, 0", "s_cbranch_scc1 K2_CNT", "K2_CNTD:")
                a(m4(2*p+2, 0), ex[0], m4(2*p+2, 1), ex[1], m4(2*p+3, 0), ex[2], m4(2*p+3, 1), ex[3])
            else:
                a(*ex[0:4])
            if p + 2 < NP:
                a("s_waitcnt lgkmcnt(0)")
            if p + 3 < NP:
                if OPT["clip"]:
                    a(f"s_cmp_gt_u32 s{sdmax}, {2*p+6}", f"s_cselect_b32 s{sP+2}, {N}, 0")
                gather(2 * p + 6)
                gather(2 * p + 7)
            a(*ex[4:8])
            if p + 2 < NP:
                a(shift)
            if p + 4 < NP:
                src_read(2 * p + 8)
                src_read(2 * p + 9)
            if p + 3 < NP:
                e_read(p + 3)
            a(*upd)
    a("K2_FIN:")
    a("s_mov_b64 exec, -1")
    if OPT["prio"]:
        a("s_setprio 3")
    a(f"s_cmp_lg_u32 s{spend}, 0", "s_cbranch_scc1 K2_CNT2", "K2_CNT2D:", f"s_lshr_b32 s{spend}, s{sg}, 10",
      f"s_add_u32 s{spend}, s{spend}, 1", f"s_cmp_lt_u32 s{spend}, 3", f"s_cselect_b32 s{spend}, s{spend}, 0")
    a(f"v_pk_mul_f32 {vr(vT0,2)}, {vr(vDen,2)}, {vr(vDen+2,2)}", f"v_pk_mul_f32 {vr(vT2,2)}, {vr(vNum,2)}, {vr(vNum+2,2)}",
      f"v_pk_fma_f32 {vr(vT0,2)}, {vr(vDen+4,2)}, {vr(vDen+6,2)}, {vr(vT0,2)}",
      f"v_pk_fma_f32 {vr(vT2,2)}, {vr(vNum+4,2)}, {vr(vNum+6,2)}, {vr(vT2,2)}",
      f"v_readfirstlane_b32 s{sg}, v{vNxt}",
      f"v_pk_fma_f32 {vr(vT0,2)}, {vr(vT2,2)}, 0, {vr(vT0,2)} op_sel_hi:[1,0,1]",
      f"v_add_f32 v{vT0}, v{vT0}, v{vT1}", f"v_cmp_ngt_f32 vcc, s{sBig}, v{vT0}")
    a("s_cbranch_vccnz K2_SAFE")
    a("K2_NEXT:")
    if STAMPS and not OPT["light"]:
        a("s_mov_b32 m0, s99", "s_add_u32 s99, s99, 1")
        a.stamp("m0")
        a("s_mov_b32 m0, s99", "s_add_u32 s99, s99, 1", f"v_writelane_b32 v31, s{sdmax}, m0")
    a(f"s_add_u32 s{sg}, s{sg}, {16*64}", f"s_cmp_lt_u32 s{sg}, {NGRP*64}", "s_cbranch_scc1 K2_GROUP")

    vA, vA0, vA2, vB2, vAcc = 8, 24, 25, 28, 48
    vB = [32, 36, 40, 44] + list(range(88, 120, 4)) + [72, 76, 80, 84]
    vMa, vCol, vRed, vWa = 120, 121, 122, 125
    scg, skh, sact, stk = sM, sM + 1, sM + 2, sM + 3
    sB2 = sPf

    def b_global(first, gentle):
        a(f"s_lshl_b32 s{st0}, s{scg}, 15", f"s_lshl_b32 s{st1}, s{skh}, 14", f"s_add_u32 s{st0}, s{st0}, s{st1}")
        for n in range(first, 16):
            if n % 4 == 0 and n:
                a(f"s_add_u32 s{st0}, s{st0}, {4096 if n > first else 1024*n}")
            if gentle and n > first and n % OPT["bb"] == 0:
                a("s_waitcnt vmcnt(0)")
            a(f"buffer_load_dwordx4 {vr(vB[n],4)}, v{vL16}, {sr(sF,4)}, s{st0} offen offset:{1024*(n % 4)}")

    def roles():
        a(f"s_and_b32 s{scg}, s{sw}, 7", f"s_lshr_b32 s{skh}, s{sw}, 3", f"s_and_b32 s{st0}, s{sk}, 1",
          f"s_lshr_b32 s{sact}, s{scg}, 2", f"s_xor_b32 s{sact}, s{sact}, s{st0}")

    def b_loads(tag):
        a(f"s_cmp_eq_u32 s{skh}, 0", f"s_cbranch_scc1 K2_BL{tag}")
        b_global(0, tag == "B")
        a(f"s_branch K2_BX{tag}", f"K2_BL{tag}:")
        b_global(12, tag == "B")
        a(f"K2_BX{tag}:")

    def lds_spin(tag, word, least):
        a(f"K2_SP{tag}:", f"ds_read_b32 v{vT0}, v{vCtr} offset:{B_CNTA + word - B_CTR}", "s_waitcnt lgkmcnt(0)",
          f"v_readfirstlane_b32 s{st0}, v{vT0}", f"s_cmp_lt_u32 s{st0}, {least}", f"s_cbranch_scc1 K2_SP{tag}")

    def ticket(word):
        a("s_mov_b64 exec, 1", f"ds_add_rtn_u32 v{vT0}, v{vCtr}, v{vInc} offset:{B_CNTA + word - B_CTR}", "s_mov_b64 exec, -1",
          "s_waitcnt lgkmcnt(0)", f"v_readfirstlane_b32 s{stk}, v{vT0}")

    def fetch(t, dst):
        a(f"s_cmp_lg_u32 s{stk}, 0", f"s_cbranch_scc1 K2_SPF{t}")
        a("s_mov_b64 exec, 0xff", f"v_lshlrev_b32 v{vT2}, 7, v{vLane}", f"s_mov_b32 s{st1}, 0", f"K2_P{t}:",
          f"buffer_load_dword v{vT1}, v{vT2}, {sr(sFl,4)}, 0 offen offset:{1024*t} sc1", f"s_add_u32 s{st1}, s{st1}, 1", "s_waitcnt vmcnt(0)",
          f"v_cmp_eq_u32 vcc, 0, v{vT1}", f"s_cbranch_vccz K2_P{t}D", f"s_cmp_lt_u32 s{st1}, 0x400000", f"s_cbranch_scc1 K2_P{t}",
          f"K2_P{t}D:", "s_mov_b64 exec, -1", f"ds_write_b32 v{vCtr}, v{vInc} offset:{B_CNTA + 20 + 4*t - B_CTR}")
        lds_spin(f"F{t}", 20 + 4 * t, 1)
        a(f"s_lshr_b32 s{st0}, s{sk}, {1 if t == 2 else 0}", f"s_add_u32 s{st0}, s{st0}, {8*t}", f"s_lshl_b32 s{st0}, s{st0}, 14",
          f"s_lshl_b32 s{st1}, s{stk}, 6", f"s_add_u32 s{st0}, s{st0}, s{st1}")
        for q in range(4):
            a(f"buffer_load_dwordx4 {vr(vA+4*q,4)}, v{vL16}, {sr(sS,4)}, s{st0} offen offset:{1024*q} sc1")
        a(f"s_add_u32 s{st1}, s{st1}, {dst}", f"v_add_u32 v{vWa}, s{st1}, v{vL16}")
        for q in range(4):
            a(f"s_waitcnt vmcnt({3-q})", f"ds_write_b128 v{vWa}, {vr(vA+4*q,4)} offset:{1024*q}")

    roles()
    ticket(12)
    a(f"s_cmp_lt_u32 s{stk}, {OPT['early']*64}", "s_cbranch_scc1 K2_TE", f"s_cmp_lg_u32 s{spend}, 0", "s_cbranch_scc1 K2_TL")
    b_loads("A")
    finish()
    a.stamp(20)
    a("s_branch K2_TC", "K2_TL:")
    finish()
    a.stamp(20)
    b_loads("C")
    a(f"s_cmp_eq_u32 s{skh}, 0", "s_cbranch_scc1 K2_TL0", "s_waitcnt vmcnt(16)", "s_branch K2_TL1", "K2_TL0:", "s_waitcnt vmcnt(4)", "K2_TL1:")
    count("L")
    a("s_branch K2_TC", "K2_TE:")
    finish()
    a.stamp(20)
    a("K2_TAIL:", "s_setprio 0" if not OPT["hprio"] else "s_nop 0", f"s_cmp_eq_u32 s{spend}, 0", "s_cbranch_scc1 K2_TAIL2", "s_waitcnt vmcnt(0)")
    count("C")
    a("K2_TAIL2:")
    b_loads("B")
    a("K2_TC:", "s_setprio 0" if not OPT["hprio"] else "s_nop 0")
    a.srd(sB2, 18, 0, 512)
    a(f"s_cmp_ge_u32 s{stk}, {4*64}", "s_cbranch_scc1 K2_NF0")
    fetch(0, K2_AB)
    a(f"s_mov_b32 s{stk}, {8*64}", "K2_NF0:")
    a(f"s_cmp_lt_u32 s{stk}, {8*64}", "s_cbranch_scc1 K2_SPW", "s_setprio 0", f"s_cmp_eq_u32 s{skh}, 0", "s_cbranch_scc0 K2_NF1")
    lds_spin("W", 4, 16 * 64)
    a(f"s_cmp_eq_u32 s{skh}, 0", "s_cbranch_scc0 K2_T1")
    a(f"s_mul_i32 s{st0}, s{scg}, 12288", f"s_add_u32 s{st0}, s{st0}, {K2_BB}", f"v_add_u32 v{vT0}, s{st0}, v{vL16}")
    for n in range(12):
        a(f"ds_read_b128 {vr(vB[n],4)}, v{vT0} offset:{1024*n}")
    a("K2_T1:", f"s_cmp_ge_u32 s{stk}, {8*64}", "s_cbranch_scc1 K2_NF1", f"s_sub_u32 s{stk}, s{stk}, {4*64}")
    fetch(1, K2_AB + 16384)
    a("K2_NF1:")
    a(f"v_and_b32 v{vT0}, 15, v{vLane}", f"v_lshlrev_b32 v{vT0}, 2, v{vT0}", f"s_lshl_b32 s{st0}, s{scg}, 6",
      f"v_add_u32 v{vCol}, s{st0}, v{vT0}", f"buffer_load_dword v{vB2}, v{vCol}, {sr(sB2,4)}, 0 offen")
    a(f"v_and_b32 v{vT0}, 7, v{vLane}", f"v_lshlrev_b32 v{vA2}, 6, v{vT0}", f"v_bfe_u32 v{vT1}, v{vLane}, 3, 1",
      f"v_lshl_add_u32 v{vA2}, v{vT1}, 13, v{vA2}", f"v_lshrrev_b32 v{vT3}, 4, v{vLane}", f"v_lshrrev_b32 v{vT0}, 2, v{vT0}",
      f"v_lshlrev_b32 v{vT0}, 1, v{vT0}", f"v_xor_b32 v{vT0}, v{vT0}, v{vT3}", f"v_lshl_add_u32 v{vA2}, v{vT0}, 4, v{vA2}",
      f"s_lshl_b32 s{st0}, s{skh}, 12", f"s_add_u32 s{st0}, s{st0}, {K2_BB}", f"v_add_u32 v{vA2}, s{st0}, v{vA2}",
      f"v_add_u32 v{vA0}, {K2_AB - K2_BB}, v{vA2}")
    a(f"v_lshlrev_b32 v{vMa}, 5, v{vT3}", f"v_add_u32 v{vMa}, {B_META}, v{vMa}",
      f"s_mul_i32 s{st0}, s{scg}, 6144", f"s_add_u32 s{st0}, s{st0}, {K2_BB + 16384}", f"v_add_u32 v{vRed}, s{st0}, v{vL16}",
      f"s_mov_b32 s{sK}, {NLN2}")
    a("s_waitcnt lgkmcnt(0)", "s_barrier")
    a.stamp(21)
    a("s_waitcnt vmcnt(0)", f"s_mov_b32 s{spend}, 3")
    count("D")
    a(f"v_and_b32 v{vB2+1}, 0xffff0000, v{vB2}", f"v_lshlrev_b32 v{vB2}, 16, v{vB2}")

    def compute(tiles):
        a.lg = []
        nt = len(tiles)
        depth = 4 // nt

        def f_read(s):
            for i, t in enumerate(tiles):
                base, off = (vA2, 0) if t == 2 else (vA0, 16384 * t)
                a.lds(f"ds_read_b128 {vr(vA + 4*((s % depth)*nt + i), 4)}, v{base} offset:{off + 1024*(s >> 1) + 512*(s & 1)}", f"f{s}")
        for s in range(depth - 1):
            f_read(s)
        for s in range(8):
            if s + depth - 1 < 8:
                f_read(s + depth - 1)
            a.wait(lg=f"f{s}")
            for i, t in enumerate(tiles):
                for b in range(2):
                    acc = vAcc + 8 * t + 4 * b
                    a(f"v_mfma_f32_16x16x32_bf16 {vr(acc,4)}, {vr(vA + 4*((s % depth)*nt + i), 4)}, {vr(vB[2*s + b], 4)}, {'0' if s == 0 else vr(acc, 4)}")

    def give(t):
        a("s_nop 7")
        for q in range(2):
            a(f"ds_write_b128 v{vRed}, {vr(vAcc+8*t+4*q,4)} offset:{2048*t + 1024*q}")

    def out_tile(t):
        acc = vAcc + 8 * t
        a(f"s_lshr_b32 s{st0}, s{sk}, {1 if t == 2 else 0}", f"s_add_u32 s{st0}, s{st0}, {8*t}", f"s_lshl_b32 s{st0}, s{st0}, 7",
          f"v_add_u32 v{vT0}, s{st0}, v{vMa}",
          f"ds_read_b128 {vr(vA,4)}, v{vT0}", f"ds_read_b128 {vr(vA+4,4)}, v{vT0} offset:16")
        for q in range(2):
            a(f"ds_read_b128 {vr(vA+8+4*q,4)}, v{vRed} offset:{2048*t + 1024*q}")
        a("s_waitcnt lgkmcnt(2)")
        for r in range(4):
            a(f"v_lshrrev_b32 v{vA+2*r}, 16, v{vA+2*r}", f"v_cvt_f32_u32 v{vA+2*r+1}, v{vA+2*r+1}",
              f"v_lshl_add_u32 v{vA+2*r}, v{vA+2*r}, 9, v{vCol}")
        a("s_waitcnt lgkmcnt(0)")
        for r in range(8):
            a(f"v_add_f32 v{acc+r}, v{acc+r}, v{vA+8+r}")
        for r in range(4):
            a(f"v_mul_f32 v{vT0}, v{vA+2*r+1}, v{vB2}", f"v_mul_f32 v{vT1}, v{vA+2*r+1}, v{vB2+1}",
              f"v_fma_f32 v{acc+r}, v{acc+r}, s{sK}, v{vT0}", f"v_fma_f32 v{acc+4+r}, v{acc+4+r}, s{sK}, v{vT1}",
              f"v_cvt_pk_bf16_f32 v{acc+r}, v{acc+r}, v{acc+4+r}",
              f"buffer_store_dword v{acc+r}, v{vA+2*r}, {sr(sO,4)}, 0 offen{' sc1' if OPT['sc3'] else ''}")

    compute((0, 1))
    a(f"s_cmp_eq_u32 s{skh}, 0", "s_cbranch_scc1 K2_G0")
    give(0)
    a("s_branch K2_G1", "K2_G0:")
    give(1)
    a("K2_G1:")
    a.stamp(23)
    ticket(16)
    a(f"s_cmp_ge_u32 s{stk}, {4*64}", "s_cbranch_scc1 K2_NF2")
    fetch(2, K2_BB)
    a("K2_NF2:")
    a("s_waitcnt lgkmcnt(0)", "s_barrier")
    a.stamp(24)
    a(f"s_cmp_lg_u32 s{sact}, 0", "s_cbranch_scc1 K2_IDLE2")
    compute((2,))
    a(f"s_cmp_eq_u32 s{skh}, 0", "s_cbranch_scc0 K2_O1")
    out_tile(0)
    a("s_barrier")
    out_tile(2)
    a("s_branch K2_OX", "K2_O1:")
    give(2)
    a("s_waitcnt lgkmcnt(0)", "s_barrier")
    out_tile(1)
    a("s_branch K2_OX", "K2_IDLE2:", f"s_cmp_eq_u32 s{skh}, 0", "s_cbranch_scc1 K2_IDLE3")
    out_tile(1)
    a("s_barrier", "s_branch K2_OX", "K2_IDLE3:")
    out_tile(0)
    a("s_barrier")
    a("K2_OX:")
    a.stamp_dump(sBl, 20, sw, 16)
    a("s_endpgm")

    a("K2_CNT:")
    count("A")
    a("s_nop 3", "s_branch K2_CNTD")
    a("K2_CNT2:", "s_waitcnt vmcnt(0)")
    count("B")
    a("s_branch K2_CNT2D")

    a("K2_PRE:")
    w2_preload(sdmax)
    a("s_branch K2_PRED")

    for i in range(MAXDEG):
        a(f"K2_OOL{i}:")
        if i == 0:
            for r in range(8):
                a(f"v_mov_b32 v{vNum+r}, 0", f"v_mov_b32 v{vDen+r}, 1.0")
        if i == 1:
            for r in range(8):
                a(f"v_mov_b32 v{vNum+r}, v{Z(0)+r}")
        a(f"s_cmp_le_u32 s{sdmax}, {i}", "s_cbranch_scc1 K2_FIN")
        a(f"v_cmpx_lt_u32 vcc, {i}, v{vDeg}", "s_nop 3", f"s_branch K2_S{i}")

    a("K2_SAFE:")
    a("s_waitcnt vmcnt(0) lgkmcnt(0)", f"s_mov_b32 s{st0}, 0", f"s_mov_b32 s{sP+2}, {N}")
    for r in range(8):
        a(f"v_mov_b32 v{vNum+r}, 0")
    a("K2_SAFE_L:")
    a(f"s_cmp_ge_u32 s{st0}, s{sdmax}", "s_cbranch_scc1 K2_SAFE_E")
    a(f"v_cmpx_lt_u32 vcc, s{st0}, v{vDeg}")
    src_read(0)
    e_read(0)
    a("s_waitcnt lgkmcnt(0)")
    gather(0)
    a(shift, f"v_add_u32 v{vEll}, 32, v{vEll}", f"v_add_u32 v{vEe}, 32, v{vEe}", "s_nop 1")
    a(mhi(0), "s_nop 9", "s_waitcnt vmcnt(0)", m4(0, 0), m4(0, 1), "s_nop 4")
    for r in range(8):
        a(f"v_exp_f32 v{vT+r}, v{vZ+r}")
    for r in range(0, 8, 2):
        a(f"v_pk_add_f32 {vr(vT+r,2)}, {vr(vT+r,2)}, {sr(sOne,2)}")
    for r in range(8):
        a(f"v_rcp_f32 v{vT+r}, v{vT+r}")
    a("s_nop 0")
    for r in range(0, 8, 2):
        a(f"v_pk_fma_f32 {vr(vNum+r,2)}, {vr(vZ+r,2)}, {vr(vT+r,2)}, {vr(vNum+r,2)}")
    a(f"s_add_u32 s{st0}, s{st0}, 1", "s_branch K2_SAFE_L")
    a("K2_SAFE_E:", "s_mov_b64 exec, -1")
    for r in range(8):
        a(f"v_mov_b32 v{vDen+r}, 1.0")
    a("s_branch K2_NEXT")

    sDst, sSrc, sE = sBl, sPf, sW1
    snode, sbase, sdeg, sbit, ssrc, se, sm = sM, sM + 1, sM + 2, sM + 3, sM + 4, sM + 5, sM + 6
    vc, vq, vacc, vd, vs, ve, vsb, vz = 32, 33, 34, 36, 40, 44, 48, 49
    a("K2_SLOW:")
    w2_preload(sw)
    a(f"s_mov_b32 s{sg}, s{sw}", f"v_cmp_gt_u32 vcc, 320, v0", f"v_lshlrev_b32 v{vT0}, 16, v0", f"v_mov_b32 v{vT1}, 0",
      f"v_lshlrev_b32 v{vT2}, 3, v0", "s_and_saveexec_b64 s[70:71], vcc", f"ds_write_b64 v{vT2}, {vr(vT0,2)} offset:{B_META}",
      "s_mov_b64 exec, -1", "s_waitcnt lgkmcnt(0)", "s_barrier")
    a.srd(sW1, 12, 512 * 1024, 1024)
    a(f"v_and_b32 v{vT0}, 1, v{vLane}", f"v_lshlrev_b32 v{vT0}, 6, v{vT0}", f"v_and_b32 v{vT1}, 62, v{vLane}",
      f"v_add_u32 v{vT0}, v{vT0}, v{vT1}", f"s_lshl_b32 s{st1}, s{sk}, 7")
    a(f"buffer_load_ushort v{vc}, v{vT0}, {sr(sW1,4)}, s{st1} offen", "s_waitcnt vmcnt(0)",
      f"v_lshlrev_b32 v{vc}, 16, v{vc}", f"v_mul_f32 v{vc}, s{sK}, v{vc}")
    a.srd(sDst, 10, 0, E * 4)
    a.srd(sSrc, 8, 0, E * 4)
    a.srd(sE, 6, 0, E * 2)
    a(f"v_lshlrev_b32 v{vIdx+1}, 1, v{vLane}", f"v_lshlrev_b32 v{vT2}, 4, v{vLane}", f"v_lshlrev_b32 v{vT3}, 3, v{vLane}")
    a(f"v_lshrrev_b32 v{vsb}, 5, v{vLane}", f"v_lshlrev_b32 v{vsb}, 9, v{vsb}", f"v_and_b32 v{vT0}, 31, v{vLane}",
      f"v_lshl_add_u32 v{vsb}, v{vT0}, 1, v{vsb}")
    a("K2_SLOW_N:")
    a(f"s_cmp_ge_u32 s{sg}, s{scnt}", "s_cbranch_scc1 K2_SLOW_E")
    a(f"s_mul_i32 s{snode}, s{srng}, {RNG}", f"s_add_u32 s{snode}, s{snode}, s{sg}", f"v_mov_b32 v{vIdx}, s{sg}",
      f"buffer_load_ushort v{vq}, {vr(vIdx,2)}, {sr(sQ,4)}, 0 idxen offen",
      f"v_mov_b32 v{vacc}, 0", f"s_mov_b32 s{sbase}, 0", f"s_mov_b32 s{sdeg}, 0", "s_waitcnt vmcnt(0)",
      f"v_lshlrev_b32 v{vq}, 16, v{vq}")
    a("K2_SLOW_C:")
    a(f"s_lshl_b32 s{st0}, s{sbase}, 2", f"s_lshl_b32 s{st1}, s{sbase}, 1")
    a(f"buffer_load_dwordx4 {vr(vd,4)}, v{vT2}, {sr(sDst,4)}, s{st0} offen",
      f"buffer_load_dwordx4 {vr(vs,4)}, v{vT2}, {sr(sSrc,4)}, s{st0} offen",
      f"buffer_load_dwordx2 {vr(ve+2,2)}, v{vT3}, {sr(sE,4)}, s{st1} offen", "s_waitcnt vmcnt(0)")
    a(f"v_lshlrev_b32 v{ve}, 16, v{ve+2}", f"v_and_b32 v{ve+1}, 0xffff0000, v{ve+2}",
      f"v_lshlrev_b32 v{ve+2}, 16, v{ve+3}", f"v_and_b32 v{ve+3}, 0xffff0000, v{ve+3}")
    for u in range(4):
        a(f"v_cmp_eq_u32 {sr(sm,2)}, s{snode}, v{vd+u}")
        a(f"K2_SLOW_M{u}:", f"s_cmp_eq_u64 {sr(sm,2)}, 0", f"s_cbranch_scc1 K2_SLOW_X{u}")
        a(f"s_ff1_i32_b64 s{sbit}, {sr(sm,2)}", f"s_bitset0_b64 {sr(sm,2)}, s{sbit}", f"s_add_u32 s{sdeg}, s{sdeg}, 1",
          f"v_readlane_b32 s{ssrc}, v{vs+u}, s{sbit}", f"v_readlane_b32 s{se}, v{ve+u}, s{sbit}", "s_nop 1",
          f"v_mov_b32 v{vIdx}, s{ssrc}", f"buffer_load_ushort v{vz}, {vr(vIdx,2)}, {sr(sP,4)}, 0 idxen offen",
          f"v_fma_f32 v{vT0}, s{se}, v{vc}, v{vq}", "s_waitcnt vmcnt(0)",
          f"v_lshlrev_b32 v{vz}, 16, v{vz}", f"v_add_f32 v{vz}, v{vz}, v{vT0}", f"v_exp_f32 v{vT0}, v{vz}", "s_nop 0",
          f"v_add_f32 v{vT0}, 1.0, v{vT0}", f"v_rcp_f32 v{vT0}, v{vT0}", "s_nop 0",
          f"v_fma_f32 v{vacc}, v{vz}, v{vT0}, v{vacc}", f"s_branch K2_SLOW_M{u}")
        a(f"K2_SLOW_X{u}:")
    a(f"s_add_u32 s{sbase}, s{sbase}, 256", f"s_cmp_lt_u32 s{sbase}, {E}", "s_cbranch_scc1 K2_SLOW_C")
    a(f"v_cvt_pk_bf16_f32 v{vacc}, v{vacc}, v{vacc}", f"s_lshl_b32 s{st0}, s{sg}, 3", f"v_mov_b32 v{vT0}, s{st0}",
      f"v_mov_b32 v{vT1}, s{sdeg}", f"ds_write_b32 v{vT0}, v{vT1} offset:{B_META + 4}",
      f"s_lshr_b32 s{st0}, s{sg}, 3", f"s_lshl_b32 s{st0}, s{st0}, 13", f"s_lshl_b32 s{st1}, s{sk}, 10", f"s_add_u32 s{st0}, s{st0}, s{st1}",
      f"s_and_b32 s{st1}, s{sg}, 7", f"s_lshl_b32 s{st1}, s{st1}, 6", f"s_add_u32 s{st0}, s{st0}, s{st1}",
      f"s_and_b32 s{st1}, s{sg}, 4", f"s_lshl_b32 s{st1}, s{st1}, 3", f"v_xor_b32 v{vT0}, s{st1}, v{vsb}")
    a(f"buffer_store_short v{vacc}, v{vT0}, {sr(sS,4)}, s{st0} offen sc1")
    a(f"s_add_u32 s{sg}, s{sg}, 16", "s_waitcnt vmcnt(0) lgkmcnt(0)", "s_branch K2_SLOW_N")
    a("K2_SLOW_E:", "s_waitcnt vmcnt(0) lgkmcnt(0)", "s_barrier")
    roles()
    ticket(12)
    a(f"s_mov_b32 s{spend}, 1")
    count("S")
    a(f"s_mov_b32 s{spend}, 2", "s_branch K2_TAIL")
    a("K2_END:", "s_endpgm")
    return a.lines, descriptor("k2_kernel", nv, 102 if STAMPS else 96)


def k4():
    a = Asm()
    header(a, "k4_kernel")
    if OPT["probe"]:
        assert STAMPS
        a("s_cmp_lg_u32 s2, 0", "s_cbranch_scc1 K4_END", "s_load_dwordx2 s[20:21], s[0:1], 80",
          "v_mov_b32 v1, 0", "v_mov_b32 v2, -1", "v_mov_b32 v3, 0")
        for k in range(3):
            a(f"ds_write_b64 v1, v[2:3] offset:{8*k}")
        a("s_waitcnt lgkmcnt(0)", "s_barrier")
        a.srd(24, 20, STAMP_OFF, 4 << 20)
        for k, (n, stride) in enumerate(((200, 8 * 128), (4096, 128))):
            for i in range((n + 1023) // 1024):
                a(f"v_add_u32 v4, {1024*i}, v0", f"v_cmp_gt_u32 vcc, {n}, v4", f"v_mul_u32_u24 v4, {stride}, v4",
                  f"s_mov_b32 s3, {k << 20}", "s_and_saveexec_b64 s[10:11], vcc", f"s_cbranch_execz K4_S{k}_{i}",
                  "buffer_load_dwordx2 v[6:7], v4, s[24:27], s3 offen offset:112", "s_waitcnt vmcnt(0)",
                  f"ds_min_u32 v1, v7 offset:{8*k}", f"ds_max_u32 v1, v6 offset:{8*k+4}", f"K4_S{k}_{i}:", "s_mov_b64 exec, -1")
        a("s_waitcnt lgkmcnt(0)", "s_barrier", "ds_read_b128 v[8:11], v1", "ds_read_b64 v[12:13], v1 offset:16", "s_waitcnt lgkmcnt(0)")
        if OPT["probe"] == 9:
            a("v_mov_b32 v2, 0", "ds_write_b32 v1, v2 offset:32", "s_waitcnt lgkmcnt(0)", "s_barrier")
            a(f"v_cmp_gt_u32 vcc, {OPT['pwn']}, v0", f"v_mul_u32_u24 v4, {OPT['pstride'] * 128}, v0",
              f"s_mov_b32 s3, {(OPT['pk'] << 20) + OPT['pw0'] * 128}", "s_and_saveexec_b64 s[10:11], vcc", "s_cbranch_execz K4_C",
              "buffer_load_dword v6, v4, s[24:27], s3 offen", f"buffer_load_dword v7, v4, s[24:27], s3 offen offset:{4*OPT['pidx']}",
              "s_waitcnt vmcnt(0)", "v_sub_u32 v6, v7, v6", "ds_max_u32 v1, v6 offset:32", "K4_C:", "s_mov_b64 exec, -1",
              "s_waitcnt lgkmcnt(0)", "s_barrier", "ds_read_b32 v9, v1 offset:32", "s_waitcnt lgkmcnt(0)",
              "v_mul_u32_u24 v9, 3277, v9", "v_lshrrev_b32 v9, 16, v9", "v_mov_b32 v8, 0")
        hi, lo = {9: (9, 8), 1: (9, 8), 2: (11, 10), 3: (13, 12), 4: (11, 8), 5: (10, 9), 6: (12, 11), 7: (8, 8)}[OPT["probe"]]
        a(f"v_sub_u32 v14, v{hi}, v{lo}", "v_min_u32 v14, 10000, v14", "v_mul_u32_u24 v14, 10, v14", "s_nop 0", "v_readfirstlane_b32 s12, v14",
          "s_memrealtime s[14:15]", "s_waitcnt lgkmcnt(0)", "K4_L:", "s_memrealtime s[16:17]", "s_waitcnt lgkmcnt(0)",
          "s_sub_u32 s16, s16, s14", "s_cmp_lt_u32 s16, s12", "s_cbranch_scc1 K4_L")
    a("K4_END:", "s_endpgm")
    return a.lines, descriptor("k4_kernel", 16, 32)


def main(path):
    head = [
        "; Edge-featured MPNN layer: out = segment_sum(silu([x[src], x[dst], e] @ w1 + b1) @ w2 + b2, dst)",
        "; k1: P = x@w1[0:256], Q = x@w1[256:512] + b1 (scaled by -log2e), edge partition by dst range, w2 re-layout",
        "; k2: per 64-channel slice, S[n] = sum over in-edges of z/(1+2^z), z = P[src] + Q[n] + e*c",
        ";     then out = -ln2 * (S @ w2) + deg * b2 after a hand-off among the eight slice workgroups of a range",
        "; kernarg: x, e_attr, src, dst, w1, b1, w2, b2, out, debug, ws (8 bytes each)",
        f"; @launch kernel=k1_kernel grid=(256,1,1) block=(512,1,1) lds={K1_LDS}",
        f"; @launch kernel=k2_kernel grid=(256,1,1) block=(1024,1,1) lds={K2_LDS}",
        '.amdgcn_target "amdgcn-amd-amdhsa--gfx950"',
        ".text",
    ]
    for i in range(3):
        if OPT["rep"] >> i & 1:
            j = [n for n, l in enumerate(head) if f"kernel=k{i+1}_kernel" in l][0]
            head.insert(j, head[j])
    if OPT["empty"] or OPT["probe"]:
        head.insert(7, "; @launch kernel=k4_kernel grid=(1,1,1) block=(1024,1,1) lds=64")
    body, desc = [], []
    for f in (k1, k2) + ((k4,) if OPT["empty"] or OPT["probe"] else ()):
        b, d = f()
        body += b
        desc += d
    out = head + body + ['.section .rodata,"a"'] + desc
    open(path, "w").write("\n".join(out) + "\n")


if __name__ == "__main__":
    if "--stamps" in sys.argv:
        STAMPS = True
        sys.argv.remove("--stamps")
    for arg in [x for x in sys.argv[1:] if "=" in x]:
        key, val = arg.split("=")
        assert key in OPT, key
        OPT[key] = int(val)
        sys.argv.remove(arg)
    main(sys.argv[1] if len(sys.argv) > 1 else "standalone__edge_featured_mpnn_mpnn__graph.s")
```

```python
import struct
import sys

N, E, D, H = 10000, 160000, 256, 512
TILE1, NT1 = 192, 53
NR = TILE1 * NT1
SS = NR * 128
P_OFF, Q_OFF, S_OFF = 0, 8 * SS, 16 * SS
RNG = 313
NCHUNK, CHUNK, CAP = 32, 5000, 224
R4BLK, R2BLK = NCHUNK * CAP * 4, NCHUNK * CAP * 2
R4_OFF = 16 * SS + 32 * 40 * 8192
R2_OFF = R4_OFF + 32 * R4BLK
NSLOT = 768
B_META = NSLOT * 32
B_FLAG = B_META + 2560
B_CTR = B_FLAG + 4
B_GO = B_CTR + 4
B_CNTA = B_GO + 64
BLOB = 27 * 1024
BLOB_OFF = R2_OFF + 32 * R2BLK
FL_OFF = BLOB_OFF + 32 * BLOB
W2F_OFF = FL_OFF + 32 * 4096
CF_OFF = W2F_OFF + 262144
WS_END = CF_OFF + 4096
SRB = 40 * 8192
MAXDEG = 48
NGRP = 40


def fbits(x):
    return struct.unpack("<I", struct.pack("<f", x))[0]


NLOG2E = fbits(-1.4426950408889634)
NLN2 = fbits(-0.6931471805599453)

assert all((d * 13401) >> 22 == d // RNG for d in range(10016))
assert all((q * 2341) >> 17 == q // 56 for q in range(2048))
assert all((q * 2341) >> 16 == q // 28 for q in range(1024))


STAMPS = False
OPT = dict(sc1=1, sc3=1, prio=1, empty=0, ipf=1, rot=1, pf=0, light=0, fine=0, la=6, pf0=2, x0pos=0, xrot=0, x1early=0, xspread=1, helper=0, ntx=0, ntw=0, nte=0, blobsc=1, xtouch=7, nto=0, ntw2=0, nolo=1, usem4=1, dup=0, rep=0, clip=1, pfearly=1, pfbar=0, k3opt=1, stag=1, pollf=0, bb=4, early=8, tw2=0, hprio=1, late=1, f2early=1, outearly=0, split=0, estart=1, depth=2, diag=0, endg=0, eg1=8, eg2=4, rot3=0, k3w=1, probe=0, pk=0, pidx=0, pw0=0, pwn=0, pstride=1, pfq=0, pfw=1)
STAMP_OFF = 48 << 20


class Asm:
    def stamp_setup(self, vreg, kidx):
        self.st_v, self.st_n, self.st_k = vreg, 0, kidx
        if STAMPS:
            self(f"v_mov_b32 v{vreg}, 0", "s_memrealtime s[100:101]", "s_waitcnt lgkmcnt(0)", f"v_writelane_b32 v{vreg}, s100, 29")
            self.stamp()

    def stamp(self, idx=None):
        if STAMPS and not (OPT["light"] and idx != 27 and self.st_n > 0):
            if idx is None:
                idx = self.st_n
                self.st_n += 1
            self("s_waitcnt lgkmcnt(0)", "s_memtime s[100:101]", "s_waitcnt lgkmcnt(0)", f"v_writelane_b32 v{self.st_v}, s100, {idx}")
            self.lg = []

    def stamp_dump(self, srd, wsreg, swave, nwaves, tmp=2):
        if not STAMPS:
            return
        self("s_waitcnt vmcnt(0)")
        self.stamp(27)
        self("s_memrealtime s[100:101]", "s_waitcnt lgkmcnt(0)", f"v_writelane_b32 v{self.st_v}, s100, 28")
        self("s_getreg_b32 s3, hwreg(HW_REG_HW_ID)", f"v_writelane_b32 v{self.st_v}, s3, 30")
        self("s_getreg_b32 s3, hwreg(HW_REG_XCC_ID)", f"v_writelane_b32 v{self.st_v}, s3, 31")
        self.srd(srd, wsreg, STAMP_OFF + (self.st_k << 20), 1 << 20)
        self(f"s_mul_i32 s3, s2, {nwaves}", f"s_add_u32 s3, s3, s{swave}", "s_lshl_b32 s3, s3, 7", "s_mov_b64 exec, -1",
             f"v_lshlrev_b32 v{tmp}, 2, v1", "s_mov_b32 exec_hi, 0",
             f"buffer_store_dword v{self.st_v}, v{tmp}, s[{srd}:{srd+3}], s3 offen")

    def __init__(self):
        self.lines = []
        self.vm = []
        self.lg = []

    def __call__(self, *ls):
        for l in ls:
            self.lines.append(l if l.endswith(":") else "    " + l)

    def vmem(self, line, tag=None):
        self(line)
        self.vm.append(tag)

    def lds(self, line, tag=None):
        self(line)
        self.lg.append(tag)

    @staticmethod
    def _need(q, tags):
        last = -1
        for i, t in enumerate(q):
            if t in tags:
                last = i
        return None if last < 0 else len(q) - 1 - last

    def wait(self, vm=None, lg=None):
        parts = []
        if vm is not None:
            n = 0 if vm == "all" else self._need(self.vm, vm if isinstance(vm, (list, tuple, set)) else [vm])
            if n is not None:
                n = min(n, 63)
                parts.append(f"vmcnt({n})")
                self.vm = self.vm[len(self.vm) - n:] if n else []
        if lg is not None:
            n = 0 if lg == "all" else self._need(self.lg, lg if isinstance(lg, (list, tuple, set)) else [lg])
            if n is not None:
                n = min(n, 15)
                parts.append(f"lgkmcnt({n})")
                self.lg = self.lg[len(self.lg) - n:] if n else []
        if parts:
            self("s_waitcnt " + " ".join(parts))

    def srd(self, s, base, off, size, stride=0):
        if off == 0:
            self(f"s_mov_b32 s{s}, s{base}", f"s_and_b32 s{s+1}, s{base+1}, 0xffff")
        else:
            self(f"s_add_u32 s{s}, s{base}, {off}", f"s_addc_u32 s{s+1}, s{base+1}, 0",
                 f"s_and_b32 s{s+1}, s{s+1}, 0xffff")
        if stride:
            self(f"s_or_b32 s{s+1}, s{s+1}, {stride << 16}")
        self(f"s_mov_b32 s{s+2}, {size}", f"s_mov_b32 s{s+3}, 0x20000")


POLLF = ["sc1", "sc0 sc1", "sc1 nt", "sc0 sc1 nt"]


def wt():
    return " sc1" if OPT["sc1"] else ""


def code_prefetch(a, first, last, wshift, vtmp, vsink, tag):
    if not OPT["ipf"]:
        return
    a(f"s_getpc_b64 s[22:23]", f"{tag}_PC:", f"s_sub_u32 s22, s22, {tag}_PC-{first}", "s_subb_u32 s23, s23, 0",
      "s_lshr_b32 s3, s2, 3", f"s_lshl_b32 s3, s3, {wshift + 10}", f"v_lshlrev_b32 v{vtmp}, 4, v0", f"v_add_u32 v{vtmp}, s3, v{vtmp}",
      f"v_cmp_gt_u32 vcc, {last}-{first}-16, v{vtmp}", "s_and_saveexec_b64 s[4:5], vcc", f"s_cbranch_execz {tag}_PCX",
      f"global_load_dwordx4 {vr(vsink,4)}, v{vtmp}, s[22:23]", f"{tag}_PCX:", "s_mov_b64 exec, -1")


def vr(a, n=1):
    return f"v{a}" if n == 1 else f"v[{a}:{a+n-1}]"


def sr(a, n=1):
    return f"s{a}" if n == 1 else f"s[{a}:{a+n-1}]"


def header(a, name):
    a.lines += [f".globl {name}", ".p2align 8", f".type {name},@function", f"{name}:"]


def descriptor(name, nv, ns):
    acc = (nv + 3) // 4 * 4
    return [".p2align 6", f".amdhsa_kernel {name}", f"  .amdhsa_next_free_vgpr {nv}",
            f"  .amdhsa_next_free_sgpr {ns}", f"  .amdhsa_accum_offset {acc}",
            "  .amdhsa_group_segment_fixed_size 0", "  .amdhsa_kernarg_size 88",
            "  .amdhsa_user_sgpr_count 2", "  .amdhsa_user_sgpr_kernarg_segment_ptr 1",
            "  .amdhsa_system_sgpr_workgroup_id_x 1", "  .amdhsa_float_denorm_mode_32 3",
            ".end_amdhsa_kernel"]


K1_REG = 40960
K1_LDS = 4 * K1_REG
K1_CNT = 0
K1_I16 = 256
K1_I32 = K1_I16 + 32 * CAP * 2
K1_C2 = 44 * 1024
K1_H2 = K1_C2 + 4 + 1280
K1_NB = K1_H2 + 260
K1_BL = 47 * 1024
assert K1_I32 + 32 * CAP * 4 <= K1_C2 and K1_NB + 1280 <= K1_BL


def k1():
    a = Asm()
    header(a, "k1_kernel")
    sX, sW, sO, sB = 24, 28, 32, 36
    sw, stile, su, st0, st1, sWB, sXo, sOo, sK, sMask, sRB, sq, sWo, sWn, sWc = 56, 57, 58, 59, 60, 61, 62, 63, 64, 66, 67, 68, 69, 70, 71
    vLane, vT0, vT1, vT2 = 1, 2, 3, 4
    vAad = 6
    vTr = 14
    vXd = 16
    vWd, vSt = 20, 21
    vBias = 22
    vA = 24
    vAcc = 40
    vW = 104
    vWx = vW + 128
    nv = vWx + 3

    a("s_cmp_ge_u32 s2, 256", "s_cbranch_scc1 K1_END")
    a.stamp_setup(5, 0)
    code_prefetch(a, "k1_kernel", "K2_END", 3, 2, vW + 124, "K1")
    a("s_load_dwordx16 s[4:19], s[0:1], 0", "s_load_dwordx2 s[20:21], s[0:1], 80", "s_load_dwordx2 s[52:53], s[0:1], 72")
    a(f"v_lshrrev_b32 v{vT0}, 6, v0", f"v_and_b32 v{vLane}, 63, v0", f"v_readfirstlane_b32 s{sw}, v{vT0}")
    a(f"s_lshr_b32 s{sq}, s2, 3", f"s_cmp_lt_u32 s{sq}, 4", "s_cbranch_scc1 K1_SORT")
    a(f"s_cmp_ge_u32 s{sw}, 4", "s_cbranch_scc1 K1_END", f"s_sub_u32 s{sq}, s{sq}, 4")
    a(f"s_and_b32 s{su}, s{sq}, 3", f"s_lshl_b32 s{su}, s{su}, 2", f"s_lshr_b32 s{sq}, s{sq}, 2",
      f"s_lshl_b32 s{st0}, s{sq}, 3", f"s_and_b32 s{stile}, s2, 7", f"s_add_u32 s{stile}, s{stile}, s{st0}",
      f"s_add_u32 s{su}, s{su}, s{sw}", f"s_cmp_ge_u32 s{stile}, {NT1}", "s_cbranch_scc1 K1_PREP")

    a(f"s_mul_i32 s{sRB}, s{sw}, {K1_REG}", f"s_add_u32 s{sWB}, s{sRB}, 8192")
    a(f"s_mov_b32 s{sK}, {NLOG2E}", f"s_mov_b32 s{sK+1}, {NLOG2E}")
    a(f"s_lshl_b32 s{sq}, s{sq}, 2" if OPT["rot"] else f"s_mov_b32 s{sq}, 0")
    a(f"v_lshrrev_b32 v{vT0}, 5, v{vLane}", f"s_lshl_b32 s{st0}, s{sw}, 3", f"v_add_u32 v{vT0}, s{st0}, v{vT0}",
      f"v_and_b32 v{vT1}, 31, v{vLane}")
    for m in range(4):
        a(f"v_add_u32 v{vT2}, {2*m}, v{vT0}", f"v_and_b32 v{vXd+m}, 15, v{vT2}", f"v_xor_b32 v{vXd+m}, v{vXd+m}, v{vT1}",
          f"v_add_u32 v{vXd+m}, s{sq}, v{vXd+m}", f"v_and_b32 v{vXd+m}, 31, v{vXd+m}",
          f"v_lshlrev_b32 v{vXd+m}, 4, v{vXd+m}", f"v_lshl_add_u32 v{vXd+m}, v{vT0}, 9, v{vXd+m}")
    a(f"s_mul_i32 s{sXo}, s{stile}, {TILE1*512}")
    sJ = 40
    a(f"s_lshr_b32 s{sJ}, s{su}, 2" if OPT["xrot"] else f"s_mov_b32 s{sJ}, 0")
    for j in range(1, TILE1 // 32):
        a(f"s_add_u32 s{sJ+j}, s{sJ+j-1}, 1", f"s_cmp_eq_u32 s{sJ+j}, {TILE1 // 32}", f"s_cselect_b32 s{sJ+j}, 0, s{sJ+j}")
    a(f"v_lshrrev_b32 v{vT0}, 3, v{vLane}", f"v_and_b32 v{vT1}, 7, v{vLane}", f"v_and_b32 v{vT2}, 16, v{vLane}",
      f"v_lshrrev_b32 v{vT2}, 2, v{vT2}", f"v_xor_b32 v{vT1}, v{vT1}, v{vT2}", f"v_lshlrev_b32 v{vT1}, 4, v{vT1}",
      f"v_lshl_add_u32 v{vWd}, v{vT0}, 10, v{vT1}")
    for i in range(1, 4):
        a(f"v_add_u32 v{vWx+i-1}, {7168*i}, v{vWd}")
    a(f"s_lshr_b32 s{st0}, s{su}, 3", f"s_lshl_b32 s{st0}, s{st0}, 18", f"s_and_b32 s{sMask}, s{su}, 7",
      f"s_lshl_b32 s{sMask}, s{sMask}, 7", f"s_add_u32 s{sWo}, s{st0}, s{sMask}", f"s_lshl_b32 s{sWn}, s{sq}, 13")
    a(f"v_and_b32 v{vT0}, 31, v{vLane}", f"v_lshrrev_b32 v{vT1}, 3, v{vT0}", f"v_mul_u32_u24 v{vAad}, {K1_REG}, v{vT1}",
      f"v_and_b32 v{vT1}, 7, v{vT0}", f"v_lshl_add_u32 v{vAad}, v{vT1}, 9, v{vAad}",
      f"v_lshrrev_b32 v{vT1}, 5, v{vLane}", f"v_and_b32 v{vT2}, 15, v{vLane}", f"v_xor_b32 v{vT2}, v{vT2}, v{vT1}",
      f"v_lshl_add_u32 v{vAad}, v{vT2}, 4, v{vAad}")
    for s in range(1, 8):
        a(f"v_xor_b32 v{vAad+s}, {32*s}, v{vAad}")
    a(f"v_lshlrev_b32 v{vSt}, 9, v{vT1}", f"v_lshl_add_u32 v{vSt}, v{vT0}, 2, v{vSt}")
    a(f"v_lshlrev_b32 v{vTr}, 10, v{vT1}", f"v_bfe_u32 v{vT2}, v{vLane}, 2, 2", f"v_lshl_add_u32 v{vTr}, v{vT2}, 7, v{vTr}",
      f"v_bfe_u32 v{vT2}, v{vLane}, 3, 1", f"v_lshl_add_u32 v{vTr}, v{vT2}, 6, v{vTr}",
      f"v_bfe_u32 v{vT2}, v{vLane}, 4, 1", f"v_lshl_add_u32 v{vTr}, v{vT2}, 5, v{vTr}",
      f"v_and_b32 v{vT2}, 3, v{vLane}", f"v_lshl_add_u32 v{vTr}, v{vT2}, 3, v{vTr}",
      f"v_add_u32 v{vTr}, s{sWB}, v{vTr}", f"v_xor_b32 v{vTr+1}, 64, v{vTr}", f"v_lshlrev_b32 v{vT0}, 1, v{vT0}")
    a(f"s_mul_i32 s{sOo}, s{su}, {SS}", f"s_mul_i32 s{st0}, s{stile}, {TILE1*128}", f"s_add_u32 s{sOo}, s{sOo}, s{st0}")
    a("s_waitcnt lgkmcnt(0)")
    a.srd(sX, 4, 0, N * 512)
    a.srd(sW, 12, 0, 513 * 1024)

    def x_dma(j):
        a(f"s_add_u32 m0, s{sRB}, {j*4096}", f"s_lshl_b32 s{st0}, s{sJ+j}, 14", f"s_add_u32 s{st0}, s{st0}, s{sXo}")
        for m in range(4):
            a.vmem(f"buffer_load_dwordx4 v{vXd+m}, {sr(sX,4)}, s{st0} offen offset:{1024*m}{' nt' if OPT['ntx'] else ''} lds", f"x{j}")

    def w_dma(s):
        if s % 2 == 0:
            a(f"s_add_u32 m0, s{sWB}, {s*2048}", f"s_add_u32 s{sWc}, s{sWo}, s{sWn}")
        elif OPT["x0pos"] == s:
            a(f"s_add_u32 m0, s{sWB}, {(s-1)*2048}", "s_nop 0")
        for i in (2 * (s % 2), 2 * (s % 2) + 1):
            reg = vWd if i == 0 else vWx + i - 1
            a.vmem(f"buffer_load_dwordx4 v{reg}, {sr(sW,4)}, s{sWc} offen offset:{1024*i}{' nt' if OPT['ntw'] else ''} lds", f"w{s}")
        if s % 2 == 1:
            a(f"s_add_u32 s{sWn}, s{sWn}, 32768", f"s_and_b32 s{sWn}, s{sWn}, 0x3ffff")

    def x_touch():
        a(f"s_lshr_b32 s{st0}, s{su}, 2", f"s_mul_i32 s{st0}, s{st0}, {TILE1*128}", f"s_mul_i32 s{st1}, s{sw}, {TILE1*32}",
          f"s_add_u32 s{st0}, s{st0}, s{st1}", f"s_add_u32 s{st0}, s{st0}, s{sXo}", f"v_lshlrev_b32 v{vT1}, 7, v{vLane}",
          f"s_mov_b32 exec_hi, {(1 << (TILE1 // 4 - 32)) - 1}")
        a.vmem(f"buffer_load_dword v{vT2}, v{vT1}, {sr(sX,4)}, s{st0} offen{' nt' if OPT['ntx'] else ''}", "touch")
        a("s_mov_b32 exec_hi, -1")

    LA = OPT["la"]
    a.stamp()
    if OPT["xtouch"] == 1:
        x_touch()
    for s in range(LA):
        if s == OPT["x0pos"]:
            x_dma(0)
        w_dma(s)
        if OPT["xtouch"] == 2 + s:
            x_touch()
    if OPT["x1early"]:
        x_dma(1)
    a.srd(sO, 20, 0, 16 * SS)
    if OPT["dup"]:
        a.srd(48, 20, 64 << 20, 16 * SS)
    a.srd(sB, 14, 0, 1024)
    a(f"s_cmp_ge_u32 s{su}, 8", f"s_cselect_b32 s{sB+2}, s{sB+2}, 0")
    a.stamp()

    def wfrag(s, b):
        return vW + (s * 2 + b) * 4

    def a_read(j, s):
        a.lds(f"ds_read_b128 {vr(vA + 4*((16*j+s) % 4), 4)}, v{vAad + (s & 7)} offset:{4096*j + 256*(s >> 3)}", f"a{j}_{s}")

    def w_read(s):
        a.wait(vm=f"w{s}")
        for b in range(2):
            for q in range(2):
                a.lds(f"ds_read_b64_tr_b16 {vr(wfrag(s, b) + 2*q, 2)}, v{vTr+b} offset:{s*2048 + q*512}", f"t{s}")

    def mfma(j, s, b):
        acc = vAcc + 32 * (j & 1) + 16 * b
        c = "0" if s == 0 else vr(acc, 16)
        a(f"v_mfma_f32_32x32x16_bf16 {vr(acc,16)}, {vr(vA + 4*((16*j+s) % 4), 4)}, {vr(wfrag(s, b), 4)}, {c}")

    def epilogue_ops(j):
        acc = vAcc + 32 * (j & 1)
        ops = [("s", f"s_lshl_b32 s{st1}, s{sJ+j}, 12"), ("s", f"s_add_u32 s{st1}, s{st1}, s{sOo}")]
        for r in range(0, 16, 2):
            for rr in (r, r + 1):
                ops.append(("v", f"v_fma_f32 v{acc+rr}, v{acc+rr}, s{sK}, v{vBias}"))
                ops.append(("v", f"v_fma_f32 v{acc+16+rr}, v{acc+16+rr}, s{sK}, v{vBias+1}"))
            for rr in (r, r + 1):
                ops.append(("v", f"v_cvt_pk_bf16_f32 v{acc+rr}, v{acc+rr}, v{acc+16+rr}"))
            for rr in (r, r + 1):
                ops.append(("m", f"buffer_store_dword v{acc+rr}, v{vSt}, {sr(sO,4)}, s{st1} offen offset:{(8*(rr>>2) + (rr&3))*128}{wt()}"))
        return ops

    def emit_op(op):
        if op[0] == "m":
            a.vmem(op[1], "st")
            if OPT["dup"]:
                a.vmem(op[1].replace(sr(sO, 4), sr(48, 4)), "st")
        else:
            a(op[1])

    NJ = TILE1 // 32
    a.wait(vm="x0")
    a("s_barrier")
    a.stamp()
    PF0 = OPT["pf0"]
    for s in range(PF0):
        w_read(s)
        a_read(0, s)
    for s in range(16):
        if s + PF0 < 16:
            w_read(s + PF0)
            a_read(0, s + PF0)
        a.wait(lg=[f"t{s}", f"a0_{s}"])
        mfma(0, s, 0)
        if s + LA < 16:
            w_dma(s + LA)
        elif s + LA == 16:
            if not OPT["x1early"]:
                x_dma(1)
            a.vmem(f"buffer_load_ushort v{vBias}, v{vT0}, {sr(sB,4)}, s{sMask} offen", "x1")
            a.vmem(f"buffer_load_ushort v{vBias+1}, v{vT0}, {sr(sB,4)}, s{sMask} offen offset:64", "x1")
        elif s + LA - 15 < (3 if OPT["xspread"] else NJ):
            x_dma(s + LA - 15)
        mfma(0, s, 1)
        if OPT["fine"] and s % 2 == 1 and s < 15:
            a.stamp()
    PFA = 3
    a.stamp()
    a.wait(vm="x1")
    a("s_barrier")
    for s in range(PFA):
        a_read(1, s)
    a(f"v_lshlrev_b32 v{vBias}, 16, v{vBias}", f"v_lshlrev_b32 v{vBias+1}, 16, v{vBias+1}",
      f"v_mul_f32 v{vBias}, s{sK}, v{vBias}", f"v_mul_f32 v{vBias+1}, s{sK}, v{vBias+1}")
    a.stamp()
    for j in range(1, NJ):
        ops = epilogue_ops(j - 1)
        for s in range(16):
            if s + PFA == 16 and j < NJ - 1:
                a.wait(vm=f"x{j+1}")
                a("s_barrier")
            a.wait(lg=f"a{j}_{s}")
            mfma(j, s, 0)
            if OPT["xspread"] and s == 1 and j + 2 < NJ:
                x_dma(j + 2)
            if s + PFA < 16:
                a_read(j, s + PFA)
            elif j < NJ - 1:
                a_read(j + 1, s + PFA - 16)
            if s >= 3:
                for _ in range(3 if s == 3 else 2):
                    if ops:
                        emit_op(ops.pop(0))
            mfma(j, s, 1)
            if s >= 3:
                for _ in range(3):
                    if ops:
                        emit_op(ops.pop(0))
        assert not ops
        a.stamp()
    a("s_nop 15")
    for op in epilogue_ops(NJ - 1):
        emit_op(op)
    a.stamp_dump(sX, 20, sw, 8)
    a("s_endpgm")

    a("K1_PREP:")
    a.vm, a.lg = [], []
    a(f"s_cmp_ge_u32 s{stile}, {NT1 + 2}", "s_cbranch_scc1 K1_CPREP")
    sW2, sF = sX, sW
    vL = vW
    vOut = vW + 32
    a(f"s_sub_u32 s{st0}, s{stile}, {NT1}", f"s_lshl_b32 s{st0}, s{st0}, 4", f"s_add_u32 s{su}, s{su}, s{st0}")
    a(f"v_and_b32 v{vT0}, 15, v{vLane}", f"v_lshrrev_b32 v{vT1}, 4, v{vLane}", f"v_lshlrev_b32 v{vT0}, 2, v{vT0}",
      f"v_lshl_add_u32 v{vWd}, v{vT1}, 11, v{vT0}", f"v_lshlrev_b32 v{vSt}, 4, v{vLane}")
    a(f"s_lshr_b32 s{st0}, s{su}, 2", f"s_lshl_b32 s{st0}, s{st0}, 6", f"s_and_b32 s{st1}, s{su}, 3",
      f"s_lshl_b32 s{st1}, s{st1}, 16", f"s_add_u32 s{sXo}, s{st0}, s{st1}", f"s_lshl_b32 s{sOo}, s{su}, 13")
    a("s_waitcnt lgkmcnt(0)")
    a.srd(sW2, 16, 0, 512 * 512)
    a.srd(sF, 20, W2F_OFF, 262144)
    for s in range(4):
        for i in range(8):
            row = (s >> 1) * 64 + 16 * (s & 1) + (i >> 1) + 32 * (i & 1)
            a(f"s_add_u32 s{st0}, s{sXo}, {row*512}")
            a.vmem(f"buffer_load_dword v{vL + 8*s + i}, v{vWd}, {sr(sW2,4)}, s{st0} offen{' nt' if OPT['ntw2'] else ''}", f"l{s}")
    a(f"s_mov_b32 s{sK}, 0x05040100", f"s_mov_b32 s{sK+1}, 0x07060302")
    for s in range(4):
        a.wait(vm=f"l{s}")
        for b in range(2):
            o = vOut + 8 * s + 4 * b
            for m in range(4):
                a(f"v_perm_b32 v{o+m}, v{vL + 8*s + 2*m + 1}, v{vL + 8*s + 2*m}, s{sK+b}")
            a(f"s_add_u32 s{st0}, s{sOo}, {(2*s+b)*1024}")
            a.vmem(f"buffer_store_dwordx4 {vr(o,4)}, v{vSt}, {sr(sF,4)}, s{st0} offen{wt()}")
    a("s_endpgm")

    a("K1_CPREP:")
    a(f"s_cmp_ge_u32 s{su}, 8", "s_cbranch_scc1 K1_END")
    a(f"v_and_b32 v{vT1}, 1, v{vLane}", f"v_lshlrev_b32 v{vT1}, 6, v{vT1}",
      f"v_bfe_u32 v{vT2}, v{vLane}, 2, 1", f"v_lshl_add_u32 v{vT1}, v{vT2}, 5, v{vT1}",
      f"v_bfe_u32 v{vT2}, v{vLane}, 3, 1", f"v_lshl_add_u32 v{vT1}, v{vT2}, 2, v{vT1}",
      f"v_bfe_u32 v{vT2}, v{vLane}, 1, 1", f"v_lshl_add_u32 v{vT1}, v{vT2}, 1, v{vT1}",
      f"v_bfe_u32 v{vT0}, v{vLane}, 4, 1", f"v_lshrrev_b32 v{vT2}, 5, v{vLane}", f"v_cmp_eq_u32 vcc, v{vT0}, v{vT2}",
      f"v_lshlrev_b32 v{vT0}, 3, v{vLane}", f"s_lshl_b32 s{st0}, s{su}, 7", f"s_lshl_b32 s{st1}, s{su}, 9",
      f"s_mov_b32 s{sK}, {NLOG2E}", "s_waitcnt lgkmcnt(0)")
    a.srd(sX, 12, 512 * 1024, 1024)
    a.srd(sW, 20, CF_OFF, 4096)
    for i in range(4):
        a(f"buffer_load_ushort v{8+i}, v{vT1}, {sr(sX,4)}, s{st0} offen offset:{8*i}")
    a("s_waitcnt vmcnt(0)")
    for i in range(4):
        a(f"v_lshlrev_b32 v{8+i}, 16, v{8+i}", f"v_mul_f32 v{8+i}, s{sK}, v{8+i}")
    a("v_cvt_pk_bf16_f32 v12, v8, v9", "v_cvt_pk_bf16_f32 v13, v10, v11", "v_cndmask_b32 v12, 0, v12, vcc", "v_cndmask_b32 v13, 0, v13, vcc",
      f"buffer_store_dwordx2 v[12:13], v{vT0}, {sr(sW,4)}, s{st1} offen{wt()}", "s_endpgm")

    a("K1_SORT:")
    a.vm, a.lg = [], []
    nt = " nt" if OPT["nte"] else ""
    sDst, sSrc, sE, sR4, sR2, sDb, sBl, sDg = 24, 28, 32, 36, 40, 44, 24, 28
    sc = su
    vDst, vSrc, vEe, vSl, vRg, vRd, vCn, vRo = 8, 20, 32, 40, 56, 72, 96, 100
    vOne, vBig, vO16, vO8 = 6, 7, 108, 109
    a(f"s_mov_b32 s{sc}, s2")
    a(f"v_lshlrev_b32 v{vO16}, 4, v0", f"v_lshlrev_b32 v{vO8}, 3, v0")
    a(f"s_mul_i32 s{st0}, s{sc}, {CHUNK*4}", f"s_mul_i32 s{st1}, s{sc}, {CHUNK*2}")
    for r in range(4):
        a(f"v_mov_b32 v{vRd+r}, 0", f"v_mov_b32 v{vRd+4+r}, 0xffff")
    for i in range(2):
        a(f"ds_write_b128 v{vO16}, {vr(vRd,4)} offset:{8192*i}")
    a(f"ds_write_b64 v{vO8}, {vr(vRd,2)} offset:{K1_C2}")
    a("s_waitcnt lgkmcnt(0)")
    a.srd(sDst, 10, f"s{st0}", CHUNK * 4)
    for i in range(3):
        a(f"s_mov_b32 s{sXo}, {8192*i}")
        a.vmem(f"buffer_load_dwordx4 {vr(vDst+4*i,4)}, v{vO16}, {sr(sDst,4)}, s{sXo} offen{nt}", f"d{i}")
    a("s_barrier")
    a.srd(sSrc, 8, f"s{st0}", CHUNK * 4)
    a.srd(sE, 6, f"s{st1}", CHUNK * 2)
    for i in range(3):
        a(f"s_mov_b32 s{st0}, {8192*i}", f"s_mov_b32 s{st1}, {4096*i}")
        a.vmem(f"buffer_load_dwordx4 {vr(vSrc+4*i,4)}, v{vO16}, {sr(sSrc,4)}, s{st0} offen{nt}", f"s{i}")
        a.vmem(f"buffer_load_dwordx2 {vr(vEe+2*i,2)}, v{vO8}, {sr(sE,4)}, s{st1} offen{nt}", f"s{i}")
    a.stamp(7)
    a.srd(sR4, 20, R4_OFF, 32 * R4BLK)
    a.srd(sR2, 20, R2_OFF, 32 * R2BLK)
    a.srd(sDb, 52, 0, 256)
    a(f"s_mov_b32 s{st0}, 13401", f"s_mov_b32 s{st1}, {-RNG & 0xffffffff}", f"s_mov_b32 s{sMask}, 0xffff0000",
      f"v_mov_b32 v{vOne}, 1", f"v_cmp_gt_u32 vcc, {CHUNK//4 - 1024}, v0", f"s_mov_b64 {sr(sK,2)}, vcc",
      f"s_mov_b32 s{sXo}, {CAP}")

    a.stamp(8)
    for i in range(3):
        a.wait(vm=f"d{i}")
        if i == 0:
            a.stamp(9)
        if i == 2:
            a(f"s_mov_b64 exec, {sr(sK,2)}")
        for n in range(4 * i, 4 * i + 4):
            a(f"v_mul_u32_u24 v{vRg+n}, s{st0}, v{vDst+n}", f"v_lshrrev_b32 v{vRg+n}, 22, v{vRg+n}",
              f"v_lshlrev_b32 v{vSl+n}, 2, v{vRg+n}")
            a.lds(f"ds_add_rtn_u32 v{vSl+n}, v{vSl+n}, v{vOne} offset:{K1_CNT}", f"sl{n}")
            a(f"v_mad_i32_i24 v{vDst+n}, v{vRg+n}, s{st1}, v{vDst+n}", f"v_lshl_add_u32 v{vDst+n}, v{vDst+n}, 2, 4")
        if i == 2:
            a("s_mov_b64 exec, -1")
    a.stamp(10)
    for n in range(12):
        if n == 8:
            a(f"s_mov_b64 exec, {sr(sK,2)}")
        a.wait(lg=f"sl{n}")
        a(f"v_min_u32 v{vSl+n}, {CAP - 1}, v{vSl+n}", f"v_mad_u32_u24 v{vSl+n}, v{vRg+n}, s{sXo}, v{vSl+n}",
          f"v_lshlrev_b32 v{vRg+n}, 1, v{vSl+n}")
        a.lds(f"ds_write_b16 v{vRg+n}, v{vDst+n} offset:{K1_I16}")
    a("s_mov_b64 exec, -1")
    a(f"s_mul_i32 s{st0}, s{sc}, {CAP*4}", f"s_mul_i32 s{st1}, s{sc}, {CAP*2}",
      f"s_mov_b32 s{sXo}, {R4BLK - CAP*4}", f"s_mov_b32 s{sOo}, {R2BLK - CAP*2}")
    for i in range(2):
        a(f"v_add_u32 v{vT2}, {512*i}, v0", f"v_mul_u32_u24 v{vT2}, 2341, v{vT2}", f"v_lshrrev_b32 v{vT2}, 16, v{vT2}",
          f"v_mad_u32_u24 v{vRo+4+i}, v{vT2}, s{sOo}, v{vO16}", f"v_add_u32 v{vRo+4+i}, {8192*i}, v{vRo+4+i}",
          f"v_lshlrev_b32 v{vCn+i}, 2, v{vT2}")
    a.wait(lg="all")
    a("s_barrier")
    a.stamp(1)
    for i in range(2):
        a.lds(f"ds_read_b128 {vr(vRd+16+4*i,4)}, v{vO16} offset:{K1_I16 + 8192*i}", f"h{i}")
        a.lds(f"ds_read_b32 v{vCn+i}, v{vCn+i} offset:{K1_CNT}", f"h{i}")
    for i in range(2):
        a.wait(lg=f"h{i}")
        a(f"v_cmp_ge_u32 vcc, {CAP}, v{vCn+i}", "s_nop 1", f"v_cndmask_b32 v{vRd+16+4*i}, -1, v{vRd+16+4*i}, vcc")
        a.vmem(f"buffer_store_dwordx4 {vr(vRd+16+4*i,4)}, v{vRo+4+i}, {sr(sR2,4)}, s{st1} offen sc1", "r2")
    for i in range(3):
        a.wait(vm=f"s{i}")
        if i == 2:
            a(f"s_mov_b64 exec, {sr(sK,2)}")
        for n in range(4 * i, 4 * i + 4):
            if n & 1:
                a(f"v_and_or_b32 v{vSrc+n}, v{vEe+n//2}, s{sMask}, v{vSrc+n}")
            else:
                a(f"v_lshl_or_b32 v{vSrc+n}, v{vEe+n//2}, 16, v{vSrc+n}")
            a(f"v_lshlrev_b32 v{vSl+n}, 2, v{vSl+n}")
            a.lds(f"ds_write_b32 v{vSl+n}, v{vSrc+n} offset:{K1_I32}")
    a("s_mov_b64 exec, -1")
    for i in range(4):
        a(f"v_add_u32 v{vT2}, {512*i}, v0", f"v_mul_u32_u24 v{vT2}, 2341, v{vT2}", f"v_lshrrev_b32 v{vT2}, 17, v{vT2}",
          f"v_mad_u32_u24 v{vRo+i}, v{vT2}, s{sXo}, v{vO16}", f"v_add_u32 v{vRo+i}, {8192*i}, v{vRo+i}")
    a(f"s_lshl_b32 s{sWo}, s{sc}, 2", f"v_mov_b32 v{vBig}, s{sWo}")
    a.wait(vm="all", lg="all")
    a("s_barrier")
    a.stamp(11)
    a(f"s_cmp_lg_u32 s{sw}, 0", "s_cbranch_scc1 K1_F1", "s_mov_b64 exec, 1",
      f"buffer_store_dword v{vOne}, v{vBig}, {sr(sDb,4)}, 0 offen sc1", "s_mov_b64 exec, -1", "K1_F1:")
    for i in range(4):
        a.lds(f"ds_read_b128 {vr(vRd+4*i,4)}, v{vO16} offset:{K1_I32 + 8192*i}", f"g{i}")
    for i in range(4):
        a.wait(lg=f"g{i}")
        a.vmem(f"buffer_store_dwordx4 {vr(vRd+4*i,4)}, v{vRo+i}, {sr(sR4,4)}, s{st0} offen sc1")
    a(f"s_mul_i32 s{st0}, s{sc}, {R4BLK}", f"s_add_u32 s{st0}, s{st0}, {R4_OFF}", f"s_mul_i32 s{st1}, s{sc}, {R2BLK}",
      f"s_add_u32 s{st1}, s{st1}, {R2_OFF}", f"s_mul_i32 s{sXo}, s{sc}, {BLOB}", f"s_add_u32 s{sXo}, s{sXo}, {BLOB_OFF}",
      f"s_lshl_b32 s{sOo}, s{sc}, 12", f"s_add_u32 s{sOo}, s{sOo}, {FL_OFF}")
    a.srd(sBl, 20, f"s{sXo}", BLOB)
    a.srd(sDg, 20, f"s{sOo}", 3072)
    for r in range(4):
        a(f"v_mov_b32 v{vDst+r}, 0xffff")
    a(f"v_add_u32 v{vT0}, {K1_BL}, v{vO16}", f"v_mov_b32 v{vDst+4}, 0", f"v_mov_b32 v{vDst+5}, 0", f"v_mov_b32 v{vDst+6}, {K1_BL + BLOB}")
    for i in range(3):
        a(f"ds_write_b128 v{vT0}, {vr(vDst,4)} offset:{8192*i}")
    a(f"v_add_u32 v{vT1}, {K1_BL + B_META}, v{vO8}", f"ds_write_b64 v{vT1}, {vr(vDst+4,2)}",
      f"v_mov_b32 v{vT1}, {K1_NB - 4}", f"ds_write_b32 v{vT1}, v{vDst+6}")
    a(f"buffer_store_dwordx2 {vr(vDst+4,2)}, v{vO8}, {sr(sDg,4)}, 0 offen sc1")
    for n in range(16):
        a(f"v_mov_b32 v{48+n}, 0")
    a("s_waitcnt vmcnt(0) lgkmcnt(0)")
    a.vm, a.lg = [], []
    a.srd(sR4, 20, f"s{st0}", R4BLK)
    a.srd(sR2, 20, f"s{st1}", R2BLK)
    a("s_barrier")
    a.stamp(2)

    vFa, vFd = 110, 111
    a(f"v_lshlrev_b32 v{vFa}, 2, v{vLane}")

    def poll_issue(tag, word, wave):
        a(f"s_cmp_lg_u32 s{sw}, {wave}", f"s_cbranch_scc1 K1_{tag}I", "s_mov_b32 exec_hi, 0",
          f"buffer_load_dword v{vFd}, v{vFa}, {sr(sDb,4)}, 0 offen offset:{word} {POLLF[OPT['pollf']]}", "s_mov_b32 exec_hi, -1", f"K1_{tag}I:")

    def poll(tag, word, wave):
        a(f"s_cmp_lg_u32 s{sw}, {wave}", f"s_cbranch_scc1 K1_{tag}X", "s_mov_b32 exec_hi, 0", f"s_mov_b32 s{sWc}, 0")
        a(f"K1_{tag}L:")
        a("s_waitcnt vmcnt(0)", f"v_cmp_eq_u32 vcc, 0, v{vFd}", f"s_cbranch_vccz K1_{tag}D",
          f"buffer_load_dword v{vFd}, v{vFa}, {sr(sDb,4)}, 0 offen offset:{word} {POLLF[OPT['pollf']]}", f"s_add_u32 s{sWc}, s{sWc}, 1",
          f"s_cmp_lt_u32 s{sWc}, 0x40000", f"s_cbranch_scc1 K1_{tag}L")
        a("s_waitcnt vmcnt(0)", f"v_mov_b32 v{vFd}, {K1_BL + B_FLAG}",
          f"ds_write_b32 v{vFd}, v{vOne}", "s_waitcnt lgkmcnt(0)")
        a(f"K1_{tag}D:", "s_mov_b64 exec, -1", f"K1_{tag}X:")
    a(f"s_cmp_lg_u32 s{sw}, 1", "s_cbranch_scc1 K1_F2", "s_mov_b64 exec, 1",
      f"buffer_store_dword v{vOne}, v{vBig}, {sr(sDb,4)}, 0 offen offset:128 sc1", "s_mov_b64 exec, -1", "K1_F2:")
    poll_issue("PA", 0, 0)
    poll("PA", 0, 0)
    a("s_barrier")
    a.stamp(3)
    vR2, vR4, vDl, vS2 = 8, 16, 32, 48
    vNd, vDeg, vP, vBin, vPos, vMa = 64, 65, 66, 67, 70, 71
    for i in range(4):
        a(f"s_mov_b32 s{st0}, {4096*i}")
        a.vmem(f"buffer_load_dwordx2 {vr(vR2+2*i,2)}, v{vO8}, {sr(sR2,4)}, s{st0} offen sc1", f"h{i}")
    a(f"v_mov_b32 v{vT2}, 0")
    for i in range(4):
        a.wait(vm=f"h{i}")
        if i == 0:
            a.stamp(12)
            poll_issue("PB", 128, 7)
        for n in range(4 * i, 4 * i + 4):
            if n & 1:
                a(f"v_ashrrev_i32 v{vDl+n}, 16, v{vR2+n//2}")
            else:
                a(f"v_bfe_i32 v{vDl+n}, v{vR2+n//2}, 0, 16")
        a(f"v_min_i32 v{vT2}, v{vDl+4*i}, v{vT2}")
        for n in range(4 * i, 4 * i + 4):
            a(f"v_cmpx_lt_i32 vcc, 0, v{vDl+n}")
            a.lds(f"ds_add_rtn_u32 v{vS2+n}, v{vDl+n}, v{vOne} offset:{K1_C2}")
            a("s_mov_b64 exec, -1")
    a(f"v_mov_b32 v{vT0}, {K1_BL + B_FLAG}", f"v_cmpx_gt_i32 vcc, 0, v{vT2}")
    a.lds(f"ds_write_b32 v{vT0}, v{vOne}")
    a("s_mov_b64 exec, -1")
    a.wait(lg="all")
    poll("PB", 128, 7)
    a("s_barrier")
    a.stamp(4)
    for i in range(4):
        a(f"s_mov_b32 s{st0}, {8192*i}")
        a.vmem(f"buffer_load_dwordx4 {vr(vR4+4*i,4)}, v{vO16}, {sr(sR4,4)}, s{st0} offen sc1", f"g{i}")
    a(f"s_cmp_ge_u32 s{sw}, 5", "s_cbranch_scc1 K1_D1")
    a(f"v_lshlrev_b32 v{vT1}, 2, v0", f"ds_read_b32 v{vDeg}, v{vT1} offset:{K1_C2 + 4}", "s_waitcnt lgkmcnt(0)")
    a(f"v_cmp_lt_u32 {sr(sK,2)}, {MAXDEG}, v{vDeg}", f"v_min_u32 v{vDeg}, {MAXDEG}, v{vDeg}",
      f"v_sub_u32 v{vBin}, 63, v{vDeg}", f"v_lshlrev_b32 v{vBin}, 2, v{vBin}",
      f"ds_add_rtn_u32 v{vP}, v{vBin}, v{vOne} offset:{K1_H2}",
      f"s_mov_b64 exec, {sr(sK,2)}", f"ds_write_b32 v{vT0}, v{vOne}", "s_mov_b64 exec, -1", "s_waitcnt lgkmcnt(0)")
    a("K1_D1:", "s_barrier")

    def scan(reg):
        a("s_nop 1")
        for ctrl in ("row_shr:1", "row_shr:2", "row_shr:4", "row_shr:8"):
            a(f"v_add_u32_dpp v{reg}, v{reg}, v{reg} {ctrl} row_mask:0xf bank_mask:0xf bound_ctrl:1", "s_nop 1")
        a(f"v_add_u32_dpp v{reg}, v{reg}, v{reg} row_bcast:15 row_mask:0xa bank_mask:0xf", "s_nop 1")
        a(f"v_add_u32_dpp v{reg}, v{reg}, v{reg} row_bcast:31 row_mask:0xc bank_mask:0xf", "s_nop 1")
    vA0, vA1 = 68, 69
    a(f"s_cmp_ge_u32 s{sw}, 5", "s_cbranch_scc1 K1_D2")
    a(f"v_lshlrev_b32 v{vA0}, 2, v{vLane}", f"ds_read_b32 v{vA1}, v{vA0} offset:{K1_H2}", "s_waitcnt lgkmcnt(0)",
      f"v_mov_b32 v{vA0}, v{vA1}")
    scan(vA0)
    a(f"v_sub_u32 v{vA0}, v{vA0}, v{vA1}", f"ds_bpermute_b32 v{vPos}, v{vBin}, v{vA0}",
      f"v_lshlrev_b32 v{vNd}, 16, v0", "s_waitcnt lgkmcnt(0)",
      f"v_add_u32 v{vPos}, v{vPos}, v{vP}", f"v_lshlrev_b32 v{vMa}, 3, v{vPos}", f"v_add_u32 v{vMa}, {K1_BL + B_META}, v{vMa}",
      f"ds_write_b64 v{vMa}, {vr(vNd,2)}", "s_waitcnt lgkmcnt(0)")
    a("K1_D2:", "s_barrier")
    a(f"s_cmp_ge_u32 s{sw}, 5", "s_cbranch_scc1 K1_D3")
    a(f"v_lshlrev_b32 v{vA0}, 6, v{vLane}", f"v_add_u32 v{vA0}, {K1_BL + B_META}, v{vA0}", f"ds_read_b32 v{vA1}, v{vA0} offset:4",
      f"v_cmp_gt_u32 vcc, {NGRP}, v{vLane}", "s_waitcnt lgkmcnt(0)", "s_nop 0",
      f"v_cndmask_b32 v{vA1}, 0, v{vA1}, vcc", f"v_mov_b32 v{vA0}, v{vA1}")
    scan(vA0)
    a(f"v_readlane_b32 s{st0}, v{vA0}, 63", f"v_sub_u32 v{vA0}, v{vA0}, v{vA1}", f"v_lshlrev_b32 v{vA0}, 5, v{vA0}",
      f"v_lshrrev_b32 v{vA1}, 3, v{vPos}", f"v_lshlrev_b32 v{vA1}, 2, v{vA1}", f"ds_bpermute_b32 v{vA1}, v{vA1}, v{vA0}",
      f"v_and_b32 v{vPos}, 7, v{vPos}",
      f"s_cmp_le_u32 s{st0}, {NSLOT - 8}", "s_cbranch_scc1 K1_FITS", f"ds_write_b32 v{vT0}, v{vOne}", "K1_FITS:",
      "s_waitcnt lgkmcnt(0)", f"v_lshl_add_u32 v{vA1}, v{vPos}, 2, v{vA1}", f"v_add_u32 v{vA0}, {K1_BL}, v{vA1}",
      f"ds_write_b32 v{vT1}, v{vA0} offset:{K1_NB}", f"ds_write_b16 v{vMa}, v{vA1}", "s_waitcnt lgkmcnt(0)")
    a("K1_D3:", "s_barrier")
    a.stamp(5)
    a.lg = []
    a(f"ds_read_b32 v{vT2}, v{vT0}")
    for n in range(8):
        a.lds(f"ds_read_b32 v{vR2+n}, v{vDl+n} offset:{K1_NB - 4}", f"nb{n}")
    a("s_waitcnt lgkmcnt(8)", f"v_readfirstlane_b32 s{st0}, v{vT2}", f"s_cmp_lg_u32 s{st0}, 0", "s_cbranch_scc1 K1_NOSC")
    for n in range(16):
        a.wait(lg=f"nb{n}", vm=f"g{n//4}")
        a(f"v_lshl_add_u32 v{vS2+n}, v{vS2+n}, 5, v{vR2 + (n & 7)}")
        if n < 8:
            a.lds(f"ds_read_b32 v{vR2+n}, v{vDl+n+8} offset:{K1_NB - 4}", f"nb{n+8}")
        a.lds(f"ds_write_b32 v{vS2+n}, v{vR4+n}")
    a("s_branch K1_SCD", "K1_NOSC:", "s_waitcnt vmcnt(0)", "K1_SCD:", "s_waitcnt lgkmcnt(0)")
    a.vm, a.lg = [], []
    a("s_barrier")
    a.stamp(6)
    a(f"v_add_u32 v{vT0}, {K1_BL}, v{vO16}")
    for i in range(4):
        a.lds(f"ds_read_b128 {vr(vR4+4*i,4)}, v{vT0} offset:{8192*i}", f"o{i}")
    for i in range(4):
        a.wait(lg=f"o{i}")
        a(f"s_mov_b32 s{st0}, {8192*i}")
        a.vmem(f"buffer_store_dwordx4 {vr(vR4+4*i,4)}, v{vO16}, {sr(sBl,4)}, s{st0} offen{' sc1' if OPT['blobsc'] else ''}")
    a.stamp_dump(sX, 20, sw, 8)
    a("K1_END:", "s_endpgm")
    return a.lines, descriptor("k1_kernel", nv, 102 if STAMPS else 72)


K2_BB = 28 * 1024
K2_AB = K2_BB + 98304
K2_LDS = K2_BB + 131072


def k2():
    a = Asm()
    header(a, "k2_kernel")
    sBl, sP, sQ, sS, sW1, sF, sPf, sO = 24, 28, 32, 36, 40, 44, 48, 76
    sw, sk, srng, scnt, st0, st1, sg, sdmax, sdmin, sSo, sK, sBig, sOne = 52, 53, 54, 55, 56, 57, 58, 59, 60, 61, 62, 64, 66
    sM = 68
    sFl, spend, seg, sEx = 80, 84, 85, 86
    vLane, vT0, vT1, vT2, vT3 = 1, 2, 3, 4, 5
    vI4, vAh, vQi = 6, 8, 10
    vE, vEs = 12, 14
    vIdx = 16
    vSh, vEll, vEe, vDeg, vSt, vMetL, vHoff = 24, 25, 26, 27, 28, 29, 30
    vQ = 32
    vNum, vDen, vT = 48, 56, 64
    vP = 72
    vZ = 88
    DP = OPT["depth"]
    if DP == 2:
        vNxt, vGo, vCtr, vInc, vL16 = 120, 121, 126, 123, 124
        pbuf = [vP, vP + 8]
        nv = 127
    else:
        vNxt, vGo, vCtr, vInc, vL16 = 23, 0, 20, 21, 22
        pbuf = [vP, vP + 8, 120]
        nv = 128
    NI = 4 if DP == 2 else 2

    a("s_cmp_ge_u32 s2, 256", "s_cbranch_scc1 K2_END")
    a.stamp_setup(31, 1)
    a("s_load_dwordx16 s[4:19], s[0:1], 0", "s_load_dwordx2 s[20:21], s[0:1], 80", "s_load_dwordx2 s[22:23], s[0:1], 64")
    a(f"v_lshrrev_b32 v{vT0}, 6, v0", f"v_and_b32 v{vLane}, 63, v0", f"v_readfirstlane_b32 s{sw}, v{vT0}")
    a(f"s_and_b32 s{sk}, s2, 7", f"s_lshr_b32 s{srng}, s2, 3")
    a(f"s_mul_i32 s{st0}, s{srng}, {RNG}", f"s_sub_u32 s{scnt}, {N}, s{st0}", f"s_min_u32 s{scnt}, s{scnt}, {RNG}")
    a(f"s_mul_i32 s{st1}, s{srng}, {BLOB}", f"s_add_u32 s{st1}, s{st1}, {BLOB_OFF}")
    a(f"v_lshlrev_b32 v{vL16}, 4, v{vLane}")
    a(f"v_and_b32 v{vT1}, 3, v{vLane}", f"v_lshlrev_b32 v{vSh}, 4, v{vT1}", f"v_lshrrev_b32 v{vT2}, 5, v{vLane}",
      f"v_lshl_add_u32 v{vIdx+1}, v{vT2}, 6, v{vSh}", *[f"v_mov_b32 v{vIdx+2*i+1}, v{vIdx+1}" for i in range(1, NI)],
      f"v_mov_b32 v{vQi+1}, v{vIdx+1}", f"v_lshl_add_u32 v{vHoff}, v{vT2}, 5, 2",
      f"v_and_b32 v{vMetL}, 28, v{vLane}", f"v_lshlrev_b32 v{vMetL}, 1, v{vMetL}",
      f"v_and_b32 v{vT3}, 16, v{vLane}", f"v_lshlrev_b32 v{vT3}, 1, v{vT3}", f"v_xor_b32 v{vSt}, v{vT3}, v{vL16}",
      f"v_mov_b32 v{vE}, 0x3f80", f"v_mov_b32 v{vE+1}, 0", f"v_lshlrev_b64 {vr(vI4,2)}, v{vSh}, {vr(vE,2)}",
      f"v_mov_b32 v{vCtr}, {B_CTR}", f"v_mov_b32 v{vInc}, 64", f"v_lshlrev_b32 v{vT1}, 3, v{vLane}")
    a(f"s_mov_b32 s{sK}, {NLOG2E}", f"s_mov_b32 s{sBig}, {fbits(2.0**120)}", f"s_mov_b32 s{sOne}, 1.0", f"s_mov_b32 s{sOne+1}, 1.0")
    if OPT["estart"]:
        a(f"s_add_u32 s{sg}, s{sw}, 24", f"s_sub_u32 s{sdmax}, s{sw}, 3", f"s_cmp_lt_u32 s{sw}, 3", f"s_cselect_b32 s{sg}, s{sg}, s{sdmax}",
          f"s_mul_i32 s{sdmax}, s{sw}, 3", f"s_sub_u32 s{sdmax}, s{sdmax}, 24", f"s_cmp_lt_u32 s{sw}, 10", f"s_cselect_b32 s{sg}, s{sg}, s{sdmax}",
          f"s_lshl_b32 s{sg}, s{sg}, 10", f"s_mov_b32 m0, s{sg}")
        a("s_waitcnt lgkmcnt(0)")
        a.srd(sBl, 20, f"s{st1}", BLOB)
        a.vmem(f"buffer_load_dwordx4 v{vL16}, {sr(sBl,4)}, s{sg} offen lds", "b")
        a(f"s_cmp_lt_u32 s{sw}, 10", "s_cbranch_scc1 K2_B1")
        a(f"buffer_load_dwordx4 v{vL16}, {sr(sBl,4)}, s{sg} offen offset:1024 lds",
          f"buffer_load_dwordx4 v{vL16}, {sr(sBl,4)}, s{sg} offen offset:2048 lds", "K2_B1:")
    else:
        a(f"s_lshl_b32 s{sg}, s{sw}, 10", f"s_add_u32 s{sdmax}, s{sg}, 16384", f"s_mov_b32 m0, s{sg}")
        a("s_waitcnt lgkmcnt(0)")
        a.srd(sBl, 20, f"s{st1}", BLOB)
        a.vmem(f"buffer_load_dwordx4 v{vL16}, {sr(sBl,4)}, s{sg} offen lds", "b")
        a(f"s_cmp_ge_u32 s{sw}, {BLOB // 1024 - 16}", "s_cbranch_scc1 K2_B1", f"s_mov_b32 m0, s{sdmax}", "s_nop 0")
        a(f"buffer_load_dwordx4 v{vL16}, {sr(sBl,4)}, s{sdmax} offen lds", "K2_B1:")
    a.srd(sW1, 20, CF_OFF, 4096)
    a(f"s_lshl_b32 s{st1}, s{sk}, 9")
    a.vmem(f"buffer_load_dwordx2 {vr(vAh,2)}, v{vT1}, {sr(sW1,4)}, s{st1} offen", "c")
    a.stamp()
    a(f"s_mul_i32 s{st1}, s{sk}, {SS}", f"s_lshl_b32 s{sg}, s{st0}, 7", f"s_add_u32 s{sg}, s{sg}, s{st1}")
    a.srd(sP, 20, f"s{st1}", N, stride=128)
    a(f"s_add_u32 s{sg}, s{sg}, {Q_OFF}")
    a.srd(sQ, 20, f"s{sg}", f"s{scnt}", stride=128)
    a(f"s_mul_i32 s{sg}, s{srng}, {SRB}", f"s_add_u32 s{sg}, s{sg}, {S_OFF}")
    a.srd(sS, 20, f"s{sg}", SRB)
    a.srd(sF, 20, W2F_OFF, 262144)
    a(f"s_lshl_b32 s{sg}, s{st0}, 9", f"s_lshl_b32 s{st1}, s{scnt}, 9")
    a.srd(sO, 22, f"s{sg}", f"s{st1}")
    a(f"s_lshl_b32 s{sg}, s{srng}, 12", f"s_add_u32 s{sg}, s{sg}, {FL_OFF}")
    a.srd(sFl, 20, f"s{sg}", 3072)
    a(f"s_mov_b32 s{sSo}, {SRB}", f"s_mov_b32 s{spend}, 0")
    if OPT["estart"]:
        a(f"s_cmp_ge_u32 s{sw}, 10", "s_cbranch_scc1 K2_B2", "s_waitcnt vmcnt(0)", "s_barrier", "s_branch K2_B3",
          "K2_B2:", "s_barrier", "s_waitcnt vmcnt(0)", "s_mov_b64 exec, 1", f"ds_add_u32 v{vCtr}, v{vInc} offset:{B_CNTA + 40 - B_CTR}",
          "s_mov_b64 exec, -1", "K2_B3:")
    else:
        a.wait(vm="c")
        a("s_barrier")
    a.stamp(5)
    a.vm = []
    if STAMPS:
        a("s_mov_b32 s99, 8")
    a(f"v_mov_b32 v{vT0}, {B_FLAG}", f"ds_read_b32 v{vT1}, v{vT0}", "s_waitcnt lgkmcnt(0)",
      f"v_readfirstlane_b32 s{st0}, v{vT1}", f"s_lshl_b32 s{sg}, s{sw}, 6", f"s_cmp_lg_u32 s{st0}, 0", "s_cbranch_scc1 K2_SLOW")

    def w2_preload(unit):
        a(f"s_lshr_b32 s{st0}, s{unit}, 1", f"s_lshl_b32 s{st0}, s{st0}, 15", f"s_and_b32 s{st1}, s{unit}, 1",
          f"s_mul_i32 s{st1}, s{st1}, 6144", f"s_add_u32 s{st0}, s{st0}, s{st1}", f"s_mul_i32 s{st1}, s{unit}, 6144")
        for i in range(2):
            a(f"s_add_u32 m0, s{st1}, {K2_BB + 4096*i}")
            a(f"s_add_u32 s{st0}, s{st0}, 4096" if i else "s_nop 0")
            for q in range(2 if i else 4):
                a(f"buffer_load_dwordx4 v{vL16}, {sr(sF,4)}, s{st0} offen offset:{1024*q} lds")

    def Z(i):
        return vZ + 16 * ((i >> 1) & 1) + 8 * (i & 1)

    def src_read(i):
        a(f"ds_read_u16 v{vIdx + 2*(i % NI)}, v{vEll} offset:{32*i}")

    def e_read(p):
        a(f"ds_read_u16 v{vE}, v{vEe} offset:{64*p}")

    def gather(i):
        a(f"buffer_load_dwordx4 {vr(pbuf[(i >> 1) % DP] + 4*(i & 1), 4)}, {vr(vIdx + 2*(i % NI), 2)}, {sr(sP,4)}, 0 idxen offen")

    def m4(i, hf):
        z = Z(i) + 4 * hf
        return f"v_mfma_f32_4x4x4_16b_bf16 {vr(z,4)}, {vr(vI4,2)}, {vr(pbuf[(i >> 1) % DP] + 4*(i & 1) + 2*hf, 2)}, {vr(z,4)}"

    shift = f"v_lshlrev_b64 {vr(vEs,2)}, v{vSh}, {vr(vE,2)}"

    def mhi(p):
        return f"v_mfma_f32_32x32x8_bf16 {vr(Z(2*p),16)}, {vr(vAh,2)}, {vr(vEs,2)}, {vr(vQ,16)}"

    def count(tag):
        a(f"s_mov_b64 {sr(sEx,2)}, exec", "s_mov_b64 exec, 1", f"s_lshl_b32 s{st0}, s{spend}, 2", f"v_add_u32 v{vT0}, s{st0}, v{vCtr}",
          f"ds_add_rtn_u32 v{vT0}, v{vT0}, v{vInc} offset:{B_CNTA - 4 - B_CTR}", f"s_lshl_b32 s{st0}, s{spend}, 3",
          f"s_add_u32 s{st0}, s{st0}, s{sk}", f"s_sub_u32 s{st0}, s{st0}, 8", f"s_lshl_b32 s{st0}, s{st0}, 7", f"v_mov_b32 v{vT1}, s{st0}",
          f"s_mov_b32 s{spend}, 0",
          "s_waitcnt lgkmcnt(0)", f"v_readfirstlane_b32 s{st0}, v{vT0}", f"s_cmp_lg_u32 s{st0}, {15*64}", f"s_cbranch_scc1 K2_CE{tag}",
          f"buffer_store_dword v{vInc}, v{vT1}, {sr(sFl,4)}, 0 offen sc1", f"K2_CE{tag}:", f"s_mov_b64 exec, {sr(sEx,2)}")

    def image_wait(tag):
        a(f"K2_IW{tag}:", f"ds_read_b32 v{vT0}, v{vCtr} offset:{B_CNTA + 40 - B_CTR}", "s_waitcnt lgkmcnt(0)",
          f"v_readfirstlane_b32 s{st0}, v{vT0}", f"s_cmp_lt_u32 s{st0}, {6*64}", f"s_cbranch_scc1 K2_IW{tag}")

    def finish():
        for r in range(8):
            a(f"v_rcp_f32 v{vT+r}, v{vDen+r}")
        for r in range(0, 8, 2):
            a(f"v_pk_mul_f32 {vr(vNum+r,2)}, {vr(vNum+r,2)}, {vr(vT+r,2)}")
        for r in range(4):
            a(f"v_cvt_pk_bf16_f32 v{vT+r}, v{vNum+2*r}, v{vNum+2*r+1}")
        a(f"buffer_store_dwordx4 {vr(vT,4)}, v{vSt}, {sr(sS,4)}, s{sSo} offen sc1")

    if OPT["tw2"]:
        a(f"s_cmp_lg_u32 s{sw}, 15", "s_cbranch_scc1 K2_NOPF", f"v_lshlrev_b32 v{vT2}, 7, v{vLane}", f"s_lshl_b32 s{st0}, s{srng}, 13",
          f"buffer_load_dword v{vT3}, v{vT2}, {sr(sF,4)}, s{st0} offen", "K2_NOPF:")
    if OPT["stag"]:
        a(f"s_lshl_b32 s{st0}, s{sw}, 2", f"s_add_u32 s{st0}, s{st0}, {B_GO}", f"v_mov_b32 v{vGo}, s{st0}",
          f"s_cmp_lt_u32 s{sw}, 4", "s_cbranch_scc1 K2_GO", f"v_subrev_u32 v{vT0}, 16, v{vGo}")
        if OPT["stag"] == 3:
            a(f"s_cmp_lt_u32 s{sw}, 8", "s_cbranch_scc1 K2_IWA")
        a("K2_WAITGO:", f"ds_read_b32 v{vT1}, v{vT0}", "s_waitcnt lgkmcnt(0)", f"v_readfirstlane_b32 s{st0}, v{vT1}",
          f"s_cmp_eq_u32 s{st0}, 0", "s_cbranch_scc1 K2_WAITGO")
        if OPT["estart"]:
            image_wait("A")
        a("K2_GO:")
    if OPT["prio"]:
        a("s_setprio 3")
    a("K2_GROUP:")
    a(f"v_add_u32 v{vT0}, s{sg}, v{vMetL}", f"s_mov_b32 s{sP+2}, {N}",
      f"ds_read_u16 v{vEll}, v{vT0} offset:{B_META}", f"ds_read_u16 v{vQi}, v{vT0} offset:{B_META + 2}",
      f"ds_read_b32 v{vDeg}, v{vT0} offset:{B_META + 4}")
    a(f"s_lshr_b32 s{sdmax}, s{sg}, 6", f"s_sub_u32 s{sdmax}, s{sdmax}, 16", f"s_cmp_lt_u32 s{sdmax}, 16", "s_cbranch_scc1 K2_PRE", "K2_PRED:")
    a("s_waitcnt lgkmcnt(2)")
    for i in range(NI):
        src_read(i)
    a(f"v_add_u32 v{vEe}, v{vEll}, v{vHoff}", f"s_waitcnt lgkmcnt({NI})")
    a(f"buffer_load_dwordx4 {vr(vZ+16,4)}, {vr(vQi,2)}, {sr(sQ,4)}, 0 idxen offen")
    e_read(0)
    a(f"v_readlane_b32 s{sdmax}, v{vDeg}, 0", f"v_readlane_b32 s{sdmin}, v{vDeg}, 28")
    for i in range(NI):
        a(f"s_waitcnt lgkmcnt({NI-i})")
        gather(i)
    if DP == 2:
        src_read(4)
        src_read(5)
        a("s_waitcnt lgkmcnt(2)")
        a(shift)
        e_read(1)
    else:
        for pr in (1, 2):
            src_read(2 * pr)
            src_read(2 * pr + 1)
            if pr == 1:
                a("s_waitcnt lgkmcnt(2)", shift)
                e_read(1)
                a("s_waitcnt lgkmcnt(1)")
            else:
                a("s_waitcnt lgkmcnt(0)")
            gather(2 * pr)
            gather(2 * pr + 1)
        src_read(6)
        src_read(7)
    if not OPT["late"]:
        a("s_mov_b64 exec, 1", f"ds_add_rtn_u32 v{vNxt}, v{vCtr}, v{vInc}", "s_mov_b64 exec, -1")
    finish()
    a(f"s_waitcnt vmcnt({2*DP + 1})")
    if OPT["stag"] == 2:
        a(f"ds_write_b32 v{vGo}, v{vGo}")
    for q in range(4):
        a(f"v_mfma_f32_4x4x4_16b_bf16 {vr(vQ+4*q,4)}, {vr(vI4,2)}, {vr(vZ+16+2*(q&1),2)}, 0")
    a("s_nop 3")
    a(mhi(0))
    a(f"s_lshl_b32 s{sSo}, s{sg}, 7", f"s_lshl_b32 s{st0}, s{sk}, 10", f"s_add_u32 s{sSo}, s{sSo}, s{st0}", "s_nop 6", f"s_waitcnt vmcnt({2*DP - 1})")
    if OPT["stag"] in (1, 3):
        a(f"ds_write_b32 v{vGo}, v{vGo}")
    a(m4(0, 0), m4(0, 1), m4(1, 0), m4(1, 1))
    a("s_waitcnt lgkmcnt(0)")
    gather(2 * DP)
    gather(2 * DP + 1)
    a(shift)
    src_read(2 * DP + 2)
    src_read(2 * DP + 3)
    e_read(2)
    if OPT["prio"]:
        if OPT["endg"]:
            a(f"s_mov_b32 s{seg}, 0", f"s_cmp_lt_u32 s{sg}, {OPT['endg']*64}", "s_cbranch_scc1 K2_PRX", "s_setprio 2", f"s_mov_b32 s{seg}, 1",
              f"s_sub_u32 s{st0}, s{sdmax}, {OPT['eg1']}", f"s_cselect_b32 s{st0}, 0, s{st0}", f"s_min_u32 s{sdmin}, s{sdmin}, s{st0}", "K2_PRX:")
        elif OPT["prio"] == 1:
            a(f"s_cmp_lt_u32 s{sg}, {16*64}", "s_cbranch_scc1 K2_PRX", "s_setprio 2", f"s_cmp_lt_u32 s{sg}, {24*64}", "s_cbranch_scc1 K2_PRX",
              "s_setprio 1", f"s_cmp_lt_u32 s{sg}, {32*64}", "s_cbranch_scc1 K2_PRX", "s_setprio 0", "K2_PRX:")
        else:
            a(f"s_cmp_lt_u32 s{sg}, {16*64}", "s_cbranch_scc1 K2_PRX", "s_setprio 2", f"s_cmp_lt_u32 s{sg}, {OPT['prio']*64}",
              "s_cbranch_scc1 K2_PRX", "s_setprio 1", "K2_PRX:")
    a("s_nop 1" if OPT["prio"] else "s_nop 3")
    if STAMPS and not OPT["light"]:
        a("s_mov_b32 m0, s99", "s_add_u32 s99, s99, 1")
        a.stamp("m0")

    NP = MAXDEG // 2
    for i in range(MAXDEG):
        z = Z(i)
        p = i >> 1
        a(f"s_cmp_le_u32 s{sdmin}, {i}", f"s_cbranch_scc1 K2_OOL{i}", f"K2_S{i}:")
        ex = [f"v_exp_f32 v{vT+r}, v{z+r}" for r in range(8)]
        num_src = Z(0) if i == 1 else vNum
        if i == 0:
            upd = ["s_nop 0"] + [f"v_pk_add_f32 {vr(vDen+r,2)}, {vr(vT+r,2)}, {sr(sOne,2)}" for r in range(0, 8, 2)]
        else:
            upd = [f"v_pk_fma_f32 {vr(z+r,2)}, {vr(z+r,2)}, {vr(vDen+r,2)}, {vr(num_src+r,2)}" for r in range(0, 8, 2)]
            upd += [f"v_pk_fma_f32 {vr(vNum+r,2)}, {vr(num_src+r,2)}, {vr(vT+r,2)}, {vr(z+r,2)}" for r in range(0, 8, 2)]
            upd += [f"v_pk_fma_f32 {vr(vDen+r,2)}, {vr(vDen+r,2)}, {vr(vT+r,2)}, {vr(vDen+r,2)}" for r in range(0, 8, 2)]
        if (i & 1) == 0:
            if p + 1 < NP:
                a(*([] if OPT["diag"] & 1 else [mhi(p + 1)]), *ex)
            else:
                a(*ex)
            a(*upd)
        else:
            if p + 1 < NP:
                younger = 2 * (min(p + DP, NP - 1) - (p + 1)) + (1 if p + 1 < DP else 0)
                a(f"s_waitcnt vmcnt({younger})")
                if p == DP - 1:
                    a(f"s_cmp_lg_u32 s{spend}, 0", "s_cbranch_scc1 K2_CNT", "K2_CNTD:")
                if OPT["diag"] & 2:
                    a(*ex[0:4])
                else:
                    a(m4(2*p+2, 0), ex[0], m4(2*p+2, 1), ex[1], m4(2*p+3, 0), ex[2], m4(2*p+3, 1), ex[3])
            else:
                a(*ex[0:4])
            if p + 2 < NP:
                a("s_waitcnt lgkmcnt(0)")
            g = p + 1 + DP
            if g < NP:
                if OPT["clip"] == 1:
                    a(f"s_cmp_gt_u32 s{sdmax}, {2*g}", f"s_cselect_b32 s{sP+2}, {N}, 0")
                if OPT["clip"] == 2:
                    a(f"s_cmp_gt_u32 s{sdmax}, {2*g}", f"s_mov_b64 {sr(sEx,2)}, exec", "s_cselect_b64 exec, exec, 0")
                if OPT["diag"] & 4:
                    a(f"s_mov_b32 s{sP+2}, 0")
                gather(2 * g)
                gather(2 * g + 1)
                if OPT["clip"] == 2:
                    a(f"s_mov_b64 exec, {sr(sEx,2)}")
            a(*ex[4:8])
            if p + 2 < NP:
                a(shift)
            if g + 1 < NP:
                src_read(2 * g + 2)
                src_read(2 * g + 3)
            if p + 3 < NP:
                e_read(p + 3)
            a(*upd)
    a("K2_FIN:")
    if OPT["late"]:
        a("s_mov_b64 exec, 1", f"ds_add_rtn_u32 v{vNxt}, v{vCtr}, v{vInc}")
    a("s_mov_b64 exec, -1")
    if OPT["prio"]:
        a("s_setprio 3")
    a(f"s_cmp_lg_u32 s{spend}, 0", "s_cbranch_scc1 K2_CNT2", "K2_CNT2D:", f"s_lshr_b32 s{spend}, s{sg}, 10",
      f"s_add_u32 s{spend}, s{spend}, 1", f"s_cmp_lt_u32 s{spend}, 3", f"s_cselect_b32 s{spend}, s{spend}, 0")
    a(f"v_pk_mul_f32 {vr(vT0,2)}, {vr(vDen,2)}, {vr(vDen+2,2)}", f"v_pk_mul_f32 {vr(vT2,2)}, {vr(vNum,2)}, {vr(vNum+2,2)}",
      f"v_pk_fma_f32 {vr(vT0,2)}, {vr(vDen+4,2)}, {vr(vDen+6,2)}, {vr(vT0,2)}",
      f"v_pk_fma_f32 {vr(vT2,2)}, {vr(vNum+4,2)}, {vr(vNum+6,2)}, {vr(vT2,2)}",
      f"v_pk_fma_f32 {vr(vT0,2)}, {vr(vT2,2)}, 0, {vr(vT0,2)} op_sel_hi:[1,0,1]",
      f"v_add_f32 v{vT0}, v{vT0}, v{vT1}", f"v_cmp_ngt_f32 vcc, s{sBig}, v{vT0}",
      "s_waitcnt lgkmcnt(0)", f"v_readfirstlane_b32 s{sg}, v{vNxt}")
    if not OPT["diag"]:
        a("s_cbranch_vccnz K2_SAFE")
    a("K2_NEXT:")
    if OPT["estart"]:
        a(f"s_cmp_lt_u32 s{sw}, 4", "s_cbranch_scc1 K2_IWB", "K2_IWBD:")
    if STAMPS and not OPT["light"]:
        a("s_mov_b32 m0, s99", "s_add_u32 s99, s99, 1")
        a.stamp("m0")
        a("s_mov_b32 m0, s99", "s_add_u32 s99, s99, 1", f"v_writelane_b32 v31, s{sdmax}, m0")
    a(f"s_add_u32 s{sg}, s{sg}, {16*64}", f"s_cmp_lt_u32 s{sg}, {NGRP*64}", "s_cbranch_scc1 K2_GROUP")

    vA, vA0, vA2, vB2, vAcc = 8, 24, 25, 28, 48
    if DP == 3:
        vCtr, vInc, vL16 = 126, 123, 124
    vB = [32, 36, 40, 44] + list(range(88, 120, 4)) + [72, 76, 80, 84]
    vMa, vCol, vRed, vWa = 120, 121, 122, 125
    scg, skh, sact, stk = sM, sM + 1, sM + 2, sM + 3
    sB2 = sPf

    def b_global(first, gentle):
        a(f"s_lshl_b32 s{st0}, s{scg}, 15", f"s_lshl_b32 s{st1}, s{skh}, 14", f"s_add_u32 s{st0}, s{st0}, s{st1}")
        for n in range(first, 16):
            if n % 4 == 0 and n:
                a(f"s_add_u32 s{st0}, s{st0}, {4096 if n > first else 1024*n}")
            if gentle and n > first and n % OPT["bb"] == 0:
                a("s_waitcnt vmcnt(0)")
            a(f"buffer_load_dwordx4 {vr(vB[n],4)}, v{vL16}, {sr(sF,4)}, s{st0} offen offset:{1024*(n % 4)}")

    def relocate():
        if DP == 3:
            a("s_waitcnt vmcnt(0)", "v_mov_b32 v126, v20", "v_mov_b32 v123, v21", "v_mov_b32 v124, v22")

    def roles():
        a(f"s_and_b32 s{scg}, s{sw}, 7", f"s_lshr_b32 s{skh}, s{sw}, 3", f"s_and_b32 s{st0}, s{sk}, 1",
          f"s_lshr_b32 s{sact}, s{scg}, 2", f"s_xor_b32 s{sact}, s{sact}, s{st0}")

    def b_loads(tag):
        a(f"s_cmp_eq_u32 s{skh}, 0", f"s_cbranch_scc1 K2_BL{tag}")
        b_global(0, tag == "B")
        a(f"s_branch K2_BX{tag}", f"K2_BL{tag}:")
        b_global(12, tag == "B")
        a(f"K2_BX{tag}:")

    def lds_spin(tag, word, least):
        a(f"K2_SP{tag}:", f"ds_read_b32 v{vT0}, v{vCtr} offset:{B_CNTA + word - B_CTR}", "s_waitcnt lgkmcnt(0)",
          f"v_readfirstlane_b32 s{st0}, v{vT0}", f"s_cmp_lt_u32 s{st0}, {least}", f"s_cbranch_scc1 K2_SP{tag}")

    def ticket(word):
        a("s_mov_b64 exec, 1", f"ds_add_rtn_u32 v{vT0}, v{vCtr}, v{vInc} offset:{B_CNTA + word - B_CTR}", "s_mov_b64 exec, -1",
          "s_waitcnt lgkmcnt(0)", f"v_readfirstlane_b32 s{stk}, v{vT0}")

    def fetch(t, dst):
        a(f"s_cmp_lg_u32 s{stk}, 0", f"s_cbranch_scc1 K2_SPF{t}")
        a("s_mov_b64 exec, 0xff", f"v_lshlrev_b32 v{vT2}, 7, v{vLane}", f"s_mov_b32 s{st1}, 0", f"K2_P{t}:",
          f"buffer_load_dword v{vT1}, v{vT2}, {sr(sFl,4)}, 0 offen offset:{1024*t} sc1", f"s_add_u32 s{st1}, s{st1}, 1", "s_waitcnt vmcnt(0)",
          f"v_cmp_eq_u32 vcc, 0, v{vT1}", f"s_cbranch_vccz K2_P{t}D", f"s_cmp_lt_u32 s{st1}, 0x400000", f"s_cbranch_scc1 K2_P{t}",
          f"K2_P{t}D:", "s_mov_b64 exec, -1", f"ds_write_b32 v{vCtr}, v{vInc} offset:{B_CNTA + 20 + 4*t - B_CTR}")
        lds_spin(f"F{t}", 20 + 4 * t, 1)
        a(f"s_lshr_b32 s{st0}, s{sk}, {1 if t == 2 else 0}", f"s_add_u32 s{st0}, s{st0}, {8*t}", f"s_lshl_b32 s{st0}, s{st0}, 14",
          f"s_lshl_b32 s{st1}, s{stk}, 6", f"s_add_u32 s{st0}, s{st0}, s{st1}")
        for q in range(4):
            a(f"buffer_load_dwordx4 {vr(vA+4*q,4)}, v{vL16}, {sr(sS,4)}, s{st0} offen offset:{1024*q} sc1")
        a(f"s_add_u32 s{st1}, s{st1}, {dst}", f"v_add_u32 v{vWa}, s{st1}, v{vL16}")
        for q in range(4):
            a(f"s_waitcnt vmcnt({3-q})", f"ds_write_b128 v{vWa}, {vr(vA+4*q,4)} offset:{1024*q}")
        if OPT["split"] and t < 2:
            a("s_waitcnt lgkmcnt(0)", "s_mov_b64 exec, 1", f"ds_add_u32 v{vCtr}, v{vInc} offset:{B_CNTA + 32 + 4*t - B_CTR}", "s_mov_b64 exec, -1")

    relocate()
    roles()
    ticket(12)
    a(f"s_cmp_lt_u32 s{stk}, {OPT['early']*64}", "s_cbranch_scc1 K2_TE", f"s_cmp_lg_u32 s{spend}, 0", "s_cbranch_scc1 K2_TL")
    b_loads("A")
    finish()
    a.stamp(20)
    a("s_branch K2_TC", "K2_TL:")
    finish()
    a.stamp(20)
    b_loads("C")
    a(f"s_cmp_eq_u32 s{skh}, 0", "s_cbranch_scc1 K2_TL0", "s_waitcnt vmcnt(16)", "s_branch K2_TL1", "K2_TL0:", "s_waitcnt vmcnt(4)", "K2_TL1:")
    count("L")
    a("s_branch K2_TC", "K2_TE:")
    finish()
    a.stamp(20)
    a("K2_TAIL:", "s_setprio 0" if not OPT["hprio"] else "s_nop 0", f"s_cmp_eq_u32 s{spend}, 0", "s_cbranch_scc1 K2_TAIL2", "s_waitcnt vmcnt(0)")
    count("C")
    a("K2_TAIL2:")
    b_loads("B")
    a("K2_TC:", "s_setprio 0" if not OPT["hprio"] else "s_nop 0")
    a.srd(sB2, 18, 0, 512)
    a(f"s_cmp_ge_u32 s{stk}, {4*64}", "s_cbranch_scc1 K2_NF0")
    fetch(0, K2_AB)
    a(f"s_mov_b32 s{stk}, {8*64}", "K2_NF0:")
    a(f"s_cmp_lt_u32 s{stk}, {8*64}", "s_cbranch_scc1 K2_SPW", "s_setprio 0", f"s_cmp_eq_u32 s{skh}, 0", "s_cbranch_scc0 K2_T1")
    lds_spin("W", 4, 16 * 64)
    a(f"s_cmp_eq_u32 s{skh}, 0", "s_cbranch_scc0 K2_T1")
    a(f"s_mul_i32 s{st0}, s{scg}, 12288", f"s_add_u32 s{st0}, s{st0}, {K2_BB}", f"v_add_u32 v{vT0}, s{st0}, v{vL16}")
    for n in range(12):
        a(f"ds_read_b128 {vr(vB[n],4)}, v{vT0} offset:{1024*n}")
    a("K2_T1:")
    if OPT["f2early"]:
        a("s_waitcnt vmcnt(0)", f"s_mov_b32 s{spend}, 3")
        count("D")
    a(f"s_cmp_ge_u32 s{stk}, {8*64}", "s_cbranch_scc1 K2_NF1", f"s_sub_u32 s{stk}, s{stk}, {4*64}")
    fetch(1, K2_AB + 16384)
    a("K2_NF1:")
    a(f"v_and_b32 v{vT0}, 15, v{vLane}", f"v_lshlrev_b32 v{vT0}, 2, v{vT0}", f"s_lshl_b32 s{st0}, s{scg}, 6",
      f"v_add_u32 v{vCol}, s{st0}, v{vT0}", f"buffer_load_dword v{vB2}, v{vCol}, {sr(sB2,4)}, 0 offen")
    a(f"v_and_b32 v{vT0}, 7, v{vLane}", f"v_lshlrev_b32 v{vA2}, 6, v{vT0}", f"v_bfe_u32 v{vT1}, v{vLane}, 3, 1",
      f"v_lshl_add_u32 v{vA2}, v{vT1}, 13, v{vA2}", f"v_lshrrev_b32 v{vT3}, 4, v{vLane}", f"v_lshrrev_b32 v{vT0}, 2, v{vT0}",
      f"v_lshlrev_b32 v{vT0}, 1, v{vT0}", f"v_xor_b32 v{vT0}, v{vT0}, v{vT3}", f"v_lshl_add_u32 v{vA2}, v{vT0}, 4, v{vA2}",
      f"s_lshl_b32 s{st0}, s{skh}, 12", f"s_add_u32 s{st0}, s{st0}, {K2_BB}", f"v_add_u32 v{vA2}, s{st0}, v{vA2}",
      f"v_add_u32 v{vA0}, {K2_AB - K2_BB}, v{vA2}")
    a(f"v_lshlrev_b32 v{vMa}, 5, v{vT3}", f"v_add_u32 v{vMa}, {B_META}, v{vMa}",
      f"s_mul_i32 s{st0}, s{scg}, 6144", f"s_add_u32 s{st0}, s{st0}, {K2_BB + 16384}", f"v_add_u32 v{vRed}, s{st0}, v{vL16}",
      f"s_mov_b32 s{sK}, {NLN2}")
    if OPT["split"]:
        lds_spin("E", 12, 16 * 64)
        lds_spin("R0", 32, 4 * 64)
    else:
        a("s_waitcnt lgkmcnt(0)", "s_barrier")
    a.stamp(21)
    if not OPT["f2early"]:
        a("s_waitcnt vmcnt(0)", f"s_mov_b32 s{spend}, 3")
        count("D")

    def compute(tiles):
        a.lg = []
        nt = len(tiles)
        depth = 4 // nt

        def f_read(s):
            for i, t in enumerate(tiles):
                base, off = (vA2, 0) if t == 2 else (vA0, 16384 * t)
                a.lds(f"ds_read_b128 {vr(vA + 4*((s % depth)*nt + i), 4)}, v{base} offset:{off + 1024*(s >> 1) + 512*(s & 1)}", f"f{s}")
        for s in range(depth - 1):
            f_read(s)
        for s in range(8):
            if s + depth - 1 < 8:
                f_read(s + depth - 1)
            a.wait(lg=f"f{s}")
            for i, t in enumerate(tiles):
                for b in range(2):
                    acc = vAcc + 8 * t + 4 * b
                    a(f"v_mfma_f32_16x16x32_bf16 {vr(acc,4)}, {vr(vA + 4*((s % depth)*nt + i), 4)}, {vr(vB[2*s + b], 4)}, {'0' if s == 0 else vr(acc, 4)}")

    def give(t):
        a("s_nop 7")
        for q in range(2):
            a(f"ds_write_b128 v{vRed}, {vr(vAcc+8*t+4*q,4)} offset:{2048*t + 1024*q}")

    def out_tile(t):
        acc = vAcc + 8 * t
        a(f"s_lshr_b32 s{st0}, s{sk}, {1 if t == 2 else 0}", f"s_add_u32 s{st0}, s{st0}, {8*t}", f"s_lshl_b32 s{st0}, s{st0}, 7",
          f"v_add_u32 v{vT0}, s{st0}, v{vMa}",
          f"ds_read_b128 {vr(vA,4)}, v{vT0}", f"ds_read_b128 {vr(vA+4,4)}, v{vT0} offset:16")
        for q in range(2):
            a(f"ds_read_b128 {vr(vA+8+4*q,4)}, v{vRed} offset:{2048*t + 1024*q}")
        a("s_waitcnt lgkmcnt(2)")
        for r in range(4):
            a(f"v_lshrrev_b32 v{vA+2*r}, 16, v{vA+2*r}", f"v_cvt_f32_u32 v{vA+2*r+1}, v{vA+2*r+1}",
              f"v_lshl_add_u32 v{vA+2*r}, v{vA+2*r}, 9, v{vCol}")
        a("s_waitcnt lgkmcnt(0)")
        for r in range(8):
            a(f"v_add_f32 v{acc+r}, v{acc+r}, v{vA+8+r}")
        for r in range(4):
            a(f"v_mul_f32 v{vT0}, v{vA+2*r+1}, v{vB2}", f"v_mul_f32 v{vT1}, v{vA+2*r+1}, v{vB2+1}",
              f"v_fma_f32 v{acc+r}, v{acc+r}, s{sK}, v{vT0}", f"v_fma_f32 v{acc+4+r}, v{acc+4+r}, s{sK}, v{vT1}",
              f"v_cvt_pk_bf16_f32 v{acc+r}, v{acc+r}, v{acc+4+r}",
              f"buffer_store_dword v{acc+r}, v{vA+2*r}, {sr(sO,4)}, 0 offen{' sc1' if OPT['sc3'] else ''}")

    if True:
        if OPT["split"]:
            compute((0,))
            lds_spin("R1", 36, 4 * 64)
            compute((1,))
            lds_spin("D", 8, 16 * 64)
        else:
            compute((0, 1))
        a(f"s_cmp_eq_u32 s{skh}, 0", "s_cbranch_scc1 K2_G0")
        give(0)
        a("s_branch K2_G1", "K2_G0:")
        give(1)
        a("K2_G1:", "s_waitcnt vmcnt(0)", f"v_and_b32 v{vB2+1}, 0xffff0000, v{vB2}", f"v_lshlrev_b32 v{vB2}, 16, v{vB2}")
        a.stamp(23)
        ticket(16)
        a(f"s_cmp_ge_u32 s{stk}, {4*64}", "s_cbranch_scc1 K2_NF2")
        fetch(2, K2_BB)
        a("K2_NF2:")
        a("s_waitcnt lgkmcnt(0)", "s_barrier")
        a.stamp(24)
        a(f"s_cmp_lg_u32 s{sact}, 0", "s_cbranch_scc1 K2_IDLE2")
        compute((2,))
        a(f"s_cmp_eq_u32 s{skh}, 0", "s_cbranch_scc0 K2_O1")
        out_tile(0)
        a("s_barrier")
        out_tile(2)
        a("s_branch K2_OX", "K2_O1:")
        give(2)
        a("s_waitcnt lgkmcnt(0)", "s_barrier")
        out_tile(1)
        a("s_branch K2_OX", "K2_IDLE2:", f"s_cmp_eq_u32 s{skh}, 0", "s_cbranch_scc1 K2_IDLE3")
        out_tile(1)
        a("s_barrier", "s_branch K2_OX", "K2_IDLE3:")
        out_tile(0)
        a("s_barrier")
    a("K2_OX:")
    a.stamp_dump(sBl, 20, sw, 16)
    a("s_endpgm")

    if DP == 3:
        vCtr, vInc, vL16 = 20, 21, 22
    if OPT["estart"]:
        image_wait("B")
        a("s_branch K2_IWBD")
    a("K2_CNT:")
    count("A")
    a("s_nop 3", "s_branch K2_CNTD")
    a("K2_CNT2:", "s_waitcnt vmcnt(0)")
    count("B")
    a("s_branch K2_CNT2D")

    a("K2_PRE:")
    w2_preload(sdmax)
    a("s_branch K2_PRED")

    for i in range(MAXDEG):
        a(f"K2_OOL{i}:")
        if i == 0:
            for r in range(8):
                a(f"v_mov_b32 v{vNum+r}, 0", f"v_mov_b32 v{vDen+r}, 1.0")
        if i == 1:
            for r in range(8):
                a(f"v_mov_b32 v{vNum+r}, v{Z(0)+r}")
        a(f"s_cmp_le_u32 s{sdmax}, {i}", "s_cbranch_scc1 K2_FIN")
        a(f"v_cmpx_lt_u32 vcc, {i}, v{vDeg}")
        if OPT["endg"]:
            a(f"s_cmp_eq_u32 s{seg}, 0", f"s_cbranch_scc1 K2_OX{i}", f"s_cmp_gt_u32 s{sdmax}, {i + OPT['eg1']}", f"s_cbranch_scc1 K2_OX{i}",
              "s_setprio 1", f"s_cmp_gt_u32 s{sdmax}, {i + OPT['eg2']}", f"s_cbranch_scc1 K2_OX{i}", "s_setprio 0", f"K2_OX{i}:", "s_nop 1")
        else:
            a("s_nop 3")
        a(f"s_branch K2_S{i}")

    a("K2_SAFE:")
    a("s_waitcnt vmcnt(0) lgkmcnt(0)", f"s_mov_b32 s{st0}, 0", f"s_mov_b32 s{sP+2}, {N}")
    for r in range(8):
        a(f"v_mov_b32 v{vNum+r}, 0")
    a("K2_SAFE_L:")
    a(f"s_cmp_ge_u32 s{st0}, s{sdmax}", "s_cbranch_scc1 K2_SAFE_E")
    a(f"v_cmpx_lt_u32 vcc, s{st0}, v{vDeg}")
    src_read(0)
    e_read(0)
    a("s_waitcnt lgkmcnt(0)")
    gather(0)
    a(shift, f"v_add_u32 v{vEll}, 32, v{vEll}", f"v_add_u32 v{vEe}, 32, v{vEe}", "s_nop 1")
    a(mhi(0), "s_nop 9", "s_waitcnt vmcnt(0)", m4(0, 0), m4(0, 1), "s_nop 4")
    for r in range(8):
        a(f"v_exp_f32 v{vT+r}, v{vZ+r}")
    for r in range(0, 8, 2):
        a(f"v_pk_add_f32 {vr(vT+r,2)}, {vr(vT+r,2)}, {sr(sOne,2)}")
    for r in range(8):
        a(f"v_rcp_f32 v{vT+r}, v{vT+r}")
    a("s_nop 0")
    for r in range(0, 8, 2):
        a(f"v_pk_fma_f32 {vr(vNum+r,2)}, {vr(vZ+r,2)}, {vr(vT+r,2)}, {vr(vNum+r,2)}")
    a(f"s_add_u32 s{st0}, s{st0}, 1", "s_branch K2_SAFE_L")
    a("K2_SAFE_E:", "s_mov_b64 exec, -1")
    for r in range(8):
        a(f"v_mov_b32 v{vDen+r}, 1.0")
    a("s_branch K2_NEXT")

    sDst, sSrc, sE = sBl, sPf, sW1
    snode, sbase, sdeg, sbit, ssrc, se, sm = sM, sM + 1, sM + 2, sM + 3, sM + 4, sM + 5, sM + 6
    vc, vq, vacc, vd, vs, ve, vsb, vz = 32, 33, 34, 36, 40, 44, 48, 49
    a("K2_SLOW:")
    w2_preload(sw)
    a(f"s_mov_b32 s{sg}, s{sw}", f"v_cmp_gt_u32 vcc, 320, v0", f"v_lshlrev_b32 v{vT0}, 16, v0", f"v_mov_b32 v{vT1}, 0",
      f"v_lshlrev_b32 v{vT2}, 3, v0", "s_and_saveexec_b64 s[70:71], vcc", f"ds_write_b64 v{vT2}, {vr(vT0,2)} offset:{B_META}",
      "s_mov_b64 exec, -1", "s_waitcnt lgkmcnt(0)", "s_barrier")
    a.srd(sW1, 12, 512 * 1024, 1024)
    a(f"v_and_b32 v{vT0}, 1, v{vLane}", f"v_lshlrev_b32 v{vT0}, 6, v{vT0}", f"v_and_b32 v{vT1}, 62, v{vLane}",
      f"v_add_u32 v{vT0}, v{vT0}, v{vT1}", f"s_lshl_b32 s{st1}, s{sk}, 7")
    a(f"buffer_load_ushort v{vc}, v{vT0}, {sr(sW1,4)}, s{st1} offen", "s_waitcnt vmcnt(0)",
      f"v_lshlrev_b32 v{vc}, 16, v{vc}", f"v_mul_f32 v{vc}, s{sK}, v{vc}")
    a.srd(sDst, 10, 0, E * 4)
    a.srd(sSrc, 8, 0, E * 4)
    a.srd(sE, 6, 0, E * 2)
    a(f"v_lshlrev_b32 v{vIdx+1}, 1, v{vLane}", f"v_lshlrev_b32 v{vT2}, 4, v{vLane}", f"v_lshlrev_b32 v{vT3}, 3, v{vLane}")
    a(f"v_lshrrev_b32 v{vsb}, 5, v{vLane}", f"v_lshlrev_b32 v{vsb}, 9, v{vsb}", f"v_and_b32 v{vT0}, 31, v{vLane}",
      f"v_lshl_add_u32 v{vsb}, v{vT0}, 1, v{vsb}")
    a("K2_SLOW_N:")
    a(f"s_cmp_ge_u32 s{sg}, s{scnt}", "s_cbranch_scc1 K2_SLOW_E")
    a(f"s_mul_i32 s{snode}, s{srng}, {RNG}", f"s_add_u32 s{snode}, s{snode}, s{sg}", f"v_mov_b32 v{vIdx}, s{sg}",
      f"buffer_load_ushort v{vq}, {vr(vIdx,2)}, {sr(sQ,4)}, 0 idxen offen",
      f"v_mov_b32 v{vacc}, 0", f"s_mov_b32 s{sbase}, 0", f"s_mov_b32 s{sdeg}, 0", "s_waitcnt vmcnt(0)",
      f"v_lshlrev_b32 v{vq}, 16, v{vq}")
    a("K2_SLOW_C:")
    a(f"s_lshl_b32 s{st0}, s{sbase}, 2", f"s_lshl_b32 s{st1}, s{sbase}, 1")
    a(f"buffer_load_dwordx4 {vr(vd,4)}, v{vT2}, {sr(sDst,4)}, s{st0} offen",
      f"buffer_load_dwordx4 {vr(vs,4)}, v{vT2}, {sr(sSrc,4)}, s{st0} offen",
      f"buffer_load_dwordx2 {vr(ve+2,2)}, v{vT3}, {sr(sE,4)}, s{st1} offen", "s_waitcnt vmcnt(0)")
    a(f"v_lshlrev_b32 v{ve}, 16, v{ve+2}", f"v_and_b32 v{ve+1}, 0xffff0000, v{ve+2}",
      f"v_lshlrev_b32 v{ve+2}, 16, v{ve+3}", f"v_and_b32 v{ve+3}, 0xffff0000, v{ve+3}")
    for u in range(4):
        a(f"v_cmp_eq_u32 {sr(sm,2)}, s{snode}, v{vd+u}")
        a(f"K2_SLOW_M{u}:", f"s_cmp_eq_u64 {sr(sm,2)}, 0", f"s_cbranch_scc1 K2_SLOW_X{u}")
        a(f"s_ff1_i32_b64 s{sbit}, {sr(sm,2)}", f"s_bitset0_b64 {sr(sm,2)}, s{sbit}", f"s_add_u32 s{sdeg}, s{sdeg}, 1",
          f"v_readlane_b32 s{ssrc}, v{vs+u}, s{sbit}", f"v_readlane_b32 s{se}, v{ve+u}, s{sbit}", "s_nop 1",
          f"v_mov_b32 v{vIdx}, s{ssrc}", f"buffer_load_ushort v{vz}, {vr(vIdx,2)}, {sr(sP,4)}, 0 idxen offen",
          f"v_fma_f32 v{vT0}, s{se}, v{vc}, v{vq}", "s_waitcnt vmcnt(0)",
          f"v_lshlrev_b32 v{vz}, 16, v{vz}", f"v_add_f32 v{vz}, v{vz}, v{vT0}", f"v_exp_f32 v{vT0}, v{vz}", "s_nop 0",
          f"v_add_f32 v{vT0}, 1.0, v{vT0}", f"v_rcp_f32 v{vT0}, v{vT0}", "s_nop 0",
          f"v_fma_f32 v{vacc}, v{vz}, v{vT0}, v{vacc}", f"s_branch K2_SLOW_M{u}")
        a(f"K2_SLOW_X{u}:")
    a(f"s_add_u32 s{sbase}, s{sbase}, 256", f"s_cmp_lt_u32 s{sbase}, {E}", "s_cbranch_scc1 K2_SLOW_C")
    a(f"v_cvt_pk_bf16_f32 v{vacc}, v{vacc}, v{vacc}", f"s_lshl_b32 s{st0}, s{sg}, 3", f"v_mov_b32 v{vT0}, s{st0}",
      f"v_mov_b32 v{vT1}, s{sdeg}", f"ds_write_b32 v{vT0}, v{vT1} offset:{B_META + 4}",
      f"s_lshr_b32 s{st0}, s{sg}, 3", f"s_lshl_b32 s{st0}, s{st0}, 13", f"s_lshl_b32 s{st1}, s{sk}, 10", f"s_add_u32 s{st0}, s{st0}, s{st1}",
      f"s_and_b32 s{st1}, s{sg}, 7", f"s_lshl_b32 s{st1}, s{st1}, 6", f"s_add_u32 s{st0}, s{st0}, s{st1}",
      f"s_and_b32 s{st1}, s{sg}, 4", f"s_lshl_b32 s{st1}, s{st1}, 3", f"v_xor_b32 v{vT0}, s{st1}, v{vsb}")
    a(f"buffer_store_short v{vacc}, v{vT0}, {sr(sS,4)}, s{st0} offen sc1")
    a(f"s_add_u32 s{sg}, s{sg}, 16", "s_waitcnt vmcnt(0) lgkmcnt(0)", "s_branch K2_SLOW_N")
    a("K2_SLOW_E:", "s_waitcnt vmcnt(0) lgkmcnt(0)", "s_barrier")
    relocate()
    vCtr, vInc, vL16 = 126, 123, 124
    roles()
    ticket(12)
    a(f"s_mov_b32 s{spend}, 1")
    count("S")
    a(f"s_mov_b32 s{spend}, 2", "s_branch K2_TAIL")
    a("K2_END:", "s_endpgm")
    return a.lines, descriptor("k2_kernel", nv, 102 if STAMPS else 96)


def k4():
    a = Asm()
    header(a, "k4_kernel")
    if OPT["probe"]:
        assert STAMPS
        a("s_cmp_lg_u32 s2, 0", "s_cbranch_scc1 K4_END", "s_load_dwordx2 s[20:21], s[0:1], 80",
          "v_mov_b32 v1, 0", "v_mov_b32 v2, -1", "v_mov_b32 v3, 0")
        for k in range(3):
            a(f"ds_write_b64 v1, v[2:3] offset:{8*k}")
        a("s_waitcnt lgkmcnt(0)", "s_barrier")
        a.srd(24, 20, STAMP_OFF, 4 << 20)
        for k, (n, stride) in enumerate(((200, 8 * 128), (4096, 128))):
            for i in range((n + 1023) // 1024):
                a(f"v_add_u32 v4, {1024*i}, v0", f"v_cmp_gt_u32 vcc, {n}, v4", f"v_mul_u32_u24 v4, {stride}, v4",
                  f"s_mov_b32 s3, {k << 20}", "s_and_saveexec_b64 s[10:11], vcc", f"s_cbranch_execz K4_S{k}_{i}",
                  "buffer_load_dwordx2 v[6:7], v4, s[24:27], s3 offen offset:112", "s_waitcnt vmcnt(0)",
                  f"ds_min_u32 v1, v7 offset:{8*k}", f"ds_max_u32 v1, v6 offset:{8*k+4}", f"K4_S{k}_{i}:", "s_mov_b64 exec, -1")
        a("s_waitcnt lgkmcnt(0)", "s_barrier", "ds_read_b128 v[8:11], v1", "ds_read_b64 v[12:13], v1 offset:16", "s_waitcnt lgkmcnt(0)")
        if OPT["probe"] == 9:
            a("v_mov_b32 v2, 0", "ds_write_b32 v1, v2 offset:32", "s_waitcnt lgkmcnt(0)", "s_barrier")
            a(f"v_cmp_gt_u32 vcc, {OPT['pwn']}, v0", f"v_mul_u32_u24 v4, {OPT['pstride'] * 128}, v0",
              f"s_mov_b32 s3, {(OPT['pk'] << 20) + OPT['pw0'] * 128}", "s_and_saveexec_b64 s[10:11], vcc", "s_cbranch_execz K4_C",
              "buffer_load_dword v6, v4, s[24:27], s3 offen", f"buffer_load_dword v7, v4, s[24:27], s3 offen offset:{4*OPT['pidx']}",
              "s_waitcnt vmcnt(0)", "v_sub_u32 v6, v7, v6", "ds_max_u32 v1, v6 offset:32", "K4_C:", "s_mov_b64 exec, -1",
              "s_waitcnt lgkmcnt(0)", "s_barrier", "ds_read_b32 v9, v1 offset:32", "s_waitcnt lgkmcnt(0)",
              "v_mul_u32_u24 v9, 3277, v9", "v_lshrrev_b32 v9, 16, v9", "v_mov_b32 v8, 0")
        hi, lo = {9: (9, 8), 1: (9, 8), 2: (11, 10), 3: (13, 12), 4: (11, 8), 5: (10, 9), 6: (12, 11), 7: (8, 8)}[OPT["probe"]]
        a(f"v_sub_u32 v14, v{hi}, v{lo}", "v_min_u32 v14, 10000, v14", "v_mul_u32_u24 v14, 10, v14", "s_nop 0", "v_readfirstlane_b32 s12, v14",
          "s_memrealtime s[14:15]", "s_waitcnt lgkmcnt(0)", "K4_L:", "s_memrealtime s[16:17]", "s_waitcnt lgkmcnt(0)",
          "s_sub_u32 s16, s16, s14", "s_cmp_lt_u32 s16, s12", "s_cbranch_scc1 K4_L")
    a("K4_END:", "s_endpgm")
    return a.lines, descriptor("k4_kernel", 16, 32)


def main(path):
    head = [
        "; Edge-featured MPNN layer: out = segment_sum(silu([x[src], x[dst], e] @ w1 + b1) @ w2 + b2, dst)",
        "; k1: P = x@w1[0:256], Q = x@w1[256:512] + b1 (scaled by -log2e), edge partition by dst range, w2 re-layout",
        "; k2: per 64-channel slice, S[n] = sum over in-edges of z/(1+2^z), z = P[src] + Q[n] + e*c",
        ";     then out = -ln2 * (S @ w2) + deg * b2 after a hand-off among the eight slice workgroups of a range",
        "; kernarg: x, e_attr, src, dst, w1, b1, w2, b2, out, debug, ws (8 bytes each)",
        f"; @launch kernel=k1_kernel grid=(256,1,1) block=(512,1,1) lds={K1_LDS}",
        f"; @launch kernel=k2_kernel grid=(256,1,1) block=(1024,1,1) lds={K2_LDS}",
        '.amdgcn_target "amdgcn-amd-amdhsa--gfx950"',
        ".text",
    ]
    for i in range(3):
        if OPT["rep"] >> i & 1:
            j = [n for n, l in enumerate(head) if f"kernel=k{i+1}_kernel" in l][0]
            head.insert(j, head[j])
    if OPT["empty"] or OPT["probe"]:
        head.insert(7, "; @launch kernel=k4_kernel grid=(1,1,1) block=(1024,1,1) lds=64")
    body, desc = [], []
    for f in (k1, k2) + ((k4,) if OPT["empty"] or OPT["probe"] else ()):
        b, d = f()
        body += b
        desc += d
    out = head + body + ['.section .rodata,"a"'] + desc
    open(path, "w").write("\n".join(out) + "\n")


if __name__ == "__main__":
    if "--stamps" in sys.argv:
        STAMPS = True
        sys.argv.remove("--stamps")
    for arg in [x for x in sys.argv[1:] if "=" in x]:
        key, val = arg.split("=")
        assert key in OPT, key
        OPT[key] = int(val)
        sys.argv.remove(arg)
    main(sys.argv[1] if len(sys.argv) > 1 else "standalone__edge_featured_mpnn_mpnn__graph.s")
```

```python
import struct
import sys

N, E, D, H = 10000, 160000, 256, 512
TILE1, NT1 = 192, 53
NR = TILE1 * NT1
SS = NR * 128
P_OFF, Q_OFF, S_OFF = 0, 8 * SS, 16 * SS
RNG = 313
NCHUNK, CHUNK, CAP = 32, 5000, 224
R4BLK, R2BLK = NCHUNK * CAP * 4, NCHUNK * CAP * 2
R4_OFF = 16 * SS + 32 * 40 * 8192
R2_OFF = R4_OFF + 32 * R4BLK
NSLOT = 768
B_META = NSLOT * 32
B_FLAG = B_META + 2560
B_CTR = B_FLAG + 4
B_GO = B_CTR + 4
B_CNTA = B_GO + 64
BLOB = 27 * 1024
BLOB_OFF = R2_OFF + 32 * R2BLK
FL_OFF = BLOB_OFF + 32 * BLOB
W2F_OFF = FL_OFF + 32 * 4096
CF_OFF = W2F_OFF + 262144
WS_END = CF_OFF + 4096
SRB = 40 * 8192
MAXDEG = 48
NGRP = 40


def fbits(x):
    return struct.unpack("<I", struct.pack("<f", x))[0]


NLOG2E = fbits(-1.4426950408889634)
NLN2 = fbits(-0.6931471805599453)

assert all((d * 13401) >> 22 == d // RNG for d in range(10016))
assert all((q * 2341) >> 17 == q // 56 for q in range(2048))
assert all((q * 2341) >> 16 == q // 28 for q in range(1024))


STAMPS = False
OPT = dict(sc1=1, sc3=1, prio=1, empty=0, ipf=1, rot=1, pf=0, light=0, fine=0, la=6, pf0=2, x0pos=0, xrot=0, x1early=0, xspread=1, helper=0, ntx=0, ntw=0, nte=0, blobsc=1, xtouch=7, nto=0, ntw2=0, nolo=1, usem4=1, dup=0, rep=0, clip=1, pfearly=1, pfbar=0, k3opt=1, stag=1, pollf=0, bb=4, early=8, tw2=0, hprio=1, late=1, f2early=1, outearly=0, split=0, estart=1, depth=2, diag=0, nbk=1, snake=1, srcearly=0, skip3=0, bsh=0, endg=0, eg1=8, eg2=4, rot3=0, k3w=1, probe=0, pk=0, pidx=0, pw0=0, pwn=0, pstride=1, pfq=0, pfw=1)
STAMP_OFF = 48 << 20


class Asm:
    def stamp_setup(self, vreg, kidx):
        self.st_v, self.st_n, self.st_k = vreg, 0, kidx
        if STAMPS:
            self(f"v_mov_b32 v{vreg}, 0", "s_memrealtime s[100:101]", "s_waitcnt lgkmcnt(0)", f"v_writelane_b32 v{vreg}, s100, 29")
            self.stamp()

    def stamp(self, idx=None):
        if STAMPS and not (OPT["light"] and idx != 27 and self.st_n > 0):
            if idx is None:
                idx = self.st_n
                self.st_n += 1
            self("s_waitcnt lgkmcnt(0)", "s_memtime s[100:101]", "s_waitcnt lgkmcnt(0)", f"v_writelane_b32 v{self.st_v}, s100, {idx}")
            self.lg = []

    def stamp_dump(self, srd, wsreg, swave, nwaves, tmp=2):
        if not STAMPS:
            return
        self("s_waitcnt vmcnt(0)")
        self.stamp(27)
        self("s_memrealtime s[100:101]", "s_waitcnt lgkmcnt(0)", f"v_writelane_b32 v{self.st_v}, s100, 28")
        self("s_getreg_b32 s3, hwreg(HW_REG_HW_ID)", f"v_writelane_b32 v{self.st_v}, s3, 30")
        self("s_getreg_b32 s3, hwreg(HW_REG_XCC_ID)", f"v_writelane_b32 v{self.st_v}, s3, 31")
        self.srd(srd, wsreg, STAMP_OFF + (self.st_k << 20), 1 << 20)
        self(f"s_mul_i32 s3, s2, {nwaves}", f"s_add_u32 s3, s3, s{swave}", "s_lshl_b32 s3, s3, 7", "s_mov_b64 exec, -1",
             f"v_lshlrev_b32 v{tmp}, 2, v1", "s_mov_b32 exec_hi, 0",
             f"buffer_store_dword v{self.st_v}, v{tmp}, s[{srd}:{srd+3}], s3 offen")

    def __init__(self):
        self.lines = []
        self.vm = []
        self.lg = []

    def __call__(self, *ls):
        for l in ls:
            self.lines.append(l if l.endswith(":") else "    " + l)

    def vmem(self, line, tag=None):
        self(line)
        self.vm.append(tag)

    def lds(self, line, tag=None):
        self(line)
        self.lg.append(tag)

    @staticmethod
    def _need(q, tags):
        last = -1
        for i, t in enumerate(q):
            if t in tags:
                last = i
        return None if last < 0 else len(q) - 1 - last

    def wait(self, vm=None, lg=None):
        parts = []
        if vm is not None:
            n = 0 if vm == "all" else self._need(self.vm, vm if isinstance(vm, (list, tuple, set)) else [vm])
            if n is not None:
                n = min(n, 63)
                parts.append(f"vmcnt({n})")
                self.vm = self.vm[len(self.vm) - n:] if n else []
        if lg is not None:
            n = 0 if lg == "all" else self._need(self.lg, lg if isinstance(lg, (list, tuple, set)) else [lg])
            if n is not None:
                n = min(n, 15)
                parts.append(f"lgkmcnt({n})")
                self.lg = self.lg[len(self.lg) - n:] if n else []
        if parts:
            self("s_waitcnt " + " ".join(parts))

    def srd(self, s, base, off, size, stride=0):
        if off == 0:
            self(f"s_mov_b32 s{s}, s{base}", f"s_and_b32 s{s+1}, s{base+1}, 0xffff")
        else:
            self(f"s_add_u32 s{s}, s{base}, {off}", f"s_addc_u32 s{s+1}, s{base+1}, 0",
                 f"s_and_b32 s{s+1}, s{s+1}, 0xffff")
        if stride:
            self(f"s_or_b32 s{s+1}, s{s+1}, {stride << 16}")
        self(f"s_mov_b32 s{s+2}, {size}", f"s_mov_b32 s{s+3}, 0x20000")


POLLF = ["sc1", "sc0 sc1", "sc1 nt", "sc0 sc1 nt"]


def wt():
    return " sc1" if OPT["sc1"] else ""


def code_prefetch(a, first, last, wshift, vtmp, vsink, tag):
    if not OPT["ipf"]:
        return
    a(f"s_getpc_b64 s[22:23]", f"{tag}_PC:", f"s_sub_u32 s22, s22, {tag}_PC-{first}", "s_subb_u32 s23, s23, 0",
      "s_lshr_b32 s3, s2, 3", f"s_lshl_b32 s3, s3, {wshift + 10}", f"v_lshlrev_b32 v{vtmp}, 4, v0", f"v_add_u32 v{vtmp}, s3, v{vtmp}",
      f"v_cmp_gt_u32 vcc, {last}-{first}-16, v{vtmp}", "s_and_saveexec_b64 s[4:5], vcc", f"s_cbranch_execz {tag}_PCX",
      f"global_load_dwordx4 {vr(vsink,4)}, v{vtmp}, s[22:23]", f"{tag}_PCX:", "s_mov_b64 exec, -1")


def vr(a, n=1):
    return f"v{a}" if n == 1 else f"v[{a}:{a+n-1}]"


def sr(a, n=1):
    return f"s{a}" if n == 1 else f"s[{a}:{a+n-1}]"


def header(a, name):
    a.lines += [f".globl {name}", ".p2align 8", f".type {name},@function", f"{name}:"]


def descriptor(name, nv, ns):
    acc = (nv + 3) // 4 * 4
    return [".p2align 6", f".amdhsa_kernel {name}", f"  .amdhsa_next_free_vgpr {nv}",
            f"  .amdhsa_next_free_sgpr {ns}", f"  .amdhsa_accum_offset {acc}",
            "  .amdhsa_group_segment_fixed_size 0", "  .amdhsa_kernarg_size 88",
            "  .amdhsa_user_sgpr_count 2", "  .amdhsa_user_sgpr_kernarg_segment_ptr 1",
            "  .amdhsa_system_sgpr_workgroup_id_x 1", "  .amdhsa_float_denorm_mode_32 3",
            ".end_amdhsa_kernel"]


K1_REG = 40960
K1_LDS = 4 * K1_REG
K1_CNT = 0
K1_I16 = 256
K1_I32 = K1_I16 + 32 * CAP * 2
K1_C2 = 44 * 1024
K1_H2 = K1_C2 + 16 + 10240
K1_NB = K1_H2 + 256
K1_BL = 66 * 1024
assert K1_I32 + 32 * CAP * 4 <= K1_C2 and K1_NB + 16 + 10240 <= K1_BL


def k1():
    a = Asm()
    header(a, "k1_kernel")
    sX, sW, sO, sB = 24, 28, 32, 36
    sw, stile, su, st0, st1, sWB, sXo, sOo, sK, sMask, sRB, sq, sWo, sWn, sWc = 56, 57, 58, 59, 60, 61, 62, 63, 64, 66, 67, 68, 69, 70, 71
    vLane, vT0, vT1, vT2 = 1, 2, 3, 4
    vAad = 6
    vTr = 14
    vXd = 16
    vWd, vSt = 20, 21
    vBias = 22
    vA = 24
    vAcc = 40
    vW = 104
    vWx = vW + 128
    nv = vWx + 3

    a("s_cmp_ge_u32 s2, 256", "s_cbranch_scc1 K1_END")
    a.stamp_setup(5, 0)
    code_prefetch(a, "k1_kernel", "K2_END", 3, 2, vW + 124, "K1")
    a("s_load_dwordx16 s[4:19], s[0:1], 0", "s_load_dwordx2 s[20:21], s[0:1], 80", "s_load_dwordx2 s[52:53], s[0:1], 72")
    a(f"v_lshrrev_b32 v{vT0}, 6, v0", f"v_and_b32 v{vLane}, 63, v0", f"v_readfirstlane_b32 s{sw}, v{vT0}")
    a(f"s_lshr_b32 s{sq}, s2, 3", f"s_cmp_lt_u32 s{sq}, 4", "s_cbranch_scc1 K1_SORT")
    a(f"s_cmp_ge_u32 s{sw}, 4", "s_cbranch_scc1 K1_END", f"s_sub_u32 s{sq}, s{sq}, 4")
    a(f"s_and_b32 s{su}, s{sq}, 3", f"s_lshl_b32 s{su}, s{su}, 2", f"s_lshr_b32 s{sq}, s{sq}, 2",
      f"s_lshl_b32 s{st0}, s{sq}, 3", f"s_and_b32 s{stile}, s2, 7", f"s_add_u32 s{stile}, s{stile}, s{st0}",
      f"s_add_u32 s{su}, s{su}, s{sw}", f"s_cmp_ge_u32 s{stile}, {NT1}", "s_cbranch_scc1 K1_PREP")

    a(f"s_mul_i32 s{sRB}, s{sw}, {K1_REG}", f"s_add_u32 s{sWB}, s{sRB}, 8192")
    a(f"s_mov_b32 s{sK}, {NLOG2E}", f"s_mov_b32 s{sK+1}, {NLOG2E}")
    a(f"s_lshl_b32 s{sq}, s{sq}, 2" if OPT["rot"] else f"s_mov_b32 s{sq}, 0")
    a(f"v_lshrrev_b32 v{vT0}, 5, v{vLane}", f"s_lshl_b32 s{st0}, s{sw}, 3", f"v_add_u32 v{vT0}, s{st0}, v{vT0}",
      f"v_and_b32 v{vT1}, 31, v{vLane}")
    for m in range(4):
        a(f"v_add_u32 v{vT2}, {2*m}, v{vT0}", f"v_and_b32 v{vXd+m}, 15, v{vT2}", f"v_xor_b32 v{vXd+m}, v{vXd+m}, v{vT1}",
          f"v_add_u32 v{vXd+m}, s{sq}, v{vXd+m}", f"v_and_b32 v{vXd+m}, 31, v{vXd+m}",
          f"v_lshlrev_b32 v{vXd+m}, 4, v{vXd+m}", f"v_lshl_add_u32 v{vXd+m}, v{vT0}, 9, v{vXd+m}")
    a(f"s_mul_i32 s{sXo}, s{stile}, {TILE1*512}")
    sJ = 40
    a(f"s_lshr_b32 s{sJ}, s{su}, 2" if OPT["xrot"] else f"s_mov_b32 s{sJ}, 0")
    for j in range(1, TILE1 // 32):
        a(f"s_add_u32 s{sJ+j}, s{sJ+j-1}, 1", f"s_cmp_eq_u32 s{sJ+j}, {TILE1 // 32}", f"s_cselect_b32 s{sJ+j}, 0, s{sJ+j}")
    a(f"v_lshrrev_b32 v{vT0}, 3, v{vLane}", f"v_and_b32 v{vT1}, 7, v{vLane}", f"v_and_b32 v{vT2}, 16, v{vLane}",
      f"v_lshrrev_b32 v{vT2}, 2, v{vT2}", f"v_xor_b32 v{vT1}, v{vT1}, v{vT2}", f"v_lshlrev_b32 v{vT1}, 4, v{vT1}",
      f"v_lshl_add_u32 v{vWd}, v{vT0}, 10, v{vT1}")
    for i in range(1, 4):
        a(f"v_add_u32 v{vWx+i-1}, {7168*i}, v{vWd}")
    a(f"s_lshr_b32 s{st0}, s{su}, 3", f"s_lshl_b32 s{st0}, s{st0}, 18", f"s_and_b32 s{sMask}, s{su}, 7",
      f"s_lshl_b32 s{sMask}, s{sMask}, 7", f"s_add_u32 s{sWo}, s{st0}, s{sMask}", f"s_lshl_b32 s{sWn}, s{sq}, 13")
    a(f"v_and_b32 v{vT0}, 31, v{vLane}", f"v_lshrrev_b32 v{vT1}, 3, v{vT0}", f"v_mul_u32_u24 v{vAad}, {K1_REG}, v{vT1}",
      f"v_and_b32 v{vT1}, 7, v{vT0}", f"v_lshl_add_u32 v{vAad}, v{vT1}, 9, v{vAad}",
      f"v_lshrrev_b32 v{vT1}, 5, v{vLane}", f"v_and_b32 v{vT2}, 15, v{vLane}", f"v_xor_b32 v{vT2}, v{vT2}, v{vT1}",
      f"v_lshl_add_u32 v{vAad}, v{vT2}, 4, v{vAad}")
    for s in range(1, 8):
        a(f"v_xor_b32 v{vAad+s}, {32*s}, v{vAad}")
    a(f"v_lshlrev_b32 v{vSt}, 9, v{vT1}", f"v_lshl_add_u32 v{vSt}, v{vT0}, 2, v{vSt}")
    a(f"v_lshlrev_b32 v{vTr}, 10, v{vT1}", f"v_bfe_u32 v{vT2}, v{vLane}, 2, 2", f"v_lshl_add_u32 v{vTr}, v{vT2}, 7, v{vTr}",
      f"v_bfe_u32 v{vT2}, v{vLane}, 3, 1", f"v_lshl_add_u32 v{vTr}, v{vT2}, 6, v{vTr}",
      f"v_bfe_u32 v{vT2}, v{vLane}, 4, 1", f"v_lshl_add_u32 v{vTr}, v{vT2}, 5, v{vTr}",
      f"v_and_b32 v{vT2}, 3, v{vLane}", f"v_lshl_add_u32 v{vTr}, v{vT2}, 3, v{vTr}",
      f"v_add_u32 v{vTr}, s{sWB}, v{vTr}", f"v_xor_b32 v{vTr+1}, 64, v{vTr}", f"v_lshlrev_b32 v{vT0}, 1, v{vT0}")
    a(f"s_mul_i32 s{sOo}, s{su}, {SS}", f"s_mul_i32 s{st0}, s{stile}, {TILE1*128}", f"s_add_u32 s{sOo}, s{sOo}, s{st0}")
    a("s_waitcnt lgkmcnt(0)")
    a.srd(sX, 4, 0, N * 512)
    a.srd(sW, 12, 0, 513 * 1024)

    def x_dma(j):
        a(f"s_add_u32 m0, s{sRB}, {j*4096}", f"s_lshl_b32 s{st0}, s{sJ+j}, 14", f"s_add_u32 s{st0}, s{st0}, s{sXo}")
        for m in range(4):
            a.vmem(f"buffer_load_dwordx4 v{vXd+m}, {sr(sX,4)}, s{st0} offen offset:{1024*m}{' nt' if OPT['ntx'] else ''} lds", f"x{j}")

    def w_dma(s):
        if s % 2 == 0:
            a(f"s_add_u32 m0, s{sWB}, {s*2048}", f"s_add_u32 s{sWc}, s{sWo}, s{sWn}")
        elif OPT["x0pos"] == s:
            a(f"s_add_u32 m0, s{sWB}, {(s-1)*2048}", "s_nop 0")
        for i in (2 * (s % 2), 2 * (s % 2) + 1):
            reg = vWd if i == 0 else vWx + i - 1
            a.vmem(f"buffer_load_dwordx4 v{reg}, {sr(sW,4)}, s{sWc} offen offset:{1024*i}{' nt' if OPT['ntw'] else ''} lds", f"w{s}")
        if s % 2 == 1:
            a(f"s_add_u32 s{sWn}, s{sWn}, 32768", f"s_and_b32 s{sWn}, s{sWn}, 0x3ffff")

    def x_touch():
        a(f"s_lshr_b32 s{st0}, s{su}, 2", f"s_mul_i32 s{st0}, s{st0}, {TILE1*128}", f"s_mul_i32 s{st1}, s{sw}, {TILE1*32}",
          f"s_add_u32 s{st0}, s{st0}, s{st1}", f"s_add_u32 s{st0}, s{st0}, s{sXo}", f"v_lshlrev_b32 v{vT1}, 7, v{vLane}",
          f"s_mov_b32 exec_hi, {(1 << (TILE1 // 4 - 32)) - 1}")
        a.vmem(f"buffer_load_dword v{vT2}, v{vT1}, {sr(sX,4)}, s{st0} offen{' nt' if OPT['ntx'] else ''}", "touch")
        a("s_mov_b32 exec_hi, -1")

    LA = OPT["la"]
    a.stamp()
    if OPT["xtouch"] == 1:
        x_touch()
    for s in range(LA):
        if s == OPT["x0pos"]:
            x_dma(0)
        w_dma(s)
        if OPT["xtouch"] == 2 + s:
            x_touch()
    if OPT["x1early"]:
        x_dma(1)
    a.srd(sO, 20, 0, 16 * SS)
    if OPT["dup"]:
        a.srd(48, 20, 64 << 20, 16 * SS)
    a.srd(sB, 14, 0, 1024)
    a(f"s_cmp_ge_u32 s{su}, 8", f"s_cselect_b32 s{sB+2}, s{sB+2}, 0")
    a.stamp()

    def wfrag(s, b):
        return vW + (s * 2 + b) * 4

    def a_read(j, s):
        a.lds(f"ds_read_b128 {vr(vA + 4*((16*j+s) % 4), 4)}, v{vAad + (s & 7)} offset:{4096*j + 256*(s >> 3)}", f"a{j}_{s}")

    def w_read(s):
        a.wait(vm=f"w{s}")
        for b in range(2):
            for q in range(2):
                a.lds(f"ds_read_b64_tr_b16 {vr(wfrag(s, b) + 2*q, 2)}, v{vTr+b} offset:{s*2048 + q*512}", f"t{s}")

    def mfma(j, s, b):
        acc = vAcc + 32 * (j & 1) + 16 * b
        c = "0" if s == 0 else vr(acc, 16)
        a(f"v_mfma_f32_32x32x16_bf16 {vr(acc,16)}, {vr(vA + 4*((16*j+s) % 4), 4)}, {vr(wfrag(s, b), 4)}, {c}")

    def epilogue_ops(j):
        acc = vAcc + 32 * (j & 1)
        ops = [("s", f"s_lshl_b32 s{st1}, s{sJ+j}, 12"), ("s", f"s_add_u32 s{st1}, s{st1}, s{sOo}")]
        for r in range(0, 16, 2):
            for rr in (r, r + 1):
                ops.append(("v", f"v_fma_f32 v{acc+rr}, v{acc+rr}, s{sK}, v{vBias}"))
                ops.append(("v", f"v_fma_f32 v{acc+16+rr}, v{acc+16+rr}, s{sK}, v{vBias+1}"))
            for rr in (r, r + 1):
                ops.append(("v", f"v_cvt_pk_bf16_f32 v{acc+rr}, v{acc+rr}, v{acc+16+rr}"))
            for rr in (r, r + 1):
                ops.append(("m", f"buffer_store_dword v{acc+rr}, v{vSt}, {sr(sO,4)}, s{st1} offen offset:{(8*(rr>>2) + (rr&3))*128}{wt()}"))
        return ops

    def emit_op(op):
        if op[0] == "m":
            a.vmem(op[1], "st")
            if OPT["dup"]:
                a.vmem(op[1].replace(sr(sO, 4), sr(48, 4)), "st")
        else:
            a(op[1])

    NJ = TILE1 // 32
    a.wait(vm="x0")
    a("s_barrier")
    a.stamp()
    PF0 = OPT["pf0"]
    for s in range(PF0):
        w_read(s)
        a_read(0, s)
    for s in range(16):
        if s + PF0 < 16:
            w_read(s + PF0)
            a_read(0, s + PF0)
        a.wait(lg=[f"t{s}", f"a0_{s}"])
        mfma(0, s, 0)
        if s + LA < 16:
            w_dma(s + LA)
        elif s + LA == 16:
            if not OPT["x1early"]:
                x_dma(1)
            a.vmem(f"buffer_load_ushort v{vBias}, v{vT0}, {sr(sB,4)}, s{sMask} offen", "x1")
            a.vmem(f"buffer_load_ushort v{vBias+1}, v{vT0}, {sr(sB,4)}, s{sMask} offen offset:64", "x1")
        elif s + LA - 15 < (3 if OPT["xspread"] else NJ):
            x_dma(s + LA - 15)
        mfma(0, s, 1)
        if OPT["fine"] and s % 2 == 1 and s < 15:
            a.stamp()
    PFA = 3
    a.stamp()
    a.wait(vm="x1")
    a("s_barrier")
    for s in range(PFA):
        a_read(1, s)
    a(f"v_lshlrev_b32 v{vBias}, 16, v{vBias}", f"v_lshlrev_b32 v{vBias+1}, 16, v{vBias+1}",
      f"v_mul_f32 v{vBias}, s{sK}, v{vBias}", f"v_mul_f32 v{vBias+1}, s{sK}, v{vBias+1}")
    a.stamp()
    for j in range(1, NJ):
        ops = epilogue_ops(j - 1)
        for s in range(16):
            if s + PFA == 16 and j < NJ - 1:
                a.wait(vm=f"x{j+1}")
                a("s_barrier")
            a.wait(lg=f"a{j}_{s}")
            mfma(j, s, 0)
            if OPT["xspread"] and s == 1 and j + 2 < NJ:
                x_dma(j + 2)
            if s + PFA < 16:
                a_read(j, s + PFA)
            elif j < NJ - 1:
                a_read(j + 1, s + PFA - 16)
            if s >= 3:
                for _ in range(3 if s == 3 else 2):
                    if ops:
                        emit_op(ops.pop(0))
            mfma(j, s, 1)
            if s >= 3:
                for _ in range(3):
                    if ops:
                        emit_op(ops.pop(0))
        assert not ops
        a.stamp()
    a("s_nop 15")
    for op in epilogue_ops(NJ - 1):
        emit_op(op)
    a.stamp_dump(sX, 20, sw, 8)
    a("s_endpgm")

    a("K1_PREP:")
    a.vm, a.lg = [], []
    a(f"s_cmp_ge_u32 s{stile}, {NT1 + 2}", "s_cbranch_scc1 K1_CPREP")
    sW2, sF = sX, sW
    vL = vW
    vOut = vW + 32
    a(f"s_sub_u32 s{st0}, s{stile}, {NT1}", f"s_lshl_b32 s{st0}, s{st0}, 4", f"s_add_u32 s{su}, s{su}, s{st0}")
    a(f"v_and_b32 v{vT0}, 15, v{vLane}", f"v_lshrrev_b32 v{vT1}, 4, v{vLane}", f"v_lshlrev_b32 v{vT0}, 2, v{vT0}",
      f"v_lshl_add_u32 v{vWd}, v{vT1}, 11, v{vT0}", f"v_lshlrev_b32 v{vSt}, 4, v{vLane}")
    a(f"s_lshr_b32 s{st0}, s{su}, 2", f"s_lshl_b32 s{st0}, s{st0}, 6", f"s_and_b32 s{st1}, s{su}, 3",
      f"s_lshl_b32 s{st1}, s{st1}, 16", f"s_add_u32 s{sXo}, s{st0}, s{st1}", f"s_lshl_b32 s{sOo}, s{su}, 13")
    a("s_waitcnt lgkmcnt(0)")
    a.srd(sW2, 16, 0, 512 * 512)
    a.srd(sF, 20, W2F_OFF, 262144)
    for s in range(4):
        for i in range(8):
            row = (s >> 1) * 64 + 16 * (s & 1) + (i >> 1) + 32 * (i & 1)
            a(f"s_add_u32 s{st0}, s{sXo}, {row*512}")
            a.vmem(f"buffer_load_dword v{vL + 8*s + i}, v{vWd}, {sr(sW2,4)}, s{st0} offen{' nt' if OPT['ntw2'] else ''}", f"l{s}")
    a(f"s_mov_b32 s{sK}, 0x05040100", f"s_mov_b32 s{sK+1}, 0x07060302")
    for s in range(4):
        a.wait(vm=f"l{s}")
        for b in range(2):
            o = vOut + 8 * s + 4 * b
            for m in range(4):
                a(f"v_perm_b32 v{o+m}, v{vL + 8*s + 2*m + 1}, v{vL + 8*s + 2*m}, s{sK+b}")
            a(f"s_add_u32 s{st0}, s{sOo}, {(2*s+b)*1024}")
            a.vmem(f"buffer_store_dwordx4 {vr(o,4)}, v{vSt}, {sr(sF,4)}, s{st0} offen{wt()}")
    a("s_endpgm")

    a("K1_CPREP:")
    a(f"s_cmp_ge_u32 s{su}, 8", "s_cbranch_scc1 K1_END")
    a(f"v_and_b32 v{vT1}, 1, v{vLane}", f"v_lshlrev_b32 v{vT1}, 6, v{vT1}",
      f"v_bfe_u32 v{vT2}, v{vLane}, 2, 1", f"v_lshl_add_u32 v{vT1}, v{vT2}, 5, v{vT1}",
      f"v_bfe_u32 v{vT2}, v{vLane}, 3, 1", f"v_lshl_add_u32 v{vT1}, v{vT2}, 2, v{vT1}",
      f"v_bfe_u32 v{vT2}, v{vLane}, 1, 1", f"v_lshl_add_u32 v{vT1}, v{vT2}, 1, v{vT1}",
      f"v_bfe_u32 v{vT0}, v{vLane}, 4, 1", f"v_lshrrev_b32 v{vT2}, 5, v{vLane}", f"v_cmp_eq_u32 vcc, v{vT0}, v{vT2}",
      f"v_lshlrev_b32 v{vT0}, 3, v{vLane}", f"s_lshl_b32 s{st0}, s{su}, 7", f"s_lshl_b32 s{st1}, s{su}, 9",
      f"s_mov_b32 s{sK}, {NLOG2E}", "s_waitcnt lgkmcnt(0)")
    a.srd(sX, 12, 512 * 1024, 1024)
    a.srd(sW, 20, CF_OFF, 4096)
    for i in range(4):
        a(f"buffer_load_ushort v{8+i}, v{vT1}, {sr(sX,4)}, s{st0} offen offset:{8*i}")
    a("s_waitcnt vmcnt(0)")
    for i in range(4):
        a(f"v_lshlrev_b32 v{8+i}, 16, v{8+i}", f"v_mul_f32 v{8+i}, s{sK}, v{8+i}")
    a("v_cvt_pk_bf16_f32 v12, v8, v9", "v_cvt_pk_bf16_f32 v13, v10, v11", "v_cndmask_b32 v12, 0, v12, vcc", "v_cndmask_b32 v13, 0, v13, vcc",
      f"buffer_store_dwordx2 v[12:13], v{vT0}, {sr(sW,4)}, s{st1} offen{wt()}", "s_endpgm")

    a("K1_SORT:")
    a.vm, a.lg = [], []
    nt = " nt" if OPT["nte"] else ""
    NBK = OPT["nbk"]
    LB = NBK.bit_length() - 1
    NU = ((N - 1) >> OPT["bsh"]) + 1 if OPT["bsh"] else NBK
    assert NU <= NBK
    assert all((x * 6554 * NBK) >> 26 < NBK for x in range(N))
    sDst, sSrc, sE, sR4, sR2, sDb, sBl, sDg = 24, 28, 32, 36, 40, 44, 24, 28
    sc = su
    vDst, vSrc, vEe, vSl, vRg, vRd, vCn, vRo = 8, 20, 32, 40, 56, 72, 96, 100
    vOne, vBig, vO16, vO8 = 6, 7, 108, 109
    a(f"s_mov_b32 s{sc}, s2")
    a(f"v_lshlrev_b32 v{vO16}, 4, v0", f"v_lshlrev_b32 v{vO8}, 3, v0")
    a(f"s_mul_i32 s{st0}, s{sc}, {CHUNK*4}", f"s_mul_i32 s{st1}, s{sc}, {CHUNK*2}")
    for r in range(4):
        a(f"v_mov_b32 v{vRd+r}, 0", f"v_mov_b32 v{vRd+4+r}, 0xffff")
    for i in range(2):
        a(f"ds_write_b128 v{vO16}, {vr(vRd,4)} offset:{8192*i}")
    for i in range(2):
        a(f"ds_write_b128 v{vO16}, {vr(vRd,4)} offset:{K1_C2 + 8192*i}")
    a("s_waitcnt lgkmcnt(0)")
    a.srd(sDst, 10, f"s{st0}", CHUNK * 4)
    for i in range(3):
        a(f"s_mov_b32 s{sXo}, {8192*i}")
        a.vmem(f"buffer_load_dwordx4 {vr(vDst+4*i,4)}, v{vO16}, {sr(sDst,4)}, s{sXo} offen{nt}", f"d{i}")
    if not OPT["srcearly"]:
        a("s_barrier")
    a.srd(sSrc, 8, f"s{st0}", CHUNK * 4)
    a.srd(sE, 6, f"s{st1}", CHUNK * 2)
    for i in range(3):
        a(f"s_mov_b32 s{st0}, {8192*i}")
        a.vmem(f"buffer_load_dwordx4 {vr(vSrc+4*i,4)}, v{vO16}, {sr(sSrc,4)}, s{st0} offen{nt}", f"r{i}")
    if OPT["srcearly"]:
        a("s_barrier")
    for i in range(3):
        a(f"s_mov_b32 s{st1}, {4096*i}")
        a.vmem(f"buffer_load_dwordx2 {vr(vEe+2*i,2)}, v{vO8}, {sr(sE,4)}, s{st1} offen{nt}", f"s{i}")
    a.stamp(7)
    a.srd(sR4, 20, R4_OFF, 32 * R4BLK)
    a.srd(sR2, 20, R2_OFF, 32 * R2BLK)
    a.srd(sDb, 52, 0, 256)
    a(f"s_mov_b32 s{st0}, 13401", f"s_mov_b32 s{st1}, {-RNG & 0xffffffff}", f"s_mov_b32 s{sMask}, 0xffff0000",
      f"v_mov_b32 v{vOne}, 1", f"v_cmp_gt_u32 vcc, {CHUNK//4 - 1024}, v0", f"s_mov_b64 {sr(sK,2)}, vcc",
      f"s_mov_b32 s{sXo}, {CAP}")

    a.stamp(8)
    for i in range(3):
        a.wait(vm=f"d{i}")
        if i == 0:
            a.stamp(9)
        if i == 2:
            a(f"s_mov_b64 exec, {sr(sK,2)}")
        for n in range(4 * i, 4 * i + 4):
            a(f"v_mul_u32_u24 v{vRg+n}, s{st0}, v{vDst+n}", f"v_lshrrev_b32 v{vRg+n}, 22, v{vRg+n}",
              f"v_lshlrev_b32 v{vSl+n}, 2, v{vRg+n}")
            a.lds(f"ds_add_rtn_u32 v{vSl+n}, v{vSl+n}, v{vOne} offset:{K1_CNT}", f"sl{n}")
            a(f"v_mad_i32_i24 v{vDst+n}, v{vRg+n}, s{st1}, v{vDst+n}", f"v_lshl_add_u32 v{vDst+n}, v{vDst+n}, {LB + 2}, 16")
        if i == 2:
            a("s_mov_b64 exec, -1")
    a.stamp(10)
    a(f"s_mov_b32 s{st0}, {6554 * NBK}")
    for n in range(12):
        if n == 8:
            a(f"s_mov_b64 exec, {sr(sK,2)}")
        if NBK > 1:
            a.wait(vm=f"r{n//4}")
            if OPT["bsh"]:
                a(f"v_lshrrev_b32 v{vT2}, {OPT['bsh']}, v{vSrc+n}", f"v_lshl_add_u32 v{vDst+n}, v{vT2}, 2, v{vDst+n}")
            else:
                a(f"v_mul_u32_u24 v{vT2}, s{st0}, v{vSrc+n}", f"v_lshrrev_b32 v{vT2}, 26, v{vT2}", f"v_lshl_add_u32 v{vDst+n}, v{vT2}, 2, v{vDst+n}")
        a.wait(lg=f"sl{n}")
        a(f"v_min_u32 v{vSl+n}, {CAP - 1}, v{vSl+n}", f"v_mad_u32_u24 v{vSl+n}, v{vRg+n}, s{sXo}, v{vSl+n}",
          f"v_lshlrev_b32 v{vRg+n}, 1, v{vSl+n}")
        a.lds(f"ds_write_b16 v{vRg+n}, v{vDst+n} offset:{K1_I16}")
    a("s_mov_b64 exec, -1")
    a(f"s_mul_i32 s{st0}, s{sc}, {CAP*4}", f"s_mul_i32 s{st1}, s{sc}, {CAP*2}",
      f"s_mov_b32 s{sXo}, {R4BLK - CAP*4}", f"s_mov_b32 s{sOo}, {R2BLK - CAP*2}")
    for i in range(2):
        a(f"v_add_u32 v{vT2}, {512*i}, v0", f"v_mul_u32_u24 v{vT2}, 2341, v{vT2}", f"v_lshrrev_b32 v{vT2}, 16, v{vT2}",
          f"v_mad_u32_u24 v{vRo+4+i}, v{vT2}, s{sOo}, v{vO16}", f"v_add_u32 v{vRo+4+i}, {8192*i}, v{vRo+4+i}",
          f"v_lshlrev_b32 v{vCn+i}, 2, v{vT2}")
    a.wait(lg="all")
    a("s_barrier")
    a.stamp(1)
    for i in range(2):
        a.lds(f"ds_read_b128 {vr(vRd+16+4*i,4)}, v{vO16} offset:{K1_I16 + 8192*i}", f"h{i}")
        a.lds(f"ds_read_b32 v{vCn+i}, v{vCn+i} offset:{K1_CNT}", f"h{i}")
    for i in range(2):
        a.wait(lg=f"h{i}")
        a(f"v_cmp_ge_u32 vcc, {CAP}, v{vCn+i}", "s_nop 1", f"v_cndmask_b32 v{vRd+16+4*i}, -1, v{vRd+16+4*i}, vcc")
        a.vmem(f"buffer_store_dwordx4 {vr(vRd+16+4*i,4)}, v{vRo+4+i}, {sr(sR2,4)}, s{st1} offen sc1", "r2")
    for i in range(3):
        a.wait(vm=f"s{i}")
        if i == 2:
            a(f"s_mov_b64 exec, {sr(sK,2)}")
        for n in range(4 * i, 4 * i + 4):
            if n & 1:
                a(f"v_and_or_b32 v{vSrc+n}, v{vEe+n//2}, s{sMask}, v{vSrc+n}")
            else:
                a(f"v_lshl_or_b32 v{vSrc+n}, v{vEe+n//2}, 16, v{vSrc+n}")
            a(f"v_lshlrev_b32 v{vSl+n}, 2, v{vSl+n}")
            a.lds(f"ds_write_b32 v{vSl+n}, v{vSrc+n} offset:{K1_I32}")
    a("s_mov_b64 exec, -1")
    for i in range(4):
        a(f"v_add_u32 v{vT2}, {512*i}, v0", f"v_mul_u32_u24 v{vT2}, 2341, v{vT2}", f"v_lshrrev_b32 v{vT2}, 17, v{vT2}",
          f"v_mad_u32_u24 v{vRo+i}, v{vT2}, s{sXo}, v{vO16}", f"v_add_u32 v{vRo+i}, {8192*i}, v{vRo+i}")
    a(f"s_lshl_b32 s{sWo}, s{sc}, 2", f"v_mov_b32 v{vBig}, s{sWo}")
    a.wait(vm="all", lg="all")
    a("s_barrier")
    a.stamp(11)
    a(f"s_cmp_lg_u32 s{sw}, 0", "s_cbranch_scc1 K1_F1", "s_mov_b64 exec, 1",
      f"buffer_store_dword v{vOne}, v{vBig}, {sr(sDb,4)}, 0 offen sc1", "s_mov_b64 exec, -1", "K1_F1:")
    for i in range(4):
        a.lds(f"ds_read_b128 {vr(vRd+4*i,4)}, v{vO16} offset:{K1_I32 + 8192*i}", f"g{i}")
    for i in range(4):
        a.wait(lg=f"g{i}")
        a.vmem(f"buffer_store_dwordx4 {vr(vRd+4*i,4)}, v{vRo+i}, {sr(sR4,4)}, s{st0} offen sc1")
    a(f"s_mul_i32 s{st0}, s{sc}, {R4BLK}", f"s_add_u32 s{st0}, s{st0}, {R4_OFF}", f"s_mul_i32 s{st1}, s{sc}, {R2BLK}",
      f"s_add_u32 s{st1}, s{st1}, {R2_OFF}", f"s_mul_i32 s{sXo}, s{sc}, {BLOB}", f"s_add_u32 s{sXo}, s{sXo}, {BLOB_OFF}",
      f"s_lshl_b32 s{sOo}, s{sc}, 12", f"s_add_u32 s{sOo}, s{sOo}, {FL_OFF}")
    a.srd(sBl, 20, f"s{sXo}", BLOB)
    a.srd(sDg, 20, f"s{sOo}", 3072)
    for r in range(4):
        a(f"v_mov_b32 v{vDst+r}, 0xffff")
    a(f"v_add_u32 v{vT0}, {K1_BL}, v{vO16}", f"v_mov_b32 v{vDst+4}, 0", f"v_mov_b32 v{vDst+5}, 0", f"v_mov_b32 v{vDst+6}, {K1_BL + BLOB}")
    for i in range(3):
        a(f"ds_write_b128 v{vT0}, {vr(vDst,4)} offset:{8192*i}")
    a(f"v_add_u32 v{vT1}, {K1_BL + B_META}, v{vO8}", f"ds_write_b64 v{vT1}, {vr(vDst+4,2)}",
      f"v_mov_b32 v{vT1}, {K1_NB}", f"ds_write_b32 v{vT1}, v{vDst+6}")
    a(f"buffer_store_dwordx2 {vr(vDst+4,2)}, v{vO8}, {sr(sDg,4)}, 0 offen sc1")
    for n in range(16):
        a(f"v_mov_b32 v{48+n}, 0")
    a("s_waitcnt vmcnt(0) lgkmcnt(0)")
    a.vm, a.lg = [], []
    a.srd(sR4, 20, f"s{st0}", R4BLK)
    a.srd(sR2, 20, f"s{st1}", R2BLK)
    a("s_barrier")
    a.stamp(2)

    vFa, vFd = 110, 111
    a(f"v_lshlrev_b32 v{vFa}, 2, v{vLane}")

    def poll_issue(tag, word, wave):
        a(f"s_cmp_lg_u32 s{sw}, {wave}", f"s_cbranch_scc1 K1_{tag}I", "s_mov_b32 exec_hi, 0",
          f"buffer_load_dword v{vFd}, v{vFa}, {sr(sDb,4)}, 0 offen offset:{word} {POLLF[OPT['pollf']]}", "s_mov_b32 exec_hi, -1", f"K1_{tag}I:")

    def poll(tag, word, wave):
        a(f"s_cmp_lg_u32 s{sw}, {wave}", f"s_cbranch_scc1 K1_{tag}X", "s_mov_b32 exec_hi, 0", f"s_mov_b32 s{sWc}, 0")
        a(f"K1_{tag}L:")
        a("s_waitcnt vmcnt(0)", f"v_cmp_eq_u32 vcc, 0, v{vFd}", f"s_cbranch_vccz K1_{tag}D",
          f"buffer_load_dword v{vFd}, v{vFa}, {sr(sDb,4)}, 0 offen offset:{word} {POLLF[OPT['pollf']]}", f"s_add_u32 s{sWc}, s{sWc}, 1",
          f"s_cmp_lt_u32 s{sWc}, 0x40000", f"s_cbranch_scc1 K1_{tag}L")
        a("s_waitcnt vmcnt(0)", f"v_mov_b32 v{vFd}, {K1_BL + B_FLAG}",
          f"ds_write_b32 v{vFd}, v{vOne}", "s_waitcnt lgkmcnt(0)")
        a(f"K1_{tag}D:", "s_mov_b64 exec, -1", f"K1_{tag}X:")
    a(f"s_cmp_lg_u32 s{sw}, 1", "s_cbranch_scc1 K1_F2", "s_mov_b64 exec, 1",
      f"buffer_store_dword v{vOne}, v{vBig}, {sr(sDb,4)}, 0 offen offset:128 sc1", "s_mov_b64 exec, -1", "K1_F2:")
    poll_issue("PA", 0, 0)
    poll("PA", 0, 0)
    a("s_barrier")
    a.stamp(3)
    vR2, vR4, vDl, vS2 = 8, 16, 32, 48
    vNd, vDeg, vP, vBin, vPos, vMa = 64, 65, 66, 67, 70, 71
    for i in range(4):
        a(f"s_mov_b32 s{st0}, {4096*i}")
        a.vmem(f"buffer_load_dwordx2 {vr(vR2+2*i,2)}, v{vO8}, {sr(sR2,4)}, s{st0} offen sc1", f"h{i}")
    a(f"v_mov_b32 v{vT2}, 0")
    for i in range(4):
        a.wait(vm=f"h{i}")
        if i == 0:
            a.stamp(12)
            poll_issue("PB", 128, 7)
        for n in range(4 * i, 4 * i + 4):
            if n & 1:
                a(f"v_ashrrev_i32 v{vDl+n}, 16, v{vR2+n//2}")
            else:
                a(f"v_bfe_i32 v{vDl+n}, v{vR2+n//2}, 0, 16")
        a(f"v_min_i32 v{vT2}, v{vDl+4*i}, v{vT2}")
        if i == 3 and OPT["skip3"]:
            a(f"s_cmp_ge_u32 s{sw}, 4", "s_cbranch_scc1 K1_SK1")
        for n in range(4 * i, 4 * i + 4):
            a(f"v_cmpx_lt_i32 vcc, 0, v{vDl+n}")
            a.lds(f"ds_add_rtn_u32 v{vS2+n}, v{vDl+n}, v{vOne} offset:{K1_C2}")
            a("s_mov_b64 exec, -1")
    a("K1_SK1:")
    a(f"v_mov_b32 v{vT0}, {K1_BL + B_FLAG}", f"v_cmpx_gt_i32 vcc, 0, v{vT2}")
    a.lds(f"ds_write_b32 v{vT0}, v{vOne}")
    a("s_mov_b64 exec, -1")
    a.wait(lg="all")
    poll("PB", 128, 7)
    a("s_barrier")
    a.stamp(4)
    for i in range(4):
        a(f"s_mov_b32 s{st0}, {8192*i}")
        a.vmem(f"buffer_load_dwordx4 {vr(vR4+4*i,4)}, v{vO16}, {sr(sR4,4)}, s{st0} offen sc1", f"g{i}")
    a(f"s_cmp_ge_u32 s{sw}, 5", "s_cbranch_scc1 K1_D1")
    vC8 = 72
    a(f"v_lshlrev_b32 v{vT1}, {LB + 2}, v0")
    if NBK == 1:
        a(f"ds_read_b32 v{vDeg}, v{vT1} offset:{K1_C2 + 16}", "s_waitcnt lgkmcnt(0)")
    else:
        for i in range(NBK // 4):
            a(f"ds_read_b128 {vr(vC8+4*i,4)}, v{vT1} offset:{K1_C2 + 16 + 16*i}")
        a("s_waitcnt lgkmcnt(0)")
        for i in range(1, NU - 1):
            a(f"v_add_u32 v{vC8+i}, v{vC8+i}, v{vC8+i-1}")
        a(f"v_add_u32 v{vDeg}, v{vC8+NU-1}, v{vC8+NU-2}")
    a(f"v_cmp_lt_u32 {sr(sK,2)}, {MAXDEG}, v{vDeg}", f"v_min_u32 v{vDeg}, {MAXDEG}, v{vDeg}",
      f"v_sub_u32 v{vBin}, 63, v{vDeg}", f"v_lshlrev_b32 v{vBin}, 2, v{vBin}",
      f"ds_add_rtn_u32 v{vP}, v{vBin}, v{vOne} offset:{K1_H2}",
      f"s_mov_b64 exec, {sr(sK,2)}", f"ds_write_b32 v{vT0}, v{vOne}", "s_mov_b64 exec, -1", "s_waitcnt lgkmcnt(0)")
    a("K1_D1:", "s_barrier")

    def scan(reg):
        a("s_nop 1")
        for ctrl in ("row_shr:1", "row_shr:2", "row_shr:4", "row_shr:8"):
            a(f"v_add_u32_dpp v{reg}, v{reg}, v{reg} {ctrl} row_mask:0xf bank_mask:0xf bound_ctrl:1", "s_nop 1")
        a(f"v_add_u32_dpp v{reg}, v{reg}, v{reg} row_bcast:15 row_mask:0xa bank_mask:0xf", "s_nop 1")
        a(f"v_add_u32_dpp v{reg}, v{reg}, v{reg} row_bcast:31 row_mask:0xc bank_mask:0xf", "s_nop 1")
    vA0, vA1 = 68, 69
    a(f"s_cmp_ge_u32 s{sw}, 5", "s_cbranch_scc1 K1_D2")
    a(f"v_lshlrev_b32 v{vA0}, 2, v{vLane}", f"ds_read_b32 v{vA1}, v{vA0} offset:{K1_H2}", "s_waitcnt lgkmcnt(0)",
      f"v_mov_b32 v{vA0}, v{vA1}")
    scan(vA0)
    a(f"v_sub_u32 v{vA0}, v{vA0}, v{vA1}", f"ds_bpermute_b32 v{vPos}, v{vBin}, v{vA0}",
      f"v_lshlrev_b32 v{vNd}, 16, v0", "s_waitcnt lgkmcnt(0)",
      f"v_add_u32 v{vPos}, v{vPos}, v{vP}", f"v_lshlrev_b32 v{vMa}, 3, v{vPos}", f"v_add_u32 v{vMa}, {K1_BL + B_META}, v{vMa}",
      f"ds_write_b64 v{vMa}, {vr(vNd,2)}", "s_waitcnt lgkmcnt(0)")
    a("K1_D2:", "s_barrier")
    a(f"s_cmp_ge_u32 s{sw}, 5", "s_cbranch_scc1 K1_D3")
    a(f"v_lshlrev_b32 v{vA0}, 6, v{vLane}", f"v_add_u32 v{vA0}, {K1_BL + B_META}, v{vA0}", f"ds_read_b32 v{vA1}, v{vA0} offset:4",
      f"v_cmp_gt_u32 vcc, {NGRP}, v{vLane}", "s_waitcnt lgkmcnt(0)", "s_nop 0",
      f"v_cndmask_b32 v{vA1}, 0, v{vA1}, vcc", f"v_mov_b32 v{vA0}, v{vA1}")
    scan(vA0)
    a(f"v_readlane_b32 s{st0}, v{vA0}, 63", f"v_sub_u32 v{vA0}, v{vA0}, v{vA1}", f"v_lshlrev_b32 v{vA0}, 5, v{vA0}",
      f"v_lshrrev_b32 v{vA1}, 3, v{vPos}", f"v_lshlrev_b32 v{vA1}, 2, v{vA1}", f"ds_bpermute_b32 v{vA1}, v{vA1}, v{vA0}",
      f"v_and_b32 v{vPos}, 7, v{vPos}",
      f"s_cmp_le_u32 s{st0}, {NSLOT - 8}", "s_cbranch_scc1 K1_FITS", f"ds_write_b32 v{vT0}, v{vOne}", "K1_FITS:",
      "s_waitcnt lgkmcnt(0)", f"v_lshl_add_u32 v{vA1}, v{vPos}, 2, v{vA1}", f"v_add_u32 v{vA0}, {K1_BL}, v{vA1}",
      f"ds_write_b16 v{vMa}, v{vA1}")
    if NBK == 1:
        a(f"ds_write_b32 v{vT1}, v{vA0} offset:{K1_NB + 16}")
    else:
        for i in range(NU - 1, 0, -1):
            a(f"v_lshl_add_u32 v{vC8+i}, v{vC8+i-1}, 5, v{vA0}")
        a(f"v_mov_b32 v{vC8}, v{vA0}")
        for i in range(NBK // 4):
            a(f"ds_write_b128 v{vT1}, {vr(vC8+4*i,4)} offset:{K1_NB + 16 + 16*i}")
    a("s_waitcnt lgkmcnt(0)")
    a("K1_D3:", "s_barrier")
    a.stamp(5)
    a.lg = []
    a(f"ds_read_b32 v{vT2}, v{vT0}")
    for n in range(8):
        a.lds(f"ds_read_b32 v{vR2+n}, v{vDl+n} offset:{K1_NB}", f"nb{n}")
    a("s_waitcnt lgkmcnt(8)", f"v_readfirstlane_b32 s{st0}, v{vT2}", f"s_cmp_lg_u32 s{st0}, 0", "s_cbranch_scc1 K1_NOSC")
    for n in range(16):
        if n == 12 and OPT["skip3"]:
            a(f"s_cmp_ge_u32 s{sw}, 4", "s_cbranch_scc1 K1_NOSC")
        a.wait(lg=f"nb{n}", vm=f"g{n//4}")
        a(f"v_lshl_add_u32 v{vS2+n}, v{vS2+n}, 5, v{vR2 + (n & 7)}")
        if n < 8:
            a.lds(f"ds_read_b32 v{vR2+n}, v{vDl+n+8} offset:{K1_NB}", f"nb{n+8}")
        a.lds(f"ds_write_b32 v{vS2+n}, v{vR4+n}")
    a("s_branch K1_SCD", "K1_NOSC:", "s_waitcnt vmcnt(0)", "K1_SCD:", "s_waitcnt lgkmcnt(0)")
    a.vm, a.lg = [], []
    a("s_barrier")
    a.stamp(6)
    a(f"v_add_u32 v{vT0}, {K1_BL}, v{vO16}")
    for i in range(4):
        a.lds(f"ds_read_b128 {vr(vR4+4*i,4)}, v{vT0} offset:{8192*i}", f"o{i}")
    for i in range(4):
        a.wait(lg=f"o{i}")
        a(f"s_mov_b32 s{st0}, {8192*i}")
        a.vmem(f"buffer_store_dwordx4 {vr(vR4+4*i,4)}, v{vO16}, {sr(sBl,4)}, s{st0} offen{' sc1' if OPT['blobsc'] else ''}")
    a.stamp_dump(sX, 20, sw, 8)
    a("K1_END:", "s_endpgm")
    return a.lines, descriptor("k1_kernel", nv, 102 if STAMPS else 72)


K2_BB = 28 * 1024
K2_AB = K2_BB + 98304
K2_LDS = K2_BB + 131072


def k2():
    a = Asm()
    header(a, "k2_kernel")
    sBl, sP, sQ, sS, sW1, sF, sPf, sO = 24, 28, 32, 36, 40, 44, 48, 76
    sw, sk, srng, scnt, st0, st1, sg, sdmax, sdmin, sSo, sK, sBig, sOne = 52, 53, 54, 55, 56, 57, 58, 59, 60, 61, 62, 64, 66
    sM = 68
    sFl, spend, seg, sEx = 80, 84, 85, 86
    vLane, vT0, vT1, vT2, vT3 = 1, 2, 3, 4, 5
    vI4, vAh, vQi = 6, 8, 10
    vE, vEs = 12, 14
    vIdx = 16
    vSh, vEll, vEe, vDeg, vSt, vMetL, vHoff = 24, 25, 26, 27, 28, 29, 30
    vQ = 32
    vNum, vDen, vT = 48, 56, 64
    vP = 72
    vZ = 88
    DP = OPT["depth"]
    if DP == 2:
        vNxt, vGo, vCtr, vInc, vL16 = 120, 121, 126, 123, 124
        pbuf = [vP, vP + 8]
        nv = 127
    else:
        vNxt, vGo, vCtr, vInc, vL16 = 23, 0, 20, 21, 22
        pbuf = [vP, vP + 8, 120]
        nv = 128
    NI = 4 if DP == 2 else 2

    a("s_cmp_ge_u32 s2, 256", "s_cbranch_scc1 K2_END")
    a.stamp_setup(31, 1)
    a("s_load_dwordx16 s[4:19], s[0:1], 0", "s_load_dwordx2 s[20:21], s[0:1], 80", "s_load_dwordx2 s[22:23], s[0:1], 64")
    a(f"v_lshrrev_b32 v{vT0}, 6, v0", f"v_and_b32 v{vLane}, 63, v0", f"v_readfirstlane_b32 s{sw}, v{vT0}")
    a(f"s_and_b32 s{sk}, s2, 7", f"s_lshr_b32 s{srng}, s2, 3")
    a(f"s_mul_i32 s{st0}, s{srng}, {RNG}", f"s_sub_u32 s{scnt}, {N}, s{st0}", f"s_min_u32 s{scnt}, s{scnt}, {RNG}")
    a(f"s_mul_i32 s{st1}, s{srng}, {BLOB}", f"s_add_u32 s{st1}, s{st1}, {BLOB_OFF}")
    a(f"v_lshlrev_b32 v{vL16}, 4, v{vLane}")
    a(f"v_and_b32 v{vT1}, 3, v{vLane}", f"v_lshlrev_b32 v{vSh}, 4, v{vT1}", f"v_lshrrev_b32 v{vT2}, 5, v{vLane}",
      f"v_lshl_add_u32 v{vIdx+1}, v{vT2}, 6, v{vSh}", *[f"v_mov_b32 v{vIdx+2*i+1}, v{vIdx+1}" for i in range(1, NI)],
      f"v_mov_b32 v{vQi+1}, v{vIdx+1}", f"v_lshl_add_u32 v{vHoff}, v{vT2}, 5, 2",
      f"v_and_b32 v{vMetL}, 28, v{vLane}", f"v_lshlrev_b32 v{vMetL}, 1, v{vMetL}",
      f"v_and_b32 v{vT3}, 16, v{vLane}", f"v_lshlrev_b32 v{vT3}, 1, v{vT3}", f"v_xor_b32 v{vSt}, v{vT3}, v{vL16}",
      f"v_mov_b32 v{vE}, 0x3f80", f"v_mov_b32 v{vE+1}, 0", f"v_lshlrev_b64 {vr(vI4,2)}, v{vSh}, {vr(vE,2)}",
      f"v_mov_b32 v{vCtr}, {B_CTR}", f"v_mov_b32 v{vInc}, 64", f"v_lshlrev_b32 v{vT1}, 3, v{vLane}")
    a(f"s_mov_b32 s{sK}, {NLOG2E}", f"s_mov_b32 s{sBig}, {fbits(2.0**120)}", f"s_mov_b32 s{sOne}, 1.0", f"s_mov_b32 s{sOne+1}, 1.0")
    if OPT["estart"]:
        a(f"s_add_u32 s{sg}, s{sw}, 24", f"s_sub_u32 s{sdmax}, s{sw}, 3", f"s_cmp_lt_u32 s{sw}, 3", f"s_cselect_b32 s{sg}, s{sg}, s{sdmax}",
          f"s_mul_i32 s{sdmax}, s{sw}, 3", f"s_sub_u32 s{sdmax}, s{sdmax}, 24", f"s_cmp_lt_u32 s{sw}, 10", f"s_cselect_b32 s{sg}, s{sg}, s{sdmax}",
          f"s_lshl_b32 s{sg}, s{sg}, 10", f"s_mov_b32 m0, s{sg}")
        a("s_waitcnt lgkmcnt(0)")
        a.srd(sBl, 20, f"s{st1}", BLOB)
        a.vmem(f"buffer_load_dwordx4 v{vL16}, {sr(sBl,4)}, s{sg} offen lds", "b")
        a(f"s_cmp_lt_u32 s{sw}, 10", "s_cbranch_scc1 K2_B1")
        a(f"buffer_load_dwordx4 v{vL16}, {sr(sBl,4)}, s{sg} offen offset:1024 lds",
          f"buffer_load_dwordx4 v{vL16}, {sr(sBl,4)}, s{sg} offen offset:2048 lds", "K2_B1:")
    else:
        a(f"s_lshl_b32 s{sg}, s{sw}, 10", f"s_add_u32 s{sdmax}, s{sg}, 16384", f"s_mov_b32 m0, s{sg}")
        a("s_waitcnt lgkmcnt(0)")
        a.srd(sBl, 20, f"s{st1}", BLOB)
        a.vmem(f"buffer_load_dwordx4 v{vL16}, {sr(sBl,4)}, s{sg} offen lds", "b")
        a(f"s_cmp_ge_u32 s{sw}, {BLOB // 1024 - 16}", "s_cbranch_scc1 K2_B1", f"s_mov_b32 m0, s{sdmax}", "s_nop 0")
        a(f"buffer_load_dwordx4 v{vL16}, {sr(sBl,4)}, s{sdmax} offen lds", "K2_B1:")
    a.srd(sW1, 20, CF_OFF, 4096)
    a(f"s_lshl_b32 s{st1}, s{sk}, 9")
    a.vmem(f"buffer_load_dwordx2 {vr(vAh,2)}, v{vT1}, {sr(sW1,4)}, s{st1} offen", "c")
    a.stamp()
    a(f"s_mul_i32 s{st1}, s{sk}, {SS}", f"s_lshl_b32 s{sg}, s{st0}, 7", f"s_add_u32 s{sg}, s{sg}, s{st1}")
    a.srd(sP, 20, f"s{st1}", N, stride=128)
    a(f"s_add_u32 s{sg}, s{sg}, {Q_OFF}")
    a.srd(sQ, 20, f"s{sg}", f"s{scnt}", stride=128)
    a(f"s_mul_i32 s{sg}, s{srng}, {SRB}", f"s_add_u32 s{sg}, s{sg}, {S_OFF}")
    a.srd(sS, 20, f"s{sg}", SRB)
    a.srd(sF, 20, W2F_OFF, 262144)
    a(f"s_lshl_b32 s{sg}, s{st0}, 9", f"s_lshl_b32 s{st1}, s{scnt}, 9")
    a.srd(sO, 22, f"s{sg}", f"s{st1}")
    a(f"s_lshl_b32 s{sg}, s{srng}, 12", f"s_add_u32 s{sg}, s{sg}, {FL_OFF}")
    a.srd(sFl, 20, f"s{sg}", 3072)
    a(f"s_mov_b32 s{sSo}, {SRB}", f"s_mov_b32 s{spend}, 0")
    if OPT["estart"]:
        a(f"s_cmp_ge_u32 s{sw}, 10", "s_cbranch_scc1 K2_B2", "s_waitcnt vmcnt(0)", "s_barrier", "s_branch K2_B3",
          "K2_B2:", "s_barrier", "s_waitcnt vmcnt(0)", "s_mov_b64 exec, 1", f"ds_add_u32 v{vCtr}, v{vInc} offset:{B_CNTA + 40 - B_CTR}",
          "s_mov_b64 exec, -1", "K2_B3:")
    else:
        a.wait(vm="c")
        a("s_barrier")
    a.stamp(5)
    a.vm = []
    if STAMPS:
        a("s_mov_b32 s99, 8")
    a(f"v_mov_b32 v{vT0}, {B_FLAG}", f"ds_read_b32 v{vT1}, v{vT0}", "s_waitcnt lgkmcnt(0)",
      f"v_readfirstlane_b32 s{st0}, v{vT1}", f"s_lshl_b32 s{sg}, s{sw}, 6", f"s_cmp_lg_u32 s{st0}, 0", "s_cbranch_scc1 K2_SLOW")
    if OPT["snake"]:
        a(f"s_bitcmp1_b32 s{sw}, 2", f"s_cselect_b32 s{st0}, 192, 0", f"s_xor_b32 s{sg}, s{sg}, s{st0}")

    def w2_preload(unit):
        a(f"s_lshr_b32 s{st0}, s{unit}, 1", f"s_lshl_b32 s{st0}, s{st0}, 15", f"s_and_b32 s{st1}, s{unit}, 1",
          f"s_mul_i32 s{st1}, s{st1}, 6144", f"s_add_u32 s{st0}, s{st0}, s{st1}", f"s_mul_i32 s{st1}, s{unit}, 6144")
        for i in range(2):
            a(f"s_add_u32 m0, s{st1}, {K2_BB + 4096*i}")
            a(f"s_add_u32 s{st0}, s{st0}, 4096" if i else "s_nop 0")
            for q in range(2 if i else 4):
                a(f"buffer_load_dwordx4 v{vL16}, {sr(sF,4)}, s{st0} offen offset:{1024*q} lds")

    def Z(i):
        return vZ + 16 * ((i >> 1) & 1) + 8 * (i & 1)

    def src_read(i):
        a(f"ds_read_u16 v{vIdx + 2*(i % NI)}, v{vEll} offset:{32*i}")

    def e_read(p):
        a(f"ds_read_u16 v{vE}, v{vEe} offset:{64*p}")

    def gather(i):
        a(f"buffer_load_dwordx4 {vr(pbuf[(i >> 1) % DP] + 4*(i & 1), 4)}, {vr(vIdx + 2*(i % NI), 2)}, {sr(sP,4)}, 0 idxen offen")

    def m4(i, hf):
        z = Z(i) + 4 * hf
        return f"v_mfma_f32_4x4x4_16b_bf16 {vr(z,4)}, {vr(vI4,2)}, {vr(pbuf[(i >> 1) % DP] + 4*(i & 1) + 2*hf, 2)}, {vr(z,4)}"

    shift = f"v_lshlrev_b64 {vr(vEs,2)}, v{vSh}, {vr(vE,2)}"

    def mhi(p):
        return f"v_mfma_f32_32x32x8_bf16 {vr(Z(2*p),16)}, {vr(vAh,2)}, {vr(vEs,2)}, {vr(vQ,16)}"

    def count(tag):
        a(f"s_mov_b64 {sr(sEx,2)}, exec", "s_mov_b64 exec, 1", f"s_lshl_b32 s{st0}, s{spend}, 2", f"v_add_u32 v{vT0}, s{st0}, v{vCtr}",
          f"ds_add_rtn_u32 v{vT0}, v{vT0}, v{vInc} offset:{B_CNTA - 4 - B_CTR}", f"s_lshl_b32 s{st0}, s{spend}, 3",
          f"s_add_u32 s{st0}, s{st0}, s{sk}", f"s_sub_u32 s{st0}, s{st0}, 8", f"s_lshl_b32 s{st0}, s{st0}, 7", f"v_mov_b32 v{vT1}, s{st0}",
          f"s_mov_b32 s{spend}, 0",
          "s_waitcnt lgkmcnt(0)", f"v_readfirstlane_b32 s{st0}, v{vT0}", f"s_cmp_lg_u32 s{st0}, {15*64}", f"s_cbranch_scc1 K2_CE{tag}",
          f"buffer_store_dword v{vInc}, v{vT1}, {sr(sFl,4)}, 0 offen sc1", f"K2_CE{tag}:", f"s_mov_b64 exec, {sr(sEx,2)}")

    def image_wait(tag):
        a(f"K2_IW{tag}:", f"ds_read_b32 v{vT0}, v{vCtr} offset:{B_CNTA + 40 - B_CTR}", "s_waitcnt lgkmcnt(0)",
          f"v_readfirstlane_b32 s{st0}, v{vT0}", f"s_cmp_lt_u32 s{st0}, {6*64}", f"s_cbranch_scc1 K2_IW{tag}")

    def finish():
        for r in range(8):
            a(f"v_rcp_f32 v{vT+r}, v{vDen+r}")
        for r in range(0, 8, 2):
            a(f"v_pk_mul_f32 {vr(vNum+r,2)}, {vr(vNum+r,2)}, {vr(vT+r,2)}")
        for r in range(4):
            a(f"v_cvt_pk_bf16_f32 v{vT+r}, v{vNum+2*r}, v{vNum+2*r+1}")
        a(f"buffer_store_dwordx4 {vr(vT,4)}, v{vSt}, {sr(sS,4)}, s{sSo} offen sc1")

    if OPT["tw2"]:
        a(f"s_cmp_lg_u32 s{sw}, 15", "s_cbranch_scc1 K2_NOPF", f"v_lshlrev_b32 v{vT2}, 7, v{vLane}", f"s_lshl_b32 s{st0}, s{srng}, 13",
          f"buffer_load_dword v{vT3}, v{vT2}, {sr(sF,4)}, s{st0} offen", "K2_NOPF:")
    if OPT["stag"]:
        a(f"s_lshl_b32 s{st0}, s{sw}, 2", f"s_add_u32 s{st0}, s{st0}, {B_GO}", f"v_mov_b32 v{vGo}, s{st0}",
          f"s_cmp_lt_u32 s{sw}, 4", "s_cbranch_scc1 K2_GO", f"v_subrev_u32 v{vT0}, 16, v{vGo}")
        if OPT["stag"] >= 3:
            a(f"s_cmp_lt_u32 s{sw}, {4*(OPT['stag'] - 1)}", "s_cbranch_scc1 K2_IWA")
        a("K2_WAITGO:", f"ds_read_b32 v{vT1}, v{vT0}", "s_waitcnt lgkmcnt(0)", f"v_readfirstlane_b32 s{st0}, v{vT1}",
          f"s_cmp_eq_u32 s{st0}, 0", "s_cbranch_scc1 K2_WAITGO")
        if OPT["estart"]:
            image_wait("A")
        a("K2_GO:")
    if OPT["prio"]:
        a("s_setprio 3")
    a("K2_GROUP:")
    a(f"v_add_u32 v{vT0}, s{sg}, v{vMetL}", f"s_mov_b32 s{sP+2}, {N}",
      f"ds_read_u16 v{vEll}, v{vT0} offset:{B_META}", f"ds_read_u16 v{vQi}, v{vT0} offset:{B_META + 2}",
      f"ds_read_b32 v{vDeg}, v{vT0} offset:{B_META + 4}")
    a(f"s_lshr_b32 s{sdmax}, s{sg}, 6", f"s_sub_u32 s{sdmax}, s{sdmax}, 16", f"s_cmp_lt_u32 s{sdmax}, 16", "s_cbranch_scc1 K2_PRE", "K2_PRED:")
    a("s_waitcnt lgkmcnt(2)")
    for i in range(NI):
        src_read(i)
    a(f"v_add_u32 v{vEe}, v{vEll}, v{vHoff}", f"s_waitcnt lgkmcnt({NI})")
    a(f"buffer_load_dwordx4 {vr(vZ+16,4)}, {vr(vQi,2)}, {sr(sQ,4)}, 0 idxen offen")
    e_read(0)
    a(f"v_readlane_b32 s{sdmax}, v{vDeg}, 0", f"v_readlane_b32 s{sdmin}, v{vDeg}, 28")
    for i in range(NI):
        a(f"s_waitcnt lgkmcnt({NI-i})")
        gather(i)
    if DP == 2:
        src_read(4)
        src_read(5)
        a("s_waitcnt lgkmcnt(2)")
        a(shift)
        e_read(1)
    else:
        for pr in (1, 2):
            src_read(2 * pr)
            src_read(2 * pr + 1)
            if pr == 1:
                a("s_waitcnt lgkmcnt(2)", shift)
                e_read(1)
                a("s_waitcnt lgkmcnt(1)")
            else:
                a("s_waitcnt lgkmcnt(0)")
            gather(2 * pr)
            gather(2 * pr + 1)
        src_read(6)
        src_read(7)
    if not OPT["late"]:
        a("s_mov_b64 exec, 1", f"ds_add_rtn_u32 v{vNxt}, v{vCtr}, v{vInc}", "s_mov_b64 exec, -1")
    finish()
    a(f"s_waitcnt vmcnt({2*DP + 1})")
    if OPT["stag"] == 2:
        a(f"ds_write_b32 v{vGo}, v{vGo}")
    for q in range(4):
        a(f"v_mfma_f32_4x4x4_16b_bf16 {vr(vQ+4*q,4)}, {vr(vI4,2)}, {vr(vZ+16+2*(q&1),2)}, 0")
    a("s_nop 3")
    a(mhi(0))
    a(f"s_lshl_b32 s{sSo}, s{sg}, 7", f"s_lshl_b32 s{st0}, s{sk}, 10", f"s_add_u32 s{sSo}, s{sSo}, s{st0}", "s_nop 6", f"s_waitcnt vmcnt({2*DP - 1})")
    if OPT["stag"] in (1, 3, 4, 5):
        a(f"ds_write_b32 v{vGo}, v{vGo}")
    a(m4(0, 0), m4(0, 1), m4(1, 0), m4(1, 1))
    a("s_waitcnt lgkmcnt(0)")
    gather(2 * DP)
    gather(2 * DP + 1)
    a(shift)
    src_read(2 * DP + 2)
    src_read(2 * DP + 3)
    e_read(2)
    if OPT["prio"]:
        if OPT["endg"]:
            a(f"s_mov_b32 s{seg}, 0", f"s_cmp_lt_u32 s{sg}, {OPT['endg']*64}", "s_cbranch_scc1 K2_PRX", "s_setprio 2", f"s_mov_b32 s{seg}, 1",
              f"s_sub_u32 s{st0}, s{sdmax}, {OPT['eg1']}", f"s_cselect_b32 s{st0}, 0, s{st0}", f"s_min_u32 s{sdmin}, s{sdmin}, s{st0}", "K2_PRX:")
        elif OPT["prio"] == 1:
            a(f"s_cmp_lt_u32 s{sg}, {16*64}", "s_cbranch_scc1 K2_PRX", "s_setprio 2", f"s_cmp_lt_u32 s{sg}, {24*64}", "s_cbranch_scc1 K2_PRX",
              "s_setprio 1", f"s_cmp_lt_u32 s{sg}, {32*64}", "s_cbranch_scc1 K2_PRX", "s_setprio 0", "K2_PRX:")
        else:
            a(f"s_cmp_lt_u32 s{sg}, {16*64}", "s_cbranch_scc1 K2_PRX", "s_setprio 2", f"s_cmp_lt_u32 s{sg}, {OPT['prio']*64}",
              "s_cbranch_scc1 K2_PRX", "s_setprio 1", "K2_PRX:")
    a("s_nop 1" if OPT["prio"] else "s_nop 3")
    if STAMPS and not OPT["light"]:
        a("s_mov_b32 m0, s99", "s_add_u32 s99, s99, 1")
        a.stamp("m0")

    NP = MAXDEG // 2
    for i in range(MAXDEG):
        z = Z(i)
        p = i >> 1
        a(f"s_cmp_le_u32 s{sdmin}, {i}", f"s_cbranch_scc1 K2_OOL{i}", f"K2_S{i}:")
        ex = [f"v_exp_f32 v{vT+r}, v{z+r}" for r in range(8)]
        num_src = Z(0) if i == 1 else vNum
        if i == 0:
            upd = ["s_nop 0"] + [f"v_pk_add_f32 {vr(vDen+r,2)}, {vr(vT+r,2)}, {sr(sOne,2)}" for r in range(0, 8, 2)]
        else:
            upd = [f"v_pk_fma_f32 {vr(z+r,2)}, {vr(z+r,2)}, {vr(vDen+r,2)}, {vr(num_src+r,2)}" for r in range(0, 8, 2)]
            upd += [f"v_pk_fma_f32 {vr(vNum+r,2)}, {vr(num_src+r,2)}, {vr(vT+r,2)}, {vr(z+r,2)}" for r in range(0, 8, 2)]
            upd += [f"v_pk_fma_f32 {vr(vDen+r,2)}, {vr(vDen+r,2)}, {vr(vT+r,2)}, {vr(vDen+r,2)}" for r in range(0, 8, 2)]
        if (i & 1) == 0:
            if p + 1 < NP:
                a(*([] if OPT["diag"] & 1 else [mhi(p + 1)]), *ex)
            else:
                a(*ex)
            a(*upd)
        else:
            if p + 1 < NP:
                younger = 2 * (min(p + DP, NP - 1) - (p + 1)) + (1 if p + 1 < DP else 0)
                a(f"s_waitcnt vmcnt({younger})")
                if p == DP - 1:
                    a(f"s_cmp_lg_u32 s{spend}, 0", "s_cbranch_scc1 K2_CNT", "K2_CNTD:")
                if OPT["diag"] & 2:
                    a(*ex[0:4])
                else:
                    a(m4(2*p+2, 0), ex[0], m4(2*p+2, 1), ex[1], m4(2*p+3, 0), ex[2], m4(2*p+3, 1), ex[3])
            else:
                a(*ex[0:4])
            if p + 2 < NP:
                a("s_waitcnt lgkmcnt(0)")
            g = p + 1 + DP
            if g < NP:
                if OPT["clip"] == 1:
                    a(f"s_cmp_gt_u32 s{sdmax}, {2*g}", f"s_cselect_b32 s{sP+2}, {N}, 0")
                if OPT["clip"] == 2:
                    a(f"s_cmp_gt_u32 s{sdmax}, {2*g}", f"s_mov_b64 {sr(sEx,2)}, exec", "s_cselect_b64 exec, exec, 0")
                if OPT["diag"] & 4:
                    a(f"s_mov_b32 s{sP+2}, 0")
                gather(2 * g)
                gather(2 * g + 1)
                if OPT["clip"] == 2:
                    a(f"s_mov_b64 exec, {sr(sEx,2)}")
            a(*ex[4:8])
            if p + 2 < NP:
                a(shift)
            if g + 1 < NP:
                src_read(2 * g + 2)
                src_read(2 * g + 3)
            if p + 3 < NP:
                e_read(p + 3)
            a(*upd)
    a("K2_FIN:")
    if OPT["late"]:
        a("s_mov_b64 exec, 1", f"ds_add_rtn_u32 v{vNxt}, v{vCtr}, v{vInc}")
    a("s_mov_b64 exec, -1")
    if OPT["prio"]:
        a("s_setprio 3")
    a(f"s_cmp_lg_u32 s{spend}, 0", "s_cbranch_scc1 K2_CNT2", "K2_CNT2D:", f"s_lshr_b32 s{spend}, s{sg}, 10",
      f"s_add_u32 s{spend}, s{spend}, 1", f"s_cmp_lt_u32 s{spend}, 3", f"s_cselect_b32 s{spend}, s{spend}, 0")
    a(f"v_pk_mul_f32 {vr(vT0,2)}, {vr(vDen,2)}, {vr(vDen+2,2)}", f"v_pk_mul_f32 {vr(vT2,2)}, {vr(vNum,2)}, {vr(vNum+2,2)}",
      f"v_pk_fma_f32 {vr(vT0,2)}, {vr(vDen+4,2)}, {vr(vDen+6,2)}, {vr(vT0,2)}",
      f"v_pk_fma_f32 {vr(vT2,2)}, {vr(vNum+4,2)}, {vr(vNum+6,2)}, {vr(vT2,2)}",
      f"v_pk_fma_f32 {vr(vT0,2)}, {vr(vT2,2)}, 0, {vr(vT0,2)} op_sel_hi:[1,0,1]",
      f"v_add_f32 v{vT0}, v{vT0}, v{vT1}", f"v_cmp_ngt_f32 vcc, s{sBig}, v{vT0}",
      "s_waitcnt lgkmcnt(0)", f"v_readfirstlane_b32 s{sg}, v{vNxt}")
    if not OPT["diag"]:
        a("s_cbranch_vccnz K2_SAFE")
    a("K2_NEXT:")
    if OPT["estart"]:
        a(f"s_cmp_lt_u32 s{sw}, 4", "s_cbranch_scc1 K2_IWB", "K2_IWBD:")
    if STAMPS and not OPT["light"]:
        a("s_mov_b32 m0, s99", "s_add_u32 s99, s99, 1")
        a.stamp("m0")
        a("s_mov_b32 m0, s99", "s_add_u32 s99, s99, 1", f"v_writelane_b32 v31, s{sdmax}, m0")
    a(f"s_add_u32 s{sg}, s{sg}, {16*64}", f"s_cmp_lt_u32 s{sg}, {NGRP*64}", "s_cbranch_scc1 K2_GROUP")

    vA, vA0, vA2, vB2, vAcc = 8, 24, 25, 28, 48
    if DP == 3:
        vCtr, vInc, vL16 = 126, 123, 124
    vB = [32, 36, 40, 44] + list(range(88, 120, 4)) + [72, 76, 80, 84]
    vMa, vCol, vRed, vWa = 120, 121, 122, 125
    scg, skh, sact, stk = sM, sM + 1, sM + 2, sM + 3
    sB2 = sPf

    def b_global(first, gentle):
        a(f"s_lshl_b32 s{st0}, s{scg}, 15", f"s_lshl_b32 s{st1}, s{skh}, 14", f"s_add_u32 s{st0}, s{st0}, s{st1}")
        for n in range(first, 16):
            if n % 4 == 0 and n:
                a(f"s_add_u32 s{st0}, s{st0}, {4096 if n > first else 1024*n}")
            if gentle and n > first and n % OPT["bb"] == 0:
                a("s_waitcnt vmcnt(0)")
            a(f"buffer_load_dwordx4 {vr(vB[n],4)}, v{vL16}, {sr(sF,4)}, s{st0} offen offset:{1024*(n % 4)}")

    def relocate():
        if DP == 3:
            a("s_waitcnt vmcnt(0)", "v_mov_b32 v126, v20", "v_mov_b32 v123, v21", "v_mov_b32 v124, v22")

    def roles():
        a(f"s_and_b32 s{scg}, s{sw}, 7", f"s_lshr_b32 s{skh}, s{sw}, 3", f"s_and_b32 s{st0}, s{sk}, 1",
          f"s_lshr_b32 s{sact}, s{scg}, 2", f"s_xor_b32 s{sact}, s{sact}, s{st0}")

    def b_loads(tag):
        a(f"s_cmp_eq_u32 s{skh}, 0", f"s_cbranch_scc1 K2_BL{tag}")
        b_global(0, tag == "B")
        a(f"s_branch K2_BX{tag}", f"K2_BL{tag}:")
        b_global(12, tag == "B")
        a(f"K2_BX{tag}:")

    def lds_spin(tag, word, least):
        a(f"K2_SP{tag}:", f"ds_read_b32 v{vT0}, v{vCtr} offset:{B_CNTA + word - B_CTR}", "s_waitcnt lgkmcnt(0)",
          f"v_readfirstlane_b32 s{st0}, v{vT0}", f"s_cmp_lt_u32 s{st0}, {least}", f"s_cbranch_scc1 K2_SP{tag}")

    def ticket(word):
        a("s_mov_b64 exec, 1", f"ds_add_rtn_u32 v{vT0}, v{vCtr}, v{vInc} offset:{B_CNTA + word - B_CTR}", "s_mov_b64 exec, -1",
          "s_waitcnt lgkmcnt(0)", f"v_readfirstlane_b32 s{stk}, v{vT0}")

    def fetch(t, dst):
        a(f"s_cmp_lg_u32 s{stk}, 0", f"s_cbranch_scc1 K2_SPF{t}")
        a("s_mov_b64 exec, 0xff", f"v_lshlrev_b32 v{vT2}, 7, v{vLane}", f"s_mov_b32 s{st1}, 0", f"K2_P{t}:",
          f"buffer_load_dword v{vT1}, v{vT2}, {sr(sFl,4)}, 0 offen offset:{1024*t} sc1", f"s_add_u32 s{st1}, s{st1}, 1", "s_waitcnt vmcnt(0)",
          f"v_cmp_eq_u32 vcc, 0, v{vT1}", f"s_cbranch_vccz K2_P{t}D", f"s_cmp_lt_u32 s{st1}, 0x400000", f"s_cbranch_scc1 K2_P{t}",
          f"K2_P{t}D:", "s_mov_b64 exec, -1", f"ds_write_b32 v{vCtr}, v{vInc} offset:{B_CNTA + 20 + 4*t - B_CTR}")
        lds_spin(f"F{t}", 20 + 4 * t, 1)
        a(f"s_lshr_b32 s{st0}, s{sk}, {1 if t == 2 else 0}", f"s_add_u32 s{st0}, s{st0}, {8*t}", f"s_lshl_b32 s{st0}, s{st0}, 14",
          f"s_lshl_b32 s{st1}, s{stk}, 6", f"s_add_u32 s{st0}, s{st0}, s{st1}")
        for q in range(4):
            a(f"buffer_load_dwordx4 {vr(vA+4*q,4)}, v{vL16}, {sr(sS,4)}, s{st0} offen offset:{1024*q} sc1")
        a(f"s_add_u32 s{st1}, s{st1}, {dst}", f"v_add_u32 v{vWa}, s{st1}, v{vL16}")
        for q in range(4):
            a(f"s_waitcnt vmcnt({3-q})", f"ds_write_b128 v{vWa}, {vr(vA+4*q,4)} offset:{1024*q}")
        if OPT["split"] and t < 2:
            a("s_waitcnt lgkmcnt(0)", "s_mov_b64 exec, 1", f"ds_add_u32 v{vCtr}, v{vInc} offset:{B_CNTA + 32 + 4*t - B_CTR}", "s_mov_b64 exec, -1")

    relocate()
    roles()
    ticket(12)
    a(f"s_cmp_lt_u32 s{stk}, {OPT['early']*64}", "s_cbranch_scc1 K2_TE", f"s_cmp_lg_u32 s{spend}, 0", "s_cbranch_scc1 K2_TL")
    b_loads("A")
    finish()
    a.stamp(20)
    a("s_branch K2_TC", "K2_TL:")
    finish()
    a.stamp(20)
    b_loads("C")
    a(f"s_cmp_eq_u32 s{skh}, 0", "s_cbranch_scc1 K2_TL0", "s_waitcnt vmcnt(16)", "s_branch K2_TL1", "K2_TL0:", "s_waitcnt vmcnt(4)", "K2_TL1:")
    count("L")
    a("s_branch K2_TC", "K2_TE:")
    finish()
    a.stamp(20)
    a("K2_TAIL:", "s_setprio 0" if not OPT["hprio"] else "s_nop 0", f"s_cmp_eq_u32 s{spend}, 0", "s_cbranch_scc1 K2_TAIL2", "s_waitcnt vmcnt(0)")
    count("C")
    a("K2_TAIL2:")
    b_loads("B")
    a("K2_TC:", "s_setprio 0" if not OPT["hprio"] else "s_nop 0")
    a.srd(sB2, 18, 0, 512)
    a(f"s_cmp_ge_u32 s{stk}, {4*64}", "s_cbranch_scc1 K2_NF0")
    fetch(0, K2_AB)
    a(f"s_mov_b32 s{stk}, {8*64}", "K2_NF0:")
    a(f"s_cmp_lt_u32 s{stk}, {8*64}", "s_cbranch_scc1 K2_SPW", "s_setprio 0", f"s_cmp_eq_u32 s{skh}, 0", "s_cbranch_scc0 K2_T1")
    lds_spin("W", 4, 16 * 64)
    a(f"s_cmp_eq_u32 s{skh}, 0", "s_cbranch_scc0 K2_T1")
    a(f"s_mul_i32 s{st0}, s{scg}, 12288", f"s_add_u32 s{st0}, s{st0}, {K2_BB}", f"v_add_u32 v{vT0}, s{st0}, v{vL16}")
    for n in range(12):
        a(f"ds_read_b128 {vr(vB[n],4)}, v{vT0} offset:{1024*n}")
    a("K2_T1:")
    if OPT["f2early"]:
        a("s_waitcnt vmcnt(0)", f"s_mov_b32 s{spend}, 3")
        count("D")
    a(f"s_cmp_ge_u32 s{stk}, {8*64}", "s_cbranch_scc1 K2_NF1", f"s_sub_u32 s{stk}, s{stk}, {4*64}")
    fetch(1, K2_AB + 16384)
    a("K2_NF1:")
    a(f"v_and_b32 v{vT0}, 15, v{vLane}", f"v_lshlrev_b32 v{vT0}, 2, v{vT0}", f"s_lshl_b32 s{st0}, s{scg}, 6",
      f"v_add_u32 v{vCol}, s{st0}, v{vT0}", f"buffer_load_dword v{vB2}, v{vCol}, {sr(sB2,4)}, 0 offen")
    a(f"v_and_b32 v{vT0}, 7, v{vLane}", f"v_lshlrev_b32 v{vA2}, 6, v{vT0}", f"v_bfe_u32 v{vT1}, v{vLane}, 3, 1",
      f"v_lshl_add_u32 v{vA2}, v{vT1}, 13, v{vA2}", f"v_lshrrev_b32 v{vT3}, 4, v{vLane}", f"v_lshrrev_b32 v{vT0}, 2, v{vT0}",
      f"v_lshlrev_b32 v{vT0}, 1, v{vT0}", f"v_xor_b32 v{vT0}, v{vT0}, v{vT3}", f"v_lshl_add_u32 v{vA2}, v{vT0}, 4, v{vA2}",
      f"s_lshl_b32 s{st0}, s{skh}, 12", f"s_add_u32 s{st0}, s{st0}, {K2_BB}", f"v_add_u32 v{vA2}, s{st0}, v{vA2}",
      f"v_add_u32 v{vA0}, {K2_AB - K2_BB}, v{vA2}")
    a(f"v_lshlrev_b32 v{vMa}, 5, v{vT3}", f"v_add_u32 v{vMa}, {B_META}, v{vMa}",
      f"s_mul_i32 s{st0}, s{scg}, 6144", f"s_add_u32 s{st0}, s{st0}, {K2_BB + 16384}", f"v_add_u32 v{vRed}, s{st0}, v{vL16}",
      f"s_mov_b32 s{sK}, {NLN2}")
    if OPT["split"]:
        lds_spin("E", 12, 16 * 64)
        lds_spin("R0", 32, 4 * 64)
    else:
        a("s_waitcnt lgkmcnt(0)", "s_barrier")
    a.stamp(21)
    if not OPT["f2early"]:
        a("s_waitcnt vmcnt(0)", f"s_mov_b32 s{spend}, 3")
        count("D")

    def compute(tiles):
        a.lg = []
        nt = len(tiles)
        depth = 4 // nt

        def f_read(s):
            for i, t in enumerate(tiles):
                base, off = (vA2, 0) if t == 2 else (vA0, 16384 * t)
                a.lds(f"ds_read_b128 {vr(vA + 4*((s % depth)*nt + i), 4)}, v{base} offset:{off + 1024*(s >> 1) + 512*(s & 1)}", f"f{s}")
        for s in range(depth - 1):
            f_read(s)
        for s in range(8):
            if s + depth - 1 < 8:
                f_read(s + depth - 1)
            a.wait(lg=f"f{s}")
            for i, t in enumerate(tiles):
                for b in range(2):
                    acc = vAcc + 8 * t + 4 * b
                    a(f"v_mfma_f32_16x16x32_bf16 {vr(acc,4)}, {vr(vA + 4*((s % depth)*nt + i), 4)}, {vr(vB[2*s + b], 4)}, {'0' if s == 0 else vr(acc, 4)}")

    def give(t):
        a("s_nop 7")
        for q in range(2):
            a(f"ds_write_b128 v{vRed}, {vr(vAcc+8*t+4*q,4)} offset:{2048*t + 1024*q}")

    def out_tile(t):
        acc = vAcc + 8 * t
        a(f"s_lshr_b32 s{st0}, s{sk}, {1 if t == 2 else 0}", f"s_add_u32 s{st0}, s{st0}, {8*t}", f"s_lshl_b32 s{st0}, s{st0}, 7",
          f"v_add_u32 v{vT0}, s{st0}, v{vMa}",
          f"ds_read_b128 {vr(vA,4)}, v{vT0}", f"ds_read_b128 {vr(vA+4,4)}, v{vT0} offset:16")
        for q in range(2):
            a(f"ds_read_b128 {vr(vA+8+4*q,4)}, v{vRed} offset:{2048*t + 1024*q}")
        a("s_waitcnt lgkmcnt(2)")
        for r in range(4):
            a(f"v_lshrrev_b32 v{vA+2*r}, 16, v{vA+2*r}", f"v_cvt_f32_u32 v{vA+2*r+1}, v{vA+2*r+1}",
              f"v_lshl_add_u32 v{vA+2*r}, v{vA+2*r}, 9, v{vCol}")
        a("s_waitcnt lgkmcnt(0)")
        for r in range(8):
            a(f"v_add_f32 v{acc+r}, v{acc+r}, v{vA+8+r}")
        for r in range(4):
            a(f"v_mul_f32 v{vT0}, v{vA+2*r+1}, v{vB2}", f"v_mul_f32 v{vT1}, v{vA+2*r+1}, v{vB2+1}",
              f"v_fma_f32 v{acc+r}, v{acc+r}, s{sK}, v{vT0}", f"v_fma_f32 v{acc+4+r}, v{acc+4+r}, s{sK}, v{vT1}",
              f"v_cvt_pk_bf16_f32 v{acc+r}, v{acc+r}, v{acc+4+r}",
              f"buffer_store_dword v{acc+r}, v{vA+2*r}, {sr(sO,4)}, 0 offen{' sc1' if OPT['sc3'] else ''}")

    if True:
        if OPT["split"]:
            compute((0,))
            lds_spin("R1", 36, 4 * 64)
            compute((1,))
            lds_spin("D", 8, 16 * 64)
        else:
            compute((0, 1))
        a(f"s_cmp_eq_u32 s{skh}, 0", "s_cbranch_scc1 K2_G0")
        give(0)
        a("s_branch K2_G1", "K2_G0:")
        give(1)
        a("K2_G1:", "s_waitcnt vmcnt(0)", f"v_and_b32 v{vB2+1}, 0xffff0000, v{vB2}", f"v_lshlrev_b32 v{vB2}, 16, v{vB2}")
        a.stamp(23)
        ticket(16)
        a(f"s_cmp_ge_u32 s{stk}, {4*64}", "s_cbranch_scc1 K2_NF2")
        fetch(2, K2_BB)
        a("K2_NF2:")
        a("s_waitcnt lgkmcnt(0)", "s_barrier")
        a.stamp(24)
        a(f"s_cmp_lg_u32 s{sact}, 0", "s_cbranch_scc1 K2_IDLE2")
        compute((2,))
        a(f"s_cmp_eq_u32 s{skh}, 0", "s_cbranch_scc0 K2_O1")
        out_tile(0)
        a("s_barrier")
        out_tile(2)
        a("s_branch K2_OX", "K2_O1:")
        give(2)
        a("s_waitcnt lgkmcnt(0)", "s_barrier")
        out_tile(1)
        a("s_branch K2_OX", "K2_IDLE2:", f"s_cmp_eq_u32 s{skh}, 0", "s_cbranch_scc1 K2_IDLE3")
        out_tile(1)
        a("s_barrier", "s_branch K2_OX", "K2_IDLE3:")
        out_tile(0)
        a("s_barrier")
    a("K2_OX:")
    a.stamp_dump(sBl, 20, sw, 16)
    a("s_endpgm")

    if DP == 3:
        vCtr, vInc, vL16 = 20, 21, 22
    if OPT["estart"]:
        image_wait("B")
        a("s_branch K2_IWBD")
    a("K2_CNT:")
    count("A")
    a("s_nop 3", "s_branch K2_CNTD")
    a("K2_CNT2:", "s_waitcnt vmcnt(0)")
    count("B")
    a("s_branch K2_CNT2D")

    a("K2_PRE:")
    w2_preload(sdmax)
    a("s_branch K2_PRED")

    for i in range(MAXDEG):
        a(f"K2_OOL{i}:")
        if i == 0:
            for r in range(8):
                a(f"v_mov_b32 v{vNum+r}, 0", f"v_mov_b32 v{vDen+r}, 1.0")
        if i == 1:
            for r in range(8):
                a(f"v_mov_b32 v{vNum+r}, v{Z(0)+r}")
        a(f"s_cmp_le_u32 s{sdmax}, {i}", "s_cbranch_scc1 K2_FIN")
        a(f"v_cmpx_lt_u32 vcc, {i}, v{vDeg}")
        if OPT["endg"]:
            a(f"s_cmp_eq_u32 s{seg}, 0", f"s_cbranch_scc1 K2_OX{i}", f"s_cmp_gt_u32 s{sdmax}, {i + OPT['eg1']}", f"s_cbranch_scc1 K2_OX{i}",
              "s_setprio 1", f"s_cmp_gt_u32 s{sdmax}, {i + OPT['eg2']}", f"s_cbranch_scc1 K2_OX{i}", "s_setprio 0", f"K2_OX{i}:", "s_nop 1")
        else:
            a("s_nop 3")
        a(f"s_branch K2_S{i}")

    a("K2_SAFE:")
    a("s_waitcnt vmcnt(0) lgkmcnt(0)", f"s_mov_b32 s{st0}, 0", f"s_mov_b32 s{sP+2}, {N}")
    for r in range(8):
        a(f"v_mov_b32 v{vNum+r}, 0")
    a("K2_SAFE_L:")
    a(f"s_cmp_ge_u32 s{st0}, s{sdmax}", "s_cbranch_scc1 K2_SAFE_E")
    a(f"v_cmpx_lt_u32 vcc, s{st0}, v{vDeg}")
    src_read(0)
    e_read(0)
    a("s_waitcnt lgkmcnt(0)")
    gather(0)
    a(shift, f"v_add_u32 v{vEll}, 32, v{vEll}", f"v_add_u32 v{vEe}, 32, v{vEe}", "s_nop 1")
    a(mhi(0), "s_nop 9", "s_waitcnt vmcnt(0)", m4(0, 0), m4(0, 1), "s_nop 4")
    for r in range(8):
        a(f"v_exp_f32 v{vT+r}, v{vZ+r}")
    for r in range(0, 8, 2):
        a(f"v_pk_add_f32 {vr(vT+r,2)}, {vr(vT+r,2)}, {sr(sOne,2)}")
    for r in range(8):
        a(f"v_rcp_f32 v{vT+r}, v{vT+r}")
    a("s_nop 0")
    for r in range(0, 8, 2):
        a(f"v_pk_fma_f32 {vr(vNum+r,2)}, {vr(vZ+r,2)}, {vr(vT+r,2)}, {vr(vNum+r,2)}")
    a(f"s_add_u32 s{st0}, s{st0}, 1", "s_branch K2_SAFE_L")
    a("K2_SAFE_E:", "s_mov_b64 exec, -1")
    for r in range(8):
        a(f"v_mov_b32 v{vDen+r}, 1.0")
    a("s_branch K2_NEXT")

    sDst, sSrc, sE = sBl, sPf, sW1
    snode, sbase, sdeg, sbit, ssrc, se, sm = sM, sM + 1, sM + 2, sM + 3, sM + 4, sM + 5, sM + 6
    vc, vq, vacc, vd, vs, ve, vsb, vz = 32, 33, 34, 36, 40, 44, 48, 49
    a("K2_SLOW:")
    w2_preload(sw)
    a(f"s_mov_b32 s{sg}, s{sw}", f"v_cmp_gt_u32 vcc, 320, v0", f"v_lshlrev_b32 v{vT0}, 16, v0", f"v_mov_b32 v{vT1}, 0",
      f"v_lshlrev_b32 v{vT2}, 3, v0", "s_and_saveexec_b64 s[70:71], vcc", f"ds_write_b64 v{vT2}, {vr(vT0,2)} offset:{B_META}",
      "s_mov_b64 exec, -1", "s_waitcnt lgkmcnt(0)", "s_barrier")
    a.srd(sW1, 12, 512 * 1024, 1024)
    a(f"v_and_b32 v{vT0}, 1, v{vLane}", f"v_lshlrev_b32 v{vT0}, 6, v{vT0}", f"v_and_b32 v{vT1}, 62, v{vLane}",
      f"v_add_u32 v{vT0}, v{vT0}, v{vT1}", f"s_lshl_b32 s{st1}, s{sk}, 7")
    a(f"buffer_load_ushort v{vc}, v{vT0}, {sr(sW1,4)}, s{st1} offen", "s_waitcnt vmcnt(0)",
      f"v_lshlrev_b32 v{vc}, 16, v{vc}", f"v_mul_f32 v{vc}, s{sK}, v{vc}")
    a.srd(sDst, 10, 0, E * 4)
    a.srd(sSrc, 8, 0, E * 4)
    a.srd(sE, 6, 0, E * 2)
    a(f"v_lshlrev_b32 v{vIdx+1}, 1, v{vLane}", f"v_lshlrev_b32 v{vT2}, 4, v{vLane}", f"v_lshlrev_b32 v{vT3}, 3, v{vLane}")
    a(f"v_lshrrev_b32 v{vsb}, 5, v{vLane}", f"v_lshlrev_b32 v{vsb}, 9, v{vsb}", f"v_and_b32 v{vT0}, 31, v{vLane}",
      f"v_lshl_add_u32 v{vsb}, v{vT0}, 1, v{vsb}")
    a("K2_SLOW_N:")
    a(f"s_cmp_ge_u32 s{sg}, s{scnt}", "s_cbranch_scc1 K2_SLOW_E")
    a(f"s_mul_i32 s{snode}, s{srng}, {RNG}", f"s_add_u32 s{snode}, s{snode}, s{sg}", f"v_mov_b32 v{vIdx}, s{sg}",
      f"buffer_load_ushort v{vq}, {vr(vIdx,2)}, {sr(sQ,4)}, 0 idxen offen",
      f"v_mov_b32 v{vacc}, 0", f"s_mov_b32 s{sbase}, 0", f"s_mov_b32 s{sdeg}, 0", "s_waitcnt vmcnt(0)",
      f"v_lshlrev_b32 v{vq}, 16, v{vq}")
    a("K2_SLOW_C:")
    a(f"s_lshl_b32 s{st0}, s{sbase}, 2", f"s_lshl_b32 s{st1}, s{sbase}, 1")
    a(f"buffer_load_dwordx4 {vr(vd,4)}, v{vT2}, {sr(sDst,4)}, s{st0} offen",
      f"buffer_load_dwordx4 {vr(vs,4)}, v{vT2}, {sr(sSrc,4)}, s{st0} offen",
      f"buffer_load_dwordx2 {vr(ve+2,2)}, v{vT3}, {sr(sE,4)}, s{st1} offen", "s_waitcnt vmcnt(0)")
    a(f"v_lshlrev_b32 v{ve}, 16, v{ve+2}", f"v_and_b32 v{ve+1}, 0xffff0000, v{ve+2}",
      f"v_lshlrev_b32 v{ve+2}, 16, v{ve+3}", f"v_and_b32 v{ve+3}, 0xffff0000, v{ve+3}")
    for u in range(4):
        a(f"v_cmp_eq_u32 {sr(sm,2)}, s{snode}, v{vd+u}")
        a(f"K2_SLOW_M{u}:", f"s_cmp_eq_u64 {sr(sm,2)}, 0", f"s_cbranch_scc1 K2_SLOW_X{u}")
        a(f"s_ff1_i32_b64 s{sbit}, {sr(sm,2)}", f"s_bitset0_b64 {sr(sm,2)}, s{sbit}", f"s_add_u32 s{sdeg}, s{sdeg}, 1",
          f"v_readlane_b32 s{ssrc}, v{vs+u}, s{sbit}", f"v_readlane_b32 s{se}, v{ve+u}, s{sbit}", "s_nop 1",
          f"v_mov_b32 v{vIdx}, s{ssrc}", f"buffer_load_ushort v{vz}, {vr(vIdx,2)}, {sr(sP,4)}, 0 idxen offen",
          f"v_fma_f32 v{vT0}, s{se}, v{vc}, v{vq}", "s_waitcnt vmcnt(0)",
          f"v_lshlrev_b32 v{vz}, 16, v{vz}", f"v_add_f32 v{vz}, v{vz}, v{vT0}", f"v_exp_f32 v{vT0}, v{vz}", "s_nop 0",
          f"v_add_f32 v{vT0}, 1.0, v{vT0}", f"v_rcp_f32 v{vT0}, v{vT0}", "s_nop 0",
          f"v_fma_f32 v{vacc}, v{vz}, v{vT0}, v{vacc}", f"s_branch K2_SLOW_M{u}")
        a(f"K2_SLOW_X{u}:")
    a(f"s_add_u32 s{sbase}, s{sbase}, 256", f"s_cmp_lt_u32 s{sbase}, {E}", "s_cbranch_scc1 K2_SLOW_C")
    a(f"v_cvt_pk_bf16_f32 v{vacc}, v{vacc}, v{vacc}", f"s_lshl_b32 s{st0}, s{sg}, 3", f"v_mov_b32 v{vT0}, s{st0}",
      f"v_mov_b32 v{vT1}, s{sdeg}", f"ds_write_b32 v{vT0}, v{vT1} offset:{B_META + 4}",
      f"s_lshr_b32 s{st0}, s{sg}, 3", f"s_lshl_b32 s{st0}, s{st0}, 13", f"s_lshl_b32 s{st1}, s{sk}, 10", f"s_add_u32 s{st0}, s{st0}, s{st1}",
      f"s_and_b32 s{st1}, s{sg}, 7", f"s_lshl_b32 s{st1}, s{st1}, 6", f"s_add_u32 s{st0}, s{st0}, s{st1}",
      f"s_and_b32 s{st1}, s{sg}, 4", f"s_lshl_b32 s{st1}, s{st1}, 3", f"v_xor_b32 v{vT0}, s{st1}, v{vsb}")
    a(f"buffer_store_short v{vacc}, v{vT0}, {sr(sS,4)}, s{st0} offen sc1")
    a(f"s_add_u32 s{sg}, s{sg}, 16", "s_waitcnt vmcnt(0) lgkmcnt(0)", "s_branch K2_SLOW_N")
    a("K2_SLOW_E:", "s_waitcnt vmcnt(0) lgkmcnt(0)", "s_barrier")
    relocate()
    vCtr, vInc, vL16 = 126, 123, 124
    roles()
    ticket(12)
    a(f"s_mov_b32 s{spend}, 1")
    count("S")
    a(f"s_mov_b32 s{spend}, 2", "s_branch K2_TAIL")
    a("K2_END:", "s_endpgm")
    return a.lines, descriptor("k2_kernel", nv, 102 if STAMPS else 96)


def k4():
    a = Asm()
    header(a, "k4_kernel")
    if OPT["probe"]:
        assert STAMPS
        a("s_cmp_lg_u32 s2, 0", "s_cbranch_scc1 K4_END", "s_load_dwordx2 s[20:21], s[0:1], 80",
          "v_mov_b32 v1, 0", "v_mov_b32 v2, -1", "v_mov_b32 v3, 0")
        for k in range(3):
            a(f"ds_write_b64 v1, v[2:3] offset:{8*k}")
        a("s_waitcnt lgkmcnt(0)", "s_barrier")
        a.srd(24, 20, STAMP_OFF, 4 << 20)
        for k, (n, stride) in enumerate(((200, 8 * 128), (4096, 128))):
            for i in range((n + 1023) // 1024):
                a(f"v_add_u32 v4, {1024*i}, v0", f"v_cmp_gt_u32 vcc, {n}, v4", f"v_mul_u32_u24 v4, {stride}, v4",
                  f"s_mov_b32 s3, {k << 20}", "s_and_saveexec_b64 s[10:11], vcc", f"s_cbranch_execz K4_S{k}_{i}",
                  "buffer_load_dwordx2 v[6:7], v4, s[24:27], s3 offen offset:112", "s_waitcnt vmcnt(0)",
                  f"ds_min_u32 v1, v7 offset:{8*k}", f"ds_max_u32 v1, v6 offset:{8*k+4}", f"K4_S{k}_{i}:", "s_mov_b64 exec, -1")
        a("s_waitcnt lgkmcnt(0)", "s_barrier", "ds_read_b128 v[8:11], v1", "ds_read_b64 v[12:13], v1 offset:16", "s_waitcnt lgkmcnt(0)")
        if OPT["probe"] == 9:
            a("v_mov_b32 v2, 0", "ds_write_b32 v1, v2 offset:32", "s_waitcnt lgkmcnt(0)", "s_barrier")
            a(f"v_cmp_gt_u32 vcc, {OPT['pwn']}, v0", f"v_mul_u32_u24 v4, {OPT['pstride'] * 128}, v0",
              f"s_mov_b32 s3, {(OPT['pk'] << 20) + OPT['pw0'] * 128}", "s_and_saveexec_b64 s[10:11], vcc", "s_cbranch_execz K4_C",
              "buffer_load_dword v6, v4, s[24:27], s3 offen", f"buffer_load_dword v7, v4, s[24:27], s3 offen offset:{4*OPT['pidx']}",
              "s_waitcnt vmcnt(0)", "v_sub_u32 v6, v7, v6", "ds_max_u32 v1, v6 offset:32", "K4_C:", "s_mov_b64 exec, -1",
              "s_waitcnt lgkmcnt(0)", "s_barrier", "ds_read_b32 v9, v1 offset:32", "s_waitcnt lgkmcnt(0)",
              "v_mul_u32_u24 v9, 3277, v9", "v_lshrrev_b32 v9, 16, v9", "v_mov_b32 v8, 0")
        hi, lo = {9: (9, 8), 1: (9, 8), 2: (11, 10), 3: (13, 12), 4: (11, 8), 5: (10, 9), 6: (12, 11), 7: (8, 8)}[OPT["probe"]]
        a(f"v_sub_u32 v14, v{hi}, v{lo}", "v_min_u32 v14, 10000, v14", "v_mul_u32_u24 v14, 10, v14", "s_nop 0", "v_readfirstlane_b32 s12, v14",
          "s_memrealtime s[14:15]", "s_waitcnt lgkmcnt(0)", "K4_L:", "s_memrealtime s[16:17]", "s_waitcnt lgkmcnt(0)",
          "s_sub_u32 s16, s16, s14", "s_cmp_lt_u32 s16, s12", "s_cbranch_scc1 K4_L")
    a("K4_END:", "s_endpgm")
    return a.lines, descriptor("k4_kernel", 16, 32)


def main(path):
    head = [
        "; Edge-featured MPNN layer: out = segment_sum(silu([x[src], x[dst], e] @ w1 + b1) @ w2 + b2, dst)",
        "; k1: P = x@w1[0:256], Q = x@w1[256:512] + b1 (scaled by -log2e), edge partition by dst range, w2 re-layout",
        "; k2: per 64-channel slice, S[n] = sum over in-edges of z/(1+2^z), z = P[src] + Q[n] + e*c",
        ";     then out = -ln2 * (S @ w2) + deg * b2 after a hand-off among the eight slice workgroups of a range",
        "; kernarg: x, e_attr, src, dst, w1, b1, w2, b2, out, debug, ws (8 bytes each)",
        f"; @launch kernel=k1_kernel grid=(256,1,1) block=(512,1,1) lds={K1_LDS}",
        f"; @launch kernel=k2_kernel grid=(256,1,1) block=(1024,1,1) lds={K2_LDS}",
        '.amdgcn_target "amdgcn-amd-amdhsa--gfx950"',
        ".text",
    ]
    for i in range(3):
        if OPT["rep"] >> i & 1:
            j = [n for n, l in enumerate(head) if f"kernel=k{i+1}_kernel" in l][0]
            head.insert(j, head[j])
    if OPT["empty"] or OPT["probe"]:
        head.insert(5 if OPT["empty"] == 2 else 7, f"; @launch kernel=k4_kernel grid=(1,1,1) block=({1024 if OPT['probe'] else 64},1,1) lds=64")
    body, desc = [], []
    for f in (k1, k2) + ((k4,) if OPT["empty"] or OPT["probe"] else ()):
        b, d = f()
        body += b
        desc += d
    out = head + body + ['.section .rodata,"a"'] + desc
    open(path, "w").write("\n".join(out) + "\n")


if __name__ == "__main__":
    if "--stamps" in sys.argv:
        STAMPS = True
        sys.argv.remove("--stamps")
    for arg in [x for x in sys.argv[1:] if "=" in x]:
        key, val = arg.split("=")
        assert key in OPT, key
        OPT[key] = int(val)
        sys.argv.remove(arg)
    main(sys.argv[1] if len(sys.argv) > 1 else "standalone__edge_featured_mpnn_mpnn__graph.s")
```

```python
import struct
import sys

N, E, D, H = 10000, 160000, 256, 512
TILE1, NT1 = 192, 53
NR = TILE1 * NT1
SS = NR * 128
P_OFF, Q_OFF, S_OFF = 0, 8 * SS, 16 * SS
RNG = 313
NCHUNK, CHUNK, CAP = 32, 5000, 224
R4BLK, R2BLK = NCHUNK * CAP * 4, NCHUNK * CAP * 2
R4_OFF = 16 * SS + 32 * 40 * 8192
R2_OFF = R4_OFF + 32 * R4BLK
NSLOT = 768
B_META = NSLOT * 32
B_FLAG = B_META + 2560
B_CTR = B_FLAG + 4
B_GO = B_CTR + 4
B_CNTA = B_GO + 64
BLOB = 27 * 1024
BLOB_OFF = R2_OFF + 32 * R2BLK
FL_OFF = BLOB_OFF + 32 * BLOB
W2F_OFF = FL_OFF + 32 * 4096
CF_OFF = W2F_OFF + 262144
WS_END = CF_OFF + 4096
SRB = 40 * 8192
MAXDEG = 48
NGRP = 40


def fbits(x):
    return struct.unpack("<I", struct.pack("<f", x))[0]


NLOG2E = fbits(-1.4426950408889634)
NLN2 = fbits(-0.6931471805599453)

assert all((d * 13401) >> 22 == d // RNG for d in range(10016))
assert all((q * 2341) >> 17 == q // 56 for q in range(2048))
assert all((q * 2341) >> 16 == q // 28 for q in range(1024))


STAMPS = False
OPT = dict(sc1=1, sc3=1, prio=1, empty=0, ipf=1, rot=1, pf=0, light=0, fine=0, la=6, pf0=2, x0pos=0, xrot=0, x1early=0, xspread=1, helper=0, ntx=0, ntw=0, nte=0, blobsc=1, xtouch=7, nto=0, ntw2=0, nolo=1, usem4=1, dup=0, rep=0, clip=1, pfearly=1, pfbar=0, k3opt=1, stag=1, pollf=0, bb=4, early=8, tw2=0, hprio=1, late=1, f2early=1, outearly=0, split=0, estart=1, depth=2, diag=0, nbk=1, snake=1, qtouch=0, prespread=0, initlate=1, srcearly=0, skip3=0, bsh=0, endg=0, eg1=8, eg2=4, rot3=0, k3w=1, probe=0, pk=0, pidx=0, pw0=0, pwn=0, pstride=1, pfq=0, pfw=1)
STAMP_OFF = 48 << 20


class Asm:
    def stamp_setup(self, vreg, kidx):
        self.st_v, self.st_n, self.st_k = vreg, 0, kidx
        if STAMPS:
            self(f"v_mov_b32 v{vreg}, 0", "s_memrealtime s[100:101]", "s_waitcnt lgkmcnt(0)", f"v_writelane_b32 v{vreg}, s100, 29")
            self.stamp()

    def stamp(self, idx=None):
        if STAMPS and not (OPT["light"] and idx != 27 and self.st_n > 0):
            if idx is None:
                idx = self.st_n
                self.st_n += 1
            self("s_waitcnt lgkmcnt(0)", "s_memtime s[100:101]", "s_waitcnt lgkmcnt(0)", f"v_writelane_b32 v{self.st_v}, s100, {idx}")
            self.lg = []

    def stamp_dump(self, srd, wsreg, swave, nwaves, tmp=2):
        if not STAMPS:
            return
        self("s_waitcnt vmcnt(0)")
        self.stamp(27)
        self("s_memrealtime s[100:101]", "s_waitcnt lgkmcnt(0)", f"v_writelane_b32 v{self.st_v}, s100, 28")
        self("s_getreg_b32 s3, hwreg(HW_REG_HW_ID)", f"v_writelane_b32 v{self.st_v}, s3, 30")
        self("s_getreg_b32 s3, hwreg(HW_REG_XCC_ID)", f"v_writelane_b32 v{self.st_v}, s3, 31")
        self.srd(srd, wsreg, STAMP_OFF + (self.st_k << 20), 1 << 20)
        self(f"s_mul_i32 s3, s2, {nwaves}", f"s_add_u32 s3, s3, s{swave}", "s_lshl_b32 s3, s3, 7", "s_mov_b64 exec, -1",
             f"v_lshlrev_b32 v{tmp}, 2, v1", "s_mov_b32 exec_hi, 0",
             f"buffer_store_dword v{self.st_v}, v{tmp}, s[{srd}:{srd+3}], s3 offen")

    def __init__(self):
        self.lines = []
        self.vm = []
        self.lg = []

    def __call__(self, *ls):
        for l in ls:
            self.lines.append(l if l.endswith(":") else "    " + l)

    def vmem(self, line, tag=None):
        self(line)
        self.vm.append(tag)

    def lds(self, line, tag=None):
        self(line)
        self.lg.append(tag)

    @staticmethod
    def _need(q, tags):
        last = -1
        for i, t in enumerate(q):
            if t in tags:
                last = i
        return None if last < 0 else len(q) - 1 - last

    def wait(self, vm=None, lg=None):
        parts = []
        if vm is not None:
            n = 0 if vm == "all" else self._need(self.vm, vm if isinstance(vm, (list, tuple, set)) else [vm])
            if n is not None:
                n = min(n, 63)
                parts.append(f"vmcnt({n})")
                self.vm = self.vm[len(self.vm) - n:] if n else []
        if lg is not None:
            n = 0 if lg == "all" else self._need(self.lg, lg if isinstance(lg, (list, tuple, set)) else [lg])
            if n is not None:
                n = min(n, 15)
                parts.append(f"lgkmcnt({n})")
                self.lg = self.lg[len(self.lg) - n:] if n else []
        if parts:
            self("s_waitcnt " + " ".join(parts))

    def srd(self, s, base, off, size, stride=0):
        if off == 0:
            self(f"s_mov_b32 s{s}, s{base}", f"s_and_b32 s{s+1}, s{base+1}, 0xffff")
        else:
            self(f"s_add_u32 s{s}, s{base}, {off}", f"s_addc_u32 s{s+1}, s{base+1}, 0",
                 f"s_and_b32 s{s+1}, s{s+1}, 0xffff")
        if stride:
            self(f"s_or_b32 s{s+1}, s{s+1}, {stride << 16}")
        self(f"s_mov_b32 s{s+2}, {size}", f"s_mov_b32 s{s+3}, 0x20000")


POLLF = ["sc1", "sc0 sc1", "sc1 nt", "sc0 sc1 nt"]


def wt():
    return " sc1" if OPT["sc1"] else ""


def code_prefetch(a, first, last, wshift, vtmp, vsink, tag):
    if not OPT["ipf"]:
        return
    a(f"s_getpc_b64 s[22:23]", f"{tag}_PC:", f"s_sub_u32 s22, s22, {tag}_PC-{first}", "s_subb_u32 s23, s23, 0",
      "s_lshr_b32 s3, s2, 3", f"s_lshl_b32 s3, s3, {wshift + 10}", f"v_lshlrev_b32 v{vtmp}, 4, v0", f"v_add_u32 v{vtmp}, s3, v{vtmp}",
      f"v_cmp_gt_u32 vcc, {last}-{first}-16, v{vtmp}", "s_and_saveexec_b64 s[4:5], vcc", f"s_cbranch_execz {tag}_PCX",
      f"global_load_dwordx4 {vr(vsink,4)}, v{vtmp}, s[22:23]", f"{tag}_PCX:", "s_mov_b64 exec, -1")


def vr(a, n=1):
    return f"v{a}" if n == 1 else f"v[{a}:{a+n-1}]"


def sr(a, n=1):
    return f"s{a}" if n == 1 else f"s[{a}:{a+n-1}]"


def header(a, name):
    a.lines += [f".globl {name}", ".p2align 8", f".type {name},@function", f"{name}:"]


def descriptor(name, nv, ns):
    acc = (nv + 3) // 4 * 4
    return [".p2align 6", f".amdhsa_kernel {name}", f"  .amdhsa_next_free_vgpr {nv}",
            f"  .amdhsa_next_free_sgpr {ns}", f"  .amdhsa_accum_offset {acc}",
            "  .amdhsa_group_segment_fixed_size 0", "  .amdhsa_kernarg_size 88",
            "  .amdhsa_user_sgpr_count 2", "  .amdhsa_user_sgpr_kernarg_segment_ptr 1",
            "  .amdhsa_system_sgpr_workgroup_id_x 1", "  .amdhsa_float_denorm_mode_32 3",
            ".end_amdhsa_kernel"]


K1_REG = 40960
K1_LDS = 4 * K1_REG
K1_CNT = 0
K1_I16 = 256
K1_I32 = K1_I16 + 32 * CAP * 2
K1_C2 = 44 * 1024
K1_H2 = K1_C2 + 16 + 10240
K1_NB = K1_H2 + 256
K1_BL = 66 * 1024
assert K1_I32 + 32 * CAP * 4 <= K1_C2 and K1_NB + 16 + 10240 <= K1_BL


def k1():
    a = Asm()
    header(a, "k1_kernel")
    sX, sW, sO, sB = 24, 28, 32, 36
    sw, stile, su, st0, st1, sWB, sXo, sOo, sK, sMask, sRB, sq, sWo, sWn, sWc = 56, 57, 58, 59, 60, 61, 62, 63, 64, 66, 67, 68, 69, 70, 71
    vLane, vT0, vT1, vT2 = 1, 2, 3, 4
    vAad = 6
    vTr = 14
    vXd = 16
    vWd, vSt = 20, 21
    vBias = 22
    vA = 24
    vAcc = 40
    vW = 104
    vWx = vW + 128
    nv = vWx + 3

    a("s_cmp_ge_u32 s2, 256", "s_cbranch_scc1 K1_END")
    a.stamp_setup(5, 0)
    code_prefetch(a, "k1_kernel", "K2_END", 3, 2, vW + 124, "K1")
    a("s_load_dwordx16 s[4:19], s[0:1], 0", "s_load_dwordx2 s[20:21], s[0:1], 80", "s_load_dwordx2 s[52:53], s[0:1], 72")
    a(f"v_lshrrev_b32 v{vT0}, 6, v0", f"v_and_b32 v{vLane}, 63, v0", f"v_readfirstlane_b32 s{sw}, v{vT0}")
    a(f"s_lshr_b32 s{sq}, s2, 3", f"s_cmp_lt_u32 s{sq}, 4", "s_cbranch_scc1 K1_SORT")
    a(f"s_cmp_ge_u32 s{sw}, 4", "s_cbranch_scc1 K1_END", f"s_sub_u32 s{sq}, s{sq}, 4")
    a(f"s_and_b32 s{su}, s{sq}, 3", f"s_lshl_b32 s{su}, s{su}, 2", f"s_lshr_b32 s{sq}, s{sq}, 2",
      f"s_lshl_b32 s{st0}, s{sq}, 3", f"s_and_b32 s{stile}, s2, 7", f"s_add_u32 s{stile}, s{stile}, s{st0}",
      f"s_add_u32 s{su}, s{su}, s{sw}", f"s_cmp_ge_u32 s{stile}, {NT1}", "s_cbranch_scc1 K1_PREP")

    a(f"s_mul_i32 s{sRB}, s{sw}, {K1_REG}", f"s_add_u32 s{sWB}, s{sRB}, 8192")
    a(f"s_mov_b32 s{sK}, {NLOG2E}", f"s_mov_b32 s{sK+1}, {NLOG2E}")
    a(f"s_lshl_b32 s{sq}, s{sq}, 2" if OPT["rot"] else f"s_mov_b32 s{sq}, 0")
    a(f"v_lshrrev_b32 v{vT0}, 5, v{vLane}", f"s_lshl_b32 s{st0}, s{sw}, 3", f"v_add_u32 v{vT0}, s{st0}, v{vT0}",
      f"v_and_b32 v{vT1}, 31, v{vLane}")
    for m in range(4):
        a(f"v_add_u32 v{vT2}, {2*m}, v{vT0}", f"v_and_b32 v{vXd+m}, 15, v{vT2}", f"v_xor_b32 v{vXd+m}, v{vXd+m}, v{vT1}",
          f"v_add_u32 v{vXd+m}, s{sq}, v{vXd+m}", f"v_and_b32 v{vXd+m}, 31, v{vXd+m}",
          f"v_lshlrev_b32 v{vXd+m}, 4, v{vXd+m}", f"v_lshl_add_u32 v{vXd+m}, v{vT0}, 9, v{vXd+m}")
    a(f"s_mul_i32 s{sXo}, s{stile}, {TILE1*512}")
    sJ = 40
    a(f"s_lshr_b32 s{sJ}, s{su}, 2" if OPT["xrot"] else f"s_mov_b32 s{sJ}, 0")
    for j in range(1, TILE1 // 32):
        a(f"s_add_u32 s{sJ+j}, s{sJ+j-1}, 1", f"s_cmp_eq_u32 s{sJ+j}, {TILE1 // 32}", f"s_cselect_b32 s{sJ+j}, 0, s{sJ+j}")
    a(f"v_lshrrev_b32 v{vT0}, 3, v{vLane}", f"v_and_b32 v{vT1}, 7, v{vLane}", f"v_and_b32 v{vT2}, 16, v{vLane}",
      f"v_lshrrev_b32 v{vT2}, 2, v{vT2}", f"v_xor_b32 v{vT1}, v{vT1}, v{vT2}", f"v_lshlrev_b32 v{vT1}, 4, v{vT1}",
      f"v_lshl_add_u32 v{vWd}, v{vT0}, 10, v{vT1}")
    for i in range(1, 4):
        a(f"v_add_u32 v{vWx+i-1}, {7168*i}, v{vWd}")
    a(f"s_lshr_b32 s{st0}, s{su}, 3", f"s_lshl_b32 s{st0}, s{st0}, 18", f"s_and_b32 s{sMask}, s{su}, 7",
      f"s_lshl_b32 s{sMask}, s{sMask}, 7", f"s_add_u32 s{sWo}, s{st0}, s{sMask}", f"s_lshl_b32 s{sWn}, s{sq}, 13")
    a(f"v_and_b32 v{vT0}, 31, v{vLane}", f"v_lshrrev_b32 v{vT1}, 3, v{vT0}", f"v_mul_u32_u24 v{vAad}, {K1_REG}, v{vT1}",
      f"v_and_b32 v{vT1}, 7, v{vT0}", f"v_lshl_add_u32 v{vAad}, v{vT1}, 9, v{vAad}",
      f"v_lshrrev_b32 v{vT1}, 5, v{vLane}", f"v_and_b32 v{vT2}, 15, v{vLane}", f"v_xor_b32 v{vT2}, v{vT2}, v{vT1}",
      f"v_lshl_add_u32 v{vAad}, v{vT2}, 4, v{vAad}")
    for s in range(1, 8):
        a(f"v_xor_b32 v{vAad+s}, {32*s}, v{vAad}")
    a(f"v_lshlrev_b32 v{vSt}, 9, v{vT1}", f"v_lshl_add_u32 v{vSt}, v{vT0}, 2, v{vSt}")
    a(f"v_lshlrev_b32 v{vTr}, 10, v{vT1}", f"v_bfe_u32 v{vT2}, v{vLane}, 2, 2", f"v_lshl_add_u32 v{vTr}, v{vT2}, 7, v{vTr}",
      f"v_bfe_u32 v{vT2}, v{vLane}, 3, 1", f"v_lshl_add_u32 v{vTr}, v{vT2}, 6, v{vTr}",
      f"v_bfe_u32 v{vT2}, v{vLane}, 4, 1", f"v_lshl_add_u32 v{vTr}, v{vT2}, 5, v{vTr}",
      f"v_and_b32 v{vT2}, 3, v{vLane}", f"v_lshl_add_u32 v{vTr}, v{vT2}, 3, v{vTr}",
      f"v_add_u32 v{vTr}, s{sWB}, v{vTr}", f"v_xor_b32 v{vTr+1}, 64, v{vTr}", f"v_lshlrev_b32 v{vT0}, 1, v{vT0}")
    a(f"s_mul_i32 s{sOo}, s{su}, {SS}", f"s_mul_i32 s{st0}, s{stile}, {TILE1*128}", f"s_add_u32 s{sOo}, s{sOo}, s{st0}")
    a("s_waitcnt lgkmcnt(0)")
    a.srd(sX, 4, 0, N * 512)
    a.srd(sW, 12, 0, 513 * 1024)

    def x_dma(j):
        a(f"s_add_u32 m0, s{sRB}, {j*4096}", f"s_lshl_b32 s{st0}, s{sJ+j}, 14", f"s_add_u32 s{st0}, s{st0}, s{sXo}")
        for m in range(4):
            a.vmem(f"buffer_load_dwordx4 v{vXd+m}, {sr(sX,4)}, s{st0} offen offset:{1024*m}{' nt' if OPT['ntx'] else ''} lds", f"x{j}")

    def w_dma(s):
        if s % 2 == 0:
            a(f"s_add_u32 m0, s{sWB}, {s*2048}", f"s_add_u32 s{sWc}, s{sWo}, s{sWn}")
        elif OPT["x0pos"] == s:
            a(f"s_add_u32 m0, s{sWB}, {(s-1)*2048}", "s_nop 0")
        for i in (2 * (s % 2), 2 * (s % 2) + 1):
            reg = vWd if i == 0 else vWx + i - 1
            a.vmem(f"buffer_load_dwordx4 v{reg}, {sr(sW,4)}, s{sWc} offen offset:{1024*i}{' nt' if OPT['ntw'] else ''} lds", f"w{s}")
        if s % 2 == 1:
            a(f"s_add_u32 s{sWn}, s{sWn}, 32768", f"s_and_b32 s{sWn}, s{sWn}, 0x3ffff")

    def x_touch():
        a(f"s_lshr_b32 s{st0}, s{su}, 2", f"s_mul_i32 s{st0}, s{st0}, {TILE1*128}", f"s_mul_i32 s{st1}, s{sw}, {TILE1*32}",
          f"s_add_u32 s{st0}, s{st0}, s{st1}", f"s_add_u32 s{st0}, s{st0}, s{sXo}", f"v_lshlrev_b32 v{vT1}, 7, v{vLane}",
          f"s_mov_b32 exec_hi, {(1 << (TILE1 // 4 - 32)) - 1}")
        a.vmem(f"buffer_load_dword v{vT2}, v{vT1}, {sr(sX,4)}, s{st0} offen{' nt' if OPT['ntx'] else ''}", "touch")
        a("s_mov_b32 exec_hi, -1")

    LA = OPT["la"]
    a.stamp()
    if OPT["xtouch"] == 1:
        x_touch()
    for s in range(LA):
        if s == OPT["x0pos"]:
            x_dma(0)
        w_dma(s)
        if OPT["xtouch"] == 2 + s:
            x_touch()
    if OPT["x1early"]:
        x_dma(1)
    a.srd(sO, 20, 0, 16 * SS)
    if OPT["dup"]:
        a.srd(48, 20, 64 << 20, 16 * SS)
    a.srd(sB, 14, 0, 1024)
    a(f"s_cmp_ge_u32 s{su}, 8", f"s_cselect_b32 s{sB+2}, s{sB+2}, 0")
    a.stamp()

    def wfrag(s, b):
        return vW + (s * 2 + b) * 4

    def a_read(j, s):
        a.lds(f"ds_read_b128 {vr(vA + 4*((16*j+s) % 4), 4)}, v{vAad + (s & 7)} offset:{4096*j + 256*(s >> 3)}", f"a{j}_{s}")

    def w_read(s):
        a.wait(vm=f"w{s}")
        for b in range(2):
            for q in range(2):
                a.lds(f"ds_read_b64_tr_b16 {vr(wfrag(s, b) + 2*q, 2)}, v{vTr+b} offset:{s*2048 + q*512}", f"t{s}")

    def mfma(j, s, b):
        acc = vAcc + 32 * (j & 1) + 16 * b
        c = "0" if s == 0 else vr(acc, 16)
        a(f"v_mfma_f32_32x32x16_bf16 {vr(acc,16)}, {vr(vA + 4*((16*j+s) % 4), 4)}, {vr(wfrag(s, b), 4)}, {c}")

    def epilogue_ops(j):
        acc = vAcc + 32 * (j & 1)
        ops = [("s", f"s_lshl_b32 s{st1}, s{sJ+j}, 12"), ("s", f"s_add_u32 s{st1}, s{st1}, s{sOo}")]
        for r in range(0, 16, 2):
            for rr in (r, r + 1):
                ops.append(("v", f"v_fma_f32 v{acc+rr}, v{acc+rr}, s{sK}, v{vBias}"))
                ops.append(("v", f"v_fma_f32 v{acc+16+rr}, v{acc+16+rr}, s{sK}, v{vBias+1}"))
            for rr in (r, r + 1):
                ops.append(("v", f"v_cvt_pk_bf16_f32 v{acc+rr}, v{acc+rr}, v{acc+16+rr}"))
            for rr in (r, r + 1):
                ops.append(("m", f"buffer_store_dword v{acc+rr}, v{vSt}, {sr(sO,4)}, s{st1} offen offset:{(8*(rr>>2) + (rr&3))*128}{wt()}"))
        return ops

    def emit_op(op):
        if op[0] == "m":
            a.vmem(op[1], "st")
            if OPT["dup"]:
                a.vmem(op[1].replace(sr(sO, 4), sr(48, 4)), "st")
        else:
            a(op[1])

    NJ = TILE1 // 32
    a.wait(vm="x0")
    a("s_barrier")
    a.stamp()
    PF0 = OPT["pf0"]
    for s in range(PF0):
        w_read(s)
        a_read(0, s)
    for s in range(16):
        if s + PF0 < 16:
            w_read(s + PF0)
            a_read(0, s + PF0)
        a.wait(lg=[f"t{s}", f"a0_{s}"])
        mfma(0, s, 0)
        if s + LA < 16:
            w_dma(s + LA)
        elif s + LA == 16:
            if not OPT["x1early"]:
                x_dma(1)
            a.vmem(f"buffer_load_ushort v{vBias}, v{vT0}, {sr(sB,4)}, s{sMask} offen", "x1")
            a.vmem(f"buffer_load_ushort v{vBias+1}, v{vT0}, {sr(sB,4)}, s{sMask} offen offset:64", "x1")
        elif s + LA - 15 < (3 if OPT["xspread"] else NJ):
            x_dma(s + LA - 15)
        mfma(0, s, 1)
        if OPT["fine"] and s % 2 == 1 and s < 15:
            a.stamp()
    PFA = 3
    a.stamp()
    a.wait(vm="x1")
    a("s_barrier")
    for s in range(PFA):
        a_read(1, s)
    a(f"v_lshlrev_b32 v{vBias}, 16, v{vBias}", f"v_lshlrev_b32 v{vBias+1}, 16, v{vBias+1}",
      f"v_mul_f32 v{vBias}, s{sK}, v{vBias}", f"v_mul_f32 v{vBias+1}, s{sK}, v{vBias+1}")
    a.stamp()
    for j in range(1, NJ):
        ops = epilogue_ops(j - 1)
        for s in range(16):
            if s + PFA == 16 and j < NJ - 1:
                a.wait(vm=f"x{j+1}")
                a("s_barrier")
            a.wait(lg=f"a{j}_{s}")
            mfma(j, s, 0)
            if OPT["xspread"] and s == 1 and j + 2 < NJ:
                x_dma(j + 2)
            if s + PFA < 16:
                a_read(j, s + PFA)
            elif j < NJ - 1:
                a_read(j + 1, s + PFA - 16)
            if s >= 3:
                for _ in range(3 if s == 3 else 2):
                    if ops:
                        emit_op(ops.pop(0))
            mfma(j, s, 1)
            if s >= 3:
                for _ in range(3):
                    if ops:
                        emit_op(ops.pop(0))
        assert not ops
        a.stamp()
    a("s_nop 15")
    for op in epilogue_ops(NJ - 1):
        emit_op(op)
    a.stamp_dump(sX, 20, sw, 8)
    a("s_endpgm")

    a("K1_PREP:")
    a.vm, a.lg = [], []
    a(f"s_cmp_ge_u32 s{stile}, {NT1 + 2}", "s_cbranch_scc1 K1_CPREP")
    sW2, sF = sX, sW
    vL = vW
    vOut = vW + 32
    a(f"s_sub_u32 s{st0}, s{stile}, {NT1}", f"s_lshl_b32 s{st0}, s{st0}, 4", f"s_add_u32 s{su}, s{su}, s{st0}")
    a(f"v_and_b32 v{vT0}, 15, v{vLane}", f"v_lshrrev_b32 v{vT1}, 4, v{vLane}", f"v_lshlrev_b32 v{vT0}, 2, v{vT0}",
      f"v_lshl_add_u32 v{vWd}, v{vT1}, 11, v{vT0}", f"v_lshlrev_b32 v{vSt}, 4, v{vLane}")
    a(f"s_lshr_b32 s{st0}, s{su}, 2", f"s_lshl_b32 s{st0}, s{st0}, 6", f"s_and_b32 s{st1}, s{su}, 3",
      f"s_lshl_b32 s{st1}, s{st1}, 16", f"s_add_u32 s{sXo}, s{st0}, s{st1}", f"s_lshl_b32 s{sOo}, s{su}, 13")
    a("s_waitcnt lgkmcnt(0)")
    a.srd(sW2, 16, 0, 512 * 512)
    a.srd(sF, 20, W2F_OFF, 262144)
    for s in range(4):
        for i in range(8):
            row = (s >> 1) * 64 + 16 * (s & 1) + (i >> 1) + 32 * (i & 1)
            a(f"s_add_u32 s{st0}, s{sXo}, {row*512}")
            a.vmem(f"buffer_load_dword v{vL + 8*s + i}, v{vWd}, {sr(sW2,4)}, s{st0} offen{' nt' if OPT['ntw2'] else ''}", f"l{s}")
    a(f"s_mov_b32 s{sK}, 0x05040100", f"s_mov_b32 s{sK+1}, 0x07060302")
    for s in range(4):
        a.wait(vm=f"l{s}")
        for b in range(2):
            o = vOut + 8 * s + 4 * b
            for m in range(4):
                a(f"v_perm_b32 v{o+m}, v{vL + 8*s + 2*m + 1}, v{vL + 8*s + 2*m}, s{sK+b}")
            a(f"s_add_u32 s{st0}, s{sOo}, {(2*s+b)*1024}")
            a.vmem(f"buffer_store_dwordx4 {vr(o,4)}, v{vSt}, {sr(sF,4)}, s{st0} offen{wt()}")
    a("s_endpgm")

    a("K1_CPREP:")
    a(f"s_cmp_ge_u32 s{su}, 8", "s_cbranch_scc1 K1_END")
    a(f"v_and_b32 v{vT1}, 1, v{vLane}", f"v_lshlrev_b32 v{vT1}, 6, v{vT1}",
      f"v_bfe_u32 v{vT2}, v{vLane}, 2, 1", f"v_lshl_add_u32 v{vT1}, v{vT2}, 5, v{vT1}",
      f"v_bfe_u32 v{vT2}, v{vLane}, 3, 1", f"v_lshl_add_u32 v{vT1}, v{vT2}, 2, v{vT1}",
      f"v_bfe_u32 v{vT2}, v{vLane}, 1, 1", f"v_lshl_add_u32 v{vT1}, v{vT2}, 1, v{vT1}",
      f"v_bfe_u32 v{vT0}, v{vLane}, 4, 1", f"v_lshrrev_b32 v{vT2}, 5, v{vLane}", f"v_cmp_eq_u32 vcc, v{vT0}, v{vT2}",
      f"v_lshlrev_b32 v{vT0}, 3, v{vLane}", f"s_lshl_b32 s{st0}, s{su}, 7", f"s_lshl_b32 s{st1}, s{su}, 9",
      f"s_mov_b32 s{sK}, {NLOG2E}", "s_waitcnt lgkmcnt(0)")
    a.srd(sX, 12, 512 * 1024, 1024)
    a.srd(sW, 20, CF_OFF, 4096)
    for i in range(4):
        a(f"buffer_load_ushort v{8+i}, v{vT1}, {sr(sX,4)}, s{st0} offen offset:{8*i}")
    a("s_waitcnt vmcnt(0)")
    for i in range(4):
        a(f"v_lshlrev_b32 v{8+i}, 16, v{8+i}", f"v_mul_f32 v{8+i}, s{sK}, v{8+i}")
    a("v_cvt_pk_bf16_f32 v12, v8, v9", "v_cvt_pk_bf16_f32 v13, v10, v11", "v_cndmask_b32 v12, 0, v12, vcc", "v_cndmask_b32 v13, 0, v13, vcc",
      f"buffer_store_dwordx2 v[12:13], v{vT0}, {sr(sW,4)}, s{st1} offen{wt()}", "s_endpgm")

    a("K1_SORT:")
    a.vm, a.lg = [], []
    nt = " nt" if OPT["nte"] else ""
    NBK = OPT["nbk"]
    LB = NBK.bit_length() - 1
    NU = ((N - 1) >> OPT["bsh"]) + 1 if OPT["bsh"] else NBK
    assert NU <= NBK
    assert all((x * 6554 * NBK) >> 26 < NBK for x in range(N))
    sDst, sSrc, sE, sR4, sR2, sDb, sBl, sDg = 24, 28, 32, 36, 40, 44, 24, 28
    sc = su
    vDst, vSrc, vEe, vSl, vRg, vRd, vCn, vRo = 8, 20, 32, 40, 56, 72, 96, 100
    vOne, vBig, vO16, vO8 = 6, 7, 108, 109
    a(f"s_mov_b32 s{sc}, s2")
    a(f"v_lshlrev_b32 v{vO16}, 4, v0", f"v_lshlrev_b32 v{vO8}, 3, v0")
    a(f"s_mul_i32 s{st0}, s{sc}, {CHUNK*4}", f"s_mul_i32 s{st1}, s{sc}, {CHUNK*2}")
    def lds_zero():
        for i in range(2):
            a(f"ds_write_b128 v{vO16}, {vr(vRd,4)} offset:{8192*i}")
        for i in range(2 if NBK > 1 else 1):
            a(f"ds_write_b128 v{vO16}, {vr(vRd,4)} offset:{K1_C2 + 8192*i}")
        if NBK == 1:
            a(f"ds_write_b32 v{vT0}, v{vRd} offset:{K1_H2}")
    for r in range(4):
        a(f"v_mov_b32 v{vRd+r}, 0")
    a(f"v_lshlrev_b32 v{vT0}, 2, v{vLane}")
    if not OPT["initlate"]:
        lds_zero()
    a("s_waitcnt lgkmcnt(0)")
    a.srd(sDst, 10, f"s{st0}", CHUNK * 4)
    for i in range(3):
        a(f"s_mov_b32 s{sXo}, {8192*i}")
        a.vmem(f"buffer_load_dwordx4 {vr(vDst+4*i,4)}, v{vO16}, {sr(sDst,4)}, s{sXo} offen{nt}", f"d{i}")
    if OPT["initlate"]:
        lds_zero()
        a("s_waitcnt lgkmcnt(0)")
    if not OPT["srcearly"]:
        a("s_barrier")
    a.srd(sSrc, 8, f"s{st0}", CHUNK * 4)
    a.srd(sE, 6, f"s{st1}", CHUNK * 2)
    for i in range(3):
        a(f"s_mov_b32 s{st0}, {8192*i}")
        a.vmem(f"buffer_load_dwordx4 {vr(vSrc+4*i,4)}, v{vO16}, {sr(sSrc,4)}, s{st0} offen{nt}", f"r{i}")
    if OPT["srcearly"]:
        a("s_barrier")
    for i in range(3):
        a(f"s_mov_b32 s{st1}, {4096*i}")
        a.vmem(f"buffer_load_dwordx2 {vr(vEe+2*i,2)}, v{vO8}, {sr(sE,4)}, s{st1} offen{nt}", f"s{i}")
    a.stamp(7)
    a.srd(sR4, 20, R4_OFF, 32 * R4BLK)
    a.srd(sR2, 20, R2_OFF, 32 * R2BLK)
    a.srd(sDb, 52, 0, 256)
    a(f"s_mov_b32 s{st0}, 13401", f"s_mov_b32 s{st1}, {-RNG & 0xffffffff}", f"s_mov_b32 s{sMask}, 0xffff0000",
      f"v_mov_b32 v{vOne}, 1", f"v_cmp_gt_u32 vcc, {CHUNK//4 - 1024}, v0", f"s_mov_b64 {sr(sK,2)}, vcc",
      f"s_mov_b32 s{sXo}, {CAP}")

    a.stamp(8)
    for i in range(3):
        a.wait(vm=f"d{i}")
        if i == 0:
            a.stamp(9)
        if i == 2:
            a(f"s_mov_b64 exec, {sr(sK,2)}")
        for n in range(4 * i, 4 * i + 4):
            a(f"v_mul_u32_u24 v{vRg+n}, s{st0}, v{vDst+n}", f"v_lshrrev_b32 v{vRg+n}, 22, v{vRg+n}",
              f"v_lshlrev_b32 v{vSl+n}, 2, v{vRg+n}")
            a.lds(f"ds_add_rtn_u32 v{vSl+n}, v{vSl+n}, v{vOne} offset:{K1_CNT}", f"sl{n}")
            a(f"v_mad_i32_i24 v{vDst+n}, v{vRg+n}, s{st1}, v{vDst+n}", f"v_lshl_add_u32 v{vDst+n}, v{vDst+n}, {LB + 2}, 16")
        if i == 2:
            a("s_mov_b64 exec, -1")
    a.stamp(10)
    a(f"s_mov_b32 s{st0}, {6554 * NBK}")
    for n in range(12):
        if n == 8:
            a(f"s_mov_b64 exec, {sr(sK,2)}")
        if NBK > 1:
            a.wait(vm=f"r{n//4}")
            if OPT["bsh"]:
                a(f"v_lshrrev_b32 v{vT2}, {OPT['bsh']}, v{vSrc+n}", f"v_lshl_add_u32 v{vDst+n}, v{vT2}, 2, v{vDst+n}")
            else:
                a(f"v_mul_u32_u24 v{vT2}, s{st0}, v{vSrc+n}", f"v_lshrrev_b32 v{vT2}, 26, v{vT2}", f"v_lshl_add_u32 v{vDst+n}, v{vT2}, 2, v{vDst+n}")
        a.wait(lg=f"sl{n}")
        a(f"v_min_u32 v{vSl+n}, {CAP - 1}, v{vSl+n}", f"v_mad_u32_u24 v{vSl+n}, v{vRg+n}, s{sXo}, v{vSl+n}",
          f"v_lshlrev_b32 v{vRg+n}, 1, v{vSl+n}")
        a.lds(f"ds_write_b16 v{vRg+n}, v{vDst+n} offset:{K1_I16}")
    a("s_mov_b64 exec, -1")
    a(f"s_mul_i32 s{st0}, s{sc}, {CAP*4}", f"s_mul_i32 s{st1}, s{sc}, {CAP*2}",
      f"s_mov_b32 s{sXo}, {R4BLK - CAP*4}", f"s_mov_b32 s{sOo}, {R2BLK - CAP*2}")
    for i in range(2):
        a(f"v_add_u32 v{vT2}, {512*i}, v0", f"v_mul_u32_u24 v{vT2}, 2341, v{vT2}", f"v_lshrrev_b32 v{vT2}, 16, v{vT2}",
          f"v_mad_u32_u24 v{vRo+4+i}, v{vT2}, s{sOo}, v{vO16}", f"v_add_u32 v{vRo+4+i}, {8192*i}, v{vRo+4+i}",
          f"v_lshlrev_b32 v{vCn+i}, 2, v{vT2}")
    a.wait(lg="all")
    a("s_barrier")
    a.stamp(1)
    for i in range(2):
        a.lds(f"ds_read_b128 {vr(vRd+16+4*i,4)}, v{vO16} offset:{K1_I16 + 8192*i}", f"h{i}")
        a.lds(f"ds_read_b32 v{vCn+i}, v{vCn+i} offset:{K1_CNT}", f"h{i}")
    for i in range(2):
        a.wait(lg=f"h{i}")
        a(f"v_cmp_ge_u32 vcc, {CAP}, v{vCn+i}", "s_nop 1", f"v_cndmask_b32 v{vRd+16+4*i}, -1, v{vRd+16+4*i}, vcc")
        a.vmem(f"buffer_store_dwordx4 {vr(vRd+16+4*i,4)}, v{vRo+4+i}, {sr(sR2,4)}, s{st1} offen sc1", "r2")
    for i in range(3):
        a.wait(vm=f"s{i}")
        if i == 2:
            a(f"s_mov_b64 exec, {sr(sK,2)}")
        for n in range(4 * i, 4 * i + 4):
            if n & 1:
                a(f"v_and_or_b32 v{vSrc+n}, v{vEe+n//2}, s{sMask}, v{vSrc+n}")
            else:
                a(f"v_lshl_or_b32 v{vSrc+n}, v{vEe+n//2}, 16, v{vSrc+n}")
            a(f"v_lshlrev_b32 v{vSl+n}, 2, v{vSl+n}")
            a.lds(f"ds_write_b32 v{vSl+n}, v{vSrc+n} offset:{K1_I32}")
    a("s_mov_b64 exec, -1")
    for i in range(4):
        a(f"v_add_u32 v{vT2}, {512*i}, v0", f"v_mul_u32_u24 v{vT2}, 2341, v{vT2}", f"v_lshrrev_b32 v{vT2}, 17, v{vT2}",
          f"v_mad_u32_u24 v{vRo+i}, v{vT2}, s{sXo}, v{vO16}", f"v_add_u32 v{vRo+i}, {8192*i}, v{vRo+i}")
    a(f"s_lshl_b32 s{sWo}, s{sc}, 2", f"v_mov_b32 v{vBig}, s{sWo}")
    a.wait(vm="all", lg="all")
    a("s_barrier")
    a.stamp(11)
    a(f"s_cmp_lg_u32 s{sw}, 0", "s_cbranch_scc1 K1_F1", "s_mov_b64 exec, 1",
      f"buffer_store_dword v{vOne}, v{vBig}, {sr(sDb,4)}, 0 offen sc1", "s_mov_b64 exec, -1", "K1_F1:")
    for i in range(4):
        a.lds(f"ds_read_b128 {vr(vRd+4*i,4)}, v{vO16} offset:{K1_I32 + 8192*i}", f"g{i}")
    for i in range(4):
        a.wait(lg=f"g{i}")
        a.vmem(f"buffer_store_dwordx4 {vr(vRd+4*i,4)}, v{vRo+i}, {sr(sR4,4)}, s{st0} offen sc1")
    a(f"s_mul_i32 s{st0}, s{sc}, {R4BLK}", f"s_add_u32 s{st0}, s{st0}, {R4_OFF}", f"s_mul_i32 s{st1}, s{sc}, {R2BLK}",
      f"s_add_u32 s{st1}, s{st1}, {R2_OFF}", f"s_mul_i32 s{sXo}, s{sc}, {BLOB}", f"s_add_u32 s{sXo}, s{sXo}, {BLOB_OFF}",
      f"s_lshl_b32 s{sOo}, s{sc}, 12", f"s_add_u32 s{sOo}, s{sOo}, {FL_OFF}")
    a.srd(sBl, 20, f"s{sXo}", BLOB)
    a.srd(sDg, 20, f"s{sOo}", 3072)
    for r in range(4):
        a(f"v_mov_b32 v{vDst+r}, 0xffff")
    a(f"v_add_u32 v{vT0}, {K1_BL}, v{vO16}", f"v_mov_b32 v{vDst+4}, 0", f"v_mov_b32 v{vDst+5}, 0", f"v_mov_b32 v{vDst+6}, {K1_BL + BLOB}")
    for i in range(3):
        a(f"ds_write_b128 v{vT0}, {vr(vDst,4)} offset:{8192*i}")
    a(f"v_add_u32 v{vT1}, {K1_BL + B_META}, v{vO8}", f"ds_write_b64 v{vT1}, {vr(vDst+4,2)}",
      f"v_mov_b32 v{vT1}, {K1_NB}", f"ds_write_b32 v{vT1}, v{vDst+6}")
    a(f"buffer_store_dwordx2 {vr(vDst+4,2)}, v{vO8}, {sr(sDg,4)}, 0 offen sc1")
    for n in range(16):
        a(f"v_mov_b32 v{48+n}, 0")
    a("s_waitcnt vmcnt(0) lgkmcnt(0)")
    a.vm, a.lg = [], []
    a.srd(sR4, 20, f"s{st0}", R4BLK)
    a.srd(sR2, 20, f"s{st1}", R2BLK)
    a("s_barrier")
    a.stamp(2)

    vFa, vFd = 110, 111
    a(f"v_lshlrev_b32 v{vFa}, 2, v{vLane}")

    def poll_issue(tag, word, wave):
        a(f"s_cmp_lg_u32 s{sw}, {wave}", f"s_cbranch_scc1 K1_{tag}I", "s_mov_b32 exec_hi, 0",
          f"buffer_load_dword v{vFd}, v{vFa}, {sr(sDb,4)}, 0 offen offset:{word} {POLLF[OPT['pollf']]}", "s_mov_b32 exec_hi, -1", f"K1_{tag}I:")

    def poll(tag, word, wave):
        a(f"s_cmp_lg_u32 s{sw}, {wave}", f"s_cbranch_scc1 K1_{tag}X", "s_mov_b32 exec_hi, 0", f"s_mov_b32 s{sWc}, 0")
        a(f"K1_{tag}L:")
        a("s_waitcnt vmcnt(0)", f"v_cmp_eq_u32 vcc, 0, v{vFd}", f"s_cbranch_vccz K1_{tag}D",
          f"buffer_load_dword v{vFd}, v{vFa}, {sr(sDb,4)}, 0 offen offset:{word} {POLLF[OPT['pollf']]}", f"s_add_u32 s{sWc}, s{sWc}, 1",
          f"s_cmp_lt_u32 s{sWc}, 0x40000", f"s_cbranch_scc1 K1_{tag}L")
        a("s_waitcnt vmcnt(0)", f"v_mov_b32 v{vFd}, {K1_BL + B_FLAG}",
          f"ds_write_b32 v{vFd}, v{vOne}", "s_waitcnt lgkmcnt(0)")
        a(f"K1_{tag}D:", "s_mov_b64 exec, -1", f"K1_{tag}X:")
    a(f"s_cmp_lg_u32 s{sw}, 1", "s_cbranch_scc1 K1_F2", "s_mov_b64 exec, 1",
      f"buffer_store_dword v{vOne}, v{vBig}, {sr(sDb,4)}, 0 offen offset:128 sc1", "s_mov_b64 exec, -1", "K1_F2:")
    poll_issue("PA", 0, 0)
    poll("PA", 0, 0)
    a("s_barrier")
    a.stamp(3)
    vR2, vR4, vDl, vS2 = 8, 16, 32, 48
    vNd, vDeg, vP, vBin, vPos, vMa = 64, 65, 66, 67, 70, 71
    for i in range(4):
        a(f"s_mov_b32 s{st0}, {4096*i}")
        a.vmem(f"buffer_load_dwordx2 {vr(vR2+2*i,2)}, v{vO8}, {sr(sR2,4)}, s{st0} offen sc1", f"h{i}")
    a(f"v_mov_b32 v{vT2}, 0")
    for i in range(4):
        a.wait(vm=f"h{i}")
        if i == 0:
            a.stamp(12)
            poll_issue("PB", 128, 7)
        for n in range(4 * i, 4 * i + 4):
            if n & 1:
                a(f"v_ashrrev_i32 v{vDl+n}, 16, v{vR2+n//2}")
            else:
                a(f"v_bfe_i32 v{vDl+n}, v{vR2+n//2}, 0, 16")
        a(f"v_min_i32 v{vT2}, v{vDl+4*i}, v{vT2}")
        if i == 3 and OPT["skip3"]:
            a(f"s_cmp_ge_u32 s{sw}, 4", "s_cbranch_scc1 K1_SK1")
        for n in range(4 * i, 4 * i + 4):
            a(f"v_cmpx_lt_i32 vcc, 0, v{vDl+n}")
            a.lds(f"ds_add_rtn_u32 v{vS2+n}, v{vDl+n}, v{vOne} offset:{K1_C2}")
            a("s_mov_b64 exec, -1")
    a("K1_SK1:")
    a(f"v_mov_b32 v{vT0}, {K1_BL + B_FLAG}", f"v_cmpx_gt_i32 vcc, 0, v{vT2}")
    a.lds(f"ds_write_b32 v{vT0}, v{vOne}")
    a("s_mov_b64 exec, -1")
    a.wait(lg="all")
    poll("PB", 128, 7)
    a("s_barrier")
    a.stamp(4)
    for i in range(4):
        a(f"s_mov_b32 s{st0}, {8192*i}")
        a.vmem(f"buffer_load_dwordx4 {vr(vR4+4*i,4)}, v{vO16}, {sr(sR4,4)}, s{st0} offen sc1", f"g{i}")
    a(f"s_cmp_ge_u32 s{sw}, 5", "s_cbranch_scc1 K1_D1")
    vC8 = 72
    a(f"v_lshlrev_b32 v{vT1}, {LB + 2}, v0")
    if NBK == 1:
        a(f"ds_read_b32 v{vDeg}, v{vT1} offset:{K1_C2 + 16}", "s_waitcnt lgkmcnt(0)")
    else:
        for i in range(NBK // 4):
            a(f"ds_read_b128 {vr(vC8+4*i,4)}, v{vT1} offset:{K1_C2 + 16 + 16*i}")
        a("s_waitcnt lgkmcnt(0)")
        for i in range(1, NU - 1):
            a(f"v_add_u32 v{vC8+i}, v{vC8+i}, v{vC8+i-1}")
        a(f"v_add_u32 v{vDeg}, v{vC8+NU-1}, v{vC8+NU-2}")
    a(f"v_cmp_lt_u32 {sr(sK,2)}, {MAXDEG}, v{vDeg}", f"v_min_u32 v{vDeg}, {MAXDEG}, v{vDeg}",
      f"v_sub_u32 v{vBin}, 63, v{vDeg}", f"v_lshlrev_b32 v{vBin}, 2, v{vBin}",
      f"ds_add_rtn_u32 v{vP}, v{vBin}, v{vOne} offset:{K1_H2}",
      f"s_mov_b64 exec, {sr(sK,2)}", f"ds_write_b32 v{vT0}, v{vOne}", "s_mov_b64 exec, -1", "s_waitcnt lgkmcnt(0)")
    a("K1_D1:", "s_barrier")

    def scan(reg):
        a("s_nop 1")
        for ctrl in ("row_shr:1", "row_shr:2", "row_shr:4", "row_shr:8"):
            a(f"v_add_u32_dpp v{reg}, v{reg}, v{reg} {ctrl} row_mask:0xf bank_mask:0xf bound_ctrl:1", "s_nop 1")
        a(f"v_add_u32_dpp v{reg}, v{reg}, v{reg} row_bcast:15 row_mask:0xa bank_mask:0xf", "s_nop 1")
        a(f"v_add_u32_dpp v{reg}, v{reg}, v{reg} row_bcast:31 row_mask:0xc bank_mask:0xf", "s_nop 1")
    vA0, vA1 = 68, 69
    a(f"s_cmp_ge_u32 s{sw}, 5", "s_cbranch_scc1 K1_D2")
    a(f"v_lshlrev_b32 v{vA0}, 2, v{vLane}", f"ds_read_b32 v{vA1}, v{vA0} offset:{K1_H2}", "s_waitcnt lgkmcnt(0)",
      f"v_mov_b32 v{vA0}, v{vA1}")
    scan(vA0)
    a(f"v_sub_u32 v{vA0}, v{vA0}, v{vA1}", f"ds_bpermute_b32 v{vPos}, v{vBin}, v{vA0}",
      f"v_lshlrev_b32 v{vNd}, 16, v0", "s_waitcnt lgkmcnt(0)",
      f"v_add_u32 v{vPos}, v{vPos}, v{vP}", f"v_lshlrev_b32 v{vMa}, 3, v{vPos}", f"v_add_u32 v{vMa}, {K1_BL + B_META}, v{vMa}",
      f"ds_write_b64 v{vMa}, {vr(vNd,2)}", "s_waitcnt lgkmcnt(0)")
    a("K1_D2:", "s_barrier")
    a(f"s_cmp_ge_u32 s{sw}, 5", "s_cbranch_scc1 K1_D3")
    a(f"v_lshlrev_b32 v{vA0}, 6, v{vLane}", f"v_add_u32 v{vA0}, {K1_BL + B_META}, v{vA0}", f"ds_read_b32 v{vA1}, v{vA0} offset:4",
      f"v_cmp_gt_u32 vcc, {NGRP}, v{vLane}", "s_waitcnt lgkmcnt(0)", "s_nop 0",
      f"v_cndmask_b32 v{vA1}, 0, v{vA1}, vcc", f"v_mov_b32 v{vA0}, v{vA1}")
    scan(vA0)
    a(f"v_readlane_b32 s{st0}, v{vA0}, 63", f"v_sub_u32 v{vA0}, v{vA0}, v{vA1}", f"v_lshlrev_b32 v{vA0}, 5, v{vA0}",
      f"v_lshrrev_b32 v{vA1}, 3, v{vPos}", f"v_lshlrev_b32 v{vA1}, 2, v{vA1}", f"ds_bpermute_b32 v{vA1}, v{vA1}, v{vA0}",
      f"v_and_b32 v{vPos}, 7, v{vPos}",
      f"s_cmp_le_u32 s{st0}, {NSLOT - 8}", "s_cbranch_scc1 K1_FITS", f"ds_write_b32 v{vT0}, v{vOne}", "K1_FITS:",
      "s_waitcnt lgkmcnt(0)", f"v_lshl_add_u32 v{vA1}, v{vPos}, 2, v{vA1}", f"v_add_u32 v{vA0}, {K1_BL}, v{vA1}",
      f"ds_write_b16 v{vMa}, v{vA1}")
    if NBK == 1:
        a(f"ds_write_b32 v{vT1}, v{vA0} offset:{K1_NB + 16}")
    else:
        for i in range(NU - 1, 0, -1):
            a(f"v_lshl_add_u32 v{vC8+i}, v{vC8+i-1}, 5, v{vA0}")
        a(f"v_mov_b32 v{vC8}, v{vA0}")
        for i in range(NBK // 4):
            a(f"ds_write_b128 v{vT1}, {vr(vC8+4*i,4)} offset:{K1_NB + 16 + 16*i}")
    a("s_waitcnt lgkmcnt(0)")
    a("K1_D3:", "s_barrier")
    a.stamp(5)
    a.lg = []
    a(f"ds_read_b32 v{vT2}, v{vT0}")
    for n in range(8):
        a.lds(f"ds_read_b32 v{vR2+n}, v{vDl+n} offset:{K1_NB}", f"nb{n}")
    a("s_waitcnt lgkmcnt(8)", f"v_readfirstlane_b32 s{st0}, v{vT2}", f"s_cmp_lg_u32 s{st0}, 0", "s_cbranch_scc1 K1_NOSC")
    for n in range(16):
        if n == 12 and OPT["skip3"]:
            a(f"s_cmp_ge_u32 s{sw}, 4", "s_cbranch_scc1 K1_NOSC")
        a.wait(lg=f"nb{n}", vm=f"g{n//4}")
        a(f"v_lshl_add_u32 v{vS2+n}, v{vS2+n}, 5, v{vR2 + (n & 7)}")
        if n < 8:
            a.lds(f"ds_read_b32 v{vR2+n}, v{vDl+n+8} offset:{K1_NB}", f"nb{n+8}")
        a.lds(f"ds_write_b32 v{vS2+n}, v{vR4+n}")
    a("s_branch K1_SCD", "K1_NOSC:", "s_waitcnt vmcnt(0)", "K1_SCD:", "s_waitcnt lgkmcnt(0)")
    a.vm, a.lg = [], []
    a("s_barrier")
    a.stamp(6)
    a(f"v_add_u32 v{vT0}, {K1_BL}, v{vO16}")
    for i in range(4):
        a.lds(f"ds_read_b128 {vr(vR4+4*i,4)}, v{vT0} offset:{8192*i}", f"o{i}")
    for i in range(4):
        a.wait(lg=f"o{i}")
        a(f"s_mov_b32 s{st0}, {8192*i}")
        a.vmem(f"buffer_store_dwordx4 {vr(vR4+4*i,4)}, v{vO16}, {sr(sBl,4)}, s{st0} offen{' sc1' if OPT['blobsc'] else ''}")
    a.stamp_dump(sX, 20, sw, 8)
    a("K1_END:", "s_endpgm")
    return a.lines, descriptor("k1_kernel", nv, 102 if STAMPS else 72)


K2_BB = 28 * 1024
K2_AB = K2_BB + 98304
K2_LDS = K2_BB + 131072


def k2():
    a = Asm()
    header(a, "k2_kernel")
    sBl, sP, sQ, sS, sW1, sF, sPf, sO = 24, 28, 32, 36, 40, 44, 48, 76
    sw, sk, srng, scnt, st0, st1, sg, sdmax, sdmin, sSo, sK, sBig, sOne = 52, 53, 54, 55, 56, 57, 58, 59, 60, 61, 62, 64, 66
    sM = 68
    sFl, spend, seg, sEx = 80, 84, 85, 86
    sPr, sPl, sPn = 88, 89, 90
    vLane, vT0, vT1, vT2, vT3 = 1, 2, 3, 4, 5
    vI4, vAh, vQi = 6, 8, 10
    vE, vEs = 12, 14
    vIdx = 16
    vSh, vEll, vEe, vDeg, vSt, vMetL, vHoff = 24, 25, 26, 27, 28, 29, 30
    vQ = 32
    vNum, vDen, vT = 48, 56, 64
    vP = 72
    vZ = 88
    DP = OPT["depth"]
    if DP == 2:
        vNxt, vGo, vCtr, vInc, vL16 = 120, 121, 126, 123, 124
        pbuf = [vP, vP + 8]
        nv = 127
    else:
        vNxt, vGo, vCtr, vInc, vL16 = 23, 0, 20, 21, 22
        pbuf = [vP, vP + 8, 120]
        nv = 128
    NI = 4 if DP == 2 else 2

    a("s_cmp_ge_u32 s2, 256", "s_cbranch_scc1 K2_END")
    a.stamp_setup(31, 1)
    a("s_load_dwordx16 s[4:19], s[0:1], 0", "s_load_dwordx2 s[20:21], s[0:1], 80", "s_load_dwordx2 s[22:23], s[0:1], 64")
    a(f"v_lshrrev_b32 v{vT0}, 6, v0", f"v_and_b32 v{vLane}, 63, v0", f"v_readfirstlane_b32 s{sw}, v{vT0}")
    a(f"s_and_b32 s{sk}, s2, 7", f"s_lshr_b32 s{srng}, s2, 3")
    a(f"s_mul_i32 s{st0}, s{srng}, {RNG}", f"s_sub_u32 s{scnt}, {N}, s{st0}", f"s_min_u32 s{scnt}, s{scnt}, {RNG}")
    a(f"s_mul_i32 s{st1}, s{srng}, {BLOB}", f"s_add_u32 s{st1}, s{st1}, {BLOB_OFF}")
    a(f"v_lshlrev_b32 v{vL16}, 4, v{vLane}")
    a(f"v_and_b32 v{vT1}, 3, v{vLane}", f"v_lshlrev_b32 v{vSh}, 4, v{vT1}", f"v_lshrrev_b32 v{vT2}, 5, v{vLane}",
      f"v_lshl_add_u32 v{vIdx+1}, v{vT2}, 6, v{vSh}", *[f"v_mov_b32 v{vIdx+2*i+1}, v{vIdx+1}" for i in range(1, NI)],
      f"v_mov_b32 v{vQi+1}, v{vIdx+1}", f"v_lshl_add_u32 v{vHoff}, v{vT2}, 5, 2",
      f"v_and_b32 v{vMetL}, 28, v{vLane}", f"v_lshlrev_b32 v{vMetL}, 1, v{vMetL}",
      f"v_and_b32 v{vT3}, 16, v{vLane}", f"v_lshlrev_b32 v{vT3}, 1, v{vT3}", f"v_xor_b32 v{vSt}, v{vT3}, v{vL16}",
      f"v_mov_b32 v{vE}, 0x3f80", f"v_mov_b32 v{vE+1}, 0", f"v_lshlrev_b64 {vr(vI4,2)}, v{vSh}, {vr(vE,2)}",
      f"v_mov_b32 v{vCtr}, {B_CTR}", f"v_mov_b32 v{vInc}, 64", f"v_lshlrev_b32 v{vT1}, 3, v{vLane}")
    a(f"s_mov_b32 s{sK}, {NLOG2E}", f"s_mov_b32 s{sBig}, {fbits(2.0**120)}", f"s_mov_b32 s{sOne}, 1.0", f"s_mov_b32 s{sOne+1}, 1.0")
    if OPT["estart"]:
        a(f"s_add_u32 s{sg}, s{sw}, 24", f"s_sub_u32 s{sdmax}, s{sw}, 3", f"s_cmp_lt_u32 s{sw}, 3", f"s_cselect_b32 s{sg}, s{sg}, s{sdmax}",
          f"s_mul_i32 s{sdmax}, s{sw}, 3", f"s_sub_u32 s{sdmax}, s{sdmax}, 24", f"s_cmp_lt_u32 s{sw}, 10", f"s_cselect_b32 s{sg}, s{sg}, s{sdmax}",
          f"s_lshl_b32 s{sg}, s{sg}, 10", f"s_mov_b32 m0, s{sg}")
        a("s_waitcnt lgkmcnt(0)")
        a.srd(sBl, 20, f"s{st1}", BLOB)
        a.vmem(f"buffer_load_dwordx4 v{vL16}, {sr(sBl,4)}, s{sg} offen lds", "b")
        a(f"s_cmp_lt_u32 s{sw}, 10", "s_cbranch_scc1 K2_B1")
        a(f"buffer_load_dwordx4 v{vL16}, {sr(sBl,4)}, s{sg} offen offset:1024 lds",
          f"buffer_load_dwordx4 v{vL16}, {sr(sBl,4)}, s{sg} offen offset:2048 lds", "K2_B1:")
    else:
        a(f"s_lshl_b32 s{sg}, s{sw}, 10", f"s_add_u32 s{sdmax}, s{sg}, 16384", f"s_mov_b32 m0, s{sg}")
        a("s_waitcnt lgkmcnt(0)")
        a.srd(sBl, 20, f"s{st1}", BLOB)
        a.vmem(f"buffer_load_dwordx4 v{vL16}, {sr(sBl,4)}, s{sg} offen lds", "b")
        a(f"s_cmp_ge_u32 s{sw}, {BLOB // 1024 - 16}", "s_cbranch_scc1 K2_B1", f"s_mov_b32 m0, s{sdmax}", "s_nop 0")
        a(f"buffer_load_dwordx4 v{vL16}, {sr(sBl,4)}, s{sdmax} offen lds", "K2_B1:")
    a.srd(sW1, 20, CF_OFF, 4096)
    a(f"s_lshl_b32 s{st1}, s{sk}, 9")
    a.vmem(f"buffer_load_dwordx2 {vr(vAh,2)}, v{vT1}, {sr(sW1,4)}, s{st1} offen", "c")
    a.stamp()
    a(f"s_mul_i32 s{st1}, s{sk}, {SS}", f"s_lshl_b32 s{sg}, s{st0}, 7", f"s_add_u32 s{sg}, s{sg}, s{st1}")
    a.srd(sP, 20, f"s{st1}", N, stride=128)
    a(f"s_add_u32 s{sg}, s{sg}, {Q_OFF}")
    a.srd(sQ, 20, f"s{sg}", f"s{scnt}", stride=128)
    a(f"s_mul_i32 s{sg}, s{srng}, {SRB}", f"s_add_u32 s{sg}, s{sg}, {S_OFF}")
    a.srd(sS, 20, f"s{sg}", SRB)
    a.srd(sF, 20, W2F_OFF, 262144)
    a(f"s_lshl_b32 s{sg}, s{st0}, 9", f"s_lshl_b32 s{st1}, s{scnt}, 9")
    a.srd(sO, 22, f"s{sg}", f"s{st1}")
    a(f"s_lshl_b32 s{sg}, s{srng}, 12", f"s_add_u32 s{sg}, s{sg}, {FL_OFF}")
    a.srd(sFl, 20, f"s{sg}", 3072)
    a(f"s_mov_b32 s{sSo}, {SRB}", f"s_mov_b32 s{spend}, 0")
    if OPT["estart"]:
        a(f"s_cmp_ge_u32 s{sw}, 10", "s_cbranch_scc1 K2_B2", "s_waitcnt vmcnt(0)", "s_barrier", "s_branch K2_B3",
          "K2_B2:", "s_barrier", "s_waitcnt vmcnt(0)", "s_mov_b64 exec, 1", f"ds_add_u32 v{vCtr}, v{vInc} offset:{B_CNTA + 40 - B_CTR}",
          "s_mov_b64 exec, -1", "K2_B3:")
    else:
        a.wait(vm="c")
        a("s_barrier")
    a.stamp(5)
    a.vm = []
    if STAMPS:
        a("s_mov_b32 s99, 8")
    a(f"v_mov_b32 v{vT0}, {B_FLAG}", f"ds_read_b32 v{vT1}, v{vT0}", "s_waitcnt lgkmcnt(0)",
      f"v_readfirstlane_b32 s{st0}, v{vT1}", f"s_lshl_b32 s{sg}, s{sw}, 6", f"s_cmp_lg_u32 s{st0}, 0", "s_cbranch_scc1 K2_SLOW")
    if OPT["snake"]:
        a(f"s_bitcmp1_b32 s{sw}, 2", f"s_cselect_b32 s{st0}, 192, 0", f"s_xor_b32 s{sg}, s{sg}, s{st0}")

    def w2_preload(unit):
        a(f"s_lshr_b32 s{st0}, s{unit}, 1", f"s_lshl_b32 s{st0}, s{st0}, 15", f"s_and_b32 s{st1}, s{unit}, 1",
          f"s_mul_i32 s{st1}, s{st1}, 6144", f"s_add_u32 s{st0}, s{st0}, s{st1}", f"s_mul_i32 s{st1}, s{unit}, 6144")
        for i in range(2):
            a(f"s_add_u32 m0, s{st1}, {K2_BB + 4096*i}")
            a(f"s_add_u32 s{st0}, s{st0}, 4096" if i else "s_nop 0")
            for q in range(2 if i else 4):
                a(f"buffer_load_dwordx4 v{vL16}, {sr(sF,4)}, s{st0} offen offset:{1024*q} lds")

    def Z(i):
        return vZ + 16 * ((i >> 1) & 1) + 8 * (i & 1)

    def src_read(i):
        a(f"ds_read_u16 v{vIdx + 2*(i % NI)}, v{vEll} offset:{32*i}")

    def e_read(p):
        a(f"ds_read_u16 v{vE}, v{vEe} offset:{64*p}")

    def gather(i):
        a(f"buffer_load_dwordx4 {vr(pbuf[(i >> 1) % DP] + 4*(i & 1), 4)}, {vr(vIdx + 2*(i % NI), 2)}, {sr(sP,4)}, 0 idxen offen")

    def m4(i, hf):
        z = Z(i) + 4 * hf
        return f"v_mfma_f32_4x4x4_16b_bf16 {vr(z,4)}, {vr(vI4,2)}, {vr(pbuf[(i >> 1) % DP] + 4*(i & 1) + 2*hf, 2)}, {vr(z,4)}"

    shift = f"v_lshlrev_b64 {vr(vEs,2)}, v{vSh}, {vr(vE,2)}"

    def mhi(p):
        return f"v_mfma_f32_32x32x8_bf16 {vr(Z(2*p),16)}, {vr(vAh,2)}, {vr(vEs,2)}, {vr(vQ,16)}"

    def count(tag):
        a(f"s_mov_b64 {sr(sEx,2)}, exec", "s_mov_b64 exec, 1", f"s_lshl_b32 s{st0}, s{spend}, 2", f"v_add_u32 v{vT0}, s{st0}, v{vCtr}",
          f"ds_add_rtn_u32 v{vT0}, v{vT0}, v{vInc} offset:{B_CNTA - 4 - B_CTR}", f"s_lshl_b32 s{st0}, s{spend}, 3",
          f"s_add_u32 s{st0}, s{st0}, s{sk}", f"s_sub_u32 s{st0}, s{st0}, 8", f"s_lshl_b32 s{st0}, s{st0}, 7", f"v_mov_b32 v{vT1}, s{st0}",
          f"s_mov_b32 s{spend}, 0",
          "s_waitcnt lgkmcnt(0)", f"v_readfirstlane_b32 s{st0}, v{vT0}", f"s_cmp_lg_u32 s{st0}, {15*64}", f"s_cbranch_scc1 K2_CE{tag}",
          f"buffer_store_dword v{vInc}, v{vT1}, {sr(sFl,4)}, 0 offen sc1", f"K2_CE{tag}:", f"s_mov_b64 exec, {sr(sEx,2)}")

    def image_wait(tag):
        a(f"K2_IW{tag}:", f"ds_read_b32 v{vT0}, v{vCtr} offset:{B_CNTA + 40 - B_CTR}", "s_waitcnt lgkmcnt(0)",
          f"v_readfirstlane_b32 s{st0}, v{vT0}", f"s_cmp_lt_u32 s{st0}, {6*64}", f"s_cbranch_scc1 K2_IW{tag}")

    def finish():
        for r in range(8):
            a(f"v_rcp_f32 v{vT+r}, v{vDen+r}")
        for r in range(0, 8, 2):
            a(f"v_pk_mul_f32 {vr(vNum+r,2)}, {vr(vNum+r,2)}, {vr(vT+r,2)}")
        for r in range(4):
            a(f"v_cvt_pk_bf16_f32 v{vT+r}, v{vNum+2*r}, v{vNum+2*r+1}")
        a(f"buffer_store_dwordx4 {vr(vT,4)}, v{vSt}, {sr(sS,4)}, s{sSo} offen sc1")

    if OPT["tw2"]:
        a(f"s_cmp_lg_u32 s{sw}, 15", "s_cbranch_scc1 K2_NOPF", f"v_lshlrev_b32 v{vT2}, 7, v{vLane}", f"s_lshl_b32 s{st0}, s{srng}, 13",
          f"buffer_load_dword v{vT3}, v{vT2}, {sr(sF,4)}, s{st0} offen", "K2_NOPF:")
    if OPT["stag"]:
        a(f"s_lshl_b32 s{st0}, s{sw}, 2", f"s_add_u32 s{st0}, s{st0}, {B_GO}", f"v_mov_b32 v{vGo}, s{st0}",
          f"s_cmp_lt_u32 s{sw}, 4", "s_cbranch_scc1 K2_GO", f"v_subrev_u32 v{vT0}, 16, v{vGo}")
        if OPT["stag"] >= 3:
            a(f"s_cmp_lt_u32 s{sw}, {4*(OPT['stag'] - 1)}", "s_cbranch_scc1 K2_IWA")
        a("K2_WAITGO:", f"ds_read_b32 v{vT1}, v{vT0}", "s_waitcnt lgkmcnt(0)", f"v_readfirstlane_b32 s{st0}, v{vT1}",
          f"s_cmp_eq_u32 s{st0}, 0", "s_cbranch_scc1 K2_WAITGO")
        if OPT["estart"]:
            image_wait("A")
        a("K2_GO:")
    if OPT["prio"]:
        a("s_setprio 3")
    a("K2_GROUP:")
    a(f"v_add_u32 v{vT0}, s{sg}, v{vMetL}", f"s_mov_b32 s{sP+2}, {N}",
      f"ds_read_u16 v{vEll}, v{vT0} offset:{B_META}", f"ds_read_u16 v{vQi}, v{vT0} offset:{B_META + 2}",
      f"ds_read_b32 v{vDeg}, v{vT0} offset:{B_META + 4}")
    if OPT["prespread"]:
        a(f"s_lshr_b32 s{sPr}, s{sg}, 6", f"s_sub_u32 s{sPr}, s{sPr}, 16", f"s_cmp_lt_u32 s{sPr}, 16", f"s_cselect_b32 s{sPn}, 6, 0",
          f"s_lshr_b32 s{st0}, s{sPr}, 1", f"s_lshl_b32 s{st0}, s{st0}, 15", f"s_and_b32 s{st1}, s{sPr}, 1", f"s_mul_i32 s{st1}, s{st1}, 6144",
          f"s_mul_i32 s{sPl}, s{sPr}, 6144", f"s_add_u32 s{sPr}, s{st0}, s{st1}", f"s_add_u32 s{sPl}, s{sPl}, {K2_BB}")
    elif not OPT["diag"] & 8:
        a(f"s_lshr_b32 s{sdmax}, s{sg}, 6", f"s_sub_u32 s{sdmax}, s{sdmax}, 16", f"s_cmp_lt_u32 s{sdmax}, 16", "s_cbranch_scc1 K2_PRE")
    a("K2_PRED:")
    a("s_waitcnt lgkmcnt(2)")
    for i in range(NI):
        src_read(i)
    a(f"v_add_u32 v{vEe}, v{vEll}, v{vHoff}", f"s_waitcnt lgkmcnt({NI})")
    a(f"buffer_load_dwordx4 {vr(vZ+16,4)}, {vr(vQi,2)}, {sr(sQ,4)}, 0 idxen offen")
    e_read(0)
    a(f"v_readlane_b32 s{sdmax}, v{vDeg}, 0", f"v_readlane_b32 s{sdmin}, v{vDeg}, 28")
    for i in range(NI):
        a(f"s_waitcnt lgkmcnt({NI-i})")
        gather(i)
    if DP == 2:
        src_read(4)
        src_read(5)
        a("s_waitcnt lgkmcnt(2)")
        a(shift)
        e_read(1)
    else:
        for pr in (1, 2):
            src_read(2 * pr)
            src_read(2 * pr + 1)
            if pr == 1:
                a("s_waitcnt lgkmcnt(2)", shift)
                e_read(1)
                a("s_waitcnt lgkmcnt(1)")
            else:
                a("s_waitcnt lgkmcnt(0)")
            gather(2 * pr)
            gather(2 * pr + 1)
        src_read(6)
        src_read(7)
    if not OPT["late"]:
        a("s_mov_b64 exec, 1", f"ds_add_rtn_u32 v{vNxt}, v{vCtr}, v{vInc}", "s_mov_b64 exec, -1")
    finish()
    a(f"s_waitcnt vmcnt({2*DP + 1})")
    if OPT["stag"] == 2:
        a(f"ds_write_b32 v{vGo}, v{vGo}")
    for q in range(4):
        a(f"v_mfma_f32_4x4x4_16b_bf16 {vr(vQ+4*q,4)}, {vr(vI4,2)}, {vr(vZ+16+2*(q&1),2)}, 0")
    a("s_nop 3")
    a(mhi(0))
    a(f"s_lshl_b32 s{sSo}, s{sg}, 7", f"s_lshl_b32 s{st0}, s{sk}, 10", f"s_add_u32 s{sSo}, s{sSo}, s{st0}", "s_nop 6", f"s_waitcnt vmcnt({2*DP - 1})")
    if OPT["stag"] in (1, 3, 4, 5):
        a(f"ds_write_b32 v{vGo}, v{vGo}")
    a(m4(0, 0), m4(0, 1), m4(1, 0), m4(1, 1))
    a("s_waitcnt lgkmcnt(0)")
    gather(2 * DP)
    gather(2 * DP + 1)
    a(shift)
    src_read(2 * DP + 2)
    src_read(2 * DP + 3)
    e_read(2)
    if OPT["prio"]:
        if OPT["endg"]:
            a(f"s_mov_b32 s{seg}, 0", f"s_cmp_lt_u32 s{sg}, {OPT['endg']*64}", "s_cbranch_scc1 K2_PRX", "s_setprio 2", f"s_mov_b32 s{seg}, 1",
              f"s_sub_u32 s{st0}, s{sdmax}, {OPT['eg1']}", f"s_cselect_b32 s{st0}, 0, s{st0}", f"s_min_u32 s{sdmin}, s{sdmin}, s{st0}", "K2_PRX:")
        elif OPT["prio"] == 1:
            a(f"s_cmp_lt_u32 s{sg}, {16*64}", "s_cbranch_scc1 K2_PRX", "s_setprio 2", f"s_cmp_lt_u32 s{sg}, {24*64}", "s_cbranch_scc1 K2_PRX",
              "s_setprio 1", f"s_cmp_lt_u32 s{sg}, {32*64}", "s_cbranch_scc1 K2_PRX", "s_setprio 0", "K2_PRX:")
        else:
            a(f"s_cmp_lt_u32 s{sg}, {16*64}", "s_cbranch_scc1 K2_PRX", "s_setprio 2", f"s_cmp_lt_u32 s{sg}, {OPT['prio']*64}",
              "s_cbranch_scc1 K2_PRX", "s_setprio 1", "K2_PRX:")
    a("s_nop 1" if OPT["prio"] else "s_nop 3")
    if STAMPS and not OPT["light"]:
        a("s_mov_b32 m0, s99", "s_add_u32 s99, s99, 1")
        a.stamp("m0")

    NP = MAXDEG // 2
    for i in range(MAXDEG):
        z = Z(i)
        p = i >> 1
        a(f"s_cmp_le_u32 s{sdmin}, {i}", f"s_cbranch_scc1 K2_OOL{i}", f"K2_S{i}:")
        ex = [f"v_exp_f32 v{vT+r}, v{z+r}" for r in range(8)]
        num_src = Z(0) if i == 1 else vNum
        if i == 0:
            upd = ["s_nop 0"] + [f"v_pk_add_f32 {vr(vDen+r,2)}, {vr(vT+r,2)}, {sr(sOne,2)}" for r in range(0, 8, 2)]
        else:
            upd = [f"v_pk_fma_f32 {vr(z+r,2)}, {vr(z+r,2)}, {vr(vDen+r,2)}, {vr(num_src+r,2)}" for r in range(0, 8, 2)]
            upd += [f"v_pk_fma_f32 {vr(vNum+r,2)}, {vr(num_src+r,2)}, {vr(vT+r,2)}, {vr(z+r,2)}" for r in range(0, 8, 2)]
            upd += [f"v_pk_fma_f32 {vr(vDen+r,2)}, {vr(vDen+r,2)}, {vr(vT+r,2)}, {vr(vDen+r,2)}" for r in range(0, 8, 2)]
        if (i & 1) == 0:
            if OPT["prespread"] and 1 <= p <= 6:
                a(f"s_cmp_lg_u32 s{sPn}, 0", f"s_cbranch_scc1 K2_PS{p}", f"K2_PS{p}D:")
            if p + 1 < NP:
                a(*([] if OPT["diag"] & 1 else [mhi(p + 1)]), *ex)
            else:
                a(*ex)
            a(*upd)
        else:
            if p + 1 < NP:
                younger = 2 * (min(p + DP, NP - 1) - (p + 1)) + (1 if p + 1 < DP else 0)
                a(f"s_waitcnt vmcnt({younger})")
                if p == DP - 1:
                    a(f"s_cmp_lg_u32 s{spend}, 0", "s_cbranch_scc1 K2_CNT", "K2_CNTD:")
                if OPT["diag"] & 2:
                    a(*ex[0:4])
                else:
                    a(m4(2*p+2, 0), ex[0], m4(2*p+2, 1), ex[1], m4(2*p+3, 0), ex[2], m4(2*p+3, 1), ex[3])
            else:
                a(*ex[0:4])
            if p + 2 < NP:
                a("s_waitcnt lgkmcnt(0)")
            g = p + 1 + DP
            if g < NP:
                if OPT["clip"] == 1:
                    a(f"s_cmp_gt_u32 s{sdmax}, {2*g}", f"s_cselect_b32 s{sP+2}, {N}, 0")
                if OPT["clip"] == 2:
                    a(f"s_cmp_gt_u32 s{sdmax}, {2*g}", f"s_mov_b64 {sr(sEx,2)}, exec", "s_cselect_b64 exec, exec, 0")
                if OPT["diag"] & 4:
                    a(f"s_mov_b32 s{sP+2}, 0")
                gather(2 * g)
                gather(2 * g + 1)
                if OPT["clip"] == 2:
                    a(f"s_mov_b64 exec, {sr(sEx,2)}")
            a(*ex[4:8])
            if p + 2 < NP:
                a(shift)
            if g + 1 < NP:
                src_read(2 * g + 2)
                src_read(2 * g + 3)
            if p + 3 < NP:
                e_read(p + 3)
            a(*upd)
    a("K2_FIN:")
    if OPT["late"]:
        a("s_mov_b64 exec, 1", f"ds_add_rtn_u32 v{vNxt}, v{vCtr}, v{vInc}")
    a("s_mov_b64 exec, -1")
    if OPT["prio"]:
        a("s_setprio 3")
    if OPT["prespread"]:
        a("K2_PSFD:", f"s_cmp_lg_u32 s{sPn}, 0", "s_cbranch_scc1 K2_PSF")
    a(f"s_cmp_lg_u32 s{spend}, 0", "s_cbranch_scc1 K2_CNT2", "K2_CNT2D:", f"s_lshr_b32 s{spend}, s{sg}, 10",
      f"s_add_u32 s{spend}, s{spend}, 1", f"s_cmp_lt_u32 s{spend}, 3", f"s_cselect_b32 s{spend}, s{spend}, 0")
    a(f"v_pk_mul_f32 {vr(vT0,2)}, {vr(vDen,2)}, {vr(vDen+2,2)}", f"v_pk_mul_f32 {vr(vT2,2)}, {vr(vNum,2)}, {vr(vNum+2,2)}",
      f"v_pk_fma_f32 {vr(vT0,2)}, {vr(vDen+4,2)}, {vr(vDen+6,2)}, {vr(vT0,2)}",
      f"v_pk_fma_f32 {vr(vT2,2)}, {vr(vNum+4,2)}, {vr(vNum+6,2)}, {vr(vT2,2)}",
      f"v_pk_fma_f32 {vr(vT0,2)}, {vr(vT2,2)}, 0, {vr(vT0,2)} op_sel_hi:[1,0,1]",
      f"v_add_f32 v{vT0}, v{vT0}, v{vT1}", f"v_cmp_ngt_f32 vcc, s{sBig}, v{vT0}",
      "s_waitcnt lgkmcnt(0)", f"v_readfirstlane_b32 s{sg}, v{vNxt}")
    if not OPT["diag"]:
        a("s_cbranch_vccnz K2_SAFE")
    a("K2_NEXT:")
    if OPT["estart"]:
        a(f"s_cmp_lt_u32 s{sw}, 4", "s_cbranch_scc1 K2_IWB", "K2_IWBD:")
    if STAMPS and not OPT["light"]:
        a("s_mov_b32 m0, s99", "s_add_u32 s99, s99, 1")
        a.stamp("m0")
        a("s_mov_b32 m0, s99", "s_add_u32 s99, s99, 1", f"v_writelane_b32 v31, s{sdmax}, m0")
    a(f"s_add_u32 s{sg}, s{sg}, {16*64}", f"s_cmp_lt_u32 s{sg}, {NGRP*64}", "s_cbranch_scc1 K2_GROUP")

    vA, vA0, vA2, vB2, vAcc = 8, 24, 25, 28, 48
    if DP == 3:
        vCtr, vInc, vL16 = 126, 123, 124
    vB = [32, 36, 40, 44] + list(range(88, 120, 4)) + [72, 76, 80, 84]
    vMa, vCol, vRed, vWa = 120, 121, 122, 125
    scg, skh, sact, stk = sM, sM + 1, sM + 2, sM + 3
    sB2 = sPf

    def b_global(first, gentle):
        a(f"s_lshl_b32 s{st0}, s{scg}, 15", f"s_lshl_b32 s{st1}, s{skh}, 14", f"s_add_u32 s{st0}, s{st0}, s{st1}")
        for n in range(first, 16):
            if n % 4 == 0 and n:
                a(f"s_add_u32 s{st0}, s{st0}, {4096 if n > first else 1024*n}")
            if gentle and n > first and n % OPT["bb"] == 0:
                a("s_waitcnt vmcnt(0)")
            a(f"buffer_load_dwordx4 {vr(vB[n],4)}, v{vL16}, {sr(sF,4)}, s{st0} offen offset:{1024*(n % 4)}")

    def relocate():
        if DP == 3:
            a("s_waitcnt vmcnt(0)", "v_mov_b32 v126, v20", "v_mov_b32 v123, v21", "v_mov_b32 v124, v22")

    def roles():
        a(f"s_and_b32 s{scg}, s{sw}, 7", f"s_lshr_b32 s{skh}, s{sw}, 3", f"s_and_b32 s{st0}, s{sk}, 1",
          f"s_lshr_b32 s{sact}, s{scg}, 2", f"s_xor_b32 s{sact}, s{sact}, s{st0}")

    def b_loads(tag):
        a(f"s_cmp_eq_u32 s{skh}, 0", f"s_cbranch_scc1 K2_BL{tag}")
        b_global(0, tag == "B")
        a(f"s_branch K2_BX{tag}", f"K2_BL{tag}:")
        b_global(12, tag == "B")
        a(f"K2_BX{tag}:")

    def lds_spin(tag, word, least):
        a(f"K2_SP{tag}:", f"ds_read_b32 v{vT0}, v{vCtr} offset:{B_CNTA + word - B_CTR}", "s_waitcnt lgkmcnt(0)",
          f"v_readfirstlane_b32 s{st0}, v{vT0}", f"s_cmp_lt_u32 s{st0}, {least}", f"s_cbranch_scc1 K2_SP{tag}")

    def ticket(word):
        a("s_mov_b64 exec, 1", f"ds_add_rtn_u32 v{vT0}, v{vCtr}, v{vInc} offset:{B_CNTA + word - B_CTR}", "s_mov_b64 exec, -1",
          "s_waitcnt lgkmcnt(0)", f"v_readfirstlane_b32 s{stk}, v{vT0}")

    def fetch(t, dst):
        a(f"s_cmp_lg_u32 s{stk}, 0", f"s_cbranch_scc1 K2_SPF{t}")
        a("s_mov_b64 exec, 0xff", f"v_lshlrev_b32 v{vT2}, 7, v{vLane}", f"s_mov_b32 s{st1}, 0", f"K2_P{t}:",
          f"buffer_load_dword v{vT1}, v{vT2}, {sr(sFl,4)}, 0 offen offset:{1024*t} sc1", f"s_add_u32 s{st1}, s{st1}, 1", "s_waitcnt vmcnt(0)",
          f"v_cmp_eq_u32 vcc, 0, v{vT1}", f"s_cbranch_vccz K2_P{t}D", f"s_cmp_lt_u32 s{st1}, 0x400000", f"s_cbranch_scc1 K2_P{t}",
          f"K2_P{t}D:", "s_mov_b64 exec, -1", f"ds_write_b32 v{vCtr}, v{vInc} offset:{B_CNTA + 20 + 4*t - B_CTR}")
        lds_spin(f"F{t}", 20 + 4 * t, 1)
        a(f"s_lshr_b32 s{st0}, s{sk}, {1 if t == 2 else 0}", f"s_add_u32 s{st0}, s{st0}, {8*t}", f"s_lshl_b32 s{st0}, s{st0}, 14",
          f"s_lshl_b32 s{st1}, s{stk}, 6", f"s_add_u32 s{st0}, s{st0}, s{st1}")
        for q in range(4):
            a(f"buffer_load_dwordx4 {vr(vA+4*q,4)}, v{vL16}, {sr(sS,4)}, s{st0} offen offset:{1024*q} sc1")
        a(f"s_add_u32 s{st1}, s{st1}, {dst}", f"v_add_u32 v{vWa}, s{st1}, v{vL16}")
        for q in range(4):
            a(f"s_waitcnt vmcnt({3-q})", f"ds_write_b128 v{vWa}, {vr(vA+4*q,4)} offset:{1024*q}")
        if OPT["split"] and t < 2:
            a("s_waitcnt lgkmcnt(0)", "s_mov_b64 exec, 1", f"ds_add_u32 v{vCtr}, v{vInc} offset:{B_CNTA + 32 + 4*t - B_CTR}", "s_mov_b64 exec, -1")

    relocate()
    roles()
    ticket(12)
    a(f"s_cmp_lt_u32 s{stk}, {OPT['early']*64}", "s_cbranch_scc1 K2_TE", f"s_cmp_lg_u32 s{spend}, 0", "s_cbranch_scc1 K2_TL")
    b_loads("A")
    finish()
    a.stamp(20)
    a("s_branch K2_TC", "K2_TL:")
    finish()
    a.stamp(20)
    b_loads("C")
    a(f"s_cmp_eq_u32 s{skh}, 0", "s_cbranch_scc1 K2_TL0", "s_waitcnt vmcnt(16)", "s_branch K2_TL1", "K2_TL0:", "s_waitcnt vmcnt(4)", "K2_TL1:")
    count("L")
    a("s_branch K2_TC", "K2_TE:")
    finish()
    a.stamp(20)
    a("K2_TAIL:", "s_setprio 0" if not OPT["hprio"] else "s_nop 0", f"s_cmp_eq_u32 s{spend}, 0", "s_cbranch_scc1 K2_TAIL2", "s_waitcnt vmcnt(0)")
    count("C")
    a("K2_TAIL2:")
    b_loads("B")
    a("K2_TC:", "s_setprio 0" if not OPT["hprio"] else "s_nop 0")
    a.srd(sB2, 18, 0, 512)
    a(f"s_cmp_ge_u32 s{stk}, {4*64}", "s_cbranch_scc1 K2_NF0")
    fetch(0, K2_AB)
    a(f"s_mov_b32 s{stk}, {8*64}", "K2_NF0:")
    a(f"s_cmp_lt_u32 s{stk}, {8*64}", "s_cbranch_scc1 K2_SPW", "s_setprio 0", f"s_cmp_eq_u32 s{skh}, 0", "s_cbranch_scc0 K2_T1")
    lds_spin("W", 4, 16 * 64)
    a(f"s_cmp_eq_u32 s{skh}, 0", "s_cbranch_scc0 K2_T1")
    a(f"s_mul_i32 s{st0}, s{scg}, 12288", f"s_add_u32 s{st0}, s{st0}, {K2_BB}", f"v_add_u32 v{vT0}, s{st0}, v{vL16}")
    for n in range(12):
        a(f"ds_read_b128 {vr(vB[n],4)}, v{vT0} offset:{1024*n}")
    a("K2_T1:")
    if OPT["f2early"]:
        a("s_waitcnt vmcnt(0)", f"s_mov_b32 s{spend}, 3")
        count("D")
    a(f"s_cmp_ge_u32 s{stk}, {8*64}", "s_cbranch_scc1 K2_NF1", f"s_sub_u32 s{stk}, s{stk}, {4*64}")
    fetch(1, K2_AB + 16384)
    a("K2_NF1:")
    a(f"v_and_b32 v{vT0}, 15, v{vLane}", f"v_lshlrev_b32 v{vT0}, 2, v{vT0}", f"s_lshl_b32 s{st0}, s{scg}, 6",
      f"v_add_u32 v{vCol}, s{st0}, v{vT0}", f"buffer_load_dword v{vB2}, v{vCol}, {sr(sB2,4)}, 0 offen")
    a(f"v_and_b32 v{vT0}, 7, v{vLane}", f"v_lshlrev_b32 v{vA2}, 6, v{vT0}", f"v_bfe_u32 v{vT1}, v{vLane}, 3, 1",
      f"v_lshl_add_u32 v{vA2}, v{vT1}, 13, v{vA2}", f"v_lshrrev_b32 v{vT3}, 4, v{vLane}", f"v_lshrrev_b32 v{vT0}, 2, v{vT0}",
      f"v_lshlrev_b32 v{vT0}, 1, v{vT0}", f"v_xor_b32 v{vT0}, v{vT0}, v{vT3}", f"v_lshl_add_u32 v{vA2}, v{vT0}, 4, v{vA2}",
      f"s_lshl_b32 s{st0}, s{skh}, 12", f"s_add_u32 s{st0}, s{st0}, {K2_BB}", f"v_add_u32 v{vA2}, s{st0}, v{vA2}",
      f"v_add_u32 v{vA0}, {K2_AB - K2_BB}, v{vA2}")
    a(f"v_lshlrev_b32 v{vMa}, 5, v{vT3}", f"v_add_u32 v{vMa}, {B_META}, v{vMa}",
      f"s_mul_i32 s{st0}, s{scg}, 6144", f"s_add_u32 s{st0}, s{st0}, {K2_BB + 16384}", f"v_add_u32 v{vRed}, s{st0}, v{vL16}",
      f"s_mov_b32 s{sK}, {NLN2}")
    if OPT["split"]:
        lds_spin("E", 12, 16 * 64)
        lds_spin("R0", 32, 4 * 64)
    else:
        a("s_waitcnt lgkmcnt(0)", "s_barrier")
    a.stamp(21)
    if not OPT["f2early"]:
        a("s_waitcnt vmcnt(0)", f"s_mov_b32 s{spend}, 3")
        count("D")

    def compute(tiles):
        a.lg = []
        nt = len(tiles)
        depth = 4 // nt

        def f_read(s):
            for i, t in enumerate(tiles):
                base, off = (vA2, 0) if t == 2 else (vA0, 16384 * t)
                a.lds(f"ds_read_b128 {vr(vA + 4*((s % depth)*nt + i), 4)}, v{base} offset:{off + 1024*(s >> 1) + 512*(s & 1)}", f"f{s}")
        for s in range(depth - 1):
            f_read(s)
        for s in range(8):
            if s + depth - 1 < 8:
                f_read(s + depth - 1)
            a.wait(lg=f"f{s}")
            for i, t in enumerate(tiles):
                for b in range(2):
                    acc = vAcc + 8 * t + 4 * b
                    a(f"v_mfma_f32_16x16x32_bf16 {vr(acc,4)}, {vr(vA + 4*((s % depth)*nt + i), 4)}, {vr(vB[2*s + b], 4)}, {'0' if s == 0 else vr(acc, 4)}")

    def give(t):
        a("s_nop 7")
        for q in range(2):
            a(f"ds_write_b128 v{vRed}, {vr(vAcc+8*t+4*q,4)} offset:{2048*t + 1024*q}")

    def out_tile(t):
        acc = vAcc + 8 * t
        a(f"s_lshr_b32 s{st0}, s{sk}, {1 if t == 2 else 0}", f"s_add_u32 s{st0}, s{st0}, {8*t}", f"s_lshl_b32 s{st0}, s{st0}, 7",
          f"v_add_u32 v{vT0}, s{st0}, v{vMa}",
          f"ds_read_b128 {vr(vA,4)}, v{vT0}", f"ds_read_b128 {vr(vA+4,4)}, v{vT0} offset:16")
        for q in range(2):
            a(f"ds_read_b128 {vr(vA+8+4*q,4)}, v{vRed} offset:{2048*t + 1024*q}")
        a("s_waitcnt lgkmcnt(2)")
        for r in range(4):
            a(f"v_lshrrev_b32 v{vA+2*r}, 16, v{vA+2*r}", f"v_cvt_f32_u32 v{vA+2*r+1}, v{vA+2*r+1}",
              f"v_lshl_add_u32 v{vA+2*r}, v{vA+2*r}, 9, v{vCol}")
        a("s_waitcnt lgkmcnt(0)")
        for r in range(8):
            a(f"v_add_f32 v{acc+r}, v{acc+r}, v{vA+8+r}")
        for r in range(4):
            a(f"v_mul_f32 v{vT0}, v{vA+2*r+1}, v{vB2}", f"v_mul_f32 v{vT1}, v{vA+2*r+1}, v{vB2+1}",
              f"v_fma_f32 v{acc+r}, v{acc+r}, s{sK}, v{vT0}", f"v_fma_f32 v{acc+4+r}, v{acc+4+r}, s{sK}, v{vT1}",
              f"v_cvt_pk_bf16_f32 v{acc+r}, v{acc+r}, v{acc+4+r}",
              f"buffer_store_dword v{acc+r}, v{vA+2*r}, {sr(sO,4)}, 0 offen{' sc1' if OPT['sc3'] else ''}")

    if True:
        if OPT["split"]:
            compute((0,))
            lds_spin("R1", 36, 4 * 64)
            compute((1,))
            lds_spin("D", 8, 16 * 64)
        else:
            compute((0, 1))
        a(f"s_cmp_eq_u32 s{skh}, 0", "s_cbranch_scc1 K2_G0")
        give(0)
        a("s_branch K2_G1", "K2_G0:")
        give(1)
        a("K2_G1:", "s_waitcnt vmcnt(0)", f"v_and_b32 v{vB2+1}, 0xffff0000, v{vB2}", f"v_lshlrev_b32 v{vB2}, 16, v{vB2}")
        a.stamp(23)
        ticket(16)
        a(f"s_cmp_ge_u32 s{stk}, {4*64}", "s_cbranch_scc1 K2_NF2")
        fetch(2, K2_BB)
        a("K2_NF2:")
        a("s_waitcnt lgkmcnt(0)", "s_barrier")
        a.stamp(24)
        a(f"s_cmp_lg_u32 s{sact}, 0", "s_cbranch_scc1 K2_IDLE2")
        compute((2,))
        a(f"s_cmp_eq_u32 s{skh}, 0", "s_cbranch_scc0 K2_O1")
        out_tile(0)
        a("s_barrier")
        out_tile(2)
        a("s_branch K2_OX", "K2_O1:")
        give(2)
        a("s_waitcnt lgkmcnt(0)", "s_barrier")
        out_tile(1)
        a("s_branch K2_OX", "K2_IDLE2:", f"s_cmp_eq_u32 s{skh}, 0", "s_cbranch_scc1 K2_IDLE3")
        out_tile(1)
        a("s_barrier", "s_branch K2_OX", "K2_IDLE3:")
        out_tile(0)
        a("s_barrier")
    a("K2_OX:")
    a.stamp_dump(sBl, 20, sw, 16)
    a("s_endpgm")

    if DP == 3:
        vCtr, vInc, vL16 = 20, 21, 22
    if OPT["estart"]:
        image_wait("B")
        a("s_branch K2_IWBD")
    a("K2_CNT:")
    count("A")
    a("s_nop 3", "s_branch K2_CNTD")
    a("K2_CNT2:", "s_waitcnt vmcnt(0)")
    count("B")
    a("s_branch K2_CNT2D")

    if OPT["prespread"]:
        for p in list(range(1, 7)) + ["F"]:
            a(f"K2_PS{p}:", f"s_mov_b64 {sr(sEx,2)}, exec", "s_mov_b64 exec, -1", f"s_mov_b32 m0, s{sPl}", f"s_sub_u32 s{sPn}, s{sPn}, 1",
              f"buffer_load_dwordx4 v{vL16}, {sr(sF,4)}, s{sPr} offen lds", f"s_add_u32 s{sPr}, s{sPr}, 1024", f"s_add_u32 s{sPl}, s{sPl}, 1024",
              f"s_mov_b64 exec, {sr(sEx,2)}", f"s_branch K2_PS{p}D")
    a("K2_PRE:")
    if OPT["qtouch"]:
        a(f"s_cmp_ge_u32 s{sdmax}, 5", "s_cbranch_scc1 K2_PRE2", f"s_lshl_b32 s{st0}, s{sdmax}, 6", f"v_add_u32 v{vT2}, s{st0}, v{vLane}",
          f"buffer_load_dword v{vT3}, v{vT2}, {sr(sQ,4)}, 0 idxen", "K2_PRE2:")
    w2_preload(sdmax)
    a("s_branch K2_PRED")

    for i in range(MAXDEG):
        a(f"K2_OOL{i}:")
        if i == 0:
            for r in range(8):
                a(f"v_mov_b32 v{vNum+r}, 0", f"v_mov_b32 v{vDen+r}, 1.0")
        if i == 1:
            for r in range(8):
                a(f"v_mov_b32 v{vNum+r}, v{Z(0)+r}")
        a(f"s_cmp_le_u32 s{sdmax}, {i}", "s_cbranch_scc1 K2_FIN")
        a(f"v_cmpx_lt_u32 vcc, {i}, v{vDeg}")
        if OPT["endg"]:
            a(f"s_cmp_eq_u32 s{seg}, 0", f"s_cbranch_scc1 K2_OX{i}", f"s_cmp_gt_u32 s{sdmax}, {i + OPT['eg1']}", f"s_cbranch_scc1 K2_OX{i}",
              "s_setprio 1", f"s_cmp_gt_u32 s{sdmax}, {i + OPT['eg2']}", f"s_cbranch_scc1 K2_OX{i}", "s_setprio 0", f"K2_OX{i}:", "s_nop 1")
        else:
            a("s_nop 3")
        a(f"s_branch K2_S{i}")

    a("K2_SAFE:")
    a("s_waitcnt vmcnt(0) lgkmcnt(0)", f"s_mov_b32 s{st0}, 0", f"s_mov_b32 s{sP+2}, {N}")
    for r in range(8):
        a(f"v_mov_b32 v{vNum+r}, 0")
    a("K2_SAFE_L:")
    a(f"s_cmp_ge_u32 s{st0}, s{sdmax}", "s_cbranch_scc1 K2_SAFE_E")
    a(f"v_cmpx_lt_u32 vcc, s{st0}, v{vDeg}")
    src_read(0)
    e_read(0)
    a("s_waitcnt lgkmcnt(0)")
    gather(0)
    a(shift, f"v_add_u32 v{vEll}, 32, v{vEll}", f"v_add_u32 v{vEe}, 32, v{vEe}", "s_nop 1")
    a(mhi(0), "s_nop 9", "s_waitcnt vmcnt(0)", m4(0, 0), m4(0, 1), "s_nop 4")
    for r in range(8):
        a(f"v_exp_f32 v{vT+r}, v{vZ+r}")
    for r in range(0, 8, 2):
        a(f"v_pk_add_f32 {vr(vT+r,2)}, {vr(vT+r,2)}, {sr(sOne,2)}")
    for r in range(8):
        a(f"v_rcp_f32 v{vT+r}, v{vT+r}")
    a("s_nop 0")
    for r in range(0, 8, 2):
        a(f"v_pk_fma_f32 {vr(vNum+r,2)}, {vr(vZ+r,2)}, {vr(vT+r,2)}, {vr(vNum+r,2)}")
    a(f"s_add_u32 s{st0}, s{st0}, 1", "s_branch K2_SAFE_L")
    a("K2_SAFE_E:", "s_mov_b64 exec, -1")
    for r in range(8):
        a(f"v_mov_b32 v{vDen+r}, 1.0")
    a("s_branch K2_NEXT")

    sDst, sSrc, sE = sBl, sPf, sW1
    snode, sbase, sdeg, sbit, ssrc, se, sm = sM, sM + 1, sM + 2, sM + 3, sM + 4, sM + 5, sM + 6
    vc, vq, vacc, vd, vs, ve, vsb, vz = 32, 33, 34, 36, 40, 44, 48, 49
    a("K2_SLOW:")
    w2_preload(sw)
    a(f"s_mov_b32 s{sg}, s{sw}", f"v_cmp_gt_u32 vcc, 320, v0", f"v_lshlrev_b32 v{vT0}, 16, v0", f"v_mov_b32 v{vT1}, 0",
      f"v_lshlrev_b32 v{vT2}, 3, v0", "s_and_saveexec_b64 s[70:71], vcc", f"ds_write_b64 v{vT2}, {vr(vT0,2)} offset:{B_META}",
      "s_mov_b64 exec, -1", "s_waitcnt lgkmcnt(0)", "s_barrier")
    a.srd(sW1, 12, 512 * 1024, 1024)
    a(f"v_and_b32 v{vT0}, 1, v{vLane}", f"v_lshlrev_b32 v{vT0}, 6, v{vT0}", f"v_and_b32 v{vT1}, 62, v{vLane}",
      f"v_add_u32 v{vT0}, v{vT0}, v{vT1}", f"s_lshl_b32 s{st1}, s{sk}, 7")
    a(f"buffer_load_ushort v{vc}, v{vT0}, {sr(sW1,4)}, s{st1} offen", "s_waitcnt vmcnt(0)",
      f"v_lshlrev_b32 v{vc}, 16, v{vc}", f"v_mul_f32 v{vc}, s{sK}, v{vc}")
    a.srd(sDst, 10, 0, E * 4)
    a.srd(sSrc, 8, 0, E * 4)
    a.srd(sE, 6, 0, E * 2)
    a(f"v_lshlrev_b32 v{vIdx+1}, 1, v{vLane}", f"v_lshlrev_b32 v{vT2}, 4, v{vLane}", f"v_lshlrev_b32 v{vT3}, 3, v{vLane}")
    a(f"v_lshrrev_b32 v{vsb}, 5, v{vLane}", f"v_lshlrev_b32 v{vsb}, 9, v{vsb}", f"v_and_b32 v{vT0}, 31, v{vLane}",
      f"v_lshl_add_u32 v{vsb}, v{vT0}, 1, v{vsb}")
    a("K2_SLOW_N:")
    a(f"s_cmp_ge_u32 s{sg}, s{scnt}", "s_cbranch_scc1 K2_SLOW_E")
    a(f"s_mul_i32 s{snode}, s{srng}, {RNG}", f"s_add_u32 s{snode}, s{snode}, s{sg}", f"v_mov_b32 v{vIdx}, s{sg}",
      f"buffer_load_ushort v{vq}, {vr(vIdx,2)}, {sr(sQ,4)}, 0 idxen offen",
      f"v_mov_b32 v{vacc}, 0", f"s_mov_b32 s{sbase}, 0", f"s_mov_b32 s{sdeg}, 0", "s_waitcnt vmcnt(0)",
      f"v_lshlrev_b32 v{vq}, 16, v{vq}")
    a("K2_SLOW_C:")
    a(f"s_lshl_b32 s{st0}, s{sbase}, 2", f"s_lshl_b32 s{st1}, s{sbase}, 1")
    a(f"buffer_load_dwordx4 {vr(vd,4)}, v{vT2}, {sr(sDst,4)}, s{st0} offen",
      f"buffer_load_dwordx4 {vr(vs,4)}, v{vT2}, {sr(sSrc,4)}, s{st0} offen",
      f"buffer_load_dwordx2 {vr(ve+2,2)}, v{vT3}, {sr(sE,4)}, s{st1} offen", "s_waitcnt vmcnt(0)")
    a(f"v_lshlrev_b32 v{ve}, 16, v{ve+2}", f"v_and_b32 v{ve+1}, 0xffff0000, v{ve+2}",
      f"v_lshlrev_b32 v{ve+2}, 16, v{ve+3}", f"v_and_b32 v{ve+3}, 0xffff0000, v{ve+3}")
    for u in range(4):
        a(f"v_cmp_eq_u32 {sr(sm,2)}, s{snode}, v{vd+u}")
        a(f"K2_SLOW_M{u}:", f"s_cmp_eq_u64 {sr(sm,2)}, 0", f"s_cbranch_scc1 K2_SLOW_X{u}")
        a(f"s_ff1_i32_b64 s{sbit}, {sr(sm,2)}", f"s_bitset0_b64 {sr(sm,2)}, s{sbit}", f"s_add_u32 s{sdeg}, s{sdeg}, 1",
          f"v_readlane_b32 s{ssrc}, v{vs+u}, s{sbit}", f"v_readlane_b32 s{se}, v{ve+u}, s{sbit}", "s_nop 1",
          f"v_mov_b32 v{vIdx}, s{ssrc}", f"buffer_load_ushort v{vz}, {vr(vIdx,2)}, {sr(sP,4)}, 0 idxen offen",
          f"v_fma_f32 v{vT0}, s{se}, v{vc}, v{vq}", "s_waitcnt vmcnt(0)",
          f"v_lshlrev_b32 v{vz}, 16, v{vz}", f"v_add_f32 v{vz}, v{vz}, v{vT0}", f"v_exp_f32 v{vT0}, v{vz}", "s_nop 0",
          f"v_add_f32 v{vT0}, 1.0, v{vT0}", f"v_rcp_f32 v{vT0}, v{vT0}", "s_nop 0",
          f"v_fma_f32 v{vacc}, v{vz}, v{vT0}, v{vacc}", f"s_branch K2_SLOW_M{u}")
        a(f"K2_SLOW_X{u}:")
    a(f"s_add_u32 s{sbase}, s{sbase}, 256", f"s_cmp_lt_u32 s{sbase}, {E}", "s_cbranch_scc1 K2_SLOW_C")
    a(f"v_cvt_pk_bf16_f32 v{vacc}, v{vacc}, v{vacc}", f"s_lshl_b32 s{st0}, s{sg}, 3", f"v_mov_b32 v{vT0}, s{st0}",
      f"v_mov_b32 v{vT1}, s{sdeg}", f"ds_write_b32 v{vT0}, v{vT1} offset:{B_META + 4}",
      f"s_lshr_b32 s{st0}, s{sg}, 3", f"s_lshl_b32 s{st0}, s{st0}, 13", f"s_lshl_b32 s{st1}, s{sk}, 10", f"s_add_u32 s{st0}, s{st0}, s{st1}",
      f"s_and_b32 s{st1}, s{sg}, 7", f"s_lshl_b32 s{st1}, s{st1}, 6", f"s_add_u32 s{st0}, s{st0}, s{st1}",
      f"s_and_b32 s{st1}, s{sg}, 4", f"s_lshl_b32 s{st1}, s{st1}, 3", f"v_xor_b32 v{vT0}, s{st1}, v{vsb}")
    a(f"buffer_store_short v{vacc}, v{vT0}, {sr(sS,4)}, s{st0} offen sc1")
    a(f"s_add_u32 s{sg}, s{sg}, 16", "s_waitcnt vmcnt(0) lgkmcnt(0)", "s_branch K2_SLOW_N")
    a("K2_SLOW_E:", "s_waitcnt vmcnt(0) lgkmcnt(0)", "s_barrier")
    relocate()
    vCtr, vInc, vL16 = 126, 123, 124
    roles()
    ticket(12)
    a(f"s_mov_b32 s{spend}, 1")
    count("S")
    a(f"s_mov_b32 s{spend}, 2", "s_branch K2_TAIL")
    a("K2_END:", "s_endpgm")
    return a.lines, descriptor("k2_kernel", nv, 102 if STAMPS else 96)


def k4():
    a = Asm()
    header(a, "k4_kernel")
    if OPT["probe"]:
        assert STAMPS
        a("s_cmp_lg_u32 s2, 0", "s_cbranch_scc1 K4_END", "s_load_dwordx2 s[20:21], s[0:1], 80",
          "v_mov_b32 v1, 0", "v_mov_b32 v2, -1", "v_mov_b32 v3, 0")
        for k in range(3):
            a(f"ds_write_b64 v1, v[2:3] offset:{8*k}")
        a("s_waitcnt lgkmcnt(0)", "s_barrier")
        a.srd(24, 20, STAMP_OFF, 4 << 20)
        for k, (n, stride) in enumerate(((200, 8 * 128), (4096, 128))):
            for i in range((n + 1023) // 1024):
                a(f"v_add_u32 v4, {1024*i}, v0", f"v_cmp_gt_u32 vcc, {n}, v4", f"v_mul_u32_u24 v4, {stride}, v4",
                  f"s_mov_b32 s3, {k << 20}", "s_and_saveexec_b64 s[10:11], vcc", f"s_cbranch_execz K4_S{k}_{i}",
                  "buffer_load_dwordx2 v[6:7], v4, s[24:27], s3 offen offset:112", "s_waitcnt vmcnt(0)",
                  f"ds_min_u32 v1, v7 offset:{8*k}", f"ds_max_u32 v1, v6 offset:{8*k+4}", f"K4_S{k}_{i}:", "s_mov_b64 exec, -1")
        a("s_waitcnt lgkmcnt(0)", "s_barrier", "ds_read_b128 v[8:11], v1", "ds_read_b64 v[12:13], v1 offset:16", "s_waitcnt lgkmcnt(0)")
        if OPT["probe"] == 9:
            a("v_mov_b32 v2, 0", "ds_write_b32 v1, v2 offset:32", "s_waitcnt lgkmcnt(0)", "s_barrier")
            a(f"v_cmp_gt_u32 vcc, {OPT['pwn']}, v0", f"v_mul_u32_u24 v4, {OPT['pstride'] * 128}, v0",
              f"s_mov_b32 s3, {(OPT['pk'] << 20) + OPT['pw0'] * 128}", "s_and_saveexec_b64 s[10:11], vcc", "s_cbranch_execz K4_C",
              "buffer_load_dword v6, v4, s[24:27], s3 offen", f"buffer_load_dword v7, v4, s[24:27], s3 offen offset:{4*OPT['pidx']}",
              "s_waitcnt vmcnt(0)", "v_sub_u32 v6, v7, v6", "ds_max_u32 v1, v6 offset:32", "K4_C:", "s_mov_b64 exec, -1",
              "s_waitcnt lgkmcnt(0)", "s_barrier", "ds_read_b32 v9, v1 offset:32", "s_waitcnt lgkmcnt(0)",
              "v_mul_u32_u24 v9, 3277, v9", "v_lshrrev_b32 v9, 16, v9", "v_mov_b32 v8, 0")
        hi, lo = {9: (9, 8), 1: (9, 8), 2: (11, 10), 3: (13, 12), 4: (11, 8), 5: (10, 9), 6: (12, 11), 7: (8, 8)}[OPT["probe"]]
        a(f"v_sub_u32 v14, v{hi}, v{lo}", "v_min_u32 v14, 10000, v14", "v_mul_u32_u24 v14, 10, v14", "s_nop 0", "v_readfirstlane_b32 s12, v14",
          "s_memrealtime s[14:15]", "s_waitcnt lgkmcnt(0)", "K4_L:", "s_memrealtime s[16:17]", "s_waitcnt lgkmcnt(0)",
          "s_sub_u32 s16, s16, s14", "s_cmp_lt_u32 s16, s12", "s_cbranch_scc1 K4_L")
    a("K4_END:", "s_endpgm")
    return a.lines, descriptor("k4_kernel", 16, 32)


def main(path):
    head = [
        "; Edge-featured MPNN layer: out = segment_sum(silu([x[src], x[dst], e] @ w1 + b1) @ w2 + b2, dst)",
        "; k1: P = x@w1[0:256], Q = x@w1[256:512] + b1 (scaled by -log2e), edge partition by dst range, w2 re-layout",
        "; k2: per 64-channel slice, S[n] = sum over in-edges of z/(1+2^z), z = P[src] + Q[n] + e*c",
        ";     then out = -ln2 * (S @ w2) + deg * b2 after a hand-off among the eight slice workgroups of a range",
        "; kernarg: x, e_attr, src, dst, w1, b1, w2, b2, out, debug, ws (8 bytes each)",
        f"; @launch kernel=k1_kernel grid=(256,1,1) block=(512,1,1) lds={K1_LDS}",
        f"; @launch kernel=k2_kernel grid=(256,1,1) block=(1024,1,1) lds={K2_LDS}",
        '.amdgcn_target "amdgcn-amd-amdhsa--gfx950"',
        ".text",
    ]
    for i in range(3):
        if OPT["rep"] >> i & 1:
            j = [n for n, l in enumerate(head) if f"kernel=k{i+1}_kernel" in l][0]
            head.insert(j, head[j])
    if OPT["empty"] or OPT["probe"]:
        head.insert(5 if OPT["empty"] == 2 else 7, f"; @launch kernel=k4_kernel grid=(1,1,1) block=({1024 if OPT['probe'] else 64},1,1) lds=64")
    body, desc = [], []
    for f in (k1, k2) + ((k4,) if OPT["empty"] or OPT["probe"] else ()):
        b, d = f()
        body += b
        desc += d
    notes = {
        "k1_kernel:": "k1: workgroups 0-31 sort the edges, 212 compute P/Q tiles, the rest re-lay out w2 and w1[512]",
        "K1_PREP:": "w2 -> MFMA B fragments in the channel order of the slices",
        "K1_CPREP:": "-log2e * w1[512] -> A operand of the e*c product",
        "K1_SORT:": "edge sort, level 1: 5000 edges into 32 destination ranges; level 2 follows after a flag hand-off",
        "K1_D1:": "degree sort of the range's nodes, slot-major image of 8-node groups",
        "k2_kernel:": "k2: workgroup = (destination range, 64-channel slice); lane = 32*half + 4*node + piece",
        "K2_GROUP:": "group of 8 nodes: issue its first loads, finish and store the previous group",
        "K2_S0:": "edge slots: sum z/(1+2^z) kept as num/den, num' = num*(1+t) + z*den, den' = den*(1+t), t = 2^z",
        "K2_FIN:": "overflow guard of the num/den form, next group ticket",
        "K2_TC:": "output GEMM: fetch S tiles of the range once the eight slices have stored them",
        "K2_OOL0:": "lanes whose node has no more edges are masked off; exit after the longest node",
        "K2_SAFE:": "direct evaluation of a group whose denominator overflowed",
        "K2_SLOW:": "generic path for ranges that do not fit the fixed-size structures: scan the edge list per node",
    }
    commented = []
    for line in body:
        if line in notes and not line.endswith("_kernel:"):
            commented.append("    ; " + notes[line])
        commented.append(line)
        if line in notes and line.endswith("_kernel:"):
            commented.append("    ; " + notes[line])
    out = head + commented + ['.section .rodata,"a"'] + desc
    open(path, "w").write("\n".join(out) + "\n")


if __name__ == "__main__":
    if "--stamps" in sys.argv:
        STAMPS = True
        sys.argv.remove("--stamps")
    for arg in [x for x in sys.argv[1:] if "=" in x]:
        key, val = arg.split("=")
        assert key in OPT, key
        OPT[key] = int(val)
        sys.argv.remove(arg)
    main(sys.argv[1] if len(sys.argv) > 1 else "standalone__edge_featured_mpnn_mpnn__graph.s")
```

```python
import struct
import sys

N, E, D, H = 10000, 160000, 256, 512
TILE1, NT1 = 192, 53
NR = TILE1 * NT1
SS = NR * 128
P_OFF, Q_OFF, S_OFF = 0, 8 * SS, 16 * SS
RNG = 313
NCHUNK, CHUNK, CAP = 32, 5000, 224
R4BLK, R2BLK = NCHUNK * CAP * 4, NCHUNK * CAP * 2
R4_OFF = 16 * SS + 32 * 40 * 8192
R2_OFF = R4_OFF + 32 * R4BLK
NSLOT = 768
B_META = NSLOT * 32
B_FLAG = B_META + 2560
B_CTR = B_FLAG + 4
B_GO = B_CTR + 4
B_CNTA = B_GO + 64
BLOB = 27 * 1024
BLOB_OFF = R2_OFF + 32 * R2BLK
FL_OFF = BLOB_OFF + 32 * BLOB
W2F_OFF = FL_OFF + 32 * 4096
CF_OFF = W2F_OFF + 262144
WS_END = CF_OFF + 4096
SRB = 40 * 8192
MAXDEG = 48
NGRP = 40


def fbits(x):
    return struct.unpack("<I", struct.pack("<f", x))[0]


NLOG2E = fbits(-1.4426950408889634)
NLN2 = fbits(-0.6931471805599453)

assert all((d * 13401) >> 22 == d // RNG for d in range(10016))
assert all((q * 2341) >> 17 == q // 56 for q in range(2048))
assert all((q * 2341) >> 16 == q // 28 for q in range(1024))


STAMPS = False
OPT = dict(sc1=1, sc3=1, prio=1, empty=0, ipf=1, rot=1, pf=0, light=0, fine=0, la=6, pf0=2, x0pos=0, xrot=0, x1early=0, xspread=1, helper=0, ntx=0, ntw=0, nte=0, blobsc=1, xtouch=7, nto=0, ntw2=0, nolo=1, usem4=1, dup=0, rep=0, clip=1, pfearly=1, pfbar=0, k3opt=1, stag=0, pollf=0, bb=4, early=0, pairs=0, tw2=0, hprio=1, late=1, f2early=1, outearly=0, split=0, estart=1, depth=2, diag=0, nbk=8, snake=1, qtouch=0, prespread=0, initlate=1, ipfw=1, srcearly=0, skip3=1, cntearly=16, bsh=0, endg=0, eg1=8, eg2=4, rot3=0, k3w=1, probe=0, pk=0, pidx=0, pw0=0, pwn=0, pstride=1, pfq=0, pfw=1)
STAMP_OFF = 48 << 20


class Asm:
    def stamp_setup(self, vreg, kidx):
        self.st_v, self.st_n, self.st_k = vreg, 0, kidx
        if STAMPS:
            self(f"v_mov_b32 v{vreg}, 0", "s_memrealtime s[100:101]", "s_waitcnt lgkmcnt(0)", f"v_writelane_b32 v{vreg}, s100, 29")
            self.stamp()

    def stamp(self, idx=None):
        if STAMPS and not (OPT["light"] and idx not in ((27, 20) if OPT["light"] == 2 else (27,)) and self.st_n > 0):
            if idx is None:
                idx = self.st_n
                self.st_n += 1
            self("s_waitcnt lgkmcnt(0)", "s_memtime s[100:101]", "s_waitcnt lgkmcnt(0)", f"v_writelane_b32 v{self.st_v}, s100, {idx}")
            self.lg = []

    def stamp_dump(self, srd, wsreg, swave, nwaves, tmp=2):
        if not STAMPS:
            return
        self("s_waitcnt vmcnt(0)")
        self.stamp(27)
        self("s_memrealtime s[100:101]", "s_waitcnt lgkmcnt(0)", f"v_writelane_b32 v{self.st_v}, s100, 28")
        self("s_getreg_b32 s3, hwreg(HW_REG_HW_ID)", f"v_writelane_b32 v{self.st_v}, s3, 30")
        self("s_getreg_b32 s3, hwreg(HW_REG_XCC_ID)", f"v_writelane_b32 v{self.st_v}, s3, 31")
        self.srd(srd, wsreg, STAMP_OFF + (self.st_k << 20), 1 << 20)
        self(f"s_mul_i32 s3, s2, {nwaves}", f"s_add_u32 s3, s3, s{swave}", "s_lshl_b32 s3, s3, 7", "s_mov_b64 exec, -1",
             f"v_lshlrev_b32 v{tmp}, 2, v1", "s_mov_b32 exec_hi, 0",
             f"buffer_store_dword v{self.st_v}, v{tmp}, s[{srd}:{srd+3}], s3 offen")

    def __init__(self):
        self.lines = []
        self.vm = []
        self.lg = []

    def __call__(self, *ls):
        for l in ls:
            self.lines.append(l if l.endswith(":") else "    " + l)

    def vmem(self, line, tag=None):
        self(line)
        self.vm.append(tag)

    def lds(self, line, tag=None):
        self(line)
        self.lg.append(tag)

    @staticmethod
    def _need(q, tags):
        last = -1
        for i, t in enumerate(q):
            if t in tags:
                last = i
        return None if last < 0 else len(q) - 1 - last

    def wait(self, vm=None, lg=None):
        parts = []
        if vm is not None:
            n = 0 if vm == "all" else self._need(self.vm, vm if isinstance(vm, (list, tuple, set)) else [vm])
            if n is not None:
                n = min(n, 63)
                parts.append(f"vmcnt({n})")
                self.vm = self.vm[len(self.vm) - n:] if n else []
        if lg is not None:
            n = 0 if lg == "all" else self._need(self.lg, lg if isinstance(lg, (list, tuple, set)) else [lg])
            if n is not None:
                n = min(n, 15)
                parts.append(f"lgkmcnt({n})")
                self.lg = self.lg[len(self.lg) - n:] if n else []
        if parts:
            self("s_waitcnt " + " ".join(parts))

    def srd(self, s, base, off, size, stride=0):
        if off == 0:
            self(f"s_mov_b32 s{s}, s{base}", f"s_and_b32 s{s+1}, s{base+1}, 0xffff")
        else:
            self(f"s_add_u32 s{s}, s{base}, {off}", f"s_addc_u32 s{s+1}, s{base+1}, 0",
                 f"s_and_b32 s{s+1}, s{s+1}, 0xffff")
        if stride:
            self(f"s_or_b32 s{s+1}, s{s+1}, {stride << 16}")
        self(f"s_mov_b32 s{s+2}, {size}", f"s_mov_b32 s{s+3}, 0x20000")


POLLF = ["sc1", "sc0 sc1", "sc1 nt", "sc0 sc1 nt"]


def wt():
    return " sc1" if OPT["sc1"] else ""


def code_prefetch(a, first, last, wshift, vtmp, vsink, tag):
    if not OPT["ipf"]:
        return
    a(f"s_getpc_b64 s[22:23]", f"{tag}_PC:", f"s_sub_u32 s22, s22, {tag}_PC-{first}", "s_subb_u32 s23, s23, 0",
      *(["s_lshr_b32 s3, s2, 3", f"s_lshl_b32 s3, s3, {wshift + 10}", f"v_lshlrev_b32 v{vtmp}, 4, v0", f"v_add_u32 v{vtmp}, s3, v{vtmp}"]
        if OPT["ipfw"] == 0 else
        ["s_lshr_b32 s3, s2, 3", "s_sub_u32 s3, s3, 5", "s_lshl_b32 s3, s3, 12", f"v_lshlrev_b32 v{vtmp}, 4, v0", f"v_add_u32 v{vtmp}, s3, v{vtmp}",
         "v_cmp_gt_u32 vcc, 256, v0", "s_nop 1", f"v_cndmask_b32 v{vtmp}, v{vtmp}, -1, vcc"]
        if OPT["ipfw"] == 1 else
        ["s_lshr_b32 s3, s2, 3", "s_sub_u32 s3, 31, s3", f"s_lshl_b32 s3, s3, {wshift + 10}", f"v_lshlrev_b32 v{vtmp}, 4, v0", f"v_add_u32 v{vtmp}, s3, v{vtmp}"]),
      f"v_cmp_gt_u32 vcc, {last}-{first}-16, v{vtmp}", "s_and_saveexec_b64 s[4:5], vcc", f"s_cbranch_execz {tag}_PCX",
      f"global_load_dwordx4 {vr(vsink,4)}, v{vtmp}, s[22:23]", f"{tag}_PCX:", "s_mov_b64 exec, -1")


def vr(a, n=1):
    return f"v{a}" if n == 1 else f"v[{a}:{a+n-1}]"


def sr(a, n=1):
    return f"s{a}" if n == 1 else f"s[{a}:{a+n-1}]"


def header(a, name):
    a.lines += [f".globl {name}", ".p2align 8", f".type {name},@function", f"{name}:"]


def descriptor(name, nv, ns):
    acc = (nv + 3) // 4 * 4
    return [".p2align 6", f".amdhsa_kernel {name}", f"  .amdhsa_next_free_vgpr {nv}",
            f"  .amdhsa_next_free_sgpr {ns}", f"  .amdhsa_accum_offset {acc}",
            "  .amdhsa_group_segment_fixed_size 0", "  .amdhsa_kernarg_size 88",
            "  .amdhsa_user_sgpr_count 2", "  .amdhsa_user_sgpr_kernarg_segment_ptr 1",
            "  .amdhsa_system_sgpr_workgroup_id_x 1", "  .amdhsa_float_denorm_mode_32 3",
            ".end_amdhsa_kernel"]


K1_REG = 40960
K1_LDS = 4 * K1_REG
K1_CNT = 0
K1_I16 = 256
K1_I32 = K1_I16 + 32 * CAP * 2
K1_C2 = 44 * 1024
K1_H2 = K1_C2 + 16 + 10240
K1_NB = K1_H2 + 256
K1_BL = 66 * 1024
assert K1_I32 + 32 * CAP * 4 <= K1_C2 and K1_NB + 16 + 10240 <= K1_BL


def k1():
    a = Asm()
    header(a, "k1_kernel")
    sX, sW, sO, sB = 24, 28, 32, 36
    sw, stile, su, st0, st1, sWB, sXo, sOo, sK, sMask, sRB, sq, sWo, sWn, sWc = 56, 57, 58, 59, 60, 61, 62, 63, 64, 66, 67, 68, 69, 70, 71
    vLane, vT0, vT1, vT2 = 1, 2, 3, 4
    vAad = 6
    vTr = 14
    vXd = 16
    vWd, vSt = 20, 21
    vBias = 22
    vA = 24
    vAcc = 40
    vW = 104
    vWx = vW + 128
    nv = vWx + 3

    a("s_cmp_ge_u32 s2, 256", "s_cbranch_scc1 K1_END")
    a.stamp_setup(5, 0)
    code_prefetch(a, "k1_kernel", "K2_END", 3, 2, vW + 124, "K1")
    a("s_load_dwordx16 s[4:19], s[0:1], 0", "s_load_dwordx2 s[20:21], s[0:1], 80", "s_load_dwordx2 s[52:53], s[0:1], 72")
    a(f"v_lshrrev_b32 v{vT0}, 6, v0", f"v_and_b32 v{vLane}, 63, v0", f"v_readfirstlane_b32 s{sw}, v{vT0}")
    a(f"s_lshr_b32 s{sq}, s2, 3", f"s_cmp_lt_u32 s{sq}, 4", "s_cbranch_scc1 K1_SORT")
    a(f"s_cmp_ge_u32 s{sw}, 4", "s_cbranch_scc1 K1_END", f"s_sub_u32 s{sq}, s{sq}, 4")
    a(f"s_and_b32 s{su}, s{sq}, 3", f"s_lshl_b32 s{su}, s{su}, 2", f"s_lshr_b32 s{sq}, s{sq}, 2",
      f"s_lshl_b32 s{st0}, s{sq}, 3", f"s_and_b32 s{stile}, s2, 7", f"s_add_u32 s{stile}, s{stile}, s{st0}",
      f"s_add_u32 s{su}, s{su}, s{sw}", f"s_cmp_ge_u32 s{stile}, {NT1}", "s_cbranch_scc1 K1_PREP")

    a(f"s_mul_i32 s{sRB}, s{sw}, {K1_REG}", f"s_add_u32 s{sWB}, s{sRB}, 8192")
    a(f"s_mov_b32 s{sK}, {NLOG2E}", f"s_mov_b32 s{sK+1}, {NLOG2E}")
    a(f"s_lshl_b32 s{sq}, s{sq}, 2" if OPT["rot"] else f"s_mov_b32 s{sq}, 0")
    a(f"v_lshrrev_b32 v{vT0}, 5, v{vLane}", f"s_lshl_b32 s{st0}, s{sw}, 3", f"v_add_u32 v{vT0}, s{st0}, v{vT0}",
      f"v_and_b32 v{vT1}, 31, v{vLane}")
    for m in range(4):
        a(f"v_add_u32 v{vT2}, {2*m}, v{vT0}", f"v_and_b32 v{vXd+m}, 15, v{vT2}", f"v_xor_b32 v{vXd+m}, v{vXd+m}, v{vT1}",
          f"v_add_u32 v{vXd+m}, s{sq}, v{vXd+m}", f"v_and_b32 v{vXd+m}, 31, v{vXd+m}",
          f"v_lshlrev_b32 v{vXd+m}, 4, v{vXd+m}", f"v_lshl_add_u32 v{vXd+m}, v{vT0}, 9, v{vXd+m}")
    a(f"s_mul_i32 s{sXo}, s{stile}, {TILE1*512}")
    sJ = 40
    a(f"s_lshr_b32 s{sJ}, s{su}, 2" if OPT["xrot"] else f"s_mov_b32 s{sJ}, 0")
    for j in range(1, TILE1 // 32):
        a(f"s_add_u32 s{sJ+j}, s{sJ+j-1}, 1", f"s_cmp_eq_u32 s{sJ+j}, {TILE1 // 32}", f"s_cselect_b32 s{sJ+j}, 0, s{sJ+j}")
    a(f"v_lshrrev_b32 v{vT0}, 3, v{vLane}", f"v_and_b32 v{vT1}, 7, v{vLane}", f"v_and_b32 v{vT2}, 16, v{vLane}",
      f"v_lshrrev_b32 v{vT2}, 2, v{vT2}", f"v_xor_b32 v{vT1}, v{vT1}, v{vT2}", f"v_lshlrev_b32 v{vT1}, 4, v{vT1}",
      f"v_lshl_add_u32 v{vWd}, v{vT0}, 10, v{vT1}")
    for i in range(1, 4):
        a(f"v_add_u32 v{vWx+i-1}, {7168*i}, v{vWd}")
    a(f"s_lshr_b32 s{st0}, s{su}, 3", f"s_lshl_b32 s{st0}, s{st0}, 18", f"s_and_b32 s{sMask}, s{su}, 7",
      f"s_lshl_b32 s{sMask}, s{sMask}, 7", f"s_add_u32 s{sWo}, s{st0}, s{sMask}", f"s_lshl_b32 s{sWn}, s{sq}, 13")
    a(f"v_and_b32 v{vT0}, 31, v{vLane}", f"v_lshrrev_b32 v{vT1}, 3, v{vT0}", f"v_mul_u32_u24 v{vAad}, {K1_REG}, v{vT1}",
      f"v_and_b32 v{vT1}, 7, v{vT0}", f"v_lshl_add_u32 v{vAad}, v{vT1}, 9, v{vAad}",
      f"v_lshrrev_b32 v{vT1}, 5, v{vLane}", f"v_and_b32 v{vT2}, 15, v{vLane}", f"v_xor_b32 v{vT2}, v{vT2}, v{vT1}",
      f"v_lshl_add_u32 v{vAad}, v{vT2}, 4, v{vAad}")
    for s in range(1, 8):
        a(f"v_xor_b32 v{vAad+s}, {32*s}, v{vAad}")
    a(f"v_lshlrev_b32 v{vSt}, 9, v{vT1}", f"v_lshl_add_u32 v{vSt}, v{vT0}, 2, v{vSt}")
    a(f"v_lshlrev_b32 v{vTr}, 10, v{vT1}", f"v_bfe_u32 v{vT2}, v{vLane}, 2, 2", f"v_lshl_add_u32 v{vTr}, v{vT2}, 7, v{vTr}",
      f"v_bfe_u32 v{vT2}, v{vLane}, 3, 1", f"v_lshl_add_u32 v{vTr}, v{vT2}, 6, v{vTr}",
      f"v_bfe_u32 v{vT2}, v{vLane}, 4, 1", f"v_lshl_add_u32 v{vTr}, v{vT2}, 5, v{vTr}",
      f"v_and_b32 v{vT2}, 3, v{vLane}", f"v_lshl_add_u32 v{vTr}, v{vT2}, 3, v{vTr}",
      f"v_add_u32 v{vTr}, s{sWB}, v{vTr}", f"v_xor_b32 v{vTr+1}, 64, v{vTr}", f"v_lshlrev_b32 v{vT0}, 1, v{vT0}")
    a(f"s_mul_i32 s{sOo}, s{su}, {SS}", f"s_mul_i32 s{st0}, s{stile}, {TILE1*128}", f"s_add_u32 s{sOo}, s{sOo}, s{st0}")
    a("s_waitcnt lgkmcnt(0)")
    a.srd(sX, 4, 0, N * 512)
    a.srd(sW, 12, 0, 513 * 1024)

    def x_dma(j):
        a(f"s_add_u32 m0, s{sRB}, {j*4096}", f"s_lshl_b32 s{st0}, s{sJ+j}, 14", f"s_add_u32 s{st0}, s{st0}, s{sXo}")
        for m in range(4):
            a.vmem(f"buffer_load_dwordx4 v{vXd+m}, {sr(sX,4)}, s{st0} offen offset:{1024*m}{' nt' if OPT['ntx'] else ''} lds", f"x{j}")

    def w_dma(s):
        if s % 2 == 0:
            a(f"s_add_u32 m0, s{sWB}, {s*2048}", f"s_add_u32 s{sWc}, s{sWo}, s{sWn}")
        elif OPT["x0pos"] == s:
            a(f"s_add_u32 m0, s{sWB}, {(s-1)*2048}", "s_nop 0")
        for i in (2 * (s % 2), 2 * (s % 2) + 1):
            reg = vWd if i == 0 else vWx + i - 1
            a.vmem(f"buffer_load_dwordx4 v{reg}, {sr(sW,4)}, s{sWc} offen offset:{1024*i}{' nt' if OPT['ntw'] else ''} lds", f"w{s}")
        if s % 2 == 1:
            a(f"s_add_u32 s{sWn}, s{sWn}, 32768", f"s_and_b32 s{sWn}, s{sWn}, 0x3ffff")

    def x_touch():
        a(f"s_lshr_b32 s{st0}, s{su}, 2", f"s_mul_i32 s{st0}, s{st0}, {TILE1*128}", f"s_mul_i32 s{st1}, s{sw}, {TILE1*32}",
          f"s_add_u32 s{st0}, s{st0}, s{st1}", f"s_add_u32 s{st0}, s{st0}, s{sXo}", f"v_lshlrev_b32 v{vT1}, 7, v{vLane}",
          f"s_mov_b32 exec_hi, {(1 << (TILE1 // 4 - 32)) - 1}")
        a.vmem(f"buffer_load_dword v{vT2}, v{vT1}, {sr(sX,4)}, s{st0} offen{' nt' if OPT['ntx'] else ''}", "touch")
        a("s_mov_b32 exec_hi, -1")

    LA = OPT["la"]
    a.stamp()
    if OPT["xtouch"] == 1:
        x_touch()
    for s in range(LA):
        if s == OPT["x0pos"]:
            x_dma(0)
        w_dma(s)
        if OPT["xtouch"] == 2 + s:
            x_touch()
    if OPT["x1early"]:
        x_dma(1)
    a.srd(sO, 20, 0, 16 * SS)
    if OPT["dup"]:
        a.srd(48, 20, 64 << 20, 16 * SS)
    a.srd(sB, 14, 0, 1024)
    a(f"s_cmp_ge_u32 s{su}, 8", f"s_cselect_b32 s{sB+2}, s{sB+2}, 0")
    a.stamp()

    def wfrag(s, b):
        return vW + (s * 2 + b) * 4

    def a_read(j, s):
        a.lds(f"ds_read_b128 {vr(vA + 4*((16*j+s) % 4), 4)}, v{vAad + (s & 7)} offset:{4096*j + 256*(s >> 3)}", f"a{j}_{s}")

    def w_read(s):
        a.wait(vm=f"w{s}")
        for b in range(2):
            for q in range(2):
                a.lds(f"ds_read_b64_tr_b16 {vr(wfrag(s, b) + 2*q, 2)}, v{vTr+b} offset:{s*2048 + q*512}", f"t{s}")

    def mfma(j, s, b):
        acc = vAcc + 32 * (j & 1) + 16 * b
        c = "0" if s == 0 else vr(acc, 16)
        a(f"v_mfma_f32_32x32x16_bf16 {vr(acc,16)}, {vr(vA + 4*((16*j+s) % 4), 4)}, {vr(wfrag(s, b), 4)}, {c}")

    def epilogue_ops(j):
        acc = vAcc + 32 * (j & 1)
        ops = [("s", f"s_lshl_b32 s{st1}, s{sJ+j}, 12"), ("s", f"s_add_u32 s{st1}, s{st1}, s{sOo}")]
        for r in range(0, 16, 2):
            for rr in (r, r + 1):
                ops.append(("v", f"v_fma_f32 v{acc+rr}, v{acc+rr}, s{sK}, v{vBias}"))
                ops.append(("v", f"v_fma_f32 v{acc+16+rr}, v{acc+16+rr}, s{sK}, v{vBias+1}"))
            for rr in (r, r + 1):
                ops.append(("v", f"v_cvt_pk_bf16_f32 v{acc+rr}, v{acc+rr}, v{acc+16+rr}"))
            for rr in (r, r + 1):
                ops.append(("m", f"buffer_store_dword v{acc+rr}, v{vSt}, {sr(sO,4)}, s{st1} offen offset:{(8*(rr>>2) + (rr&3))*128}{wt()}"))
        return ops

    def emit_op(op):
        if op[0] == "m":
            a.vmem(op[1], "st")
            if OPT["dup"]:
                a.vmem(op[1].replace(sr(sO, 4), sr(48, 4)), "st")
        else:
            a(op[1])

    NJ = TILE1 // 32
    a.wait(vm="x0")
    a("s_barrier")
    a.stamp()
    PF0 = OPT["pf0"]
    for s in range(PF0):
        w_read(s)
        a_read(0, s)
    for s in range(16):
        if s + PF0 < 16:
            w_read(s + PF0)
            a_read(0, s + PF0)
        a.wait(lg=[f"t{s}", f"a0_{s}"])
        mfma(0, s, 0)
        if s + LA < 16:
            w_dma(s + LA)
        elif s + LA == 16:
            if not OPT["x1early"]:
                x_dma(1)
            a.vmem(f"buffer_load_ushort v{vBias}, v{vT0}, {sr(sB,4)}, s{sMask} offen", "x1")
            a.vmem(f"buffer_load_ushort v{vBias+1}, v{vT0}, {sr(sB,4)}, s{sMask} offen offset:64", "x1")
        elif s + LA - 15 < (3 if OPT["xspread"] else NJ):
            x_dma(s + LA - 15)
        mfma(0, s, 1)
        if OPT["fine"] and s % 2 == 1 and s < 15:
            a.stamp()
    PFA = 3
    a.stamp()
    a.wait(vm="x1")
    a("s_barrier")
    for s in range(PFA):
        a_read(1, s)
    a(f"v_lshlrev_b32 v{vBias}, 16, v{vBias}", f"v_lshlrev_b32 v{vBias+1}, 16, v{vBias+1}",
      f"v_mul_f32 v{vBias}, s{sK}, v{vBias}", f"v_mul_f32 v{vBias+1}, s{sK}, v{vBias+1}")
    a.stamp()
    for j in range(1, NJ):
        ops = epilogue_ops(j - 1)
        for s in range(16):
            if s + PFA == 16 and j < NJ - 1:
                a.wait(vm=f"x{j+1}")
                a("s_barrier")
            a.wait(lg=f"a{j}_{s}")
            mfma(j, s, 0)
            if OPT["xspread"] and s == 1 and j + 2 < NJ:
                x_dma(j + 2)
            if s + PFA < 16:
                a_read(j, s + PFA)
            elif j < NJ - 1:
                a_read(j + 1, s + PFA - 16)
            if s >= 3:
                for _ in range(3 if s == 3 else 2):
                    if ops:
                        emit_op(ops.pop(0))
            mfma(j, s, 1)
            if s >= 3:
                for _ in range(3):
                    if ops:
                        emit_op(ops.pop(0))
        assert not ops
        a.stamp()
    a("s_nop 15")
    for op in epilogue_ops(NJ - 1):
        emit_op(op)
    a.stamp_dump(sX, 20, sw, 8)
    a("s_endpgm")

    a("K1_PREP:")
    a.vm, a.lg = [], []
    a(f"s_cmp_ge_u32 s{stile}, {NT1 + 2}", "s_cbranch_scc1 K1_CPREP")
    sW2, sF = sX, sW
    vL = vW
    vOut = vW + 32
    a(f"s_sub_u32 s{st0}, s{stile}, {NT1}", f"s_lshl_b32 s{st0}, s{st0}, 4", f"s_add_u32 s{su}, s{su}, s{st0}")
    a(f"v_and_b32 v{vT0}, 15, v{vLane}", f"v_lshrrev_b32 v{vT1}, 4, v{vLane}", f"v_lshlrev_b32 v{vT0}, 2, v{vT0}",
      f"v_lshl_add_u32 v{vWd}, v{vT1}, 11, v{vT0}", f"v_lshlrev_b32 v{vSt}, 4, v{vLane}")
    a(f"s_lshr_b32 s{st0}, s{su}, 2", f"s_lshl_b32 s{st0}, s{st0}, 6", f"s_and_b32 s{st1}, s{su}, 3",
      f"s_lshl_b32 s{st1}, s{st1}, 16", f"s_add_u32 s{sXo}, s{st0}, s{st1}", f"s_lshl_b32 s{sOo}, s{su}, 13")
    a("s_waitcnt lgkmcnt(0)")
    a.srd(sW2, 16, 0, 512 * 512)
    a.srd(sF, 20, W2F_OFF, 262144)
    for s in range(4):
        for i in range(8):
            row = (s >> 1) * 64 + 16 * (s & 1) + (i >> 1) + 32 * (i & 1)
            a(f"s_add_u32 s{st0}, s{sXo}, {row*512}")
            a.vmem(f"buffer_load_dword v{vL + 8*s + i}, v{vWd}, {sr(sW2,4)}, s{st0} offen{' nt' if OPT['ntw2'] else ''}", f"l{s}")
    a(f"s_mov_b32 s{sK}, 0x05040100", f"s_mov_b32 s{sK+1}, 0x07060302")
    for s in range(4):
        a.wait(vm=f"l{s}")
        for b in range(2):
            o = vOut + 8 * s + 4 * b
            for m in range(4):
                a(f"v_perm_b32 v{o+m}, v{vL + 8*s + 2*m + 1}, v{vL + 8*s + 2*m}, s{sK+b}")
            a(f"s_add_u32 s{st0}, s{sOo}, {(2*s+b)*1024}")
            a.vmem(f"buffer_store_dwordx4 {vr(o,4)}, v{vSt}, {sr(sF,4)}, s{st0} offen{wt()}")
    a("s_endpgm")

    a("K1_CPREP:")
    a(f"s_cmp_ge_u32 s{su}, 8", "s_cbranch_scc1 K1_END")
    a(f"v_and_b32 v{vT1}, 1, v{vLane}", f"v_lshlrev_b32 v{vT1}, 6, v{vT1}",
      f"v_bfe_u32 v{vT2}, v{vLane}, 2, 1", f"v_lshl_add_u32 v{vT1}, v{vT2}, 5, v{vT1}",
      f"v_bfe_u32 v{vT2}, v{vLane}, 3, 1", f"v_lshl_add_u32 v{vT1}, v{vT2}, 2, v{vT1}",
      f"v_bfe_u32 v{vT2}, v{vLane}, 1, 1", f"v_lshl_add_u32 v{vT1}, v{vT2}, 1, v{vT1}",
      f"v_bfe_u32 v{vT0}, v{vLane}, 4, 1", f"v_lshrrev_b32 v{vT2}, 5, v{vLane}", f"v_cmp_eq_u32 vcc, v{vT0}, v{vT2}",
      f"v_lshlrev_b32 v{vT0}, 3, v{vLane}", f"s_lshl_b32 s{st0}, s{su}, 7", f"s_lshl_b32 s{st1}, s{su}, 9",
      f"s_mov_b32 s{sK}, {NLOG2E}", "s_waitcnt lgkmcnt(0)")
    a.srd(sX, 12, 512 * 1024, 1024)
    a.srd(sW, 20, CF_OFF, 4096)
    for i in range(4):
        a(f"buffer_load_ushort v{8+i}, v{vT1}, {sr(sX,4)}, s{st0} offen offset:{8*i}")
    a("s_waitcnt vmcnt(0)")
    for i in range(4):
        a(f"v_lshlrev_b32 v{8+i}, 16, v{8+i}", f"v_mul_f32 v{8+i}, s{sK}, v{8+i}")
    a("v_cvt_pk_bf16_f32 v12, v8, v9", "v_cvt_pk_bf16_f32 v13, v10, v11", "v_cndmask_b32 v12, 0, v12, vcc", "v_cndmask_b32 v13, 0, v13, vcc",
      f"buffer_store_dwordx2 v[12:13], v{vT0}, {sr(sW,4)}, s{st1} offen{wt()}", "s_endpgm")

    a("K1_SORT:")
    a.vm, a.lg = [], []
    nt = " nt" if OPT["nte"] else ""
    NBK = OPT["nbk"]
    LB = NBK.bit_length() - 1
    NU = ((N - 1) >> OPT["bsh"]) + 1 if OPT["bsh"] else NBK
    assert NU <= NBK
    assert all((x * 6554 * NBK) >> 26 < NBK for x in range(N))
    sDst, sSrc, sE, sR4, sR2, sDb, sBl, sDg = 24, 28, 32, 36, 40, 44, 24, 28
    sc = su
    vDst, vSrc, vEe, vSl, vRg, vRd, vCn, vRo = 8, 20, 32, 40, 56, 72, 96, 100
    vOne, vBig, vO16, vO8 = 6, 7, 108, 109
    a(f"s_mov_b32 s{sc}, s2")
    a(f"v_lshlrev_b32 v{vO16}, 4, v0", f"v_lshlrev_b32 v{vO8}, 3, v0")
    a(f"s_mul_i32 s{st0}, s{sc}, {CHUNK*4}", f"s_mul_i32 s{st1}, s{sc}, {CHUNK*2}")
    def lds_zero():
        for i in range(2):
            a(f"ds_write_b128 v{vO16}, {vr(vRd,4)} offset:{8192*i}")
        for i in range(2 if NBK > 1 else 1):
            a(f"ds_write_b128 v{vO16}, {vr(vRd,4)} offset:{K1_C2 + 8192*i}")
        if NBK == 1:
            a(f"ds_write_b32 v{vT0}, v{vRd} offset:{K1_H2}")
    for r in range(4):
        a(f"v_mov_b32 v{vRd+r}, 0")
    a(f"v_lshlrev_b32 v{vT0}, 2, v{vLane}")
    if not OPT["initlate"]:
        lds_zero()
    a("s_waitcnt lgkmcnt(0)")
    a.srd(sDst, 10, f"s{st0}", CHUNK * 4)
    for i in range(3):
        a(f"s_mov_b32 s{sXo}, {8192*i}")
        a.vmem(f"buffer_load_dwordx4 {vr(vDst+4*i,4)}, v{vO16}, {sr(sDst,4)}, s{sXo} offen{nt}", f"d{i}")
    if OPT["initlate"]:
        lds_zero()
        a("s_waitcnt lgkmcnt(0)")
    if not OPT["srcearly"]:
        a("s_barrier")
    a.srd(sSrc, 8, f"s{st0}", CHUNK * 4)
    a.srd(sE, 6, f"s{st1}", CHUNK * 2)
    for i in range(3):
        a(f"s_mov_b32 s{st0}, {8192*i}")
        a.vmem(f"buffer_load_dwordx4 {vr(vSrc+4*i,4)}, v{vO16}, {sr(sSrc,4)}, s{st0} offen{nt}", f"r{i}")
    if OPT["srcearly"]:
        a("s_barrier")
    for i in range(3):
        a(f"s_mov_b32 s{st1}, {4096*i}")
        a.vmem(f"buffer_load_dwordx2 {vr(vEe+2*i,2)}, v{vO8}, {sr(sE,4)}, s{st1} offen{nt}", f"s{i}")
    a.stamp(7)
    a.srd(sR4, 20, R4_OFF, 32 * R4BLK)
    a.srd(sR2, 20, R2_OFF, 32 * R2BLK)
    a.srd(sDb, 52, 0, 256)
    a(f"s_mov_b32 s{st0}, 13401", f"s_mov_b32 s{st1}, {-RNG & 0xffffffff}", f"s_mov_b32 s{sMask}, 0xffff0000",
      f"v_mov_b32 v{vOne}, 1", f"v_cmp_gt_u32 vcc, {CHUNK//4 - 1024}, v0", f"s_mov_b64 {sr(sK,2)}, vcc",
      f"s_mov_b32 s{sXo}, {CAP}")

    a.stamp(8)
    for i in range(3):
        a.wait(vm=f"d{i}")
        if i == 0:
            a.stamp(9)
        if i == 2:
            a(f"s_mov_b64 exec, {sr(sK,2)}")
        for n in range(4 * i, 4 * i + 4):
            a(f"v_mul_u32_u24 v{vRg+n}, s{st0}, v{vDst+n}", f"v_lshrrev_b32 v{vRg+n}, 22, v{vRg+n}",
              f"v_lshlrev_b32 v{vSl+n}, 2, v{vRg+n}")
            a.lds(f"ds_add_rtn_u32 v{vSl+n}, v{vSl+n}, v{vOne} offset:{K1_CNT}", f"sl{n}")
            a(f"v_mad_i32_i24 v{vDst+n}, v{vRg+n}, s{st1}, v{vDst+n}", f"v_lshl_add_u32 v{vDst+n}, v{vDst+n}, {LB + 2}, 16")
        if i == 2:
            a("s_mov_b64 exec, -1")
    a.stamp(10)
    a(f"s_mov_b32 s{st0}, {6554 * NBK}")
    for n in range(12):
        if n == 8:
            a(f"s_mov_b64 exec, {sr(sK,2)}")
        if NBK > 1:
            a.wait(vm=f"r{n//4}")
            if OPT["bsh"]:
                a(f"v_lshrrev_b32 v{vT2}, {OPT['bsh']}, v{vSrc+n}", f"v_lshl_add_u32 v{vDst+n}, v{vT2}, 2, v{vDst+n}")
            else:
                a(f"v_mul_u32_u24 v{vT2}, s{st0}, v{vSrc+n}", f"v_lshrrev_b32 v{vT2}, 26, v{vT2}", f"v_lshl_add_u32 v{vDst+n}, v{vT2}, 2, v{vDst+n}")
        a.wait(lg=f"sl{n}")
        a(f"v_min_u32 v{vSl+n}, {CAP - 1}, v{vSl+n}", f"v_mad_u32_u24 v{vSl+n}, v{vRg+n}, s{sXo}, v{vSl+n}",
          f"v_lshlrev_b32 v{vRg+n}, 1, v{vSl+n}")
        a.lds(f"ds_write_b16 v{vRg+n}, v{vDst+n} offset:{K1_I16}")
    a("s_mov_b64 exec, -1")
    a(f"s_mul_i32 s{st0}, s{sc}, {CAP*4}", f"s_mul_i32 s{st1}, s{sc}, {CAP*2}",
      f"s_mov_b32 s{sXo}, {R4BLK - CAP*4}", f"s_mov_b32 s{sOo}, {R2BLK - CAP*2}")
    for i in range(2):
        a(f"v_add_u32 v{vT2}, {512*i}, v0", f"v_mul_u32_u24 v{vT2}, 2341, v{vT2}", f"v_lshrrev_b32 v{vT2}, 16, v{vT2}",
          f"v_mad_u32_u24 v{vRo+4+i}, v{vT2}, s{sOo}, v{vO16}", f"v_add_u32 v{vRo+4+i}, {8192*i}, v{vRo+4+i}",
          f"v_lshlrev_b32 v{vCn+i}, 2, v{vT2}")
    a.wait(lg="all")
    a("s_barrier")
    a.stamp(1)
    for i in range(2):
        a.lds(f"ds_read_b128 {vr(vRd+16+4*i,4)}, v{vO16} offset:{K1_I16 + 8192*i}", f"h{i}")
        a.lds(f"ds_read_b32 v{vCn+i}, v{vCn+i} offset:{K1_CNT}", f"h{i}")
    for i in range(2):
        a.wait(lg=f"h{i}")
        a(f"v_cmp_ge_u32 vcc, {CAP}, v{vCn+i}", "s_nop 1", f"v_cndmask_b32 v{vRd+16+4*i}, -1, v{vRd+16+4*i}, vcc")
        a.vmem(f"buffer_store_dwordx4 {vr(vRd+16+4*i,4)}, v{vRo+4+i}, {sr(sR2,4)}, s{st1} offen sc1", "r2")
    for i in range(3):
        a.wait(vm=f"s{i}")
        if i == 2:
            a(f"s_mov_b64 exec, {sr(sK,2)}")
        for n in range(4 * i, 4 * i + 4):
            if n & 1:
                a(f"v_and_or_b32 v{vSrc+n}, v{vEe+n//2}, s{sMask}, v{vSrc+n}")
            else:
                a(f"v_lshl_or_b32 v{vSrc+n}, v{vEe+n//2}, 16, v{vSrc+n}")
            a(f"v_lshlrev_b32 v{vSl+n}, 2, v{vSl+n}")
            a.lds(f"ds_write_b32 v{vSl+n}, v{vSrc+n} offset:{K1_I32}")
    a("s_mov_b64 exec, -1")
    for i in range(4):
        a(f"v_add_u32 v{vT2}, {512*i}, v0", f"v_mul_u32_u24 v{vT2}, 2341, v{vT2}", f"v_lshrrev_b32 v{vT2}, 17, v{vT2}",
          f"v_mad_u32_u24 v{vRo+i}, v{vT2}, s{sXo}, v{vO16}", f"v_add_u32 v{vRo+i}, {8192*i}, v{vRo+i}")
    a(f"s_lshl_b32 s{sWo}, s{sc}, 2", f"v_mov_b32 v{vBig}, s{sWo}")
    a.wait(vm="all", lg="all")
    a("s_barrier")
    a.stamp(11)
    a(f"s_cmp_lg_u32 s{sw}, 0", "s_cbranch_scc1 K1_F1", "s_mov_b64 exec, 1",
      f"buffer_store_dword v{vOne}, v{vBig}, {sr(sDb,4)}, 0 offen sc1", "s_mov_b64 exec, -1", "K1_F1:")
    for i in range(4):
        a.lds(f"ds_read_b128 {vr(vRd+4*i,4)}, v{vO16} offset:{K1_I32 + 8192*i}", f"g{i}")
    for i in range(4):
        a.wait(lg=f"g{i}")
        a.vmem(f"buffer_store_dwordx4 {vr(vRd+4*i,4)}, v{vRo+i}, {sr(sR4,4)}, s{st0} offen sc1")
    a(f"s_mul_i32 s{st0}, s{sc}, {R4BLK}", f"s_add_u32 s{st0}, s{st0}, {R4_OFF}", f"s_mul_i32 s{st1}, s{sc}, {R2BLK}",
      f"s_add_u32 s{st1}, s{st1}, {R2_OFF}", f"s_mul_i32 s{sXo}, s{sc}, {BLOB}", f"s_add_u32 s{sXo}, s{sXo}, {BLOB_OFF}",
      f"s_lshl_b32 s{sOo}, s{sc}, 12", f"s_add_u32 s{sOo}, s{sOo}, {FL_OFF}")
    a.srd(sBl, 20, f"s{sXo}", BLOB)
    a.srd(sDg, 20, f"s{sOo}", 3072)
    for r in range(4):
        a(f"v_mov_b32 v{vDst+r}, 0xffff")
    a(f"v_add_u32 v{vT0}, {K1_BL}, v{vO16}", f"v_mov_b32 v{vDst+4}, 0", f"v_mov_b32 v{vDst+5}, 0", f"v_mov_b32 v{vDst+6}, {K1_BL + BLOB}")
    for i in range(3):
        a(f"ds_write_b128 v{vT0}, {vr(vDst,4)} offset:{8192*i}")
    a(f"v_add_u32 v{vT1}, {K1_BL + B_META}, v{vO8}", f"ds_write_b64 v{vT1}, {vr(vDst+4,2)}",
      f"v_mov_b32 v{vT1}, {K1_NB}", f"ds_write_b32 v{vT1}, v{vDst+6}")
    a(f"buffer_store_dwordx2 {vr(vDst+4,2)}, v{vO8}, {sr(sDg,4)}, 0 offen sc1")
    for n in range(16):
        a(f"v_mov_b32 v{48+n}, 0")
    a("s_waitcnt vmcnt(0) lgkmcnt(0)")
    a.vm, a.lg = [], []
    a.srd(sR4, 20, f"s{st0}", R4BLK)
    a.srd(sR2, 20, f"s{st1}", R2BLK)
    a("s_barrier")
    a.stamp(2)

    vFa, vFd = 110, 111
    a(f"v_lshlrev_b32 v{vFa}, 2, v{vLane}")

    def poll_issue(tag, word, wave):
        a(f"s_cmp_lg_u32 s{sw}, {wave}", f"s_cbranch_scc1 K1_{tag}I", "s_mov_b32 exec_hi, 0",
          f"buffer_load_dword v{vFd}, v{vFa}, {sr(sDb,4)}, 0 offen offset:{word} {POLLF[OPT['pollf']]}", "s_mov_b32 exec_hi, -1", f"K1_{tag}I:")

    def poll(tag, word, wave):
        a(f"s_cmp_lg_u32 s{sw}, {wave}", f"s_cbranch_scc1 K1_{tag}X", "s_mov_b32 exec_hi, 0", f"s_mov_b32 s{sWc}, 0")
        a(f"K1_{tag}L:")
        a("s_waitcnt vmcnt(0)", f"v_cmp_eq_u32 vcc, 0, v{vFd}", f"s_cbranch_vccz K1_{tag}D",
          f"buffer_load_dword v{vFd}, v{vFa}, {sr(sDb,4)}, 0 offen offset:{word} {POLLF[OPT['pollf']]}", f"s_add_u32 s{sWc}, s{sWc}, 1",
          f"s_cmp_lt_u32 s{sWc}, 0x40000", f"s_cbranch_scc1 K1_{tag}L")
        a("s_waitcnt vmcnt(0)", f"v_mov_b32 v{vFd}, {K1_BL + B_FLAG}",
          f"ds_write_b32 v{vFd}, v{vOne}", "s_waitcnt lgkmcnt(0)")
        a(f"K1_{tag}D:", "s_mov_b64 exec, -1", f"K1_{tag}X:")
    a(f"s_cmp_lg_u32 s{sw}, 1", "s_cbranch_scc1 K1_F2", "s_mov_b64 exec, 1",
      f"buffer_store_dword v{vOne}, v{vBig}, {sr(sDb,4)}, 0 offen offset:128 sc1", "s_mov_b64 exec, -1", "K1_F2:")
    poll_issue("PA", 0, 0)
    poll("PA", 0, 0)
    a("s_barrier")
    a.stamp(3)
    vR2, vR4, vDl, vS2 = 8, 16, 32, 48
    vNd, vDeg, vP, vBin, vPos, vMa = 64, 65, 66, 67, 70, 71
    for i in range(4):
        a(f"s_mov_b32 s{st0}, {4096*i}")
        a.vmem(f"buffer_load_dwordx2 {vr(vR2+2*i,2)}, v{vO8}, {sr(sR2,4)}, s{st0} offen sc1", f"h{i}")
    a(f"v_mov_b32 v{vT2}, 0")
    for i in range(4):
        a.wait(vm=f"h{i}")
        if i == 0:
            a.stamp(12)
            poll_issue("PB", 128, 7)
        for n in range(4 * i, 4 * i + 4):
            if n & 1:
                a(f"v_ashrrev_i32 v{vDl+n}, 16, v{vR2+n//2}")
            else:
                a(f"v_bfe_i32 v{vDl+n}, v{vR2+n//2}, 0, 16")
        a(f"v_min_i32 v{vT2}, v{vDl+4*i}, v{vT2}")
        if i == 3 and OPT["skip3"]:
            a(f"s_cmp_ge_u32 s{sw}, 4", "s_cbranch_scc1 K1_SK1")
        for n in range(4 * i, 4 * i + 4):
            a(f"v_cmpx_lt_i32 vcc, 0, v{vDl+n}")
            a.lds(f"ds_add_rtn_u32 v{vS2+n}, v{vDl+n}, v{vOne} offset:{K1_C2}")
            a("s_mov_b64 exec, -1")
    a("K1_SK1:")
    a(f"v_mov_b32 v{vT0}, {K1_BL + B_FLAG}", f"v_cmpx_gt_i32 vcc, 0, v{vT2}")
    a.lds(f"ds_write_b32 v{vT0}, v{vOne}")
    a("s_mov_b64 exec, -1")
    a.wait(lg="all")
    poll("PB", 128, 7)
    a("s_barrier")
    a.stamp(4)
    for i in range(4):
        a(f"s_mov_b32 s{st0}, {8192*i}")
        a.vmem(f"buffer_load_dwordx4 {vr(vR4+4*i,4)}, v{vO16}, {sr(sR4,4)}, s{st0} offen sc1", f"g{i}")
    a(f"s_cmp_ge_u32 s{sw}, 5", "s_cbranch_scc1 K1_D1")
    vC8 = 72
    a(f"v_lshlrev_b32 v{vT1}, {LB + 2}, v0")
    if NBK == 1:
        a(f"ds_read_b32 v{vDeg}, v{vT1} offset:{K1_C2 + 16}", "s_waitcnt lgkmcnt(0)")
    else:
        for i in range(NBK // 4):
            a(f"ds_read_b128 {vr(vC8+4*i,4)}, v{vT1} offset:{K1_C2 + 16 + 16*i}")
        a("s_waitcnt lgkmcnt(0)")
        for i in range(1, NU - 1):
            a(f"v_add_u32 v{vC8+i}, v{vC8+i}, v{vC8+i-1}")
        a(f"v_add_u32 v{vDeg}, v{vC8+NU-1}, v{vC8+NU-2}")
    a(f"v_cmp_lt_u32 {sr(sK,2)}, {MAXDEG}, v{vDeg}", f"v_min_u32 v{vDeg}, {MAXDEG}, v{vDeg}",
      f"v_sub_u32 v{vBin}, 63, v{vDeg}", f"v_lshlrev_b32 v{vBin}, 2, v{vBin}",
      f"ds_add_rtn_u32 v{vP}, v{vBin}, v{vOne} offset:{K1_H2}",
      f"s_mov_b64 exec, {sr(sK,2)}", f"ds_write_b32 v{vT0}, v{vOne}", "s_mov_b64 exec, -1", "s_waitcnt lgkmcnt(0)")
    a("K1_D1:", "s_barrier")

    def scan(reg):
        a("s_nop 1")
        for ctrl in ("row_shr:1", "row_shr:2", "row_shr:4", "row_shr:8"):
            a(f"v_add_u32_dpp v{reg}, v{reg}, v{reg} {ctrl} row_mask:0xf bank_mask:0xf bound_ctrl:1", "s_nop 1")
        a(f"v_add_u32_dpp v{reg}, v{reg}, v{reg} row_bcast:15 row_mask:0xa bank_mask:0xf", "s_nop 1")
        a(f"v_add_u32_dpp v{reg}, v{reg}, v{reg} row_bcast:31 row_mask:0xc bank_mask:0xf", "s_nop 1")
    vA0, vA1 = 68, 69
    a(f"s_cmp_ge_u32 s{sw}, 5", "s_cbranch_scc1 K1_D2")
    a(f"v_lshlrev_b32 v{vA0}, 2, v{vLane}", f"ds_read_b32 v{vA1}, v{vA0} offset:{K1_H2}", "s_waitcnt lgkmcnt(0)",
      f"v_mov_b32 v{vA0}, v{vA1}")
    scan(vA0)
    a(f"v_sub_u32 v{vA0}, v{vA0}, v{vA1}", f"ds_bpermute_b32 v{vPos}, v{vBin}, v{vA0}",
      f"v_lshlrev_b32 v{vNd}, 16, v0", "s_waitcnt lgkmcnt(0)",
      f"v_add_u32 v{vPos}, v{vPos}, v{vP}", f"v_lshlrev_b32 v{vMa}, 3, v{vPos}", f"v_add_u32 v{vMa}, {K1_BL + B_META}, v{vMa}",
      f"ds_write_b64 v{vMa}, {vr(vNd,2)}", "s_waitcnt lgkmcnt(0)")
    a("K1_D2:", "s_barrier")
    a(f"s_cmp_ge_u32 s{sw}, 5", "s_cbranch_scc1 K1_D3")
    a(f"v_lshlrev_b32 v{vA0}, 6, v{vLane}", f"v_add_u32 v{vA0}, {K1_BL + B_META}, v{vA0}", f"ds_read_b32 v{vA1}, v{vA0} offset:4",
      f"v_cmp_gt_u32 vcc, {NGRP}, v{vLane}", "s_waitcnt lgkmcnt(0)", "s_nop 0",
      f"v_cndmask_b32 v{vA1}, 0, v{vA1}, vcc", f"v_mov_b32 v{vA0}, v{vA1}")
    scan(vA0)
    a(f"v_readlane_b32 s{st0}, v{vA0}, 63", f"v_sub_u32 v{vA0}, v{vA0}, v{vA1}", f"v_lshlrev_b32 v{vA0}, 5, v{vA0}",
      f"v_lshrrev_b32 v{vA1}, 3, v{vPos}", f"v_lshlrev_b32 v{vA1}, 2, v{vA1}", f"ds_bpermute_b32 v{vA1}, v{vA1}, v{vA0}",
      f"v_and_b32 v{vPos}, 7, v{vPos}",
      f"s_cmp_le_u32 s{st0}, {NSLOT - 8}", "s_cbranch_scc1 K1_FITS", f"ds_write_b32 v{vT0}, v{vOne}", "K1_FITS:",
      "s_waitcnt lgkmcnt(0)", f"v_lshl_add_u32 v{vA1}, v{vPos}, 2, v{vA1}", f"v_add_u32 v{vA0}, {K1_BL}, v{vA1}",
      f"ds_write_b16 v{vMa}, v{vA1}")
    if NBK == 1:
        a(f"ds_write_b32 v{vT1}, v{vA0} offset:{K1_NB + 16}")
    else:
        for i in range(NU - 1, 0, -1):
            a(f"v_lshl_add_u32 v{vC8+i}, v{vC8+i-1}, 5, v{vA0}")
        a(f"v_mov_b32 v{vC8}, v{vA0}")
        for i in range(NBK // 4):
            a(f"ds_write_b128 v{vT1}, {vr(vC8+4*i,4)} offset:{K1_NB + 16 + 16*i}")
    a("s_waitcnt lgkmcnt(0)")
    a("K1_D3:", "s_barrier")
    a.stamp(5)
    a.lg = []
    a(f"ds_read_b32 v{vT2}, v{vT0}")
    for n in range(8):
        a.lds(f"ds_read_b32 v{vR2+n}, v{vDl+n} offset:{K1_NB}", f"nb{n}")
    a("s_waitcnt lgkmcnt(8)", f"v_readfirstlane_b32 s{st0}, v{vT2}", f"s_cmp_lg_u32 s{st0}, 0", "s_cbranch_scc1 K1_NOSC")
    for n in range(16):
        if n == 12 and OPT["skip3"]:
            a(f"s_cmp_ge_u32 s{sw}, 4", "s_cbranch_scc1 K1_NOSC")
        a.wait(lg=f"nb{n}", vm=f"g{n//4}")
        a(f"v_lshl_add_u32 v{vS2+n}, v{vS2+n}, 5, v{vR2 + (n & 7)}")
        if n < 8:
            a.lds(f"ds_read_b32 v{vR2+n}, v{vDl+n+8} offset:{K1_NB}", f"nb{n+8}")
        a.lds(f"ds_write_b32 v{vS2+n}, v{vR4+n}")
    a("s_branch K1_SCD", "K1_NOSC:", "s_waitcnt vmcnt(0)", "K1_SCD:", "s_waitcnt lgkmcnt(0)")
    a.vm, a.lg = [], []
    a("s_barrier")
    a.stamp(6)
    a(f"v_add_u32 v{vT0}, {K1_BL}, v{vO16}")
    for i in range(4):
        a.lds(f"ds_read_b128 {vr(vR4+4*i,4)}, v{vT0} offset:{8192*i}", f"o{i}")
    for i in range(4):
        a.wait(lg=f"o{i}")
        a(f"s_mov_b32 s{st0}, {8192*i}")
        a.vmem(f"buffer_store_dwordx4 {vr(vR4+4*i,4)}, v{vO16}, {sr(sBl,4)}, s{st0} offen{' sc1' if OPT['blobsc'] else ''}")
    a.stamp_dump(sX, 20, sw, 8)
    a("K1_END:", "s_endpgm")
    return a.lines, descriptor("k1_kernel", nv, 102 if STAMPS else 72)


K2_BB = 28 * 1024
K2_AB = K2_BB + 98304
K2_LDS = K2_BB + 131072


def k2():
    a = Asm()
    header(a, "k2_kernel")
    sBl, sP, sQ, sS, sW1, sF, sPf, sO = 24, 28, 32, 36, 40, 44, 48, 76
    sw, sk, srng, scnt, st0, st1, sg, sdmax, sdmin, sSo, sK, sBig, sOne = 52, 53, 54, 55, 56, 57, 58, 59, 60, 61, 62, 64, 66
    sM = 68
    sFl, spend, seg, sEx = 80, 84, 85, 86
    sPr, sPl, sPn = 88, 89, 90
    vLane, vT0, vT1, vT2, vT3 = 1, 2, 3, 4, 5
    vI4, vAh, vQi = 6, 8, 10
    vE, vEs = 12, 14
    vIdx = 16
    vSh, vEll, vEe, vDeg, vSt, vMetL, vHoff = 24, 25, 26, 27, 28, 29, 30
    vQ = 32
    vNum, vDen, vT = 48, 56, 64
    vP = 72
    vZ = 88
    DP = OPT["depth"]
    if DP == 2:
        vNxt, vGo, vCtr, vInc, vL16 = 120, 121, 126, 123, 124
        pbuf = [vP, vP + 8]
        nv = 127
    else:
        vNxt, vGo, vCtr, vInc, vL16 = 23, 0, 20, 21, 22
        pbuf = [vP, vP + 8, 120]
        nv = 128
    NI = 4 if DP == 2 else 2

    a("s_cmp_ge_u32 s2, 256", "s_cbranch_scc1 K2_END")
    a.stamp_setup(31, 1)
    a("s_load_dwordx16 s[4:19], s[0:1], 0", "s_load_dwordx2 s[20:21], s[0:1], 80", "s_load_dwordx2 s[22:23], s[0:1], 64")
    a(f"v_lshrrev_b32 v{vT0}, 6, v0", f"v_and_b32 v{vLane}, 63, v0", f"v_readfirstlane_b32 s{sw}, v{vT0}")
    a(f"s_and_b32 s{sk}, s2, 7", f"s_lshr_b32 s{srng}, s2, 3")
    a(f"s_mul_i32 s{st0}, s{srng}, {RNG}", f"s_sub_u32 s{scnt}, {N}, s{st0}", f"s_min_u32 s{scnt}, s{scnt}, {RNG}")
    a(f"s_mul_i32 s{st1}, s{srng}, {BLOB}", f"s_add_u32 s{st1}, s{st1}, {BLOB_OFF}")
    a(f"v_lshlrev_b32 v{vL16}, 4, v{vLane}")
    a(f"v_and_b32 v{vT1}, 3, v{vLane}", f"v_lshlrev_b32 v{vSh}, 4, v{vT1}", f"v_lshrrev_b32 v{vT2}, 5, v{vLane}",
      f"v_lshl_add_u32 v{vIdx+1}, v{vT2}, 6, v{vSh}", *[f"v_mov_b32 v{vIdx+2*i+1}, v{vIdx+1}" for i in range(1, NI)],
      f"v_mov_b32 v{vQi+1}, v{vIdx+1}", f"v_lshl_add_u32 v{vHoff}, v{vT2}, 5, 2",
      f"v_and_b32 v{vMetL}, 28, v{vLane}", f"v_lshlrev_b32 v{vMetL}, 1, v{vMetL}",
      f"v_and_b32 v{vT3}, 16, v{vLane}", f"v_lshlrev_b32 v{vT3}, 1, v{vT3}", f"v_xor_b32 v{vSt}, v{vT3}, v{vL16}",
      f"v_mov_b32 v{vE}, 0x3f80", f"v_mov_b32 v{vE+1}, 0", f"v_lshlrev_b64 {vr(vI4,2)}, v{vSh}, {vr(vE,2)}",
      f"v_mov_b32 v{vCtr}, {B_CTR}", f"v_mov_b32 v{vInc}, 64", f"v_lshlrev_b32 v{vT1}, 3, v{vLane}")
    a(f"s_mov_b32 s{sK}, {NLOG2E}", f"s_mov_b32 s{sBig}, {fbits(2.0**120)}", f"s_mov_b32 s{sOne}, 1.0", f"s_mov_b32 s{sOne+1}, 1.0")
    if OPT["estart"]:
        a(f"s_add_u32 s{sg}, s{sw}, 24", f"s_sub_u32 s{sdmax}, s{sw}, 3", f"s_cmp_lt_u32 s{sw}, 3", f"s_cselect_b32 s{sg}, s{sg}, s{sdmax}",
          f"s_mul_i32 s{sdmax}, s{sw}, 3", f"s_sub_u32 s{sdmax}, s{sdmax}, 24", f"s_cmp_lt_u32 s{sw}, 10", f"s_cselect_b32 s{sg}, s{sg}, s{sdmax}",
          f"s_lshl_b32 s{sg}, s{sg}, 10", f"s_mov_b32 m0, s{sg}")
        a("s_waitcnt lgkmcnt(0)")
        a.srd(sBl, 20, f"s{st1}", BLOB)
        a.vmem(f"buffer_load_dwordx4 v{vL16}, {sr(sBl,4)}, s{sg} offen lds", "b")
        a(f"s_cmp_lt_u32 s{sw}, 10", "s_cbranch_scc1 K2_B1")
        a(f"buffer_load_dwordx4 v{vL16}, {sr(sBl,4)}, s{sg} offen offset:1024 lds",
          f"buffer_load_dwordx4 v{vL16}, {sr(sBl,4)}, s{sg} offen offset:2048 lds", "K2_B1:")
    else:
        a(f"s_lshl_b32 s{sg}, s{sw}, 10", f"s_add_u32 s{sdmax}, s{sg}, 16384", f"s_mov_b32 m0, s{sg}")
        a("s_waitcnt lgkmcnt(0)")
        a.srd(sBl, 20, f"s{st1}", BLOB)
        a.vmem(f"buffer_load_dwordx4 v{vL16}, {sr(sBl,4)}, s{sg} offen lds", "b")
        a(f"s_cmp_ge_u32 s{sw}, {BLOB // 1024 - 16}", "s_cbranch_scc1 K2_B1", f"s_mov_b32 m0, s{sdmax}", "s_nop 0")
        a(f"buffer_load_dwordx4 v{vL16}, {sr(sBl,4)}, s{sdmax} offen lds", "K2_B1:")
    a.srd(sW1, 20, CF_OFF, 4096)
    a(f"s_lshl_b32 s{st1}, s{sk}, 9")
    a.vmem(f"buffer_load_dwordx2 {vr(vAh,2)}, v{vT1}, {sr(sW1,4)}, s{st1} offen", "c")
    a.stamp()
    a(f"s_mul_i32 s{st1}, s{sk}, {SS}", f"s_lshl_b32 s{sg}, s{st0}, 7", f"s_add_u32 s{sg}, s{sg}, s{st1}")
    a.srd(sP, 20, f"s{st1}", N, stride=128)
    a(f"s_add_u32 s{sg}, s{sg}, {Q_OFF}")
    a.srd(sQ, 20, f"s{sg}", f"s{scnt}", stride=128)
    a(f"s_mul_i32 s{sg}, s{srng}, {SRB}", f"s_add_u32 s{sg}, s{sg}, {S_OFF}")
    a.srd(sS, 20, f"s{sg}", SRB)
    a.srd(sF, 20, W2F_OFF, 262144)
    a(f"s_lshl_b32 s{sg}, s{st0}, 9", f"s_lshl_b32 s{st1}, s{scnt}, 9")
    a.srd(sO, 22, f"s{sg}", f"s{st1}")
    a(f"s_lshl_b32 s{sg}, s{srng}, 12", f"s_add_u32 s{sg}, s{sg}, {FL_OFF}")
    a.srd(sFl, 20, f"s{sg}", 3072)
    a(f"s_mov_b32 s{sSo}, {SRB}", f"s_mov_b32 s{spend}, 0")
    if OPT["estart"]:
        a(f"s_cmp_ge_u32 s{sw}, 10", "s_cbranch_scc1 K2_B2", "s_waitcnt vmcnt(0)", "s_barrier", "s_branch K2_B3",
          "K2_B2:", "s_barrier", "s_waitcnt vmcnt(0)", "s_mov_b64 exec, 1", f"ds_add_u32 v{vCtr}, v{vInc} offset:{B_CNTA + 40 - B_CTR}",
          "s_mov_b64 exec, -1", "K2_B3:")
    else:
        a.wait(vm="c")
        a("s_barrier")
    a.stamp(5)
    a.vm = []
    if STAMPS:
        a("s_mov_b32 s99, 8")
    a(f"v_mov_b32 v{vT0}, {B_FLAG}", f"ds_read_b32 v{vT1}, v{vT0}", "s_waitcnt lgkmcnt(0)",
      f"v_readfirstlane_b32 s{st0}, v{vT1}", f"s_lshl_b32 s{sg}, s{sw}, 6", f"s_cmp_lg_u32 s{st0}, 0", "s_cbranch_scc1 K2_SLOW")
    if OPT["snake"]:
        a(f"s_bitcmp1_b32 s{sw}, 2", f"s_cselect_b32 s{st0}, 192, 0", f"s_xor_b32 s{sg}, s{sg}, s{st0}")

    def w2_preload(unit):
        a(f"s_lshr_b32 s{st0}, s{unit}, 1", f"s_lshl_b32 s{st0}, s{st0}, 15", f"s_and_b32 s{st1}, s{unit}, 1",
          f"s_mul_i32 s{st1}, s{st1}, 6144", f"s_add_u32 s{st0}, s{st0}, s{st1}", f"s_mul_i32 s{st1}, s{unit}, 6144")
        for i in range(2):
            a(f"s_add_u32 m0, s{st1}, {K2_BB + 4096*i}")
            a(f"s_add_u32 s{st0}, s{st0}, 4096" if i else "s_nop 0")
            for q in range(2 if i else 4):
                a(f"buffer_load_dwordx4 v{vL16}, {sr(sF,4)}, s{st0} offen offset:{1024*q} lds")

    def Z(i):
        return vZ + 16 * ((i >> 1) & 1) + 8 * (i & 1)

    def src_read(i):
        a(f"ds_read_u16 v{vIdx + 2*(i % NI)}, v{vEll} offset:{32*i}")

    def e_read(p):
        a(f"ds_read_u16 v{vE}, v{vEe} offset:{64*p}")

    def gather(i):
        a(f"buffer_load_dwordx4 {vr(pbuf[(i >> 1) % DP] + 4*(i & 1), 4)}, {vr(vIdx + 2*(i % NI), 2)}, {sr(sP,4)}, 0 idxen offen")

    def m4(i, hf):
        z = Z(i) + 4 * hf
        return f"v_mfma_f32_4x4x4_16b_bf16 {vr(z,4)}, {vr(vI4,2)}, {vr(pbuf[(i >> 1) % DP] + 4*(i & 1) + 2*hf, 2)}, {vr(z,4)}"

    shift = f"v_lshlrev_b64 {vr(vEs,2)}, v{vSh}, {vr(vE,2)}"

    def mhi(p):
        return f"v_mfma_f32_32x32x8_bf16 {vr(Z(2*p),16)}, {vr(vAh,2)}, {vr(vEs,2)}, {vr(vQ,16)}"

    def count(tag):
        a(f"s_mov_b64 {sr(sEx,2)}, exec", "s_mov_b64 exec, 1", f"s_lshl_b32 s{st0}, s{spend}, 2", f"v_add_u32 v{vT0}, s{st0}, v{vCtr}",
          f"ds_add_rtn_u32 v{vT0}, v{vT0}, v{vInc} offset:{B_CNTA - 4 - B_CTR}", f"s_lshl_b32 s{st0}, s{spend}, 3",
          f"s_add_u32 s{st0}, s{st0}, s{sk}", f"s_sub_u32 s{st0}, s{st0}, 8", f"s_lshl_b32 s{st0}, s{st0}, 7", f"v_mov_b32 v{vT1}, s{st0}",
          f"s_mov_b32 s{spend}, 0",
          "s_waitcnt lgkmcnt(0)", f"v_readfirstlane_b32 s{st0}, v{vT0}", f"s_cmp_lg_u32 s{st0}, {15*64}", f"s_cbranch_scc1 K2_CE{tag}",
          f"buffer_store_dword v{vInc}, v{vT1}, {sr(sFl,4)}, 0 offen sc1")
        if STAMPS and not OPT["light"]:
            a(f"v_readfirstlane_b32 s{st0}, v{vT1}", f"s_lshr_b32 s{st0}, s{st0}, 10", f"s_add_u32 m0, s{st0}, 17")
            a.stamp("m0")
        a(f"K2_CE{tag}:", f"s_mov_b64 exec, {sr(sEx,2)}")

    def image_wait(tag):
        a(f"K2_IW{tag}:", f"ds_read_b32 v{vT0}, v{vCtr} offset:{B_CNTA + 40 - B_CTR}", "s_waitcnt lgkmcnt(0)",
          f"v_readfirstlane_b32 s{st0}, v{vT0}", f"s_cmp_lt_u32 s{st0}, {6*64}", f"s_cbranch_scc1 K2_IW{tag}")

    def finish():
        for r in range(8):
            a(f"v_rcp_f32 v{vT+r}, v{vDen+r}")
        for r in range(0, 8, 2):
            a(f"v_pk_mul_f32 {vr(vNum+r,2)}, {vr(vNum+r,2)}, {vr(vT+r,2)}")
        for r in range(4):
            a(f"v_cvt_pk_bf16_f32 v{vT+r}, v{vNum+2*r}, v{vNum+2*r+1}")
        a(f"buffer_store_dwordx4 {vr(vT,4)}, v{vSt}, {sr(sS,4)}, s{sSo} offen sc1")

    if OPT["tw2"]:
        a(f"s_cmp_lg_u32 s{sw}, 15", "s_cbranch_scc1 K2_NOPF", f"v_lshlrev_b32 v{vT2}, 7, v{vLane}", f"s_lshl_b32 s{st0}, s{srng}, 13",
          f"buffer_load_dword v{vT3}, v{vT2}, {sr(sF,4)}, s{st0} offen", "K2_NOPF:")
    if OPT["stag"]:
        a(f"s_lshl_b32 s{st0}, s{sw}, 2", f"s_add_u32 s{st0}, s{st0}, {B_GO}", f"v_mov_b32 v{vGo}, s{st0}",
          f"s_cmp_lt_u32 s{sw}, 4", "s_cbranch_scc1 K2_GO", f"v_subrev_u32 v{vT0}, 16, v{vGo}")
        if OPT["stag"] >= 3:
            a(f"s_cmp_lt_u32 s{sw}, {4*(OPT['stag'] - 1)}", "s_cbranch_scc1 K2_IWA")
        a("K2_WAITGO:", f"ds_read_b32 v{vT1}, v{vT0}", "s_waitcnt lgkmcnt(0)", f"v_readfirstlane_b32 s{st0}, v{vT1}",
          f"s_cmp_eq_u32 s{st0}, 0", "s_cbranch_scc1 K2_WAITGO")
        if OPT["estart"]:
            image_wait("A")
        a("K2_GO:")
    elif OPT["estart"]:
        a(f"s_cmp_lt_u32 s{sw}, 4", "s_cbranch_scc1 K2_GO")
        image_wait("A")
        a("K2_GO:")
    if OPT["prio"]:
        a("s_setprio 3")
    a("K2_GROUP:")
    a(f"v_add_u32 v{vT0}, s{sg}, v{vMetL}", f"s_mov_b32 s{sP+2}, {N}",
      f"ds_read_u16 v{vEll}, v{vT0} offset:{B_META}", f"ds_read_u16 v{vQi}, v{vT0} offset:{B_META + 2}",
      f"ds_read_b32 v{vDeg}, v{vT0} offset:{B_META + 4}")
    if OPT["prespread"]:
        a(f"s_lshr_b32 s{sPr}, s{sg}, 6", f"s_sub_u32 s{sPr}, s{sPr}, 16", f"s_cmp_lt_u32 s{sPr}, 16", f"s_cselect_b32 s{sPn}, 6, 0",
          f"s_lshr_b32 s{st0}, s{sPr}, 1", f"s_lshl_b32 s{st0}, s{st0}, 15", f"s_and_b32 s{st1}, s{sPr}, 1", f"s_mul_i32 s{st1}, s{st1}, 6144",
          f"s_mul_i32 s{sPl}, s{sPr}, 6144", f"s_add_u32 s{sPr}, s{st0}, s{st1}", f"s_add_u32 s{sPl}, s{sPl}, {K2_BB}")
    elif not OPT["diag"] & 8:
        a(f"s_lshr_b32 s{sdmax}, s{sg}, 6", f"s_sub_u32 s{sdmax}, s{sdmax}, 16", f"s_cmp_lt_u32 s{sdmax}, 16", "s_cbranch_scc1 K2_PRE")
    a("K2_PRED:")
    a("s_waitcnt lgkmcnt(2)")
    for i in range(NI):
        src_read(i)
    a(f"v_add_u32 v{vEe}, v{vEll}, v{vHoff}", f"s_waitcnt lgkmcnt({NI})")
    a(f"buffer_load_dwordx4 {vr(vZ+16,4)}, {vr(vQi,2)}, {sr(sQ,4)}, 0 idxen offen")
    e_read(0)
    a(f"v_readlane_b32 s{sdmax}, v{vDeg}, 0", f"v_readlane_b32 s{sdmin}, v{vDeg}, 28")
    for i in range(NI):
        a(f"s_waitcnt lgkmcnt({NI-i})")
        gather(i)
    if DP == 2:
        src_read(4)
        src_read(5)
        a("s_waitcnt lgkmcnt(2)")
        a(shift)
        e_read(1)
    else:
        for pr in (1, 2):
            src_read(2 * pr)
            src_read(2 * pr + 1)
            if pr == 1:
                a("s_waitcnt lgkmcnt(2)", shift)
                e_read(1)
                a("s_waitcnt lgkmcnt(1)")
            else:
                a("s_waitcnt lgkmcnt(0)")
            gather(2 * pr)
            gather(2 * pr + 1)
        src_read(6)
        src_read(7)
    if not OPT["late"]:
        a("s_mov_b64 exec, 1", f"ds_add_rtn_u32 v{vNxt}, v{vCtr}, v{vInc}", "s_mov_b64 exec, -1")
    finish()
    a(f"s_waitcnt vmcnt({2*DP + 1})")
    if OPT["stag"] == 2:
        a(f"ds_write_b32 v{vGo}, v{vGo}")
    for q in range(4):
        a(f"v_mfma_f32_4x4x4_16b_bf16 {vr(vQ+4*q,4)}, {vr(vI4,2)}, {vr(vZ+16+2*(q&1),2)}, 0")
    a("s_nop 3")
    a(mhi(0))
    a(f"s_lshl_b32 s{sSo}, s{sg}, 7", f"s_lshl_b32 s{st0}, s{sk}, 10", f"s_add_u32 s{sSo}, s{sSo}, s{st0}", "s_nop 6", f"s_waitcnt vmcnt({2*DP - 1})")
    if OPT["stag"] in (1, 3, 4, 5):
        a(f"ds_write_b32 v{vGo}, v{vGo}")
    a(m4(0, 0), m4(0, 1), m4(1, 0), m4(1, 1))
    a("s_waitcnt lgkmcnt(0)")
    gather(2 * DP)
    gather(2 * DP + 1)
    a(shift)
    src_read(2 * DP + 2)
    src_read(2 * DP + 3)
    e_read(2)
    if OPT["cntearly"] == 16:
        a(f"s_cmp_lg_u32 s{spend}, 0", "s_cbranch_scc1 K2_CNT3", "K2_CNT3D:")
    elif OPT["cntearly"] < NGRP:
        a(f"s_cmp_ge_u32 s{sg}, {OPT['cntearly']*64}", "s_cbranch_scc1 K2_CNT3", "K2_CNT3D:")
    if OPT["prio"]:
        if OPT["endg"]:
            a(f"s_mov_b32 s{seg}, 0", f"s_cmp_lt_u32 s{sg}, {16*64}", "s_cbranch_scc1 K2_PRX", "s_setprio 2",
              f"s_cmp_lt_u32 s{sg}, {OPT['endg']*64}", "s_cbranch_scc1 K2_PRX", "s_setprio 1", f"s_mov_b32 s{seg}, 1",
              f"s_sub_u32 s{st0}, s{sdmax}, {OPT['eg2']}", f"s_cselect_b32 s{st0}, 0, s{st0}", f"s_min_u32 s{sdmin}, s{sdmin}, s{st0}", "K2_PRX:")
        elif OPT["prio"] == 1:
            a(f"s_cmp_lt_u32 s{sg}, {16*64}", "s_cbranch_scc1 K2_PRX", "s_setprio 2", f"s_cmp_lt_u32 s{sg}, {24*64}", "s_cbranch_scc1 K2_PRX",
              "s_setprio 1", f"s_cmp_lt_u32 s{sg}, {32*64}", "s_cbranch_scc1 K2_PRX", "s_setprio 0", "K2_PRX:")
        else:
            a(f"s_cmp_lt_u32 s{sg}, {16*64}", "s_cbranch_scc1 K2_PRX", "s_setprio 2", f"s_cmp_lt_u32 s{sg}, {OPT['prio']*64}",
              "s_cbranch_scc1 K2_PRX", "s_setprio 1", "K2_PRX:")
    a("s_nop 1" if OPT["prio"] else "s_nop 3")
    if STAMPS and not OPT["light"]:
        a("s_mov_b32 m0, s99", "s_add_u32 s99, s99, 1")
        a.stamp("m0")

    NP = MAXDEG // 2
    for i in range(MAXDEG):
        z = Z(i)
        p = i >> 1
        a(f"s_cmp_le_u32 s{sdmin}, {i}", f"s_cbranch_scc1 K2_OOL{i}", f"K2_S{i}:")
        ex = [f"v_exp_f32 v{vT+r}, v{z+r}" for r in range(8)]
        num_src = Z(0) if i == 1 else vNum
        if i == 0:
            upd = ["s_nop 0"] + [f"v_pk_add_f32 {vr(vDen+r,2)}, {vr(vT+r,2)}, {sr(sOne,2)}" for r in range(0, 8, 2)]
        else:
            upd = [f"v_pk_fma_f32 {vr(z+r,2)}, {vr(z+r,2)}, {vr(vDen+r,2)}, {vr(num_src+r,2)}" for r in range(0, 8, 2)]
            upd += [f"v_pk_fma_f32 {vr(vNum+r,2)}, {vr(num_src+r,2)}, {vr(vT+r,2)}, {vr(z+r,2)}" for r in range(0, 8, 2)]
            upd += [f"v_pk_fma_f32 {vr(vDen+r,2)}, {vr(vDen+r,2)}, {vr(vT+r,2)}, {vr(vDen+r,2)}" for r in range(0, 8, 2)]
        if (i & 1) == 0:
            if OPT["prespread"] and 1 <= p <= 6:
                a(f"s_cmp_lg_u32 s{sPn}, 0", f"s_cbranch_scc1 K2_PS{p}", f"K2_PS{p}D:")
            if p + 1 < NP:
                a(*([] if OPT["diag"] & 1 else [mhi(p + 1)]), *ex)
            else:
                a(*ex)
            a(*upd)
        else:
            if p + 1 < NP:
                younger = 2 * (min(p + DP, NP - 1) - (p + 1)) + (1 if p + 1 < DP else 0)
                a(f"s_waitcnt vmcnt({younger})")
                if p == DP - 1 and OPT["cntearly"] > 16:
                    a(f"s_cmp_lg_u32 s{spend}, 0", "s_cbranch_scc1 K2_CNT", "K2_CNTD:")
                if OPT["diag"] & 2:
                    a(*ex[0:4])
                else:
                    a(m4(2*p+2, 0), ex[0], m4(2*p+2, 1), ex[1], m4(2*p+3, 0), ex[2], m4(2*p+3, 1), ex[3])
            else:
                a(*ex[0:4])
            if p + 2 < NP:
                a("s_waitcnt lgkmcnt(0)")
            g = p + 1 + DP
            if g < NP:
                if OPT["clip"] == 1:
                    a(f"s_cmp_gt_u32 s{sdmax}, {2*g}", f"s_cselect_b32 s{sP+2}, {N}, 0")
                if OPT["clip"] == 2:
                    a(f"s_cmp_gt_u32 s{sdmax}, {2*g}", f"s_mov_b64 {sr(sEx,2)}, exec", "s_cselect_b64 exec, exec, 0")
                if OPT["diag"] & 4:
                    a(f"s_mov_b32 s{sP+2}, 0")
                gather(2 * g)
                gather(2 * g + 1)
                if OPT["clip"] == 2:
                    a(f"s_mov_b64 exec, {sr(sEx,2)}")
            a(*ex[4:8])
            if p + 2 < NP:
                a(shift)
            if g + 1 < NP:
                src_read(2 * g + 2)
                src_read(2 * g + 3)
            if p + 3 < NP:
                e_read(p + 3)
            a(*upd)
    a("K2_FIN:")
    if OPT["late"]:
        a("s_mov_b64 exec, 1", f"ds_add_rtn_u32 v{vNxt}, v{vCtr}, v{vInc}")
    a("s_mov_b64 exec, -1")
    if OPT["prio"]:
        a("s_setprio 3")
    if OPT["prespread"]:
        a("K2_PSFD:", f"s_cmp_lg_u32 s{sPn}, 0", "s_cbranch_scc1 K2_PSF")
    if OPT["cntearly"] > 16:
        a(f"s_cmp_lg_u32 s{spend}, 0", "s_cbranch_scc1 K2_CNT2", "K2_CNT2D:")
    a(f"s_lshr_b32 s{spend}, s{sg}, 10",
      f"s_add_u32 s{spend}, s{spend}, 1", f"s_cmp_lt_u32 s{spend}, 3", f"s_cselect_b32 s{spend}, s{spend}, 0")
    a(f"v_pk_mul_f32 {vr(vT0,2)}, {vr(vDen,2)}, {vr(vDen+2,2)}", f"v_pk_mul_f32 {vr(vT2,2)}, {vr(vNum,2)}, {vr(vNum+2,2)}",
      f"v_pk_fma_f32 {vr(vT0,2)}, {vr(vDen+4,2)}, {vr(vDen+6,2)}, {vr(vT0,2)}",
      f"v_pk_fma_f32 {vr(vT2,2)}, {vr(vNum+4,2)}, {vr(vNum+6,2)}, {vr(vT2,2)}",
      f"v_pk_fma_f32 {vr(vT0,2)}, {vr(vT2,2)}, 0, {vr(vT0,2)} op_sel_hi:[1,0,1]",
      f"v_add_f32 v{vT0}, v{vT0}, v{vT1}", f"v_cmp_ngt_f32 vcc, s{sBig}, v{vT0}",
      "s_waitcnt lgkmcnt(0)", f"v_readfirstlane_b32 s{sg}, v{vNxt}")
    if not OPT["diag"]:
        a("s_cbranch_vccnz K2_SAFE")
    a("K2_NEXT:")
    if OPT["estart"]:
        a(f"s_cmp_lt_u32 s{sw}, 4", "s_cbranch_scc1 K2_IWB", "K2_IWBD:")
    if STAMPS and not OPT["light"]:
        a("s_mov_b32 m0, s99", "s_add_u32 s99, s99, 1")
        a.stamp("m0")
        a("s_mov_b32 m0, s99", "s_add_u32 s99, s99, 1", f"v_writelane_b32 v31, s{sdmax}, m0")
    a(f"s_add_u32 s{sg}, s{sg}, {16*64}", f"s_cmp_lt_u32 s{sg}, {NGRP*64}", "s_cbranch_scc1 K2_GROUP")

    vA, vA0, vA2, vB2, vAcc = 8, 24, 25, 28, 48
    if DP == 3:
        vCtr, vInc, vL16 = 126, 123, 124
    vB = [32, 36, 40, 44] + list(range(88, 120, 4)) + [72, 76, 80, 84]
    vMa, vCol, vRed, vWa = 120, 121, 122, 125
    scg, skh, sact, stk = sM, sM + 1, sM + 2, sM + 3
    sB2 = sPf

    def b_global(first, gentle):
        a(f"s_lshl_b32 s{st0}, s{scg}, 15", f"s_lshl_b32 s{st1}, s{skh}, 14", f"s_add_u32 s{st0}, s{st0}, s{st1}")
        for n in range(first, 16):
            if n % 4 == 0 and n:
                a(f"s_add_u32 s{st0}, s{st0}, {4096 if n > first else 1024*n}")
            if gentle and n > first and n % OPT["bb"] == 0:
                a("s_waitcnt vmcnt(0)")
            a(f"buffer_load_dwordx4 {vr(vB[n],4)}, v{vL16}, {sr(sF,4)}, s{st0} offen offset:{1024*(n % 4)}")

    def relocate():
        if DP == 3:
            a("s_waitcnt vmcnt(0)", "v_mov_b32 v126, v20", "v_mov_b32 v123, v21", "v_mov_b32 v124, v22")

    def roles():
        a(f"s_and_b32 s{scg}, s{sw}, 7", f"s_lshr_b32 s{skh}, s{sw}, 3", f"s_and_b32 s{st0}, s{sk}, 1",
          f"s_lshr_b32 s{sact}, s{scg}, 2", f"s_xor_b32 s{sact}, s{sact}, s{st0}")

    def b_loads(tag):
        a(f"s_cmp_eq_u32 s{skh}, 0", f"s_cbranch_scc1 K2_BL{tag}")
        b_global(0, tag == "B")
        a(f"s_branch K2_BX{tag}", f"K2_BL{tag}:")
        b_global(12, tag == "B")
        a(f"K2_BX{tag}:")

    def lds_spin(tag, word, least):
        a(f"K2_SP{tag}:", f"ds_read_b32 v{vT0}, v{vCtr} offset:{B_CNTA + word - B_CTR}", "s_waitcnt lgkmcnt(0)",
          f"v_readfirstlane_b32 s{st0}, v{vT0}", f"s_cmp_lt_u32 s{st0}, {least}", f"s_cbranch_scc1 K2_SP{tag}")

    def ticket(word):
        a("s_mov_b64 exec, 1", f"ds_add_rtn_u32 v{vT0}, v{vCtr}, v{vInc} offset:{B_CNTA + word - B_CTR}", "s_mov_b64 exec, -1",
          "s_waitcnt lgkmcnt(0)", f"v_readfirstlane_b32 s{stk}, v{vT0}")

    def fetch(t, dst):
        a(f"s_cmp_lg_u32 s{stk}, 0", f"s_cbranch_scc1 K2_SPF{t}")
        a("s_mov_b64 exec, 0xff", f"v_lshlrev_b32 v{vT2}, 7, v{vLane}", f"s_mov_b32 s{st1}, 0", f"K2_P{t}:",
          f"buffer_load_dword v{vT1}, v{vT2}, {sr(sFl,4)}, 0 offen offset:{1024*t} sc1", f"s_add_u32 s{st1}, s{st1}, 1", "s_waitcnt vmcnt(0)",
          f"v_cmp_eq_u32 vcc, 0, v{vT1}", f"s_cbranch_vccz K2_P{t}D", f"s_cmp_lt_u32 s{st1}, 0x400000", f"s_cbranch_scc1 K2_P{t}",
          f"K2_P{t}D:", "s_mov_b64 exec, -1", f"ds_write_b32 v{vCtr}, v{vInc} offset:{B_CNTA + 20 + 4*t - B_CTR}")
        lds_spin(f"F{t}", 20 + 4 * t, 1)
        a.stamp((3, 7, 22)[t])
        a(f"s_lshr_b32 s{st0}, s{sk}, {1 if t == 2 else 0}", f"s_add_u32 s{st0}, s{st0}, {8*t}", f"s_lshl_b32 s{st0}, s{st0}, 14",
          f"s_lshl_b32 s{st1}, s{stk}, 6", f"s_add_u32 s{st0}, s{st0}, s{st1}")
        for q in range(4):
            a(f"buffer_load_dwordx4 {vr(vA+4*q,4)}, v{vL16}, {sr(sS,4)}, s{st0} offen offset:{1024*q} sc1")
        a(f"s_add_u32 s{st1}, s{st1}, {dst}", f"v_add_u32 v{vWa}, s{st1}, v{vL16}")
        for q in range(4):
            a(f"s_waitcnt vmcnt({3-q})", f"ds_write_b128 v{vWa}, {vr(vA+4*q,4)} offset:{1024*q}")
        a.stamp((4, 25, 26)[t])
        if (OPT["split"] and t < 2) or (OPT["pairs"] and t == 2):
            a("s_waitcnt lgkmcnt(0)", "s_mov_b64 exec, 1", f"ds_add_u32 v{vCtr}, v{vInc} offset:{B_CNTA + (32, 36, 44)[t] - B_CTR}", "s_mov_b64 exec, -1")

    relocate()
    roles()
    ticket(12)
    a(f"s_cmp_lt_u32 s{stk}, {OPT['early']*64}", "s_cbranch_scc1 K2_TE", f"s_cmp_lg_u32 s{spend}, 0", "s_cbranch_scc1 K2_TL")
    b_loads("A")
    finish()
    a.stamp(20)
    a("s_branch K2_TC", "K2_TL:")
    finish()
    a.stamp(20)
    b_loads("C")
    a(f"s_cmp_eq_u32 s{skh}, 0", "s_cbranch_scc1 K2_TL0", "s_waitcnt vmcnt(16)", "s_branch K2_TL1", "K2_TL0:", "s_waitcnt vmcnt(4)", "K2_TL1:")
    count("L")
    a("s_branch K2_TC", "K2_TE:")
    finish()
    a.stamp(20)
    a("K2_TAIL:", "s_setprio 0" if not OPT["hprio"] else "s_nop 0", f"s_cmp_eq_u32 s{spend}, 0", "s_cbranch_scc1 K2_TAIL2", "s_waitcnt vmcnt(0)")
    count("C")
    a("K2_TAIL2:")
    b_loads("B")
    a("K2_TC:", "s_setprio 0" if not OPT["hprio"] else "s_nop 0")
    a.srd(sB2, 18, 0, 512)
    a(f"s_cmp_ge_u32 s{stk}, {4*64}", "s_cbranch_scc1 K2_NF0")
    fetch(0, K2_AB)
    a(f"s_mov_b32 s{stk}, {8*64}", "K2_NF0:")
    a(f"s_cmp_lt_u32 s{stk}, {8*64}", "s_cbranch_scc1 K2_SPW", "s_setprio 0", f"s_cmp_eq_u32 s{skh}, 0", "s_cbranch_scc0 K2_T1")
    lds_spin("W", 4, 16 * 64)
    a(f"s_cmp_eq_u32 s{skh}, 0", "s_cbranch_scc0 K2_T1")
    a(f"s_mul_i32 s{st0}, s{scg}, 12288", f"s_add_u32 s{st0}, s{st0}, {K2_BB}", f"v_add_u32 v{vT0}, s{st0}, v{vL16}")
    for n in range(12):
        a(f"ds_read_b128 {vr(vB[n],4)}, v{vT0} offset:{1024*n}")
    a("K2_T1:")
    if OPT["f2early"]:
        a("s_waitcnt vmcnt(0)", f"s_mov_b32 s{spend}, 3")
        count("D")
    a(f"s_cmp_ge_u32 s{stk}, {8*64}", "s_cbranch_scc1 K2_NF1", f"s_sub_u32 s{stk}, s{stk}, {4*64}")
    fetch(1, K2_AB + 16384)
    a("K2_NF1:")
    a(f"v_and_b32 v{vT0}, 15, v{vLane}", f"v_lshlrev_b32 v{vT0}, 2, v{vT0}", f"s_lshl_b32 s{st0}, s{scg}, 6",
      f"v_add_u32 v{vCol}, s{st0}, v{vT0}", f"buffer_load_dword v{vB2}, v{vCol}, {sr(sB2,4)}, 0 offen")
    a(f"v_and_b32 v{vT0}, 7, v{vLane}", f"v_lshlrev_b32 v{vA2}, 6, v{vT0}", f"v_bfe_u32 v{vT1}, v{vLane}, 3, 1",
      f"v_lshl_add_u32 v{vA2}, v{vT1}, 13, v{vA2}", f"v_lshrrev_b32 v{vT3}, 4, v{vLane}", f"v_lshrrev_b32 v{vT0}, 2, v{vT0}",
      f"v_lshlrev_b32 v{vT0}, 1, v{vT0}", f"v_xor_b32 v{vT0}, v{vT0}, v{vT3}", f"v_lshl_add_u32 v{vA2}, v{vT0}, 4, v{vA2}",
      f"s_lshl_b32 s{st0}, s{skh}, 12", f"s_add_u32 s{st0}, s{st0}, {K2_BB}", f"v_add_u32 v{vA2}, s{st0}, v{vA2}",
      f"v_add_u32 v{vA0}, {K2_AB - K2_BB}, v{vA2}")
    a(f"v_lshlrev_b32 v{vMa}, 5, v{vT3}", f"v_add_u32 v{vMa}, {B_META}, v{vMa}",
      f"s_mul_i32 s{st0}, s{scg}, 6144", f"s_add_u32 s{st0}, s{st0}, {K2_BB + 16384}", f"v_add_u32 v{vRed}, s{st0}, v{vL16}",
      f"s_mov_b32 s{sK}, {NLN2}")
    if OPT["split"]:
        lds_spin("E", 12, 16 * 64)
        lds_spin("R0", 32, 4 * 64)
    else:
        a("s_waitcnt lgkmcnt(0)", "s_barrier")
    a.stamp(21)
    if not OPT["f2early"]:
        a("s_waitcnt vmcnt(0)", f"s_mov_b32 s{spend}, 3")
        count("D")

    def compute(tiles):
        a.lg = []
        nt = len(tiles)
        depth = 4 // nt

        def f_read(s):
            for i, t in enumerate(tiles):
                base, off = (vA2, 0) if t == 2 else (vA0, 16384 * t)
                a.lds(f"ds_read_b128 {vr(vA + 4*((s % depth)*nt + i), 4)}, v{base} offset:{off + 1024*(s >> 1) + 512*(s & 1)}", f"f{s}")
        for s in range(depth - 1):
            f_read(s)
        for s in range(8):
            if s + depth - 1 < 8:
                f_read(s + depth - 1)
            a.wait(lg=f"f{s}")
            for i, t in enumerate(tiles):
                for b in range(2):
                    acc = vAcc + 8 * t + 4 * b
                    a(f"v_mfma_f32_16x16x32_bf16 {vr(acc,4)}, {vr(vA + 4*((s % depth)*nt + i), 4)}, {vr(vB[2*s + b], 4)}, {'0' if s == 0 else vr(acc, 4)}")

    def give(t):
        a("s_nop 7")
        for q in range(2):
            a(f"ds_write_b128 v{vRed}, {vr(vAcc+8*t+4*q,4)} offset:{2048*t + 1024*q}")

    def out_tile(t):
        acc = vAcc + 8 * t
        a(f"s_lshr_b32 s{st0}, s{sk}, {1 if t == 2 else 0}", f"s_add_u32 s{st0}, s{st0}, {8*t}", f"s_lshl_b32 s{st0}, s{st0}, 7",
          f"v_add_u32 v{vT0}, s{st0}, v{vMa}",
          f"ds_read_b128 {vr(vA,4)}, v{vT0}", f"ds_read_b128 {vr(vA+4,4)}, v{vT0} offset:16")
        for q in range(2):
            a(f"ds_read_b128 {vr(vA+8+4*q,4)}, v{vRed} offset:{2048*t + 1024*q}")
        a("s_waitcnt lgkmcnt(2)")
        for r in range(4):
            a(f"v_lshrrev_b32 v{vA+2*r}, 16, v{vA+2*r}", f"v_cvt_f32_u32 v{vA+2*r+1}, v{vA+2*r+1}",
              f"v_lshl_add_u32 v{vA+2*r}, v{vA+2*r}, 9, v{vCol}")
        a("s_waitcnt lgkmcnt(0)")
        for r in range(8):
            a(f"v_add_f32 v{acc+r}, v{acc+r}, v{vA+8+r}")
        for r in range(4):
            a(f"v_mul_f32 v{vT0}, v{vA+2*r+1}, v{vB2}", f"v_mul_f32 v{vT1}, v{vA+2*r+1}, v{vB2+1}",
              f"v_fma_f32 v{acc+r}, v{acc+r}, s{sK}, v{vT0}", f"v_fma_f32 v{acc+4+r}, v{acc+4+r}, s{sK}, v{vT1}",
              f"v_cvt_pk_bf16_f32 v{acc+r}, v{acc+r}, v{acc+4+r}",
              f"buffer_store_dword v{acc+r}, v{vA+2*r}, {sr(sO,4)}, 0 offen{' sc1' if OPT['sc3'] else ''}")

    def signal(val):
        a("s_waitcnt lgkmcnt(0)", f"v_mov_b32 v{vT0}, {val}", f"ds_write_b32 v{vPa}, v{vT0}")

    def partner(tag, val):
        a(f"K2_PW{tag}:", f"ds_read_b32 v{vT0}, v{vPb}", "s_waitcnt lgkmcnt(0)", f"v_readfirstlane_b32 s{st0}, v{vT0}",
          f"s_cmp_lt_u32 s{st0}, {val}", f"s_cbranch_scc1 K2_PW{tag}")
    if OPT["pairs"]:
        vPa, vPb = 26, 27
        a(f"s_lshl_b32 s{st0}, s{sw}, 2", f"s_add_u32 s{st1}, s{st0}, {B_GO}", f"v_mov_b32 v{vPa}, s{st1}",
          f"s_xor_b32 s{st0}, s{st0}, 32", f"s_add_u32 s{st1}, s{st0}, {B_GO}", f"v_mov_b32 v{vPb}, s{st1}")
        a("s_setprio 2", f"s_cmp_eq_u32 s{sact}, 0", "s_cbranch_scc1 K2_Q0", "s_setprio 1", f"s_cmp_eq_u32 s{skh}, 0", "s_cbranch_scc1 K2_Q0",
          "s_setprio 3", f"s_and_b32 s{stk}, s{scg}, 3", f"s_lshl_b32 s{stk}, s{stk}, 6")
        fetch(2, K2_BB)
        a("s_setprio 0", "K2_Q0:")
        compute((0, 1))
        a(f"s_cmp_eq_u32 s{skh}, 0", "s_cbranch_scc1 K2_G0")
        give(0)
        a("s_branch K2_G1", "K2_G0:")
        give(1)
        a("K2_G1:")
        signal(1)
        a("s_waitcnt vmcnt(0)", f"v_and_b32 v{vB2+1}, 0xffff0000, v{vB2}", f"v_lshlrev_b32 v{vB2}, 16, v{vB2}")
        a.stamp(23)
        partner("A", 1)
        a(f"s_cmp_eq_u32 s{skh}, 0", "s_cbranch_scc1 K2_O0")
        out_tile(1)
        a("s_branch K2_O1", "K2_O0:")
        out_tile(0)
        a("K2_O1:", f"s_cmp_lg_u32 s{sact}, 0", "s_cbranch_scc1 K2_OX")
        lds_spin("R2", 40 + 4, 4 * 64)
        a.stamp(24)
        compute((2,))
        a(f"s_cmp_eq_u32 s{skh}, 0", "s_cbranch_scc1 K2_O2")
        give(2)
        signal(2)
        a("s_branch K2_OX", "K2_O2:")
        partner("B", 2)
        out_tile(2)
    else:
        if OPT["split"]:
            compute((0,))
            lds_spin("R1", 36, 4 * 64)
            compute((1,))
            lds_spin("D", 8, 16 * 64)
        else:
            compute((0, 1))
        a(f"s_cmp_eq_u32 s{skh}, 0", "s_cbranch_scc1 K2_G0")
        give(0)
        a("s_branch K2_G1", "K2_G0:")
        give(1)
        a("K2_G1:", "s_waitcnt vmcnt(0)", f"v_and_b32 v{vB2+1}, 0xffff0000, v{vB2}", f"v_lshlrev_b32 v{vB2}, 16, v{vB2}")
        a.stamp(23)
        ticket(16)
        a(f"s_cmp_ge_u32 s{stk}, {4*64}", "s_cbranch_scc1 K2_NF2")
        fetch(2, K2_BB)
        a("K2_NF2:")
        a("s_waitcnt lgkmcnt(0)", "s_barrier")
        a.stamp(24)
        a(f"s_cmp_lg_u32 s{sact}, 0", "s_cbranch_scc1 K2_IDLE2")
        compute((2,))
        a(f"s_cmp_eq_u32 s{skh}, 0", "s_cbranch_scc0 K2_O1")
        out_tile(0)
        a("s_barrier")
        out_tile(2)
        a("s_branch K2_OX", "K2_O1:")
        give(2)
        a("s_waitcnt lgkmcnt(0)", "s_barrier")
        out_tile(1)
        a("s_branch K2_OX", "K2_IDLE2:", f"s_cmp_eq_u32 s{skh}, 0", "s_cbranch_scc1 K2_IDLE3")
        out_tile(1)
        a("s_barrier", "s_branch K2_OX", "K2_IDLE3:")
        out_tile(0)
        a("s_barrier")
    a("K2_OX:")
    a.stamp_dump(sBl, 20, sw, 16)
    a("s_endpgm")

    if DP == 3:
        vCtr, vInc, vL16 = 20, 21, 22
    if OPT["estart"]:
        image_wait("B")
        a("s_branch K2_IWBD")
    if OPT["cntearly"] > 16:
        a("K2_CNT:")
        count("A")
        a("s_nop 3", "s_branch K2_CNTD")
        a("K2_CNT2:", "s_waitcnt vmcnt(0)")
        count("B")
        a("s_branch K2_CNT2D")
    if OPT["cntearly"] < NGRP:
        a("K2_CNT3:", f"s_cmp_eq_u32 s{spend}, 0", "s_cbranch_scc1 K2_CNT3D", "s_waitcnt vmcnt(2)")
        count("E")
        a("s_branch K2_CNT3D")

    if OPT["prespread"]:
        for p in list(range(1, 7)) + ["F"]:
            a(f"K2_PS{p}:", f"s_mov_b64 {sr(sEx,2)}, exec", "s_mov_b64 exec, -1", f"s_mov_b32 m0, s{sPl}", f"s_sub_u32 s{sPn}, s{sPn}, 1",
              f"buffer_load_dwordx4 v{vL16}, {sr(sF,4)}, s{sPr} offen lds", f"s_add_u32 s{sPr}, s{sPr}, 1024", f"s_add_u32 s{sPl}, s{sPl}, 1024",
              f"s_mov_b64 exec, {sr(sEx,2)}", f"s_branch K2_PS{p}D")
    a("K2_PRE:")
    if OPT["qtouch"]:
        a(f"s_cmp_ge_u32 s{sdmax}, 5", "s_cbranch_scc1 K2_PRE2", f"s_lshl_b32 s{st0}, s{sdmax}, 6", f"v_add_u32 v{vT2}, s{st0}, v{vLane}",
          f"buffer_load_dword v{vT3}, v{vT2}, {sr(sQ,4)}, 0 idxen", "K2_PRE2:")
    w2_preload(sdmax)
    a("s_branch K2_PRED")

    for i in range(MAXDEG):
        a(f"K2_OOL{i}:")
        if i == 0:
            for r in range(8):
                a(f"v_mov_b32 v{vNum+r}, 0", f"v_mov_b32 v{vDen+r}, 1.0")
        if i == 1:
            for r in range(8):
                a(f"v_mov_b32 v{vNum+r}, v{Z(0)+r}")
        a(f"s_cmp_le_u32 s{sdmax}, {i}", "s_cbranch_scc1 K2_FIN")
        a(f"v_cmpx_lt_u32 vcc, {i}, v{vDeg}")
        if OPT["endg"]:
            a(f"s_cmp_eq_u32 s{seg}, 0", f"s_cbranch_scc1 K2_OX{i}", f"s_cmp_gt_u32 s{sdmax}, {i + OPT['eg2']}", f"s_cbranch_scc1 K2_OX{i}",
              "s_setprio 0", f"K2_OX{i}:", "s_nop 1")
        else:
            a("s_nop 3")
        a(f"s_branch K2_S{i}")

    a("K2_SAFE:")
    a("s_waitcnt vmcnt(0) lgkmcnt(0)", f"s_mov_b32 s{st0}, 0", f"s_mov_b32 s{sP+2}, {N}")
    for r in range(8):
        a(f"v_mov_b32 v{vNum+r}, 0")
    a("K2_SAFE_L:")
    a(f"s_cmp_ge_u32 s{st0}, s{sdmax}", "s_cbranch_scc1 K2_SAFE_E")
    a(f"v_cmpx_lt_u32 vcc, s{st0}, v{vDeg}")
    src_read(0)
    e_read(0)
    a("s_waitcnt lgkmcnt(0)")
    gather(0)
    a(shift, f"v_add_u32 v{vEll}, 32, v{vEll}", f"v_add_u32 v{vEe}, 32, v{vEe}", "s_nop 1")
    a(mhi(0), "s_nop 9", "s_waitcnt vmcnt(0)", m4(0, 0), m4(0, 1), "s_nop 4")
    for r in range(8):
        a(f"v_exp_f32 v{vT+r}, v{vZ+r}")
    for r in range(0, 8, 2):
        a(f"v_pk_add_f32 {vr(vT+r,2)}, {vr(vT+r,2)}, {sr(sOne,2)}")
    for r in range(8):
        a(f"v_rcp_f32 v{vT+r}, v{vT+r}")
    a("s_nop 0")
    for r in range(0, 8, 2):
        a(f"v_pk_fma_f32 {vr(vNum+r,2)}, {vr(vZ+r,2)}, {vr(vT+r,2)}, {vr(vNum+r,2)}")
    a(f"s_add_u32 s{st0}, s{st0}, 1", "s_branch K2_SAFE_L")
    a("K2_SAFE_E:", "s_mov_b64 exec, -1")
    for r in range(8):
        a(f"v_mov_b32 v{vDen+r}, 1.0")
    a("s_branch K2_NEXT")

    sDst, sSrc, sE = sBl, sPf, sW1
    snode, sbase, sdeg, sbit, ssrc, se, sm = sM, sM + 1, sM + 2, sM + 3, sM + 4, sM + 5, sM + 6
    vc, vq, vacc, vd, vs, ve, vsb, vz = 32, 33, 34, 36, 40, 44, 48, 49
    a("K2_SLOW:")
    w2_preload(sw)
    a(f"s_mov_b32 s{sg}, s{sw}", f"v_cmp_gt_u32 vcc, 320, v0", f"v_lshlrev_b32 v{vT0}, 16, v0", f"v_mov_b32 v{vT1}, 0",
      f"v_lshlrev_b32 v{vT2}, 3, v0", "s_and_saveexec_b64 s[70:71], vcc", f"ds_write_b64 v{vT2}, {vr(vT0,2)} offset:{B_META}",
      "s_mov_b64 exec, -1", "s_waitcnt lgkmcnt(0)", "s_barrier")
    a.srd(sW1, 12, 512 * 1024, 1024)
    a(f"v_and_b32 v{vT0}, 1, v{vLane}", f"v_lshlrev_b32 v{vT0}, 6, v{vT0}", f"v_and_b32 v{vT1}, 62, v{vLane}",
      f"v_add_u32 v{vT0}, v{vT0}, v{vT1}", f"s_lshl_b32 s{st1}, s{sk}, 7")
    a(f"buffer_load_ushort v{vc}, v{vT0}, {sr(sW1,4)}, s{st1} offen", "s_waitcnt vmcnt(0)",
      f"v_lshlrev_b32 v{vc}, 16, v{vc}", f"v_mul_f32 v{vc}, s{sK}, v{vc}")
    a.srd(sDst, 10, 0, E * 4)
    a.srd(sSrc, 8, 0, E * 4)
    a.srd(sE, 6, 0, E * 2)
    a(f"v_lshlrev_b32 v{vIdx+1}, 1, v{vLane}", f"v_lshlrev_b32 v{vT2}, 4, v{vLane}", f"v_lshlrev_b32 v{vT3}, 3, v{vLane}")
    a(f"v_lshrrev_b32 v{vsb}, 5, v{vLane}", f"v_lshlrev_b32 v{vsb}, 9, v{vsb}", f"v_and_b32 v{vT0}, 31, v{vLane}",
      f"v_lshl_add_u32 v{vsb}, v{vT0}, 1, v{vsb}")
    a("K2_SLOW_N:")
    a(f"s_cmp_ge_u32 s{sg}, s{scnt}", "s_cbranch_scc1 K2_SLOW_E")
    a(f"s_mul_i32 s{snode}, s{srng}, {RNG}", f"s_add_u32 s{snode}, s{snode}, s{sg}", f"v_mov_b32 v{vIdx}, s{sg}",
      f"buffer_load_ushort v{vq}, {vr(vIdx,2)}, {sr(sQ,4)}, 0 idxen offen",
      f"v_mov_b32 v{vacc}, 0", f"s_mov_b32 s{sbase}, 0", f"s_mov_b32 s{sdeg}, 0", "s_waitcnt vmcnt(0)",
      f"v_lshlrev_b32 v{vq}, 16, v{vq}")
    a("K2_SLOW_C:")
    a(f"s_lshl_b32 s{st0}, s{sbase}, 2", f"s_lshl_b32 s{st1}, s{sbase}, 1")
    a(f"buffer_load_dwordx4 {vr(vd,4)}, v{vT2}, {sr(sDst,4)}, s{st0} offen",
      f"buffer_load_dwordx4 {vr(vs,4)}, v{vT2}, {sr(sSrc,4)}, s{st0} offen",
      f"buffer_load_dwordx2 {vr(ve+2,2)}, v{vT3}, {sr(sE,4)}, s{st1} offen", "s_waitcnt vmcnt(0)")
    a(f"v_lshlrev_b32 v{ve}, 16, v{ve+2}", f"v_and_b32 v{ve+1}, 0xffff0000, v{ve+2}",
      f"v_lshlrev_b32 v{ve+2}, 16, v{ve+3}", f"v_and_b32 v{ve+3}, 0xffff0000, v{ve+3}")
    for u in range(4):
        a(f"v_cmp_eq_u32 {sr(sm,2)}, s{snode}, v{vd+u}")
        a(f"K2_SLOW_M{u}:", f"s_cmp_eq_u64 {sr(sm,2)}, 0", f"s_cbranch_scc1 K2_SLOW_X{u}")
        a(f"s_ff1_i32_b64 s{sbit}, {sr(sm,2)}", f"s_bitset0_b64 {sr(sm,2)}, s{sbit}", f"s_add_u32 s{sdeg}, s{sdeg}, 1",
          f"v_readlane_b32 s{ssrc}, v{vs+u}, s{sbit}", f"v_readlane_b32 s{se}, v{ve+u}, s{sbit}", "s_nop 1",
          f"v_mov_b32 v{vIdx}, s{ssrc}", f"buffer_load_ushort v{vz}, {vr(vIdx,2)}, {sr(sP,4)}, 0 idxen offen",
          f"v_fma_f32 v{vT0}, s{se}, v{vc}, v{vq}", "s_waitcnt vmcnt(0)",
          f"v_lshlrev_b32 v{vz}, 16, v{vz}", f"v_add_f32 v{vz}, v{vz}, v{vT0}", f"v_exp_f32 v{vT0}, v{vz}", "s_nop 0",
          f"v_add_f32 v{vT0}, 1.0, v{vT0}", f"v_rcp_f32 v{vT0}, v{vT0}", "s_nop 0",
          f"v_fma_f32 v{vacc}, v{vz}, v{vT0}, v{vacc}", f"s_branch K2_SLOW_M{u}")
        a(f"K2_SLOW_X{u}:")
    a(f"s_add_u32 s{sbase}, s{sbase}, 256", f"s_cmp_lt_u32 s{sbase}, {E}", "s_cbranch_scc1 K2_SLOW_C")
    a(f"v_cvt_pk_bf16_f32 v{vacc}, v{vacc}, v{vacc}", f"s_lshl_b32 s{st0}, s{sg}, 3", f"v_mov_b32 v{vT0}, s{st0}",
      f"v_mov_b32 v{vT1}, s{sdeg}", f"ds_write_b32 v{vT0}, v{vT1} offset:{B_META + 4}",
      f"s_lshr_b32 s{st0}, s{sg}, 3", f"s_lshl_b32 s{st0}, s{st0}, 13", f"s_lshl_b32 s{st1}, s{sk}, 10", f"s_add_u32 s{st0}, s{st0}, s{st1}",
      f"s_and_b32 s{st1}, s{sg}, 7", f"s_lshl_b32 s{st1}, s{st1}, 6", f"s_add_u32 s{st0}, s{st0}, s{st1}",
      f"s_and_b32 s{st1}, s{sg}, 4", f"s_lshl_b32 s{st1}, s{st1}, 3", f"v_xor_b32 v{vT0}, s{st1}, v{vsb}")
    a(f"buffer_store_short v{vacc}, v{vT0}, {sr(sS,4)}, s{st0} offen sc1")
    a(f"s_add_u32 s{sg}, s{sg}, 16", "s_waitcnt vmcnt(0) lgkmcnt(0)", "s_branch K2_SLOW_N")
    a("K2_SLOW_E:", "s_waitcnt vmcnt(0) lgkmcnt(0)", "s_barrier")
    relocate()
    vCtr, vInc, vL16 = 126, 123, 124
    roles()
    ticket(12)
    a(f"s_mov_b32 s{spend}, 1")
    count("S")
    a(f"s_mov_b32 s{spend}, 2", "s_branch K2_TAIL")
    a("K2_END:", "s_endpgm")
    return a.lines, descriptor("k2_kernel", nv, 102 if STAMPS else 96)


def k4():
    a = Asm()
    header(a, "k4_kernel")
    if OPT["probe"]:
        assert STAMPS
        a("s_cmp_lg_u32 s2, 0", "s_cbranch_scc1 K4_END", "s_load_dwordx2 s[20:21], s[0:1], 80",
          "v_mov_b32 v1, 0", "v_mov_b32 v2, -1", "v_mov_b32 v3, 0")
        for k in range(3):
            a(f"ds_write_b64 v1, v[2:3] offset:{8*k}")
        a("s_waitcnt lgkmcnt(0)", "s_barrier")
        a.srd(24, 20, STAMP_OFF, 4 << 20)
        for k, (n, stride) in enumerate(((200, 8 * 128), (4096, 128))):
            for i in range((n + 1023) // 1024):
                a(f"v_add_u32 v4, {1024*i}, v0", f"v_cmp_gt_u32 vcc, {n}, v4", f"v_mul_u32_u24 v4, {stride}, v4",
                  f"s_mov_b32 s3, {k << 20}", "s_and_saveexec_b64 s[10:11], vcc", f"s_cbranch_execz K4_S{k}_{i}",
                  "buffer_load_dwordx2 v[6:7], v4, s[24:27], s3 offen offset:112", "s_waitcnt vmcnt(0)",
                  f"ds_min_u32 v1, v7 offset:{8*k}", f"ds_max_u32 v1, v6 offset:{8*k+4}", f"K4_S{k}_{i}:", "s_mov_b64 exec, -1")
        a("s_waitcnt lgkmcnt(0)", "s_barrier", "ds_read_b128 v[8:11], v1", "ds_read_b64 v[12:13], v1 offset:16", "s_waitcnt lgkmcnt(0)")
        if OPT["probe"] == 9:
            a("v_mov_b32 v2, 0", "ds_write_b32 v1, v2 offset:32", "s_waitcnt lgkmcnt(0)", "s_barrier")
            a(f"v_cmp_gt_u32 vcc, {OPT['pwn']}, v0", f"v_mul_u32_u24 v4, {OPT['pstride'] * 128}, v0",
              f"s_mov_b32 s3, {(OPT['pk'] << 20) + OPT['pw0'] * 128}", "s_and_saveexec_b64 s[10:11], vcc", "s_cbranch_execz K4_C",
              "buffer_load_dword v6, v4, s[24:27], s3 offen", f"buffer_load_dword v7, v4, s[24:27], s3 offen offset:{4*OPT['pidx']}",
              "s_waitcnt vmcnt(0)", "v_sub_u32 v6, v7, v6", "ds_max_u32 v1, v6 offset:32", "K4_C:", "s_mov_b64 exec, -1",
              "s_waitcnt lgkmcnt(0)", "s_barrier", "ds_read_b32 v9, v1 offset:32", "s_waitcnt lgkmcnt(0)",
              "v_mul_u32_u24 v9, 3277, v9", "v_lshrrev_b32 v9, 16, v9", "v_mov_b32 v8, 0")
        hi, lo = {9: (9, 8), 1: (9, 8), 2: (11, 10), 3: (13, 12), 4: (11, 8), 5: (10, 9), 6: (12, 11), 7: (8, 8)}[OPT["probe"]]
        a(f"v_sub_u32 v14, v{hi}, v{lo}", "v_min_u32 v14, 10000, v14", "v_mul_u32_u24 v14, 10, v14", "s_nop 0", "v_readfirstlane_b32 s12, v14",
          "s_memrealtime s[14:15]", "s_waitcnt lgkmcnt(0)", "K4_L:", "s_memrealtime s[16:17]", "s_waitcnt lgkmcnt(0)",
          "s_sub_u32 s16, s16, s14", "s_cmp_lt_u32 s16, s12", "s_cbranch_scc1 K4_L")
    a("K4_END:", "s_endpgm")
    return a.lines, descriptor("k4_kernel", 16, 32)


def main(path):
    head = [
        "; Edge-featured MPNN layer: out = segment_sum(silu([x[src], x[dst], e] @ w1 + b1) @ w2 + b2, dst)",
        "; k1: P = x@w1[0:256], Q = x@w1[256:512] + b1 (scaled by -log2e), edge partition by dst range, w2 re-layout",
        "; k2: per 64-channel slice, S[n] = sum over in-edges of z/(1+2^z), z = P[src] + Q[n] + e*c",
        ";     then out = -ln2 * (S @ w2) + deg * b2 after a hand-off among the eight slice workgroups of a range",
        "; kernarg: x, e_attr, src, dst, w1, b1, w2, b2, out, debug, ws (8 bytes each)",
        f"; @launch kernel=k1_kernel grid=(256,1,1) block=(512,1,1) lds={K1_LDS}",
        f"; @launch kernel=k2_kernel grid=(256,1,1) block=(1024,1,1) lds={K2_LDS}",
        '.amdgcn_target "amdgcn-amd-amdhsa--gfx950"',
        ".text",
    ]
    for i in range(3):
        if OPT["rep"] >> i & 1:
            j = [n for n, l in enumerate(head) if f"kernel=k{i+1}_kernel" in l][0]
            head.insert(j, head[j])
    if OPT["empty"] or OPT["probe"]:
        head.insert(5 if OPT["empty"] == 2 else 7, f"; @launch kernel=k4_kernel grid=(1,1,1) block=({1024 if OPT['probe'] else 64},1,1) lds=64")
    body, desc = [], []
    for f in (k1, k2) + ((k4,) if OPT["empty"] or OPT["probe"] else ()):
        b, d = f()
        body += b
        desc += d
    notes = {
        "k1_kernel:": "k1: workgroups 0-31 sort the edges, 212 compute P/Q tiles, the rest re-lay out w2 and w1[512]",
        "K1_PREP:": "w2 -> MFMA B fragments in the channel order of the slices",
        "K1_CPREP:": "-log2e * w1[512] -> A operand of the e*c product",
        "K1_SORT:": "edge sort, level 1: 5000 edges into 32 destination ranges; level 2 follows after a flag hand-off",
        "K1_D1:": "degree sort of the range's nodes, slot-major image of 8-node groups",
        "k2_kernel:": "k2: workgroup = (destination range, 64-channel slice); lane = 32*half + 4*node + piece",
        "K2_GROUP:": "group of 8 nodes: issue its first loads, finish and store the previous group",
        "K2_S0:": "edge slots: sum z/(1+2^z) kept as num/den, num' = num*(1+t) + z*den, den' = den*(1+t), t = 2^z",
        "K2_FIN:": "overflow guard of the num/den form, next group ticket",
        "K2_TC:": "output GEMM: fetch S tiles of the range once the eight slices have stored them",
        "K2_OOL0:": "lanes whose node has no more edges are masked off; exit after the longest node",
        "K2_SAFE:": "direct evaluation of a group whose denominator overflowed",
        "K2_SLOW:": "generic path for ranges that do not fit the fixed-size structures: scan the edge list per node",
    }
    commented = []
    for line in body:
        if line in notes and not line.endswith("_kernel:"):
            commented.append("    ; " + notes[line])
        commented.append(line)
        if line in notes and line.endswith("_kernel:"):
            commented.append("    ; " + notes[line])
    out = head + commented + ['.section .rodata,"a"'] + desc
    open(path, "w").write("\n".join(out) + "\n")


if __name__ == "__main__":
    if "--stamps" in sys.argv:
        STAMPS = True
        sys.argv.remove("--stamps")
    for arg in [x for x in sys.argv[1:] if "=" in x]:
        key, val = arg.split("=")
        assert key in OPT, key
        OPT[key] = int(val)
        sys.argv.remove(arg)
    main(sys.argv[1] if len(sys.argv) > 1 else "standalone__edge_featured_mpnn_mpnn__graph.s")
```

```python
import struct
import sys

N, E, D, H = 10000, 160000, 256, 512
TILE1, NT1 = 192, 53
NR = TILE1 * NT1
SS = NR * 128
P_OFF, Q_OFF, S_OFF = 0, 8 * SS, 16 * SS
RNG = 313
NCHUNK, CHUNK, CAP = 32, 5000, 224
R4BLK, R2BLK = NCHUNK * CAP * 4, NCHUNK * CAP * 2
R4_OFF = 16 * SS + 32 * 40 * 8192
R2_OFF = R4_OFF + 32 * R4BLK
NSLOT = 768
B_META = NSLOT * 32
B_FLAG = B_META + 2560
B_CTR = B_FLAG + 4
B_GO = B_CTR + 4
B_CNTA = B_GO + 64
BLOB = 27 * 1024
BLOB_OFF = R2_OFF + 32 * R2BLK
FL_OFF = BLOB_OFF + 32 * BLOB
W2F_OFF = FL_OFF + 32 * 4096
CF_OFF = W2F_OFF + 262144
WS_END = CF_OFF + 4096
SRB = 40 * 8192
MAXDEG = 48
NGRP = 40


def fbits(x):
    return struct.unpack("<I", struct.pack("<f", x))[0]


NLOG2E = fbits(-1.4426950408889634)
NLN2 = fbits(-0.6931471805599453)

assert all((d * 13401) >> 22 == d // RNG for d in range(10016))
assert all((q * 2341) >> 17 == q // 56 for q in range(2048))
assert all((q * 2341) >> 16 == q // 28 for q in range(1024))


STAMPS = False
OPT = dict(sc1=1, sc3=1, prio=1, empty=0, ipf=1, rot=1, pf=0, light=0, fine=0, la=6, pf0=2, x0pos=0, xrot=0, x1early=0, xspread=1, onebar=1, dual=0, smf=0, ring6=0, gfl=0, qfl=0, pat2=0, x1pos=0, helper=0, ntx=0, ntw=0, nte=0, blobsc=1, xtouch=7, nto=0, ntw2=0, nolo=1, usem4=1, dup=0, rep=0, clip=1, pfearly=1, pfbar=0, k3opt=1, stag=0, pollf=0, bb=4, early=0, pairs=0, tw2=0, hprio=1, late=1, f2early=1, outearly=0, split=0, estart=1, depth=2, diag=0, nbk=8, snake=1, qtouch=0, prespread=0, initlate=1, ipfw=1, srcearly=0, skip3=1, cntearly=16, bsh=0, endg=0, eg1=8, eg2=4, rot3=0, k3w=1, probe=0, pk=0, pidx=0, pw0=0, pwn=0, pstride=1, pfq=0, pfw=1)
STAMP_OFF = 48 << 20


class Asm:
    def stamp_setup(self, vreg, kidx):
        self.st_v, self.st_n, self.st_k = vreg, 0, kidx
        if STAMPS:
            self(f"v_mov_b32 v{vreg}, 0", "s_memrealtime s[100:101]", "s_waitcnt lgkmcnt(0)", f"v_writelane_b32 v{vreg}, s100, 29")
            self.stamp()

    def stamp(self, idx=None):
        if STAMPS and not (OPT["light"] and idx not in ((27, 20) if OPT["light"] == 2 else (27,)) and self.st_n > 0):
            if idx is None:
                idx = self.st_n
                self.st_n += 1
            self("s_waitcnt lgkmcnt(0)", "s_memtime s[100:101]", "s_waitcnt lgkmcnt(0)", f"v_writelane_b32 v{self.st_v}, s100, {idx}")
            self.lg = []

    def stamp_dump(self, srd, wsreg, swave, nwaves, tmp=2):
        if not STAMPS:
            return
        self("s_waitcnt vmcnt(0)")
        self.stamp(27)
        self("s_memrealtime s[100:101]", "s_waitcnt lgkmcnt(0)", f"v_writelane_b32 v{self.st_v}, s100, 28")
        self("s_getreg_b32 s3, hwreg(HW_REG_HW_ID)", f"v_writelane_b32 v{self.st_v}, s3, 30")
        self("s_getreg_b32 s3, hwreg(HW_REG_XCC_ID)", f"v_writelane_b32 v{self.st_v}, s3, 31")
        self.srd(srd, wsreg, STAMP_OFF + (self.st_k << 20), 1 << 20)
        self(f"s_mul_i32 s3, s2, {nwaves}", f"s_add_u32 s3, s3, s{swave}", "s_lshl_b32 s3, s3, 7", "s_mov_b64 exec, -1",
             f"v_lshlrev_b32 v{tmp}, 2, v1", "s_mov_b32 exec_hi, 0",
             f"buffer_store_dword v{self.st_v}, v{tmp}, s[{srd}:{srd+3}], s3 offen")

    def __init__(self):
        self.lines = []
        self.vm = []
        self.lg = []

    def __call__(self, *ls):
        for l in ls:
            self.lines.append(l if l.endswith(":") else "    " + l)

    def vmem(self, line, tag=None):
        self(line)
        self.vm.append(tag)

    def lds(self, line, tag=None):
        self(line)
        self.lg.append(tag)

    @staticmethod
    def _need(q, tags):
        last = -1
        for i, t in enumerate(q):
            if t in tags:
                last = i
        return None if last < 0 else len(q) - 1 - last

    def wait(self, vm=None, lg=None):
        parts = []
        if vm is not None:
            n = 0 if vm == "all" else self._need(self.vm, vm if isinstance(vm, (list, tuple, set)) else [vm])
            if n is not None:
                n = min(n, 63)
                parts.append(f"vmcnt({n})")
                self.vm = self.vm[len(self.vm) - n:] if n else []
        if lg is not None:
            n = 0 if lg == "all" else self._need(self.lg, lg if isinstance(lg, (list, tuple, set)) else [lg])
            if n is not None:
                n = min(n, 15)
                parts.append(f"lgkmcnt({n})")
                self.lg = self.lg[len(self.lg) - n:] if n else []
        if parts:
            self("s_waitcnt " + " ".join(parts))

    def srd(self, s, base, off, size, stride=0):
        if off == 0:
            self(f"s_mov_b32 s{s}, s{base}", f"s_and_b32 s{s+1}, s{base+1}, 0xffff")
        else:
            self(f"s_add_u32 s{s}, s{base}, {off}", f"s_addc_u32 s{s+1}, s{base+1}, 0",
                 f"s_and_b32 s{s+1}, s{s+1}, 0xffff")
        if stride:
            self(f"s_or_b32 s{s+1}, s{s+1}, {stride << 16}")
        self(f"s_mov_b32 s{s+2}, {size}", f"s_mov_b32 s{s+3}, 0x20000")


POLLF = ["sc1", "sc0 sc1", "sc1 nt", "sc0 sc1 nt"]


CFL = ("", " sc1", " nt", " sc0", " sc0 sc1")


def poll_op(dst, addr, srd, off, atomic):
    if atomic:
        return [f"v_mov_b32 v{dst}, 0", f"buffer_atomic_add v{dst}, v{addr}, s[{srd}:{srd+3}], 0 offen offset:{off} sc0 sc1"]
    return [f"buffer_load_dword v{dst}, v{addr}, s[{srd}:{srd+3}], 0 offen offset:{off} sc1"]


def wt():
    return " sc1" if OPT["sc1"] else ""


def code_prefetch(a, first, last, wshift, vtmp, vsink, tag):
    if not OPT["ipf"]:
        return
    a(f"s_getpc_b64 s[22:23]", f"{tag}_PC:", f"s_sub_u32 s22, s22, {tag}_PC-{first}", "s_subb_u32 s23, s23, 0",
      *(["s_lshr_b32 s3, s2, 3", f"s_lshl_b32 s3, s3, {wshift + 10}", f"v_lshlrev_b32 v{vtmp}, 4, v0", f"v_add_u32 v{vtmp}, s3, v{vtmp}"]
        if OPT["ipfw"] == 0 else
        ["s_lshr_b32 s3, s2, 3", "s_sub_u32 s3, s3, 5", "s_lshl_b32 s3, s3, 12", f"v_lshlrev_b32 v{vtmp}, 4, v0", f"v_add_u32 v{vtmp}, s3, v{vtmp}",
         "v_cmp_gt_u32 vcc, 256, v0", "s_nop 1", f"v_cndmask_b32 v{vtmp}, v{vtmp}, -1, vcc"]
        if OPT["ipfw"] == 1 else
        ["s_lshr_b32 s3, s2, 3", "s_sub_u32 s3, 31, s3", f"s_lshl_b32 s3, s3, {wshift + 10}", f"v_lshlrev_b32 v{vtmp}, 4, v0", f"v_add_u32 v{vtmp}, s3, v{vtmp}"]),
      f"v_cmp_gt_u32 vcc, {last}-{first}-16, v{vtmp}", "s_and_saveexec_b64 s[4:5], vcc", f"s_cbranch_execz {tag}_PCX",
      f"global_load_dwordx4 {vr(vsink,4)}, v{vtmp}, s[22:23]", f"{tag}_PCX:", "s_mov_b64 exec, -1")


def vr(a, n=1):
    return f"v{a}" if n == 1 else f"v[{a}:{a+n-1}]"


def sr(a, n=1):
    return f"s{a}" if n == 1 else f"s[{a}:{a+n-1}]"


def header(a, name):
    a.lines += [f".globl {name}", ".p2align 8", f".type {name},@function", f"{name}:"]


def descriptor(name, nv, ns):
    acc = (nv + 3) // 4 * 4
    return [".p2align 6", f".amdhsa_kernel {name}", f"  .amdhsa_next_free_vgpr {nv}",
            f"  .amdhsa_next_free_sgpr {ns}", f"  .amdhsa_accum_offset {acc}",
            "  .amdhsa_group_segment_fixed_size 0", "  .amdhsa_kernarg_size 88",
            "  .amdhsa_user_sgpr_count 2", "  .amdhsa_user_sgpr_kernarg_segment_ptr 1",
            "  .amdhsa_system_sgpr_workgroup_id_x 1", "  .amdhsa_float_denorm_mode_32 3",
            ".end_amdhsa_kernel"]


K1_REG = 40960
K1_LDS = 4 * K1_REG
K1_CNT = 0
K1_I16 = 256
K1_I32 = K1_I16 + 32 * CAP * 2
K1_C2 = 44 * 1024
K1_H2 = K1_C2 + 16 + 10240
K1_NB = K1_H2 + 256
K1_BL = 66 * 1024
assert K1_I32 + 32 * CAP * 4 <= K1_C2 and K1_NB + 16 + 10240 <= K1_BL


def k1():
    a = Asm()
    header(a, "k1_kernel")
    sX, sW, sO, sB = 24, 28, 32, 36
    sw, stile, su, st0, st1, sWB, sXo, sOo, sK, sMask, sRB, sq, sWo, sWn, sWc = 56, 57, 58, 59, 60, 61, 62, 63, 64, 66, 67, 68, 69, 70, 71
    vLane, vT0, vT1, vT2 = 1, 2, 3, 4
    vAad = 6
    vTr = 14
    vXd = 16
    vWd, vSt = 20, 21
    vBias = 22
    vA = 24
    vAcc = 40
    vW = 104
    vWx = vW + 128
    nv = vWx + 3

    a("s_cmp_ge_u32 s2, 256", "s_cbranch_scc1 K1_END")
    a.stamp_setup(5, 0)
    code_prefetch(a, "k1_kernel", "K2_END", 3, 2, vW + 124, "K1")
    a("s_load_dwordx16 s[4:19], s[0:1], 0", "s_load_dwordx2 s[20:21], s[0:1], 80", "s_load_dwordx2 s[52:53], s[0:1], 72")
    a(f"v_lshrrev_b32 v{vT0}, 6, v0", f"v_and_b32 v{vLane}, 63, v0", f"v_readfirstlane_b32 s{sw}, v{vT0}")
    a(f"s_lshr_b32 s{sq}, s2, 3", f"s_cmp_lt_u32 s{sq}, 4", "s_cbranch_scc1 K1_SORT")
    a(f"s_cmp_ge_u32 s{sw}, 4", "s_cbranch_scc1 K1_END", f"s_sub_u32 s{sq}, s{sq}, 4")
    a(f"s_and_b32 s{su}, s{sq}, 3", f"s_lshl_b32 s{su}, s{su}, 2", f"s_lshr_b32 s{sq}, s{sq}, 2",
      f"s_lshl_b32 s{st0}, s{sq}, 3", f"s_and_b32 s{stile}, s2, 7", f"s_add_u32 s{stile}, s{stile}, s{st0}",
      f"s_add_u32 s{su}, s{su}, s{sw}", f"s_cmp_ge_u32 s{stile}, {NT1}", "s_cbranch_scc1 K1_PREP")

    a(f"s_mul_i32 s{sRB}, s{sw}, {K1_REG}", f"s_add_u32 s{sWB}, s{sRB}, 8192")
    a(f"s_mov_b32 s{sK}, {NLOG2E}", f"s_mov_b32 s{sK+1}, {NLOG2E}")
    a(f"s_lshl_b32 s{sq}, s{sq}, 2" if OPT["rot"] else f"s_mov_b32 s{sq}, 0")
    a(f"v_lshrrev_b32 v{vT0}, 5, v{vLane}", f"s_lshl_b32 s{st0}, s{sw}, 3", f"v_add_u32 v{vT0}, s{st0}, v{vT0}",
      f"v_and_b32 v{vT1}, 31, v{vLane}")
    for m in range(4):
        a(f"v_add_u32 v{vT2}, {2*m}, v{vT0}", f"v_and_b32 v{vXd+m}, 15, v{vT2}", f"v_xor_b32 v{vXd+m}, v{vXd+m}, v{vT1}",
          f"v_add_u32 v{vXd+m}, s{sq}, v{vXd+m}", f"v_and_b32 v{vXd+m}, 31, v{vXd+m}",
          f"v_lshlrev_b32 v{vXd+m}, 4, v{vXd+m}", f"v_lshl_add_u32 v{vXd+m}, v{vT0}, 9, v{vXd+m}")
    a(f"s_mul_i32 s{sXo}, s{stile}, {TILE1*512}")
    sJ = 40
    a(f"s_lshr_b32 s{sJ}, s{su}, 2" if OPT["xrot"] else f"s_mov_b32 s{sJ}, 0")
    for j in range(1, TILE1 // 32):
        a(f"s_add_u32 s{sJ+j}, s{sJ+j-1}, 1", f"s_cmp_eq_u32 s{sJ+j}, {TILE1 // 32}", f"s_cselect_b32 s{sJ+j}, 0, s{sJ+j}")
    a(f"v_lshrrev_b32 v{vT0}, 3, v{vLane}", f"v_and_b32 v{vT1}, 7, v{vLane}", f"v_and_b32 v{vT2}, 16, v{vLane}",
      f"v_lshrrev_b32 v{vT2}, 2, v{vT2}", f"v_xor_b32 v{vT1}, v{vT1}, v{vT2}", f"v_lshlrev_b32 v{vT1}, 4, v{vT1}",
      f"v_lshl_add_u32 v{vWd}, v{vT0}, 10, v{vT1}")
    for i in range(1, 4):
        a(f"v_add_u32 v{vWx+i-1}, {7168*i}, v{vWd}")
    a(f"s_lshr_b32 s{st0}, s{su}, 3", f"s_lshl_b32 s{st0}, s{st0}, 18", f"s_and_b32 s{sMask}, s{su}, 7",
      f"s_lshl_b32 s{sMask}, s{sMask}, 7", f"s_add_u32 s{sWo}, s{st0}, s{sMask}", f"s_lshl_b32 s{sWn}, s{sq}, 13")
    a(f"v_and_b32 v{vT0}, 31, v{vLane}", f"v_lshrrev_b32 v{vT1}, 3, v{vT0}", f"v_mul_u32_u24 v{vAad}, {K1_REG}, v{vT1}",
      f"v_and_b32 v{vT1}, 7, v{vT0}", f"v_lshl_add_u32 v{vAad}, v{vT1}, 9, v{vAad}",
      f"v_lshrrev_b32 v{vT1}, 5, v{vLane}", f"v_and_b32 v{vT2}, 15, v{vLane}", f"v_xor_b32 v{vT2}, v{vT2}, v{vT1}",
      f"v_lshl_add_u32 v{vAad}, v{vT2}, 4, v{vAad}")
    for s in range(1, 8):
        a(f"v_xor_b32 v{vAad+s}, {32*s}, v{vAad}")
    a(f"v_lshlrev_b32 v{vSt}, 9, v{vT1}", f"v_lshl_add_u32 v{vSt}, v{vT0}, 2, v{vSt}")
    a(f"v_lshlrev_b32 v{vTr}, 10, v{vT1}", f"v_bfe_u32 v{vT2}, v{vLane}, 2, 2", f"v_lshl_add_u32 v{vTr}, v{vT2}, 7, v{vTr}",
      f"v_bfe_u32 v{vT2}, v{vLane}, 3, 1", f"v_lshl_add_u32 v{vTr}, v{vT2}, 6, v{vTr}",
      f"v_bfe_u32 v{vT2}, v{vLane}, 4, 1", f"v_lshl_add_u32 v{vTr}, v{vT2}, 5, v{vTr}",
      f"v_and_b32 v{vT2}, 3, v{vLane}", f"v_lshl_add_u32 v{vTr}, v{vT2}, 3, v{vTr}",
      f"v_add_u32 v{vTr}, s{sWB}, v{vTr}", f"v_xor_b32 v{vTr+1}, 64, v{vTr}", f"v_lshlrev_b32 v{vT0}, 1, v{vT0}")
    a(f"s_mul_i32 s{sOo}, s{su}, {SS}", f"s_mul_i32 s{st0}, s{stile}, {TILE1*128}", f"s_add_u32 s{sOo}, s{sOo}, s{st0}")
    a("s_waitcnt lgkmcnt(0)")
    a.srd(sX, 4, 0, N * 512)
    a.srd(sW, 12, 0, 513 * 1024)

    def x_dma(j):
        a(f"s_add_u32 m0, s{sRB}, {j*4096}", f"s_lshl_b32 s{st0}, s{sJ+j}, 14", f"s_add_u32 s{st0}, s{st0}, s{sXo}")
        for m in range(4):
            a.vmem(f"buffer_load_dwordx4 v{vXd+m}, {sr(sX,4)}, s{st0} offen offset:{1024*m}{' nt' if OPT['ntx'] else ''} lds", f"x{j}")

    def w_dma(s):
        if s % 2 == 0:
            a(f"s_add_u32 m0, s{sWB}, {s*2048}", f"s_add_u32 s{sWc}, s{sWo}, s{sWn}")
        elif OPT["x0pos"] == s:
            a(f"s_add_u32 m0, s{sWB}, {(s-1)*2048}", "s_nop 0")
        for i in (2 * (s % 2), 2 * (s % 2) + 1):
            reg = vWd if i == 0 else vWx + i - 1
            a.vmem(f"buffer_load_dwordx4 v{reg}, {sr(sW,4)}, s{sWc} offen offset:{1024*i}{' nt' if OPT['ntw'] else ''} lds", f"w{s}")
        if s % 2 == 1:
            a(f"s_add_u32 s{sWn}, s{sWn}, 32768", f"s_and_b32 s{sWn}, s{sWn}, 0x3ffff")

    def x_touch():
        a(f"s_lshr_b32 s{st0}, s{su}, 2", f"s_mul_i32 s{st0}, s{st0}, {TILE1*128}", f"s_mul_i32 s{st1}, s{sw}, {TILE1*32}",
          f"s_add_u32 s{st0}, s{st0}, s{st1}", f"s_add_u32 s{st0}, s{st0}, s{sXo}", f"v_lshlrev_b32 v{vT1}, 7, v{vLane}",
          f"s_mov_b32 exec_hi, {(1 << (TILE1 // 4 - 32)) - 1}")
        a.vmem(f"buffer_load_dword v{vT2}, v{vT1}, {sr(sX,4)}, s{st0} offen{' nt' if OPT['ntx'] else ''}", "touch")
        a("s_mov_b32 exec_hi, -1")

    LA = OPT["la"]
    a.stamp()
    if OPT["xtouch"] == 1:
        x_touch()
    for s in range(LA):
        if s == OPT["x0pos"]:
            x_dma(0)
        if OPT["dual"] and s == OPT["x1pos"]:
            x_dma(1)
        w_dma(s)
        if OPT["xtouch"] == 2 + s:
            x_touch()
    if OPT["x1early"]:
        x_dma(1)
    a.srd(sO, 20, 0, 16 * SS)
    if OPT["dup"]:
        a.srd(48, 20, 64 << 20, 16 * SS)
    a.srd(sB, 14, 0, 1024)
    a(f"s_cmp_ge_u32 s{su}, 8", f"s_cselect_b32 s{sB+2}, s{sB+2}, 0")
    a.stamp()

    def wfrag(s, b):
        return vW + (s * 2 + b) * 4

    def a_read(j, s):
        a.lds(f"ds_read_b128 {vr(vA + 4*((16*j+s) % 4), 4)}, v{vAad + (s & 7)} offset:{4096*j + 256*(s >> 3)}", f"a{j}_{s}")

    def w_read(s):
        a.wait(vm=f"w{s}")
        for b in range(2):
            for q in range(2):
                a.lds(f"ds_read_b64_tr_b16 {vr(wfrag(s, b) + 2*q, 2)}, v{vTr+b} offset:{s*2048 + q*512}", f"t{s}")

    def mfma(j, s, b):
        acc = vAcc + 32 * (j & 1) + 16 * b
        c = "0" if s == 0 else vr(acc, 16)
        a(f"v_mfma_f32_32x32x16_bf16 {vr(acc,16)}, {vr(vA + 4*((16*j+s) % 4), 4)}, {vr(wfrag(s, b), 4)}, {c}")

    def epilogue_ops(j):
        acc = vAcc + 32 * (j & 1)
        ops = [("s", f"s_lshl_b32 s{st1}, s{sJ+j}, 12"), ("s", f"s_add_u32 s{st1}, s{st1}, s{sOo}")]
        for r in range(0, 16, 2):
            for rr in (r, r + 1):
                ops.append(("v", f"v_fma_f32 v{acc+rr}, v{acc+rr}, s{sK}, v{vBias}"))
                ops.append(("v", f"v_fma_f32 v{acc+16+rr}, v{acc+16+rr}, s{sK}, v{vBias+1}"))
            for rr in (r, r + 1):
                ops.append(("v", f"v_cvt_pk_bf16_f32 v{acc+rr}, v{acc+rr}, v{acc+16+rr}"))
            for rr in (r, r + 1):
                ops.append(("m", f"buffer_store_dword v{acc+rr}, v{vSt}, {sr(sO,4)}, s{st1} offen offset:{(8*(rr>>2) + (rr&3))*128}{wt()}"))
        return ops

    def emit_op(op):
        if op[0] == "m" and OPT["diag"] & 32:
            return
        if op[0] == "v" and OPT["diag"] & 64:
            return
        if op[0] == "m":
            a.vmem(op[1], "st")
            if OPT["dup"]:
                a.vmem(op[1].replace(sr(sO, 4), sr(48, 4)), "st")
        else:
            a(op[1])

    if OPT["dual"]:
        NJ = TILE1 // 32
        a.wait(vm="x1")
        a("s_barrier")
        a.stamp()

        def a_read2(s):
            for j in range(2):
                a.lds(f"ds_read_b128 {vr(vA + 8*(s % 2) + 4*j, 4)}, v{vAad + (s & 7)} offset:{4096*j + 256*(s >> 3)}", f"d{s}")
        w_read(0)
        a_read2(0)
        w_read(1)
        for s in range(16):
            a.wait(lg=[f"t{s}", f"d{s}"])
            for j in range(2):
                for b in range(2):
                    acc = vAcc + 32 * j + 16 * b
                    a(f"v_mfma_f32_32x32x16_bf16 {vr(acc,16)}, {vr(vA + 8*(s % 2) + 4*j, 4)}, {vr(wfrag(s, b), 4)}, {'0' if s == 0 else vr(acc, 16)}")
                    if j == 0 and b == 0 and s + 1 < 16:
                        a_read2(s + 1)
                    if j == 0 and b == 1 and s + 2 < 16:
                        w_read(s + 2)
                    if j == 1 and b == 0:
                        if s + LA < 16:
                            w_dma(s + LA)
                        elif s + LA == 16:
                            a.vmem(f"buffer_load_ushort v{vBias}, v{vT0}, {sr(sB,4)}, s{sMask} offen", "bias")
                            a.vmem(f"buffer_load_ushort v{vBias+1}, v{vT0}, {sr(sB,4)}, s{sMask} offen offset:64", "bias")
                            x_dma(2)
                        elif s + LA - 14 < NJ:
                            x_dma(s + LA - 14)
        PFA = 3
        a.stamp()
        a.wait(vm="bias")
        a(f"v_lshlrev_b32 v{vBias}, 16, v{vBias}", f"v_lshlrev_b32 v{vBias+1}, 16, v{vBias+1}",
          f"v_mul_f32 v{vBias}, s{sK}, v{vBias}", f"v_mul_f32 v{vBias+1}, s{sK}, v{vBias+1}", "s_nop 5")
        for op in epilogue_ops(0):
            emit_op(op)
        a.wait(vm=f"x{NJ-1}")
        a("s_barrier")
        for s in range(PFA):
            a_read(2, s)
        a.stamp()
        for j in range(2, NJ):
            ops = epilogue_ops(j - 1)
            for s in range(16):
                a.wait(lg=f"a{j}_{s}")
                mfma(j, s, 0)
                if s + PFA < 16:
                    a_read(j, s + PFA)
                elif j < NJ - 1:
                    a_read(j + 1, s + PFA - 16)
                if s >= 3:
                    for _ in range(3 if s == 3 else 2):
                        if ops:
                            emit_op(ops.pop(0))
                mfma(j, s, 1)
                if s >= 3:
                    for _ in range(3):
                        if ops:
                            emit_op(ops.pop(0))
            assert not ops
            a.stamp()
    else:
        NJ = TILE1 // 32
        a.wait(vm="x0")
        a("s_barrier")
        a.stamp()
        PF0 = OPT["pf0"]
        for s in range(PF0):
            w_read(s)
            a_read(0, s)
        for s in range(16):
            if s + PF0 < 16:
                w_read(s + PF0)
                a_read(0, s + PF0)
            a.wait(lg=[f"t{s}", f"a0_{s}"])
            mfma(0, s, 0)
            if s + LA < 16:
                w_dma(s + LA)
            elif s + LA == 16:
                if not OPT["x1early"]:
                    x_dma(1)
                a.vmem(f"buffer_load_ushort v{vBias}, v{vT0}, {sr(sB,4)}, s{sMask} offen", "x1")
                a.vmem(f"buffer_load_ushort v{vBias+1}, v{vT0}, {sr(sB,4)}, s{sMask} offen offset:64", "x1")
            elif s + LA - 15 < (3 if OPT["xspread"] else NJ):
                x_dma(s + LA - 15)
            if OPT["xtouch"] == 20 + s:
                x_touch()
            mfma(0, s, 1)
            if OPT["fine"] and s % 2 == 1 and s < 15:
                a.stamp()
        PFA = 3
        a.stamp()
        a.wait(vm="x1")
        a("s_barrier")
        for s in range(PFA):
            a_read(1, s)
        a(f"v_lshlrev_b32 v{vBias}, 16, v{vBias}", f"v_lshlrev_b32 v{vBias+1}, 16, v{vBias+1}",
          f"v_mul_f32 v{vBias}, s{sK}, v{vBias}", f"v_mul_f32 v{vBias+1}, s{sK}, v{vBias+1}")
        a.stamp()
        for j in range(1, NJ):
            ops = epilogue_ops(j - 1)
            for s in range(16):
                if s + PFA == 16 and j < NJ - 1 and not (OPT["onebar"] and j > 1):
                    a.wait(vm=f"x{NJ-1}" if OPT["onebar"] else f"x{j+1}")
                    a("s_barrier")
                a.wait(lg=f"a{j}_{s}")
                mfma(j, s, 0)
                if OPT["xspread"] and OPT["onebar"]:
                    if j == 1 and s < 3:
                        x_dma(3 + s)
                elif OPT["xspread"] and s == 1 and j + 2 < NJ:
                    x_dma(j + 2)
                if s + PFA < 16:
                    a_read(j, s + PFA)
                elif j < NJ - 1:
                    a_read(j + 1, s + PFA - 16)
                if s >= 3:
                    for _ in range(3 if s == 3 else 2):
                        if ops:
                            emit_op(ops.pop(0))
                mfma(j, s, 1)
                if s >= 3:
                    for _ in range(3):
                        if ops:
                            emit_op(ops.pop(0))
            assert not ops
            a.stamp()
    a("s_nop 15")
    for op in epilogue_ops(NJ - 1):
        emit_op(op)
    a.stamp_dump(sX, 20, sw, 8)
    a("s_endpgm")

    a("K1_PREP:")
    a.vm, a.lg = [], []
    a(f"s_cmp_ge_u32 s{stile}, {NT1 + 2}", "s_cbranch_scc1 K1_CPREP")
    sW2, sF = sX, sW
    vL = vW
    vOut = vW + 32
    a(f"s_sub_u32 s{st0}, s{stile}, {NT1}", f"s_lshl_b32 s{st0}, s{st0}, 4", f"s_add_u32 s{su}, s{su}, s{st0}")
    a(f"v_and_b32 v{vT0}, 15, v{vLane}", f"v_lshrrev_b32 v{vT1}, 4, v{vLane}", f"v_lshlrev_b32 v{vT0}, 2, v{vT0}",
      f"v_lshl_add_u32 v{vWd}, v{vT1}, 11, v{vT0}", f"v_lshlrev_b32 v{vSt}, 4, v{vLane}")
    a(f"s_lshr_b32 s{st0}, s{su}, 2", f"s_lshl_b32 s{st0}, s{st0}, 6", f"s_and_b32 s{st1}, s{su}, 3",
      f"s_lshl_b32 s{st1}, s{st1}, 16", f"s_add_u32 s{sXo}, s{st0}, s{st1}", f"s_lshl_b32 s{sOo}, s{su}, 13")
    a("s_waitcnt lgkmcnt(0)")
    a.srd(sW2, 16, 0, 512 * 512)
    a.srd(sF, 20, W2F_OFF, 262144)
    for s in range(4):
        for i in range(8):
            row = (s >> 1) * 64 + 16 * (s & 1) + (i >> 1) + 32 * (i & 1)
            a(f"s_add_u32 s{st0}, s{sXo}, {row*512}")
            a.vmem(f"buffer_load_dword v{vL + 8*s + i}, v{vWd}, {sr(sW2,4)}, s{st0} offen{' nt' if OPT['ntw2'] else ''}", f"l{s}")
    a(f"s_mov_b32 s{sK}, 0x05040100", f"s_mov_b32 s{sK+1}, 0x07060302")
    for s in range(4):
        a.wait(vm=f"l{s}")
        for b in range(2):
            o = vOut + 8 * s + 4 * b
            for m in range(4):
                a(f"v_perm_b32 v{o+m}, v{vL + 8*s + 2*m + 1}, v{vL + 8*s + 2*m}, s{sK+b}")
            a(f"s_add_u32 s{st0}, s{sOo}, {(2*s+b)*1024}")
            a.vmem(f"buffer_store_dwordx4 {vr(o,4)}, v{vSt}, {sr(sF,4)}, s{st0} offen{wt()}")
    a("s_endpgm")

    a("K1_CPREP:")
    a(f"s_cmp_ge_u32 s{su}, 8", "s_cbranch_scc1 K1_END")
    a(f"v_and_b32 v{vT1}, 1, v{vLane}", f"v_lshlrev_b32 v{vT1}, 6, v{vT1}",
      f"v_bfe_u32 v{vT2}, v{vLane}, 2, 1", f"v_lshl_add_u32 v{vT1}, v{vT2}, 5, v{vT1}",
      f"v_bfe_u32 v{vT2}, v{vLane}, 3, 1", f"v_lshl_add_u32 v{vT1}, v{vT2}, 2, v{vT1}",
      f"v_bfe_u32 v{vT2}, v{vLane}, 1, 1", f"v_lshl_add_u32 v{vT1}, v{vT2}, 1, v{vT1}",
      f"v_bfe_u32 v{vT0}, v{vLane}, 4, 1", f"v_lshrrev_b32 v{vT2}, 5, v{vLane}", f"v_cmp_eq_u32 vcc, v{vT0}, v{vT2}",
      f"v_lshlrev_b32 v{vT0}, 3, v{vLane}", f"s_lshl_b32 s{st0}, s{su}, 7", f"s_lshl_b32 s{st1}, s{su}, 9",
      f"s_mov_b32 s{sK}, {NLOG2E}", "s_waitcnt lgkmcnt(0)")
    a.srd(sX, 12, 512 * 1024, 1024)
    a.srd(sW, 20, CF_OFF, 4096)
    for i in range(4):
        a(f"buffer_load_ushort v{8+i}, v{vT1}, {sr(sX,4)}, s{st0} offen offset:{8*i}")
    a("s_waitcnt vmcnt(0)")
    for i in range(4):
        a(f"v_lshlrev_b32 v{8+i}, 16, v{8+i}", f"v_mul_f32 v{8+i}, s{sK}, v{8+i}")
    a("v_cvt_pk_bf16_f32 v12, v8, v9", "v_cvt_pk_bf16_f32 v13, v10, v11", "v_cndmask_b32 v12, 0, v12, vcc", "v_cndmask_b32 v13, 0, v13, vcc",
      f"buffer_store_dwordx2 v[12:13], v{vT0}, {sr(sW,4)}, s{st1} offen{wt()}", "s_endpgm")

    a("K1_SORT:")
    a.vm, a.lg = [], []
    nt = " nt" if OPT["nte"] else ""
    NBK = OPT["nbk"]
    LB = NBK.bit_length() - 1
    NU = ((N - 1) >> OPT["bsh"]) + 1 if OPT["bsh"] else NBK
    assert NU <= NBK
    assert all((x * 6554 * NBK) >> 26 < NBK for x in range(N))
    sDst, sSrc, sE, sR4, sR2, sDb, sBl, sDg = 24, 28, 32, 36, 40, 44, 24, 28
    sc = su
    vDst, vSrc, vEe, vSl, vRg, vRd, vCn, vRo = 8, 20, 32, 40, 56, 72, 96, 100
    vOne, vBig, vO16, vO8 = 6, 7, 108, 109
    a(f"s_mov_b32 s{sc}, s2")
    a(f"v_lshlrev_b32 v{vO16}, 4, v0", f"v_lshlrev_b32 v{vO8}, 3, v0")
    a(f"s_mul_i32 s{st0}, s{sc}, {CHUNK*4}", f"s_mul_i32 s{st1}, s{sc}, {CHUNK*2}")
    def lds_zero():
        for i in range(2):
            a(f"ds_write_b128 v{vO16}, {vr(vRd,4)} offset:{8192*i}")
        for i in range(2 if NBK > 1 else 1):
            a(f"ds_write_b128 v{vO16}, {vr(vRd,4)} offset:{K1_C2 + 8192*i}")
        if NBK == 1:
            a(f"ds_write_b32 v{vT0}, v{vRd} offset:{K1_H2}")
    for r in range(4):
        a(f"v_mov_b32 v{vRd+r}, 0")
    a(f"v_lshlrev_b32 v{vT0}, 2, v{vLane}")
    if not OPT["initlate"]:
        lds_zero()
    a("s_waitcnt lgkmcnt(0)")
    a.srd(sDst, 10, f"s{st0}", CHUNK * 4)
    for i in range(3):
        a(f"s_mov_b32 s{sXo}, {8192*i}")
        a.vmem(f"buffer_load_dwordx4 {vr(vDst+4*i,4)}, v{vO16}, {sr(sDst,4)}, s{sXo} offen{nt}", f"d{i}")
    if OPT["initlate"]:
        lds_zero()
        a("s_waitcnt lgkmcnt(0)")
    if not OPT["srcearly"]:
        a("s_barrier")
    a.srd(sSrc, 8, f"s{st0}", CHUNK * 4)
    a.srd(sE, 6, f"s{st1}", CHUNK * 2)
    for i in range(3):
        a(f"s_mov_b32 s{st0}, {8192*i}")
        a.vmem(f"buffer_load_dwordx4 {vr(vSrc+4*i,4)}, v{vO16}, {sr(sSrc,4)}, s{st0} offen{nt}", f"r{i}")
    if OPT["srcearly"]:
        a("s_barrier")
    for i in range(3):
        a(f"s_mov_b32 s{st1}, {4096*i}")
        a.vmem(f"buffer_load_dwordx2 {vr(vEe+2*i,2)}, v{vO8}, {sr(sE,4)}, s{st1} offen{nt}", f"s{i}")
    a.stamp(7)
    a.srd(sR4, 20, R4_OFF, 32 * R4BLK)
    a.srd(sR2, 20, R2_OFF, 32 * R2BLK)
    a.srd(sDb, 52, 0, 256)
    a(f"s_mov_b32 s{st0}, 13401", f"s_mov_b32 s{st1}, {-RNG & 0xffffffff}", f"s_mov_b32 s{sMask}, 0xffff0000",
      f"v_mov_b32 v{vOne}, 1", f"v_cmp_gt_u32 vcc, {CHUNK//4 - 1024}, v0", f"s_mov_b64 {sr(sK,2)}, vcc",
      f"s_mov_b32 s{sXo}, {CAP}")

    a.stamp(8)
    for i in range(3):
        a.wait(vm=f"d{i}")
        if i == 0:
            a.stamp(9)
        if i == 2:
            a(f"s_mov_b64 exec, {sr(sK,2)}")
        for n in range(4 * i, 4 * i + 4):
            a(f"v_mul_u32_u24 v{vRg+n}, s{st0}, v{vDst+n}", f"v_lshrrev_b32 v{vRg+n}, 22, v{vRg+n}",
              f"v_lshlrev_b32 v{vSl+n}, 2, v{vRg+n}")
            a.lds(f"ds_add_rtn_u32 v{vSl+n}, v{vSl+n}, v{vOne} offset:{K1_CNT}", f"sl{n}")
            a(f"v_mad_i32_i24 v{vDst+n}, v{vRg+n}, s{st1}, v{vDst+n}", f"v_lshl_add_u32 v{vDst+n}, v{vDst+n}, {LB + 2}, 16")
        if i == 2:
            a("s_mov_b64 exec, -1")
    a.stamp(10)
    a(f"s_mov_b32 s{st0}, {6554 * NBK}")
    for n in range(12):
        if n == 8:
            a(f"s_mov_b64 exec, {sr(sK,2)}")
        if NBK > 1:
            a.wait(vm=f"r{n//4}")
            if OPT["bsh"]:
                a(f"v_lshrrev_b32 v{vT2}, {OPT['bsh']}, v{vSrc+n}", f"v_lshl_add_u32 v{vDst+n}, v{vT2}, 2, v{vDst+n}")
            else:
                a(f"v_mul_u32_u24 v{vT2}, s{st0}, v{vSrc+n}", f"v_lshrrev_b32 v{vT2}, 26, v{vT2}", f"v_lshl_add_u32 v{vDst+n}, v{vT2}, 2, v{vDst+n}")
        a.wait(lg=f"sl{n}")
        a(f"v_min_u32 v{vSl+n}, {CAP - 1}, v{vSl+n}", f"v_mad_u32_u24 v{vSl+n}, v{vRg+n}, s{sXo}, v{vSl+n}",
          f"v_lshlrev_b32 v{vRg+n}, 1, v{vSl+n}")
        a.lds(f"ds_write_b16 v{vRg+n}, v{vDst+n} offset:{K1_I16}")
    a("s_mov_b64 exec, -1")
    a(f"s_mul_i32 s{st0}, s{sc}, {CAP*4}", f"s_mul_i32 s{st1}, s{sc}, {CAP*2}",
      f"s_mov_b32 s{sXo}, {R4BLK - CAP*4}", f"s_mov_b32 s{sOo}, {R2BLK - CAP*2}")
    for i in range(2):
        a(f"v_add_u32 v{vT2}, {512*i}, v0", f"v_mul_u32_u24 v{vT2}, 2341, v{vT2}", f"v_lshrrev_b32 v{vT2}, 16, v{vT2}",
          f"v_mad_u32_u24 v{vRo+4+i}, v{vT2}, s{sOo}, v{vO16}", f"v_add_u32 v{vRo+4+i}, {8192*i}, v{vRo+4+i}",
          f"v_lshlrev_b32 v{vCn+i}, 2, v{vT2}")
    a.wait(lg="all")
    a("s_barrier")
    a.stamp(1)
    for i in range(2):
        a.lds(f"ds_read_b128 {vr(vRd+16+4*i,4)}, v{vO16} offset:{K1_I16 + 8192*i}", f"h{i}")
        a.lds(f"ds_read_b32 v{vCn+i}, v{vCn+i} offset:{K1_CNT}", f"h{i}")
    for i in range(2):
        a.wait(lg=f"h{i}")
        a(f"v_cmp_ge_u32 vcc, {CAP}, v{vCn+i}", "s_nop 1", f"v_cndmask_b32 v{vRd+16+4*i}, -1, v{vRd+16+4*i}, vcc")
        a.vmem(f"buffer_store_dwordx4 {vr(vRd+16+4*i,4)}, v{vRo+4+i}, {sr(sR2,4)}, s{st1} offen sc1", "r2")
    for i in range(3):
        a.wait(vm=f"s{i}")
        if i == 2:
            a(f"s_mov_b64 exec, {sr(sK,2)}")
        for n in range(4 * i, 4 * i + 4):
            if n & 1:
                a(f"v_and_or_b32 v{vSrc+n}, v{vEe+n//2}, s{sMask}, v{vSrc+n}")
            else:
                a(f"v_lshl_or_b32 v{vSrc+n}, v{vEe+n//2}, 16, v{vSrc+n}")
            a(f"v_lshlrev_b32 v{vSl+n}, 2, v{vSl+n}")
            a.lds(f"ds_write_b32 v{vSl+n}, v{vSrc+n} offset:{K1_I32}")
    a("s_mov_b64 exec, -1")
    for i in range(4):
        a(f"v_add_u32 v{vT2}, {512*i}, v0", f"v_mul_u32_u24 v{vT2}, 2341, v{vT2}", f"v_lshrrev_b32 v{vT2}, 17, v{vT2}",
          f"v_mad_u32_u24 v{vRo+i}, v{vT2}, s{sXo}, v{vO16}", f"v_add_u32 v{vRo+i}, {8192*i}, v{vRo+i}")
    a(f"s_lshl_b32 s{sWo}, s{sc}, 2", f"v_mov_b32 v{vBig}, s{sWo}")
    a.wait(vm="all", lg="all")
    a("s_barrier")
    a.stamp(11)
    a(f"s_cmp_lg_u32 s{sw}, 0", "s_cbranch_scc1 K1_F1", "s_mov_b64 exec, 1",
      f"buffer_store_dword v{vOne}, v{vBig}, {sr(sDb,4)}, 0 offen sc1", "s_mov_b64 exec, -1", "K1_F1:")
    for i in range(4):
        a.lds(f"ds_read_b128 {vr(vRd+4*i,4)}, v{vO16} offset:{K1_I32 + 8192*i}", f"g{i}")
    for i in range(4):
        a.wait(lg=f"g{i}")
        a.vmem(f"buffer_store_dwordx4 {vr(vRd+4*i,4)}, v{vRo+i}, {sr(sR4,4)}, s{st0} offen sc1")
    a(f"s_mul_i32 s{st0}, s{sc}, {R4BLK}", f"s_add_u32 s{st0}, s{st0}, {R4_OFF}", f"s_mul_i32 s{st1}, s{sc}, {R2BLK}",
      f"s_add_u32 s{st1}, s{st1}, {R2_OFF}", f"s_mul_i32 s{sXo}, s{sc}, {BLOB}", f"s_add_u32 s{sXo}, s{sXo}, {BLOB_OFF}",
      f"s_lshl_b32 s{sOo}, s{sc}, 12", f"s_add_u32 s{sOo}, s{sOo}, {FL_OFF}")
    a.srd(sBl, 20, f"s{sXo}", BLOB)
    a.srd(sDg, 20, f"s{sOo}", 3072)
    for r in range(4):
        a(f"v_mov_b32 v{vDst+r}, 0xffff")
    a(f"v_add_u32 v{vT0}, {K1_BL}, v{vO16}", f"v_mov_b32 v{vDst+4}, 0", f"v_mov_b32 v{vDst+5}, 0", f"v_mov_b32 v{vDst+6}, {K1_BL + BLOB}")
    for i in range(3):
        a(f"ds_write_b128 v{vT0}, {vr(vDst,4)} offset:{8192*i}")
    a(f"v_add_u32 v{vT1}, {K1_BL + B_META}, v{vO8}", f"ds_write_b64 v{vT1}, {vr(vDst+4,2)}",
      f"v_mov_b32 v{vT1}, {K1_NB}", f"ds_write_b32 v{vT1}, v{vDst+6}")
    a(f"buffer_store_dwordx2 {vr(vDst+4,2)}, v{vO8}, {sr(sDg,4)}, 0 offen sc1")
    for n in range(16):
        a(f"v_mov_b32 v{48+n}, 0")
    a("s_waitcnt vmcnt(0) lgkmcnt(0)")
    a.vm, a.lg = [], []
    a.srd(sR4, 20, f"s{st0}", R4BLK)
    a.srd(sR2, 20, f"s{st1}", R2BLK)
    a("s_barrier")
    a.stamp(2)

    vFa, vFd = 110, 111
    a(f"v_lshlrev_b32 v{vFa}, 2, v{vLane}")

    def poll_issue(tag, word, wave):
        a(f"s_cmp_lg_u32 s{sw}, {wave}", f"s_cbranch_scc1 K1_{tag}I", "s_mov_b32 exec_hi, 0",
          f"buffer_load_dword v{vFd}, v{vFa}, {sr(sDb,4)}, 0 offen offset:{word} {POLLF[OPT['pollf']]}", "s_mov_b32 exec_hi, -1", f"K1_{tag}I:")

    def poll(tag, word, wave):
        a(f"s_cmp_lg_u32 s{sw}, {wave}", f"s_cbranch_scc1 K1_{tag}X", "s_mov_b32 exec_hi, 0", f"s_mov_b32 s{sWc}, 0")
        a(f"K1_{tag}L:")
        a("s_waitcnt vmcnt(0)", f"v_cmp_eq_u32 vcc, 0, v{vFd}", f"s_cbranch_vccz K1_{tag}D",
          f"buffer_load_dword v{vFd}, v{vFa}, {sr(sDb,4)}, 0 offen offset:{word} {POLLF[OPT['pollf']]}", f"s_add_u32 s{sWc}, s{sWc}, 1",
          f"s_cmp_lt_u32 s{sWc}, 0x40000", f"s_cbranch_scc1 K1_{tag}L")
        a("s_waitcnt vmcnt(0)", f"v_mov_b32 v{vFd}, {K1_BL + B_FLAG}",
          f"ds_write_b32 v{vFd}, v{vOne}", "s_waitcnt lgkmcnt(0)")
        a(f"K1_{tag}D:", "s_mov_b64 exec, -1", f"K1_{tag}X:")
    a(f"s_cmp_lg_u32 s{sw}, 1", "s_cbranch_scc1 K1_F2", "s_mov_b64 exec, 1",
      f"buffer_store_dword v{vOne}, v{vBig}, {sr(sDb,4)}, 0 offen offset:128 sc1", "s_mov_b64 exec, -1", "K1_F2:")
    poll_issue("PA", 0, 0)
    poll("PA", 0, 0)
    a("s_barrier")
    a.stamp(3)
    vR2, vR4, vDl, vS2 = 8, 16, 32, 48
    vNd, vDeg, vP, vBin, vPos, vMa = 64, 65, 66, 67, 70, 71
    for i in range(4):
        a(f"s_mov_b32 s{st0}, {4096*i}")
        a.vmem(f"buffer_load_dwordx2 {vr(vR2+2*i,2)}, v{vO8}, {sr(sR2,4)}, s{st0} offen sc1", f"h{i}")
    a(f"v_mov_b32 v{vT2}, 0")
    for i in range(4):
        a.wait(vm=f"h{i}")
        if i == 0:
            a.stamp(12)
            poll_issue("PB", 128, 7)
        for n in range(4 * i, 4 * i + 4):
            if n & 1:
                a(f"v_ashrrev_i32 v{vDl+n}, 16, v{vR2+n//2}")
            else:
                a(f"v_bfe_i32 v{vDl+n}, v{vR2+n//2}, 0, 16")
        a(f"v_min_i32 v{vT2}, v{vDl+4*i}, v{vT2}")
        if i == 3 and OPT["skip3"]:
            a(f"s_cmp_ge_u32 s{sw}, 4", "s_cbranch_scc1 K1_SK1")
        for n in range(4 * i, 4 * i + 4):
            a(f"v_cmpx_lt_i32 vcc, 0, v{vDl+n}")
            a.lds(f"ds_add_rtn_u32 v{vS2+n}, v{vDl+n}, v{vOne} offset:{K1_C2}")
            a("s_mov_b64 exec, -1")
    a("K1_SK1:")
    a(f"v_mov_b32 v{vT0}, {K1_BL + B_FLAG}", f"v_cmpx_gt_i32 vcc, 0, v{vT2}")
    a.lds(f"ds_write_b32 v{vT0}, v{vOne}")
    a("s_mov_b64 exec, -1")
    a.wait(lg="all")
    poll("PB", 128, 7)
    a("s_barrier")
    a.stamp(4)
    for i in range(4):
        a(f"s_mov_b32 s{st0}, {8192*i}")
        a.vmem(f"buffer_load_dwordx4 {vr(vR4+4*i,4)}, v{vO16}, {sr(sR4,4)}, s{st0} offen sc1", f"g{i}")
    a(f"s_cmp_ge_u32 s{sw}, 5", "s_cbranch_scc1 K1_D1")
    vC8 = 72
    a(f"v_lshlrev_b32 v{vT1}, {LB + 2}, v0")
    if NBK == 1:
        a(f"ds_read_b32 v{vDeg}, v{vT1} offset:{K1_C2 + 16}", "s_waitcnt lgkmcnt(0)")
    else:
        for i in range(NBK // 4):
            a(f"ds_read_b128 {vr(vC8+4*i,4)}, v{vT1} offset:{K1_C2 + 16 + 16*i}")
        a("s_waitcnt lgkmcnt(0)")
        for i in range(1, NU - 1):
            a(f"v_add_u32 v{vC8+i}, v{vC8+i}, v{vC8+i-1}")
        a(f"v_add_u32 v{vDeg}, v{vC8+NU-1}, v{vC8+NU-2}")
    a(f"v_cmp_lt_u32 {sr(sK,2)}, {MAXDEG}, v{vDeg}", f"v_min_u32 v{vDeg}, {MAXDEG}, v{vDeg}",
      f"v_sub_u32 v{vBin}, 63, v{vDeg}", f"v_lshlrev_b32 v{vBin}, 2, v{vBin}",
      f"ds_add_rtn_u32 v{vP}, v{vBin}, v{vOne} offset:{K1_H2}",
      f"s_mov_b64 exec, {sr(sK,2)}", f"ds_write_b32 v{vT0}, v{vOne}", "s_mov_b64 exec, -1", "s_waitcnt lgkmcnt(0)")
    a("K1_D1:", "s_barrier")

    def scan(reg):
        a("s_nop 1")
        for ctrl in ("row_shr:1", "row_shr:2", "row_shr:4", "row_shr:8"):
            a(f"v_add_u32_dpp v{reg}, v{reg}, v{reg} {ctrl} row_mask:0xf bank_mask:0xf bound_ctrl:1", "s_nop 1")
        a(f"v_add_u32_dpp v{reg}, v{reg}, v{reg} row_bcast:15 row_mask:0xa bank_mask:0xf", "s_nop 1")
        a(f"v_add_u32_dpp v{reg}, v{reg}, v{reg} row_bcast:31 row_mask:0xc bank_mask:0xf", "s_nop 1")
    vA0, vA1 = 68, 69
    a(f"s_cmp_ge_u32 s{sw}, 5", "s_cbranch_scc1 K1_D2")
    a(f"v_lshlrev_b32 v{vA0}, 2, v{vLane}", f"ds_read_b32 v{vA1}, v{vA0} offset:{K1_H2}", "s_waitcnt lgkmcnt(0)",
      f"v_mov_b32 v{vA0}, v{vA1}")
    scan(vA0)
    a(f"v_sub_u32 v{vA0}, v{vA0}, v{vA1}", f"ds_bpermute_b32 v{vPos}, v{vBin}, v{vA0}",
      f"v_lshlrev_b32 v{vNd}, 16, v0", "s_waitcnt lgkmcnt(0)",
      f"v_add_u32 v{vPos}, v{vPos}, v{vP}", f"v_lshlrev_b32 v{vMa}, 3, v{vPos}", f"v_add_u32 v{vMa}, {K1_BL + B_META}, v{vMa}",
      f"ds_write_b64 v{vMa}, {vr(vNd,2)}", "s_waitcnt lgkmcnt(0)")
    a("K1_D2:", "s_barrier")
    a(f"s_cmp_ge_u32 s{sw}, 5", "s_cbranch_scc1 K1_D3")
    a(f"v_lshlrev_b32 v{vA0}, 6, v{vLane}", f"v_add_u32 v{vA0}, {K1_BL + B_META}, v{vA0}", f"ds_read_b32 v{vA1}, v{vA0} offset:4",
      f"v_cmp_gt_u32 vcc, {NGRP}, v{vLane}", "s_waitcnt lgkmcnt(0)", "s_nop 0",
      f"v_cndmask_b32 v{vA1}, 0, v{vA1}, vcc", f"v_mov_b32 v{vA0}, v{vA1}")
    scan(vA0)
    a(f"v_readlane_b32 s{st0}, v{vA0}, 63", f"v_sub_u32 v{vA0}, v{vA0}, v{vA1}", f"v_lshlrev_b32 v{vA0}, 5, v{vA0}",
      f"v_lshrrev_b32 v{vA1}, 3, v{vPos}", f"v_lshlrev_b32 v{vA1}, 2, v{vA1}", f"ds_bpermute_b32 v{vA1}, v{vA1}, v{vA0}",
      f"v_and_b32 v{vPos}, 7, v{vPos}",
      f"s_cmp_le_u32 s{st0}, {NSLOT - 8}", "s_cbranch_scc1 K1_FITS", f"ds_write_b32 v{vT0}, v{vOne}", "K1_FITS:",
      "s_waitcnt lgkmcnt(0)", f"v_lshl_add_u32 v{vA1}, v{vPos}, 2, v{vA1}", f"v_add_u32 v{vA0}, {K1_BL}, v{vA1}",
      f"ds_write_b16 v{vMa}, v{vA1}")
    if NBK == 1:
        a(f"ds_write_b32 v{vT1}, v{vA0} offset:{K1_NB + 16}")
    else:
        for i in range(NU - 1, 0, -1):
            a(f"v_lshl_add_u32 v{vC8+i}, v{vC8+i-1}, 5, v{vA0}")
        a(f"v_mov_b32 v{vC8}, v{vA0}")
        for i in range(NBK // 4):
            a(f"ds_write_b128 v{vT1}, {vr(vC8+4*i,4)} offset:{K1_NB + 16 + 16*i}")
    a("s_waitcnt lgkmcnt(0)")
    a("K1_D3:", "s_barrier")
    a.stamp(5)
    a.lg = []
    a(f"ds_read_b32 v{vT2}, v{vT0}")
    for n in range(8):
        a.lds(f"ds_read_b32 v{vR2+n}, v{vDl+n} offset:{K1_NB}", f"nb{n}")
    a("s_waitcnt lgkmcnt(8)", f"v_readfirstlane_b32 s{st0}, v{vT2}", f"s_cmp_lg_u32 s{st0}, 0", "s_cbranch_scc1 K1_NOSC")
    for n in range(16):
        if n == 12 and OPT["skip3"]:
            a(f"s_cmp_ge_u32 s{sw}, 4", "s_cbranch_scc1 K1_NOSC")
        a.wait(lg=f"nb{n}", vm=f"g{n//4}")
        a(f"v_lshl_add_u32 v{vS2+n}, v{vS2+n}, 5, v{vR2 + (n & 7)}")
        if n < 8:
            a.lds(f"ds_read_b32 v{vR2+n}, v{vDl+n+8} offset:{K1_NB}", f"nb{n+8}")
        a.lds(f"ds_write_b32 v{vS2+n}, v{vR4+n}")
    a("s_branch K1_SCD", "K1_NOSC:", "s_waitcnt vmcnt(0)", "K1_SCD:", "s_waitcnt lgkmcnt(0)")
    a.vm, a.lg = [], []
    a("s_barrier")
    a.stamp(6)
    a(f"v_add_u32 v{vT0}, {K1_BL}, v{vO16}")
    for i in range(4):
        a.lds(f"ds_read_b128 {vr(vR4+4*i,4)}, v{vT0} offset:{8192*i}", f"o{i}")
    for i in range(4):
        a.wait(lg=f"o{i}")
        a(f"s_mov_b32 s{st0}, {8192*i}")
        a.vmem(f"buffer_store_dwordx4 {vr(vR4+4*i,4)}, v{vO16}, {sr(sBl,4)}, s{st0} offen{' sc1' if OPT['blobsc'] else ''}")
    a.stamp_dump(sX, 20, sw, 8)
    a("K1_END:", "s_endpgm")
    return a.lines, descriptor("k1_kernel", nv, 102 if STAMPS else 72)


K2_BB = 28 * 1024
K2_AB = K2_BB + 98304
K2_LDS = K2_BB + 131072


def k2():
    a = Asm()
    header(a, "k2_kernel")
    sBl, sP, sQ, sS, sW1, sF, sPf, sO = 24, 28, 32, 36, 40, 44, 48, 76
    sw, sk, srng, scnt, st0, st1, sg, sdmax, sdmin, sSo, sK, sBig, sOne = 52, 53, 54, 55, 56, 57, 58, 59, 60, 61, 62, 64, 66
    sM = 68
    sFl, spend, seg, sEx = 80, 84, 85, 86
    sPr, sPl, sPn = 88, 89, 90
    vLane, vT0, vT1, vT2, vT3 = 1, 2, 3, 4, 5
    vI4, vAh, vQi = 6, 8, 10
    vE, vEs = 12, 14
    vIdx = 16
    vSh, vEll, vEe, vDeg, vSt, vMetL, vHoff = 24, 25, 26, 27, 28, 29, 30
    vQ = 32
    vNum, vDen, vT = 48, 56, 64
    vP = 72
    vZ = 88
    DP = OPT["depth"]
    if DP == 2:
        vNxt, vGo, vCtr, vInc, vL16 = 120, 121, 126, 123, 124
        pbuf = [vP, vP + 8]
        nv = 127
        if OPT["smf"]:
            assert not OPT["stag"]
            vAs, vAi, vNxt, vInc, nv = 120, 125, 0, 127, 128
    else:
        vNxt, vGo, vCtr, vInc, vL16 = 23, 0, 20, 21, 22
        pbuf = [vP, vP + 8, 120]
        nv = 128
    NI = 4 if DP == 2 else 2

    a("s_cmp_ge_u32 s2, 256", "s_cbranch_scc1 K2_END")
    a.stamp_setup(31, 1)
    a("s_load_dwordx16 s[4:19], s[0:1], 0", "s_load_dwordx2 s[20:21], s[0:1], 80", "s_load_dwordx2 s[22:23], s[0:1], 64")
    a(f"v_lshrrev_b32 v{vT0}, 6, v0", f"v_and_b32 v{vLane}, 63, v0", f"v_readfirstlane_b32 s{sw}, v{vT0}")
    a(f"s_and_b32 s{sk}, s2, 7", f"s_lshr_b32 s{srng}, s2, 3")
    a(f"s_mul_i32 s{st0}, s{srng}, {RNG}", f"s_sub_u32 s{scnt}, {N}, s{st0}", f"s_min_u32 s{scnt}, s{scnt}, {RNG}")
    a(f"s_mul_i32 s{st1}, s{srng}, {BLOB}", f"s_add_u32 s{st1}, s{st1}, {BLOB_OFF}")
    a(f"v_lshlrev_b32 v{vL16}, 4, v{vLane}")
    a(f"v_and_b32 v{vT1}, 3, v{vLane}", f"v_lshlrev_b32 v{vSh}, 4, v{vT1}", f"v_lshrrev_b32 v{vT2}, 5, v{vLane}",
      f"v_lshl_add_u32 v{vIdx+1}, v{vT2}, 6, v{vSh}", *[f"v_mov_b32 v{vIdx+2*i+1}, v{vIdx+1}" for i in range(1, NI)],
      f"v_mov_b32 v{vQi+1}, v{vIdx+1}", f"v_lshl_add_u32 v{vHoff}, v{vT2}, 5, 2",
      f"v_and_b32 v{vMetL}, 28, v{vLane}", f"v_lshlrev_b32 v{vMetL}, 1, v{vMetL}",
      f"v_and_b32 v{vT3}, 16, v{vLane}", f"v_lshlrev_b32 v{vT3}, 1, v{vT3}", f"v_xor_b32 v{vSt}, v{vT3}, v{vL16}",
      f"v_mov_b32 v{vE}, 0x3f80", f"v_mov_b32 v{vE+1}, 0", f"v_lshlrev_b64 {vr(vI4,2)}, v{vSh}, {vr(vE,2)}",
      f"v_mov_b32 v{vCtr}, {B_CTR}", f"v_mov_b32 v{vInc}, 64", f"v_lshlrev_b32 v{vT1}, 3, v{vLane}")
    if OPT["smf"]:
        a(f"v_and_b32 v{vT0}, 3, v{vLane}", f"v_cmp_eq_u32 vcc, 3, v{vT0}", f"v_mov_b32 v{vT3}, 0x3f800000", f"v_or_b32 v{vAi}, 12, v{vT0}",
          f"v_cndmask_b32 v{vT3}, v{vE}, v{vT3}, vcc", f"v_cndmask_b32 v{vAi}, v{vAi}, 12, vcc", f"v_mul_u32_u24 v{vAi}, 0x1111, v{vAi}",
          f"v_bfe_u32 v{vT0}, v{vLane}, 4, 1", f"v_cmp_eq_u32 vcc, v{vT0}, v{vT2}",
          f"v_bfe_u32 v{vT0}, v{vLane}, 2, 1", f"v_bfe_u32 v{vT2}, v{vLane}, 3, 1", f"v_cndmask_b32 v{vT3}, 0, v{vT3}, vcc",
          f"v_lshl_add_u32 v{vT0}, v{vT0}, 1, v{vT2}")
        for g4 in range(4):
            a(f"v_cmp_eq_u32 vcc, {g4}, v{vT0}", "s_nop 1", f"v_cndmask_b32 v{vAs+g4}, 0, v{vT3}, vcc")
    a(f"s_mov_b32 s{sK}, {NLOG2E}", f"s_mov_b32 s{sBig}, {fbits(2.0**120)}", f"s_mov_b32 s{sOne}, 1.0", f"s_mov_b32 s{sOne+1}, 1.0")
    if OPT["estart"]:
        a(f"s_add_u32 s{sg}, s{sw}, 24", f"s_sub_u32 s{sdmax}, s{sw}, 3", f"s_cmp_lt_u32 s{sw}, 3", f"s_cselect_b32 s{sg}, s{sg}, s{sdmax}",
          f"s_mul_i32 s{sdmax}, s{sw}, 3", f"s_sub_u32 s{sdmax}, s{sdmax}, 24", f"s_cmp_lt_u32 s{sw}, 10", f"s_cselect_b32 s{sg}, s{sg}, s{sdmax}",
          f"s_lshl_b32 s{sg}, s{sg}, 10", f"s_mov_b32 m0, s{sg}")
        a("s_waitcnt lgkmcnt(0)")
        a.srd(sBl, 20, f"s{st1}", BLOB)
        a.vmem(f"buffer_load_dwordx4 v{vL16}, {sr(sBl,4)}, s{sg} offen lds", "b")
        a(f"s_cmp_lt_u32 s{sw}, 10", "s_cbranch_scc1 K2_B1")
        a(f"buffer_load_dwordx4 v{vL16}, {sr(sBl,4)}, s{sg} offen offset:1024 lds",
          f"buffer_load_dwordx4 v{vL16}, {sr(sBl,4)}, s{sg} offen offset:2048 lds", "K2_B1:")
    else:
        a(f"s_lshl_b32 s{sg}, s{sw}, 10", f"s_add_u32 s{sdmax}, s{sg}, 16384", f"s_mov_b32 m0, s{sg}")
        a("s_waitcnt lgkmcnt(0)")
        a.srd(sBl, 20, f"s{st1}", BLOB)
        a.vmem(f"buffer_load_dwordx4 v{vL16}, {sr(sBl,4)}, s{sg} offen lds", "b")
        a(f"s_cmp_ge_u32 s{sw}, {BLOB // 1024 - 16}", "s_cbranch_scc1 K2_B1", f"s_mov_b32 m0, s{sdmax}", "s_nop 0")
        a(f"buffer_load_dwordx4 v{vL16}, {sr(sBl,4)}, s{sdmax} offen lds", "K2_B1:")
    a.srd(sW1, 20, CF_OFF, 4096)
    a(f"s_lshl_b32 s{st1}, s{sk}, 9")
    a.vmem(f"buffer_load_dwordx2 {vr(vAh,2)}, v{vT1}, {sr(sW1,4)}, s{st1} offen", "c")
    a.stamp()
    a(f"s_mul_i32 s{st1}, s{sk}, {SS}", f"s_lshl_b32 s{sg}, s{st0}, 7", f"s_add_u32 s{sg}, s{sg}, s{st1}")
    a.srd(sP, 20, f"s{st1}", N, stride=128)
    a(f"s_add_u32 s{sg}, s{sg}, {Q_OFF}")
    a.srd(sQ, 20, f"s{sg}", f"s{scnt}", stride=128)
    a(f"s_mul_i32 s{sg}, s{srng}, {SRB}", f"s_add_u32 s{sg}, s{sg}, {S_OFF}")
    a.srd(sS, 20, f"s{sg}", SRB)
    a.srd(sF, 20, W2F_OFF, 262144)
    a(f"s_lshl_b32 s{sg}, s{st0}, 9", f"s_lshl_b32 s{st1}, s{scnt}, 9")
    a.srd(sO, 22, f"s{sg}", f"s{st1}")
    a(f"s_lshl_b32 s{sg}, s{srng}, 12", f"s_add_u32 s{sg}, s{sg}, {FL_OFF}")
    a.srd(sFl, 20, f"s{sg}", 3072)
    a(f"s_mov_b32 s{sSo}, {SRB}", f"s_mov_b32 s{spend}, 0")
    if OPT["estart"]:
        a(f"s_cmp_ge_u32 s{sw}, 10", "s_cbranch_scc1 K2_B2", "s_waitcnt vmcnt(0)", "s_barrier", "s_branch K2_B3",
          "K2_B2:", "s_barrier", "s_waitcnt vmcnt(0)", "s_mov_b64 exec, 1", f"ds_add_u32 v{vCtr}, v{vInc} offset:{B_CNTA + 40 - B_CTR}",
          "s_mov_b64 exec, -1", "K2_B3:")
    else:
        a.wait(vm="c")
        a("s_barrier")
    a.stamp(5)
    a.vm = []
    if STAMPS:
        a("s_mov_b32 s99, 8")
    a(f"v_mov_b32 v{vT0}, {B_FLAG}", f"ds_read_b32 v{vT1}, v{vT0}", "s_waitcnt lgkmcnt(0)",
      f"v_readfirstlane_b32 s{st0}, v{vT1}", f"s_lshl_b32 s{sg}, s{sw}, 6", f"s_cmp_lg_u32 s{st0}, 0", "s_cbranch_scc1 K2_SLOW")
    if OPT["snake"]:
        a(f"s_bitcmp1_b32 s{sw}, 2", f"s_cselect_b32 s{st0}, 192, 0", f"s_xor_b32 s{sg}, s{sg}, s{st0}")

    def w2_preload(unit):
        a(f"s_lshr_b32 s{st0}, s{unit}, 1", f"s_lshl_b32 s{st0}, s{st0}, 15", f"s_and_b32 s{st1}, s{unit}, 1",
          f"s_mul_i32 s{st1}, s{st1}, 6144", f"s_add_u32 s{st0}, s{st0}, s{st1}", f"s_mul_i32 s{st1}, s{unit}, 6144")
        for i in range(2):
            a(f"s_add_u32 m0, s{st1}, {K2_BB + 4096*i}")
            a(f"s_add_u32 s{st0}, s{st0}, 4096" if i else "s_nop 0")
            for q in range(2 if i else 4):
                a(f"buffer_load_dwordx4 v{vL16}, {sr(sF,4)}, s{st0} offen offset:{1024*q} lds")

    def Z(i):
        return vZ + 16 * ((i >> 1) & 1) + 8 * (i & 1)

    def src_read(i):
        a(f"ds_read_u16 v{vIdx + 2*(i % NI)}, v{vEll} offset:{32*i}")

    def e_read(p):
        a(f"ds_read_u16 v{vE}, v{vEe} offset:{64*p}")

    def gather(i):
        a(f"buffer_load_dwordx4 {vr(pbuf[(i >> 1) % DP] + 4*(i & 1), 4)}, {vr(vIdx + 2*(i % NI), 2)}, {sr(sP,4)}, 0 idxen offen{CFL[OPT['gfl']]}")

    def m4(i, hf):
        z = Z(i) + 4 * hf
        return f"v_mfma_f32_4x4x4_16b_bf16 {vr(z,4)}, {vr(vI4,2)}, {vr(pbuf[(i >> 1) % DP] + 4*(i & 1) + 2*hf, 2)}, {vr(z,4)}"

    def smf(p):
        return f"v_smfmac_f32_32x32x32_bf16 {vr(Z(2*p),16)}, {vr(vAs,4)}, {vr(pbuf[p % DP], 8)}, v{vAi}"

    shift = f"v_lshlrev_b64 {vr(vEs,2)}, v{vSh}, {vr(vE,2)}"

    def mhi(p):
        return f"v_mfma_f32_32x32x8_bf16 {vr(Z(2*p),16)}, {vr(vAh,2)}, {vr(vEs,2)}, {vr(vQ,16)}"

    def count(tag):
        a(f"s_mov_b64 {sr(sEx,2)}, exec", "s_mov_b64 exec, 1", f"s_lshl_b32 s{st0}, s{spend}, 2", f"v_add_u32 v{vT0}, s{st0}, v{vCtr}",
          f"ds_add_rtn_u32 v{vT0}, v{vT0}, v{vInc} offset:{B_CNTA - 4 - B_CTR}", f"s_lshl_b32 s{st0}, s{spend}, 3",
          f"s_add_u32 s{st0}, s{st0}, s{sk}", f"s_sub_u32 s{st0}, s{st0}, 8", f"s_lshl_b32 s{st0}, s{st0}, 7", f"v_mov_b32 v{vT1}, s{st0}",
          f"s_mov_b32 s{spend}, 0",
          "s_waitcnt lgkmcnt(0)", f"v_readfirstlane_b32 s{st0}, v{vT0}", f"s_cmp_lg_u32 s{st0}, {15*64}", f"s_cbranch_scc1 K2_CE{tag}",
          f"buffer_store_dword v{vInc}, v{vT1}, {sr(sFl,4)}, 0 offen sc1")
        if STAMPS and not OPT["light"]:
            a(f"v_readfirstlane_b32 s{st0}, v{vT1}", f"s_lshr_b32 s{st0}, s{st0}, 10", f"s_add_u32 m0, s{st0}, 17")
            a.stamp("m0")
        a(f"K2_CE{tag}:", f"s_mov_b64 exec, {sr(sEx,2)}")

    def image_wait(tag):
        a(f"K2_IW{tag}:", f"ds_read_b32 v{vT0}, v{vCtr} offset:{B_CNTA + 40 - B_CTR}", "s_waitcnt lgkmcnt(0)",
          f"v_readfirstlane_b32 s{st0}, v{vT0}", f"s_cmp_lt_u32 s{st0}, {6*64}", f"s_cbranch_scc1 K2_IW{tag}")

    def finish():
        for r in range(8):
            a(f"v_rcp_f32 v{vT+r}, v{vDen+r}")
        for r in range(0, 8, 2):
            a(f"v_pk_mul_f32 {vr(vNum+r,2)}, {vr(vNum+r,2)}, {vr(vT+r,2)}")
        for r in range(4):
            a(f"v_cvt_pk_bf16_f32 v{vT+r}, v{vNum+2*r}, v{vNum+2*r+1}")
        a(f"buffer_store_dwordx4 {vr(vT,4)}, v{vSt}, {sr(sS,4)}, s{sSo} offen sc1")

    if OPT["tw2"]:
        a(f"s_cmp_lg_u32 s{sw}, 15", "s_cbranch_scc1 K2_NOPF", f"v_lshlrev_b32 v{vT2}, 7, v{vLane}", f"s_lshl_b32 s{st0}, s{srng}, 13",
          f"buffer_load_dword v{vT3}, v{vT2}, {sr(sF,4)}, s{st0} offen", "K2_NOPF:")
    if OPT["stag"]:
        a(f"s_lshl_b32 s{st0}, s{sw}, 2", f"s_add_u32 s{st0}, s{st0}, {B_GO}", f"v_mov_b32 v{vGo}, s{st0}",
          f"s_cmp_lt_u32 s{sw}, 4", "s_cbranch_scc1 K2_GO", f"v_subrev_u32 v{vT0}, 16, v{vGo}")
        if OPT["stag"] >= 3:
            a(f"s_cmp_lt_u32 s{sw}, {4*(OPT['stag'] - 1)}", "s_cbranch_scc1 K2_IWA")
        a("K2_WAITGO:", f"ds_read_b32 v{vT1}, v{vT0}", "s_waitcnt lgkmcnt(0)", f"v_readfirstlane_b32 s{st0}, v{vT1}",
          f"s_cmp_eq_u32 s{st0}, 0", "s_cbranch_scc1 K2_WAITGO")
        if OPT["estart"]:
            image_wait("A")
        a("K2_GO:")
    elif OPT["estart"]:
        a(f"s_cmp_lt_u32 s{sw}, 4", "s_cbranch_scc1 K2_GO")
        image_wait("A")
        a("K2_GO:")
    if OPT["prio"]:
        a("s_setprio 3")
    a("K2_GROUP:")
    a(f"v_add_u32 v{vT0}, s{sg}, v{vMetL}", f"s_mov_b32 s{sP+2}, {N}",
      f"ds_read_u16 v{vEll}, v{vT0} offset:{B_META}", f"ds_read_u16 v{vQi}, v{vT0} offset:{B_META + 2}",
      f"ds_read_b32 v{vDeg}, v{vT0} offset:{B_META + 4}")
    if OPT["prespread"]:
        a(f"s_lshr_b32 s{sPr}, s{sg}, 6", f"s_sub_u32 s{sPr}, s{sPr}, 16", f"s_cmp_lt_u32 s{sPr}, 16", f"s_cselect_b32 s{sPn}, 6, 0",
          f"s_lshr_b32 s{st0}, s{sPr}, 1", f"s_lshl_b32 s{st0}, s{st0}, 15", f"s_and_b32 s{st1}, s{sPr}, 1", f"s_mul_i32 s{st1}, s{st1}, 6144",
          f"s_mul_i32 s{sPl}, s{sPr}, 6144", f"s_add_u32 s{sPr}, s{st0}, s{st1}", f"s_add_u32 s{sPl}, s{sPl}, {K2_BB}")
    elif not OPT["diag"] & 8:
        a(f"s_lshr_b32 s{sdmax}, s{sg}, 6", f"s_sub_u32 s{sdmax}, s{sdmax}, 16", f"s_cmp_lt_u32 s{sdmax}, 16", "s_cbranch_scc1 K2_PRE")
    a("K2_PRED:")
    a("s_waitcnt lgkmcnt(2)")
    for i in range(NI):
        src_read(i)
    a(f"v_add_u32 v{vEe}, v{vEll}, v{vHoff}", f"s_waitcnt lgkmcnt({NI})")
    a(f"buffer_load_dwordx4 {vr(vZ+16,4)}, {vr(vQi,2)}, {sr(sQ,4)}, 0 idxen offen{CFL[OPT['qfl']]}")
    e_read(0)
    a(f"v_readlane_b32 s{sdmax}, v{vDeg}, 0", f"v_readlane_b32 s{sdmin}, v{vDeg}, 28")
    for i in range(NI):
        a(f"s_waitcnt lgkmcnt({NI-i})")
        gather(i)
    if DP == 2:
        src_read(4)
        src_read(5)
        a("s_waitcnt lgkmcnt(2)")
        a(shift)
        e_read(1)
    else:
        for pr in (1, 2):
            src_read(2 * pr)
            src_read(2 * pr + 1)
            if pr == 1:
                a("s_waitcnt lgkmcnt(2)", shift)
                e_read(1)
                a("s_waitcnt lgkmcnt(1)")
            else:
                a("s_waitcnt lgkmcnt(0)")
            gather(2 * pr)
            gather(2 * pr + 1)
        src_read(6)
        src_read(7)
    if not OPT["late"]:
        a("s_mov_b64 exec, 1", f"ds_add_rtn_u32 v{vNxt}, v{vCtr}, v{vInc}", "s_mov_b64 exec, -1")
    finish()
    a(f"s_waitcnt vmcnt({2*DP + 1})")
    if OPT["stag"] == 2:
        a(f"ds_write_b32 v{vGo}, v{vGo}")
    for q in range(4):
        a(f"v_mfma_f32_4x4x4_16b_bf16 {vr(vQ+4*q,4)}, {vr(vI4,2)}, {vr(vZ+16+2*(q&1),2)}, 0")
    a("s_nop 3")
    a(mhi(0))
    a(f"s_lshl_b32 s{sSo}, s{sg}, 7", f"s_lshl_b32 s{st0}, s{sk}, 10", f"s_add_u32 s{sSo}, s{sSo}, s{st0}", "s_nop 6", f"s_waitcnt vmcnt({2*DP - 1})")
    if OPT["stag"] in (1, 3, 4, 5):
        a(f"ds_write_b32 v{vGo}, v{vGo}")
    if OPT["smf"]:
        a(smf(0))
    else:
        a(m4(0, 0), m4(0, 1), m4(1, 0), m4(1, 1))
    a("s_waitcnt lgkmcnt(0)")
    gather(2 * DP)
    gather(2 * DP + 1)
    a(shift)
    src_read(2 * DP + 2)
    src_read(2 * DP + 3)
    e_read(2)
    if OPT["cntearly"] == 16:
        a(f"s_cmp_lg_u32 s{spend}, 0", "s_cbranch_scc1 K2_CNT3", "K2_CNT3D:")
    elif OPT["cntearly"] < NGRP:
        a(f"s_cmp_ge_u32 s{sg}, {OPT['cntearly']*64}", "s_cbranch_scc1 K2_CNT3", "K2_CNT3D:")
    if OPT["prio"]:
        if OPT["endg"]:
            a(f"s_mov_b32 s{seg}, 0", f"s_cmp_lt_u32 s{sg}, {16*64}", "s_cbranch_scc1 K2_PRX", "s_setprio 2",
              f"s_cmp_lt_u32 s{sg}, {OPT['endg']*64}", "s_cbranch_scc1 K2_PRX", "s_setprio 1", f"s_mov_b32 s{seg}, 1",
              f"s_sub_u32 s{st0}, s{sdmax}, {OPT['eg2']}", f"s_cselect_b32 s{st0}, 0, s{st0}", f"s_min_u32 s{sdmin}, s{sdmin}, s{st0}", "K2_PRX:")
        elif OPT["prio"] == 1:
            a(f"s_cmp_lt_u32 s{sg}, {16*64}", "s_cbranch_scc1 K2_PRX", "s_setprio 2", f"s_cmp_lt_u32 s{sg}, {24*64}", "s_cbranch_scc1 K2_PRX",
              "s_setprio 1", f"s_cmp_lt_u32 s{sg}, {32*64}", "s_cbranch_scc1 K2_PRX", "s_setprio 0", "K2_PRX:")
        else:
            a(f"s_cmp_lt_u32 s{sg}, {16*64}", "s_cbranch_scc1 K2_PRX", "s_setprio 2", f"s_cmp_lt_u32 s{sg}, {OPT['prio']*64}",
              "s_cbranch_scc1 K2_PRX", "s_setprio 1", "K2_PRX:")
    a("s_nop 1" if OPT["prio"] else "s_nop 3")
    if STAMPS and not OPT["light"]:
        a("s_mov_b32 m0, s99", "s_add_u32 s99, s99, 1")
        a.stamp("m0")

    NP = MAXDEG // 2
    for i in range(MAXDEG):
        z = Z(i)
        p = i >> 1
        a(f"s_cmp_le_u32 s{sdmin}, {i}", f"s_cbranch_scc1 K2_OOL{i}", f"K2_S{i}:")
        ex = [f"v_exp_f32 v{vT+r}, v{z+r}" for r in range(8)]
        num_src = Z(0) if i == 1 else vNum
        if i == 0:
            upd = ["s_nop 0"] + [f"v_pk_add_f32 {vr(vDen+r,2)}, {vr(vT+r,2)}, {sr(sOne,2)}" for r in range(0, 8, 2)]
        else:
            upd = [f"v_pk_fma_f32 {vr(z+r,2)}, {vr(z+r,2)}, {vr(vDen+r,2)}, {vr(num_src+r,2)}" for r in range(0, 8, 2)]
            upd += [f"v_pk_fma_f32 {vr(vNum+r,2)}, {vr(num_src+r,2)}, {vr(vT+r,2)}, {vr(z+r,2)}" for r in range(0, 8, 2)]
            upd += [f"v_pk_fma_f32 {vr(vDen+r,2)}, {vr(vDen+r,2)}, {vr(vT+r,2)}, {vr(vDen+r,2)}" for r in range(0, 8, 2)]
        if (i & 1) == 0:
            if OPT["prespread"] and 1 <= p <= 6:
                a(f"s_cmp_lg_u32 s{sPn}, 0", f"s_cbranch_scc1 K2_PS{p}", f"K2_PS{p}D:")
            if p + 1 < NP:
                a(*([] if OPT["diag"] & 1 else [mhi(p + 1)]), *ex)
            else:
                a(*ex)
            a(*upd)
        else:
            if p + 1 < NP:
                younger = 2 * (min(p + DP, NP - 1) - (p + 1)) + (1 if p + 1 < DP else 0)
                a(f"s_waitcnt vmcnt({younger})")
                if p == DP - 1 and OPT["cntearly"] > 16:
                    a(f"s_cmp_lg_u32 s{spend}, 0", "s_cbranch_scc1 K2_CNT", "K2_CNTD:")
                if OPT["diag"] & 2:
                    a(*ex[0:4])
                elif OPT["smf"]:
                    a(smf(p + 1), *ex[0:4])
                else:
                    a(m4(2*p+2, 0), ex[0], m4(2*p+2, 1), ex[1], m4(2*p+3, 0), ex[2], m4(2*p+3, 1), ex[3])
            else:
                a(*ex[0:4])
            if p + 2 < NP:
                a("s_waitcnt lgkmcnt(0)")
            g = p + 1 + DP
            if g < NP:
                if OPT["clip"] == 1:
                    a(f"s_cmp_gt_u32 s{sdmax}, {2*g}", f"s_cselect_b32 s{sP+2}, {N}, 0")
                if OPT["clip"] == 2:
                    a(f"s_cmp_gt_u32 s{sdmax}, {2*g}", f"s_mov_b64 {sr(sEx,2)}, exec", "s_cselect_b64 exec, exec, 0")
                if OPT["diag"] & 4:
                    a(f"s_mov_b32 s{sP+2}, 0")
                gather(2 * g)
                gather(2 * g + 1)
                if OPT["clip"] == 2:
                    a(f"s_mov_b64 exec, {sr(sEx,2)}")
            a(*ex[4:8])
            if p + 2 < NP:
                a(shift)
            if g + 1 < NP:
                src_read(2 * g + 2)
                src_read(2 * g + 3)
            if p + 3 < NP:
                e_read(p + 3)
            a(*upd)
    a("K2_FIN:")
    if OPT["late"]:
        a("s_mov_b64 exec, 1", f"ds_add_rtn_u32 v{vNxt}, v{vCtr}, v{vInc}")
    a("s_mov_b64 exec, -1")
    if OPT["prio"]:
        a("s_setprio 3")
    if OPT["prespread"]:
        a("K2_PSFD:", f"s_cmp_lg_u32 s{sPn}, 0", "s_cbranch_scc1 K2_PSF")
    if OPT["cntearly"] > 16:
        a(f"s_cmp_lg_u32 s{spend}, 0", "s_cbranch_scc1 K2_CNT2", "K2_CNT2D:")
    a(f"s_lshr_b32 s{spend}, s{sg}, 10",
      f"s_add_u32 s{spend}, s{spend}, 1", f"s_cmp_lt_u32 s{spend}, 3", f"s_cselect_b32 s{spend}, s{spend}, 0")
    a(f"v_pk_mul_f32 {vr(vT0,2)}, {vr(vDen,2)}, {vr(vDen+2,2)}", f"v_pk_mul_f32 {vr(vT2,2)}, {vr(vNum,2)}, {vr(vNum+2,2)}",
      f"v_pk_fma_f32 {vr(vT0,2)}, {vr(vDen+4,2)}, {vr(vDen+6,2)}, {vr(vT0,2)}",
      f"v_pk_fma_f32 {vr(vT2,2)}, {vr(vNum+4,2)}, {vr(vNum+6,2)}, {vr(vT2,2)}",
      f"v_pk_fma_f32 {vr(vT0,2)}, {vr(vT2,2)}, 0, {vr(vT0,2)} op_sel_hi:[1,0,1]",
      f"v_add_f32 v{vT0}, v{vT0}, v{vT1}", f"v_cmp_ngt_f32 vcc, s{sBig}, v{vT0}",
      "s_waitcnt lgkmcnt(0)", f"v_readfirstlane_b32 s{sg}, v{vNxt}")
    if not OPT["diag"]:
        a("s_cbranch_vccnz K2_SAFE")
    a("K2_NEXT:")
    if OPT["estart"]:
        a(f"s_cmp_lt_u32 s{sw}, 4", "s_cbranch_scc1 K2_IWB", "K2_IWBD:")
    if STAMPS and not OPT["light"]:
        a("s_mov_b32 m0, s99", "s_add_u32 s99, s99, 1")
        a.stamp("m0")
        a("s_mov_b32 m0, s99", "s_add_u32 s99, s99, 1", f"v_writelane_b32 v31, s{sdmax}, m0")
    a(f"s_add_u32 s{sg}, s{sg}, {16*64}", f"s_cmp_lt_u32 s{sg}, {NGRP*64}", "s_cbranch_scc1 K2_GROUP")

    vA, vA0, vA2, vB2, vAcc = 8, 24, 25, 28, 48
    if DP == 3:
        vCtr, vInc, vL16 = 126, 123, 124
    vB = [32, 36, 40, 44] + list(range(88, 120, 4)) + [72, 76, 80, 84]
    vMa, vCol, vRed, vWa = 120, 121, 122, 125
    scg, skh, sact, stk = sM, sM + 1, sM + 2, sM + 3
    sB2 = sPf

    def b_global(first, gentle):
        a(f"s_lshl_b32 s{st0}, s{scg}, 15", f"s_lshl_b32 s{st1}, s{skh}, 14", f"s_add_u32 s{st0}, s{st0}, s{st1}")
        for n in range(first, 16):
            if n % 4 == 0 and n:
                a(f"s_add_u32 s{st0}, s{st0}, {4096 if n > first else 1024*n}")
            if gentle and n > first and n % OPT["bb"] == 0:
                a("s_waitcnt vmcnt(0)")
            a(f"buffer_load_dwordx4 {vr(vB[n],4)}, v{vL16}, {sr(sF,4)}, s{st0} offen offset:{1024*(n % 4)}")

    def relocate():
        if DP == 3:
            a("s_waitcnt vmcnt(0)", "v_mov_b32 v126, v20", "v_mov_b32 v123, v21", "v_mov_b32 v124, v22")

    def roles():
        a(f"s_and_b32 s{scg}, s{sw}, 7", f"s_lshr_b32 s{skh}, s{sw}, 3", f"s_and_b32 s{st0}, s{sk}, 1",
          f"s_lshr_b32 s{sact}, s{scg}, 2", f"s_xor_b32 s{sact}, s{sact}, s{st0}")

    def b_loads(tag):
        a(f"s_cmp_eq_u32 s{skh}, 0", f"s_cbranch_scc1 K2_BL{tag}")
        b_global(0, tag == "B")
        a(f"s_branch K2_BX{tag}", f"K2_BL{tag}:")
        b_global(12, tag == "B")
        a(f"K2_BX{tag}:")

    def lds_spin(tag, word, least):
        a(f"K2_SP{tag}:", f"ds_read_b32 v{vT0}, v{vCtr} offset:{B_CNTA + word - B_CTR}", "s_waitcnt lgkmcnt(0)",
          f"v_readfirstlane_b32 s{st0}, v{vT0}", f"s_cmp_lt_u32 s{st0}, {least}", f"s_cbranch_scc1 K2_SP{tag}")

    def ticket(word):
        a("s_mov_b64 exec, 1", f"ds_add_rtn_u32 v{vT0}, v{vCtr}, v{vInc} offset:{B_CNTA + word - B_CTR}", "s_mov_b64 exec, -1",
          "s_waitcnt lgkmcnt(0)", f"v_readfirstlane_b32 s{stk}, v{vT0}")

    def fetch(t, dst):
        a(f"s_cmp_lg_u32 s{stk}, 0", f"s_cbranch_scc1 K2_SPF{t}")
        a("s_mov_b64 exec, 0xff", f"v_lshlrev_b32 v{vT2}, 7, v{vLane}", f"s_mov_b32 s{st1}, 0", f"K2_P{t}:",
          *poll_op(vT1, vT2, sFl, 1024*t, OPT["pat2"]), f"s_add_u32 s{st1}, s{st1}, 1", "s_waitcnt vmcnt(0)",
          f"v_cmp_eq_u32 vcc, 0, v{vT1}", f"s_cbranch_vccz K2_P{t}D", f"s_cmp_lt_u32 s{st1}, 0x400000", f"s_cbranch_scc1 K2_P{t}",
          f"K2_P{t}D:", "s_mov_b64 exec, -1", f"ds_write_b32 v{vCtr}, v{vInc} offset:{B_CNTA + 20 + 4*t - B_CTR}")
        lds_spin(f"F{t}", 20 + 4 * t, 1)
        a.stamp((3, 7, 22)[t])
        a(f"s_lshr_b32 s{st0}, s{sk}, {1 if t == 2 else 0}", f"s_add_u32 s{st0}, s{st0}, {8*t}", f"s_lshl_b32 s{st0}, s{st0}, 14",
          f"s_lshl_b32 s{st1}, s{stk}, 6", f"s_add_u32 s{st0}, s{st0}, s{st1}")
        for q in range(4):
            a(f"buffer_load_dwordx4 {vr(vA+4*q,4)}, v{vL16}, {sr(sS,4)}, s{st0} offen offset:{1024*q} sc1")
        a(f"s_add_u32 s{st1}, s{st1}, {dst}", f"v_add_u32 v{vWa}, s{st1}, v{vL16}")
        for q in range(4):
            a(f"s_waitcnt vmcnt({3-q})", f"ds_write_b128 v{vWa}, {vr(vA+4*q,4)} offset:{1024*q}")
        a.stamp((4, 25, 26)[t])
        if (OPT["split"] and t < 2) or (OPT["pairs"] and t == 2):
            a("s_waitcnt lgkmcnt(0)", "s_mov_b64 exec, 1", f"ds_add_u32 v{vCtr}, v{vInc} offset:{B_CNTA + (32, 36, 44)[t] - B_CTR}", "s_mov_b64 exec, -1")

    relocate()
    roles()
    ticket(12)
    a(f"s_cmp_lt_u32 s{stk}, {OPT['early']*64}", "s_cbranch_scc1 K2_TE", f"s_cmp_lg_u32 s{spend}, 0", "s_cbranch_scc1 K2_TL")
    b_loads("A")
    finish()
    a.stamp(20)
    a("s_branch K2_TC", "K2_TL:")
    finish()
    a.stamp(20)
    b_loads("C")
    a(f"s_cmp_eq_u32 s{skh}, 0", "s_cbranch_scc1 K2_TL0", "s_waitcnt vmcnt(16)", "s_branch K2_TL1", "K2_TL0:", "s_waitcnt vmcnt(4)", "K2_TL1:")
    count("L")
    a("s_branch K2_TC", "K2_TE:")
    finish()
    a.stamp(20)
    a("K2_TAIL:", "s_setprio 0" if not OPT["hprio"] else "s_nop 0", f"s_cmp_eq_u32 s{spend}, 0", "s_cbranch_scc1 K2_TAIL2", "s_waitcnt vmcnt(0)")
    count("C")
    a("K2_TAIL2:")
    b_loads("B")
    a("K2_TC:", "s_setprio 0" if not OPT["hprio"] else "s_nop 0")
    a.srd(sB2, 18, 0, 512)
    a(f"s_cmp_ge_u32 s{stk}, {4*64}", "s_cbranch_scc1 K2_NF0")
    fetch(0, K2_AB)
    a(f"s_mov_b32 s{stk}, {8*64}", "K2_NF0:")
    a(f"s_cmp_lt_u32 s{stk}, {8*64}", "s_cbranch_scc1 K2_SPW", "s_setprio 0", f"s_cmp_eq_u32 s{skh}, 0", "s_cbranch_scc0 K2_T1")
    lds_spin("W", 4, 16 * 64)
    a(f"s_cmp_eq_u32 s{skh}, 0", "s_cbranch_scc0 K2_T1")
    a(f"s_mul_i32 s{st0}, s{scg}, 12288", f"s_add_u32 s{st0}, s{st0}, {K2_BB}", f"v_add_u32 v{vT0}, s{st0}, v{vL16}")
    for n in range(12):
        a(f"ds_read_b128 {vr(vB[n],4)}, v{vT0} offset:{1024*n}")
    a("K2_T1:")
    if OPT["f2early"]:
        a("s_waitcnt vmcnt(0)", f"s_mov_b32 s{spend}, 3")
        count("D")
    a(f"s_cmp_ge_u32 s{stk}, {8*64}", "s_cbranch_scc1 K2_NF1", f"s_sub_u32 s{stk}, s{stk}, {4*64}")
    fetch(1, K2_AB + 16384)
    a("K2_NF1:")
    a(f"v_and_b32 v{vT0}, 15, v{vLane}", f"v_lshlrev_b32 v{vT0}, 2, v{vT0}", f"s_lshl_b32 s{st0}, s{scg}, 6",
      f"v_add_u32 v{vCol}, s{st0}, v{vT0}", f"buffer_load_dword v{vB2}, v{vCol}, {sr(sB2,4)}, 0 offen")
    a(f"v_and_b32 v{vT0}, 7, v{vLane}", f"v_lshlrev_b32 v{vA2}, 6, v{vT0}", f"v_bfe_u32 v{vT1}, v{vLane}, 3, 1",
      f"v_lshl_add_u32 v{vA2}, v{vT1}, 13, v{vA2}", f"v_lshrrev_b32 v{vT3}, 4, v{vLane}", f"v_lshrrev_b32 v{vT0}, 2, v{vT0}",
      f"v_lshlrev_b32 v{vT0}, 1, v{vT0}", f"v_xor_b32 v{vT0}, v{vT0}, v{vT3}", f"v_lshl_add_u32 v{vA2}, v{vT0}, 4, v{vA2}",
      f"s_lshl_b32 s{st0}, s{skh}, 12", f"s_add_u32 s{st0}, s{st0}, {K2_BB}", f"v_add_u32 v{vA2}, s{st0}, v{vA2}",
      f"v_add_u32 v{vA0}, {K2_AB - K2_BB}, v{vA2}")
    a(f"v_lshlrev_b32 v{vMa}, 5, v{vT3}", f"v_add_u32 v{vMa}, {B_META}, v{vMa}",
      f"s_mul_i32 s{st0}, s{scg}, 6144", f"s_add_u32 s{st0}, s{st0}, {K2_BB + 16384}", f"v_add_u32 v{vRed}, s{st0}, v{vL16}",
      f"s_mov_b32 s{sK}, {NLN2}")
    if OPT["split"]:
        lds_spin("E", 12, 16 * 64)
        lds_spin("R0", 32, 4 * 64)
    else:
        a("s_waitcnt lgkmcnt(0)", "s_barrier")
    a.stamp(21)
    if not OPT["f2early"]:
        a("s_waitcnt vmcnt(0)", f"s_mov_b32 s{spend}, 3")
        count("D")

    def compute(tiles):
        a.lg = []
        nt = len(tiles)
        ring = [vA + 4 * i for i in range(4)] + ([vAcc + 16, vAcc + 20] if OPT["ring6"] and nt == 2 else [])
        depth = len(ring) // nt

        def f_read(s):
            for i, t in enumerate(tiles):
                base, off = (vA2, 0) if t == 2 else (vA0, 16384 * t)
                a.lds(f"ds_read_b128 {vr(ring[(s % depth)*nt + i], 4)}, v{base} offset:{off + 1024*(s >> 1) + 512*(s & 1)}", f"f{s}")
        for s in range(depth - 1):
            f_read(s)
        for s in range(8):
            if s + depth - 1 < 8:
                f_read(s + depth - 1)
            a.wait(lg=f"f{s}")
            for i, t in enumerate(tiles):
                for b in range(2):
                    acc = vAcc + 8 * t + 4 * b
                    a(f"v_mfma_f32_16x16x32_bf16 {vr(acc,4)}, {vr(ring[(s % depth)*nt + i], 4)}, {vr(vB[2*s + b], 4)}, {'0' if s == 0 else vr(acc, 4)}")

    def give(t):
        a("s_nop 7")
        for q in range(2):
            a(f"ds_write_b128 v{vRed}, {vr(vAcc+8*t+4*q,4)} offset:{2048*t + 1024*q}")

    def out_tile(t):
        acc = vAcc + 8 * t
        a(f"s_lshr_b32 s{st0}, s{sk}, {1 if t == 2 else 0}", f"s_add_u32 s{st0}, s{st0}, {8*t}", f"s_lshl_b32 s{st0}, s{st0}, 7",
          f"v_add_u32 v{vT0}, s{st0}, v{vMa}",
          f"ds_read_b128 {vr(vA,4)}, v{vT0}", f"ds_read_b128 {vr(vA+4,4)}, v{vT0} offset:16")
        for q in range(2):
            a(f"ds_read_b128 {vr(vA+8+4*q,4)}, v{vRed} offset:{2048*t + 1024*q}")
        a("s_waitcnt lgkmcnt(2)")
        for r in range(4):
            a(f"v_lshrrev_b32 v{vA+2*r}, 16, v{vA+2*r}", f"v_cvt_f32_u32 v{vA+2*r+1}, v{vA+2*r+1}",
              f"v_lshl_add_u32 v{vA+2*r}, v{vA+2*r}, 9, v{vCol}")
        a("s_waitcnt lgkmcnt(0)")
        for r in range(8):
            a(f"v_add_f32 v{acc+r}, v{acc+r}, v{vA+8+r}")
        for r in range(4):
            a(f"v_mul_f32 v{vT0}, v{vA+2*r+1}, v{vB2}", f"v_mul_f32 v{vT1}, v{vA+2*r+1}, v{vB2+1}",
              f"v_fma_f32 v{acc+r}, v{acc+r}, s{sK}, v{vT0}", f"v_fma_f32 v{acc+4+r}, v{acc+4+r}, s{sK}, v{vT1}",
              f"v_cvt_pk_bf16_f32 v{acc+r}, v{acc+r}, v{acc+4+r}",
              f"buffer_store_dword v{acc+r}, v{vA+2*r}, {sr(sO,4)}, 0 offen{' sc1' if OPT['sc3'] else ''}")

    def signal(val):
        a("s_waitcnt lgkmcnt(0)", f"v_mov_b32 v{vT0}, {val}", f"ds_write_b32 v{vPa}, v{vT0}")

    def partner(tag, val):
        a(f"K2_PW{tag}:", f"ds_read_b32 v{vT0}, v{vPb}", "s_waitcnt lgkmcnt(0)", f"v_readfirstlane_b32 s{st0}, v{vT0}",
          f"s_cmp_lt_u32 s{st0}, {val}", f"s_cbranch_scc1 K2_PW{tag}")
    if OPT["pairs"]:
        vPa, vPb = 26, 27
        a(f"s_lshl_b32 s{st0}, s{sw}, 2", f"s_add_u32 s{st1}, s{st0}, {B_GO}", f"v_mov_b32 v{vPa}, s{st1}",
          f"s_xor_b32 s{st0}, s{st0}, 32", f"s_add_u32 s{st1}, s{st0}, {B_GO}", f"v_mov_b32 v{vPb}, s{st1}")
        a("s_setprio 2", f"s_cmp_eq_u32 s{sact}, 0", "s_cbranch_scc1 K2_Q0", "s_setprio 1", f"s_cmp_eq_u32 s{skh}, 0", "s_cbranch_scc1 K2_Q0",
          "s_setprio 3", f"s_and_b32 s{stk}, s{scg}, 3", f"s_lshl_b32 s{stk}, s{stk}, 6")
        fetch(2, K2_BB)
        a("s_setprio 0", "K2_Q0:")
        compute((0, 1))
        a(f"s_cmp_eq_u32 s{skh}, 0", "s_cbranch_scc1 K2_G0")
        give(0)
        a("s_branch K2_G1", "K2_G0:")
        give(1)
        a("K2_G1:")
        signal(1)
        a("s_waitcnt vmcnt(0)", f"v_and_b32 v{vB2+1}, 0xffff0000, v{vB2}", f"v_lshlrev_b32 v{vB2}, 16, v{vB2}")
        a.stamp(23)
        partner("A", 1)
        a(f"s_cmp_eq_u32 s{skh}, 0", "s_cbranch_scc1 K2_O0")
        out_tile(1)
        a("s_branch K2_O1", "K2_O0:")
        out_tile(0)
        a("K2_O1:", f"s_cmp_lg_u32 s{sact}, 0", "s_cbranch_scc1 K2_OX")
        lds_spin("R2", 40 + 4, 4 * 64)
        a.stamp(24)
        compute((2,))
        a(f"s_cmp_eq_u32 s{skh}, 0", "s_cbranch_scc1 K2_O2")
        give(2)
        signal(2)
        a("s_branch K2_OX", "K2_O2:")
        partner("B", 2)
        out_tile(2)
    else:
        if OPT["split"]:
            compute((0,))
            lds_spin("R1", 36, 4 * 64)
            compute((1,))
            lds_spin("D", 8, 16 * 64)
        else:
            compute((0, 1))
        a(f"s_cmp_eq_u32 s{skh}, 0", "s_cbranch_scc1 K2_G0")
        give(0)
        a("s_branch K2_G1", "K2_G0:")
        give(1)
        a("K2_G1:", "s_waitcnt vmcnt(0)", f"v_and_b32 v{vB2+1}, 0xffff0000, v{vB2}", f"v_lshlrev_b32 v{vB2}, 16, v{vB2}")
        a.stamp(23)
        ticket(16)
        a(f"s_cmp_ge_u32 s{stk}, {4*64}", "s_cbranch_scc1 K2_NF2")
        fetch(2, K2_BB)
        a("K2_NF2:")
        a("s_waitcnt lgkmcnt(0)", "s_barrier")
        a.stamp(24)
        a(f"s_cmp_lg_u32 s{sact}, 0", "s_cbranch_scc1 K2_IDLE2")
        compute((2,))
        a(f"s_cmp_eq_u32 s{skh}, 0", "s_cbranch_scc0 K2_O1")
        out_tile(0)
        a("s_barrier")
        out_tile(2)
        a("s_branch K2_OX", "K2_O1:")
        give(2)
        a("s_waitcnt lgkmcnt(0)", "s_barrier")
        out_tile(1)
        a("s_branch K2_OX", "K2_IDLE2:", f"s_cmp_eq_u32 s{skh}, 0", "s_cbranch_scc1 K2_IDLE3")
        out_tile(1)
        a("s_barrier", "s_branch K2_OX", "K2_IDLE3:")
        out_tile(0)
        a("s_barrier")
    a("K2_OX:")
    a.stamp_dump(sBl, 20, sw, 16)
    a("s_endpgm")

    if DP == 3:
        vCtr, vInc, vL16 = 20, 21, 22
    if OPT["estart"]:
        image_wait("B")
        a("s_branch K2_IWBD")
    if OPT["cntearly"] > 16:
        a("K2_CNT:")
        count("A")
        a("s_nop 3", "s_branch K2_CNTD")
        a("K2_CNT2:", "s_waitcnt vmcnt(0)")
        count("B")
        a("s_branch K2_CNT2D")
    if OPT["cntearly"] < NGRP:
        a("K2_CNT3:", f"s_cmp_eq_u32 s{spend}, 0", "s_cbranch_scc1 K2_CNT3D", "s_waitcnt vmcnt(2)")
        count("E")
        a("s_branch K2_CNT3D")

    if OPT["prespread"]:
        for p in list(range(1, 7)) + ["F"]:
            a(f"K2_PS{p}:", f"s_mov_b64 {sr(sEx,2)}, exec", "s_mov_b64 exec, -1", f"s_mov_b32 m0, s{sPl}", f"s_sub_u32 s{sPn}, s{sPn}, 1",
              f"buffer_load_dwordx4 v{vL16}, {sr(sF,4)}, s{sPr} offen lds", f"s_add_u32 s{sPr}, s{sPr}, 1024", f"s_add_u32 s{sPl}, s{sPl}, 1024",
              f"s_mov_b64 exec, {sr(sEx,2)}", f"s_branch K2_PS{p}D")
    a("K2_PRE:")
    if OPT["qtouch"]:
        a(f"s_cmp_ge_u32 s{sdmax}, 5", "s_cbranch_scc1 K2_PRE2", f"s_lshl_b32 s{st0}, s{sdmax}, 6", f"v_add_u32 v{vT2}, s{st0}, v{vLane}",
          f"buffer_load_dword v{vT3}, v{vT2}, {sr(sQ,4)}, 0 idxen", "K2_PRE2:")
    w2_preload(sdmax)
    a("s_branch K2_PRED")

    for i in range(MAXDEG):
        a(f"K2_OOL{i}:")
        if i == 0:
            for r in range(8):
                a(f"v_mov_b32 v{vNum+r}, 0", f"v_mov_b32 v{vDen+r}, 1.0")
        if i == 1:
            for r in range(8):
                a(f"v_mov_b32 v{vNum+r}, v{Z(0)+r}")
        a(f"s_cmp_le_u32 s{sdmax}, {i}", "s_cbranch_scc1 K2_FIN")
        a(f"v_cmpx_lt_u32 vcc, {i}, v{vDeg}")
        if OPT["endg"]:
            a(f"s_cmp_eq_u32 s{seg}, 0", f"s_cbranch_scc1 K2_OX{i}", f"s_cmp_gt_u32 s{sdmax}, {i + OPT['eg2']}", f"s_cbranch_scc1 K2_OX{i}",
              "s_setprio 0", f"K2_OX{i}:", "s_nop 1")
        else:
            a("s_nop 3")
        a(f"s_branch K2_S{i}")

    a("K2_SAFE:")
    a("s_waitcnt vmcnt(0) lgkmcnt(0)", f"s_mov_b32 s{st0}, 0", f"s_mov_b32 s{sP+2}, {N}")
    for r in range(8):
        a(f"v_mov_b32 v{vNum+r}, 0")
    a("K2_SAFE_L:")
    a(f"s_cmp_ge_u32 s{st0}, s{sdmax}", "s_cbranch_scc1 K2_SAFE_E")
    a(f"v_cmpx_lt_u32 vcc, s{st0}, v{vDeg}")
    src_read(0)
    e_read(0)
    a("s_waitcnt lgkmcnt(0)")
    gather(0)
    a(shift, f"v_add_u32 v{vEll}, 32, v{vEll}", f"v_add_u32 v{vEe}, 32, v{vEe}", "s_nop 1")
    a(mhi(0), "s_nop 9", "s_waitcnt vmcnt(0)", m4(0, 0), m4(0, 1), "s_nop 4")
    for r in range(8):
        a(f"v_exp_f32 v{vT+r}, v{vZ+r}")
    for r in range(0, 8, 2):
        a(f"v_pk_add_f32 {vr(vT+r,2)}, {vr(vT+r,2)}, {sr(sOne,2)}")
    for r in range(8):
        a(f"v_rcp_f32 v{vT+r}, v{vT+r}")
    a("s_nop 0")
    for r in range(0, 8, 2):
        a(f"v_pk_fma_f32 {vr(vNum+r,2)}, {vr(vZ+r,2)}, {vr(vT+r,2)}, {vr(vNum+r,2)}")
    a(f"s_add_u32 s{st0}, s{st0}, 1", "s_branch K2_SAFE_L")
    a("K2_SAFE_E:", "s_mov_b64 exec, -1")
    for r in range(8):
        a(f"v_mov_b32 v{vDen+r}, 1.0")
    a("s_branch K2_NEXT")

    sDst, sSrc, sE = sBl, sPf, sW1
    snode, sbase, sdeg, sbit, ssrc, se, sm = sM, sM + 1, sM + 2, sM + 3, sM + 4, sM + 5, sM + 6
    vc, vq, vacc, vd, vs, ve, vsb, vz = 32, 33, 34, 36, 40, 44, 48, 49
    a("K2_SLOW:")
    w2_preload(sw)
    a(f"s_mov_b32 s{sg}, s{sw}", f"v_cmp_gt_u32 vcc, 320, v0", f"v_lshlrev_b32 v{vT0}, 16, v0", f"v_mov_b32 v{vT1}, 0",
      f"v_lshlrev_b32 v{vT2}, 3, v0", "s_and_saveexec_b64 s[70:71], vcc", f"ds_write_b64 v{vT2}, {vr(vT0,2)} offset:{B_META}",
      "s_mov_b64 exec, -1", "s_waitcnt lgkmcnt(0)", "s_barrier")
    a.srd(sW1, 12, 512 * 1024, 1024)
    a(f"v_and_b32 v{vT0}, 1, v{vLane}", f"v_lshlrev_b32 v{vT0}, 6, v{vT0}", f"v_and_b32 v{vT1}, 62, v{vLane}",
      f"v_add_u32 v{vT0}, v{vT0}, v{vT1}", f"s_lshl_b32 s{st1}, s{sk}, 7")
    a(f"buffer_load_ushort v{vc}, v{vT0}, {sr(sW1,4)}, s{st1} offen", "s_waitcnt vmcnt(0)",
      f"v_lshlrev_b32 v{vc}, 16, v{vc}", f"v_mul_f32 v{vc}, s{sK}, v{vc}")
    a.srd(sDst, 10, 0, E * 4)
    a.srd(sSrc, 8, 0, E * 4)
    a.srd(sE, 6, 0, E * 2)
    a(f"v_lshlrev_b32 v{vIdx+1}, 1, v{vLane}", f"v_lshlrev_b32 v{vT2}, 4, v{vLane}", f"v_lshlrev_b32 v{vT3}, 3, v{vLane}")
    a(f"v_lshrrev_b32 v{vsb}, 5, v{vLane}", f"v_lshlrev_b32 v{vsb}, 9, v{vsb}", f"v_and_b32 v{vT0}, 31, v{vLane}",
      f"v_lshl_add_u32 v{vsb}, v{vT0}, 1, v{vsb}")
    a("K2_SLOW_N:")
    a(f"s_cmp_ge_u32 s{sg}, s{scnt}", "s_cbranch_scc1 K2_SLOW_E")
    a(f"s_mul_i32 s{snode}, s{srng}, {RNG}", f"s_add_u32 s{snode}, s{snode}, s{sg}", f"v_mov_b32 v{vIdx}, s{sg}",
      f"buffer_load_ushort v{vq}, {vr(vIdx,2)}, {sr(sQ,4)}, 0 idxen offen",
      f"v_mov_b32 v{vacc}, 0", f"s_mov_b32 s{sbase}, 0", f"s_mov_b32 s{sdeg}, 0", "s_waitcnt vmcnt(0)",
      f"v_lshlrev_b32 v{vq}, 16, v{vq}")
    a("K2_SLOW_C:")
    a(f"s_lshl_b32 s{st0}, s{sbase}, 2", f"s_lshl_b32 s{st1}, s{sbase}, 1")
    a(f"buffer_load_dwordx4 {vr(vd,4)}, v{vT2}, {sr(sDst,4)}, s{st0} offen",
      f"buffer_load_dwordx4 {vr(vs,4)}, v{vT2}, {sr(sSrc,4)}, s{st0} offen",
      f"buffer_load_dwordx2 {vr(ve+2,2)}, v{vT3}, {sr(sE,4)}, s{st1} offen", "s_waitcnt vmcnt(0)")
    a(f"v_lshlrev_b32 v{ve}, 16, v{ve+2}", f"v_and_b32 v{ve+1}, 0xffff0000, v{ve+2}",
      f"v_lshlrev_b32 v{ve+2}, 16, v{ve+3}", f"v_and_b32 v{ve+3}, 0xffff0000, v{ve+3}")
    for u in range(4):
        a(f"v_cmp_eq_u32 {sr(sm,2)}, s{snode}, v{vd+u}")
        a(f"K2_SLOW_M{u}:", f"s_cmp_eq_u64 {sr(sm,2)}, 0", f"s_cbranch_scc1 K2_SLOW_X{u}")
        a(f"s_ff1_i32_b64 s{sbit}, {sr(sm,2)}", f"s_bitset0_b64 {sr(sm,2)}, s{sbit}", f"s_add_u32 s{sdeg}, s{sdeg}, 1",
          f"v_readlane_b32 s{ssrc}, v{vs+u}, s{sbit}", f"v_readlane_b32 s{se}, v{ve+u}, s{sbit}", "s_nop 1",
          f"v_mov_b32 v{vIdx}, s{ssrc}", f"buffer_load_ushort v{vz}, {vr(vIdx,2)}, {sr(sP,4)}, 0 idxen offen",
          f"v_fma_f32 v{vT0}, s{se}, v{vc}, v{vq}", "s_waitcnt vmcnt(0)",
          f"v_lshlrev_b32 v{vz}, 16, v{vz}", f"v_add_f32 v{vz}, v{vz}, v{vT0}", f"v_exp_f32 v{vT0}, v{vz}", "s_nop 0",
          f"v_add_f32 v{vT0}, 1.0, v{vT0}", f"v_rcp_f32 v{vT0}, v{vT0}", "s_nop 0",
          f"v_fma_f32 v{vacc}, v{vz}, v{vT0}, v{vacc}", f"s_branch K2_SLOW_M{u}")
        a(f"K2_SLOW_X{u}:")
    a(f"s_add_u32 s{sbase}, s{sbase}, 256", f"s_cmp_lt_u32 s{sbase}, {E}", "s_cbranch_scc1 K2_SLOW_C")
    a(f"v_cvt_pk_bf16_f32 v{vacc}, v{vacc}, v{vacc}", f"s_lshl_b32 s{st0}, s{sg}, 3", f"v_mov_b32 v{vT0}, s{st0}",
      f"v_mov_b32 v{vT1}, s{sdeg}", f"ds_write_b32 v{vT0}, v{vT1} offset:{B_META + 4}",
      f"s_lshr_b32 s{st0}, s{sg}, 3", f"s_lshl_b32 s{st0}, s{st0}, 13", f"s_lshl_b32 s{st1}, s{sk}, 10", f"s_add_u32 s{st0}, s{st0}, s{st1}",
      f"s_and_b32 s{st1}, s{sg}, 7", f"s_lshl_b32 s{st1}, s{st1}, 6", f"s_add_u32 s{st0}, s{st0}, s{st1}",
      f"s_and_b32 s{st1}, s{sg}, 4", f"s_lshl_b32 s{st1}, s{st1}, 3", f"v_xor_b32 v{vT0}, s{st1}, v{vsb}")
    a(f"buffer_store_short v{vacc}, v{vT0}, {sr(sS,4)}, s{st0} offen sc1")
    a(f"s_add_u32 s{sg}, s{sg}, 16", "s_waitcnt vmcnt(0) lgkmcnt(0)", "s_branch K2_SLOW_N")
    a("K2_SLOW_E:", "s_waitcnt vmcnt(0) lgkmcnt(0)", "s_barrier")
    relocate()
    vCtr, vInc, vL16 = 126, 123, 124
    roles()
    ticket(12)
    a(f"s_mov_b32 s{spend}, 1")
    count("S")
    a(f"s_mov_b32 s{spend}, 2", "s_branch K2_TAIL")
    a("K2_END:", "s_endpgm")
    return a.lines, descriptor("k2_kernel", nv, 102 if STAMPS else 96)


def k4():
    a = Asm()
    header(a, "k4_kernel")
    if OPT["probe"]:
        assert STAMPS
        a("s_cmp_lg_u32 s2, 0", "s_cbranch_scc1 K4_END", "s_load_dwordx2 s[20:21], s[0:1], 80",
          "v_mov_b32 v1, 0", "v_mov_b32 v2, -1", "v_mov_b32 v3, 0")
        for k in range(3):
            a(f"ds_write_b64 v1, v[2:3] offset:{8*k}")
        a("s_waitcnt lgkmcnt(0)", "s_barrier")
        a.srd(24, 20, STAMP_OFF, 4 << 20)
        for k, (n, stride) in enumerate(((200, 8 * 128), (4096, 128))):
            for i in range((n + 1023) // 1024):
                a(f"v_add_u32 v4, {1024*i}, v0", f"v_cmp_gt_u32 vcc, {n}, v4", f"v_mul_u32_u24 v4, {stride}, v4",
                  f"s_mov_b32 s3, {k << 20}", "s_and_saveexec_b64 s[10:11], vcc", f"s_cbranch_execz K4_S{k}_{i}",
                  "buffer_load_dwordx2 v[6:7], v4, s[24:27], s3 offen offset:112", "s_waitcnt vmcnt(0)",
                  f"ds_min_u32 v1, v7 offset:{8*k}", f"ds_max_u32 v1, v6 offset:{8*k+4}", f"K4_S{k}_{i}:", "s_mov_b64 exec, -1")
        a("s_waitcnt lgkmcnt(0)", "s_barrier", "ds_read_b128 v[8:11], v1", "ds_read_b64 v[12:13], v1 offset:16", "s_waitcnt lgkmcnt(0)")
        if OPT["probe"] == 9:
            a("v_mov_b32 v2, 0", "ds_write_b32 v1, v2 offset:32", "s_waitcnt lgkmcnt(0)", "s_barrier")
            a(f"v_cmp_gt_u32 vcc, {OPT['pwn']}, v0", f"v_mul_u32_u24 v4, {OPT['pstride'] * 128}, v0",
              f"s_mov_b32 s3, {(OPT['pk'] << 20) + OPT['pw0'] * 128}", "s_and_saveexec_b64 s[10:11], vcc", "s_cbranch_execz K4_C",
              "buffer_load_dword v6, v4, s[24:27], s3 offen", f"buffer_load_dword v7, v4, s[24:27], s3 offen offset:{4*OPT['pidx']}",
              "s_waitcnt vmcnt(0)", "v_sub_u32 v6, v7, v6", "ds_max_u32 v1, v6 offset:32", "K4_C:", "s_mov_b64 exec, -1",
              "s_waitcnt lgkmcnt(0)", "s_barrier", "ds_read_b32 v9, v1 offset:32", "s_waitcnt lgkmcnt(0)",
              "v_mul_u32_u24 v9, 3277, v9", "v_lshrrev_b32 v9, 16, v9", "v_mov_b32 v8, 0")
        hi, lo = {9: (9, 8), 1: (9, 8), 2: (11, 10), 3: (13, 12), 4: (11, 8), 5: (10, 9), 6: (12, 11), 7: (8, 8)}[OPT["probe"]]
        a(f"v_sub_u32 v14, v{hi}, v{lo}", "v_min_u32 v14, 10000, v14", "v_mul_u32_u24 v14, 10, v14", "s_nop 0", "v_readfirstlane_b32 s12, v14",
          "s_memrealtime s[14:15]", "s_waitcnt lgkmcnt(0)", "K4_L:", "s_memrealtime s[16:17]", "s_waitcnt lgkmcnt(0)",
          "s_sub_u32 s16, s16, s14", "s_cmp_lt_u32 s16, s12", "s_cbranch_scc1 K4_L")
    a("K4_END:", "s_endpgm")
    return a.lines, descriptor("k4_kernel", 16, 32)


def main(path):
    head = [
        "; Edge-featured MPNN layer: out = segment_sum(silu([x[src], x[dst], e] @ w1 + b1) @ w2 + b2, dst)",
        "; k1: P = x@w1[0:256], Q = x@w1[256:512] + b1 (scaled by -log2e), edge partition by dst range, w2 re-layout",
        "; k2: per 64-channel slice, S[n] = sum over in-edges of z/(1+2^z), z = P[src] + Q[n] + e*c",
        ";     then out = -ln2 * (S @ w2) + deg * b2 after a hand-off among the eight slice workgroups of a range",
        "; kernarg: x, e_attr, src, dst, w1, b1, w2, b2, out, debug, ws (8 bytes each)",
        f"; @launch kernel=k1_kernel grid=(256,1,1) block=(512,1,1) lds={K1_LDS}",
        f"; @launch kernel=k2_kernel grid=(256,1,1) block=(1024,1,1) lds={K2_LDS}",
        '.amdgcn_target "amdgcn-amd-amdhsa--gfx950"',
        ".text",
    ]
    for i in range(3):
        if OPT["rep"] >> i & 1:
            j = [n for n, l in enumerate(head) if f"kernel=k{i+1}_kernel" in l][0]
            head.insert(j, head[j])
    if OPT["empty"] or OPT["probe"]:
        head.insert(5 if OPT["empty"] == 2 else 7, f"; @launch kernel=k4_kernel grid=(1,1,1) block=({1024 if OPT['probe'] else 64},1,1) lds=64")
    body, desc = [], []
    for f in (k1, k2) + ((k4,) if OPT["empty"] or OPT["probe"] else ()):
        b, d = f()
        body += b
        desc += d
    notes = {
        "k1_kernel:": "k1: workgroups 0-31 sort the edges, 212 compute P/Q tiles, the rest re-lay out w2 and w1[512]",
        "K1_PREP:": "w2 -> MFMA B fragments in the channel order of the slices",
        "K1_CPREP:": "-log2e * w1[512] -> A operand of the e*c product",
        "K1_SORT:": "edge sort, level 1: 5000 edges into 32 destination ranges; level 2 follows after a flag hand-off",
        "K1_D1:": "degree sort of the range's nodes, slot-major image of 8-node groups",
        "k2_kernel:": "k2: workgroup = (destination range, 64-channel slice); lane = 32*half + 4*node + piece",
        "K2_GROUP:": "group of 8 nodes: issue its first loads, finish and store the previous group",
        "K2_S0:": "edge slots: sum z/(1+2^z) kept as num/den, num' = num*(1+t) + z*den, den' = den*(1+t), t = 2^z",
        "K2_FIN:": "overflow guard of the num/den form, next group ticket",
        "K2_TC:": "output GEMM: fetch S tiles of the range once the eight slices have stored them",
        "K2_OOL0:": "lanes whose node has no more edges are masked off; exit after the longest node",
        "K2_SAFE:": "direct evaluation of a group whose denominator overflowed",
        "K2_SLOW:": "generic path for ranges that do not fit the fixed-size structures: scan the edge list per node",
    }
    commented = []
    for line in body:
        if line in notes and not line.endswith("_kernel:"):
            commented.append("    ; " + notes[line])
        commented.append(line)
        if line in notes and line.endswith("_kernel:"):
            commented.append("    ; " + notes[line])
    out = head + commented + ['.section .rodata,"a"'] + desc
    open(path, "w").write("\n".join(out) + "\n")


if __name__ == "__main__":
    if "--stamps" in sys.argv:
        STAMPS = True
        sys.argv.remove("--stamps")
    for arg in [x for x in sys.argv[1:] if "=" in x]:
        key, val = arg.split("=")
        assert key in OPT, key
        OPT[key] = int(val)
        sys.argv.remove(arg)
    main(sys.argv[1] if len(sys.argv) > 1 else "standalone__edge_featured_mpnn_mpnn__graph.s")
```
